```python
import torch

def _softmax(x, axis=-1):
    return torch.softmax(x, dim=axis)
def _gelu(x):
    return torch.nn.functional.gelu(x, approximate="tanh")
def _silu(x):
    return torch.nn.functional.silu(x)
def _sigmoid(x):
    return torch.sigmoid(x)
def _layernorm(x, axis=-1, eps=1e-5):
    m = x.mean(dim=axis, keepdim=True)
    v = x.var(dim=axis, keepdim=True, unbiased=False)
    return (x - m) / torch.sqrt(v + eps)
def _scatter_add(tgt, idx, src, axis=0):
    return tgt.clone().index_add_(axis, idx, src)
def _segment_sum(src, seg, n):
    out = torch.zeros((n,) + src.shape[1:], dtype=src.dtype)
    return out.index_add_(0, seg, src)
def _pad(x, pw):
    flat = tuple(v for pair in reversed(pw) for v in pair)
    return torch.nn.functional.pad(x, flat)

kernel_name = 'parallel_sum__spectral_fnet__dense_activation_squared_relu__prompt'

def setup_inputs():

    _w = (lambda a: (lambda t: t.to(torch.bfloat16) if t.is_floating_point() else t)(torch.as_tensor(a)))
    def _A_setup():
        B, S, D = 1, 2048, 640
        ns = torch.arange(S)[:, None] * torch.arange(S)[None, :]
        nd = torch.arange(D)[:, None] * torch.arange(D)[None, :]
        Ws_re = torch.cos(-2.0 * torch.pi * ns / S).to(float)
        Ws_im = torch.sin(-2.0 * torch.pi * ns / S).to(float)
        Wd_re = torch.cos(-2.0 * torch.pi * nd / D).to(float)
        Wd_im = torch.sin(-2.0 * torch.pi * nd / D).to(float)
        return {
            "x": _w((lambda *s: torch.randn(*s, dtype=torch.bfloat16) * 0.05)(B, S, D)),
            "dft_seq_re": _w(Ws_re),
            "dft_seq_im": _w(Ws_im),
            "dft_hid_re": _w(Wd_re),
            "dft_hid_im": _w(Wd_im),
        }
    _A_in = _A_setup()

    def _B_setup():
        B, S, D, F = 1, 2048, 640, 1728
        return {
            "x": _w((lambda *s: torch.randn(*s, dtype=torch.bfloat16) * 0.05)(B, S, D)),
            "w1": _w((lambda *s: torch.randn(*s, dtype=torch.bfloat16) * 0.2)(D, F)),
            "b1": _w((lambda *s: torch.randn(*s, dtype=torch.bfloat16) * 0.2)(F)),
            "w2": _w((lambda *s: torch.randn(*s, dtype=torch.bfloat16) * 0.2)(F, D)),
            "b2": _w((lambda *s: torch.randn(*s, dtype=torch.bfloat16) * 0.2)(D)),
        }
    _B_in = _B_setup()

    return {
        "A_x": _A_in["x"],
        "A_dft_seq_re": _A_in["dft_seq_re"],
        "A_dft_seq_im": _A_in["dft_seq_im"],
        "A_dft_hid_re": _A_in["dft_hid_re"],
        "A_dft_hid_im": _A_in["dft_hid_im"],
        "B_x": _B_in["x"],
        "B_w1": _B_in["w1"],
        "B_b1": _B_in["b1"],
        "B_w2": _B_in["w2"],
        "B_b2": _B_in["b2"],
    }

def reference(A_x, A_dft_seq_re, A_dft_seq_im, A_dft_hid_re, A_dft_hid_im, B_x, B_w1, B_b1, B_w2, B_b2):
    def _A_ref(x, dft_seq_re, dft_seq_im, dft_hid_re, dft_hid_im):
        a = torch.einsum("bsd,ed->bse", x, dft_hid_re)
        b = torch.einsum("bsd,ed->bse", x, dft_hid_im)
        y = torch.einsum("ts,bse->bte", dft_seq_re, a) - torch.einsum("ts,bse->bte", dft_seq_im, b)
        return y

    def _B_ref(x, w1, b1, w2, b2):
        h = torch.einsum("bsd,df->bsf", x, w1) + b1
        zero = torch.zeros_like(h)
        r = torch.where(h > zero, h, zero)
        h = r * r
        out = torch.einsum("bsf,fd->bsd", h, w2) + b2
        return out

    x = A_x
    xn = _layernorm(x, axis=-1)
    return x + _A_ref(xn, A_dft_seq_re, A_dft_seq_im, A_dft_hid_re, A_dft_hid_im) + _B_ref(xn, B_w1, B_b1, B_w2, B_b2)
```

```python
import re, copy

REG_RE = re.compile(r'^(-|abs\()?([vas])(\d+)\)?$')
RNG_RE = re.compile(r'^(-)?([vas])\[(\d+):(\d+)\]$')

def regs_of(op):
    op = op.strip()
    m = REG_RE.match(op)
    if m: return [(m.group(2), int(m.group(3)))]
    m = RNG_RE.match(op)
    if m: return [(m.group(2), i) for i in range(int(m.group(3)), int(m.group(4)) + 1)]
    if op == 'vcc': return [('s', 106), ('s', 107)]
    if op == 'vcc_lo': return [('s', 106)]
    if op == 'vcc_hi': return [('s', 107)]
    if op == 'm0': return [('s', 124)]
    if op == 'exec': return [('s', 126), ('s', 127)]
    if op == 'exec_lo': return [('s', 126)]
    if op == 'exec_hi': return [('s', 127)]
    return []

TRANS = ('v_exp_f32', 'v_log_f32', 'v_rcp_f32', 'v_rsq_f32', 'v_sqrt_f32', 'v_sin_f32', 'v_cos_f32')

class I:
    __slots__ = ('text', 'mn', 'kind', 'defs', 'uses', 'passes', 'srcc', 'ab', 'states', 'sdata')
    def __init__(self, text):
        self.text = text
        t = text.split(';')[0].strip()
        self.passes = 0; self.srcc = []; self.ab = []; self.states = 1; self.sdata = []
        if t.endswith(':') or t.startswith('.') or not t:
            self.mn = ''; self.kind = 'label' if t.endswith(':') else 'dir'; self.defs = []; self.uses = []; self.states = 0
            return
        parts = t.split(None, 1)
        mn = parts[0]; self.mn = mn
        rest = parts[1] if len(parts) > 1 else ''
        rest = re.sub(r'\s+(op_sel|op_sel_hi|neg_lo|neg_hi):\[[^\]]*\]', '', rest)
        ops = [o.strip() for o in rest.split(',')] if rest else []
        mods = ''
        if ops:
            l = ops[-1].split(None, 1)
            ops[-1] = l[0]
            mods = l[1] if len(l) > 1 else ''
        R = [regs_of(o) for o in ops]
        flat = lambda xs: [r for x in xs for r in x]
        defs = []; uses = []
        if mn.startswith('v_mfma'):
            self.kind = 'mfma'
            defs = R[0]; uses = flat(R[1:4]); self.srcc = R[3]; self.ab = R[1] + R[2]
            self.passes = 8 if '32x32x16' in mn else (4 if '16x16x32' in mn else 2)
        elif mn.startswith('v_'):
            self.kind = 'valu'
            if mn.startswith('v_cmp'):
                defs = R[0]; uses = flat(R[1:])
            elif mn.startswith('v_permlane') and 'swap' in mn:
                defs = R[0] + R[1]; uses = R[0] + R[1]
            elif mn.startswith('v_add_co') or mn.startswith('v_addc_co') or mn.startswith('v_sub_co'):
                defs = R[0] + R[1]; uses = flat(R[2:])
            elif mn == 'v_nop':
                pass
            else:
                defs = R[0]; uses = flat(R[1:])
                if mn.startswith('v_fmac') or mn.startswith('v_dot2c') or mn.startswith('v_writelane'):
                    uses = uses + R[0]
                if mn.startswith('v_cndmask') and len(ops) == 3:
                    uses = uses + regs_of('vcc')
            if mn.startswith('v_dot'): self.kind = 'dot'
        elif mn.startswith('ds_'):
            self.kind = 'ds'
            if mn.startswith('ds_read') or mn.startswith('ds_bpermute') or mn.startswith('ds_permute') or mn.startswith('ds_swizzle'):
                defs = R[0]; uses = flat(R[1:])
            else:
                uses = flat(R)
        elif mn.startswith('buffer_') or mn.startswith('global_'):
            self.kind = 'vmem'
            is_lds = (' lds' in (' ' + mods)) or '_lds_' in mn
            if is_lds:
                uses = flat(R) + regs_of('m0'); self.kind = 'dma'
            elif 'load' in mn:
                defs = R[0]; uses = flat(R[1:])
            elif 'atomic' in mn:
                uses = flat(R)
                if 'sc0' in mods: defs = R[0]
            elif 'store' in mn:
                uses = flat(R)
                if 'x4' in mn or 'x3' in mn:
                    self.sdata = R[0] if mn.startswith('buffer_') else R[1]
            else:
                uses = flat(R)
        elif mn.startswith('s_'):
            self.kind = 'salu'
            if mn == 's_nop':
                self.states = int(ops[0]) + 1
            elif mn.startswith('s_cmp') or mn.startswith('s_cbranch') or mn in ('s_branch', 's_waitcnt', 's_barrier', 's_endpgm', 's_sleep', 's_setprio', 's_bitcmp0_b32', 's_bitcmp1_b32'):
                uses = flat(R)
                if mn.startswith('s_cbranch') or mn == 's_branch' or mn == 's_endpgm': self.kind = 'branch'
            elif mn.startswith('s_load') or mn.startswith('s_mem'):
                self.kind = 'smem'; defs = R[0]; uses = flat(R[1:])
            elif 'saveexec' in mn:
                defs = R[0] + regs_of('exec'); uses = flat(R[1:]) + regs_of('exec')
            else:
                defs = R[0]; uses = flat(R[1:])
                if mn.startswith('s_addk') or mn.startswith('s_mulk'): uses = uses + R[0]
        else:
            raise ValueError('unknown instr ' + text)
        self.defs = defs; self.uses = uses

def need(prod, cons):
    n = 0
    pd = set(prod.defs);
    cu = set(cons.uses); cd = set(cons.defs)
    vpd = {r for r in pd if r[0] in 'va'}
    spd = {r for r in pd if r[0] == 's'}
    pk, ck = prod.kind, cons.kind
    isvalu = lambda k: k in ('valu', 'dot')
    if pk == 'valu' and ck == 'mfma' and (vpd & cu): n = max(n, 2)
    if pk == 'dot':
        if vpd & (cu | cd):
            if cons.mn == prod.mn and not (vpd & set(cons.uses[:-len(cons.defs)] if cons.mn.startswith('v_dot2c') else cons.uses[:2])):
                pass
            else: n = max(n, 3)
    if pk == 'mfma':
        P = prod.passes
        if ck == 'mfma':
            if vpd & set(cons.ab): n = max(n, {2: 5, 4: 8, 8: 12}[P])
            sc = set(cons.srcc)
            if vpd & sc:
                if sc == vpd and cons.passes == P: n = max(n, 2 if P == 2 else 0)
                else: n = max(n, {2: 4, 4: 6, 8: 10}[P])
            elif vpd & cd:
                n = max(n, {2: 5, 4: 8, 8: 12}[P])
        elif isvalu(ck) or ck in ('vmem', 'ds', 'dma'):
            if vpd & (cu | cd): n = max(n, {2: 5, 4: 8, 8: 12}[P])
        if isvalu(ck) and (set(prod.srcc) & cd): n = max(n, {2: 1, 4: 3, 8: 7}[P])
    if isvalu(pk):
        if spd:
            if ck in ('vmem', 'dma') and (spd & cu): n = max(n, 5)
            if isvalu(ck) and (spd & cu):
                n = max(n, 4 if (cons.mn.startswith('v_readlane') or cons.mn.startswith('v_writelane')) else 2)
            if ck == 'mfma' and (spd & {('s', 126), ('s', 127)}): n = max(n, 4)
            if ck in ('salu', 'smem', 'branch') and (spd & cu): n = max(n, 1)
        if vpd & cu:
            if cons.mn.startswith('v_permlane'): n = max(n, 2)
            if '_dpp' in cons.mn or 'row_' in cons.text or 'quad_perm' in cons.text: n = max(n, 2)
            if cons.mn.startswith('v_readlane') or cons.mn.startswith('v_readfirstlane'): n = max(n, 1)
            if prod.mn.replace('_e32', '').replace('_e64', '') in TRANS and (isvalu(ck) or ck == 'mfma'): n = max(n, 1)
            if (('op_sel' in prod.text and not prod.mn.startswith('v_pk_')) or 'sdwa' in prod.mn) and isvalu(ck): n = max(n, 1)
    if pk == 'salu' and ('s', 124) in spd and ck == 'dma': n = max(n, 1)
    if prod.sdata and (set(prod.sdata) & cd):
        n = max(n, 2 if isvalu(ck) else 1)
    return n

class Asm:
    def __init__(self):
        self.ins = []
        self.vm_issued = 0; self.vm_done = 0
        self.lg_issued = 0; self.lg_done = 0
    def fork(self):
        b = Asm()
        b.vm_issued, b.vm_done, b.lg_issued, b.lg_done = self.vm_issued, self.vm_done, self.lg_issued, self.lg_done
        b.pre = self.ins[-24:]
        return b
    def e(self, text):
        for t in text.split('\n'):
            t = t.strip()
            if not t: continue
            i = I(t)
            self.ins.append(i)
            if i.kind in ('vmem', 'dma'):
                self.vm_issued += 1
            elif i.kind == 'ds':
                self.lg_issued += 1
        return None
    def vm(self, text):
        self.e(text); return self.vm_issued
    def lg(self, text):
        self.e(text); return self.lg_issued
    def wait(self, vm=None, lg=None):
        parts = []
        if vm is not None and vm > self.vm_done:
            n = self.vm_issued - vm
            if n > 63: n = 63
            parts.append(f'vmcnt({n})'); self.vm_done = self.vm_issued - n
        if lg is not None and lg > self.lg_done:
            n = self.lg_issued - lg
            if n > 15: n = 15
            parts.append(f'lgkmcnt({n})'); self.lg_done = self.lg_issued - n
        if parts: self.e('s_waitcnt ' + ' '.join(parts))
    def wait_all(self, vm=True, lg=True):
        parts = []
        if vm: parts.append('vmcnt(0)'); self.vm_done = self.vm_issued
        if lg: parts.append('lgkmcnt(0)'); self.lg_done = self.lg_issued
        self.e('s_waitcnt ' + ' '.join(parts))
    def finish(self):
        out = list(getattr(self, 'pre', []))
        npre = len(out)
        nn = 0
        for ins in self.ins:
            if ins.states == 0:
                out.append(ins); continue
            req = 0; dist = 0
            for p in reversed(out):
                if dist >= 20: break
                if p.states == 0: continue
                r = need(p, ins) - dist
                if r > req: req = r
                dist += p.states
            while req > 0:
                k = min(req, 16)
                out.append(I(f's_nop {k-1}')); req -= k; nn += 1
            out.append(ins)
        self.nops = nn
        return [i.text for i in out[npre:]]
```

```python
import sys
from asmlib import Asm
NAME = 'parallel_sum__spectral_fnet__dense_activation_squared_relu__prompt'
DBG = int(sys.argv[2]) if len(sys.argv) > 2 else 0

H_OFF = 0; U_OFF = 0x6C0000; F_OFF = 0x940000; TS_OFF = 0x960000; WS_END = 0x980000
ARING = 0; BBASE = 65536; BSLOT = [24576, 36864, 0, 12288]; DREG = 32768
TAB = 155648; TABC = TAB; TABB = TAB + 512; TABR = TAB + 1024
XCH = 0
RED_PITCH = 336; RED_WAVE = 64 * RED_PITCH
LDS_BYTES = 163840
SX, SW1, SW2, SWS, SOUT = 4, 8, 12, 16, 20
sB1, sB2, sDBG = 24, 26, 28
sW, sZ, sRB, sC8, sROW, sG0 = 30, 31, 32, 33, 34, 35
sA, sA2, sBo, sMA, sMB = 36, 37, 38, 39, 40
sT1, sC, sTAG, sONES = 41, 42, 43, 44
sT = 45
sH = [60, 61, 62]
sFL = 63
sMASK = 64
sK = 65
sTS = 84
def srd(b): return f's[{b}:{b+3}]'
def X(ks): return f'v[{96+4*ks}:{99+4*ks}]'
def ACC1(i): return f'v[{48+16*i}:{63+16*i}]'
def WB(b, i, h=None):
    base = 24 + 12*b + 4*i
    if h is None: return f'v[{base}:{base+3}]'
    return f'v[{base+2*h}:{base+2*h+1}]'
vL = 1
vOA = [2, 3]; vOB = [4, 5, 6]; vAR = [7, 8, 9, 10]; vBR = [11, 12, 13]
vS = [14, 15]; vQ = [16, 17]; vT = 18
aCS = 'a[0:3]'; aSEL = 'a[4:7]'
def aF(k): return f'a[{8+4*k}:{11+4*k}]'
aDG = 32; aTW = 72; aP2 = [88, 104]

nts = [0]
def stamp(a, idx):
    if DBG: a.e(f's_memrealtime s[{sTS+2*idx}:{sTS+2*idx+1}]')

def cvtpk(a, d, x, y): a.e(f'v_cvt_pk_bf16_f32 v{d}, v{x}, v{y}')

def prologue(a):
    a.e('s_cmp_ge_u32 s2, 256\ns_cbranch_scc1 L_end')
    stamp(a, 0)
    a.e('s_load_dwordx2 s[66:67], s[0:1], 0')
    a.e('s_load_dwordx8 s[68:75], s[0:1], 48')
    a.e('s_load_dwordx4 s[76:79], s[0:1], 80')
    a.e('s_load_dwordx2 s[80:81], s[0:1], 96')
    a.e('s_getpc_b64 s[82:83]')
    a.e('v_lshlrev_b32 v2, 7, v0')
    a.vm('global_load_dword v255, v2, s[82:83]')
    a.e('v_add_u32 v2, 0x8000, v2')
    a.vm('global_load_dword v255, v2, s[82:83]')
    a.e(f'v_lshrrev_b32 v4, 6, v0\nv_and_b32 v{vL}, 63, v0\nv_readfirstlane_b32 s{sW}, v4')
    a.e(f's_and_b32 s{sZ}, s2, 1')
    a.e(f's_bfe_u32 s{sT}, s2, 0x20001')
    a.e(f's_bfe_u32 s{sT+1}, s2, 0x20003')
    a.e(f's_lshl_b32 s{sT}, s{sT}, 2')
    a.e(f's_add_u32 s{sRB}, s{sT}, s{sT+1}')
    a.e(f's_lshr_b32 s{sC8}, s2, 5')
    a.e(f's_sub_u32 s{sT+2}, 32, s{sRB}\ns_cmp_eq_u32 s{sRB}, 0\ns_cselect_b32 s{sT+2}, 16, s{sT+2}')
    a.e(f's_bitcmp1_b32 s{sW}, 1\ns_cselect_b32 s{sROW}, s{sT+2}, s{sRB}')
    a.e(f's_and_b32 s{sT+3}, s{sW}, 1\ns_lshl_b32 s{sT+3}, s{sT+3}, 5\ns_add_u32 s{sROW}, s{sROW}, s{sT+3}')
    a.e(f's_mul_i32 s{sG0}, s{sZ}, 27\ns_mul_i32 s{sT+3}, s{sC8}, 3\ns_add_u32 s{sG0}, s{sG0}, s{sT+3}')
    a.e(f's_bfe_u32 s{sT+1}, s2, 0x20004')
    a.e(f's_add_u32 s{sT+1}, s{sT}, s{sT+1}')
    a.e(f's_sub_u32 s{sT+2}, 32, s{sT+1}\ns_cmp_eq_u32 s{sT+1}, 0\ns_cselect_b32 s{sT+2}, 16, s{sT+2}')
    a.e(f's_bitcmp1_b32 s2, 3\ns_cselect_b32 s{sT1}, s{sT+2}, s{sT+1}')
    a.e(f's_lshr_b32 s{sT+1}, s2, 6')
    a.e(f's_lshl_b32 s{sT+2}, s{sZ}, 1')
    a.e(f's_sub_u32 s{sT+3}, 4, s{sT+2}\ns_cmp_lt_u32 s{sT+1}, 2\ns_cselect_b32 s{sT+2}, s{sT+2}, s{sT+3}')
    a.e(f's_add_u32 s{sC}, s{sT+2}, s{sT+1}')
    a.e(f's_mov_b32 s{sONES}, 0x3f803f80')
    a.e(f's_cmp_eq_u32 s{sZ}, 0\ns_cselect_b32 s{sMASK}, 0x80008000, 0')
    a.e(f'v_lshrrev_b32 v{vT}, 3, v{vL}')
    a.e(f'v_lshrrev_b32 v{vT+1}, 4, v{vL}')
    a.e(f'v_and_b32 v{vT+2}, 7, v{vL}')
    a.e(f'v_xor_b32 v{vT+3}, v{vT+2}, v{vT+1}')
    a.e(f's_mov_b32 s{sT+4}, 81920')
    a.e(f'v_mul_lo_u32 v{vT+4}, s{sT+4}, v{vT}')
    a.e(f'v_lshl_add_u32 v{vOA[0]}, v{vT+3}, 4, v{vT+4}')
    a.e(f'v_xor_b32 v{vT+3}, 4, v{vT+3}')
    a.e(f'v_lshl_add_u32 v{vOA[1]}, v{vT+3}, 4, v{vT+4}')
    a.e(f'v_add_u32 v{vOA[1]}, {8*81920-1024}, v{vOA[1]}')
    a.e(f's_mul_i32 s{sT+4}, s{sW}, 192\ns_mov_b32 s{sT+5}, 0xAAAB\ns_movk_i32 s{sT+6}, 3456')
    for i in range(3):
        a.e(f'v_add_u32 v{vT}, s{sT+4}, v{vL}')
        if i: a.e(f'v_add_u32 v{vT}, {64*i}, v{vT}')
        a.e(f'v_mul_lo_u32 v{vT+1}, s{sT+5}, v{vT}\nv_lshrrev_b32 v{vT+1}, 19, v{vT+1}')
        a.e(f'v_mul_u32_u24 v{vT+2}, 12, v{vT+1}\nv_sub_u32 v{vT+2}, v{vT}, v{vT+2}')
        a.e(f'v_mul_u32_u24 v{vT+1}, s{sT+6}, v{vT+1}')
        a.e(f'v_lshl_add_u32 v{vOB[i]}, v{vT+2}, 4, v{vT+1}')
        if i: a.e(f'v_subrev_u32 v{vOB[i]}, {1024*i}, v{vOB[i]}')
    a.e(f's_mul_i32 s{sA}, s{sROW}, 1280\ns_add_u32 s{sA2}, s{sA}, {16*81920-2048}')
    a.e(f's_lshl_b32 s{sBo}, s{sG0}, 6')
    a.e(f's_lshl_b32 s{sMA}, s{sW}, 12')
    a.e(f's_mul_i32 s{sMB}, s{sW}, 3072\ns_add_u32 s{sMB}, s{sMB}, {BBASE}')
    a.e('s_waitcnt lgkmcnt(0)')
    def mk(b, lo, n):
        a.e(f's_mov_b32 s{b}, s{lo}\ns_and_b32 s{b+1}, s{lo+1}, 0xffff\ns_mov_b32 s{b+2}, {n}\ns_mov_b32 s{b+3}, 0x20000')
    mk(SX, 66, 2048*1280); mk(SW1, 68, 640*3456)

def dma_chunk(a, c):
    slot = c % 4
    a.e(f's_add_u32 m0, s{sMA}, {ARING + slot*16384}')
    a.vm(f'buffer_load_dwordx4 v{vOA[0]}, {srd(SX)}, s{sA} offen lds')
    a.vm(f'buffer_load_dwordx4 v{vOA[1]}, {srd(SX)}, s{sA} offen offset:1024 lds')
    a.vm(f'buffer_load_dwordx4 v{vOA[0]}, {srd(SX)}, s{sA2} offen offset:2048 lds')
    a.vm(f'buffer_load_dwordx4 v{vOA[1]}, {srd(SX)}, s{sA2} offen offset:3072 lds')
    a.e(f's_add_u32 m0, s{sMB}, {BSLOT[slot]}')
    a.e(f's_add_u32 s{sA}, s{sA}, 128\ns_add_u32 s{sA2}, s{sA2}, 128')
    for i in range(3):
        t = a.vm(f'buffer_load_dwordx4 v{vOB[i]}, {srd(SW1)}, s{sBo} offen offset:{1024*i} lds')
    a.e(f's_add_u32 s{sBo}, s{sBo}, {64*3456}')
    return t

def prologue2(a):
    def mk(b, lo, n):
        a.e(f's_mov_b32 s{b}, s{lo}\ns_and_b32 s{b+1}, s{lo+1}, 0xffff\ns_mov_b32 s{b+2}, {n}\ns_mov_b32 s{b+3}, 0x20000')
    mk(SW2, 72, 1728*1280); mk(SWS, 80, WS_END); mk(SOUT, 76, 2048*1280)
    a.e(f's_mov_b64 s[{sB1}:{sB1+1}], s[70:71]\ns_mov_b64 s[{sB2}:{sB2+1}], s[74:75]\ns_mov_b64 s[{sDBG}:{sDBG+1}], s[78:79]')
    a.e(f's_or_b32 s{sT}, s2, s{sW}\ns_cmp_lg_u32 s{sT}, 0\ns_cbranch_scc1 L_nononce')
    a.e(f's_memrealtime s[{sT+1}:{sT+2}]\ns_waitcnt lgkmcnt(0)\ns_or_b32 s{sT}, s{sT+1}, 1')
    a.e(f'v_mov_b32 v{vT}, 0\nv_mov_b32 v{vT+1}, s{sT}')
    a.e(f'global_store_dword v{vT}, v{vT+1}, s[{sDBG}:{sDBG+1}] sc1')
    a.vm_issued -= 1
    a.e('L_nononce:')
    a.e(f'v_and_b32 v{vT}, 31, v{vL}\nv_lshrrev_b32 v{vT+1}, 5, v{vL}')
    a.e(f'v_bfe_u32 v{vT+2}, v{vL}, 1, 3\nv_xor_b32 v{vT+2}, v{vT+2}, v{vT+1}')
    a.e(f'v_lshlrev_b32 v{vT+3}, 7, v{vT}\nv_add_u32 v{vT+3}, s{sMA}, v{vT+3}')
    a.e(f'v_lshl_add_u32 v{vAR[0]}, v{vT+2}, 4, v{vT+3}')
    for s in range(1, 4): a.e(f'v_xor_b32 v{vAR[s]}, {s<<5}, v{vAR[0]}')
    a.e(f'v_bfe_u32 v{vT+2}, v{vL}, 2, 2\nv_lshl_add_u32 v{vT+2}, v{vT+1}, 3, v{vT+2}\nv_mul_u32_u24 v{vT+2}, 192, v{vT+2}')
    a.e(f'v_bfe_u32 v{vT+3}, v{vL}, 4, 1\nv_lshl_add_u32 v{vT+2}, v{vT+3}, 5, v{vT+2}')
    a.e(f'v_and_b32 v{vT+3}, 3, v{vL}\nv_lshl_add_u32 v{vT+2}, v{vT+3}, 3, v{vT+2}')
    for i in range(3):
        a.e(f's_add_u32 s{sT}, s{sW}, {i}\ns_cmp_ge_u32 s{sT}, 3\ns_cselect_b32 s{sT+1}, 3, 0\ns_sub_u32 s{sT}, s{sT}, s{sT+1}')
        a.e(f's_cmp_ge_u32 s{sT}, 3\ns_cselect_b32 s{sT+1}, 3, 0\ns_sub_u32 s{sT}, s{sT}, s{sT+1}')
        a.e(f's_lshl_b32 s{sT+1}, s{sT}, 6\ns_add_u32 s{sT+1}, s{sT+1}, {BBASE}')
        a.e(f'v_add_u32 v{vBR[i]}, s{sT+1}, v{vT+2}')
        a.e(f's_mul_i32 s{sH[i]}, s{sROW}, 54\ns_add_u32 s{sH[i]}, s{sH[i]}, s{sG0}\ns_add_u32 s{sH[i]}, s{sH[i]}, s{sT}\ns_lshl_b32 s{sH[i]}, s{sH[i]}, 11')
    a.e(f's_lshl_b32 s{sFL}, s{sRB}, 1\ns_add_u32 s{sFL}, s{sFL}, s{sZ}\ns_lshl_b32 s{sFL}, s{sFL}, 3\ns_add_u32 s{sFL}, s{sFL}, s{sC8}')
    a.e(f's_lshl_b32 s{sFL}, s{sFL}, 2\ns_add_u32 s{sFL}, s{sFL}, s{sW}\ns_lshl_b32 s{sFL}, s{sFL}, 7\ns_add_u32 s{sFL}, s{sFL}, {F_OFF}')
    a.e(f'v_and_b32 v{vT}, 15, v{vL}\nv_bfe_u32 v{vT+1}, v{vL}, 4, 1\nv_cmp_eq_u32 vcc, v{vT}, v{vT+1}')
    a.e(f'v_mov_b32 v{vT+2}, s{sONES}\nv_cndmask_b32 v{vT+2}, 0, v{vT+2}, vcc')
    for k in range(4): a.e(f'v_accvgpr_write_b32 a{4+k}, v{vT+2}')
    for r in vS + vQ: a.e(f'v_mov_b32 v{r}, 0')
    a.e(f's_mul_i32 s{sT}, s{sZ}, 27\ns_add_u32 s{sT}, s{sT}, s{sC8}\ns_add_u32 s{sT}, s{sT}, 19\ns_lshl_b32 s{sT}, s{sT}, 6\ns_sub_u32 s{sT}, s{sT}, 192')
    a.e(f's_lshl_b32 s{sT+1}, s{sG0}, 6')
    a.e(f'v_mov_b32 v{vT}, s{sT+1}\nv_mov_b32 v{vT+1}, s{sT}\nv_cmp_gt_u32 vcc, 48, v{vL}\nv_cndmask_b32 v{vT}, v{vT+1}, v{vT}, vcc')
    a.e(f'v_lshl_add_u32 v{vT}, v{vL}, 2, v{vT}')
    return a.vm(f'global_load_dword v{vT+5}, v{vT}, s[{sB1}:{sB1+1}]')

def b1_table(a, tok):
    a.wait(vm=tok)
    a.e(f'v_lshlrev_b32 v{vT}, 16, v{vT+5}\nv_and_b32 v{vT+1}, 0xffff0000, v{vT+5}')
    a.e(f'v_lshlrev_b32 v{vT+2}, 3, v{vL}\nv_add_u32 v{vT+2}, {TABB}, v{vT+2}')
    a.lg(f'ds_write_b64 v{vT+2}, v[{vT}:{vT+1}]')

def gen_twiddles(a, tmp):
    t = tmp
    a.e(f'v_and_b32 v{t}, 15, v{vL}\nv_lshrrev_b32 v{t+1}, 4, v{vL}')
    a.e(f's_lshl_b32 s{sT}, s{sW}, 2\nv_add_u32 v{t+1}, s{sT}, v{t+1}')
    a.e(f'v_sub_u32 v{t+2}, 32, v{t+1}\nv_cmp_eq_u32 vcc, 0, v{t+1}\nv_cndmask_b32 v{t+2}, v{t+2}, 16, vcc')
    a.e(f'v_add_u32 v{t+3}, 32, v{t+1}\nv_add_u32 v{t+4}, 32, v{t+2}')
    s2r = [t+1, t+3, t+2, t+4]
    a.e(f'v_lshlrev_b32 v{t}, 6, v{t}\nv_add_u32 v{t}, s{sT1}, v{t}')
    a.e(f's_mov_b32 s{sT+1}, 0x3a000000')
    a.e(f's_cmp_ge_u32 s{sC}, 4\ns_cselect_b32 s{sT+2}, s{sT+1}, 0xba000000')
    for rt in range(4):
        add = 32*(rt >> 1) + 1024*(rt & 1)
        a.e(f'v_add_u32 v{t+5}, {add}, v{t}')
        for w in range(4):
            a.e(f'v_mul_u32_u24 v{t+6}, v{t+5}, v{s2r[w]}\nv_and_b32 v{t+6}, 0x7ff, v{t+6}\nv_cvt_f32_u32 v{t+6}, v{t+6}')
            a.e(f'v_mul_f32 v{t+7}, s{sT+1}, v{t+6}\nv_mul_f32 v{t+8}, s{sT+2}, v{t+6}')
            a.e(f'v_cos_f32 v{t+7}, v{t+7}\nv_sin_f32 v{t+8}, v{t+8}')
            cvtpk(a, t+9, t+7, t+8)
            a.e(f'v_accvgpr_write_b32 a{aTW+4*rt+w}, v{t+9}')

def gen_P_consts(a, tmp):
    t = tmp
    a.e(f'v_and_b32 v{t}, 31, v{vL}\nv_lshrrev_b32 v{t+1}, 5, v{vL}\nv_cvt_f32_u32 v{t+2}, v{t}')
    a.e(f'v_mul_f32 v{t+2}, 0x3d000000, v{t+2}')
    a.e(f'v_lshlrev_b32 v{t+3}, 2, v{t+1}\nv_cvt_f32_u32 v{t+3}, v{t+3}\nv_mul_f32 v{t+3}, v{t+3}, v{t+2}')
    for f in range(2):
        for ip in range(4):
            for k in range(2):
                i = 2*ip + k
                s1 = 16*f + 8*(i >> 2) + (i & 3)
                a.e(f's_mov_b32 s{sT}, {fhex(float(s1))}')
                a.e(f'v_fma_f32 v{t+4+k}, s{sT}, v{t+2}, v{t+3}')
                a.e(f'v_cos_f32 v{t+6+k}, v{t+4+k}\nv_sin_f32 v{t+8+k}, v{t+4+k}')
            cvtpk(a, t+10, t+6, t+7); cvtpk(a, t+11, t+8, t+9)
            a.e(f'v_xor_b32 v{t+12}, 0x80008000, v{t+11}')
            a.e(f'v_accvgpr_write_b32 a{8+4*f+ip}, v{t+10}\nv_accvgpr_write_b32 a{16+4*f+ip}, v{t+11}\nv_accvgpr_write_b32 a{24+4*f+ip}, v{t+12}')
    a.e(f's_lshl_b32 s{sT}, s{sC8}, 6\ns_add_u32 s{sT}, s{sT}, s{sZ}\ns_add_u32 s{sT}, s{sT}, 1')
    a.e(f'v_lshl_add_u32 v{t}, v{t}, 1, s{sT}\nv_cvt_f32_u32 v{t}, v{t}\nv_mul_f32 v{t}, {fhex(1/640)}, v{t}')
    a.e(f's_mul_i32 s{sT}, s{sW}, 80\nv_lshl_add_u32 v{t+1}, v{t+1}, 3, s{sT}\nv_cvt_f32_u32 v{t+1}, v{t+1}\nv_mul_f32 v{t+1}, v{t+1}, v{t}')
    for k5 in range(5):
        for ip in range(4):
            for k in range(2):
                d = 16*k5 + 2*ip + k
                a.e(f's_mov_b32 s{sT}, {fhex(float(d))}')
                a.e(f'v_fma_f32 v{t+4+k}, s{sT}, v{t}, v{t+1}')
                a.e(f'v_cos_f32 v{t+6+k}, v{t+4+k}\nv_sin_f32 v{t+8+k}, v{t+4+k}')
            cvtpk(a, t+10, t+6, t+7); cvtpk(a, t+11, t+8, t+9)
            a.e(f'v_accvgpr_write_b32 a{aDG+8*k5+ip}, v{t+10}\nv_accvgpr_write_b32 a{aDG+8*k5+4+ip}, v{t+11}')

import struct
def fhex(x): return '0x%08x' % struct.unpack('<I', struct.pack('<f', x))[0]

def rdW(a, buf, c, s, i, h):
    return a.lg(f'ds_read_b64_tr_b16 {WB(buf,i,h)}, v{vBR[i]} offset:{BSLOT[c%4] + s*3072 + h*768}')
def rdA(a, c):
    for s in range(4):
        t = a.lg(f'ds_read_b128 {X(4*c+s)}, v{vAR[s]} offset:{ARING + (c%4)*16384}')
    return t

def pass1_chunk(a, c, st, hook=None):
    for s in range(4):
        ks = 4*c + s; buf = ks & 1
        cz = '0' if ks == 0 else None
        if s == 3 and c < 9:
            a.wait(vm=st['dma'][c+1], lg=a.lg_issued)
            a.e('s_barrier')
            nxt = (c+1, 0)
            st['atok'] = rdA(a, c+1)
        elif s == 3:
            a.wait(lg=a.lg_issued); nxt = None
        else:
            nxt = (c, s+1)
            a.wait(lg=max(st['wtok'], st['atok'] if s == 0 else 0))
        for i in range(3):
            a.e(f'v_mfma_f32_32x32x16_bf16 {ACC1(i)}, {WB(buf,i)}, {X(ks)}, {cz or ACC1(i)}')
            if nxt:
                rdW(a, buf ^ 1, nxt[0], nxt[1], i, 0); st['wtok'] = rdW(a, buf ^ 1, nxt[0], nxt[1], i, 1)
        a.e(f'v_mfma_f32_16x16x32_bf16 {aCS}, {aSEL}, {WB(buf,0)}, {cz or aCS}')
        if s == 3 and c + 4 < 10:
            st['dma'][c+4] = dma_chunk(a, c+4)
        if s == 3 and hook: hook(a, c)
        if s == 1:
            for k in range(4):
                for r in range(4):
                    x = 96 + 4*(4*c+k) + r
                    a.e(f'v_dot2c_f32_bf16 v{vS[r&1]}, s{sONES}, v{x}\nv_dot2c_f32_bf16 v{vQ[r&1]}, v{x}, v{x}')

vR, vNM = 14, 15
def stats(a):
    t = vT
    a.e(f'v_add_f32 v{vS[0]}, v{vS[0]}, v{vS[1]}\nv_add_f32 v{vQ[0]}, v{vQ[0]}, v{vQ[1]}')
    a.e(f'v_mov_b32 v{vS[1]}, v{vS[0]}\nv_mov_b32 v{vQ[1]}, v{vQ[0]}')
    a.e(f'v_permlane32_swap_b32 v{vS[0]}, v{vS[1]}\nv_permlane32_swap_b32 v{vQ[0]}, v{vQ[1]}')
    a.e(f'v_add_f32 v{t}, v{vS[0]}, v{vS[1]}\nv_add_f32 v{t+1}, v{vQ[0]}, v{vQ[1]}')
    a.e(f'v_mul_f32 v{t}, {fhex(1/640)}, v{t}\nv_mul_f32 v{t+1}, {fhex(1/640)}, v{t+1}')
    a.e(f'v_fma_f32 v{t+1}, -v{t}, v{t}, v{t+1}\nv_max_f32 v{t+1}, 0, v{t+1}\nv_add_f32 v{t+1}, {fhex(1e-5)}, v{t+1}')
    a.e(f'v_rsq_f32 v{vR}, v{t+1}\nv_mul_f32 v{vNM}, v{t}, v{vR}\nv_sub_f32 v{vNM}, 0, v{vNM}')

def write_cs(a, tabslot_sgpr_expr_reg):
    t = vT
    a.e(f'v_accvgpr_read_b32 v{t}, a0\nv_accvgpr_read_b32 v{t+1}, a1')
    a.e(f'v_lshlrev_b32 v{t+2}, 2, v{vL}\nv_add_u32 v{t+2}, s{tabslot_sgpr_expr_reg}, v{t+2}')
    a.e(f's_mov_b64 exec, 0xffff')
    a.lg(f'ds_write2_b32 v{t+2}, v{t}, v{t+1} offset0:0 offset1:16')
    a.e(f's_mov_b64 exec, -1')

vHO = 16
def h_epilogue(a, acc, tabreg, soff, tmp):
    tok = None
    for u in range(2):
        for jq in range(2):
            a.lg(f'ds_read_b128 v[{tmp+8*jq}:{tmp+8*jq+3}], v{tabreg} offset:{(2*u+jq)*32}')
            lt = a.lg(f'ds_read_b128 v[{tmp+8*jq+4}:{tmp+8*jq+7}], v{tabreg} offset:{(2*u+jq)*32+512}')
        a.wait(lg=lt)
        for jq in range(2):
            for k in range(4):
                j = acc + 8*u + 4*jq + k
                a.e(f'v_fma_f32 v{tmp+8*jq+k}, v{vNM}, v{tmp+8*jq+k}, v{tmp+8*jq+4+k}')
                a.e(f'v_fma_f32 v{j}, v{vR}, v{j}, v{tmp+8*jq+k}')
                a.e(f'v_max_f32 v{j}, 0, v{j}\nv_mul_f32 v{j}, v{j}, v{j}')
        b = acc + 8*u
        for k in range(4): cvtpk(a, b+k, b+2*k, b+2*k+1)
        tok = a.vm(f'buffer_store_dwordx4 v[{b}:{b+3}], v{vHO}, {srd(SWS)}, s{soff} offen offset:{512*u} sc1')
    return tok

pollid = [0]
def get_nonce(a):
    n = pollid[0]; pollid[0] += 1
    a.e(f'v_mov_b32 v{vT}, 0\ns_mov_b32 s{sT}, 0')
    a.e(f'L_nonce{n}:')
    a.e(f'global_load_dword v{vT+1}, v{vT}, s[{sDBG}:{sDBG+1}] sc1'); a.vm_issued -= 1
    a.e('s_waitcnt vmcnt(0)'); a.vm_done = a.vm_issued
    a.e(f'v_readfirstlane_b32 s{sTAG}, v{vT+1}\ns_add_u32 s{sT}, s{sT}, 1\ns_cmp_gt_u32 s{sT}, 20000\ns_cbranch_scc1 L_nonce{n}d')
    a.e(f's_cmp_eq_u32 s{sTAG}, 0\ns_cbranch_scc1 L_nonce{n}')
    a.e(f'L_nonce{n}d:')

def set_flag(a, word):
    a.e(f'v_mov_b32 v{vT}, {4*word}\nv_mov_b32 v{vT+1}, s{sTAG}\ns_mov_b64 exec, 1')
    a.vm(f'buffer_store_dword v{vT+1}, v{vT}, {srd(SWS)}, s{sFL} offen sc1')
    a.e('s_mov_b64 exec, -1')

def poll(a, vaddr, vtmp, nl):
    n = pollid[0]; pollid[0] += 1
    a.e(f's_mov_b32 exec_lo, {hex(((1<<nl)-1)&0xffffffff)}\ns_mov_b32 exec_hi, {hex(((1<<nl)-1)>>32)}\ns_mov_b32 s{sT}, 0')
    a.e(f'L_poll{n}:')
    a.e(f'buffer_load_dword v{vtmp}, v{vaddr}, {srd(SWS)}, 0 offen sc1'); a.vm_issued -= 1
    a.e('s_waitcnt vmcnt(0)'); a.vm_done = a.vm_issued
    a.e(f'v_cmp_ne_u32 vcc, s{sTAG}, v{vtmp}\ns_add_u32 s{sT}, s{sT}, 1\ns_cmp_gt_u32 s{sT}, 20000\ns_cbranch_scc1 L_poll{n}d')
    a.e(f's_cbranch_vccz L_poll{n}d\ns_sleep 2\ns_branch L_poll{n}')
    a.e(f'L_poll{n}d:\ns_mov_b64 exec, -1')

def after_pass1_common(a):
    stats(a)
    a.e(f's_cmp_eq_u32 s{sW}, 3\ns_cselect_b32 s{sT+1}, 0, s{sW}\ns_lshl_b32 s{sT+1}, s{sT+1}, 7\ns_add_u32 s{sT+1}, s{sT+1}, {TABC}')
    write_cs(a, sT+1)
    a.e(f's_lshl_b32 s{sT+2}, s{sW}, 7\ns_add_u32 s{sT+2}, s{sT+2}, {TABR}')
    a.e(f'v_and_b32 v{vT}, 31, v{vL}\nv_lshl_add_u32 v{vT}, v{vT}, 2, s{sT+2}')
    a.lg(f'ds_write_b32 v{vT}, v{vR}')
    a.e(f'v_bfe_u32 v{vT}, v{vL}, 4, 1\nv_lshlrev_b32 v{vHO}, 10, v{vT}\nv_lshrrev_b32 v{vT}, 5, v{vL}\nv_lshl_add_u32 v{vHO}, v{vT}, 8, v{vHO}')
    a.e(f'v_and_b32 v{vT+1}, 15, v{vL}\nv_lshl_add_u32 v{vHO}, v{vT+1}, 4, v{vHO}')
    for i in range(3):
        a.e(f's_add_u32 s{sT}, s{sW}, {i}\ns_cmp_ge_u32 s{sT}, 3\ns_cselect_b32 s{sT+1}, 3, 0\ns_sub_u32 s{sT}, s{sT}, s{sT+1}')
        a.e(f's_cmp_ge_u32 s{sT}, 3\ns_cselect_b32 s{sT+1}, 3, 0\ns_sub_u32 s{sT}, s{sT}, s{sT+1}')
        a.e(f's_lshl_b32 s{sT}, s{sT}, 7\ns_add_u32 s{sT}, s{sT}, {TABC}')
        a.e(f'v_lshl_add_u32 v{vBR[i]}, v{vT}, 4, s{sT}')
    a.wait(lg=a.lg_issued)
    a.e('s_barrier')
    get_nonce(a)
    for i in range(3):
        tok = h_epilogue(a, 48+16*i, vBR[i], sH[i], 24)
    a.wait(vm=tok)
    set_flag(a, 0)

def P_hook(a, c):
    if c == 7:
        a.e(f's_mul_i32 s{sT}, s{sW}, 10240\ns_add_u32 s{sT}, s{sT}, {DREG}\nv_lshl_add_u32 v{vT}, v{vL}, 4, s{sT}')
        for k5 in range(5):
            for tl in range(2):
                b = aDG + 8*k5 + 4*tl
                a.lg(f'ds_write_b128 v{vT}, a[{b}:{b+3}] offset:{k5*2048+tl*1024}')

def Q_hook(a, c):
    if c == 7:
        a.e(f'v_lshrrev_b32 v{vT}, 2, v{vL}\ns_movk_i32 s{sT}, 3456\nv_mul_u32_u24 v{vT}, s{sT}, v{vT}\nv_and_b32 v{vT+1}, 3, v{vL}\nv_lshl_add_u32 v{vT}, v{vT+1}, 4, v{vT}')
        a.e(f's_mul_i32 s{sT}, s{sZ}, 27\ns_add_u32 s{sT}, s{sT}, s{sC8}\ns_add_u32 s{sT}, s{sT}, 19\ns_lshl_b32 s{sT}, s{sT}, 6')
        a.e(f's_mul_i32 s{sT+1}, s{sW}, {160*3456}\ns_add_u32 s{sT}, s{sT}, s{sT+1}')
        a.e(f's_mul_i32 s{sT+1}, s{sW}, 10240\ns_add_u32 s{sT+1}, s{sT+1}, {DREG}')
        for i in range(10):
            a.e(f's_add_u32 m0, s{sT+1}, {1024*i}')
            a.st_late = a.vm(f'buffer_load_dwordx4 v{vT}, {srd(SW1)}, s{sT} offen lds')
            a.e(f's_add_u32 s{sT}, s{sT}, {16*3456}')

def pass2_P(a):
    vD = 2
    a.e(f'v_lshlrev_b32 v{vD}, 4, v{vL}\nv_add_u32 v{vD}, {DREG}, v{vD}')
    DB = lambda b, t: f'v[{24+8*b+4*t}:{27+8*b+4*t}]'
    AC = [f'a[{aP2[0]}:{aP2[0]+15}]', f'a[{aP2[1]}:{aP2[1]+15}]']
    def rd(ks):
        a.lg(f'ds_read_b128 {DB(ks&1,0)}, v{vD} offset:{ks*2048}')
        return a.lg(f'ds_read_b128 {DB(ks&1,1)}, v{vD} offset:{ks*2048+1024}')
    def neg(ks):
        for r in range(4): a.e(f'v_xor_b32 v{96+4*(ks+20)+r}, s{sMASK}, v{96+4*(ks+20)+r}')
    tok = rd(0); neg(0)
    for ks in range(20):
        cur = tok
        if ks < 19: tok = rd(ks+1)
        a.wait(lg=cur)
        cz = '0' if ks == 0 else None
        a.e(f'v_mfma_f32_32x32x16_bf16 {AC[0]}, {X(ks)}, {DB(ks&1,0)}, {cz or AC[0]}')
        a.e(f'v_mfma_f32_32x32x16_bf16 {AC[1]}, {X(ks)}, {DB(ks&1,1)}, {cz or AC[1]}')
        if ks < 19: neg(ks+1)
        a.e(f'v_mfma_f32_32x32x16_bf16 {AC[0]}, {X(ks+20)}, {DB(ks&1,0)}, {AC[0]}')
        a.e(f'v_mfma_f32_32x32x16_bf16 {AC[1]}, {X(ks+20)}, {DB(ks&1,1)}, {AC[1]}')
    rr = 24
    a.e(f's_lshl_b32 s{sT}, s{sW}, 7\ns_add_u32 s{sT}, s{sT}, {TABR}\nv_lshrrev_b32 v{vT}, 5, v{vL}\nv_lshl_add_u32 v{vT}, v{vT}, 4, s{sT}')
    for jq in range(4): t = a.lg(f'ds_read_b128 v[{rr+4*jq}:{rr+4*jq+3}], v{vT} offset:{32*jq}')
    for k in range(2):
        for j in range(16): a.e(f'v_accvgpr_read_b32 v{48+16*k+j}, a{aP2[k]+j}')
    a.wait(lg=t)
    for k in range(2):
        for j in range(16): a.e(f'v_mul_f32 v{48+16*k+j}, v{rr+j}, v{48+16*k+j}')
        for j in range(8): cvtpk(a, 48+16*k+j, 48+16*k+2*j, 48+16*k+2*j+1)
    G = lambda k, f: f'v[{48+16*k+4*f}:{51+16*k+4*f}]'
    UR = 'v[96:111]'; UV = 'v[112:127]'
    a.e(f'v_mfma_f32_32x32x16_bf16 {UR}, {aF(0)}, {G(0,0)}, 0')
    a.e(f'v_mfma_f32_32x32x16_bf16 {UV}, {aF(2)}, {G(0,0)}, 0')
    a.e(f'v_mfma_f32_32x32x16_bf16 {UR}, {aF(1)}, {G(0,1)}, {UR}')
    a.e(f'v_mfma_f32_32x32x16_bf16 {UV}, {aF(3)}, {G(0,1)}, {UV}')
    a.e(f'v_mfma_f32_32x32x16_bf16 {UR}, {aF(4)}, {G(1,0)}, {UR}')
    a.e(f'v_mfma_f32_32x32x16_bf16 {UV}, {aF(0)}, {G(1,0)}, {UV}')
    a.e(f'v_mfma_f32_32x32x16_bf16 {UR}, {aF(5)}, {G(1,1)}, {UR}')
    a.e(f'v_mfma_f32_32x32x16_bf16 {UV}, {aF(1)}, {G(1,1)}, {UV}')
    a.e(f'v_and_b32 v{vT}, 31, v{vL}\nv_lshrrev_b32 v{vT+1}, 5, v{vL}\nv_lshlrev_b32 v{vT+2}, 2, v{vT}')
    a.e(f's_lshl_b32 s{sT}, s{sW}, 12\ns_add_u32 s{sT}, s{sT}, {XCH}')
    a.e(f'v_lshl_add_u32 v{vT+3}, v{vT+1}, 9, v{vT+2}\nv_add_u32 v{vT+3}, s{sT}, v{vT+3}')
    a.e(f's_lshl_b32 s{sT}, s{sW}, 10\ns_add_u32 s{sT}, s{sT}, {XCH}')
    a.e(f'v_lshl_add_u32 v{vT+4}, v{vT+1}, 7, v{vT+2}\nv_add_u32 v{vT+4}, s{sT}, v{vT+4}')
    a.e(f's_mov_b32 s{sT}, 81920\nv_mul_lo_u32 v{vT+1}, s{sT}, v{vT+1}\nv_lshl_add_u32 v{vT+5}, v{vT}, 4, v{vT+1}')
    for j in range(16):
        cvtpk(a, 96+j, 96+j, 112+j)
        a.lg(f'ds_write_b32 v{vT+3}, v{96+j} offset:{(8*(j>>2)+(j&3))*128}')
    a.wait(lg=a.lg_issued); a.e('s_barrier')
    toks = []
    for i in range(4):
        a.lg(f'ds_read2st64_b32 v[{128+4*i}:{129+4*i}], v{vT+4} offset0:{i} offset1:{16+i}')
        toks.append(a.lg(f'ds_read2st64_b32 v[{130+4*i}:{131+4*i}], v{vT+4} offset0:{32+i} offset1:{48+i}'))
    a.e(f's_lshl_b32 s{sT}, s{sW}, 7\ns_add_u32 s{sT}, s{sT}, s{sRB}\ns_mul_i32 s{sT}, s{sT}, 5120')
    a.e(f's_mul_i32 s{sT+1}, s{sZ}, 5\ns_add_u32 s{sT+1}, s{sT+1}, s{sC8}\ns_lshl_b32 s{sT+1}, s{sT+1}, 9\ns_add_u32 s{sT}, s{sT}, s{sT+1}\ns_add_u32 s{sT}, s{sT}, {U_OFF}')
    for i in range(4):
        a.wait(lg=toks[i])
        t = a.vm(f'buffer_store_dwordx4 v[{128+4*i}:{131+4*i}], v{vT+5}, {srd(SWS)}, s{sT} offen sc1')
        a.e(f's_add_u32 s{sT}, s{sT}, 163840')
    a.wait(vm=t)
    set_flag(a, 1)

def pass2_Q(a):
    a.wait(vm=a.st_late); a.e('s_barrier')
    vB = 2
    a.e(f'v_lshrrev_b32 v{vT+1}, 5, v{vL}\nv_bfe_u32 v{vT+2}, v{vL}, 2, 2\nv_lshl_add_u32 v{vT+2}, v{vT+1}, 3, v{vT+2}\nv_lshlrev_b32 v{vT+2}, 6, v{vT+2}')
    a.e(f'v_bfe_u32 v{vT+3}, v{vL}, 4, 1\nv_lshl_add_u32 v{vT+2}, v{vT+3}, 5, v{vT+2}\nv_and_b32 v{vT+3}, 3, v{vL}\nv_lshl_add_u32 v{vT+2}, v{vT+3}, 3, v{vT+2}')
    a.e(f'v_add_u32 v{vB}, {DREG}, v{vT+2}')
    NB = 4
    FB = lambda ks, h=None: (f'v[{24+4*(ks%NB)}:{27+4*(ks%NB)}]' if h is None else f'v[{24+4*(ks%NB)+2*h}:{25+4*(ks%NB)+2*h}]')
    def rd(ks):
        a.lg(f'ds_read_b64_tr_b16 {FB(ks,0)}, v{vB} offset:{ks*1024}')
        return a.lg(f'ds_read_b64_tr_b16 {FB(ks,1)}, v{vB} offset:{ks*1024+256}')
    toks = {}
    for k in range(3): toks[k] = rd(k)
    for ks in range(40):
        if ks + 3 < 40: toks[ks+3] = rd(ks+3)
        a.wait(lg=toks[ks])
        cz = '0' if ks == 0 else None
        a.e(f'v_mfma_f32_32x32x16_bf16 {ACC1(0)}, {FB(ks)}, {X(ks)}, {cz or ACC1(0)}')
        a.e(f'v_mfma_f32_16x16x32_bf16 {aCS}, {aSEL}, {FB(ks)}, {cz or aCS}')
    a.e(f's_mov_b32 s{sT+1}, {TABC+384}')
    write_cs(a, sT+1)
    a.e(f'v_lshrrev_b32 v{vT}, 5, v{vL}\nv_lshlrev_b32 v{vT}, 4, v{vT}\nv_add_u32 v{vBR[0]}, {TABC+384}, v{vT}')
    a.e(f's_mul_i32 s{sT}, s{sZ}, 27\ns_add_u32 s{sT}, s{sT}, s{sC8}\ns_add_u32 s{sT}, s{sT}, 19')
    a.e(f's_mul_i32 s{sH[0]}, s{sROW}, 54\ns_add_u32 s{sH[0]}, s{sH[0]}, s{sT}\ns_lshl_b32 s{sH[0]}, s{sH[0]}, 11')
    a.wait(lg=a.lg_issued)
    tok = h_epilogue(a, 48, vBR[0], sH[0], 24)
    a.wait(vm=tok)
    set_flag(a, 1)

def W2(slot, ct, h=None):
    if slot < 8: k, b = 'a', 88 + 20*slot
    elif slot < 11: k, b = 'a', 20*(slot-8)
    else: k, b = 'v', 196 + 20*(slot-11)
    b += 4*ct
    if h is None: return f'{k}[{b}:{b+3}]'
    return f'{k}[{b+2*h}:{b+2*h+1}]'
UF = ['a[60:63]', 'a[64:67]', 'a[68:71]', 'a[248:251]', 'a[252:255]']
def ACC2(ct, rt): b = 16 + 20*rt + 4*ct; return f'v[{b}:{b+3}]'
def HF(n): b = 96 + 4*(n % 24); return f'v[{b}:{b+3}]'

def phase2(a, sfx):
    t = 2
    a.e('s_barrier')
    stamp(a, 3)
    a.e(f's_mul_i32 s{sT}, s{sZ}, 27\ns_mul_i32 s{sT+1}, s{sW}, 6\ns_add_u32 s{sT+2}, s{sT}, s{sT+1}')
    a.e(f's_sub_u32 s{sT+3}, 27, s{sT}\ns_add_u32 s{sT+4}, s{sT+3}, s{sT+1}')
    a.e(f's_add_u32 s{sT+5}, s{sT}, 24\ns_add_u32 s{sT+5}, s{sT+5}, s{sW}\ns_add_u32 s{sT+6}, s{sT+3}, 24\ns_cmp_eq_u32 s{sW}, 3\ns_cselect_b32 s{sT+5}, s{sT+6}, s{sT+5}')
    a.e(f's_and_b32 s{sT+7}, s{sW}, 1\ns_add_u32 s{sT+6}, s{sT+6}, 1\ns_add_u32 s{sT+6}, s{sT+6}, s{sT+7}')
    sOWN, sOTH, sL0, sL1 = sT+2, sT+4, sT+5, sT+6
    a.e(f's_mov_b32 s{sT+8}, 0xCCCD\ns_movk_i32 s{sT+9}, 1280')
    for i in range(5):
        a.e(f'v_add_u32 v{t+10}, {64*i}, v{vL}')
        a.e(f'v_mul_lo_u32 v{t+11}, s{sT+8}, v{t+10}\nv_lshrrev_b32 v{t+11}, 19, v{t+11}')
        a.e(f'v_mul_u32_u24 v{t+12}, 10, v{t+11}\nv_sub_u32 v{t+12}, v{t+10}, v{t+12}')
        a.e(f'v_mul_u32_u24 v{t+11}, s{sT+9}, v{t+11}\nv_lshl_add_u32 v{t+i}, v{t+12}, 4, v{t+11}')
        if 0 < i < 4: a.e(f'v_subrev_u32 v{t+i}, {1024*i}, v{t+i}')
    vWO = [t+i for i in range(5)]
    sCW = sT+8
    a.e(f's_mul_i32 s{sCW}, s{sC}, 160')
    sMW = sT+9
    a.e(f's_mul_i32 s{sMW}, s{sW}, 40960')
    sWo = sT+10
    def tile_s(slot):
        if slot < 6: return sOWN, slot
        if slot < 12: return sOTH, slot-6
        return (sL0, 0) if slot == 12 else (sL1, 0)
    def dma_w2(slot):
        r, k = tile_s(slot)
        if k == 0:
            a.e(f's_mul_i32 s{sWo}, s{r}, 40960\ns_add_u32 s{sWo}, s{sWo}, s{sCW}')
        else:
            a.e(f's_add_u32 s{sWo}, s{sWo}, 40960')
        a.e(f's_add_u32 m0, s{sMW}, {(slot%8)*5120}')
        for i in range(4):
            a.vm(f'buffer_load_dwordx4 v{vWO[i]}, {srd(SW2)}, s{sWo} offen offset:{1024*i} lds')
        a.e(f's_add_u32 m0, s{sMW}, {(slot%8)*5120+4096}')
        return a.vm(f'buffer_load_dwordx4 v{vWO[4]}, {srd(SW2)}, s{sWo} offen lds')
    wt = {}
    for s in range(8): wt[s] = dma_w2(s)
    vWR = t+5
    a.e(f'v_lshrrev_b32 v{t+10}, 5, v{vL}\nv_lshlrev_b32 v{t+10}, 4, v{t+10}\nv_bfe_u32 v{t+11}, v{vL}, 4, 1\nv_lshl_add_u32 v{t+10}, v{t+11}, 2, v{t+10}')
    a.e(f'v_bfe_u32 v{t+11}, v{vL}, 2, 2\nv_add_u32 v{t+10}, v{t+10}, v{t+11}\nv_mul_u32_u24 v{t+10}, 160, v{t+10}')
    a.e(f'v_and_b32 v{t+11}, 3, v{vL}\nv_lshl_add_u32 v{t+10}, v{t+11}, 3, v{t+10}\nv_add_u32 v{vWR}, s{sMW}, v{t+10}')
    for s in range(14):
        a.wait(vm=wt[s])
        for ct in range(5):
            for h in range(2):
                lt = a.lg(f'ds_read_b64_tr_b16 {W2(s,ct,h)}, v{vWR} offset:{(s%8)*5120 + ct*32 + h*1280}')
        if s + 8 < 14:
            a.wait(lg=lt)
            wt[s+8] = dma_w2(s+8)
    stamp(a, 4)
    sRC, sPW = sT+11, sT+12
    a.e(f's_sub_u32 s{sRC}, 32, s{sT1}\ns_min_u32 s{sRC}, s{sRC}, s{sT1}\ns_and_b32 s{sRC}, s{sRC}, 15')
    a.e(f's_lshr_b32 s{sPW}, s{sT1}, 4\ns_lshl_b32 s{sPW}, s{sPW}, 1')
    a.e(f's_lshl_b32 s{sRC}, s{sRC}, 6\ns_add_u32 s{sRC}, s{sRC}, s{sPW}')
    vFA = t+6; vFT = t+7
    a.e(f'v_bfe_u32 v{t+10}, v{vL}, 2, 1\nv_lshlrev_b32 v{t+10}, 5, v{t+10}\nv_bfe_u32 v{t+11}, v{vL}, 1, 1\nv_lshl_add_u32 v{t+10}, v{t+11}, 2, v{t+10}')
    a.e(f'v_and_b32 v{t+11}, 1, v{vL}\nv_add_u32 v{t+10}, v{t+10}, v{t+11}')
    a.e(f's_lshl_b32 s{sT}, s{sW}, 3\ns_add_u32 s{sT}, s{sT}, s{sRC}\nv_add_u32 v{t+10}, s{sT}, v{t+10}')
    a.e(f'v_lshlrev_b32 v{vFA}, 7, v{t+10}\nv_add_u32 v{vFA}, {F_OFF}, v{vFA}')
    vHL = t+8; vHL2 = t+9
    a.e(f'v_lshlrev_b32 v{vHL}, 4, v{vL}')
    a.e(f's_cmp_ge_u32 s{sW}, 2\ns_cselect_b32 s{sT}, 0x40000000, 0\nv_add_u32 v{vHL2}, s{sT}, v{vHL}')
    sH0, sH1 = sH[0], sH[1]
    sHB = sH[2]
    a.e(f's_mul_i32 s{sHB}, s{sT1}, {54*2048}')
    hcnt = [0]
    def hload(slot):
        r, k = tile_s(slot)
        if k == 0:
            a.e(f's_lshl_b32 s{sH0}, s{r}, 11\ns_add_u32 s{sH0}, s{sH0}, s{sHB}\ns_add_u32 s{sH1}, s{sH0}, {32*54*2048}')
        elif k % 2 == 0:
            a.e(f's_add_u32 s{sH0}, s{sH0}, 4096\ns_add_u32 s{sH1}, s{sH1}, 4096')
        vo = vHL2 if slot == 13 else vHL
        toks = []
        for rt in range(4):
            n = 4*slot + rt
            toks.append(a.vm(f'buffer_load_dwordx4 {HF(n)}, v{vo}, {srd(SWS)}, s{sH0 if rt < 2 else sH1} offen offset:{(k%2)*2048 + (rt&1)*1024} sc1'))
        return toks
    poll(a, vFA, vFT, 8)
    stamp(a, 5)
    ht = {}
    for s in range(6): ht[s] = hload(s)
    a.wait(lg=a.lg_issued)
    for s in range(12):
        for rt in range(4):
            a.wait(vm=ht[s][rt])
            for ct in range(5):
                a.e(f'v_mfma_f32_16x16x32_bf16 {ACC2(ct,rt)}, {W2(s,ct)}, {HF(4*s+rt)}, {"0" if s == 0 else ACC2(ct,rt)}')
        if s + 6 < 12: ht[s+6] = hload(s+6)
    stamp(a, 6)
    for k, r in enumerate((sL0, sL1)):
        a.e(f's_cmp_ge_u32 s{r}, 27\ns_cselect_b32 s{sT+13}, 27-8, 0\ns_sub_u32 s{sT+k}, s{r}, s{sT+13}\ns_sub_u32 s{sT+k}, s{sT+k}, 19\ns_lshl_b32 s{sT+k}, s{sT+k}, 2')
        a.e(f's_add_u32 s{sT+k}, s{sT+k}, s{sRC}')
    a.e(f'v_mov_b32 v{t+10}, s{sT}\nv_mov_b32 v{t+11}, s{sT+1}\nv_cmp_gt_u32 vcc, 2, v{vL}\nv_cndmask_b32 v{t+10}, v{t+11}, v{t+10}, vcc')
    a.e(f'v_and_b32 v{t+11}, 1, v{vL}\nv_add_u32 v{t+10}, v{t+10}, v{t+11}')
    sTS1 = sT+13
    a.e(f's_sub_u32 s{sTS1}, 32, s{sT1}\ns_and_b32 s{sTS1}, s{sTS1}, 31\ns_cmp_ge_u32 s{sC}, 4\ns_cselect_b32 s{sTS1}, s{sTS1}, s{sT1}')
    a.e(f'v_subrev_u32 v{t+11}, 4, v{vL}\nv_mul_u32_u24 v{t+12}, 205, v{t+11}\nv_lshrrev_b32 v{t+12}, 11, v{t+12}')
    a.e(f'v_mul_u32_u24 v{t+13}, 10, v{t+12}\nv_sub_u32 v{t+11}, v{t+11}, v{t+13}')
    a.e(f'v_cmp_le_u32 vcc, 5, v{t+11}\nv_add_u32 v{t+13}, 3, v{t+11}\nv_cndmask_b32 v{t+11}, v{t+11}, v{t+13}, vcc')
    a.e(f'v_lshlrev_b32 v{t+11}, 2, v{t+11}\nv_lshl_add_u32 v{t+11}, v{t+12}, 6, v{t+11}')
    a.e(f's_lshl_b32 s{sT}, s{sW}, 8\ns_lshr_b32 s{sT+1}, s{sTS1}, 3\ns_add_u32 s{sT}, s{sT}, s{sT+1}\nv_add_u32 v{t+11}, s{sT}, v{t+11}')
    a.e(f'v_cmp_gt_u32 vcc, 4, v{vL}\nv_cndmask_b32 v{t+10}, v{t+11}, v{t+10}, vcc')
    a.e(f'v_lshlrev_b32 v{vFA}, 7, v{t+10}\nv_add_u32 v{vFA}, {F_OFF+4}, v{vFA}')
    vUO = [t, t+1, t+2, t+3, t+4]
    a.e(f'v_and_b32 v{t+10}, 15, v{vL}\ns_mul_i32 s{sT}, s{sC}, 80\nv_add_u32 v{t+10}, s{sT}, v{t+10}')
    a.e(f'v_lshrrev_b32 v{t+11}, 4, v{vL}\ns_movk_i32 s{sT+1}, 5120\nv_mul_u32_u24 v{t+11}, s{sT+1}, v{t+11}')
    a.e(f's_cmp_ge_u32 s{sC}, 4\ns_cselect_b32 s{sT}, -1, 0\ns_cselect_b32 s{sT+1}, 641, 0')
    for ct in range(5):
        a.e(f'v_add_u32 v{t+12}, {16*ct}, v{t+10}\nv_xor_b32 v{t+12}, s{sT}, v{t+12}\nv_add_u32 v{t+12}, s{sT+1}, v{t+12}')
        a.e(f'v_and_b32 v{t+13}, 1, v{t+12}\nv_lshrrev_b32 v{vUO[ct]}, 1, v{t+12}\nv_cmp_eq_u32 vcc, 0, v{t+13}')
        a.e(f'v_add_u32 v{t+13}, 159, v{vUO[ct]}\nv_cndmask_b32 v{vUO[ct]}, v{vUO[ct]}, v{t+13}, vcc')
        a.e(f'v_lshl_add_u32 v{vUO[ct]}, v{vUO[ct]}, 4, v{t+11}')
        if ct == 0:
            a.e(f'v_cmp_eq_u32 vcc, 0, v{t+12}\nv_mov_b32 v{t+13}, 0x40000000\nv_cndmask_b32 v{vUO[0]}, v{vUO[0]}, v{t+13}, vcc')
    sUo = sT+2
    poll(a, vFA, vFT, 44)
    for s in (12, 13): ht[s] = hload(s)
    a.e(f's_lshl_b32 s{sUo}, s{sTS1}, 4\ns_lshl_b32 s{sT}, s{sW}, 2\ns_add_u32 s{sUo}, s{sUo}, s{sT}\ns_mul_i32 s{sUo}, s{sUo}, 5120\ns_add_u32 s{sUo}, s{sUo}, {U_OFF}')
    for ct in range(5):
        ut = a.vm(f'buffer_load_dwordx4 {UF[ct]}, v{vUO[ct]}, {srd(SWS)}, s{sUo} offen sc1')
    vN = 128;
    vGO = [vN, vN+1, vN+2]; vLA = [vN+3, vN+4, vN+5]; vXR = [vN+8, vN+12, vN+16]; vBB = [vN+20, vN+24, vN+28]
    a.e(f's_lshl_b32 s{sT}, s{sW}, 6\ns_mov_b32 s{sT+1}, 0xCCCD\ns_movk_i32 s{sT+3}, 1280\ns_movk_i32 s{sT+7}, {RED_PITCH}')
    a.e(f's_mul_i32 s{sT+4}, s{sT1}, 1280\ns_add_u32 s{sT+4}, s{sT+4}, s{sCW}')
    xt = []
    for it in range(3):
        q = vN + 32
        a.e(f'v_add_u32 v{q}, s{sT}, v{vL}')
        if it: a.e(f'v_add_u32 v{q}, {256*it}, v{q}')
        a.e(f'v_mul_lo_u32 v{q+1}, s{sT+1}, v{q}\nv_lshrrev_b32 v{q+1}, 19, v{q+1}')
        a.e(f'v_mul_u32_u24 v{q+2}, 10, v{q+1}\nv_sub_u32 v{q+2}, v{q}, v{q+2}')
        a.e(f'v_mul_u32_u24 v{q+3}, s{sT+7}, v{q+1}\nv_lshl_add_u32 v{vLA[it]}, v{q+2}, 5, v{q+3}')
        a.e(f'v_and_b32 v{q+3}, 31, v{q+1}\nv_lshlrev_b32 v{q+3}, 1, v{q+3}\nv_lshrrev_b32 v{q+1}, 5, v{q+1}\nv_add_u32 v{q+3}, v{q+3}, v{q+1}')
        a.e(f'v_lshlrev_b32 v{q+3}, 5, v{q+3}\nv_mul_u32_u24 v{q+3}, s{sT+3}, v{q+3}\nv_lshl_add_u32 v{vGO[it]}, v{q+2}, 4, v{q+3}')
        a.e(f'v_lshlrev_b32 v{q+2}, 4, v{q+2}\nv_add_u32 v{q+2}, s{sCW}, v{q+2}')
        if it == 2:
            a.e(f'v_cmp_gt_u32 vcc, 640, v{q}\nv_mov_b32 v{q+4}, 0x40000000\nv_cndmask_b32 v{vGO[it]}, v{q+4}, v{vGO[it]}, vcc')
            a.e(f'v_cndmask_b32 v{vLA[it]}, 0, v{vLA[it]}, vcc')
        a.vm(f'buffer_load_dwordx4 v[{vXR[it]}:{vXR[it]+3}], v{vGO[it]}, {srd(SX)}, s{sT+4} offen')
        xt.append(a.vm(f'global_load_dwordx4 v[{vBB[it]}:{vBB[it]+3}], v{q+2}, s[{sB2}:{sB2+1}]'))
    vPW = t+5
    a.e(f'v_and_b32 v{t+10}, 15, v{vL}\nv_mul_u32_u24 v{t+10}, s{sT+7}, v{t+10}\nv_lshrrev_b32 v{t+11}, 4, v{vL}\nv_lshl_add_u32 v{t+10}, v{t+11}, 4, v{t+10}')
    a.e(f's_mul_i32 s{sT}, s{sW}, {RED_WAVE}\nv_add_u32 v{vPW}, s{sT}, v{t+10}')
    a.e('s_barrier')
    for rt in range(4):
        for s in (12, 13):
            a.wait(vm=ht[s][rt])
            for ct in range(5):
                a.e(f'v_mfma_f32_16x16x32_bf16 {ACC2(ct,rt)}, {W2(s,ct)}, {HF(4*s+rt)}, {ACC2(ct,rt)}')
        a.wait(vm=ut)
        for ct in range(5):
            a.e(f'v_mfma_f32_16x16x32_bf16 {ACC2(ct,rt)}, {UF[ct]}, a[{aTW+4*rt}:{aTW+4*rt+3}], {ACC2(ct,rt)}')
        if rt > 0:
            for ct in range(5): a.lg(f'ds_write_b128 v{vPW}, {ACC2(ct,rt-1)} offset:{(rt-1)*16*RED_PITCH + ct*64}')
    for ct in range(5): a.lg(f'ds_write_b128 v{vPW}, {ACC2(ct,3)} offset:{3*16*RED_PITCH + ct*64}')
    a.wait(lg=a.lg_issued); a.e('s_barrier')
    stamp(a, 7)
    for it in range(3):
        b = 16 + 32*(it % 2)
        for w in range(4):
            for h in range(2):
                lt = a.lg(f'ds_read_b128 v[{b+8*w+4*h}:{b+8*w+4*h+3}], v{vLA[it]} offset:{w*RED_WAVE + 16*h}') if w*RED_WAVE + 16*h < 65536 else None
        a.wait(lg=a.lg_issued, vm=xt[it])
        for k in range(8):
            a.e(f'v_add_f32 v{b+k}, v{b+k}, v{b+8+k}\nv_add_f32 v{b+16+k}, v{b+16+k}, v{b+24+k}')
        for k in range(8):
            a.e(f'v_add_f32 v{b+k}, v{b+k}, v{b+16+k}')
        for k in range(4):
            for src in (vXR[it]+k, vBB[it]+k):
                a.e(f'v_lshlrev_b32 v{b+8}, 16, v{src}\nv_and_b32 v{b+9}, 0xffff0000, v{src}')
                a.e(f'v_add_f32 v{b+2*k}, v{b+2*k}, v{b+8}\nv_add_f32 v{b+2*k+1}, v{b+2*k+1}, v{b+9}')
        for k in range(4): cvtpk(a, b+12+k, b+2*k, b+2*k+1)
        a.vm(f'buffer_store_dwordx4 v[{b+12}:{b+15}], v{vGO[it]}, {srd(SOUT)}, s{sT+4} offen')
    if DBG:
        a.wait_all()
        a.e(f's_memrealtime s[{sTS+16}:{sTS+17}]\ns_waitcnt lgkmcnt(0)')
        for k in range(9): a.e(f'v_mov_b32 v{16+k}, s{sTS+2*k}')
        a.e(f's_getreg_b32 s{sT}, hwreg(HW_REG_XCC_ID)\nv_mov_b32 v25, s{sT}\nv_mov_b32 v26, 0\nv_mov_b32 v27, 0')
        a.e(f's_lshl_b32 s{sT}, s2, 2\ns_add_u32 s{sT}, s{sT}, s{sW}\ns_lshl_b32 s{sT}, s{sT}, 6\ns_add_u32 s{sT}, s{sT}, {TS_OFF}')
        a.e(f'v_mov_b32 v2, 0\ns_mov_b64 exec, 1')
        for k in range(3): a.e(f'buffer_store_dwordx4 v[{16+4*k}:{19+4*k}], v2, {srd(SWS)}, s{sT} offen offset:{16*k}')
    a.e('s_endpgm')

assert 3*RED_WAVE + 16 < 65536

def build():
    a = Asm()
    prologue(a)
    st = {'dma': {}}
    for c in range(4): st['dma'][c] = dma_chunk(a, c)
    b1tok = prologue2(a)
    gen_twiddles(a, 48)
    a.e(f's_cmp_ge_u32 s{sC8}, 5\ns_cbranch_scc1 L_skipP')
    gen_P_consts(a, 48)
    a.e('L_skipP:')
    b1_table(a, b1tok)
    stamp(a, 1)
    a.wait(vm=st['dma'][0], lg=a.lg_issued)
    a.e('s_barrier')
    st['atok'] = rdA(a, 0)
    for i in range(3):
        rdW(a, 0, 0, 0, i, 0); st['wtok'] = rdW(a, 0, 0, 0, i, 1)
    for c in range(7): pass1_chunk(a, c, st)
    a.e(f's_cmp_ge_u32 s{sC8}, 5\ns_cbranch_scc1 L_Q')
    import copy
    outs = [a]
    for typ in 'PQ':
        b = a.fork(); s2 = copy.deepcopy(st)
        if typ == 'Q': b.e('L_Q:')
        for c in range(7, 10): pass1_chunk(b, c, s2, P_hook if typ == 'P' else Q_hook)
        stamp(b, 2)
        after_pass1_common(b)
        (pass2_P if typ == 'P' else pass2_Q)(b)
        phase2(b, typ)
        outs.append(b)
    lines = []
    for o in outs: lines += o.finish()
    return lines

hdr = open('cdna_kernels/%s.s.ref' % NAME).read().split('; Override launch')[0]
lines = build()
with open(sys.argv[1], 'w') as f:
    f.write(hdr)
    f.write(f'; @launch grid=(256,1,1) block=(256,1,1) lds={LDS_BYTES}\n')
    f.write('.amdgcn_target "amdgcn-amd-amdhsa--gfx950"\n.text\n')
    f.write(f'.globl {NAME}_kernel\n.p2align 8\n.type {NAME}_kernel,@function\n{NAME}_kernel:\n')
    for l in lines: f.write(('' if l.endswith(':') else '    ') + l + '\n')
    f.write('L_end:\n    s_endpgm\n')
    f.write('.fill 16384, 4, 0xbf800000\n')
    f.write(f'''.section .rodata,"a"
.p2align 6
.amdhsa_kernel {NAME}_kernel
  .amdhsa_next_free_vgpr 512
  .amdhsa_next_free_sgpr 102
  .amdhsa_accum_offset 256
  .amdhsa_group_segment_fixed_size 0
  .amdhsa_kernarg_size 104
  .amdhsa_user_sgpr_count 2
  .amdhsa_user_sgpr_kernarg_segment_ptr 1
  .amdhsa_system_sgpr_workgroup_id_x 1
.end_amdhsa_kernel
''')
print('instructions:', len(lines))
```

```python
import sys, struct, copy, os
from asmlib import Asm
NAME = 'parallel_sum__spectral_fnet__dense_activation_squared_relu__prompt'
DBG = int(sys.argv[2]) if len(sys.argv) > 2 else 0
OPT = dict(kv.split('=') for kv in sys.argv[3:])
def opt(k, d): return type(d)(OPT.get(k, d))

H_OFF = 0; U_OFF = 0x6C0000; P_OFF = 0x940000; ST_OFF = 0xB5C000; F_OFF = 0xB68000; TS_OFF = 0xB88000; WS_END = 0xBA0000
OOB = 0x40000000
ARING = 0; BBASE = 65536; AUX = 151552; TAB = 161792; TABC = TAB; TABB = TAB + 512; TABR = TAB + 1024
XCH = 0
RED_PITCH = 336; RED_WAVE = 64 * RED_PITCH
LDS_BYTES = 163840
SX, SW1, SW2, SWS, SOUT = 4, 8, 12, 16, 20
sB1, sB2, sDBG = 24, 26, 28
sW, sZ, sRB, sC8, sROW, sG0 = 30, 31, 32, 33, 34, 35
sA, sA2, sBo, sMA, sMB = 36, 37, 38, 39, 40
sT1, sC, sTAG, sONES = 41, 42, 43, 44
sT = 45
sH = [53, 54, 55, 56]; sFL = 57; sDT = 58; sAUXo = 59; sAUXs = 60; sTAU = 61; sW2o = 62; sH0 = 63; sH1 = 64; sUo = 65
sCW = 66; sGO = 67; sTS1 = 68; sPC = 69; sUS = 70; sE = 71
sTS = 84
def srd(b): return f's[{b}:{b+3}]'
def fhex(x): return '0x%08x' % struct.unpack('<I', struct.pack('<f', x))[0]
def X(ks): return f'a[{4*ks}:{4*ks+3}]'
def ACC1(i): return f'v[{32+16*i}:{47+16*i}]'
def WB(b, i, h=None):
    base = 96 + 16*b + 4*i
    return f'v[{base}:{base+3}]' if h is None else f'v[{base+2*h}:{base+2*h+1}]'
aTW = 160; aF0 = 176; aSEL = 'a[192:195]'; aCS = 'a[196:199]'
def aF(k): return f'a[{aF0+4*k}:{aF0+4*k+3}]'
vL = 1
vOA = [2, 3]; vOB = [4, 5, 6, 7]; vAR = [8, 9, 10, 11]; vBR = [12, 13, 14, 15]
vT = 16
vST = 24
vNM, vR = 24, 25
vNON = 28; vPF = 29; vHO = 30; vL16 = 31
vAUX = 160
def W2(slot, ct):
    if slot < 3: k, b = 'v', 196 + 20*slot + 4*ct
    elif slot < 5: k, b = 'a', 200 + 20*(slot-3) + 4*ct
    elif slot == 5: k, b = 'a', (240 + 4*ct if ct < 4 else 196)
    else: k, b = 'a', 20*(slot-6) + 4*ct
    return f'{k}[{b}:{b+3}]'
def UF(ct): return f'a[{176+4*ct}:{179+4*ct}]'
def ACC2(ct, rt): b = 16 + 20*rt + 4*ct; return f'v[{b}:{b+3}]'
def HF(n): b = 96 + 4*(n % 24); return f'v[{b}:{b+3}]'

def stamp(a, idx):
    if DBG: a.e(f's_memrealtime s[{sTS+2*idx}:{sTS+2*idx+1}]')
def cvtpk(d, x, y): return f'v_cvt_pk_bf16_f32 v{d}, v{x}, v{y}'
uid = [0]
def label(p):
    uid[0] += 1; return f'L_{p}{uid[0]}'

class Sched:
    def __init__(self): self.slots = []
    def add(self, main, pre=()):
        self.slots.append({'pre': list(pre), 'main': main, 'fill': []}); return len(self.slots) - 1
    def put(self, idx, ops): self.slots[idx]['fill'] += list(ops)
    def spread(self, ops, first, last):
        ops = list(ops); n = last - first + 1
        for k, op in enumerate(ops):
            self.slots[first + min(n - 1, k * n // len(ops))]['fill'].append(op)
    def pack(self, ops, first, per):
        i = first
        for op in ops:
            while i < len(self.slots) - 1 and len(self.slots[i]['fill']) >= per: i += 1
            self.slots[i]['fill'].append(op)
        return i
    def emit(self, a):
        for s in self.slots:
            for op in s['pre'] + [s['main']] + s['fill']:
                if op is None: continue
                if callable(op): op(a)
                else: a.e(op)
def L(text): return [t for t in text.split('\n') if t.strip()]

def mk_srd(b, lo, n):
    return f's_mov_b32 s{b}, s{lo}\ns_and_b32 s{b+1}, s{lo+1}, 0xffff\ns_mov_b32 s{b+2}, {n}\ns_mov_b32 s{b+3}, 0x20000'

def prologue(a):
    a.e('s_cmp_ge_u32 s2, 256\ns_cbranch_scc1 L_end')
    stamp(a, 0)
    a.e('s_load_dwordx2 s[66:67], s[0:1], 0')
    a.e('s_load_dwordx8 s[68:75], s[0:1], 48')
    a.e('s_load_dwordx4 s[76:79], s[0:1], 80')
    a.e('s_load_dwordx2 s[80:81], s[0:1], 96')
    a.e('s_getpc_b64 s[82:83]')
    a.e('v_lshlrev_b32 v2, 7, v0')
    a.vm(f'global_load_dword v{vPF}, v2, s[82:83]')
    a.e('v_add_u32 v2, 0x8000, v2')
    a.vm(f'global_load_dword v{vPF}, v2, s[82:83]')
    a.e(f'v_lshrrev_b32 v4, 6, v0\nv_and_b32 v{vL}, 63, v0\nv_readfirstlane_b32 s{sW}, v4')
    a.e(f's_and_b32 s{sZ}, s2, 1')
    a.e(f's_bfe_u32 s{sT}, s2, 0x20001\ns_bfe_u32 s{sT+1}, s2, 0x20003\ns_lshl_b32 s{sT}, s{sT}, 2')
    a.e(f's_add_u32 s{sRB}, s{sT}, s{sT+1}\ns_lshr_b32 s{sC8}, s2, 5')
    a.e(f's_sub_u32 s{sT+2}, 32, s{sRB}\ns_cmp_eq_u32 s{sRB}, 0\ns_cselect_b32 s{sT+2}, 16, s{sT+2}')
    a.e(f's_bitcmp1_b32 s{sW}, 1\ns_cselect_b32 s{sROW}, s{sT+2}, s{sRB}')
    a.e(f's_and_b32 s{sT+3}, s{sW}, 1\ns_lshl_b32 s{sT+3}, s{sT+3}, 5\ns_add_u32 s{sROW}, s{sROW}, s{sT+3}')
    a.e(f's_cmp_eq_u32 s{sZ}, 1\ns_cselect_b32 s{sAUXo}, s{sT+2}, s{sRB}\ns_lshr_b32 s{sT+3}, s{sC8}, 2\ns_lshl_b32 s{sT+3}, s{sT+3}, 5\ns_add_u32 s{sAUXo}, s{sAUXo}, s{sT+3}')
    a.e(f'v_lshrrev_b32 v{vT}, 3, v{vL}\nv_lshrrev_b32 v{vT+1}, 4, v{vL}\nv_and_b32 v{vT+2}, 7, v{vL}')
    a.e(f'v_xor_b32 v{vT+3}, v{vT+2}, v{vT+1}\ns_mov_b32 s{sT+4}, 81920\nv_mul_lo_u32 v{vT+4}, s{sT+4}, v{vT}')
    a.e(f'v_lshl_add_u32 v{vOA[0]}, v{vT+3}, 4, v{vT+4}\nv_xor_b32 v{vT+3}, 4, v{vT+3}')
    a.e(f'v_lshl_add_u32 v{vOA[1]}, v{vT+3}, 4, v{vT+4}\nv_add_u32 v{vOA[1]}, {8*81920-1024}, v{vOA[1]}')
    a.e(f's_mul_i32 s{sA}, s{sROW}, 1280\ns_add_u32 s{sA2}, s{sA}, {16*81920-2048}\ns_lshl_b32 s{sMA}, s{sW}, 12')
    a.e(f's_sub_u32 s{sT+5}, 6, s{sZ}\ns_cmp_ge_u32 s{sC8}, s{sT+5}\ns_cbranch_scc1 L_S')

class T:
    def __init__(self, nG):
        self.nG = nG; self.nD = 1 if nG == 4 else 2
        self.bslot = 4096 * nG
        self.pitch = 64 * nG
        self.DREG = 131072 if nG == 4 else 110592
        self.nb = nG

def prologue_t(a, t):
    if t.nG == 4:
        a.e(f's_mul_i32 s{sG0}, s{sZ}, 28\ns_lshl_b32 s{sT}, s{sC8}, 2\ns_add_u32 s{sG0}, s{sG0}, s{sT}')
        a.e(f's_mul_i32 s{sDT}, s{sZ}, 10\ns_add_u32 s{sDT}, s{sDT}, s{sC8}')
        a.e(f'v_and_b32 v{vT+2}, 15, v{vL}\nv_lshlrev_b32 v{vT+3}, 2, v{vT+1}\nv_xor_b32 v{vT+2}, v{vT+2}, v{vT+3}')
        a.e(f's_movk_i32 s{sT+6}, 3456\nv_mul_u32_u24 v{vT+3}, s{sT+6}, v{vT+1}\nv_lshl_add_u32 v{vOB[0]}, v{vT+2}, 4, v{vT+3}')
        for i in range(1, 4): a.e(f'v_add_u32 v{vOB[i]}, {i*(4*3456-1024)}, v{vOB[0]}')
    else:
        a.e(f's_mul_i32 s{sG0}, s{sZ}, 26\ns_lshl_b32 s{sT}, s{sC8}, 1\ns_add_u32 s{sG0}, s{sG0}, s{sT}\ns_add_u32 s{sG0}, s{sG0}, 12')
        a.e(f's_mul_i32 s{sDT}, s{sZ}, 11\ns_add_u32 s{sDT}, s{sDT}, s{sT}\ns_sub_u32 s{sDT}, s{sDT}, 6')
        a.e(f'v_and_b32 v{vT+3}, 1, v{vT+1}\nv_lshlrev_b32 v{vT+3}, 2, v{vT+3}\nv_xor_b32 v{vT+2}, v{vT+2}, v{vT+3}')
        a.e(f's_movk_i32 s{sT+6}, 3456\nv_mul_u32_u24 v{vT+3}, s{sT+6}, v{vT}\nv_lshl_add_u32 v{vOB[0]}, v{vT+2}, 4, v{vT+3}')
        a.e(f'v_add_u32 v{vOB[1]}, {8*3456-1024}, v{vOB[0]}')
    a.e(f's_lshl_b32 s{sBo}, s{sG0}, 6\ns_mul_i32 s{sT}, s{sW}, {16*3456}\ns_add_u32 s{sBo}, s{sBo}, s{sT}')
    a.e(f's_mul_i32 s{sMB}, s{sW}, {1024*t.nb}\ns_add_u32 s{sMB}, s{sMB}, {BBASE}')
    a.e('s_waitcnt lgkmcnt(0)')
    a.e(mk_srd(SX, 66, 2048*1280)); a.e(mk_srd(SW1, 68, 640*3456))

def dma_ops(t, c, st):
    slot = c % 4
    ops = [f's_add_u32 m0, s{sMA}, {ARING + slot*16384}',
           f'buffer_load_dwordx4 v{vOA[0]}, {srd(SX)}, s{sA} offen lds',
           f'buffer_load_dwordx4 v{vOA[1]}, {srd(SX)}, s{sA} offen offset:1024 lds',
           f'buffer_load_dwordx4 v{vOA[0]}, {srd(SX)}, s{sA2} offen offset:2048 lds',
           f'buffer_load_dwordx4 v{vOA[1]}, {srd(SX)}, s{sA2} offen offset:3072 lds',
           f's_add_u32 m0, s{sMB}, {slot*t.bslot}\ns_add_u32 s{sA}, s{sA}, 128\ns_add_u32 s{sA2}, s{sA2}, 128']
    for i in range(t.nb):
        ops.append(f'buffer_load_dwordx4 v{vOB[i]}, {srd(SW1)}, s{sBo} offen offset:{1024*i} lds')
    def last(a):
        st['dma'][c] = a.vm_issued
        a.e(f's_add_u32 s{sBo}, s{sBo}, {64*3456}')
    ops.append(last)
    return ops
def run(a, ops):
    for op in ops:
        if callable(op): op(a)
        else: a.e(op)

def aux_issue(a):
    ls, le = label('auxs'), label('auxe')
    q = 180
    a.e(mk_srd(SW2, 72, 1728*1280))
    a.e(f's_cmp_ge_u32 s{sW}, 2\ns_cbranch_scc1 {ls}')
    a.e(f's_lshl_b32 s{sT}, s2, 1\ns_add_u32 s{sT}, s{sT}, s{sW}\ns_lshr_b32 s{sT+1}, s{sT}, 3\ns_and_b32 s{sT+2}, s{sT}, 7')
    a.e(f's_mul_i32 s{sAUXo}, s{sT+1}, 40960\ns_mul_i32 s{sT+3}, s{sT+2}, 160\ns_add_u32 s{sAUXo}, s{sAUXo}, s{sT+3}')
    a.e(f's_mul_i32 s{sAUXs}, s{sT+2}, 54\ns_add_u32 s{sAUXs}, s{sAUXs}, s{sT+1}\ns_mul_i32 s{sAUXs}, s{sAUXs}, 5120\ns_add_u32 s{sAUXs}, s{sAUXs}, {P_OFF}')
    a.e(f's_cmp_lt_u32 s{sT}, 432\ns_cselect_b32 s{sT+4}, 0, {OOB}\ns_cselect_b32 s{sAUXo}, s{sAUXo}, 0')
    a.e(f's_mov_b32 s{sT+5}, 0xCCCD\ns_movk_i32 s{sT+6}, 1280\ns_mul_i32 s{sT+7}, s{sW}, 5120\ns_add_u32 s{sT+7}, s{sT+7}, {AUX}')
    for i in range(5):
        a.e(f'v_add_u32 v{q}, {64*i}, v{vL}\nv_mul_lo_u32 v{q+1}, s{sT+5}, v{q}\nv_lshrrev_b32 v{q+1}, 19, v{q+1}')
        a.e(f'v_mul_u32_u24 v{q+2}, 10, v{q+1}\nv_sub_u32 v{q+2}, v{q}, v{q+2}\nv_mul_u32_u24 v{q+1}, s{sT+6}, v{q+1}')
        a.e(f'v_lshl_add_u32 v{q+1}, v{q+2}, 4, v{q+1}\nv_add_u32 v{q+1}, s{sT+4}, v{q+1}\ns_add_u32 m0, s{sT+7}, {1024*i}')
        a.e(f'buffer_load_dwordx4 v{q+1}, {srd(SW2)}, s{sAUXo} offen lds')
    a.vm_issued -= 5
    a.e(f'v_lshrrev_b32 v{q}, 5, v{vL}\nv_lshlrev_b32 v{q}, 4, v{q}\nv_bfe_u32 v{q+1}, v{vL}, 4, 1\nv_lshl_add_u32 v{q}, v{q+1}, 2, v{q}')
    a.e(f'v_bfe_u32 v{q+1}, v{vL}, 2, 2\nv_add_u32 v{q}, v{q}, v{q+1}\nv_mul_u32_u24 v{q}, 160, v{q}')
    a.e(f'v_and_b32 v{q+1}, 3, v{vL}\nv_lshl_add_u32 v{q}, v{q+1}, 3, v{q}\nv_add_u32 v{q+4}, s{sT+7}, v{q}')
    a.e(f'v_lshlrev_b32 v{q+5}, 4, v{vL}\nv_add_u32 v{q+5}, s{sT+4}, v{q+5}')
    a.e(f's_branch {le}\n{ls}:')
    a.e(f's_and_b32 s{sT}, s{sC8}, 3\ns_lshl_b32 s{sT}, s{sT}, 3\ns_and_b32 s{sT+1}, s{sW}, 1\ns_lshl_b32 s{sT+1}, s{sT+1}, 2\ns_add_u32 s{sT}, s{sT}, s{sT+1}')
    a.e(f's_lshl_b32 s{sT+1}, s{sT}, 6\ns_add_u32 s{sAUXo}, s{sAUXo}, s{sT+1}\ns_mul_i32 s{sAUXo}, s{sAUXo}, 1280')
    a.e(f'v_lshrrev_b32 v{q}, 4, v{vL}\ns_mov_b32 s{sT+2}, 81920\nv_mul_lo_u32 v{q+1}, s{sT+2}, v{q}\nv_and_b32 v{q+2}, 15, v{vL}\nv_lshl_add_u32 v{q+1}, v{q+2}, 4, v{q+1}')
    for i in range(5):
        a.e(f'buffer_load_dwordx4 v[{vAUX+4*i}:{vAUX+4*i+3}], v{q+1}, {srd(SX)}, s{sAUXo} offen offset:{256*i}')
    a.e(f's_lshl_b32 s{sT+1}, s{sRB}, 1\ns_add_u32 s{sT+1}, s{sT+1}, s{sZ}\ns_lshl_b32 s{sT+1}, s{sT+1}, 1\ns_lshr_b32 s{sT+2}, s{sC8}, 2\ns_add_u32 s{sT+1}, s{sT+1}, s{sT+2}')
    a.e(f's_lshl_b32 s{sT+1}, s{sT+1}, 5\ns_add_u32 s{sT+1}, s{sT+1}, s{sT}\ns_lshl_b32 s{sAUXs}, s{sT+1}, 4\ns_add_u32 s{sAUXs}, s{sAUXs}, {ST_OFF}')
    a.e(f'v_lshlrev_b32 v{q+5}, 4, v{q}')
    a.e(f'{le}:')
    return a.vm_issued

def aux_process(a, tok):
    ls, le = label('aps'), label('ape')
    q = 180
    a.wait(vm=tok)
    a.e(f's_cmp_ge_u32 s{sW}, 2\ns_cbranch_scc1 {ls}')
    for ct in range(5):
        for h in range(2):
            a.e(f'ds_read_b64_tr_b16 v[{vAUX+4*ct+2*h}:{vAUX+4*ct+2*h+1}], v{q+4} offset:{ct*32+h*1280}')
    a.lg_issued -= 10
    a.e('s_waitcnt lgkmcnt(0)')
    for ct in range(5):
        if ct == 4: a.e(f's_add_u32 s{sAUXs}, s{sAUXs}, 4096')
        a.e(f'buffer_store_dwordx4 v[{vAUX+4*ct}:{vAUX+4*ct+3}], v{q+5}, {srd(SWS)}, s{sAUXs} offen offset:{(1024*ct)%4096} sc1')
    a.vm_issued -= 5
    a.e(f's_branch {le}\n{ls}:')
    for k in range(4): a.e(f'v_mov_b32 v{q+k}, 0')
    for r in range(20):
        a.e(f'v_dot2c_f32_bf16 v{q+(r&1)}, s{sONES}, v{vAUX+r}\nv_dot2c_f32_bf16 v{q+2+(r&1)}, v{vAUX+r}, v{vAUX+r}')
    a.e(f'v_add_f32 v{q}, v{q}, v{q+1}\nv_add_f32 v{q+2}, v{q+2}, v{q+3}')
    for sh in (8, 4, 2, 1):
        a.e(f'v_add_f32_dpp v{q}, v{q}, v{q} row_ror:{sh} row_mask:0xf bank_mask:0xf\nv_add_f32_dpp v{q+2}, v{q+2}, v{q+2} row_ror:{sh} row_mask:0xf bank_mask:0xf')
    g = vAUX
    a.e(f'v_mul_f32 v{q}, {fhex(1/640)}, v{q}\nv_mul_f32 v{q+2}, {fhex(1/640)}, v{q+2}')
    a.e(f'v_fma_f32 v{q+2}, -v{q}, v{q}, v{q+2}\nv_max_f32 v{q+2}, 0, v{q+2}\nv_add_f32 v{q+2}, {fhex(1e-5)}, v{q+2}')
    a.e(f'v_rsq_f32 v{g+1}, v{q+2}\nv_mov_b32 v{g+2}, s{sTAG}\nv_mov_b32 v{g+3}, s{sTAG}\nv_mul_f32 v{g}, v{q}, v{g+1}\nv_sub_f32 v{g}, 0, v{g}')
    a.e(f's_mov_b32 exec_lo, 0x00010001\ns_mov_b32 exec_hi, 0x00010001')
    a.e(f'buffer_store_dwordx4 v[{g}:{g+3}], v{q+5}, {srd(SWS)}, s{sAUXs} offen sc1')
    a.e('s_mov_b64 exec, -1')
    a.e(f'{le}:')
    return a.vm_issued

def setup2(a, t):
    a.e(mk_srd(SWS, 80, WS_END)); a.e(mk_srd(SOUT, 76, 2048*1280))
    a.e(f's_mov_b64 s[{sB1}:{sB1+1}], s[70:71]\ns_mov_b64 s[{sB2}:{sB2+1}], s[74:75]\ns_mov_b64 s[{sDBG}:{sDBG+1}], s[78:79]')
    ln = label('non')
    a.e(f's_or_b32 s{sT}, s2, s{sW}\ns_cmp_lg_u32 s{sT}, 0\ns_cbranch_scc1 {ln}')
    a.e(f's_memrealtime s[{sT+1}:{sT+2}]\ns_waitcnt lgkmcnt(0)\ns_or_b32 s{sT}, s{sT+1}, 1')
    a.e(f'v_mov_b32 v{vT}, 0\nv_mov_b32 v{vT+1}, s{sT}')
    a.e(f'global_store_dword v{vT}, v{vT+1}, s[{sDBG}:{sDBG+1}] sc1'); a.vm_issued -= 1
    a.e(f'{ln}:')
    a.e(f's_lshl_b32 s{sT+1}, s{sG0}, 6\nv_and_b32 v{vT}, {16*t.nG-1}, v{vL}\nv_lshl_add_u32 v{vT}, v{vT}, 2, s{sT+1}')
    b1 = a.vm(f'global_load_dword v{vT+7}, v{vT}, s[{sB1}:{sB1+1}]')
    a.e(f's_mov_b32 s{sONES}, 0x3f803f80')
    a.e(f's_bfe_u32 s{sT}, s2, 0x20001\ns_lshl_b32 s{sT}, s{sT}, 2\ns_bfe_u32 s{sT+1}, s2, 0x20004\ns_add_u32 s{sT+1}, s{sT}, s{sT+1}')
    a.e(f's_sub_u32 s{sT+2}, 32, s{sT+1}\ns_cmp_eq_u32 s{sT+1}, 0\ns_cselect_b32 s{sT+2}, 16, s{sT+2}')
    a.e(f's_bitcmp1_b32 s2, 3\ns_cselect_b32 s{sT1}, s{sT+2}, s{sT+1}')
    a.e(f's_lshr_b32 s{sT+1}, s2, 6\ns_lshl_b32 s{sT+2}, s{sZ}, 1')
    a.e(f's_sub_u32 s{sT+3}, 4, s{sT+2}\ns_cmp_lt_u32 s{sT+1}, 2\ns_cselect_b32 s{sT+2}, s{sT+2}, s{sT+3}\ns_add_u32 s{sC}, s{sT+2}, s{sT+1}')
    a.e(f's_mul_i32 s{sTAU}, s{sW}, 14\ns_cmp_eq_u32 s{sW}, 3\ns_cselect_b32 s{sTAU}, 41, s{sTAU}')
    a.e(f'v_and_b32 v{vT}, 31, v{vL}\nv_lshrrev_b32 v{vT+1}, 5, v{vL}')
    a.e(f'v_bfe_u32 v{vT+2}, v{vL}, 1, 3\nv_xor_b32 v{vT+2}, v{vT+2}, v{vT+1}')
    a.e(f'v_lshlrev_b32 v{vT+3}, 7, v{vT}\nv_add_u32 v{vT+3}, s{sMA}, v{vT+3}\nv_lshl_add_u32 v{vAR[0]}, v{vT+2}, 4, v{vT+3}')
    for s in range(1, 4): a.e(f'v_xor_b32 v{vAR[s]}, {s<<5}, v{vAR[0]}')
    a.e(f'v_bfe_u32 v{vT+4}, v{vL}, 2, 2\nv_lshl_add_u32 v{vT+2}, v{vT+1}, 3, v{vT+4}\nv_mul_u32_u24 v{vT+2}, {t.pitch}, v{vT+2}')
    a.e(f'v_bfe_u32 v{vT+3}, v{vL}, 4, 1\nv_lshl_add_u32 v{vT+2}, v{vT+3}, 5, v{vT+2}')
    a.e(f'v_and_b32 v{vT+3}, 3, v{vL}\nv_lshl_add_u32 v{vT+2}, v{vT+3}, 3, v{vT+2}\nv_add_u32 v{vT+2}, {BBASE}, v{vT+2}')
    if t.nG == 2: a.e(f'v_lshrrev_b32 v{vT+4}, 1, v{vT+4}')
    for i in range(t.nG):
        a.e(f's_add_u32 s{sT}, s{sW}, {i}\ns_and_b32 s{sT}, s{sT}, {t.nG-1}')
        a.e(f'v_xor_b32 v{vT+3}, s{sT}, v{vT+4}\nv_lshl_add_u32 v{vBR[i]}, v{vT+3}, 6, v{vT+2}')
        a.e(f's_mul_i32 s{sH[i]}, s{sROW}, 54\ns_add_u32 s{sH[i]}, s{sH[i]}, s{sG0}\ns_add_u32 s{sH[i]}, s{sH[i]}, s{sT}\ns_lshl_b32 s{sH[i]}, s{sH[i]}, 11')
    a.e(f's_lshl_b32 s{sFL}, s2, 2\ns_add_u32 s{sFL}, s{sFL}, s{sW}\ns_lshl_b32 s{sFL}, s{sFL}, 7\ns_add_u32 s{sFL}, s{sFL}, {F_OFF}')
    a.e(f'v_and_b32 v{vT}, 15, v{vL}\nv_bfe_u32 v{vT+1}, v{vL}, 4, 1\nv_cmp_eq_u32 vcc, v{vT}, v{vT+1}')
    a.e(f'v_mov_b32 v{vT+2}, s{sONES}\nv_cndmask_b32 v{vT+2}, 0, v{vT+2}, vcc')
    for k in range(4): a.e(f'v_accvgpr_write_b32 a{192+k}, v{vT+2}')
    a.e(f'v_lshlrev_b32 v{vL16}, 4, v{vL}')
    a.e(f'v_lshlrev_b32 v{vHO}, 10, v{vT+1}\nv_lshrrev_b32 v{vT+1}, 5, v{vL}\nv_lshl_add_u32 v{vHO}, v{vT+1}, 8, v{vHO}\nv_lshl_add_u32 v{vHO}, v{vT}, 4, v{vHO}')
    return b1

def gen_D(a, t, tmp):
    q = tmp
    a.e(f'v_and_b32 v{q}, 15, v{vL}\nv_lshrrev_b32 v{q+1}, 5, v{vL}\ns_mul_i32 s{sT}, s{sW}, 80\nv_lshl_add_u32 v{q+1}, v{q+1}, 3, s{sT}\nv_cvt_f32_u32 v{q+1}, v{q+1}')
    a.e(f'v_bfe_u32 v{q+2}, v{vL}, 4, 1\nv_cvt_f32_u32 v{q+2}, v{q+2}\nv_mul_f32 v{q+2}, {fhex(-0.25)}, v{q+2}')
    a.e(f's_mul_i32 s{sT+1}, s{sW}, {5*1024*t.nD}\ns_add_u32 s{sT+1}, s{sT+1}, {t.DREG}\nv_add_u32 v{q+3}, s{sT+1}, v{vL16}')
    for d in range(t.nD):
        a.e(f's_lshl_b32 s{sT}, s{sDT}, 4\ns_add_u32 s{sT}, s{sT}, {16*d+1}')
        a.e(f'v_add_u32 v{q+4}, s{sT}, v{q}\nv_cvt_f32_u32 v{q+4}, v{q+4}\nv_mul_f32 v{q+4}, {fhex(1/640)}, v{q+4}\nv_fma_f32 v{q+5}, v{q+1}, v{q+4}, v{q+2}')
        for k5 in range(5):
            o = q + 8 + 12*(k5 & 1)
            for i in range(8):
                dd = 16*k5 + i
                if dd == 0: a.e(f'v_cos_f32 v{o+i}, v{q+5}')
                else:
                    a.e(f'v_fmamk_f32 v{o+i}, v{q+4}, {fhex(float(dd))}, v{q+5}')
            for i in range(8):
                if 16*k5 + i: a.e(f'v_cos_f32 v{o+i}, v{o+i}')
            for ip in range(4): a.e(cvtpk(o+8+ip, o+2*ip, o+2*ip+1))
            a.lg(f'ds_write_b128 v{q+3}, v[{o+8}:{o+11}] offset:{(k5*t.nD+d)*1024}')

def gen_F(tmp):
    q = tmp; o = []
    o += L(f'v_and_b32 v{q}, 31, v{vL}\nv_lshrrev_b32 v{q+1}, 5, v{vL}\nv_cvt_f32_u32 v{q+2}, v{q}\nv_mul_f32 v{q+2}, 0x3d000000, v{q+2}')
    o += L(f'v_lshlrev_b32 v{q+3}, 2, v{q+1}\nv_cvt_f32_u32 v{q+3}, v{q+3}\nv_mul_f32 v{q+3}, v{q+3}, v{q+2}')
    for f in range(2):
        for ip in range(4):
            for k in range(2):
                i = 2*ip + k; s1 = 16*f + 8*(i >> 2) + (i & 3)
                o.append(f'v_fmamk_f32 v{q+4+k}, v{q+2}, {fhex(float(s1))}, v{q+3}')
            o += L(f'v_cos_f32 v{q+6}, v{q+4}\nv_cos_f32 v{q+7}, v{q+5}\nv_sin_f32 v{q+8}, v{q+4}\nv_sin_f32 v{q+9}, v{q+5}')
            o += [cvtpk(q+10, q+6, q+7), cvtpk(q+11, q+8, q+9)]
            o += L(f'v_accvgpr_write_b32 a{aF0+4*f+ip}, v{q+10}\nv_accvgpr_write_b32 a{aF0+8+4*f+ip}, v{q+11}')
    return o

def gen_TW(tmp):
    t = tmp; o = []
    o += L(f'v_and_b32 v{t}, 15, v{vL}\nv_lshrrev_b32 v{t+1}, 4, v{vL}\ns_lshl_b32 s{sT}, s{sW}, 2\nv_add_u32 v{t+1}, s{sT}, v{t+1}')
    o += L(f'v_sub_u32 v{t+2}, 32, v{t+1}\nv_cmp_eq_u32 vcc, 0, v{t+1}\nv_cndmask_b32 v{t+2}, v{t+2}, 16, vcc')
    o += L(f'v_add_u32 v{t+3}, 32, v{t+1}\nv_add_u32 v{t+4}, 32, v{t+2}')
    s2r = [t+1, t+3, t+2, t+4]
    o += L(f'v_lshlrev_b32 v{t}, 6, v{t}\nv_add_u32 v{t}, s{sT1}, v{t}\ns_mov_b32 s{sT+1}, 0x3a000000')
    o += L(f's_cmp_ge_u32 s{sC}, 4\ns_cselect_b32 s{sT+2}, s{sT+1}, 0xba000000')
    for rt in range(4):
        o.append(f'v_add_u32 v{t+5}, {32*(rt >> 1) + 1024*(rt & 1)}, v{t}')
        for w in range(4):
            o += L(f'v_mul_u32_u24 v{t+6}, v{t+5}, v{s2r[w]}\nv_and_b32 v{t+6}, 0x7ff, v{t+6}\nv_cvt_f32_u32 v{t+6}, v{t+6}')
            o += L(f'v_mul_f32 v{t+7}, s{sT+1}, v{t+6}\nv_mul_f32 v{t+8}, s{sT+2}, v{t+6}\nv_cos_f32 v{t+7}, v{t+7}\nv_sin_f32 v{t+8}, v{t+8}')
            o += [cvtpk(t+9, t+7, t+8), f'v_accvgpr_write_b32 a{aTW+4*rt+w}, v{t+9}']
    return o

def check_loop(a, load_text, vval, nl, cnt):
    ok, lp = label('ok'), label('lp')
    if nl < 64: a.e(f's_mov_b32 exec_lo, {hex(((1<<nl)-1)&0xffffffff)}\ns_mov_b32 exec_hi, {hex(((1<<nl)-1)>>32)}')
    a.e(f'v_cmp_ne_u32 vcc, s{sTAG}, v{vval}\ns_mov_b32 s{cnt}, 0\ns_cbranch_vccz {ok}')
    a.e(f'{lp}:\ns_sleep 1')
    a.e(load_text); a.vm_issued -= 1
    a.e(f's_waitcnt vmcnt(0)\nv_cmp_ne_u32 vcc, s{sTAG}, v{vval}\ns_add_u32 s{cnt}, s{cnt}, 1\ns_cmp_gt_u32 s{cnt}, 20000\ns_cbranch_scc1 {ok}\ns_cbranch_vccnz {lp}')
    a.e(f'{ok}:')
    if nl < 64: a.e('s_mov_b64 exec, -1')

def nonce_check(a, tok):
    ok, lp = label('nok'), label('nlp')
    a.wait(vm=tok)
    a.e(f'v_readfirstlane_b32 s{sTAG}, v{vNON}\ns_mov_b32 s{sPC}, 0\ns_cmp_lg_u32 s{sTAG}, 0\ns_cbranch_scc1 {ok}')
    a.e(f'{lp}:\nv_mov_b32 v{vNON}, 0')
    a.e(f'global_load_dword v{vNON}, v{vNON}, s[{sDBG}:{sDBG+1}] sc1'); a.vm_issued -= 1
    a.e(f's_waitcnt vmcnt(0)\nv_readfirstlane_b32 s{sTAG}, v{vNON}\ns_add_u32 s{sPC}, s{sPC}, 1\ns_cmp_gt_u32 s{sPC}, 20000\ns_cbranch_scc1 {ok}')
    a.e(f's_cmp_eq_u32 s{sTAG}, 0\ns_cbranch_scc1 {lp}\n{ok}:')

def set_flag(a, word, vt):
    a.e(f'v_mov_b32 v{vt}, {4*word}\nv_mov_b32 v{vt+1}, s{sTAG}\ns_mov_b64 exec, 1')
    a.vm(f'buffer_store_dword v{vt+1}, v{vt}, {srd(SWS)}, s{sFL} offen sc1')
    a.e('s_mov_b64 exec, -1')

def w2_load_ops(slot, st, cts=range(5)):
    ops = []
    for ct in cts:
        def op(a, ct=ct):
            need = 5120*slot + (4096 if ct == 4 else 0)
            if st.get('w2cur') != need:
                a.e(f's_add_u32 s{sW2o}, s{sUS}, {need}'); st['w2cur'] = need
            vo = st['vL16d'] if slot == 13 else vL16
            st['w2'][(slot, ct)] = a.vm(f'buffer_load_dwordx4 {W2(slot,ct)}, v{vo}, {srd(SWS)}, s{sW2o} offen offset:{(1024*ct)%4096} sc1')
        ops.append(op)
    return ops

def pass1(a, t, st):
    nG = t.nG
    def rdW(buf, c, s, i, h):
        def op(a): st['w'][(4*c+s, i)] = a.lg(f'ds_read_b64_tr_b16 {WB(buf,i,h)}, v{vBR[i]} offset:{(c%4)*t.bslot + s*16*t.pitch + h*4*t.pitch}')
        return op
    def rdA(c, s):
        return f'ds_read_b128 {X(4*c+s)}, v{vAR[s]} offset:{ARING + (c%4)*16384}'
    st['w'] = {}
    a.wait(vm=st['dma'][0], lg=a.lg_issued)
    a.e('s_barrier')
    stamp(a, 2)
    a.e(rdA(0, 0))
    for i in range(nG): run(a, [rdW(0, 0, 0, i, 0), rdW(0, 0, 0, i, 1)])
    for s in range(1, 4): a.e(rdA(0, s))
    S = Sched(); first = {}
    for c in range(10):
        for s in range(4):
            ks = 4*c + s; buf = ks & 1; cz = '0' if ks == 0 else None
            nxt = (c, s+1) if s < 3 else ((c+1, 0) if c < 9 else None)
            for i in range(nG):
                pre = []
                if i == 0 and s == 3 and c < 9:
                    pre.append(lambda a, c=c: (a.wait(vm=st['dma'][c+1]), a.e('s_barrier')))
                if i % 2 == 0:
                    pre.append(lambda a, ks=ks, i=i: a.wait(lg=st['w'][(ks, i+1)]))
                idx = S.add(f'v_mfma_f32_32x32x16_bf16 {ACC1(i)}, {WB(buf,i)}, {X(ks)}, {cz or ACC1(i)}', pre)
                if i == 0:
                    first[ks] = idx
                    S.put(idx, [f'v_mfma_f32_16x16x32_bf16 {aCS}, {aSEL}, {WB(buf,0)}, {cz or aCS}'])
            if nxt:
                rd = []
                if s == 3: rd.append(rdA(c+1, 0))
                for i in range(nG): rd += [rdW(buf ^ 1, nxt[0], nxt[1], i, 0), rdW(buf ^ 1, nxt[0], nxt[1], i, 1)]
                if nG == 4:
                    k = len(rd) - 8
                    S.put(first[ks], rd[:k+3]); S.put(first[ks]+1, rd[k+3:k+6]); S.put(first[ks]+2, rd[k+6:])
                else:
                    S.put(first[ks], rd)
                if s == 3: S.put(first[ks]+nG-1, [rdA(c+1, 1)])
                if s == 0 and c > 0: S.put(first[ks]+nG-1, [rdA(c, 2), rdA(c, 3)] )
    last = len(S.slots) - 1
    for c in range(1, 7):
        S.spread(dma_ops(t, c+3, st), first[4*c+3] + nG - 1, first[4*c+6] + nG - 1)
    return S, first

def h_epi_ops(t, st, i, tmp):
    acc = 32 + 16*i; ops = []
    def rd(u):
        o = []
        for jq in range(2):
            b = tmp + 16*u + 8*jq
            o.append(f'ds_read_b128 v[{b}:{b+3}], v{vBR[i]} offset:{(2*u+jq)*32}')
            def op(a, b=b, jq=jq): st['tb'][(i, u)] = a.lg(f'ds_read_b128 v[{b+4}:{b+7}], v{vBR[i]} offset:{(2*u+jq)*32+512}')
            o.append(op)
        return o
    def cmp(u):
        o = [lambda a: a.wait(lg=st['tb'][(i, u)])]
        for jq in range(2):
            b = tmp + 16*u + 8*jq
            for k in range(4): o.append(f'v_fma_f32 v{b+k}, v{vNM}, v{b+k}, v{b+4+k}')
            for k in range(4): o.append(f'v_fma_f32 v{acc+8*u+4*jq+k}, v{vR}, v{acc+8*u+4*jq+k}, v{b+k}')
            for k in range(4): o.append(f'v_max_f32 v{b+k}, 0, v{acc+8*u+4*jq+k}')
            for k in range(4): o.append(f'v_mul_f32 v{acc+8*u+4*jq+k}, v{b+k}, v{b+k}')
        bb = acc + 8*u
        for k in range(4): o.append(cvtpk(bb+k, bb+2*k, bb+2*k+1))
        def stq(a): st['hst'] = a.vm(f'buffer_store_dwordx4 v[{bb}:{bb+3}], v{vHO}, {srd(SWS)}, s{sH[i]} offen offset:{512*u} sc1')
        o.append(stq)
        return o
    return rd, cmp

def build_type(a, t):
    st = {'dma': {}, 'w2': {}, 'tb': {}}
    nG, nD = t.nG, t.nD
    prologue_t(a, t)
    run(a, dma_ops(t, 0, st)); run(a, dma_ops(t, 1, st))
    auxtok = aux_issue(a)
    run(a, dma_ops(t, 2, st)); run(a, dma_ops(t, 3, st))
    b1tok = setup2(a, t)
    gen_D(a, t, 128)
    run(a, gen_F(128))
    a.e(f'v_mov_b32 v{vNON}, 0')
    nontok = a.vm(f'global_load_dword v{vNON}, v{vNON}, s[{sDBG}:{sDBG+1}] sc1')
    stamp(a, 1)
    S, first = pass1(a, t, st)
    l = lambda ks: first[ks] + nG - 1
    def b1tab(a):
        a.wait(vm=b1tok)
        a.e(f'v_lshlrev_b32 v{vT}, 16, v{vT+7}\nv_and_b32 v{vT+1}, 0xffff0000, v{vT+7}\nv_lshlrev_b32 v{vT+2}, 3, v{vL}\nv_add_u32 v{vT+2}, {TABB}, v{vT+2}')
        a.lg(f'ds_write_b64 v{vT+2}, v[{vT}:{vT+1}]')
    ka = opt('ka', 9)
    S.put(l(ka), [lambda a: nonce_check(a, nontok), b1tab, lambda a: st.__setitem__('auxst', aux_process(a, auxtok))])
    kf = opt('kf', 20)
    def packflag(a):
        a.wait(vm=st['auxst']); set_flag(a, 2, vT)
    S.put(l(kf), [packflag])
    vSA, vFA, vFV = vT+3, vT+4, vT+5
    st['vL16d'] = 192
    st['w2base'] = sUS
    pre = L(f's_lshl_b32 s{sT}, s{sRB}, 2\ns_add_u32 s{sT}, s{sT}, s{sW}\ns_lshl_b32 s{sT}, s{sT}, 9\ns_add_u32 s{sT}, s{sT}, {ST_OFF}')
    pre += L(f'v_and_b32 v{vSA}, 31, v{vL}\nv_lshl_add_u32 v{vSA}, v{vSA}, 4, s{sT}')
    pre += L(f'v_add_u32 v{vFA}, s{sTAU}, v{vL}\nv_min_u32 v{vFA}, 53, v{vFA}\ns_lshr_b32 s{sT}, s{sC}, 1\ns_lshl_b32 s{sT}, s{sT}, 2\ns_and_b32 s{sT+1}, s{sC}, 1\ns_add_u32 s{sT}, s{sT}, s{sT+1}')
    pre += L(f's_lshl_b32 s{sT}, s{sT}, 7\ns_add_u32 s{sT}, s{sT}, {F_OFF+8}\nv_lshlrev_b32 v{vFA}, 11, v{vFA}\nv_add_u32 v{vFA}, s{sT}, v{vFA}')
    pre += L(f's_mul_i32 s{sUS}, s{sC}, 54\ns_add_u32 s{sUS}, s{sUS}, s{sTAU}\ns_mul_i32 s{sUS}, s{sUS}, 5120\ns_add_u32 s{sUS}, s{sUS}, {P_OFF}')
    pre += [f's_cmp_ge_u32 s{sW}, 2\ns_cselect_b32 s{sT}, {OOB}, 0', f'v_add_u32 v192, s{sT}, v{vL16}']
    S.spread(pre, l(kf+1), l(kf+4))
    kp = opt('kp', 28)
    pfl = f'buffer_load_dword v{vFV}, v{vFA}, {srd(SWS)}, 0 offen sc1'
    stl = f'buffer_load_dwordx4 v[{vST}:{vST+3}], v{vSA}, {srd(SWS)}, 0 offen sc1'
    S.put(l(kp), [lambda a: st.__setitem__('pfl', a.vm(pfl))])
    S.put(l(33), [lambda a: st.__setitem__('stl', a.vm(stl))])
    kq = opt('kq', 32)
    S.put(l(kq), [lambda a: (a.wait(vm=st['pfl']), check_loop(a, pfl, vFV, 14, sPC))])
    early = []
    for s in range(5): early += w2_load_ops(s, st)
    early += w2_load_ops(5, st, range(4))
    n1 = opt('n1', 14)
    S.spread(early[:n1], l(kq+1), l(39))
    S.emit(a)
    stamp(a, 3)
    vD = vAR[0]
    P2 = lambda d, h: f'v[{128+32*d+16*h}:{143+32*d+16*h}]'
    NB = 4
    DB = lambda ks, d: f'v[{96+4*((ks*nD+d)%NB)}:{99+4*((ks*nD+d)%NB)}]'
    a.e(f'v_add_u32 v{vD}, {t.DREG}, v{vL16}')
    dt = {}
    def rdD(ks, d):
        def op(a): dt[(ks, d)] = a.lg(f'ds_read_b128 {DB(ks,d)}, v{vD} offset:{(ks*nD+d)*1024}')
        return op
    ahead = 2 if nD == 1 else 1
    for ks in range(ahead):
        for d in range(nD): rdD(ks, d)(a)
    S = Sched(); f2 = {}
    for ks in range(20):
        for d in range(nD):
            for h in range(2):
                pre = [lambda a, ks=ks, d=d: a.wait(lg=dt[(ks, d)])] if h == 0 else []
                idx = S.add(f'v_mfma_f32_32x32x16_bf16 {P2(d,h)}, {X(ks+20*h)}, {DB(ks,d)}, {"0" if ks == 0 else P2(d,h)}', pre)
                if d == 0 and h == 0: f2[ks] = idx
                if h == 0 and ks + ahead < 20: S.put(idx, [rdD(ks+ahead, d)])
    nm = len(S.slots)
    tmp = 160 if nG == 4 else 64
    ops = []
    ops += L(f's_and_b32 s{sE}, s{sW}, {nG-1}\ns_lshl_b32 s{sE}, s{sE}, 7\ns_add_u32 s{sE}, s{sE}, {TABC}\nv_lshl_add_u32 v{vT+2}, v{vL}, 2, s{sE}')
    ops += L(f'v_accvgpr_read_b32 v{vT}, a196\nv_accvgpr_read_b32 v{vT+1}, a197')
    ops += [f's_mov_b64 exec, 0xffff\nds_write2_b32 v{vT+2}, v{vT}, v{vT+1} offset0:0 offset1:16\ns_mov_b64 exec, -1']
    ops += [lambda a: (a.wait(vm=st['stl']), check_loop(a, stl, vST+2, 64, sPC))]
    ops += L(f's_lshl_b32 s{sE+1}, s{sW}, 7\ns_add_u32 s{sE+1}, s{sE+1}, {TABR}\nv_and_b32 v{vT}, 31, v{vL}\nv_lshl_add_u32 v{vT}, v{vT}, 2, s{sE+1}')
    ops += [f'ds_write_b32 v{vT}, v{vR}', f'v_lshrrev_b32 v{vT+6}, 5, v{vL}']
    for i in range(nG):
        ops += [f's_add_u32 s{sE}, s{sW}, {i}\ns_and_b32 s{sE}, s{sE}, {nG-1}\ns_lshl_b32 s{sE}, s{sE}, 7\ns_add_u32 s{sE}, s{sE}, {TABC}', f'v_lshl_add_u32 v{vBR[i]}, v{vT+6}, 4, s{sE}']
    ops += [lambda a: (a.wait(lg=a.lg_issued), a.e('s_barrier'))]
    ep = [h_epi_ops(t, st, i, tmp) for i in range(nG)]
    ops += ep[0][0](0) + ep[0][0](1)
    for i in range(nG):
        ops += ep[i][1](0)
        if i + 1 < nG: ops += ep[i+1][0](0)
        ops += ep[i][1](1)
        if i + 1 < nG: ops += ep[i+1][0](1)
    per = opt('per', 8 if nG == 4 else 5)
    lasti = S.pack(ops, 0, per)
    S.spread(early[n1:], 1, nm // 3)
    late = {}
    for s in range(6, 14):
        fk = 5*((s-6) % 4) + 4
        late[s] = fk
    order = [6, 7, 8, 9, 10, 11, 12, 13]
    rest = []
    for s in (6, 7, 8):
        lo = f2[late[s] + 1]
        hi = f2[late[s+1]] if s < 8 else nm - 1
        S.spread(w2_load_ops(s, st), lo, min(hi, nm - 1))
    S.emit(a)
    stamp(a, 4)
    def hflag(a):
        a.wait(vm=st['hst']); set_flag(a, 0, vT)
    rr = 96
    a.e(f'v_lshl_add_u32 v{vT}, v{vT+6}, 4, s{sE+1}')
    for jq in range(4): rt_ = a.lg(f'ds_read_b128 v[{rr+4*jq}:{rr+4*jq+3}], v{vT} offset:{32*jq}')
    a.e(f'v_and_b32 v{vT+1}, 1, v{vL}\nv_cmp_eq_u32 vcc, 0, v{vT+1}\nv_cndmask_b32 v{vT+1}, 1.0, -1.0, vcc')
    vXW, vXR_, vUS = vT+2, vT+3, vT+4
    a.e(f'v_and_b32 v{vT+5}, 31, v{vL}\nv_lshlrev_b32 v{vT+5}, 2, v{vT+5}\nv_lshl_add_u32 v{vXW}, v{vT+6}, 8, v{vT+5}\ns_lshl_b32 s{sE}, s{sW}, 11\nv_add_u32 v{vXW}, s{sE}, v{vXW}')
    a.e(f's_lshl_b32 s{sE}, s{sW}, 9\nv_lshl_add_u32 v{vXR_}, v{vL}, 2, s{sE}')
    a.e(f'v_lshrrev_b32 v{vT+5}, 4, v{vL}\ns_mov_b32 s{sE}, 81920\nv_mul_lo_u32 v{vT+5}, s{sE}, v{vT+5}\nv_and_b32 v{vUS}, 15, v{vL}\nv_lshl_add_u32 v{vUS}, v{vUS}, 4, v{vT+5}')
    DR = [(160, 176)] if nG == 4 else [(64, 80), (112, 144)]
    later = []
    for s in range(9, 14): later += w2_load_ops(s, st)
    later = w2_load_ops(5, st, [4]) + later
    li = [0]
    def drip(a, n=1):
        for _ in range(n):
            if li[0] < len(later): later[li[0]](a); li[0] += 1
    for d in range(nD):
        lo, hi = 128 + 32*d, 144 + 32*d
        for j in range(16):
            a.e(f'v_fma_f32 v{lo+j}, v{vT+1}, v{hi+j}, v{lo+j}')
            if j % 4 == 3: drip(a)
        if d == 0: a.wait(lg=rt_)
        for j in range(16):
            a.e(f'v_mul_f32 v{lo+j}, v{rr+j}, v{lo+j}')
            if j % 4 == 3: drip(a)
        for j in range(8): a.e(cvtpk(lo+j, lo+2*j, lo+2*j+1))
        D1, D2 = DR[d]
        a.e(f'v_mfma_f32_32x32x16_bf16 v[{D1}:{D1+15}], {aF(0)}, v[{lo}:{lo+3}], 0')
        a.e(f'v_mfma_f32_32x32x16_bf16 v[{D2}:{D2+15}], {aF(2)}, v[{lo}:{lo+3}], 0')
        a.e(f'v_mfma_f32_32x32x16_bf16 v[{D1}:{D1+15}], {aF(1)}, v[{lo+4}:{lo+7}], v[{D1}:{D1+15}]')
        a.e(f'v_mfma_f32_32x32x16_bf16 v[{D2}:{D2+15}], {aF(3)}, v[{lo+4}:{lo+7}], v[{D2}:{D2+15}]')
        drip(a, 3)
    for d in range(nD):
        D1, D2 = DR[d]
        for j in range(0, 16, 2):
            a.e(f'v_permlane16_swap_b32 v{D1+j}, v{D1+j+1}\nv_permlane16_swap_b32 v{D2+j}, v{D2+j+1}')
        for j in range(0, 16, 2):
            a.e(f'v_sub_f32 v{D1+j}, v{D1+j}, v{D2+j+1}\nv_add_f32 v{D2+j}, v{D2+j}, v{D1+j+1}')
            a.e(cvtpk(D1+j, D1+j, D2+j))
            a.lg(f'ds_write_b32 v{vXW}, v{D1+j} offset:{XCH + d*8192 + (8*(j>>2)+(j&3))*64}')
            drip(a)
    a.wait(lg=a.lg_issued); a.e('s_barrier')
    toks = []
    for d in range(nD):
        for i in range(2):
            b = 128 + 8*d + 4*i
            a.lg(f'ds_read2st64_b32 v[{b}:{b+1}], v{vXR_} offset0:{32*d+i} offset1:{32*d+8+i}')
            toks.append(a.lg(f'ds_read2st64_b32 v[{b+2}:{b+3}], v{vXR_} offset0:{32*d+16+i} offset1:{32*d+24+i}'))
    a.e(f's_lshl_b32 s{sE}, s{sW}, 7\ns_add_u32 s{sE}, s{sE}, s{sRB}\ns_mul_i32 s{sE}, s{sE}, 5120\ns_lshl_b32 s{sE+1}, s{sDT}, 8\ns_add_u32 s{sE}, s{sE}, s{sE+1}\ns_add_u32 s{sE}, s{sE}, {U_OFF}')
    a.e(f's_add_u32 s{sE+1}, s{sE}, {4*81920}')
    for d in range(nD):
        if d == 1:
            a.e(f's_cmp_ge_u32 s{sDT}, 19\ns_cselect_b32 s{sE+2}, {OOB}, 0\nv_add_u32 v{vUS}, s{sE+2}, v{vUS}')
        for i in range(2):
            b = 128 + 8*d + 4*i
            a.wait(lg=toks[2*d+i])
            ust = a.vm(f'buffer_store_dwordx4 v[{b}:{b+3}], v{vUS}, {srd(SWS)}, s{sE+i} offen offset:{256*d} sc1')
    drip(a, 99)
    hflag(a)
    stamp(a, 5)
    phase2(a, st, ust)

def phase2(a, st, ust):
    t = 2
    q = 140
    run(a, gen_TW(q))
    a.e(f's_sub_u32 s{sT}, 32, s{sT1}\ns_min_u32 s{sT}, s{sT}, s{sT1}\ns_and_b32 s{sT}, s{sT}, 15')
    a.e(f's_lshr_b32 s{sT+1}, s{sT}, 2\ns_lshl_b32 s{sT+1}, s{sT+1}, 1\ns_and_b32 s{sT+2}, s{sT}, 3\ns_lshl_b32 s{sT+2}, s{sT+2}, 3\ns_add_u32 s{sT+1}, s{sT+1}, s{sT+2}')
    a.e(f's_lshr_b32 s{sT+2}, s{sW}, 1\ns_add_u32 s{sT+1}, s{sT+1}, s{sT+2}')
    a.e(f's_and_b32 s{sT+2}, s{sW}, 1\ns_mul_i32 s{sT+2}, s{sT+2}, 96\ns_add_u32 s{sT+1}, s{sT+1}, s{sT+2}')
    a.e(f's_lshl_b32 s{sT+1}, s{sT+1}, 2\ns_lshr_b32 s{sT+2}, s{sT1}, 4\ns_lshl_b32 s{sT+2}, s{sT+2}, 1\ns_add_u32 s{sT+1}, s{sT+1}, s{sT+2}')
    vF1, vF2, vFV = t, t+1, t+2
    a.e(f'v_lshrrev_b32 v{q}, 1, v{vL}\nv_lshlrev_b32 v{q}, 7, v{q}\nv_and_b32 v{q+1}, 1, v{vL}\nv_add3_u32 v{q}, v{q}, v{q+1}, s{sT+1}')
    a.e(f'v_lshlrev_b32 v{vF1}, 7, v{q}\nv_add_u32 v{vF1}, {F_OFF}, v{vF1}')
    a.e(f's_sub_u32 s{sTS1}, 32, s{sT1}\ns_and_b32 s{sTS1}, s{sTS1}, 31\ns_cmp_ge_u32 s{sC}, 4\ns_cselect_b32 s{sTS1}, s{sTS1}, s{sT1}')
    a.e(f'v_bfe_u32 v{q}, v{vL}, 3, 1\nv_lshrrev_b32 v{q+1}, 4, v{vL}\nv_lshl_add_u32 v{q}, v{q+1}, 3, v{q}\nv_and_b32 v{q+2}, 7, v{vL}\nv_lshl_add_u32 v{q}, v{q+2}, 5, v{q}')
    a.e(f's_lshl_b32 s{sT}, s{sW}, 3\ns_lshr_b32 s{sT+2}, s{sTS1}, 3\ns_add_u32 s{sT}, s{sT}, s{sT+2}\nv_lshl_add_u32 v{q}, v{q}, 2, s{sT}')
    a.e(f'v_lshlrev_b32 v{vF2}, 7, v{q}\nv_add_u32 v{vF2}, {F_OFF+4}, v{vF2}')
    vUO = [t+3+k for k in range(5)]
    a.e(f'v_and_b32 v{q}, 15, v{vL}\ns_mul_i32 s{sT}, s{sC}, 80\nv_add_u32 v{q}, s{sT}, v{q}\ns_movk_i32 s{sT+1}, 5120\nv_mul_u32_u24 v{q+1}, s{sT+1}, v{q+1}')
    a.e(f's_cmp_ge_u32 s{sC}, 4\ns_cselect_b32 s{sT}, -1, 0\ns_cselect_b32 s{sT+1}, 640, -1')
    for ct in range(5):
        a.e(f'v_add_u32 v{q+2}, {16*ct}, v{q}\nv_xor_b32 v{q+2}, s{sT}, v{q+2}\nv_add_u32 v{q+2}, s{sT+1}, v{q+2}')
        a.e(f'v_lshl_add_u32 v{vUO[ct]}, v{q+2}, 4, v{q+1}')
        if ct == 0: a.e(f'v_cmp_gt_i32 vcc, 0, v{q+2}\nv_mov_b32 v{q+3}, {OOB}\nv_cndmask_b32 v{vUO[0]}, v{vUO[0]}, v{q+3}, vcc')
    a.e(f's_lshl_b32 s{sUo}, s{sTS1}, 4\ns_lshl_b32 s{sT}, s{sW}, 2\ns_add_u32 s{sUo}, s{sUo}, s{sT}\ns_mul_i32 s{sUo}, s{sUo}, 5120\ns_add_u32 s{sUo}, s{sUo}, {U_OFF}')
    vGO = [t+8, t+9, t+10]; vLA = [t+11, t+12, t+13]; vBO = [193, 194, 195]; vPW = 0
    a.e(f's_mul_i32 s{sCW}, s{sC}, 160\ns_mul_i32 s{sGO}, s{sT1}, 1280\ns_add_u32 s{sGO}, s{sGO}, s{sCW}')
    a.e(f's_lshl_b32 s{sT}, s{sW}, 6\ns_mov_b32 s{sT+1}, 0xCCCD\ns_movk_i32 s{sT+3}, 1280\ns_movk_i32 s{sT+4}, {RED_PITCH}')
    for it in range(3):
        a.e(f'v_add_u32 v{q}, s{sT}, v{vL}')
        if it: a.e(f'v_add_u32 v{q}, {256*it}, v{q}')
        a.e(f'v_mul_lo_u32 v{q+1}, s{sT+1}, v{q}\nv_lshrrev_b32 v{q+1}, 19, v{q+1}\nv_mul_u32_u24 v{q+2}, 10, v{q+1}\nv_sub_u32 v{q+2}, v{q}, v{q+2}')
        a.e(f'v_mul_u32_u24 v{q+3}, s{sT+4}, v{q+1}\nv_lshl_add_u32 v{vLA[it]}, v{q+2}, 5, v{q+3}')
        a.e(f'v_and_b32 v{q+3}, 31, v{q+1}\nv_lshlrev_b32 v{q+3}, 1, v{q+3}\nv_lshrrev_b32 v{q+1}, 5, v{q+1}\nv_add_u32 v{q+3}, v{q+3}, v{q+1}')
        a.e(f'v_lshlrev_b32 v{q+3}, 5, v{q+3}\nv_mul_u32_u24 v{q+3}, s{sT+3}, v{q+3}\nv_lshl_add_u32 v{vGO[it]}, v{q+2}, 4, v{q+3}')
        a.e(f'v_lshlrev_b32 v{q+2}, 4, v{q+2}\nv_add_u32 v{vBO[it]}, s{sCW}, v{q+2}')
        if it == 2:
            a.e(f'v_cmp_gt_u32 vcc, 640, v{q}\nv_mov_b32 v{q+4}, {OOB}\nv_cndmask_b32 v{vGO[it]}, v{q+4}, v{vGO[it]}, vcc\nv_cndmask_b32 v{vLA[it]}, 0, v{vLA[it]}, vcc')
    a.e(f'v_and_b32 v{q}, 15, v{vL}\nv_mul_u32_u24 v{q}, s{sT+4}, v{q}\nv_lshrrev_b32 v{q+1}, 4, v{vL}\nv_lshl_add_u32 v{q}, v{q+1}, 4, v{q}')
    a.e(f's_mul_i32 s{sT}, s{sW}, {RED_WAVE}\nv_add_u32 v{vPW}, s{sT}, v{q}')
    a.e(f's_mul_i32 s{sH0}, s{sT1}, 54\ns_add_u32 s{sH0}, s{sH0}, s{sTAU}\ns_lshl_b32 s{sH0}, s{sH0}, 11\ns_add_u32 s{sH1}, s{sH0}, {32*54*2048}')
    vH = vL
    a.e(f'v_mov_b32 v{vH}, v{vL16}')
    a.wait(vm=ust); set_flag(a, 1, q)
    stamp(a, 6)
    hl = f'buffer_load_dword v{vFV}, v{vF1}, {srd(SWS)}, 0 offen sc1'
    a.e('s_mov_b64 exec, 0x3ff')
    tk = a.vm(hl); a.wait(vm=tk)
    check_loop(a, hl, vFV, 10, sPC)
    stamp(a, 7)
    ht = {}
    def hload(slot, rt):
        def op(a):
            if rt == 0 and slot > 0 and slot % 2 == 0: a.e(f's_add_u32 s{sH0}, s{sH0}, 4096\ns_add_u32 s{sH1}, s{sH1}, 4096')
            vo = 192 if slot == 13 else vH
            ht[(slot, rt)] = a.vm(f'buffer_load_dwordx4 {HF(4*slot+rt)}, v{vo}, {srd(SWS)}, s{sH0 if rt < 2 else sH1} offen offset:{(slot%2)*2048 + (rt&1)*1024} sc1')
        return op
    for s in range(6):
        for rt in range(4): hload(s, rt)(a)
    S = Sched(); f = {}
    NE = 11
    for s in range(NE):
        for rt in range(4):
            for ct in range(5):
                pre = [lambda a, s=s, rt=rt: a.wait(vm=ht[(s, rt)])] if ct == 0 else []
                idx = S.add(f'v_mfma_f32_16x16x32_bf16 {ACC2(ct,rt)}, {W2(s,ct)}, {HF(4*s+rt)}, {"0" if s == 0 else ACC2(ct,rt)}', pre)
                if ct == 0: f[(s, rt)] = idx
            if s + 6 < 14: S.put(idx, [hload(s+6, rt)])
    ul = f'buffer_load_dword v{vFV}, v{vF2}, {srd(SWS)}, 0 offen sc1'
    S.put(f[(3, 0)] + 2, [lambda a: st.__setitem__('ul', a.vm(ul))])
    S.put(f[(6, 0)] + 2, [lambda a: (a.wait(vm=st['ul']), check_loop(a, ul, vFV, 64, sPC))])
    for ct in range(5):
        S.put(f[(8, ct % 4)] + 2 + ct // 4, [lambda a, ct=ct: st.__setitem__('uf', a.vm(f'buffer_load_dwordx4 {UF(ct)}, v{vUO[ct]}, {srd(SWS)}, s{sUo} offen sc1'))])
    vXR = [196, 200, 204]; vBB = [208, 212, 216]
    for it in range(3):
        S.put(f[(9, it)] + 2, [f'buffer_load_dwordx4 v[{vXR[it]}:{vXR[it]+3}], v{vGO[it]}, {srd(SX)}, s{sGO} offen'])
        S.put(f[(10, it)] + 2, [lambda a, it=it: st.__setitem__(('xb', it), a.vm(f'global_load_dwordx4 v[{vBB[it]}:{vBB[it]+3}], v{vBO[it]}, s[{sB2}:{sB2+1}]'))])
    g = {}
    for rt in range(4):
        for s in range(NE, 15):
            for ct in range(5):
                if s < 14:
                    pre = [lambda a, s=s, rt=rt: a.wait(vm=ht[(s, rt)])] if ct == 0 else []
                    idx = S.add(f'v_mfma_f32_16x16x32_bf16 {ACC2(ct,rt)}, {W2(s,ct)}, {HF(4*s+rt)}, {ACC2(ct,rt)}', pre)
                else:
                    pre = [lambda a: a.wait(vm=st['uf'])] if ct == 0 else []
                    idx = S.add(f'v_mfma_f32_16x16x32_bf16 {ACC2(ct,rt)}, {UF(ct)}, a[{aTW+4*rt}:{aTW+4*rt+3}], {ACC2(ct,rt)}', pre)
                if s == NE and ct == 0: g[rt] = idx
        if rt > 0:
            for ct in range(5): S.put(g[rt] + 4 + 3*ct, [f'ds_write_b128 v{vPW}, {ACC2(ct,rt-1)} offset:{(rt-1)*16*RED_PITCH + ct*64}'])
    S.slots[g[0]]['pre'].insert(0, 's_barrier')
    S.emit(a)
    for ct in range(5): a.lg(f'ds_write_b128 v{vPW}, {ACC2(ct,3)} offset:{3*16*RED_PITCH + ct*64}')
    a.wait(lg=a.lg_issued); a.e('s_barrier')
    stamp(a, 8)
    rtk = {}
    for it in range(3):
        b = 96 + 32*it
        for w in range(4):
            for h in range(2):
                rtk[it] = a.lg(f'ds_read_b128 v[{b+8*w+4*h}:{b+8*w+4*h+3}], v{vLA[it]} offset:{w*RED_WAVE + 16*h}')
    for it in range(3):
        b = 96 + 32*it; e = 16 + 16*it
        a.wait(vm=st[('xb', it)])
        for k in range(4):
            a.e(f'v_lshlrev_b32 v{e+2*k}, 16, v{vXR[it]+k}\nv_and_b32 v{e+2*k+1}, 0xffff0000, v{vXR[it]+k}')
            a.e(f'v_lshlrev_b32 v{e+8+2*k}, 16, v{vBB[it]+k}\nv_and_b32 v{e+9+2*k}, 0xffff0000, v{vBB[it]+k}')
        for k in range(8): a.e(f'v_add_f32 v{e+k}, v{e+k}, v{e+8+k}')
        a.wait(lg=rtk[it])
        for k in range(8): a.e(f'v_add_f32 v{b+k}, v{b+k}, v{b+8+k}\nv_add_f32 v{b+16+k}, v{b+16+k}, v{b+24+k}')
        for k in range(8): a.e(f'v_add_f32 v{b+k}, v{b+k}, v{b+16+k}')
        for k in range(8): a.e(f'v_add_f32 v{b+k}, v{b+k}, v{e+k}')
        for k in range(4): a.e(cvtpk(b+12+k, b+2*k, b+2*k+1))
        a.vm(f'buffer_store_dwordx4 v[{b+12}:{b+15}], v{vGO[it]}, {srd(SOUT)}, s{sGO} offen {opt("ost","")}')
    if DBG:
        a.wait_all()
        a.e(f's_memrealtime s[{sT+1}:{sT+2}]\ns_waitcnt lgkmcnt(0)')
        for k in range(9): a.e(f'v_mov_b32 v{16+k}, s{sTS+2*k}')
        a.e(f'v_mov_b32 v25, s{sT+1}\nv_mov_b32 v26, 0\nv_mov_b32 v27, 0')
        a.e(f's_lshl_b32 s{sT}, s2, 2\ns_add_u32 s{sT}, s{sT}, s{sW}\ns_lshl_b32 s{sT}, s{sT}, 6\ns_add_u32 s{sT}, s{sT}, {TS_OFF}')
        a.e(f'v_mov_b32 v2, 0\ns_mov_b64 exec, 1')
        for k in range(3): a.e(f'buffer_store_dwordx4 v[{16+4*k}:{19+4*k}], v2, {srd(SWS)}, s{sT} offen offset:{16*k}')
    a.e('s_endpgm')

def build():
    a = Asm(); prologue(a)
    outs = [a]
    for nG in (4, 2):
        b = a.fork()
        if nG == 2: b.e('L_S:')
        build_type(b, T(nG)); outs.append(b)
    lines = []
    for o in outs: lines += o.finish()
    return lines

hdr = open('cdna_kernels/%s.s.ref' % NAME).read().split('; Override launch')[0]
lines = build()
with open(sys.argv[1], 'w') as f:
    f.write(hdr)
    f.write(f'; @launch grid=(256,1,1) block=(256,1,1) lds={LDS_BYTES}\n')
    f.write('.amdgcn_target "amdgcn-amd-amdhsa--gfx950"\n.text\n')
    f.write(f'.globl {NAME}_kernel\n.p2align 8\n.type {NAME}_kernel,@function\n{NAME}_kernel:\n')
    for l in lines: f.write(('' if l.endswith(':') else '    ') + l + '\n')
    f.write('L_end:\n    s_endpgm\n')
    f.write('.fill 16384, 4, 0xbf800000\n')
    f.write(f'''.section .rodata,"a"
.p2align 6
.amdhsa_kernel {NAME}_kernel
  .amdhsa_next_free_vgpr 512
  .amdhsa_next_free_sgpr 102
  .amdhsa_accum_offset 256
  .amdhsa_group_segment_fixed_size 0
  .amdhsa_kernarg_size 104
  .amdhsa_user_sgpr_count 2
  .amdhsa_user_sgpr_kernarg_segment_ptr 1
  .amdhsa_system_sgpr_workgroup_id_x 1
.end_amdhsa_kernel
''')
print('instructions:', len(lines))
```

```python
import sys, struct, copy, os
from asmlib import Asm
NAME = 'parallel_sum__spectral_fnet__dense_activation_squared_relu__prompt'
DBG = int(sys.argv[2]) if len(sys.argv) > 2 else 0
OPT = dict(kv.split('=') for kv in sys.argv[3:])
def opt(k, d): return type(d)(OPT.get(k, d))

H_OFF = 0; U_OFF = 0x6C0000; P_OFF = 0x940000; ST_OFF = 0xB5C000; F_OFF = 0xB68000; TS_OFF = 0xB88000; PF_OFF = 0xBA0000; WS_END = 0xBB0000
OOB = 0x40000000
ARING = 0; BBASE = 65536; AUX = 139264; TAB = 161792; TABC = TAB; TABB = TAB + 512; TABR = TAB + 1024
XCH = 0
RED_PITCH = 336; RED_WAVE = 64 * RED_PITCH
LDS_BYTES = 163840
SX, SW1, SW2, SWS, SOUT = 4, 8, 12, 16, 20
sB1, sB2, sDBG = 24, 26, 28
sW, sZ, sRB, sC8, sROW, sG0 = 30, 31, 32, 33, 34, 35
sA, sA2, sBo, sMA, sMB = 36, 37, 38, 39, 40
sT1, sC, sTAG, sONES = 41, 42, 43, 44
sT = 45
sH = [53, 54, 55, 56]; sFL = 57; sDT = 58; sAUXo = 59; sAUXs = 60; sTAU = 61; sW2o = 62; sH0 = 63; sH1 = 64; sUo = 65
sCW = 66; sGO = 67; sTS1 = 68; sPC = 69; sUS = 70; sE = 71
sAUXm = 3; sHB = [78, 79, 80, 81]
sRHO = 75; sWE = 76; sW4 = 77
sKO = [36, 37, 38, 39, 40, 53, 54, 55, 56, 58, 59, 60, 63, 64]
sTS = 84
def srd(b): return f's[{b}:{b+3}]'
def fhex(x): return '0x%08x' % struct.unpack('<I', struct.pack('<f', x))[0]
def X(ks): return f'a[{4*ks}:{4*ks+3}]'
def ACC1(i): return f'v[{32+16*i}:{47+16*i}]'
def WB(b, i, h=None):
    base = 96 + 16*b + 4*i
    return f'v[{base}:{base+3}]' if h is None else f'v[{base+2*h}:{base+2*h+1}]'
aTW = 160; aF0 = 176; aSEL = 'a[192:195]'; aCS = 'a[196:199]'
def aF(k): return f'a[{aF0+4*k}:{aF0+4*k+3}]'
vL = 1
vOA = [2, 3]; vOB = [4, 5, 6, 7]; vAR = [8, 9, 10, 11]; vBR = [12, 13, 14, 15]
vT = 16
vST = 24
vNM, vSDV, vR = 24, 25, 26
vNON = 28; vPF = 29; vHO = 30; vL16 = 31
vAUX = 160
def W2(slot, ct):
    if slot < 3: k, b = 'v', 196 + 20*slot + 4*ct
    elif slot < 5: k, b = 'a', 200 + 20*(slot-3) + 4*ct
    elif slot == 5: k, b = 'a', (240 + 4*ct if ct < 4 else 196)
    else: k, b = 'a', 20*(slot-6) + 4*ct
    return f'{k}[{b}:{b+3}]'
def UF(ct): return f'a[{176+4*ct}:{179+4*ct}]'
def ACC2(ct, rt): b = 16 + 20*rt + 4*ct; return f'v[{b}:{b+3}]'
RING = opt('ring', 12)
def HF(n): b = 96 + 4*(n % RING); return f'v[{b}:{b+3}]'

TSL = OPT.get('ts', '0,1,2,3,4,5,6,7,8').split(',')
def stamp(a, name):
    if str(name) not in TSL: return
    idx = TSL.index(str(name))
    if DBG: a.e(f'{"s_memtime" if DBG == 2 else "s_memrealtime"} s[{sTS+2*idx}:{sTS+2*idx+1}]')
def cvtpk(d, x, y): return f'v_cvt_pk_bf16_f32 v{d}, v{x}, v{y}'
uid = [0]
def label(p):
    uid[0] += 1; return f'L_{p}{uid[0]}'

class Sched:
    def __init__(self): self.slots = []
    def add(self, main, pre=()):
        self.slots.append({'pre': list(pre), 'main': main, 'fill': []}); return len(self.slots) - 1
    def put(self, idx, ops): self.slots[idx]['fill'] += list(ops)
    def spread(self, ops, first, last):
        ops = list(ops); n = last - first + 1
        for k, op in enumerate(ops):
            self.slots[first + min(n - 1, k * n // len(ops))]['fill'].append(op)
    def pack(self, ops, first, per):
        i = first
        for op in ops:
            while i < len(self.slots) - 1 and len(self.slots[i]['fill']) >= per: i += 1
            self.slots[i]['fill'].append(op)
        return i
    def emit(self, a, lo=0, hi=None):
        for s in self.slots[lo:hi]:
            for op in s['pre'] + [s['main']] + s['fill']:
                if op is None: continue
                if callable(op): op(a)
                else: a.e(op)
def L(text): return [t for t in text.split('\n') if t.strip()]

def mk_srd(b, lo, n):
    return f's_mov_b32 s{b}, s{lo}\ns_and_b32 s{b+1}, s{lo+1}, 0xffff\ns_mov_b32 s{b+2}, {n}\ns_mov_b32 s{b+3}, 0x20000'

def prologue(a):
    a.e('s_cmp_ge_u32 s2, 256\ns_cbranch_scc1 L_end')
    stamp(a, 0)
    a.e('s_load_dwordx2 s[66:67], s[0:1], 0')
    a.e('s_load_dwordx8 s[68:75], s[0:1], 48')
    a.e('s_load_dwordx4 s[76:79], s[0:1], 80')
    a.e('s_load_dwordx2 s[80:81], s[0:1], 96')
    a.e('s_getpc_b64 s[82:83]\nL_pc:')
    a.e('s_bfe_u32 s3, s2, 0x10003\ns_lshl_b32 s3, s3, 15\nv_lshl_add_u32 v2, v0, 7, s3')
    a.vm(f'global_load_dword v{vPF}, v2, s[82:83]')
    a.e('s_add_u32 s82, s82, L_ftab-L_pc\ns_addc_u32 s83, s83, 0')
    a.e(f'v_lshrrev_b32 v4, 6, v0\nv_and_b32 v{vL}, 63, v0\nv_readfirstlane_b32 s{sW}, v4')
    a.e(f's_and_b32 s{sZ}, s2, 1')
    a.e(f's_bfe_u32 s{sT}, s2, 0x20001\ns_bfe_u32 s{sT+1}, s2, 0x20003\ns_lshl_b32 s{sT}, s{sT}, 2')
    a.e(f's_add_u32 s{sRB}, s{sT}, s{sT+1}\ns_lshr_b32 s{sC8}, s2, 5')
    a.e(f's_sub_u32 s{sT+2}, 32, s{sRB}\ns_cmp_eq_u32 s{sRB}, 0\ns_cselect_b32 s{sT+2}, 16, s{sT+2}')
    a.e(f's_bitcmp1_b32 s{sW}, 1\ns_cselect_b32 s{sROW}, s{sT+2}, s{sRB}')
    a.e(f's_and_b32 s{sT+3}, s{sW}, 1\ns_lshl_b32 s{sT+3}, s{sT+3}, 5\ns_add_u32 s{sROW}, s{sROW}, s{sT+3}')
    a.e(f's_mov_b32 s{sAUXm}, s{sT+2}')
    a.e(f'v_lshrrev_b32 v{vT}, 3, v{vL}\nv_lshrrev_b32 v{vT+1}, 4, v{vL}\nv_and_b32 v{vT+2}, 7, v{vL}')
    a.e(f'v_xor_b32 v{vT+3}, v{vT+2}, v{vT+1}\ns_mov_b32 s{sT+4}, 81920\nv_mul_lo_u32 v{vT+4}, s{sT+4}, v{vT}')
    a.e(f'v_lshl_add_u32 v{vOA[0]}, v{vT+3}, 4, v{vT+4}\nv_xor_b32 v{vT+3}, 4, v{vT+3}')
    a.e(f'v_lshl_add_u32 v{vOA[1]}, v{vT+3}, 4, v{vT+4}\nv_add_u32 v{vOA[1]}, {8*81920-1024}, v{vOA[1]}')
    a.e(f's_mul_i32 s{sA}, s{sROW}, 1280\ns_add_u32 s{sA2}, s{sA}, {16*81920-2048}\ns_lshl_b32 s{sMA}, s{sW}, 12')
    a.e(f's_sub_u32 s{sT+5}, 6, s{sZ}\ns_cmp_ge_u32 s{sC8}, s{sT+5}\ns_cbranch_scc1 L_S')

class T:
    def __init__(self, nG):
        self.nG = nG; self.nD = 1 if nG == 4 else 2
        self.bslot = 4096 * nG
        self.pitch = 64 * nG
        self.DREG = 131072 if nG == 4 else 98304
        self.nb = nG

def prologue_t(a, t, st):
    if t.nG == 4:
        a.e(f's_mul_i32 s{sG0}, s{sZ}, 28\ns_lshl_b32 s{sT}, s{sC8}, 2\ns_add_u32 s{sG0}, s{sG0}, s{sT}')
        a.e(f's_mul_i32 s{sDT}, s{sZ}, 10\ns_add_u32 s{sDT}, s{sDT}, s{sC8}')
        a.e(f'v_and_b32 v{vT+2}, 15, v{vL}\nv_lshlrev_b32 v{vT+3}, 2, v{vT+1}\nv_xor_b32 v{vT+2}, v{vT+2}, v{vT+3}')
        a.e(f's_movk_i32 s{sT+6}, 3456\nv_mul_u32_u24 v{vT+3}, s{sT+6}, v{vT+1}\nv_lshl_add_u32 v{vOB[0]}, v{vT+2}, 4, v{vT+3}')
        for i in range(1, 4): a.e(f'v_add_u32 v{vOB[i]}, {i*(4*3456-1024)}, v{vOB[0]}')
    else:
        a.e(f's_mul_i32 s{sG0}, s{sZ}, 26\ns_lshl_b32 s{sT}, s{sC8}, 1\ns_add_u32 s{sG0}, s{sG0}, s{sT}\ns_add_u32 s{sG0}, s{sG0}, 12')
        a.e(f's_mul_i32 s{sDT}, s{sZ}, 11\ns_add_u32 s{sDT}, s{sDT}, s{sT}\ns_sub_u32 s{sDT}, s{sDT}, 6')
        a.e(f'v_and_b32 v{vT+3}, 1, v{vT+1}\nv_lshlrev_b32 v{vT+3}, 2, v{vT+3}\nv_xor_b32 v{vT+2}, v{vT+2}, v{vT+3}')
        a.e(f's_movk_i32 s{sT+6}, 3456\nv_mul_u32_u24 v{vT+3}, s{sT+6}, v{vT}\nv_lshl_add_u32 v{vOB[0]}, v{vT+2}, 4, v{vT+3}')
        a.e(f'v_add_u32 v{vOB[1]}, {8*3456-1024}, v{vOB[0]}')
    a.e(f's_lshl_b32 s{sBo}, s{sG0}, 6\ns_mul_i32 s{sT}, s{sW}, {16*3456}\ns_add_u32 s{sBo}, s{sBo}, s{sT}')
    a.e(f's_mul_i32 s{sMB}, s{sW}, {1024*t.nb}\ns_add_u32 s{sMB}, s{sMB}, {BBASE}')
    a.e(f's_lshl_b32 s{sT+1}, s{sG0}, 6\nv_and_b32 v{vT+6}, {16*t.nG-1}, v{vL}\nv_lshl_add_u32 v{vT+6}, v{vT+6}, 2, s{sT+1}')
    if t.nG == 2: aux_setup(a)
    stamp(a, 'p0')
    a.e('s_waitcnt lgkmcnt(0)')
    stamp(a, 'p1')
    if t.nG == 2:
        a.e(mk_srd(SW2, 72, 1728*1280)); run(a, pack_dma(0, st))
    a.vm(f'global_load_dword v{vT+7}, v{vT+6}, s[70:71]')
    a.e(f'v_bfe_u32 v{vT+5}, v{vL}, 0, 3\nv_mul_u32_u24 v{vT+5}, 0xa0, v{vT+5}')
    a.vm(f'global_load_dword v{vPF}, v{vT+5}, s[74:75]')
    a.e(mk_srd(SX, 66, 2048*1280)); a.e(mk_srd(SW1, 68, 640*3456))

def dma_ops(t, c, st):
    slot = c % 4
    ops = [f's_add_u32 m0, s{sMA}, {ARING + slot*16384}',
           f'buffer_load_dwordx4 v{vOA[0]}, {srd(SX)}, s{sA} offen {opt("ntx", "")} lds',
           f'buffer_load_dwordx4 v{vOA[1]}, {srd(SX)}, s{sA} offen offset:1024 {opt("ntx", "")} lds',
           f'buffer_load_dwordx4 v{vOA[0]}, {srd(SX)}, s{sA2} offen offset:2048 {opt("ntx", "")} lds',
           f'buffer_load_dwordx4 v{vOA[1]}, {srd(SX)}, s{sA2} offen offset:3072 {opt("ntx", "")} lds',
           f's_add_u32 m0, s{sMB}, {slot*t.bslot}\ns_add_u32 s{sA}, s{sA}, 128\ns_add_u32 s{sA2}, s{sA2}, 128']
    for i in range(t.nb):
        ops.append(f'buffer_load_dwordx4 v{vOB[i]}, {srd(SW1)}, s{sBo} offen offset:{1024*i} {opt("ntw", "")} lds')
    def last(a):
        st['dma'][c] = a.vm_issued
        a.e(f's_add_u32 s{sBo}, s{sBo}, {64*3456}')
    ops.append(last)
    return ops
def run(a, ops):
    for op in ops:
        if callable(op): op(a)
        else: a.e(op)

vAO = 64
vPK = 76
vSD = 128
sPo = [55, 56]; sPs = [62, 63]; sPf = [64, 59]; sSo = 60; sSs = 65
def aux_setup(a):
    q = 184
    a.e(f's_mul_i32 s{sT}, s{sZ}, 3\ns_add_u32 s{sT}, s{sT}, s{sC8}\ns_sub_u32 s{sT}, s{sT}, 6\ns_lshl_b32 s{sT}, s{sT}, 2\ns_add_u32 s{sT}, s{sT}, s{sW}')
    a.e(f's_mul_i32 s{sT+1}, s{sRB}, 20\ns_add_u32 s{sT+1}, s{sT+1}, s{sT}')
    a.e(f's_bitcmp1_b32 s{sT}, 3\ns_cselect_b32 s{sT+2}, s{sAUXm}, s{sRB}')
    a.e(f's_bfe_u32 s{sT+3}, s{sT}, 0x10002\ns_lshl_b32 s{sT+3}, s{sT+3}, 5\ns_add_u32 s{sT+2}, s{sT+2}, s{sT+3}\ns_lshl_b32 s{sT+3}, s{sW}, 9\ns_add_u32 s{sT+2}, s{sT+2}, s{sT+3}\ns_mul_i32 s{sSo}, s{sT+2}, 1280')
    a.e(f's_lshl_b32 s{sT+2}, s{sRB}, 4\ns_add_u32 s{sT+2}, s{sT+2}, s{sT}\ns_lshl_b32 s{sSs}, s{sT+2}, 7\ns_add_u32 s{sSs}, s{sSs}, {ST_OFF}')
    a.e(f's_cmp_lt_u32 s{sT}, 16\ns_cselect_b32 s{sT+4}, 0, {OOB}')
    a.e(f'v_lshrrev_b32 v{q}, 4, v{vL}\ns_mov_b32 s{sT+5}, 81920\nv_mul_lo_u32 v{q+1}, s{sT+5}, v{q}\nv_and_b32 v{q+2}, 15, v{vL}\nv_lshlrev_b32 v{q+2}, 4, v{q+2}\nv_add3_u32 v{vAO+7}, v{q+2}, v{q+1}, s{sT+4}')
    a.e(f'v_lshl_add_u32 v{vAO+8}, v{q}, 4, s{sT+4}')
    for k in range(2):
        if k: a.e(f's_add_u32 s{sT+1}, s{sT+1}, 320')
        a.e(f's_lshr_b32 s{sT+2}, s{sT+1}, 3\ns_and_b32 s{sT+3}, s{sT+1}, 7\ns_mul_i32 s{sPo[k]}, s{sT+2}, 40960\ns_mul_i32 s{sT+5}, s{sT+3}, 160\ns_add_u32 s{sPo[k]}, s{sPo[k]}, s{sT+5}')
        a.e(f's_mul_i32 s{sPs[k]}, s{sT+3}, 54\ns_add_u32 s{sPs[k]}, s{sPs[k]}, s{sT+2}\ns_mul_i32 s{sPs[k]}, s{sPs[k]}, 5120\ns_add_u32 s{sPs[k]}, s{sPs[k]}, {P_OFF}')
        a.e(f's_lshl_b32 s{sPf[k]}, s{sT+1}, 7\ns_add_u32 s{sPf[k]}, s{sPf[k]}, {PF_OFF}')
        if k:
            a.e(f's_cmp_lt_u32 s{sT+1}, 432\ns_cselect_b32 s{sT+4}, 0, {OOB}\ns_cselect_b32 s{sPo[k]}, s{sPo[k]}, 0')
            a.e(f'v_lshl_add_u32 v{vAO+10}, v{vL}, 4, s{sT+4}')
        else: a.e(f'v_lshlrev_b32 v{vAO+9}, 4, v{vL}')
    a.e(f's_mov_b32 s{sT+5}, 0xCCCD\ns_movk_i32 s{sT+6}, 1280\ns_mul_i32 s{sAUXm}, s{sW}, 5120\ns_add_u32 s{sAUXm}, s{sAUXm}, {AUX}')
    for i in range(5):
        a.e(f'v_add_u32 v{q}, {64*i}, v{vL}\nv_mul_lo_u32 v{q+1}, s{sT+5}, v{q}\nv_lshrrev_b32 v{q+1}, 19, v{q+1}')
        a.e(f'v_mul_u32_u24 v{q+2}, 10, v{q+1}\nv_sub_u32 v{q+2}, v{q}, v{q+2}\nv_mul_u32_u24 v{q+1}, s{sT+6}, v{q+1}')
        a.e(f'v_lshl_add_u32 v{vAO+i}, v{q+2}, 4, v{q+1}')
        if 0 < i < 4: a.e(f'v_subrev_u32 v{vAO+i}, {1024*i}, v{vAO+i}')
    a.e(f'v_lshrrev_b32 v{q}, 5, v{vL}\nv_lshlrev_b32 v{q}, 4, v{q}\nv_bfe_u32 v{q+1}, v{vL}, 4, 1\nv_lshl_add_u32 v{q}, v{q+1}, 2, v{q}')
    a.e(f'v_bfe_u32 v{q+1}, v{vL}, 2, 2\nv_add_u32 v{q}, v{q}, v{q+1}\nv_mul_u32_u24 v{q}, 160, v{q}\nv_add_u32 v{q}, s{sAUXm}, v{q}')
    a.e(f'v_and_b32 v{q+1}, 3, v{vL}\nv_lshl_add_u32 v{vAO+5}, v{q+1}, 4, v{q}\nv_lshl_add_u32 v{vAO+6}, v{q+1}, 3, v{q}')

def unc_vm(text):
    def op(a): a.e(text); a.vm_issued -= 1
    return op
def unc_lg(text):
    def op(a): a.e(text); a.lg_issued -= 1
    return op
PK1 = 32768 - AUX
def pack_dma(k, st):
    o = []
    for i in range(5):
        def op(a, i=i):
            if i in (0, 4): a.e(f's_add_u32 m0, s{sAUXm}, {PK1*k + (4096 if i else 0)}')
            st[('pk', k)] = a.vm(f'buffer_load_dwordx4 v{vAO+i}, {srd(SW2)}, s{sPo[k]} offen offset:{(1024*i)%4096} {opt("ntp", "")} lds')
        o.append(op)
    return o
def pack_reads(k, st):
    o = [lambda a: a.wait(vm=st[('pk', k)])]
    if k: o += [f'v_add_u32 v{vAO+5}, {PK1 & 0xffffffff}, v{vAO+5}', f'v_add_u32 v{vAO+6}, {PK1 & 0xffffffff}, v{vAO+6}']
    vPK = 76 if k == 0 else 196
    for ct in range(5):
        for h in range(2):
            t = (f'ds_read_b64_tr_b16 v[{vPK+4*ct+2*h}:{vPK+4*ct+2*h+1}], v{vAO+5} offset:{(ct>>1)*64+(ct&1)*8+h*1280}' if ct < 4 else
                 f'ds_read_b64_tr_b16 v[{vPK+4*ct+2*h}:{vPK+4*ct+2*h+1}], v{vAO+6} offset:{128+h*1280}')
            o.append(lambda a, t=t: st.__setitem__(('pr', k), a.lg(t)))
    return o
def pack_stores(k, st):
    o = []; vPK = 76 if k == 0 else 196
    for ct in range(5):
        def op(a, ct=ct):
            a.wait(lg=st[('pr', k)])
            if ct == 4: a.e(f's_add_u32 s{sPs[k]}, s{sPs[k]}, 4096')
            st[('ps', k)] = a.vm(f'buffer_store_dwordx4 v[{vPK+4*ct}:{vPK+4*ct+3}], v{vAO+9+k}, {srd(SWS)}, s{sPs[k]} offen offset:{(1024*ct)%4096} sc1')
        o.append(op)
    return o
def pack_flag(k, st):
    def op(a):
        a.wait(vm=st[('ps', k)])
        a.e(f'v_mov_b32 v{vT}, s{sTAG}\ns_mov_b64 exec, 1')
        a.vm(f'buffer_store_dword v{vT}, v{vAO+9+k}, {srd(SWS)}, s{sPf[k]} offen sc1')
        a.e('s_mov_b64 exec, -1')
    return op
def stats_loads(b, st):
    o = []
    for i in range(5):
        def op(a, i=i):
            if b == 1 and i == 0: a.e(f's_add_u32 s{sSo}, s{sSo}, {4*81920}')
            st[('sl', b)] = a.vm(f'buffer_load_dwordx4 v[{vSD+20*b+4*i}:{vSD+20*b+4*i+3}], v{vAO+7}, {srd(SX)}, s{sSo} offen offset:{256*i}')
        o.append(op)
    return o
def stats_proc(b, st):
    q = 168 + 4*b; g = 176 + 4*b; d = vSD + 20*b
    o = [lambda a: a.wait(vm=st[('sl', b)])]
    o += [f'v_mov_b32 v{q+k}, 0' for k in range(4)]
    o.append('\n'.join(f'v_dot2c_f32_bf16 v{q+(r&1)}, s{sONES}, v{d+r}\nv_dot2c_f32_bf16 v{q+2+(r&1)}, v{d+r}, v{d+r}' for r in range(20)))
    o += L(f'v_add_f32 v{q}, v{q}, v{q+1}\nv_add_f32 v{q+2}, v{q+2}, v{q+3}')
    for sh in (8, 4, 2, 1):
        o += L(f'v_add_f32_dpp v{q}, v{q}, v{q} row_ror:{sh} row_mask:0xf bank_mask:0xf\nv_add_f32_dpp v{q+2}, v{q+2}, v{q+2} row_ror:{sh} row_mask:0xf bank_mask:0xf')
    o += L(f'v_mul_f32 v{q}, {fhex(1/640)}, v{q}\nv_mul_f32 v{q+2}, {fhex(1/640)}, v{q+2}')
    o += L(f'v_fma_f32 v{q+2}, -v{q}, v{q}, v{q+2}\nv_max_f32 v{q+2}, 0, v{q+2}\nv_add_f32 v{q+2}, {fhex(1e-5)}, v{q+2}')
    o += L(f'v_rsq_f32 v{g+2}, v{q+2}\nv_sqrt_f32 v{g+1}, v{q+2}\nv_mov_b32 v{g+3}, s{sTAG}\nv_sub_f32 v{g}, 0, v{q}')
    o += [f's_mov_b32 exec_lo, 0x00010001\ns_mov_b32 exec_hi, 0x00010001\nbuffer_store_dwordx4 v[{g}:{g+3}], v{vAO+8}, {srd(SWS)}, s{sSs} offen offset:{64*b} sc1\ns_mov_b64 exec, -1']
    return o

def nonce_pub(a):
    a.e(mk_srd(SWS, 80, WS_END)); a.e(mk_srd(SOUT, 76, 2048*1280))
    a.e(f's_mov_b64 s[{sB1}:{sB1+1}], s[70:71]\ns_mov_b64 s[{sB2}:{sB2+1}], s[74:75]\ns_mov_b64 s[{sDBG}:{sDBG+1}], s[78:79]')
    ln = label('non')
    a.e(f's_or_b32 s{sT}, s2, s{sW}\ns_cmp_lg_u32 s{sT}, 0\ns_cbranch_scc1 {ln}')
    a.e(f's_memrealtime s[{sT+1}:{sT+2}]\ns_waitcnt lgkmcnt(0)\ns_or_b32 s{sT}, s{sT+1}, 1')
    a.e(f'v_mov_b32 v{vT}, 0\nv_mov_b32 v{vT+1}, s{sT}')
    a.e(f'global_store_dword v{vT}, v{vT+1}, s[{sDBG}:{sDBG+1}] sc1'); a.vm_issued -= 1
    a.e(f'{ln}:')

def setup2(a, t):
    a.e(f's_mov_b32 s{sONES}, 0x3f803f80')
    a.e(f's_bfe_u32 s{sT}, s2, 0x20001\ns_lshl_b32 s{sT}, s{sT}, 2\ns_bfe_u32 s{sT+1}, s2, 0x20004\ns_add_u32 s{sT+1}, s{sT}, s{sT+1}')
    a.e(f's_sub_u32 s{sT+2}, 32, s{sT+1}\ns_cmp_eq_u32 s{sT+1}, 0\ns_cselect_b32 s{sT+2}, 16, s{sT+2}')
    a.e(f's_bitcmp1_b32 s2, 3\ns_cselect_b32 s{sT1}, s{sT+2}, s{sT+1}')
    a.e(f's_lshr_b32 s{sT+1}, s2, 6\ns_lshl_b32 s{sT+2}, s{sZ}, 1')
    a.e(f's_sub_u32 s{sT+3}, 4, s{sT+2}\ns_cmp_lt_u32 s{sT+1}, 2\ns_cselect_b32 s{sT+2}, s{sT+2}, s{sT+3}\ns_add_u32 s{sC}, s{sT+2}, s{sT+1}')
    a.e(f's_mul_i32 s{sTAU}, s{sW}, 14\ns_cmp_eq_u32 s{sW}, 3\ns_cselect_b32 s{sTAU}, 41, s{sTAU}')
    a.e(f'v_and_b32 v{vT}, 31, v{vL}\nv_lshrrev_b32 v{vT+1}, 5, v{vL}')
    a.e(f'v_bfe_u32 v{vT+2}, v{vL}, 1, 3\nv_xor_b32 v{vT+2}, v{vT+2}, v{vT+1}')
    a.e(f'v_lshlrev_b32 v{vT+3}, 7, v{vT}\nv_add_u32 v{vT+3}, s{sMA}, v{vT+3}\nv_lshl_add_u32 v{vAR[0]}, v{vT+2}, 4, v{vT+3}')
    for s in range(1, 4): a.e(f'v_xor_b32 v{vAR[s]}, {s<<5}, v{vAR[0]}')
    a.e(f'v_bfe_u32 v{vT+4}, v{vL}, 2, 2\nv_lshl_add_u32 v{vT+2}, v{vT+1}, 3, v{vT+4}\nv_mul_u32_u24 v{vT+2}, {t.pitch}, v{vT+2}')
    a.e(f'v_bfe_u32 v{vT+3}, v{vL}, 4, 1\nv_lshl_add_u32 v{vT+2}, v{vT+3}, 5, v{vT+2}')
    a.e(f'v_and_b32 v{vT+3}, 3, v{vL}\nv_lshl_add_u32 v{vT+2}, v{vT+3}, 3, v{vT+2}\nv_add_u32 v{vT+2}, {BBASE}, v{vT+2}')
    if t.nG == 2: a.e(f'v_lshrrev_b32 v{vT+4}, 1, v{vT+4}')
    for i in range(t.nG):
        a.e(f's_add_u32 s{sT}, s{sW}, {i}\ns_and_b32 s{sT}, s{sT}, {t.nG-1}')
        a.e(f'v_xor_b32 v{vT+3}, s{sT}, v{vT+4}\nv_lshl_add_u32 v{vBR[i]}, v{vT+3}, 6, v{vT+2}')
        a.e(f's_mul_i32 s{sH[i]}, s{sROW}, 54\ns_add_u32 s{sH[i]}, s{sH[i]}, s{sG0}\ns_add_u32 s{sH[i]}, s{sH[i]}, s{sT}\ns_lshl_b32 s{sH[i]}, s{sH[i]}, 11')
    a.e(f's_lshl_b32 s{sFL}, s2, 2\ns_add_u32 s{sFL}, s{sFL}, s{sW}\ns_lshl_b32 s{sFL}, s{sFL}, 7\ns_add_u32 s{sFL}, s{sFL}, {F_OFF}')
    a.e(f'v_and_b32 v{vT}, 15, v{vL}\nv_bfe_u32 v{vT+1}, v{vL}, 4, 1\nv_mov_b32 v{vT+2}, s{sONES}\nv_cmp_eq_u32 vcc, v{vT}, v{vT+1}\nv_cndmask_b32 v{vT+2}, 0, v{vT+2}, vcc')
    for k in range(4): a.e(f'v_accvgpr_write_b32 a{192+k}, v{vT+2}')
    a.e(f'v_lshlrev_b32 v{vL16}, 4, v{vL}')
    a.e(f'v_lshlrev_b32 v{vHO}, 10, v{vT+1}\nv_lshrrev_b32 v{vT+1}, 5, v{vL}\nv_lshl_add_u32 v{vHO}, v{vT+1}, 8, v{vHO}\nv_lshl_add_u32 v{vHO}, v{vT}, 4, v{vHO}')

def gen_D(a, t, tmp):
    q = tmp
    a.e(f'v_and_b32 v{q}, 15, v{vL}\nv_lshrrev_b32 v{q+1}, 5, v{vL}\ns_mul_i32 s{sT}, s{sW}, 80\nv_lshl_add_u32 v{q+1}, v{q+1}, 3, s{sT}\nv_cvt_f32_u32 v{q+1}, v{q+1}')
    a.e(f'v_bfe_u32 v{q+2}, v{vL}, 4, 1\nv_cvt_f32_u32 v{q+2}, v{q+2}\nv_mul_f32 v{q+2}, {fhex(-0.25)}, v{q+2}')
    a.e(f's_mul_i32 s{sT+1}, s{sW}, {5*1024*t.nD}\ns_add_u32 s{sT+1}, s{sT+1}, {t.DREG}\nv_add_u32 v{q+3}, s{sT+1}, v{vL16}')
    for d in range(t.nD):
        a.e(f's_lshl_b32 s{sT}, s{sDT}, 4\ns_add_u32 s{sT}, s{sT}, {16*d+1}')
        a.e(f'v_add_u32 v{q+4}, s{sT}, v{q}\nv_cvt_f32_u32 v{q+4}, v{q+4}\nv_mul_f32 v{q+4}, {fhex(1/640)}, v{q+4}\nv_fma_f32 v{q+5}, v{q+1}, v{q+4}, v{q+2}')
        for k5 in range(5):
            o = q + 8 + 12*(k5 & 1)
            for i in range(8):
                dd = 16*k5 + i
                if dd == 0: a.e(f'v_cos_f32 v{o+i}, v{q+5}')
                else:
                    a.e(f'v_fmamk_f32 v{o+i}, v{q+4}, {fhex(float(dd))}, v{q+5}')
            for i in range(8):
                if 16*k5 + i: a.e(f'v_cos_f32 v{o+i}, v{o+i}')
            for ip in range(4): a.e(cvtpk(o+8+ip, o+2*ip, o+2*ip+1))
            a.lg(f'ds_write_b128 v{q+3}, v[{o+8}:{o+11}] offset:{(k5*t.nD+d)*1024}')

import math
def bf16(x):
    u = struct.unpack('<I', struct.pack('<f', x))[0]
    return ((u + 0x7fff + ((u >> 16) & 1)) >> 16) & 0xffff
def F_table():
    w = []
    for fn in (math.cos, math.sin):
        for f in range(2):
            for l in range(64):
                t1 = l & 31; hi = l >> 5
                v = [bf16(round(fn(2*math.pi*((t1*(16*f + 8*(i >> 2) + 4*hi + (i & 3))) % 32)/32), 12)) for i in range(8)]
                w += [v[2*k] | (v[2*k+1] << 16) for k in range(4)]
    return w
def load_F():
    return [f'global_load_dwordx4 {aF(k)}, v{vL16}, s[82:83] offset:{1024*k}' for k in range(4)]

def rot_ids(a):
    for j in range(4):
        a.e(f's_add_u32 s{sT}, s{sW}, {1+j}\ns_and_b32 s{sT+1}, s{sT}, 1\ns_bfe_u32 s{sT}, s{sT}, 0x10001')
        a.e(f's_lshl_b32 s{sT}, s{sT}, 5\ns_add_u32 s{sT}, s{sT}, s{sT1}\ns_lshl_b32 s{sT+1}, s{sT+1}, 10\ns_add_u32 s{sHB[j]}, s{sT}, s{sT+1}')
def gen_TW(a, t):
    a.e(f'v_and_b32 v{t}, 15, v{vL}\nv_lshrrev_b32 v{t+1}, 4, v{vL}\ns_lshl_b32 s{sT}, s{sW}, 2\nv_add_u32 v{t+1}, s{sT}, v{t+1}')
    a.e(f'v_sub_u32 v{t+2}, 32, v{t+1}\nv_cmp_eq_u32 vcc, 0, v{t+1}\nv_cndmask_b32 v{t+2}, v{t+2}, 16, vcc')
    a.e(f's_mov_b32 s{sT+1}, 0x3a000000')
    a.e(f's_cmp_ge_u32 s{sC}, 4\ns_cselect_b32 s{sT+1}, s{sT+1}, 0xba000000')
    a.e(f'v_cvt_f32_u32 v{t+1}, v{t+1}\nv_cvt_f32_u32 v{t+2}, v{t+2}\nv_add_f32 v{t+3}, {fhex(32.0)}, v{t+1}\nv_add_f32 v{t+4}, {fhex(32.0)}, v{t+2}')
    s2r = [t+1, t+3, t+2, t+4]
    a.e(f'v_lshlrev_b32 v{t}, 6, v{t}')
    for j in range(4):
        a.e(f'v_add_u32 v{t+5}, s{sHB[j]}, v{t}\nv_cvt_f32_u32 v{t+5}, v{t+5}\nv_mul_f32 v{t+5}, s{sT+1}, v{t+5}')
        for w in range(4): a.e(f'v_mul_f32 v{t+6+w}, v{t+5}, v{s2r[w]}')
        for w in range(4): a.e(f'v_cos_f32 v{t+10+w}, v{t+6+w}\nv_sin_f32 v{t+6+w}, v{t+6+w}')
        for w in range(4): a.e(cvtpk(t+6+w, t+10+w, t+6+w))
        for w in range(4): a.e(f'v_accvgpr_write_b32 a{aTW+4*j+w}, v{t+6+w}')

def check_loop(a, load_text, vval, nl, cnt):
    ok, lp = label('ok'), label('lp')
    if nl < 64: a.e(f's_mov_b32 exec_lo, {hex(((1<<nl)-1)&0xffffffff)}\ns_mov_b32 exec_hi, {hex(((1<<nl)-1)>>32)}')
    a.e(f'v_cmp_ne_u32 vcc, s{sTAG}, v{vval}\ns_mov_b32 s{cnt}, 0\ns_cbranch_vccz {ok}')
    a.e(f'{lp}:\ns_sleep 1')
    a.e(load_text); a.vm_issued -= 1
    a.e(f's_waitcnt vmcnt(0)\nv_cmp_ne_u32 vcc, s{sTAG}, v{vval}\ns_add_u32 s{cnt}, s{cnt}, 1\ns_cmp_gt_u32 s{cnt}, 20000\ns_cbranch_scc1 {ok}\ns_cbranch_vccnz {lp}')
    a.e(f'{ok}:')
    if nl < 64: a.e('s_mov_b64 exec, -1')

def nonce_check(a, tok):
    ok, lp = label('nok'), label('nlp')
    a.wait(vm=tok)
    a.e(f'v_readfirstlane_b32 s{sTAG}, v{vNON}\ns_mov_b32 s{sPC}, 0\ns_cmp_lg_u32 s{sTAG}, 0\ns_cbranch_scc1 {ok}')
    a.e(f'{lp}:\nv_mov_b32 v{vNON}, 0')
    a.e(f'global_load_dword v{vNON}, v{vNON}, s[{sDBG}:{sDBG+1}] sc1'); a.vm_issued -= 1
    a.e(f's_waitcnt vmcnt(0)\nv_readfirstlane_b32 s{sTAG}, v{vNON}\ns_add_u32 s{sPC}, s{sPC}, 1\ns_cmp_gt_u32 s{sPC}, 20000\ns_cbranch_scc1 {ok}')
    a.e(f's_cmp_eq_u32 s{sTAG}, 0\ns_cbranch_scc1 {lp}\n{ok}:')

def set_flag(a, word, vt):
    a.e(f'v_mov_b32 v{vt}, {4*word}\nv_mov_b32 v{vt+1}, s{sTAG}\ns_mov_b64 exec, 1')
    a.vm(f'buffer_store_dword v{vt+1}, v{vt}, {srd(SWS)}, s{sFL} offen sc1')
    a.e('s_mov_b64 exec, -1')

def w2_load_ops(slot, st, cts=range(5)):
    ops = []
    for ct in cts:
        def op(a, ct=ct):
            vo = st['vL16d'] if slot == 13 else st.get('vW', vL16)
            if slot == 5 and ct == 4:
                so = sW4
            else:
                if ct == 0 and slot > 0:
                    assert st['w2slot'] == slot - 1
                    if slot < 13: a.e(f's_add_u32 s{sW2o}, s{sW2o}, 1024\ns_cmp_eq_u32 s{sW2o}, s{sWE}\ns_cselect_b32 s{sW2o}, s{sUS}, s{sW2o}')
                    else: a.e(f's_mov_b32 s{sW2o}, s{sWE}')
                if ct == 4: a.e(f's_add_u32 s{sW2o}, s{sW2o}, 4096')
                st['w2slot'] = slot
                so = sW2o
            st['w2'][(slot, ct)] = a.vm(f'buffer_load_dwordx4 {W2(slot,ct)}, v{vo}, {srd(SWS)}, s{so} offen offset:{(1024*ct)%4096} {opt("wsc", "sc1")}')
            if slot == 5 and ct == 3: a.e(f's_add_u32 s{sW2o}, s{sW2o}, 4096\ns_mov_b32 s{sW4}, s{sW2o}')
        ops.append(op)
    return ops

def pass1(a, t, st):
    nG = t.nG
    kps = 4 // nG
    nst = 40 // kps; spc = nst // 10
    def setinfo(step, i):
        return (step*kps + i // nG, i % nG)
    def rdW(step, i, h):
        ks, ti = setinfo(step, i); c, s = divmod(ks, 4)
        def op(a): st['w'][(step, i)] = a.lg(f'ds_read_b64_tr_b16 {WB(step&1,i,h)}, v{vBR[ti]} offset:{(c%4)*t.bslot + s*16*t.pitch + h*4*t.pitch}')
        return op
    def rdA(c, s):
        return f'ds_read_b128 {X(4*c+s)}, v{vAR[s]} offset:{ARING + (c%4)*16384}'
    st['w'] = {}
    a.wait(vm=st['dma'][0], lg=a.lg_issued)
    a.e('s_barrier')
    stamp(a, 2)
    for s in range(kps): a.e(rdA(0, s))
    for i in range(4): run(a, [rdW(0, i, 0), rdW(0, i, 1)])
    for s in range(kps, 4): a.e(rdA(0, s))
    S = Sched(); first = {}
    ecs = nst - (3 if nG == 4 else 1)
    for step in range(nst):
        c, sp = divmod(step, spc); buf = step & 1
        lastc = (sp == spc - 1)
        for i in range(4):
            ks, ti = setinfo(step, i)
            cz = '0' if ks == 0 else None
            pre = []
            if i == 0 and lastc and c < 9:
                pre.append(lambda a, c=c: (a.wait(vm=st['dma'][c+1]), a.e('s_barrier')))
            if i % 2 == 0:
                pre.append(lambda a, step=step, i=i: a.wait(lg=st['w'][(step, i+1)]))
            idx = S.add(f'v_mfma_f32_32x32x16_bf16 {ACC1(ti)}, {WB(buf,i)}, {X(ks)}, {cz or ACC1(ti)}', pre)
            if i == 0: first[step] = idx
            if ti == 0 and step < ecs: S.put(idx, [f'v_mfma_f32_16x16x32_bf16 {aCS}, {aSEL}, {WB(buf,i)}, {cz or aCS}'])
        if step + 1 < nst:
            rd = []
            if lastc: rd += [rdA(c+1, s) for s in range(kps)]
            k = len(rd)
            for i in range(4): rd += [rdW(step+1, i, 0), rdW(step+1, i, 1)]
            S.put(first[step], rd[:k+3]); S.put(first[step]+1, rd[k+3:7+(k>1)]); S.put(first[step]+2, rd[7+(k>1):])
            if nG == 4:
                if lastc: S.put(first[step]+3, [rdA(c+1, 1)])
                if sp == 0 and c > 0: S.put(first[step]+3, [rdA(c, 2), rdA(c, 3)])
            elif lastc: S.put(first[step]+3, [rdA(c+1, 2), rdA(c+1, 3)])
    kse = list(range(ecs*kps, 40))
    ex = []
    for n, ks in enumerate(kse):
        for h in range(2):
            ex.append(lambda a, n=n, ks=ks, h=h: st.__setitem__('ex', a.lg(f'ds_read_b64_tr_b16 v[{128+4*n+2*h}:{129+4*n+2*h}], v{vBR[0]} offset:{(9%4)*t.bslot + (ks-36)*16*t.pitch + h*4*t.pitch}')))
    b8 = 9*spc - 1
    mm = [lambda a: a.wait(lg=st['ex'])] + [f'v_mfma_f32_16x16x32_bf16 {aCS}, {aSEL}, v[{128+4*n}:{131+4*n}], {aCS}' for n in range(len(kse))]
    if nG == 4:
        S.put(first[b8]+3, ex[:3]); S.put(first[b8+1]+3, ex[3:]); S.put(first[b8+2], mm); st['cs_slot'] = first[b8+2] + 3; st['bar_slot'] = first[b8+3] + 2
    else:
        S.put(first[b8]+3, ex); S.put(first[b8+1]+2, mm); st['cs_slot'] = first[b8+2]; st['bar_slot'] = first[b8+2] + 2
    gaps = []
    for step in range(nst):
        if nG == 4: gaps += [(step, first[step]), (step, first[step]+2)] + ([(step, first[step]+3)] if step < opt('ncu', 6) else [])
        else: gaps += [(step, first[step]+k) for k in range(4)]
    gi = 0
    c0 = st['next_chunk']
    for c in range(c0, 10):
        ops = dma_ops(t, c, st)
        A = ops[1:5]; B = ops[6:-1]
        eA = (c-3)*spc if c >= 4 else 0
        eB = (c-2)*spc - 1 if c >= 4 else 0
        lo = max(0, (c - opt('la', 2) - 1)*spc + (1 if nG == 4 else 0)) if nG == 4 else 0
        for k, op in enumerate(A + B):
            e = max(eA if k < 4 else eB, lo)
            while gaps[gi][0] < e: gi += 1
            pre = [ops[0]] if k == 0 else ([ops[5]] if k == 4 else [])
            post = [ops[-1]] if k == 3 + len(B) else []
            g = gaps[gi][1]
            if pre: S.put(g - 1 if g > 0 else g, pre)
            if k == 0: st.setdefault('grp_start', {})[c] = (g - 1, pre[0])
            S.put(g, [op] + post); gi += 1
        assert gaps[gi-1][0] < c*spc - 1, (c, gaps[gi-1])
    return S, first, kps

def h_aug_x(tmp):
    p, q2 = tmp+4, tmp+5
    o = [cvtpk(p, vNM, vSDV), f'v_lshlrev_b32 v{tmp+6}, 16, v{p}', f'v_and_b32 v{tmp+7}, 0xffff0000, v{p}',
         f'v_sub_f32 v{tmp+6}, v{vNM}, v{tmp+6}', f'v_sub_f32 v{tmp+7}, v{vSDV}, v{tmp+7}', cvtpk(q2, tmp+6, tmp+7)]
    o += [f'v_mov_b32 v{tmp+k}, 0' for k in range(4)]
    o += [f's_mov_b32 s{sE+2}, 0x05040100\ns_mov_b32 exec_hi, 0\nv_perm_b32 v{tmp}, v{q2}, v{p}, s{sE+2}\nv_mov_b32 v{tmp+1}, v{p}\nv_lshrrev_b32 v{tmp+2}, 16, v{q2}\ns_mov_b32 exec_hi, -1']
    return o
def h_aug_w(st, i, tmp, vtb):
    b = tmp + 8 + 6*i
    rd = [lambda a: st['tb'].__setitem__(i, a.lg(f'ds_read2_b32 v[{b+4}:{b+5}], v{vtb} offset0:0 offset1:128'))]
    mk = [lambda a: a.wait(lg=st['tb'][i]), cvtpk(b, b+4, b+4), cvtpk(b+2, b+5, b+5), f'v_and_b32 v{b+1}, 0xffff0000, v{b}', f'v_mov_b32 v{b+3}, 0',
          f'v_sub_f32 v{b+1}, v{b+4}, v{b+1}', cvtpk(b+1, b+1, b+5)]
    mf = [f'v_mfma_f32_32x32x16_bf16 {ACC1(i)}, v[{b}:{b+3}], v[{tmp}:{tmp+3}], {ACC1(i)}']
    return rd, mk, mf
def h_fin(st, i, u):
    acc = 32 + 16*i + 8*u; o = []
    for k in range(8): o.append(f'v_max_f32 v{acc+k}, 0, v{acc+k}')
    for k in range(8): o.append(f'v_mul_f32 v{acc+k}, v{vR}, v{acc+k}')
    for k in range(8): o.append(f'v_mul_f32 v{acc+k}, v{acc+k}, v{acc+k}')
    for k in range(4): o.append(cvtpk(acc+k, acc+2*k, acc+2*k+1))
    if opt('nohst', 0): o.append(lambda a: st.__setitem__('hst', a.vm_issued))
    else: o.append(lambda a: st.__setitem__('hst', a.vm(f'buffer_store_dwordx4 v[{acc}:{acc+3}], v{vHO}, {srd(SWS)}, s{sH[i]} offen offset:{512*u} {opt("hsc", "sc1")}')))
    return o

class Rec:
    def __init__(self): self.ops = []; self.tok = {}
    def e(self, text):
        ls = L(text); i = 0
        while i < len(ls):
            j = i + 1
            if ls[i].startswith('s_cmp') or ls[i].startswith('s_bitcmp') or ls[i].startswith('v_cmp'):
                while j < len(ls) and not (ls[j].startswith('s_cselect') or ls[j].startswith('s_cbranch') or ls[j].startswith('v_cndmask')): j += 1
                while j < len(ls) and (ls[j].startswith('s_cselect') or ls[j].startswith('s_cbranch') or ls[j].startswith('v_cndmask')): j += 1
            self.ops.append('\n'.join(ls[i:j])); i = j
    def lg(self, text): self.ops.append(text)
    def vm(self, text, key='t'):
        self.ops.append(lambda a: self.tok.__setitem__(key, a.vm(text)))
def merge(main, other):
    out = []; n, m = len(main), len(other); k = 0
    for i, op in enumerate(main):
        out.append(op)
        while k < m and (k + 1) * n <= (i + 1) * m + m - 1 and k * n <= i * m: out.append(other[k]); k += 1
    return out + other[k:]

def touch_ops(t, lo, hi, q=188):
    n = hi - lo
    o = [f'v_mov_b32 v{q+2}, {OOB}']
    o += L(f'v_and_b32 v{q}, 3, v{vL}\ns_lshl_b32 s{sPC}, s{sC8}, 2\nv_add_u32 v{q}, s{sPC}, v{q}\nv_mul_u32_u24 v{q}, 640, v{q}\nv_lshrrev_b32 v{q+1}, 2, v{vL}\nv_add3_u32 v{q}, v{q}, v{q+1}, {lo}\nv_lshlrev_b32 v{q}, 7, v{q}')
    o += [f'v_cmp_gt_u32 vcc, {4*n}, v{vL}\nv_cndmask_b32 v{q}, v{q+2}, v{q}, vcc', f's_mul_i32 s{sPC}, s{sROW}, 1280']
    o += [f'buffer_load_dword v{vPF}, v{q}, {srd(SX)}, s{sPC} offen {opt("ntx", "")}']
    if t.nG == 4: o += L(f'v_lshrrev_b32 v{q}, 1, v{vL}\nv_and_b32 v{q+1}, 1, v{vL}')
    else: o += L(f'v_mov_b32 v{q}, v{vL}\nv_mov_b32 v{q+1}, 0')
    o += L(f'v_lshlrev_b32 v{q}, 4, v{q}\ns_and_b32 s{sPC}, s{sRB}, 3\ns_lshl_b32 s{sPC}, s{sPC}, 2\ns_add_u32 s{sPC}, s{sPC}, s{sW}\ns_add_u32 s{sPC}, s{sPC}, {64*lo}')
    o += L(f'v_add_u32 v{q}, s{sPC}, v{q}\nv_mul_u32_u24 v{q}, 0xd80, v{q}\nv_lshl_add_u32 v{q}, v{q+1}, 7, v{q}\ns_lshl_b32 s{sPC}, s{sG0}, 6')
    o += [f'v_cmp_gt_u32 vcc, {(8 if t.nG == 4 else 4)*n}, v{vL}\nv_cndmask_b32 v{q}, v{q+2}, v{q}, vcc']
    o += [f'buffer_load_dword v{vPF}, v{q}, {srd(SW1)}, s{sPC} offen {opt("ntw", "")}']
    assert n <= 8
    return o

def build_type(a, t):
    st = {'dma': {}, 'w2': {}, 'tb': {}}
    nG, nD = t.nG, t.nD
    prologue_t(a, t, st)
    ta, tb = opt('ta', 1), opt('tb', 6)
    if nG == 4:
        run(a, dma_ops(t, 0, st))
        d1 = dma_ops(t, 1, st)
        if tb > ta: run(a, touch_ops(t, ta, tb))
    stamp(a, 'p2')
    nonce_pub(a)
    stamp(a, 'p3')
    r = Rec()
    setup2(r, t); gen_D(r, t, 96); rot_ids(r)
    if nG == 4 and opt('twR', 1): gen_TW(r, 96)
    main = r.ops
    vSA, vFA, vFV = vT+3, vT+4, vT+5
    st['vL16d'] = 192
    pre = L(f's_lshl_b32 s{sT}, s{sRB}, 2\ns_add_u32 s{sT}, s{sT}, s{sW}\ns_lshl_b32 s{sT}, s{sT}, 9\ns_add_u32 s{sT}, s{sT}, {ST_OFF}')
    pre += L(f'v_and_b32 v{vSA}, 31, v{vL}\nv_lshl_add_u32 v{vSA}, v{vSA}, 4, s{sT}')
    pre += L(f'v_add_u32 v{vFA}, s{sTAU}, v{vL}\nv_min_u32 v{vFA}, 53, v{vFA}')
    pre += L(f's_lshl_b32 s{sT}, s{sC}, 7\ns_add_u32 s{sT}, s{sT}, {PF_OFF}\nv_lshlrev_b32 v{vFA}, 10, v{vFA}\nv_add_u32 v{vFA}, s{sT}, v{vFA}')
    pre += L(f's_mul_i32 s{sUS}, s{sC}, 54\ns_add_u32 s{sUS}, s{sUS}, s{sTAU}\ns_mul_i32 s{sUS}, s{sUS}, 5120\ns_add_u32 s{sUS}, s{sUS}, {P_OFF}')
    pre += [f's_cmp_ge_u32 s{sW}, 2\ns_cselect_b32 s{sT}, {OOB}, 0', f'v_add_u32 v192, s{sT}, v{vL16}']
    nonl = [f'v_mov_b32 v{vNON}, 0', lambda a: st.__setitem__('non', a.vm(f'global_load_dword v{vNON}, v{vNON}, s[{sDBG}:{sDBG+1}] sc1'))]
    st['next_chunk'] = 2
    main = main + pre
    if nG == 4:
        c3 = len(main) * opt('c3', 80) // 100
        run(a, main[:c3]); stamp(a, 'p4')
        run(a, merge(main[c3:], d1) + nonl)
    else:
        n = len(main); c1 = n * opt('s1', 45) // 100; c2 = n * opt('s2', 70) // 100
        run(a, dma_ops(t, 0, st))
        run(a, main[:c1])
        run(a, merge(main[c1:c2], pack_dma(1, st) + [lambda a: run(a, touch_ops(t, 2, 10))]) + nonl)
        stamp(a, 'p4')
        run(a, pack_reads(0, st))
        d1 = dma_ops(t, 1, st); p0 = pack_stores(0, st)
        run(a, merge(main[c2:], merge(d1, p0)))
        stamp(a, 'p5')
        run(a, pack_reads(1, st))
        run(a, merge(stats_loads(0, st) + stats_loads(1, st), pack_stores(1, st)))
        stamp(a, 'p6')
    stamp(a, 1)
    S, firstS, kps = pass1(a, t, st)
    class FK:
        def __getitem__(self, ks): return firstS[ks // kps] + (ks % kps) * nG
    first = FK()
    l = lambda ks: first[ks] + nG - 1
    b1tab = L(f'v_lshlrev_b32 v{vT}, 16, v{vT+7}\nv_and_b32 v{vT+1}, 0xffff0000, v{vT+7}\nv_lshlrev_b32 v{vT+2}, 3, v{vL}\nv_add_u32 v{vT+2}, {TABB}, v{vT+2}\nds_write_b64 v{vT+2}, v[{vT}:{vT+1}]')
    S.spread(b1tab, first[3], l(3));
    if nG == 4: S.put(l(opt('kn', 11)), [lambda a: nonce_check(a, st['non'])])
    if opt('kb', 3) >= 0 and tb < 10 and nG == 4: S.spread(touch_ops(t, tb, 10, 184), l(opt('kb', 3)), l(opt('kb', 3) + 3))
    if nG == 2:
        sp0, sp1 = stats_proc(0, st), stats_proc(1, st)
        S.put(l(1), [lambda a: nonce_check(a, st['non'])])
        S.spread(sp0[:-1], first[4], l(6)); S.spread(sp1[:-1], first[7], l(9))
        S.put(l(opt('kf', 9)), [sp0[-1], sp1[-1], pack_flag(0, st), pack_flag(1, st)])
    pfl = f'buffer_load_dword v{vFV}, v{vFA}, {srd(SWS)}, 0 offen sc1'
    stl = f'buffer_load_dwordx4 v[{vST}:{vST+3}], v{vSA}, {srd(SWS)}, 0 offen sc1'
    S.spread(load_F(), l(13), l(16))
    if nG == 2:
        r2 = Rec(); gen_TW(r2, 76); S.spread(r2.ops, first[12], l(30))
    kp = opt('kp', 29); kq = opt('kq', 32)
    S.spread(L(f's_bfe_u32 s{sRHO}, s2, 0x30003\ns_mul_i32 s{sRHO}, s{sRHO}, {opt("rho", 0)}\ns_lshr_b32 s{sRHO}, s{sRHO}, 3\ns_mul_i32 s{sW2o}, s{sRHO}, 5120\ns_add_u32 s{sW2o}, s{sW2o}, s{sUS}\ns_add_u32 s{sWE}, s{sUS}, {13*5120}'), l(kp-3), l(kp-1))
    early = opt('early', 1)
    S.put(l(kp), [lambda a: st.__setitem__('stl', a.vm(stl))])
    S.put(l(kp if early else 38), [lambda a: st.__setitem__('pfl', a.vm(pfl))])
    pchk = lambda a: (a.wait(vm=st['pfl']), check_loop(a, pfl, vFV, 14, sPC), stamp(a, 'pc'))
    S.put(l(kq), [pchk if early else (lambda a: a.wait(vm=st['stl']))])
    allw = []
    for s_ in range(14): allw += w2_load_ops(s_, st, range(5) if s_ != 5 else range(4))
    allw.insert(29 + 15, w2_load_ops(5, st, [4])[0])
    if opt('touchw', 0):
        tw = L(f's_bfe_u32 s{sT}, s2, 0x30003\nv_lshl_add_u32 v{vFA}, v{vL}, 3, s{sT}\nv_lshlrev_b32 v{vFA}, 7, v{vFA}')
        tw += [f'buffer_load_dword v{vPF}, v{vFA}, {srd(SWS)}, s{sUS} offen sc1']
        S.put(l(kq), tw)
    n0 = 0
    for ks in range(kq + 1, 40 if early else 0):
        S.put(first[ks], [allw[n0]]); n0 += 1
        if opt('ne', 2) == 2: S.put(first[ks] + nG // 2, [allw[n0]]); n0 += 1
    tmp = 160 if nG == 4 else 64
    vTB = [140, 141, 142, 143]
    e1 = [lambda a: check_loop(a, stl, vST+3, 64, sPC)]
    e1 += L(f's_lshl_b32 s{sE+1}, s{sW}, 7\ns_add_u32 s{sE+1}, s{sE+1}, {TABR}\nv_and_b32 v{vT+1}, 31, v{vL}\nv_lshl_add_u32 v{vT}, v{vT+1}, 2, s{sE+1}')
    e1 += [f'ds_write_b32 v{vT}, v{vR}', f'v_lshrrev_b32 v{vT+6}, 5, v{vL}']
    for i in range(nG):
        e1 += [f's_add_u32 s{sE}, s{sW}, {i}\ns_and_b32 s{sE}, s{sE}, {nG-1}\ns_lshl_b32 s{sE}, s{sE}, 7\ns_add_u32 s{sE}, s{sE}, {TABC}', f'v_lshl_add_u32 v{vTB[i]}, v{vT+1}, 2, s{sE}']
    e1 += h_aug_x(tmp)
    S.spread(e1, first[kq+1], l(36))
    e2 = L(f'v_accvgpr_read_b32 v{vT}, a196\nv_accvgpr_read_b32 v{vT+1}, a197')
    e2 += [f's_mov_b64 exec, 0xffff\nds_write2_b32 v{vTB[0]}, v{vT}, v{vT+1} offset0:0 offset1:16\ns_mov_b64 exec, -1', lambda a: st.__setitem__('csw', a.lg_issued)]
    S.put(st['cs_slot'], e2)
    S.slots[st['bar_slot']]['pre'].append(lambda a: (a.wait(lg=st['csw']), a.e('s_barrier')))
    aw = [h_aug_w(st, i, tmp, vTB[i]) for i in range(nG)]
    S.put(st['bar_slot'], [x for i in range(nG) for x in aw[i][0]])
    S.spread([x for i in range(nG) for x in aw[i][1]], min(st['bar_slot'] + 2, l(39)), l(39))
    for ks in range(40): S.slots[first[ks]]['pre'].insert(0, lambda a, ks=ks: stamp(a, f'k{ks}'))
    S.emit(a)
    for i in range(nG): run(a, aw[i][2])
    stamp(a, 3)
    vD = vAR[0]
    P2 = lambda d, h: f'v[{128+32*d+16*h}:{143+32*d+16*h}]'
    NB = 4
    DB = lambda ks, d: f'v[{96+4*((ks*nD+d)%NB)}:{99+4*((ks*nD+d)%NB)}]'
    a.e(f'v_add_u32 v{vD}, {t.DREG}, v{vL16}')
    dt = {}
    def rdD(ks, d):
        def op(a): dt[(ks, d)] = a.lg(f'ds_read_b128 {DB(ks,d)}, v{vD} offset:{(ks*nD+d)*1024}')
        return op
    ahead = 2 if nD == 1 else 1
    for ks in range(ahead):
        for d in range(nD): rdD(ks, d)(a)
    S = Sched(); f2 = {}
    for ks in range(20):
        for d in range(nD):
            for h in range(2):
                pre = [lambda a, ks=ks, d=d: a.wait(lg=dt[(ks, d)])] if h == 0 else []
                idx = S.add(f'v_mfma_f32_32x32x16_bf16 {P2(d,h)}, {X(ks+20*h)}, {DB(ks,d)}, {"0" if ks == 0 else P2(d,h)}', pre)
                if d == 0 and h == 0: f2[ks] = idx
                if h == 0 and ks + ahead < 20: S.put(idx, [rdD(ks+ahead, d)])
    nm = len(S.slots)
    ops = []
    for i in range(nG): ops += [lambda a, i=i: stamp(a, f'f{i}')] + h_fin(st, i, 0) + h_fin(st, i, 1)
    per = opt('per', 14 if nG == 4 else 10)
    lasti = S.pack(ops, 0, per)
    if not early: S.put(min(lasti + 1, nm - 1) if opt('pcl', 1) else 0, [pchk])
    na = n0 + (opt('na', 3) if early or not opt('pcl', 1) else 0); n1 = (na + opt('nb', 9)) if nG == 4 else opt('n1S', 40); nh = na + opt('nh', 8) if nG == 2 else -1
    if na > n0: S.spread(allw[n0:na], 1, lasti)
    def hflag(a):
        a.wait(vm=st['hst']); set_flag(a, 0, 193); stamp(a, 'hf')
    for n in range(na, n1):
        want = lasti + 1 + (n - na) * (nm - 1 - lasti) // max(1, n1 - na)
        if n >= 29: want = max(want, f2[5*((n-29)//5) + 4] + 2*nD)
        if n == nh: S.put(min(want, nm - 1), [hflag])
        S.put(min(want, nm - 1), [allw[n]])
    S.emit(a)
    stamp(a, 4)
    npre2 = opt('npre2', 45 if nG == 4 else 50)
    later = allw[n1:npre2]; st['inp2'] = allw[npre2:]
    rr = 96
    a.e(f'v_lshl_add_u32 v{vT}, v{vT+6}, 4, s{sE+1}')
    for jq in range(4): rt_ = a.lg(f'ds_read_b128 v[{rr+4*jq}:{rr+4*jq+3}], v{vT} offset:{32*jq}')
    a.e(f'v_and_b32 v{vT+1}, 1, v{vL}\nv_cmp_eq_u32 vcc, 0, v{vT+1}\nv_cndmask_b32 v{vT+1}, 1.0, -1.0, vcc')
    vXW, vXR_, vUS = vT+2, vT+3, vT+4
    a.e(f'v_and_b32 v{vT+5}, 31, v{vL}\nv_lshlrev_b32 v{vT+5}, 2, v{vT+5}\nv_lshl_add_u32 v{vXW}, v{vT+6}, 8, v{vT+5}\ns_lshl_b32 s{sE}, s{sW}, 11\nv_add_u32 v{vXW}, s{sE}, v{vXW}')
    a.e(f's_lshl_b32 s{sE}, s{sW}, 9\nv_lshl_add_u32 v{vXR_}, v{vL}, 2, s{sE}')
    a.e(f'v_lshrrev_b32 v{vT+5}, 4, v{vL}\ns_mov_b32 s{sE}, 81920\nv_mul_lo_u32 v{vT+5}, s{sE}, v{vT+5}\nv_and_b32 v{vUS}, 15, v{vL}\nv_lshl_add_u32 v{vUS}, v{vUS}, 4, v{vT+5}')
    DR = [(160, 176)] if nG == 4 else [(64, 80), (112, 144)]
    li = [0]
    def drip(a, n=1):
        for _ in range(n if (nG == 2 or st.get('hfdone')) else 0):
            if li[0] < len(later): later[li[0]](a); li[0] += 1
    for d in range(nD):
        lo, hi = 128 + 32*d, 144 + 32*d
        for j in range(16):
            a.e(f'v_fma_f32 v{lo+j}, v{vT+1}, v{hi+j}, v{lo+j}')
            if j % 4 == 3: drip(a)
        if d == 0: a.wait(lg=rt_)
        for j in range(16):
            a.e(f'v_mul_f32 v{lo+j}, v{rr+j}, v{lo+j}')
            if j % 4 == 3: drip(a)
        for j in range(8): a.e(cvtpk(lo+j, lo+2*j, lo+2*j+1))
        D1, D2 = DR[d]
        if d == 0: stamp(a, 'u0')
        a.e(f'v_mfma_f32_32x32x16_bf16 v[{D1}:{D1+15}], {aF(0)}, v[{lo}:{lo+3}], 0')
        a.e(f'v_mfma_f32_32x32x16_bf16 v[{D2}:{D2+15}], {aF(2)}, v[{lo}:{lo+3}], 0')
        a.e(f'v_mfma_f32_32x32x16_bf16 v[{D1}:{D1+15}], {aF(1)}, v[{lo+4}:{lo+7}], v[{D1}:{D1+15}]')
        a.e(f'v_mfma_f32_32x32x16_bf16 v[{D2}:{D2+15}], {aF(3)}, v[{lo+4}:{lo+7}], v[{D2}:{D2+15}]')
        drip(a, 3)
    for d in range(nD):
        D1, D2 = DR[d]
        for j in range(0, 16, 2):
            a.e(f'v_permlane16_swap_b32 v{D1+j}, v{D1+j+1}\nv_permlane16_swap_b32 v{D2+j}, v{D2+j+1}')
        for j in range(0, 16, 2):
            a.e(f'v_sub_f32 v{D1+j}, v{D1+j}, v{D2+j+1}\nv_add_f32 v{D2+j}, v{D2+j}, v{D1+j+1}')
            a.e(cvtpk(D1+j, D1+j, D2+j))
            a.lg(f'ds_write_b32 v{vXW}, v{D1+j} offset:{XCH + d*8192 + (8*(j>>2)+(j&3))*64}')
            drip(a)
    stamp(a, 'u1')
    if nG == 4: hflag(a); st['hfdone'] = True; drip(a, 2)
    a.wait(lg=a.lg_issued); a.e('s_barrier')
    stamp(a, 'u2')
    toks = []
    drip(a, 2)
    for d in range(nD):
        for i in range(2):
            b = 128 + 8*d + 4*i
            a.lg(f'ds_read2st64_b32 v[{b}:{b+1}], v{vXR_} offset0:{32*d+i} offset1:{32*d+8+i}')
            toks.append(a.lg(f'ds_read2st64_b32 v[{b+2}:{b+3}], v{vXR_} offset0:{32*d+16+i} offset1:{32*d+24+i}'))
    a.e(f's_lshl_b32 s{sE}, s{sW}, 7\ns_add_u32 s{sE}, s{sE}, s{sRB}\ns_mul_i32 s{sE}, s{sE}, 5120\ns_lshl_b32 s{sE+1}, s{sDT}, 8\ns_add_u32 s{sE}, s{sE}, s{sE+1}\ns_add_u32 s{sE}, s{sE}, {U_OFF}')
    a.e(f's_add_u32 s{sE+1}, s{sE}, {4*81920}')
    for d in range(nD):
        if d == 1:
            a.e(f's_cmp_ge_u32 s{sDT}, 19\ns_cselect_b32 s{sE+2}, {OOB}, 0\nv_add_u32 v{vUS}, s{sE+2}, v{vUS}')
        for i in range(2):
            b = 128 + 8*d + 4*i
            a.wait(lg=toks[2*d+i])
            ust = a.vm(f'buffer_store_dwordx4 v[{b}:{b+3}], v{vUS}, {srd(SWS)}, s{sE+i} offen offset:{256*d} sc1')
    stamp(a, 'u3')
    stamp(a, 5)
    phase2(a, st, ust, later[li[0]:], nG == 4 and not opt('twR', 1))

RED = 65536
def phase2(a, st, ust, later, doTW):
    t = 2
    q = 144
    r = Rec()
    if doTW: gen_TW(r, q)
    r.e(f's_mul_i32 s{sGO}, s{sHB[3]}, 1280')
    vHJ = [184, 185, 186, 187]; vHD = [188, 189, 190, 191]
    for j in range(4):
        r.e(f's_and_b32 s{sT}, s{sHB[j]}, 1024\ns_and_b32 s{sHB[j]}, s{sHB[j]}, 63\ns_mul_i32 s{sHB[j]}, s{sHB[j]}, 54\ns_add_u32 s{sHB[j]}, s{sHB[j]}, s{sTAU}\ns_lshl_b32 s{sHB[j]}, s{sHB[j]}, 11\ns_add_u32 s{sHB[j]}, s{sHB[j]}, s{sT}')
        r.e(f'v_add_u32 v{vHJ[j]}, s{sHB[j]}, v{vL16}\nv_add_u32 v{vHD[j]}, s{sHB[j]}, v192')
    r.e(f's_lshl_b32 s{sKO[0]}, s{sRHO}, 11\ns_movk_i32 s{sKO[13]}, {13*2048}')
    for k in range(1, 13):
        r.e(f's_add_u32 s{sKO[k]}, s{sKO[k-1]}, 2048\ns_cmp_eq_u32 s{sKO[k]}, s{sKO[13]}\ns_cselect_b32 s{sKO[k]}, 0, s{sKO[k]}')
    vG4, vG2, vB4 = t+8, t+9, t+10
    r.e(f's_mul_i32 s{sCW}, s{sC}, 160\ns_add_u32 s{sGO}, s{sGO}, s{sCW}\ns_mov_b32 s{sT}, 81920')
    r.e(f'v_and_b32 v{q}, 15, v{vL}\nv_mul_lo_u32 v{q}, s{sT}, v{q}\nv_lshrrev_b32 v{q+1}, 4, v{vL}\nv_lshl_add_u32 v{vG4}, v{q+1}, 4, v{q}\nv_lshl_add_u32 v{vG2}, v{q+1}, 3, v{q}')
    r.e(f'v_lshl_add_u32 v{vB4}, v{q+1}, 4, s{sCW}\nv_lshl_add_u32 v{q+2}, v{q+1}, 3, s{sCW}')
    xr = 160; br = 172
    r.ops += [f'buffer_load_dwordx4 v[{xr}:{xr+3}], v{vG4}, {srd(SX)}, s{sGO} offen', f'buffer_load_dwordx4 v[{xr+4}:{xr+7}], v{vG4}, {srd(SX)}, s{sGO} offen offset:64',
              f'buffer_load_dwordx2 v[{xr+8}:{xr+9}], v{vG2}, {srd(SX)}, s{sGO} offen offset:128',
              f'global_load_dwordx4 v[{br}:{br+3}], v{vB4}, s[{sB2}:{sB2+1}]', f'global_load_dwordx4 v[{br+4}:{br+7}], v{vB4}, s[{sB2}:{sB2+1}] offset:64']
    r.vm(f'global_load_dwordx2 v[{br+8}:{br+9}], v{q+2}, s[{sB2}:{sB2+1}] offset:128', 'xb')
    r.e(f's_sub_u32 s{sT}, 32, s{sT1}\ns_min_u32 s{sT}, s{sT}, s{sT1}\ns_and_b32 s{sT}, s{sT}, 15')
    r.e(f's_lshr_b32 s{sT+1}, s{sT}, 2\ns_lshl_b32 s{sT+1}, s{sT+1}, 1\ns_and_b32 s{sT+2}, s{sT}, 3\ns_lshl_b32 s{sT+2}, s{sT+2}, 3\ns_add_u32 s{sT+1}, s{sT+1}, s{sT+2}')
    r.e(f's_lshr_b32 s{sT+2}, s{sW}, 1\ns_add_u32 s{sT+1}, s{sT+1}, s{sT+2}')
    r.e(f's_and_b32 s{sT+2}, s{sW}, 1\ns_mul_i32 s{sT+2}, s{sT+2}, 96\ns_add_u32 s{sT+1}, s{sT+1}, s{sT+2}')
    r.e(f's_lshl_b32 s{sT+1}, s{sT+1}, 2\ns_lshr_b32 s{sT+2}, s{sT1}, 4\ns_lshl_b32 s{sT+2}, s{sT+2}, 1\ns_add_u32 s{sT+1}, s{sT+1}, s{sT+2}')
    vF1, vF2, vFV = t, t+1, t+2
    r.e(f'v_lshrrev_b32 v{q}, 1, v{vL}\nv_lshlrev_b32 v{q}, 7, v{q}\nv_and_b32 v{q+1}, 1, v{vL}\nv_add3_u32 v{q}, v{q}, v{q+1}, s{sT+1}')
    r.e(f'v_lshlrev_b32 v{vF1}, 7, v{q}\nv_add_u32 v{vF1}, {F_OFF}, v{vF1}')
    r.e(f's_sub_u32 s{sTS1}, 32, s{sT1}\ns_and_b32 s{sTS1}, s{sTS1}, 31\ns_cmp_ge_u32 s{sC}, 4\ns_cselect_b32 s{sTS1}, s{sTS1}, s{sT1}')
    r.e(f's_mul_i32 s{sT}, s{sC}, 5\ns_sub_u32 s{sT+1}, 35, s{sT}\ns_sub_u32 s{sT}, s{sT}, 1\ns_max_i32 s{sT}, s{sT}, 0')
    r.e(f's_cmp_ge_u32 s{sC}, 4\ns_cselect_b32 s{sT}, s{sT+1}, s{sT}')
    r.e(f'v_and_b32 v{q}, 7, v{vL}\nv_min_u32 v{q}, 5, v{q}\nv_add_u32 v{q}, s{sT}, v{q}\nv_min_u32 v{q}, 19, v{q}')
    r.e(f'v_cmp_le_u32 vcc, 10, v{q}\nv_cndmask_b32 v{q+2}, 0, 1, vcc')
    r.e(f'v_mul_u32_u24 v{q+3}, 10, v{q+2}\nv_sub_u32 v{q}, v{q}, v{q+3}\nv_sub_u32 v{q+3}, 6, v{q+2}\nv_add_u32 v{q+1}, v{q}, v{q+3}\nv_lshrrev_b32 v{q+1}, 1, v{q+1}\nv_min_u32 v{q}, v{q}, v{q+1}')
    r.e(f'v_lshl_add_u32 v{q}, v{q}, 5, v{q+2}\nv_and_b32 v{q+1}, 24, v{vL}\nv_add_u32 v{q}, v{q}, v{q+1}')
    r.e(f's_lshl_b32 s{sT}, s{sW}, 3\ns_lshr_b32 s{sT+2}, s{sTS1}, 3\ns_add_u32 s{sT}, s{sT}, s{sT+2}\nv_lshl_add_u32 v{q}, v{q}, 2, s{sT}')
    r.e(f'v_lshlrev_b32 v{vF2}, 7, v{q}\nv_add_u32 v{vF2}, {F_OFF+4}, v{vF2}\nv_lshrrev_b32 v{q+1}, 4, v{vL}')
    vUO = [t+3+k for k in range(5)]
    r.e(f'v_and_b32 v{q}, 15, v{vL}\ns_mul_i32 s{sT}, s{sC}, 80\nv_and_b32 v{q+4}, 12, v{vL}\nv_add3_u32 v{q+4}, v{q+4}, v{q}, s{sT}\nv_add_u32 v{q}, s{sT}, v{q}')
    r.e(f's_movk_i32 s{sT+1}, 5120\nv_mul_u32_u24 v{q+1}, s{sT+1}, v{q+1}')
    r.e(f's_cmp_ge_u32 s{sC}, 4\ns_cselect_b32 s{sT}, -1, 0\ns_cselect_b32 s{sT+1}, 640, -1')
    for ct in range(5):
        if ct < 4: r.e(f'v_add_u32 v{q+2}, {32*(ct>>1)+4*(ct&1)}, v{q+4}')
        else: r.e(f'v_add_u32 v{q+2}, 64, v{q}')
        r.e(f'v_xor_b32 v{q+2}, s{sT}, v{q+2}\nv_add_u32 v{q+2}, s{sT+1}, v{q+2}\nv_lshl_add_u32 v{vUO[ct]}, v{q+2}, 4, v{q+1}')
        if ct == 0: r.e(f'v_mov_b32 v{q+3}, {OOB}\nv_cmp_gt_i32 vcc, 0, v{q+2}\nv_cndmask_b32 v{vUO[0]}, v{vUO[0]}, v{q+3}, vcc')
    r.e(f's_lshl_b32 s{sUo}, s{sTS1}, 4\ns_lshl_b32 s{sT}, s{sW}, 2\ns_add_u32 s{sUo}, s{sUo}, s{sT}\ns_mul_i32 s{sUo}, s{sUo}, 5120\ns_add_u32 s{sUo}, s{sUo}, {U_OFF}')
    vPW = [t+11, t+12, t+13]; vPR = 0
    for j in range(3):
        r.e(f's_add_u32 s{sT}, s{sW}, {1+j}\ns_and_b32 s{sT}, s{sT}, 3\ns_mul_i32 s{sT}, s{sT}, 15360\ns_add_u32 s{sT}, s{sT}, {RED + j*5120}\nv_add_u32 v{vPW[j]}, s{sT}, v{vL16}')
    r.e(f's_mul_i32 s{sT}, s{sW}, 15360\ns_add_u32 s{sT}, s{sT}, {RED}\nv_add_u32 v{vPR}, s{sT}, v{vL16}')
    hl = f'buffer_load_dword v{vFV}, v{vF1}, {srd(SWS)}, 0 offen sc1'
    nl = max(0, len(later) - opt('nlast', 6))
    run(a, merge(r.ops, later[:nl]))
    ini = [lambda a: a.wait(vm=r.tok['xb']), f's_mov_b32 s{sT}, 0x05040100\ns_mov_b32 s{sT+1}, 0x07060302']
    for ct in range(5):
        b = 16 + 60 + 4*ct
        for k in range(2):
            xs = xr + (4*(ct >> 1) + 2*(ct & 1) + k if ct < 4 else 8 + k); bs = xs - xr + br
            ini += L(f'v_perm_b32 v{b+2*k}, v{bs}, v{xs}, s{sT}\nv_perm_b32 v{b+2*k+1}, v{bs}, v{xs}, s{sT+1}')
    for k in range(20): ini.append(f'v_dot2_f32_bf16 v{76+k}, v{76+k}, s{sONES}, 0')
    a.e(f'v_mov_b32 v{vL}, v{vL16}'); st['vW'] = vL
    a.e('s_mov_b64 exec, 0x3ff')
    tk = a.vm(hl)
    a.e('s_mov_b64 exec, -1')
    run(a, merge(ini, later[nl:]))
    stamp(a, 6)
    a.wait(vm=tk)
    set_flag(a, 1, 193)
    check_loop(a, hl, vFV, 10, sPC)
    stamp(a, 7)
    ht = {}
    def hload(slot, j):
        def op(a):
            vo = vHD[j] if slot == 13 else vHJ[j]
            ht[(slot, j)] = a.vm(f'buffer_load_dwordx4 {HF(pos[(slot, j)])}, v{vo}, {srd(SWS)}, s{sKO[slot]} offen sc1')
        return op
    NE = opt('NE', 9)
    order = [(s_, j) for s_ in range(NE) for j in range(4)] + [(s_, j) for j in range(4) for s_ in range(NE, 14)]
    pos = {k: n for n, k in enumerate(order)}
    for j in range(4): hload(0, j)(a)
    NE = opt('NE', 9)
    order = [(s_, j) for s_ in range(NE) for j in range(4)] + [(s_, j) for j in range(4) for s_ in range(NE, 14)]
    pos = {k: n for n, k in enumerate(order)}
    hp = 4
    while hp < RING: hload(*order[hp])(a); hp += 1
    wq = list(st['inp2'])
    S = Sched(); f = {}; g = {}
    def group(s_, j):
        nonlocal hp
        n = pos[(s_, j)]
        for ct in range(5):
            pre = [lambda a: a.wait(vm=max(ht[(s_, j)], max(st['w2'][(s_, c_)] for c_ in range(5))))] if ct == 0 and not opt('nowait2', 0) else []
            c0 = '0' if (s_ == 0 and j < 3) else ACC2(ct, j)
            idx = S.add(f'v_mfma_f32_16x16x32_bf16 {ACC2(ct,j)}, {W2(s_,ct)}, {HF(n)}, {c0}', pre)
            if ct == 0: f[(s_, j)] = idx
        if hp < 56: S.put(idx, [hload(*order[hp])]); hp += 1
        if wq and n >= opt('w0', 0): S.put(idx - 2, [wq.pop(0)])
    for s_ in range(NE):
        for j in range(4): group(s_, j)
    ul = f'buffer_load_dword v{vFV}, v{vF2}, {srd(SWS)}, 0 offen sc1'
    ku = opt('ku', NE - 4)
    S.put(f[(ku, 0)] + 1, [lambda a: (a.e('s_mov_b32 exec_hi, 0'), st.__setitem__('ul', a.vm(ul)), a.e('s_mov_b32 exec_hi, -1'))])
    S.put(f[(ku + 3, 0)] + 1, [lambda a: (a.wait(vm=st['ul']), check_loop(a, ul, vFV, 32, sPC))])
    fl = sorted(f.values())
    i3 = fl.index(f[(ku + 3, 1)])
    st['uput'] = True
    def ustep(j):
        for ct in range(5):
            pre = [lambda a: a.wait(vm=st['uf'])] if ct == 0 else []
            S.add(f'v_mfma_f32_16x16x32_bf16 {ACC2(ct,j)}, {UF(ct)}, a[{aTW+4*j}:{aTW+4*j+3}], {ACC2(ct,j)}', pre)
    def wr(j, at, step=1):
        for ct in range(5): S.put(at + step*ct, [f'ds_write_b128 v{vPW[j]}, {ACC2(ct,j)} offset:{ct*1024}'])
    for j in range(4):
        for s_ in range(NE, 14): group(s_, j)
        g[j] = f[(NE, j)]
        if j == 1: ustep(0)
        if j >= 1: ustep(j)
    wr(0, g[2] + 2, 2); wr(1, g[2] + 13, 2); wr(2, g[3] + 3)
    fl = sorted(f.values())
    for ct in range(5):
        S.put(fl[i3 + ct] + 1, [lambda a, ct=ct: st.__setitem__('uf', a.vm(f'buffer_load_dwordx4 {UF(ct)}, v{vUO[ct]}, {srd(SWS)}, s{sUo} offen sc1'))])
    PB = lambda jj, ct: 196 + 20*jj + 4*ct
    S.put(g[3] + 10, [lambda a: (a.wait(lg=a.lg_issued), a.e('s_barrier'))])
    rd = []
    for ct in range(5):
        for jj in range(3):
            rd.append(lambda a, jj=jj, ct=ct: st.__setitem__(('pr', ct), a.lg(f'ds_read_b128 v[{PB(jj,ct)}:{PB(jj,ct)+3}], v{vPR} offset:{jj*5120+ct*1024}')))
    S.spread(rd, g[3] + 11, g[3] + 18)
    nl = len(S.slots)
    sm = []
    for ct in range(5):
        sm.append(lambda a, ct=ct: a.wait(lg=st[('pr', ct)]))
        for k in range(4): sm.append(f'v_add_f32 v{PB(0,ct)+k}, v{PB(0,ct)+k}, v{PB(1,ct)+k}')
        for k in range(4): sm.append(f'v_add_f32 v{PB(0,ct)+k}, v{PB(0,ct)+k}, v{PB(2,ct)+k}')
    S.spread(sm, g[3] + 19, nl - 1)
    for s_ in range(NE): S.slots[f[(s_, 0)]]['pre'].insert(0, lambda a, s_=s_: stamp(a, f'e{s_}'))
    for j in range(4): S.slots[g[j]]['pre'].insert(0, lambda a, j=j: stamp(a, f'l{j}'))
    S.emit(a)
    stamp(a, 8)
    o = 96
    for ct in range(5):
        b = 76 + 4*ct
        for k in range(4): a.e(f'v_add_f32 v{b+k}, v{b+k}, v{PB(0,ct)+k}')
        a.e(cvtpk(o+2*ct, b, b+1)); a.e(cvtpk(o+2*ct+1, b+2, b+3))
        ost = opt('ost', '')
        if ct == 1: a.vm(f'buffer_store_dwordx4 v[{o}:{o+3}], v{vG4}, {srd(SOUT)}, s{sGO} offen {ost}')
        if ct == 3: a.vm(f'buffer_store_dwordx4 v[{o+4}:{o+7}], v{vG4}, {srd(SOUT)}, s{sGO} offen offset:64 {ost}')
        if ct == 4: a.vm(f'buffer_store_dwordx2 v[{o+8}:{o+9}], v{vG2}, {srd(SOUT)}, s{sGO} offen offset:128 {ost}')
    if DBG:
        a.wait_all()
        a.e(f'{"s_memtime" if DBG == 2 else "s_memrealtime"} s[{sT+1}:{sT+2}]\ns_waitcnt lgkmcnt(0)')
        for k in range(9): a.e(f'v_mov_b32 v{16+k}, s{sTS+2*k}')
        a.e(f'v_mov_b32 v25, s{sT+1}\nv_mov_b32 v26, 0\nv_mov_b32 v27, 0')
        a.e(f's_lshl_b32 s{sT}, s2, 2\ns_add_u32 s{sT}, s{sT}, s{sW}\ns_lshl_b32 s{sT}, s{sT}, 6\ns_add_u32 s{sT}, s{sT}, {TS_OFF}')
        a.e(f'v_mov_b32 v2, 0\ns_mov_b64 exec, 1')
        for k in range(3): a.e(f'buffer_store_dwordx4 v[{16+4*k}:{19+4*k}], v2, {srd(SWS)}, s{sT} offen offset:{16*k}')
    a.e('s_endpgm')

def build():
    a = Asm(); prologue(a)
    outs = [a]
    for nG in (4, 2):
        b = a.fork()
        if nG == 2: b.e('L_S:')
        build_type(b, T(nG)); outs.append(b)
    lines = []
    for o in outs: lines += o.finish()
    return lines

hdr = open('cdna_kernels/%s.s.ref' % NAME).read().split('; Override launch')[0]
lines = build()
with open(sys.argv[1], 'w') as f:
    f.write(hdr)
    f.write(f'; @launch grid=(256,1,1) block=(256,1,1) lds={LDS_BYTES}\n')
    f.write('.amdgcn_target "amdgcn-amd-amdhsa--gfx950"\n.text\n')
    f.write(f'.globl {NAME}_kernel\n.p2align 8\n.type {NAME}_kernel,@function\n{NAME}_kernel:\n')
    for l in lines: f.write(('' if l.endswith(':') else '    ') + l + '\n')
    f.write('L_end:\n    s_endpgm\n')
    f.write('.p2align 8\n.type L_ftab,@object\nL_ftab:\n')
    tb = F_table()
    for i in range(0, len(tb), 8): f.write('.long ' + ', '.join('0x%08x' % x for x in tb[i:i+8]) + '\n')
    f.write('.fill 8192, 4, 0\n')
    f.write(f'''.section .rodata,"a"
.p2align 6
.amdhsa_kernel {NAME}_kernel
  .amdhsa_next_free_vgpr 512
  .amdhsa_next_free_sgpr 102
  .amdhsa_accum_offset 256
  .amdhsa_group_segment_fixed_size 0
  .amdhsa_kernarg_size 104
  .amdhsa_user_sgpr_count 2
  .amdhsa_user_sgpr_kernarg_segment_ptr 1
  .amdhsa_system_sgpr_workgroup_id_x 1
.end_amdhsa_kernel
''')
print('instructions:', len(lines))
```

```python
import sys, struct, copy, os
from asmlib import Asm
NAME = 'parallel_sum__spectral_fnet__dense_activation_squared_relu__prompt'
DBG = int(sys.argv[2]) if len(sys.argv) > 2 else 0
OPT = dict(kv.split('=') for kv in sys.argv[3:])
def opt(k, d): return type(d)(OPT.get(k, d))

H_OFF = 0; U_OFF = 0x6C0000; P_OFF = 0x940000; ST_OFF = 0xB5C000; F_OFF = 0xB68000; TS_OFF = 0xB88000; PF_OFF = 0xBA0000; WS_END = 0xBB0000
OOB = 0x40000000
ARING = 0; BBASE = 65536; AUX = 139264; TAB = 161792; TABC = TAB; TABB = TAB + 512; TABR = TAB + 1024
XCH = 0
RED_PITCH = 336; RED_WAVE = 64 * RED_PITCH
LDS_BYTES = 163840
SX, SW1, SW2, SWS, SOUT = 4, 8, 12, 16, 20
sB1, sB2, sDBG = 24, 26, 28
sW, sZ, sRB, sC8, sROW, sG0 = 30, 31, 32, 33, 34, 35
sA, sA2, sBo, sMA, sMB = 36, 37, 38, 39, 40
sT1, sC, sTAG, sONES = 41, 42, 43, 44
sT = 45
sH = [53, 54, 55, 56]; sFL = 57; sDT = 58; sAUXo = 59; sAUXs = 60; sTAU = 61; sW2o = 62; sH0 = 63; sH1 = 64; sUo = 65
sCW = 66; sGO = 67; sTS1 = 68; sPC = 69; sUS = 70; sE = 71
sAUXm = 3; sHB = [78, 79, 80, 81]
sRHO = 75; sWE = 76; sW4 = 77
sKO = [36, 37, 38, 39, 40, 53, 54, 55, 56, 58, 59, 60, 63, 64]
sTS = 84
def srd(b): return f's[{b}:{b+3}]'
def fhex(x): return '0x%08x' % struct.unpack('<I', struct.pack('<f', x))[0]
def X(ks): return f'a[{4*ks}:{4*ks+3}]'
def ACC1(i): return f'v[{32+16*i}:{47+16*i}]'
def WB(b, i, h=None):
    base = 96 + 16*b + 4*i
    return f'v[{base}:{base+3}]' if h is None else f'v[{base+2*h}:{base+2*h+1}]'
aTW = 160; aF0 = 176; aSEL = 'a[192:195]'; aCS = 'a[196:199]'
def aF(k): return f'a[{aF0+4*k}:{aF0+4*k+3}]'
vL = 1
vOA = [2, 3]; vOB = [4, 5, 6, 7]; vAR = [8, 9, 10, 11]; vBR = [12, 13, 14, 15]
vT = 16
vST = 24
vNM, vSDV, vR = 24, 25, 26
vNON = 28; vPF = 29; vHO = 30; vL16 = 31
vAUX = 160
def W2(slot, ct):
    if slot < 3: k, b = 'v', 196 + 20*slot + 4*ct
    elif slot < 5: k, b = 'a', 200 + 20*(slot-3) + 4*ct
    elif slot == 5: k, b = 'a', (240 + 4*ct if ct < 4 else 196)
    else: k, b = 'a', 20*(slot-6) + 4*ct
    return f'{k}[{b}:{b+3}]'
def UF(ct): return f'a[{176+4*ct}:{179+4*ct}]'
def ACC2(ct, rt): b = 16 + 20*rt + 4*ct; return f'v[{b}:{b+3}]'
RING = opt('ring', 12)
def HF(n): b = 96 + 4*(n % RING); return f'v[{b}:{b+3}]'

TSL = OPT.get('ts', '0,1,2,3,4,5,6,7,8').split(',')
def stamp(a, name):
    if str(name) not in TSL: return
    idx = TSL.index(str(name))
    if DBG: a.e(f'{"s_memtime" if DBG == 2 else "s_memrealtime"} s[{sTS+2*idx}:{sTS+2*idx+1}]')
def cvtpk(d, x, y): return f'v_cvt_pk_bf16_f32 v{d}, v{x}, v{y}'
uid = [0]
def label(p):
    uid[0] += 1; return f'L_{p}{uid[0]}'

class Sched:
    def __init__(self): self.slots = []
    def add(self, main, pre=()):
        self.slots.append({'pre': list(pre), 'main': main, 'fill': []}); return len(self.slots) - 1
    def put(self, idx, ops): self.slots[idx]['fill'] += list(ops)
    def spread(self, ops, first, last):
        ops = list(ops); n = last - first + 1
        for k, op in enumerate(ops):
            self.slots[first + min(n - 1, k * n // len(ops))]['fill'].append(op)
    def pack(self, ops, first, per):
        i = first
        for op in ops:
            while i < len(self.slots) - 1 and len(self.slots[i]['fill']) >= per: i += 1
            self.slots[i]['fill'].append(op)
        return i
    def emit(self, a, lo=0, hi=None):
        for s in self.slots[lo:hi]:
            for op in s['pre'] + [s['main']] + s['fill']:
                if op is None: continue
                if callable(op): op(a)
                else: a.e(op)
def L(text): return [t for t in text.split('\n') if t.strip()]

def mk_srd(b, lo, n):
    return f's_mov_b32 s{b}, s{lo}\ns_and_b32 s{b+1}, s{lo+1}, 0xffff\ns_mov_b32 s{b+2}, {n}\ns_mov_b32 s{b+3}, 0x20000'

def prologue(a):
    a.e('s_cmp_ge_u32 s2, 256\ns_cbranch_scc1 L_end')
    stamp(a, 0)
    a.e('s_load_dwordx2 s[66:67], s[0:1], 0')
    a.e('s_load_dwordx8 s[68:75], s[0:1], 48')
    a.e('s_load_dwordx4 s[76:79], s[0:1], 80')
    a.e('s_load_dwordx2 s[80:81], s[0:1], 96')
    a.e('s_getpc_b64 s[82:83]\nL_pc:')
    a.e('s_bfe_u32 s3, s2, 0x10003\ns_lshl_b32 s3, s3, 15\nv_lshl_add_u32 v2, v0, 7, s3')
    a.vm(f'global_load_dword v{vPF}, v2, s[82:83]')
    a.e('s_add_u32 s82, s82, L_ftab-L_pc\ns_addc_u32 s83, s83, 0')
    a.e(f'v_lshrrev_b32 v4, 6, v0\nv_and_b32 v{vL}, 63, v0\nv_readfirstlane_b32 s{sW}, v4')
    a.e(f's_and_b32 s{sZ}, s2, 1')
    a.e(f's_bfe_u32 s{sT}, s2, 0x20001\ns_bfe_u32 s{sT+1}, s2, 0x20003\ns_lshl_b32 s{sT}, s{sT}, 2')
    a.e(f's_add_u32 s{sRB}, s{sT}, s{sT+1}\ns_lshr_b32 s{sC8}, s2, 5')
    a.e(f's_sub_u32 s{sT+2}, 32, s{sRB}\ns_cmp_eq_u32 s{sRB}, 0\ns_cselect_b32 s{sT+2}, 16, s{sT+2}')
    a.e(f's_bitcmp1_b32 s{sW}, 1\ns_cselect_b32 s{sROW}, s{sT+2}, s{sRB}')
    a.e(f's_and_b32 s{sT+3}, s{sW}, 1\ns_lshl_b32 s{sT+3}, s{sT+3}, 5\ns_add_u32 s{sROW}, s{sROW}, s{sT+3}')
    a.e(f's_mov_b32 s{sAUXm}, s{sT+2}')
    a.e(f'v_lshrrev_b32 v{vT}, 3, v{vL}\nv_lshrrev_b32 v{vT+1}, 4, v{vL}\nv_and_b32 v{vT+2}, 7, v{vL}')
    a.e(f'v_xor_b32 v{vT+3}, v{vT+2}, v{vT+1}\ns_mov_b32 s{sT+4}, 81920\nv_mul_lo_u32 v{vT+4}, s{sT+4}, v{vT}')
    a.e(f'v_lshl_add_u32 v{vOA[0]}, v{vT+3}, 4, v{vT+4}\nv_xor_b32 v{vT+3}, 4, v{vT+3}')
    a.e(f'v_lshl_add_u32 v{vOA[1]}, v{vT+3}, 4, v{vT+4}\nv_add_u32 v{vOA[1]}, {8*81920-1024}, v{vOA[1]}')
    a.e(f's_mul_i32 s{sA}, s{sROW}, 1280\ns_add_u32 s{sA2}, s{sA}, {16*81920-2048}\ns_lshl_b32 s{sMA}, s{sW}, 12')
    a.e(f's_sub_u32 s{sT+5}, 6, s{sZ}\ns_cmp_ge_u32 s{sC8}, s{sT+5}\ns_cbranch_scc1 L_S')

class T:
    def __init__(self, nG):
        self.nG = nG; self.nD = 1 if nG == 4 else 2
        self.bslot = 4096 * nG
        self.pitch = 64 * nG
        self.DREG = 131072 if nG == 4 else 98304
        self.nb = nG

def prologue_t(a, t, st):
    if t.nG == 4:
        a.e(f's_mul_i32 s{sG0}, s{sZ}, 28\ns_lshl_b32 s{sT}, s{sC8}, 2\ns_add_u32 s{sG0}, s{sG0}, s{sT}')
        a.e(f's_mul_i32 s{sDT}, s{sZ}, 10\ns_add_u32 s{sDT}, s{sDT}, s{sC8}')
        a.e(f'v_and_b32 v{vT+2}, 15, v{vL}\nv_lshlrev_b32 v{vT+3}, 2, v{vT+1}\nv_xor_b32 v{vT+2}, v{vT+2}, v{vT+3}')
        a.e(f's_movk_i32 s{sT+6}, 3456\nv_mul_u32_u24 v{vT+3}, s{sT+6}, v{vT+1}\nv_lshl_add_u32 v{vOB[0]}, v{vT+2}, 4, v{vT+3}')
        for i in range(1, 4): a.e(f'v_add_u32 v{vOB[i]}, {i*(4*3456-1024)}, v{vOB[0]}')
    else:
        a.e(f's_mul_i32 s{sG0}, s{sZ}, 26\ns_lshl_b32 s{sT}, s{sC8}, 1\ns_add_u32 s{sG0}, s{sG0}, s{sT}\ns_add_u32 s{sG0}, s{sG0}, 12')
        a.e(f's_mul_i32 s{sDT}, s{sZ}, 11\ns_add_u32 s{sDT}, s{sDT}, s{sT}\ns_sub_u32 s{sDT}, s{sDT}, 6')
        a.e(f'v_and_b32 v{vT+3}, 1, v{vT+1}\nv_lshlrev_b32 v{vT+3}, 2, v{vT+3}\nv_xor_b32 v{vT+2}, v{vT+2}, v{vT+3}')
        a.e(f's_movk_i32 s{sT+6}, 3456\nv_mul_u32_u24 v{vT+3}, s{sT+6}, v{vT}\nv_lshl_add_u32 v{vOB[0]}, v{vT+2}, 4, v{vT+3}')
        a.e(f'v_add_u32 v{vOB[1]}, {8*3456-1024}, v{vOB[0]}')
    a.e(f's_lshl_b32 s{sBo}, s{sG0}, 6\ns_mul_i32 s{sT}, s{sW}, {16*3456}\ns_add_u32 s{sBo}, s{sBo}, s{sT}')
    a.e(f's_mul_i32 s{sMB}, s{sW}, {1024*t.nb}\ns_add_u32 s{sMB}, s{sMB}, {BBASE}')
    a.e(f's_lshl_b32 s{sT+1}, s{sG0}, 6\nv_and_b32 v{vT+6}, {16*t.nG-1}, v{vL}\nv_lshl_add_u32 v{vT+6}, v{vT+6}, 2, s{sT+1}')
    if t.nG == 2: aux_setup(a)
    stamp(a, 'p0')
    a.e('s_waitcnt lgkmcnt(0)')
    stamp(a, 'p1')
    if t.nG == 2:
        a.e(mk_srd(SW2, 72, 1728*1280)); run(a, pack_dma(0, st))
    a.vm(f'global_load_dword v{vT+7}, v{vT+6}, s[70:71]')
    a.e(f'v_bfe_u32 v{vT+5}, v{vL}, 0, 3\nv_mul_u32_u24 v{vT+5}, 0xa0, v{vT+5}')
    a.vm(f'global_load_dword v{vPF}, v{vT+5}, s[74:75]')
    a.e(mk_srd(SX, 66, 2048*1280)); a.e(mk_srd(SW1, 68, 640*3456))

def dma_ops(t, c, st):
    slot = c % 4
    ops = [f's_add_u32 m0, s{sMA}, {ARING + slot*16384}',
           f'buffer_load_dwordx4 v{vOA[0]}, {srd(SX)}, s{sA} offen {opt("ntx", "")} lds',
           f'buffer_load_dwordx4 v{vOA[1]}, {srd(SX)}, s{sA} offen offset:1024 {opt("ntx", "")} lds',
           f'buffer_load_dwordx4 v{vOA[0]}, {srd(SX)}, s{sA2} offen offset:2048 {opt("ntx", "")} lds',
           f'buffer_load_dwordx4 v{vOA[1]}, {srd(SX)}, s{sA2} offen offset:3072 {opt("ntx", "")} lds',
           f's_add_u32 m0, s{sMB}, {slot*t.bslot}\ns_add_u32 s{sA}, s{sA}, 128\ns_add_u32 s{sA2}, s{sA2}, 128']
    for i in range(t.nb):
        ops.append(f'buffer_load_dwordx4 v{vOB[i]}, {srd(SW1)}, s{sBo} offen offset:{1024*i} {opt("ntw", "")} lds')
    def last(a):
        st['dma'][c] = a.vm_issued
        a.e(f's_add_u32 s{sBo}, s{sBo}, {64*3456}')
    ops.append(last)
    return ops
def run(a, ops):
    for op in ops:
        if callable(op): op(a)
        else: a.e(op)

vAO = 64
vPK = 76
vSD = 128
sPo = [55, 56]; sPs = [62, 63]; sPf = [64, 59]; sSo = 60; sSs = 65
def aux_setup(a):
    q = 184
    a.e(f's_mul_i32 s{sT}, s{sZ}, 3\ns_add_u32 s{sT}, s{sT}, s{sC8}\ns_sub_u32 s{sT}, s{sT}, 6\ns_lshl_b32 s{sT}, s{sT}, 2\ns_add_u32 s{sT}, s{sT}, s{sW}')
    a.e(f's_mul_i32 s{sT+1}, s{sRB}, 20\ns_add_u32 s{sT+1}, s{sT+1}, s{sT}')
    a.e(f's_bitcmp1_b32 s{sT}, 3\ns_cselect_b32 s{sT+2}, s{sAUXm}, s{sRB}')
    a.e(f's_bfe_u32 s{sT+3}, s{sT}, 0x10002\ns_lshl_b32 s{sT+3}, s{sT+3}, 5\ns_add_u32 s{sT+2}, s{sT+2}, s{sT+3}\ns_lshl_b32 s{sT+3}, s{sW}, 9\ns_add_u32 s{sT+2}, s{sT+2}, s{sT+3}\ns_mul_i32 s{sSo}, s{sT+2}, 1280')
    a.e(f's_lshl_b32 s{sT+2}, s{sRB}, 4\ns_add_u32 s{sT+2}, s{sT+2}, s{sT}\ns_lshl_b32 s{sSs}, s{sT+2}, 7\ns_add_u32 s{sSs}, s{sSs}, {ST_OFF}')
    a.e(f's_cmp_lt_u32 s{sT}, 16\ns_cselect_b32 s{sT+4}, 0, {OOB}')
    a.e(f'v_lshrrev_b32 v{q}, 4, v{vL}\ns_mov_b32 s{sT+5}, 81920\nv_mul_lo_u32 v{q+1}, s{sT+5}, v{q}\nv_and_b32 v{q+2}, 15, v{vL}\nv_lshlrev_b32 v{q+2}, 4, v{q+2}\nv_add3_u32 v{vAO+7}, v{q+2}, v{q+1}, s{sT+4}')
    a.e(f'v_lshl_add_u32 v{vAO+8}, v{q}, 4, s{sT+4}')
    for k in range(2):
        if k: a.e(f's_add_u32 s{sT+1}, s{sT+1}, 320')
        a.e(f's_lshr_b32 s{sT+2}, s{sT+1}, 3\ns_and_b32 s{sT+3}, s{sT+1}, 7\ns_mul_i32 s{sPo[k]}, s{sT+2}, 40960\ns_mul_i32 s{sT+5}, s{sT+3}, 160\ns_add_u32 s{sPo[k]}, s{sPo[k]}, s{sT+5}')
        a.e(f's_mul_i32 s{sPs[k]}, s{sT+3}, 54\ns_add_u32 s{sPs[k]}, s{sPs[k]}, s{sT+2}\ns_mul_i32 s{sPs[k]}, s{sPs[k]}, 5120\ns_add_u32 s{sPs[k]}, s{sPs[k]}, {P_OFF}')
        a.e(f's_lshl_b32 s{sPf[k]}, s{sT+1}, 7\ns_add_u32 s{sPf[k]}, s{sPf[k]}, {PF_OFF}')
        if k:
            a.e(f's_cmp_lt_u32 s{sT+1}, 432\ns_cselect_b32 s{sT+4}, 0, {OOB}\ns_cselect_b32 s{sPo[k]}, s{sPo[k]}, 0')
            a.e(f'v_lshl_add_u32 v{vAO+10}, v{vL}, 4, s{sT+4}')
        else: a.e(f'v_lshlrev_b32 v{vAO+9}, 4, v{vL}')
    a.e(f's_mov_b32 s{sT+5}, 0xCCCD\ns_movk_i32 s{sT+6}, 1280\ns_mul_i32 s{sAUXm}, s{sW}, 5120\ns_add_u32 s{sAUXm}, s{sAUXm}, {AUX}')
    for i in range(5):
        a.e(f'v_add_u32 v{q}, {64*i}, v{vL}\nv_mul_lo_u32 v{q+1}, s{sT+5}, v{q}\nv_lshrrev_b32 v{q+1}, 19, v{q+1}')
        a.e(f'v_mul_u32_u24 v{q+2}, 10, v{q+1}\nv_sub_u32 v{q+2}, v{q}, v{q+2}\nv_mul_u32_u24 v{q+1}, s{sT+6}, v{q+1}')
        a.e(f'v_lshl_add_u32 v{vAO+i}, v{q+2}, 4, v{q+1}')
        if 0 < i < 4: a.e(f'v_subrev_u32 v{vAO+i}, {1024*i}, v{vAO+i}')
    a.e(f'v_lshrrev_b32 v{q}, 5, v{vL}\nv_lshlrev_b32 v{q}, 4, v{q}\nv_bfe_u32 v{q+1}, v{vL}, 4, 1\nv_lshl_add_u32 v{q}, v{q+1}, 2, v{q}')
    a.e(f'v_bfe_u32 v{q+1}, v{vL}, 2, 2\nv_add_u32 v{q}, v{q}, v{q+1}\nv_mul_u32_u24 v{q}, 160, v{q}\nv_add_u32 v{q}, s{sAUXm}, v{q}')
    a.e(f'v_and_b32 v{q+1}, 3, v{vL}\nv_lshl_add_u32 v{vAO+5}, v{q+1}, 4, v{q}\nv_lshl_add_u32 v{vAO+6}, v{q+1}, 3, v{q}')

def unc_vm(text):
    def op(a): a.e(text); a.vm_issued -= 1
    return op
def unc_lg(text):
    def op(a): a.e(text); a.lg_issued -= 1
    return op
PK1 = 32768 - AUX
def pack_dma(k, st):
    o = []
    for i in range(5):
        def op(a, i=i):
            if i in (0, 4): a.e(f's_add_u32 m0, s{sAUXm}, {PK1*k + (4096 if i else 0)}')
            st[('pk', k)] = a.vm(f'buffer_load_dwordx4 v{vAO+i}, {srd(SW2)}, s{sPo[k]} offen offset:{(1024*i)%4096} {opt("ntp", "")} lds')
        o.append(op)
    return o
def pack_reads(k, st):
    o = [lambda a: a.wait(vm=st[('pk', k)])]
    if k: o += [f'v_add_u32 v{vAO+5}, {PK1 & 0xffffffff}, v{vAO+5}', f'v_add_u32 v{vAO+6}, {PK1 & 0xffffffff}, v{vAO+6}']
    vPK = 76 if k == 0 else 196
    for ct in range(5):
        for h in range(2):
            t = (f'ds_read_b64_tr_b16 v[{vPK+4*ct+2*h}:{vPK+4*ct+2*h+1}], v{vAO+5} offset:{(ct>>1)*64+(ct&1)*8+h*1280}' if ct < 4 else
                 f'ds_read_b64_tr_b16 v[{vPK+4*ct+2*h}:{vPK+4*ct+2*h+1}], v{vAO+6} offset:{128+h*1280}')
            o.append(lambda a, t=t: st.__setitem__(('pr', k), a.lg(t)))
    return o
def pack_stores(k, st):
    o = []; vPK = 76 if k == 0 else 196
    for ct in range(5):
        def op(a, ct=ct):
            a.wait(lg=st[('pr', k)])
            if ct == 4: a.e(f's_add_u32 s{sPs[k]}, s{sPs[k]}, 4096')
            st[('ps', k)] = a.vm(f'buffer_store_dwordx4 v[{vPK+4*ct}:{vPK+4*ct+3}], v{vAO+9+k}, {srd(SWS)}, s{sPs[k]} offen offset:{(1024*ct)%4096} sc1')
        o.append(op)
    return o
def pack_flag(k, st):
    def op(a):
        a.wait(vm=st[('ps', k)])
        a.e(f'v_mov_b32 v{vT}, s{sTAG}\ns_mov_b64 exec, 1')
        a.vm(f'buffer_store_dword v{vT}, v{vAO+9+k}, {srd(SWS)}, s{sPf[k]} offen sc1')
        a.e('s_mov_b64 exec, -1')
    return op
def stats_loads(b, st):
    o = []
    for i in range(5):
        def op(a, i=i):
            if b == 1 and i == 0: a.e(f's_add_u32 s{sSo}, s{sSo}, {4*81920}')
            st[('sl', b)] = a.vm(f'buffer_load_dwordx4 v[{vSD+20*b+4*i}:{vSD+20*b+4*i+3}], v{vAO+7}, {srd(SX)}, s{sSo} offen offset:{256*i}')
        o.append(op)
    return o
def stats_proc(b, st):
    q = 168 + 4*b; g = 176 + 4*b; d = vSD + 20*b
    o = [lambda a: a.wait(vm=st[('sl', b)])]
    o += [f'v_mov_b32 v{q+k}, 0' for k in range(4)]
    o.append('\n'.join(f'v_dot2c_f32_bf16 v{q+(r&1)}, s{sONES}, v{d+r}\nv_dot2c_f32_bf16 v{q+2+(r&1)}, v{d+r}, v{d+r}' for r in range(20)))
    o += L(f'v_add_f32 v{q}, v{q}, v{q+1}\nv_add_f32 v{q+2}, v{q+2}, v{q+3}')
    for sh in (8, 4, 2, 1):
        o += L(f'v_add_f32_dpp v{q}, v{q}, v{q} row_ror:{sh} row_mask:0xf bank_mask:0xf\nv_add_f32_dpp v{q+2}, v{q+2}, v{q+2} row_ror:{sh} row_mask:0xf bank_mask:0xf')
    o += L(f'v_mul_f32 v{q}, {fhex(1/640)}, v{q}\nv_mul_f32 v{q+2}, {fhex(1/640)}, v{q+2}')
    o += L(f'v_fma_f32 v{q+2}, -v{q}, v{q}, v{q+2}\nv_max_f32 v{q+2}, 0, v{q+2}\nv_add_f32 v{q+2}, {fhex(1e-5)}, v{q+2}')
    o += L(f'v_rsq_f32 v{g+2}, v{q+2}\nv_sqrt_f32 v{g+1}, v{q+2}\nv_mov_b32 v{g+3}, s{sTAG}\nv_sub_f32 v{g}, 0, v{q}')
    o += [f's_mov_b32 exec_lo, 0x00010001\ns_mov_b32 exec_hi, 0x00010001\nbuffer_store_dwordx4 v[{g}:{g+3}], v{vAO+8}, {srd(SWS)}, s{sSs} offen offset:{64*b} sc1\ns_mov_b64 exec, -1']
    return o

def nonce_pub(a):
    a.e(mk_srd(SWS, 80, WS_END)); a.e(mk_srd(SOUT, 76, 2048*1280))
    a.e(f's_mov_b64 s[{sB1}:{sB1+1}], s[70:71]\ns_mov_b64 s[{sB2}:{sB2+1}], s[74:75]\ns_mov_b64 s[{sDBG}:{sDBG+1}], s[78:79]')
    ln = label('non')
    a.e(f's_or_b32 s{sT}, s2, s{sW}\ns_cmp_lg_u32 s{sT}, 0\ns_cbranch_scc1 {ln}')
    a.e(f's_memrealtime s[{sT+1}:{sT+2}]\ns_waitcnt lgkmcnt(0)\ns_or_b32 s{sT}, s{sT+1}, 1')
    a.e(f'v_mov_b32 v{vT}, 0\nv_mov_b32 v{vT+1}, s{sT}')
    a.e(f'global_store_dword v{vT}, v{vT+1}, s[{sDBG}:{sDBG+1}] sc1'); a.vm_issued -= 1
    a.e(f'{ln}:')

def setup2(a, t):
    a.e(f's_mov_b32 s{sONES}, 0x3f803f80')
    a.e(f's_bfe_u32 s{sT}, s2, 0x20001\ns_lshl_b32 s{sT}, s{sT}, 2\ns_bfe_u32 s{sT+1}, s2, 0x20004\ns_add_u32 s{sT+1}, s{sT}, s{sT+1}')
    a.e(f's_sub_u32 s{sT+2}, 32, s{sT+1}\ns_cmp_eq_u32 s{sT+1}, 0\ns_cselect_b32 s{sT+2}, 16, s{sT+2}')
    a.e(f's_bitcmp1_b32 s2, 3\ns_cselect_b32 s{sT1}, s{sT+2}, s{sT+1}')
    a.e(f's_lshr_b32 s{sT+1}, s2, 6\ns_lshl_b32 s{sT+2}, s{sZ}, 1')
    a.e(f's_sub_u32 s{sT+3}, 4, s{sT+2}\ns_cmp_lt_u32 s{sT+1}, 2\ns_cselect_b32 s{sT+2}, s{sT+2}, s{sT+3}\ns_add_u32 s{sC}, s{sT+2}, s{sT+1}')
    a.e(f's_mul_i32 s{sTAU}, s{sW}, 14\ns_cmp_eq_u32 s{sW}, 3\ns_cselect_b32 s{sTAU}, 41, s{sTAU}')
    a.e(f'v_and_b32 v{vT}, 31, v{vL}\nv_lshrrev_b32 v{vT+1}, 5, v{vL}')
    a.e(f'v_bfe_u32 v{vT+2}, v{vL}, 1, 3\nv_xor_b32 v{vT+2}, v{vT+2}, v{vT+1}')
    a.e(f'v_lshlrev_b32 v{vT+3}, 7, v{vT}\nv_add_u32 v{vT+3}, s{sMA}, v{vT+3}\nv_lshl_add_u32 v{vAR[0]}, v{vT+2}, 4, v{vT+3}')
    for s in range(1, 4): a.e(f'v_xor_b32 v{vAR[s]}, {s<<5}, v{vAR[0]}')
    a.e(f'v_bfe_u32 v{vT+4}, v{vL}, 2, 2\nv_lshl_add_u32 v{vT+2}, v{vT+1}, 3, v{vT+4}\nv_mul_u32_u24 v{vT+2}, {t.pitch}, v{vT+2}')
    a.e(f'v_bfe_u32 v{vT+3}, v{vL}, 4, 1\nv_lshl_add_u32 v{vT+2}, v{vT+3}, 5, v{vT+2}')
    a.e(f'v_and_b32 v{vT+3}, 3, v{vL}\nv_lshl_add_u32 v{vT+2}, v{vT+3}, 3, v{vT+2}\nv_add_u32 v{vT+2}, {BBASE}, v{vT+2}')
    if t.nG == 2: a.e(f'v_lshrrev_b32 v{vT+4}, 1, v{vT+4}')
    for i in range(t.nG):
        a.e(f's_add_u32 s{sT}, s{sW}, {i}\ns_and_b32 s{sT}, s{sT}, {t.nG-1}')
        a.e(f'v_xor_b32 v{vT+3}, s{sT}, v{vT+4}\nv_lshl_add_u32 v{vBR[i]}, v{vT+3}, 6, v{vT+2}')
        a.e(f's_mul_i32 s{sH[i]}, s{sROW}, 54\ns_add_u32 s{sH[i]}, s{sH[i]}, s{sG0}\ns_add_u32 s{sH[i]}, s{sH[i]}, s{sT}\ns_lshl_b32 s{sH[i]}, s{sH[i]}, 11')
    a.e(f's_lshl_b32 s{sFL}, s2, 2\ns_add_u32 s{sFL}, s{sFL}, s{sW}\ns_lshl_b32 s{sFL}, s{sFL}, 7\ns_add_u32 s{sFL}, s{sFL}, {F_OFF}')
    a.e(f'v_and_b32 v{vT}, 15, v{vL}\nv_bfe_u32 v{vT+1}, v{vL}, 4, 1\nv_mov_b32 v{vT+2}, s{sONES}\nv_cmp_eq_u32 vcc, v{vT}, v{vT+1}\nv_cndmask_b32 v{vT+2}, 0, v{vT+2}, vcc')
    for k in range(4): a.e(f'v_accvgpr_write_b32 a{192+k}, v{vT+2}')
    a.e(f'v_lshlrev_b32 v{vL16}, 4, v{vL}')
    a.e(f'v_lshlrev_b32 v{vHO}, 10, v{vT+1}\nv_lshrrev_b32 v{vT+1}, 5, v{vL}\nv_lshl_add_u32 v{vHO}, v{vT+1}, 8, v{vHO}\nv_lshl_add_u32 v{vHO}, v{vT}, 4, v{vHO}')

def gen_D(a, t, tmp):
    q = tmp
    a.e(f'v_and_b32 v{q}, 15, v{vL}\nv_lshrrev_b32 v{q+1}, 5, v{vL}\ns_mul_i32 s{sT}, s{sW}, 80\nv_lshl_add_u32 v{q+1}, v{q+1}, 3, s{sT}\nv_cvt_f32_u32 v{q+1}, v{q+1}')
    a.e(f'v_bfe_u32 v{q+2}, v{vL}, 4, 1\nv_cvt_f32_u32 v{q+2}, v{q+2}\nv_mul_f32 v{q+2}, {fhex(-0.25)}, v{q+2}')
    a.e(f's_mul_i32 s{sT+1}, s{sW}, {5*1024*t.nD}\ns_add_u32 s{sT+1}, s{sT+1}, {t.DREG}\nv_add_u32 v{q+3}, s{sT+1}, v{vL16}')
    for d in range(t.nD):
        a.e(f's_lshl_b32 s{sT}, s{sDT}, 4\ns_add_u32 s{sT}, s{sT}, {16*d+1}')
        a.e(f'v_add_u32 v{q+4}, s{sT}, v{q}\nv_cvt_f32_u32 v{q+4}, v{q+4}\nv_mul_f32 v{q+4}, {fhex(1/640)}, v{q+4}\nv_fma_f32 v{q+5}, v{q+1}, v{q+4}, v{q+2}')
        for k5 in range(5):
            o = q + 8 + 12*(k5 & 1)
            for i in range(8):
                dd = 16*k5 + i
                if dd == 0: a.e(f'v_cos_f32 v{o+i}, v{q+5}')
                else:
                    a.e(f'v_fmamk_f32 v{o+i}, v{q+4}, {fhex(float(dd))}, v{q+5}')
            for i in range(8):
                if 16*k5 + i: a.e(f'v_cos_f32 v{o+i}, v{o+i}')
            for ip in range(4): a.e(cvtpk(o+8+ip, o+2*ip, o+2*ip+1))
            a.lg(f'ds_write_b128 v{q+3}, v[{o+8}:{o+11}] offset:{(k5*t.nD+d)*1024}')

import math
def bf16(x):
    u = struct.unpack('<I', struct.pack('<f', x))[0]
    return ((u + 0x7fff + ((u >> 16) & 1)) >> 16) & 0xffff
def F_table():
    w = []
    for fn in (math.cos, math.sin):
        for f in range(2):
            for l in range(64):
                t1 = l & 31; hi = l >> 5
                v = [bf16(round(fn(2*math.pi*((t1*(16*f + 8*(i >> 2) + 4*hi + (i & 3))) % 32)/32), 12)) for i in range(8)]
                w += [v[2*k] | (v[2*k+1] << 16) for k in range(4)]
    return w
def load_F():
    return [f'global_load_dwordx4 {aF(k)}, v{vL16}, s[82:83] offset:{1024*k}' for k in range(4)]

def rot_ids(a):
    for j in range(4):
        a.e(f's_add_u32 s{sT}, s{sW}, {1+j}\ns_and_b32 s{sT+1}, s{sT}, 1\ns_bfe_u32 s{sT}, s{sT}, 0x10001')
        a.e(f's_lshl_b32 s{sT}, s{sT}, 5\ns_add_u32 s{sT}, s{sT}, s{sT1}\ns_lshl_b32 s{sT+1}, s{sT+1}, 10\ns_add_u32 s{sHB[j]}, s{sT}, s{sT+1}')
def gen_TW(a, t):
    a.e(f'v_and_b32 v{t}, 15, v{vL}\nv_lshrrev_b32 v{t+1}, 4, v{vL}\ns_lshl_b32 s{sT}, s{sW}, 2\nv_add_u32 v{t+1}, s{sT}, v{t+1}')
    a.e(f'v_sub_u32 v{t+2}, 32, v{t+1}\nv_cmp_eq_u32 vcc, 0, v{t+1}\nv_cndmask_b32 v{t+2}, v{t+2}, 16, vcc')
    a.e(f's_mov_b32 s{sT+1}, 0x3a000000')
    a.e(f's_cmp_ge_u32 s{sC}, 4\ns_cselect_b32 s{sT+1}, s{sT+1}, 0xba000000')
    a.e(f'v_cvt_f32_u32 v{t+1}, v{t+1}\nv_cvt_f32_u32 v{t+2}, v{t+2}\nv_add_f32 v{t+3}, {fhex(32.0)}, v{t+1}\nv_add_f32 v{t+4}, {fhex(32.0)}, v{t+2}')
    s2r = [t+1, t+3, t+2, t+4]
    a.e(f'v_lshlrev_b32 v{t}, 6, v{t}')
    for j in range(4):
        a.e(f'v_add_u32 v{t+5}, s{sHB[j]}, v{t}\nv_cvt_f32_u32 v{t+5}, v{t+5}\nv_mul_f32 v{t+5}, s{sT+1}, v{t+5}')
        for w in range(4): a.e(f'v_mul_f32 v{t+6+w}, v{t+5}, v{s2r[w]}')
        for w in range(4): a.e(f'v_cos_f32 v{t+10+w}, v{t+6+w}\nv_sin_f32 v{t+6+w}, v{t+6+w}')
        for w in range(4): a.e(cvtpk(t+6+w, t+10+w, t+6+w))
        for w in range(4): a.e(f'v_accvgpr_write_b32 a{aTW+4*j+w}, v{t+6+w}')

def check_loop(a, load_text, vval, nl, cnt):
    ok, lp = label('ok'), label('lp')
    if nl < 64: a.e(f's_mov_b32 exec_lo, {hex(((1<<nl)-1)&0xffffffff)}\ns_mov_b32 exec_hi, {hex(((1<<nl)-1)>>32)}')
    a.e(f'v_cmp_ne_u32 vcc, s{sTAG}, v{vval}\ns_mov_b32 s{cnt}, 0\ns_cbranch_vccz {ok}')
    a.e(f'{lp}:\ns_sleep 1')
    a.e(load_text); a.vm_issued -= 1
    a.e(f's_waitcnt vmcnt(0)\nv_cmp_ne_u32 vcc, s{sTAG}, v{vval}\ns_add_u32 s{cnt}, s{cnt}, 1\ns_cmp_gt_u32 s{cnt}, 20000\ns_cbranch_scc1 {ok}\ns_cbranch_vccnz {lp}')
    a.e(f'{ok}:')
    if nl < 64: a.e('s_mov_b64 exec, -1')

def nonce_check(a, tok):
    ok, lp = label('nok'), label('nlp')
    a.wait(vm=tok)
    a.e(f'v_readfirstlane_b32 s{sTAG}, v{vNON}\ns_mov_b32 s{sPC}, 0\ns_cmp_lg_u32 s{sTAG}, 0\ns_cbranch_scc1 {ok}')
    a.e(f'{lp}:\nv_mov_b32 v{vNON}, 0')
    a.e(f'global_load_dword v{vNON}, v{vNON}, s[{sDBG}:{sDBG+1}] sc1'); a.vm_issued -= 1
    a.e(f's_waitcnt vmcnt(0)\nv_readfirstlane_b32 s{sTAG}, v{vNON}\ns_add_u32 s{sPC}, s{sPC}, 1\ns_cmp_gt_u32 s{sPC}, 20000\ns_cbranch_scc1 {ok}')
    a.e(f's_cmp_eq_u32 s{sTAG}, 0\ns_cbranch_scc1 {lp}\n{ok}:')

def set_flag(a, word, vt):
    a.e(f'v_mov_b32 v{vt}, {4*word}\nv_mov_b32 v{vt+1}, s{sTAG}\ns_mov_b64 exec, 1')
    a.vm(f'buffer_store_dword v{vt+1}, v{vt}, {srd(SWS)}, s{sFL} offen sc1')
    a.e('s_mov_b64 exec, -1')

def w2_load_ops(slot, st, cts=range(5)):
    ops = []
    for ct in cts:
        def op(a, ct=ct):
            vo = st['vL16d'] if slot == 13 else st.get('vW', vL16)
            if slot == 5 and ct == 4:
                so = sW4
            else:
                if ct == 0 and slot > 0:
                    assert st['w2slot'] == slot - 1
                    if slot < 13: a.e(f's_add_u32 s{sW2o}, s{sW2o}, 1024\ns_cmp_eq_u32 s{sW2o}, s{sWE}\ns_cselect_b32 s{sW2o}, s{sUS}, s{sW2o}')
                    else: a.e(f's_mov_b32 s{sW2o}, s{sWE}')
                if ct == 4: a.e(f's_add_u32 s{sW2o}, s{sW2o}, 4096')
                st['w2slot'] = slot
                so = sW2o
            st['w2'][(slot, ct)] = a.vm(f'buffer_load_dwordx4 {W2(slot,ct)}, v{vo}, {srd(SWS)}, s{so} offen offset:{(1024*ct)%4096} {opt("wsc", "sc1")}')
            if slot == 5 and ct == 3: a.e(f's_add_u32 s{sW2o}, s{sW2o}, 4096\ns_mov_b32 s{sW4}, s{sW2o}')
        ops.append(op)
    return ops

def pass1(a, t, st):
    nG = t.nG
    kps = 4 // nG
    nst = 40 // kps; spc = nst // 10
    def setinfo(step, i):
        return (step*kps + i // nG, i % nG)
    def rdW(step, i, h):
        ks, ti = setinfo(step, i); c, s = divmod(ks, 4)
        def op(a): st['w'][(step, i)] = a.lg(f'ds_read_b64_tr_b16 {WB(step&1,i,h)}, v{vBR[ti]} offset:{(c%4)*t.bslot + s*16*t.pitch + h*4*t.pitch}')
        return op
    def rdA(c, s):
        return f'ds_read_b128 {X(4*c+s)}, v{vAR[s]} offset:{ARING + (c%4)*16384}'
    st['w'] = {}
    a.wait(vm=st['dma'][0], lg=a.lg_issued)
    a.e('s_barrier')
    stamp(a, 2)
    for s in range(kps): a.e(rdA(0, s))
    for i in range(4): run(a, [rdW(0, i, 0), rdW(0, i, 1)])
    for s in range(kps, 4): a.e(rdA(0, s))
    S = Sched(); first = {}
    ecs = nst - (3 if nG == 4 else 1)
    for step in range(nst):
        c, sp = divmod(step, spc); buf = step & 1
        lastc = (sp == spc - 1)
        for i in range(4):
            ks, ti = setinfo(step, i)
            cz = '0' if ks == 0 else None
            pre = []
            if i == 0 and lastc and c < 9:
                pre.append(lambda a, c=c: (a.wait(vm=st['dma'][c+1]), a.e('s_barrier')))
            if i % 2 == 0:
                pre.append(lambda a, step=step, i=i: a.wait(lg=st['w'][(step, i+1)]))
            idx = S.add(f'v_mfma_f32_32x32x16_bf16 {ACC1(ti)}, {WB(buf,i)}, {X(ks)}, {cz or ACC1(ti)}', pre)
            if i == 0: first[step] = idx
            if ti == 0 and step < ecs: S.put(idx, [f'v_mfma_f32_16x16x32_bf16 {aCS}, {aSEL}, {WB(buf,i)}, {cz or aCS}'])
        if step + 1 < nst:
            rd = []
            if lastc: rd += [rdA(c+1, s) for s in range(kps)]
            k = len(rd)
            for i in range(4): rd += [rdW(step+1, i, 0), rdW(step+1, i, 1)]
            S.put(first[step], rd[:k+3]); S.put(first[step]+1, rd[k+3:7+(k>1)]); S.put(first[step]+2, rd[7+(k>1):])
            if nG == 4:
                if lastc: S.put(first[step]+3, [rdA(c+1, 1)])
                if sp == 0 and c > 0: S.put(first[step]+3, [rdA(c, 2), rdA(c, 3)])
            elif lastc: S.put(first[step]+3, [rdA(c+1, 2), rdA(c+1, 3)])
    kse = list(range(ecs*kps, 40))
    ex = []
    for n, ks in enumerate(kse):
        for h in range(2):
            ex.append(lambda a, n=n, ks=ks, h=h: st.__setitem__('ex', a.lg(f'ds_read_b64_tr_b16 v[{128+4*n+2*h}:{129+4*n+2*h}], v{vBR[0]} offset:{(9%4)*t.bslot + (ks-36)*16*t.pitch + h*4*t.pitch}')))
    b8 = 9*spc - 1
    mm = [lambda a: a.wait(lg=st['ex'])] + [f'v_mfma_f32_16x16x32_bf16 {aCS}, {aSEL}, v[{128+4*n}:{131+4*n}], {aCS}' for n in range(len(kse))]
    if nG == 4:
        S.put(first[b8]+3, ex[:3]); S.put(first[b8+1]+3, ex[3:]); S.put(first[b8+2], mm); st['cs_slot'] = first[b8+2] + 3; st['bar_slot'] = first[b8+3] + 2
    else:
        S.put(first[b8]+3, ex); S.put(first[b8+1]+2, mm); st['cs_slot'] = first[b8+2]; st['bar_slot'] = first[b8+2] + 2
    gaps = []
    for step in range(nst):
        if nG == 4: gaps += [(step, first[step]), (step, first[step]+2)] + ([(step, first[step]+3)] if step < opt('ncu', 6) else [])
        else: gaps += [(step, first[step]+k) for k in range(4)]
    gi = 0
    c0 = st['next_chunk']
    for c in range(c0, 10):
        ops = dma_ops(t, c, st)
        A = ops[1:5]; B = ops[6:-1]
        eA = (c-3)*spc if c >= 4 else 0
        eB = (c-2)*spc - 1 if c >= 4 else 0
        lo = max(0, (c - opt('la', 2) - 1)*spc + (1 if nG == 4 else 0)) if nG == 4 else 0
        for k, op in enumerate(A + B):
            e = max(eA if k < 4 else eB, lo)
            while gaps[gi][0] < e: gi += 1
            pre = [ops[0]] if k == 0 else ([ops[5]] if k == 4 else [])
            post = [ops[-1]] if k == 3 + len(B) else []
            g = gaps[gi][1]
            if pre: S.put(g - 1 if g > 0 else g, pre)
            if k == 0: st.setdefault('grp_start', {})[c] = (g - 1, pre[0])
            S.put(g, [op] + post); gi += 1
        assert gaps[gi-1][0] < c*spc - 1, (c, gaps[gi-1])
    return S, first, kps

def h_aug_x(tmp):
    p, q2 = tmp+4, tmp+5
    o = [cvtpk(p, vNM, vSDV), f'v_lshlrev_b32 v{tmp+6}, 16, v{p}', f'v_and_b32 v{tmp+7}, 0xffff0000, v{p}',
         f'v_sub_f32 v{tmp+6}, v{vNM}, v{tmp+6}', f'v_sub_f32 v{tmp+7}, v{vSDV}, v{tmp+7}', cvtpk(q2, tmp+6, tmp+7)]
    o += [f'v_mov_b32 v{tmp+k}, 0' for k in range(4)]
    o += [f's_mov_b32 s{sE+2}, 0x05040100\ns_mov_b32 exec_hi, 0\nv_perm_b32 v{tmp}, v{q2}, v{p}, s{sE+2}\nv_mov_b32 v{tmp+1}, v{p}\nv_lshrrev_b32 v{tmp+2}, 16, v{q2}\ns_mov_b32 exec_hi, -1']
    return o
def h_aug_w(st, i, tmp, vtb):
    b = tmp + 8 + 6*i
    rd = [lambda a: st['tb'].__setitem__(i, a.lg(f'ds_read2_b32 v[{b+4}:{b+5}], v{vtb} offset0:0 offset1:128'))]
    mk = [lambda a: a.wait(lg=st['tb'][i]), cvtpk(b, b+4, b+4), cvtpk(b+2, b+5, b+5), f'v_and_b32 v{b+1}, 0xffff0000, v{b}', f'v_mov_b32 v{b+3}, 0',
          f'v_sub_f32 v{b+1}, v{b+4}, v{b+1}', cvtpk(b+1, b+1, b+5)]
    mf = [f'v_mfma_f32_32x32x16_bf16 {ACC1(i)}, v[{b}:{b+3}], v[{tmp}:{tmp+3}], {ACC1(i)}']
    return rd, mk, mf
def h_fin(st, i, u):
    acc = 32 + 16*i + 8*u; o = []
    for k in range(8): o.append(f'v_max_f32 v{acc+k}, 0, v{acc+k}')
    for k in range(8): o.append(f'v_mul_f32 v{acc+k}, v{vR}, v{acc+k}')
    for k in range(8): o.append(f'v_mul_f32 v{acc+k}, v{acc+k}, v{acc+k}')
    for k in range(4): o.append(cvtpk(acc+k, acc+2*k, acc+2*k+1))
    if opt('nohst', 0): o.append(lambda a: st.__setitem__('hst', a.vm_issued))
    else: o.append(lambda a: st.__setitem__('hst', a.vm(f'buffer_store_dwordx4 v[{acc}:{acc+3}], v{vHO}, {srd(SWS)}, s{sH[i]} offen offset:{512*u} {opt("hsc", "sc1")}')))
    return o

class Rec:
    def __init__(self): self.ops = []; self.tok = {}
    def e(self, text):
        ls = L(text); i = 0
        while i < len(ls):
            j = i + 1
            if ls[i].startswith('s_cmp') or ls[i].startswith('s_bitcmp') or ls[i].startswith('v_cmp'):
                while j < len(ls) and not (ls[j].startswith('s_cselect') or ls[j].startswith('s_cbranch') or ls[j].startswith('v_cndmask')): j += 1
                while j < len(ls) and (ls[j].startswith('s_cselect') or ls[j].startswith('s_cbranch') or ls[j].startswith('v_cndmask')): j += 1
            self.ops.append('\n'.join(ls[i:j])); i = j
    def lg(self, text): self.ops.append(text)
    def vm(self, text, key='t'):
        self.ops.append(lambda a: self.tok.__setitem__(key, a.vm(text)))
def merge(main, other):
    out = []; n, m = len(main), len(other); k = 0
    for i, op in enumerate(main):
        out.append(op)
        while k < m and (k + 1) * n <= (i + 1) * m + m - 1 and k * n <= i * m: out.append(other[k]); k += 1
    return out + other[k:]

def touch_ops(t, lo, hi, q=188):
    n = hi - lo
    o = [f'v_mov_b32 v{q+2}, {OOB}']
    o += L(f'v_and_b32 v{q}, 3, v{vL}\ns_lshl_b32 s{sPC}, s{sC8}, 2\nv_add_u32 v{q}, s{sPC}, v{q}\nv_mul_u32_u24 v{q}, 640, v{q}\nv_lshrrev_b32 v{q+1}, 2, v{vL}\nv_add3_u32 v{q}, v{q}, v{q+1}, {lo}\nv_lshlrev_b32 v{q}, 7, v{q}')
    o += [f'v_cmp_gt_u32 vcc, {4*n}, v{vL}\nv_cndmask_b32 v{q}, v{q+2}, v{q}, vcc', f's_mul_i32 s{sPC}, s{sROW}, 1280']
    o += [f'buffer_load_dword v{vPF}, v{q}, {srd(SX)}, s{sPC} offen {opt("ntx", "")}']
    if t.nG == 4: o += L(f'v_lshrrev_b32 v{q}, 1, v{vL}\nv_and_b32 v{q+1}, 1, v{vL}')
    else: o += L(f'v_mov_b32 v{q}, v{vL}\nv_mov_b32 v{q+1}, 0')
    o += L(f'v_lshlrev_b32 v{q}, 4, v{q}\ns_and_b32 s{sPC}, s{sRB}, 3\ns_lshl_b32 s{sPC}, s{sPC}, 2\ns_add_u32 s{sPC}, s{sPC}, s{sW}\ns_add_u32 s{sPC}, s{sPC}, {64*lo}')
    o += L(f'v_add_u32 v{q}, s{sPC}, v{q}\nv_mul_u32_u24 v{q}, 0xd80, v{q}\nv_lshl_add_u32 v{q}, v{q+1}, 7, v{q}\ns_lshl_b32 s{sPC}, s{sG0}, 6')
    o += [f'v_cmp_gt_u32 vcc, {(8 if t.nG == 4 else 4)*n}, v{vL}\nv_cndmask_b32 v{q}, v{q+2}, v{q}, vcc']
    o += [f'buffer_load_dword v{vPF}, v{q}, {srd(SW1)}, s{sPC} offen {opt("ntw", "")}']
    assert n <= 8
    return o

def build_type(a, t):
    st = {'dma': {}, 'w2': {}, 'tb': {}}
    nG, nD = t.nG, t.nD
    prologue_t(a, t, st)
    ta, tb = opt('ta', 1), opt('tb', 6)
    if nG == 4:
        run(a, dma_ops(t, 0, st))
        d1 = dma_ops(t, 1, st)
        if tb > ta: run(a, touch_ops(t, ta, tb))
    stamp(a, 'p2')
    nonce_pub(a)
    stamp(a, 'p3')
    r = Rec()
    setup2(r, t); gen_D(r, t, 96); rot_ids(r)
    if nG == 4 and opt('twR', 1): gen_TW(r, 96)
    main = r.ops
    vSA, vFA, vFV = vT+3, vT+4, vT+5
    st['vL16d'] = 192
    pre = L(f's_lshl_b32 s{sT}, s{sRB}, 2\ns_add_u32 s{sT}, s{sT}, s{sW}\ns_lshl_b32 s{sT}, s{sT}, 9\ns_add_u32 s{sT}, s{sT}, {ST_OFF}')
    pre += L(f'v_and_b32 v{vSA}, 31, v{vL}\nv_lshl_add_u32 v{vSA}, v{vSA}, 4, s{sT}')
    pre += L(f'v_add_u32 v{vFA}, s{sTAU}, v{vL}\nv_min_u32 v{vFA}, 53, v{vFA}')
    pre += L(f's_lshl_b32 s{sT}, s{sC}, 7\ns_add_u32 s{sT}, s{sT}, {PF_OFF}\nv_lshlrev_b32 v{vFA}, 10, v{vFA}\nv_add_u32 v{vFA}, s{sT}, v{vFA}')
    pre += L(f's_mul_i32 s{sUS}, s{sC}, 54\ns_add_u32 s{sUS}, s{sUS}, s{sTAU}\ns_mul_i32 s{sUS}, s{sUS}, 5120\ns_add_u32 s{sUS}, s{sUS}, {P_OFF}')
    pre += [f's_cmp_ge_u32 s{sW}, 2\ns_cselect_b32 s{sT}, {OOB}, 0', f'v_add_u32 v192, s{sT}, v{vL16}']
    nonl = [f'v_mov_b32 v{vNON}, 0', lambda a: st.__setitem__('non', a.vm(f'global_load_dword v{vNON}, v{vNON}, s[{sDBG}:{sDBG+1}] sc1'))]
    st['next_chunk'] = 2
    main = main + pre
    if nG == 4:
        c3 = len(main) * opt('c3', 80) // 100
        run(a, main[:c3]); stamp(a, 'p4')
        run(a, merge(main[c3:], d1) + nonl)
    else:
        n = len(main); c1 = n * opt('s1', 45) // 100; c2 = n * opt('s2', 70) // 100
        run(a, dma_ops(t, 0, st))
        run(a, main[:c1])
        run(a, merge(main[c1:c2], pack_dma(1, st) + [lambda a: run(a, touch_ops(t, 2, 10))]) + nonl)
        stamp(a, 'p4')
        run(a, pack_reads(0, st))
        d1 = dma_ops(t, 1, st); p0 = pack_stores(0, st)
        run(a, merge(main[c2:], merge(d1, p0)))
        stamp(a, 'p5')
        run(a, pack_reads(1, st))
        run(a, merge(stats_loads(0, st) + stats_loads(1, st), pack_stores(1, st)))
        stamp(a, 'p6')
    stamp(a, 1)
    S, firstS, kps = pass1(a, t, st)
    class FK:
        def __getitem__(self, ks): return firstS[ks // kps] + (ks % kps) * nG
    first = FK()
    l = lambda ks: first[ks] + nG - 1
    b1tab = L(f'v_lshlrev_b32 v{vT}, 16, v{vT+7}\nv_and_b32 v{vT+1}, 0xffff0000, v{vT+7}\nv_lshlrev_b32 v{vT+2}, 3, v{vL}\nv_add_u32 v{vT+2}, {TABB}, v{vT+2}\nds_write_b64 v{vT+2}, v[{vT}:{vT+1}]')
    S.spread(b1tab, first[3], l(3));
    if nG == 4: S.put(l(opt('kn', 11)), [lambda a: nonce_check(a, st['non'])])
    if opt('kb', 3) >= 0 and tb < 10 and nG == 4: S.spread(touch_ops(t, tb, 10, 184), l(opt('kb', 3)), l(opt('kb', 3) + 3))
    if nG == 2:
        sp0, sp1 = stats_proc(0, st), stats_proc(1, st)
        S.put(l(1), [lambda a: nonce_check(a, st['non'])])
        S.spread(sp0[:-1], first[4], l(6)); S.spread(sp1[:-1], first[7], l(9))
        S.put(l(opt('kf', 9)), [sp0[-1], sp1[-1], pack_flag(0, st), pack_flag(1, st)])
    pfl = f'buffer_load_dword v{vFV}, v{vFA}, {srd(SWS)}, 0 offen sc1'
    stl = f'buffer_load_dwordx4 v[{vST}:{vST+3}], v{vSA}, {srd(SWS)}, 0 offen sc1'
    S.spread(load_F(), l(13), l(16))
    if nG == 2:
        r2 = Rec(); gen_TW(r2, 76); S.spread(r2.ops, first[12], l(30))
    kp = opt('kp', 29); kq = opt('kq', 32)
    S.spread(L(f's_bfe_u32 s{sRHO}, s2, 0x30003\ns_mul_i32 s{sRHO}, s{sRHO}, {opt("rho", 0)}\ns_lshr_b32 s{sRHO}, s{sRHO}, 3\ns_mul_i32 s{sW2o}, s{sRHO}, 5120\ns_add_u32 s{sW2o}, s{sW2o}, s{sUS}\ns_add_u32 s{sWE}, s{sUS}, {13*5120}'), l(kp-3), l(kp-1))
    early = opt('early', 1)
    S.put(l(kp), [lambda a: st.__setitem__('stl', a.vm(stl))])
    S.put(l(kp if early else 38), [lambda a: st.__setitem__('pfl', a.vm(pfl))])
    pchk = lambda a: (a.wait(vm=st['pfl']), check_loop(a, pfl, vFV, 14, sPC), stamp(a, 'pc'))
    S.put(l(kq), [pchk if early else (lambda a: a.wait(vm=st['stl']))])
    allw = []
    for s_ in range(14): allw += w2_load_ops(s_, st, range(5) if s_ != 5 else range(4))
    allw.insert(29 + 15, w2_load_ops(5, st, [4])[0])
    if opt('touchw', 0):
        tw = L(f's_bfe_u32 s{sT}, s2, 0x30003\nv_lshl_add_u32 v{vFA}, v{vL}, 3, s{sT}\nv_lshlrev_b32 v{vFA}, 7, v{vFA}')
        tw += [f'buffer_load_dword v{vPF}, v{vFA}, {srd(SWS)}, s{sUS} offen sc1']
        S.put(l(kq), tw)
    n0 = 0
    for ks in range(kq + 1, 40 if early else 0):
        S.put(first[ks], [allw[n0]]); n0 += 1
        if opt('ne', 2) == 2: S.put(first[ks] + nG // 2, [allw[n0]]); n0 += 1
    tmp = 160 if nG == 4 else 64
    vTB = [140, 141, 142, 143]
    e1 = [lambda a: check_loop(a, stl, vST+3, 64, sPC)]
    e1 += L(f's_lshl_b32 s{sE+1}, s{sW}, 7\ns_add_u32 s{sE+1}, s{sE+1}, {TABR}\nv_and_b32 v{vT+1}, 31, v{vL}\nv_lshl_add_u32 v{vT}, v{vT+1}, 2, s{sE+1}')
    e1 += [f'ds_write_b32 v{vT}, v{vR}', f'v_lshrrev_b32 v{vT+6}, 5, v{vL}']
    for i in range(nG):
        e1 += [f's_add_u32 s{sE}, s{sW}, {i}\ns_and_b32 s{sE}, s{sE}, {nG-1}\ns_lshl_b32 s{sE}, s{sE}, 7\ns_add_u32 s{sE}, s{sE}, {TABC}', f'v_lshl_add_u32 v{vTB[i]}, v{vT+1}, 2, s{sE}']
    e1 += h_aug_x(tmp)
    S.spread(e1, first[kq+1], l(36))
    e2 = L(f'v_accvgpr_read_b32 v{vT}, a196\nv_accvgpr_read_b32 v{vT+1}, a197')
    e2 += [f's_mov_b64 exec, 0xffff\nds_write2_b32 v{vTB[0]}, v{vT}, v{vT+1} offset0:0 offset1:16\ns_mov_b64 exec, -1', lambda a: st.__setitem__('csw', a.lg_issued)]
    S.put(st['cs_slot'], e2)
    S.slots[st['bar_slot']]['pre'].append(lambda a: (a.wait(lg=st['csw']), a.e('s_barrier')))
    aw = [h_aug_w(st, i, tmp, vTB[i]) for i in range(nG)]
    S.put(st['bar_slot'], [x for i in range(nG) for x in aw[i][0]])
    S.spread([x for i in range(nG) for x in aw[i][1]], min(st['bar_slot'] + 2, l(39)), l(39))
    for ks in range(40): S.slots[first[ks]]['pre'].insert(0, lambda a, ks=ks: stamp(a, f'k{ks}'))
    S.emit(a)
    for i in range(nG): run(a, aw[i][2])
    stamp(a, 3)
    vD = vAR[0]
    P2 = lambda d, h: f'v[{128+32*d+16*h}:{143+32*d+16*h}]'
    NB = 4
    DB = lambda ks, d: f'v[{96+4*((ks*nD+d)%NB)}:{99+4*((ks*nD+d)%NB)}]'
    a.e(f'v_add_u32 v{vD}, {t.DREG}, v{vL16}')
    dt = {}
    def rdD(ks, d):
        def op(a): dt[(ks, d)] = a.lg(f'ds_read_b128 {DB(ks,d)}, v{vD} offset:{(ks*nD+d)*1024}')
        return op
    ahead = 2 if nD == 1 else 1
    for ks in range(ahead):
        for d in range(nD): rdD(ks, d)(a)
    S = Sched(); f2 = {}
    for ks in range(20):
        for d in range(nD):
            for h in range(2):
                pre = [lambda a, ks=ks, d=d: a.wait(lg=dt[(ks, d)])] if h == 0 else []
                idx = S.add(f'v_mfma_f32_32x32x16_bf16 {P2(d,h)}, {X(ks+20*h)}, {DB(ks,d)}, {"0" if ks == 0 else P2(d,h)}', pre)
                if d == 0 and h == 0: f2[ks] = idx
                if h == 0 and ks + ahead < 20: S.put(idx, [rdD(ks+ahead, d)])
    nm = len(S.slots)
    ops = []
    for i in range(nG): ops += [lambda a, i=i: stamp(a, f'f{i}')] + h_fin(st, i, 0) + h_fin(st, i, 1)
    per = opt('per', 14 if nG == 4 else 10)
    lasti = S.pack(ops, 0, per)
    if not early: S.put(min(lasti + 1, nm - 1) if opt('pcl', 1) else 0, [pchk])
    na = n0 + (opt('na', 3) if early or not opt('pcl', 1) else 0); n1 = (na + opt('nb', 9)) if nG == 4 else opt('n1S', 40); nh = na + opt('nh', 8) if nG == 2 else -1
    if na > n0: S.spread(allw[n0:na], 1, lasti)
    def hflag(a):
        a.wait(vm=st['hst']); set_flag(a, 0, 193); stamp(a, 'hf')
    for n in range(na, n1):
        want = lasti + 1 + (n - na) * (nm - 1 - lasti) // max(1, n1 - na)
        if n >= 29: want = max(want, f2[5*((n-29)//5) + 4] + 2*nD)
        if n == nh: S.put(min(want, nm - 1), [hflag])
        S.put(min(want, nm - 1), [allw[n]])
    S.emit(a)
    stamp(a, 4)
    npre2 = opt('npre2', 45 if nG == 4 else 50)
    later = allw[n1:npre2]; st['inp2'] = allw[npre2:]
    rr = 96
    a.e(f'v_lshl_add_u32 v{vT}, v{vT+6}, 4, s{sE+1}')
    for jq in range(4): rt_ = a.lg(f'ds_read_b128 v[{rr+4*jq}:{rr+4*jq+3}], v{vT} offset:{32*jq}')
    a.e(f'v_and_b32 v{vT+1}, 1, v{vL}\nv_cmp_eq_u32 vcc, 0, v{vT+1}\nv_cndmask_b32 v{vT+1}, 1.0, -1.0, vcc')
    vXW, vXR_, vUS = vT+2, vT+3, vT+4
    a.e(f'v_and_b32 v{vT+5}, 31, v{vL}\nv_lshlrev_b32 v{vT+5}, 2, v{vT+5}\nv_lshl_add_u32 v{vXW}, v{vT+6}, 8, v{vT+5}\ns_lshl_b32 s{sE}, s{sW}, 11\nv_add_u32 v{vXW}, s{sE}, v{vXW}')
    a.e(f's_lshl_b32 s{sE}, s{sW}, 9\nv_lshl_add_u32 v{vXR_}, v{vL}, 2, s{sE}')
    a.e(f'v_lshrrev_b32 v{vT+5}, 4, v{vL}\ns_mov_b32 s{sE}, 81920\nv_mul_lo_u32 v{vT+5}, s{sE}, v{vT+5}\nv_and_b32 v{vUS}, 15, v{vL}\nv_lshl_add_u32 v{vUS}, v{vUS}, 4, v{vT+5}')
    DR = [(160, 176)] if nG == 4 else [(64, 80), (112, 144)]
    li = [0]
    def drip(a, n=1):
        for _ in range(n if (nG == 2 or st.get('hfdone')) else 0):
            if li[0] < len(later): later[li[0]](a); li[0] += 1
    for d in range(nD):
        lo, hi = 128 + 32*d, 144 + 32*d
        for j in range(16):
            a.e(f'v_fma_f32 v{lo+j}, v{vT+1}, v{hi+j}, v{lo+j}')
            if j % 4 == 3: drip(a)
        if d == 0: a.wait(lg=rt_)
        for j in range(16):
            a.e(f'v_mul_f32 v{lo+j}, v{rr+j}, v{lo+j}')
            if j % 4 == 3: drip(a)
        for j in range(8): a.e(cvtpk(lo+j, lo+2*j, lo+2*j+1))
        D1, D2 = DR[d]
        if d == 0: stamp(a, 'u0')
        a.e(f'v_mfma_f32_32x32x16_bf16 v[{D1}:{D1+15}], {aF(0)}, v[{lo}:{lo+3}], 0')
        a.e(f'v_mfma_f32_32x32x16_bf16 v[{D2}:{D2+15}], {aF(2)}, v[{lo}:{lo+3}], 0')
        a.e(f'v_mfma_f32_32x32x16_bf16 v[{D1}:{D1+15}], {aF(1)}, v[{lo+4}:{lo+7}], v[{D1}:{D1+15}]')
        a.e(f'v_mfma_f32_32x32x16_bf16 v[{D2}:{D2+15}], {aF(3)}, v[{lo+4}:{lo+7}], v[{D2}:{D2+15}]')
        drip(a, 3)
    for d in range(nD):
        D1, D2 = DR[d]
        for j in range(0, 16, 2):
            a.e(f'v_permlane16_swap_b32 v{D1+j}, v{D1+j+1}\nv_permlane16_swap_b32 v{D2+j}, v{D2+j+1}')
        for j in range(0, 16, 2):
            a.e(f'v_sub_f32 v{D1+j}, v{D1+j}, v{D2+j+1}\nv_add_f32 v{D2+j}, v{D2+j}, v{D1+j+1}')
            a.e(cvtpk(D1+j, D1+j, D2+j))
            a.lg(f'ds_write_b32 v{vXW}, v{D1+j} offset:{XCH + d*8192 + (8*(j>>2)+(j&3))*64}')
            drip(a)
    stamp(a, 'u1')
    if nG == 4: hflag(a); st['hfdone'] = True; drip(a, 2)
    a.wait(lg=a.lg_issued); a.e('s_barrier')
    stamp(a, 'u2')
    toks = []
    drip(a, 2)
    for d in range(nD):
        for i in range(2):
            b = 128 + 8*d + 4*i
            a.lg(f'ds_read2st64_b32 v[{b}:{b+1}], v{vXR_} offset0:{32*d+i} offset1:{32*d+8+i}')
            toks.append(a.lg(f'ds_read2st64_b32 v[{b+2}:{b+3}], v{vXR_} offset0:{32*d+16+i} offset1:{32*d+24+i}'))
    a.e(f's_lshl_b32 s{sE}, s{sW}, 7\ns_add_u32 s{sE}, s{sE}, s{sRB}\ns_mul_i32 s{sE}, s{sE}, 5120\ns_lshl_b32 s{sE+1}, s{sDT}, 8\ns_add_u32 s{sE}, s{sE}, s{sE+1}\ns_add_u32 s{sE}, s{sE}, {U_OFF}')
    a.e(f's_add_u32 s{sE+1}, s{sE}, {4*81920}')
    for d in range(nD):
        if d == 1:
            a.e(f's_cmp_ge_u32 s{sDT}, 19\ns_cselect_b32 s{sE+2}, {OOB}, 0\nv_add_u32 v{vUS}, s{sE+2}, v{vUS}')
        for i in range(2):
            b = 128 + 8*d + 4*i
            a.wait(lg=toks[2*d+i])
            ust = a.vm(f'buffer_store_dwordx4 v[{b}:{b+3}], v{vUS}, {srd(SWS)}, s{sE+i} offen offset:{256*d} sc1')
    stamp(a, 'u3')
    stamp(a, 5)
    phase2(a, st, ust, later[li[0]:], nG == 4 and not opt('twR', 1))

RED = 65536
def phase2(a, st, ust, later, doTW):
    t = 2
    q = 144
    r = Rec()
    if doTW: gen_TW(r, q)
    r.e(f's_mul_i32 s{sGO}, s{sHB[3]}, 1280')
    vHJ = [184, 185, 186, 187]; vHD = [188, 189, 190, 191]
    for j in range(4):
        r.e(f's_and_b32 s{sT}, s{sHB[j]}, 1024\ns_and_b32 s{sHB[j]}, s{sHB[j]}, 63\ns_mul_i32 s{sHB[j]}, s{sHB[j]}, 54\ns_add_u32 s{sHB[j]}, s{sHB[j]}, s{sTAU}\ns_lshl_b32 s{sHB[j]}, s{sHB[j]}, 11\ns_add_u32 s{sHB[j]}, s{sHB[j]}, s{sT}')
        r.e(f'v_add_u32 v{vHJ[j]}, s{sHB[j]}, v{vL16}\nv_add_u32 v{vHD[j]}, s{sHB[j]}, v192')
    r.e(f's_lshl_b32 s{sKO[0]}, s{sRHO}, 11\ns_movk_i32 s{sKO[13]}, {13*2048}')
    for k in range(1, 13):
        r.e(f's_add_u32 s{sKO[k]}, s{sKO[k-1]}, 2048\ns_cmp_eq_u32 s{sKO[k]}, s{sKO[13]}\ns_cselect_b32 s{sKO[k]}, 0, s{sKO[k]}')
    vG4, vG2, vB4 = t+8, t+9, t+10
    r.e(f's_mul_i32 s{sCW}, s{sC}, 160\ns_add_u32 s{sGO}, s{sGO}, s{sCW}\ns_mov_b32 s{sT}, 81920')
    r.e(f'v_and_b32 v{q}, 15, v{vL}\nv_mul_lo_u32 v{q}, s{sT}, v{q}\nv_lshrrev_b32 v{q+1}, 4, v{vL}\nv_lshl_add_u32 v{vG4}, v{q+1}, 4, v{q}\nv_lshl_add_u32 v{vG2}, v{q+1}, 3, v{q}')
    r.e(f'v_lshl_add_u32 v{vB4}, v{q+1}, 4, s{sCW}\nv_lshl_add_u32 v{q+2}, v{q+1}, 3, s{sCW}')
    xr = 160; br = 172
    r.ops += [f'buffer_load_dwordx4 v[{xr}:{xr+3}], v{vG4}, {srd(SX)}, s{sGO} offen', f'buffer_load_dwordx4 v[{xr+4}:{xr+7}], v{vG4}, {srd(SX)}, s{sGO} offen offset:64',
              f'buffer_load_dwordx2 v[{xr+8}:{xr+9}], v{vG2}, {srd(SX)}, s{sGO} offen offset:128',
              f'global_load_dwordx4 v[{br}:{br+3}], v{vB4}, s[{sB2}:{sB2+1}]', f'global_load_dwordx4 v[{br+4}:{br+7}], v{vB4}, s[{sB2}:{sB2+1}] offset:64']
    r.vm(f'global_load_dwordx2 v[{br+8}:{br+9}], v{q+2}, s[{sB2}:{sB2+1}] offset:128', 'xb')
    r.e(f's_sub_u32 s{sT}, 32, s{sT1}\ns_min_u32 s{sT}, s{sT}, s{sT1}\ns_and_b32 s{sT}, s{sT}, 15')
    r.e(f's_lshr_b32 s{sT+1}, s{sT}, 2\ns_lshl_b32 s{sT+1}, s{sT+1}, 1\ns_and_b32 s{sT+2}, s{sT}, 3\ns_lshl_b32 s{sT+2}, s{sT+2}, 3\ns_add_u32 s{sT+1}, s{sT+1}, s{sT+2}')
    r.e(f's_lshr_b32 s{sT+2}, s{sW}, 1\ns_add_u32 s{sT+1}, s{sT+1}, s{sT+2}')
    r.e(f's_and_b32 s{sT+2}, s{sW}, 1\ns_mul_i32 s{sT+2}, s{sT+2}, 96\ns_add_u32 s{sT+1}, s{sT+1}, s{sT+2}')
    r.e(f's_lshl_b32 s{sT+1}, s{sT+1}, 2\ns_lshr_b32 s{sT+2}, s{sT1}, 4\ns_lshl_b32 s{sT+2}, s{sT+2}, 1\ns_add_u32 s{sT+1}, s{sT+1}, s{sT+2}')
    vF1, vF2, vFV = t, t+1, t+2
    r.e(f'v_lshrrev_b32 v{q}, 1, v{vL}\nv_lshlrev_b32 v{q}, 7, v{q}\nv_and_b32 v{q+1}, 1, v{vL}\nv_add3_u32 v{q}, v{q}, v{q+1}, s{sT+1}')
    r.e(f'v_lshlrev_b32 v{vF1}, 7, v{q}\nv_add_u32 v{vF1}, {F_OFF}, v{vF1}')
    r.e(f's_sub_u32 s{sTS1}, 32, s{sT1}\ns_and_b32 s{sTS1}, s{sTS1}, 31\ns_cmp_ge_u32 s{sC}, 4\ns_cselect_b32 s{sTS1}, s{sTS1}, s{sT1}')
    r.e(f's_mul_i32 s{sT}, s{sC}, 5\ns_sub_u32 s{sT+1}, 35, s{sT}\ns_sub_u32 s{sT}, s{sT}, 1\ns_max_i32 s{sT}, s{sT}, 0')
    r.e(f's_cmp_ge_u32 s{sC}, 4\ns_cselect_b32 s{sT}, s{sT+1}, s{sT}')
    r.e(f'v_and_b32 v{q}, 7, v{vL}\nv_min_u32 v{q}, 5, v{q}\nv_add_u32 v{q}, s{sT}, v{q}\nv_min_u32 v{q}, 19, v{q}')
    r.e(f'v_cmp_le_u32 vcc, 10, v{q}\nv_cndmask_b32 v{q+2}, 0, 1, vcc')
    r.e(f'v_mul_u32_u24 v{q+3}, 10, v{q+2}\nv_sub_u32 v{q}, v{q}, v{q+3}\nv_sub_u32 v{q+3}, 6, v{q+2}\nv_add_u32 v{q+1}, v{q}, v{q+3}\nv_lshrrev_b32 v{q+1}, 1, v{q+1}\nv_min_u32 v{q}, v{q}, v{q+1}')
    r.e(f'v_lshl_add_u32 v{q}, v{q}, 5, v{q+2}\nv_and_b32 v{q+1}, 24, v{vL}\nv_add_u32 v{q}, v{q}, v{q+1}')
    r.e(f's_lshl_b32 s{sT}, s{sW}, 3\ns_lshr_b32 s{sT+2}, s{sTS1}, 3\ns_add_u32 s{sT}, s{sT}, s{sT+2}\nv_lshl_add_u32 v{q}, v{q}, 2, s{sT}')
    r.e(f'v_lshlrev_b32 v{vF2}, 7, v{q}\nv_add_u32 v{vF2}, {F_OFF+4}, v{vF2}\nv_lshrrev_b32 v{q+1}, 4, v{vL}')
    vUO = [t+3+k for k in range(5)]
    r.e(f'v_and_b32 v{q}, 15, v{vL}\ns_mul_i32 s{sT}, s{sC}, 80\nv_and_b32 v{q+4}, 12, v{vL}\nv_add3_u32 v{q+4}, v{q+4}, v{q}, s{sT}\nv_add_u32 v{q}, s{sT}, v{q}')
    r.e(f's_movk_i32 s{sT+1}, 5120\nv_mul_u32_u24 v{q+1}, s{sT+1}, v{q+1}')
    r.e(f's_cmp_ge_u32 s{sC}, 4\ns_cselect_b32 s{sT}, -1, 0\ns_cselect_b32 s{sT+1}, 640, -1')
    for ct in range(5):
        if ct < 4: r.e(f'v_add_u32 v{q+2}, {32*(ct>>1)+4*(ct&1)}, v{q+4}')
        else: r.e(f'v_add_u32 v{q+2}, 64, v{q}')
        r.e(f'v_xor_b32 v{q+2}, s{sT}, v{q+2}\nv_add_u32 v{q+2}, s{sT+1}, v{q+2}\nv_lshl_add_u32 v{vUO[ct]}, v{q+2}, 4, v{q+1}')
        if ct == 0: r.e(f'v_mov_b32 v{q+3}, {OOB}\nv_cmp_gt_i32 vcc, 0, v{q+2}\nv_cndmask_b32 v{vUO[0]}, v{vUO[0]}, v{q+3}, vcc')
    r.e(f's_lshl_b32 s{sUo}, s{sTS1}, 4\ns_lshl_b32 s{sT}, s{sW}, 2\ns_add_u32 s{sUo}, s{sUo}, s{sT}\ns_mul_i32 s{sUo}, s{sUo}, 5120\ns_add_u32 s{sUo}, s{sUo}, {U_OFF}')
    vPW = [t+11, t+12, t+13]; vPR = 0
    for j in range(3):
        r.e(f's_add_u32 s{sT}, s{sW}, {1+j}\ns_and_b32 s{sT}, s{sT}, 3\ns_mul_i32 s{sT}, s{sT}, 15360\ns_add_u32 s{sT}, s{sT}, {RED + j*5120}\nv_add_u32 v{vPW[j]}, s{sT}, v{vL16}')
    r.e(f's_mul_i32 s{sT}, s{sW}, 15360\ns_add_u32 s{sT}, s{sT}, {RED}\nv_add_u32 v{vPR}, s{sT}, v{vL16}')
    hl = f'buffer_load_dword v{vFV}, v{vF1}, {srd(SWS)}, 0 offen sc1'
    nl = max(0, len(later) - opt('nlast', 6))
    run(a, merge(r.ops, later[:nl]))
    ini = [lambda a: a.wait(vm=r.tok['xb']), f's_mov_b32 s{sT}, 0x05040100\ns_mov_b32 s{sT+1}, 0x07060302']
    for ct in range(5):
        b = 16 + 60 + 4*ct
        for k in range(2):
            xs = xr + (4*(ct >> 1) + 2*(ct & 1) + k if ct < 4 else 8 + k); bs = xs - xr + br
            ini += L(f'v_perm_b32 v{b+2*k}, v{bs}, v{xs}, s{sT}\nv_perm_b32 v{b+2*k+1}, v{bs}, v{xs}, s{sT+1}')
    for k in range(20): ini.append(f'v_dot2_f32_bf16 v{76+k}, v{76+k}, s{sONES}, 0')
    a.e(f'v_mov_b32 v{vL}, v{vL16}'); st['vW'] = vL
    a.e('s_mov_b64 exec, 0x3ff')
    tk = a.vm(hl)
    a.e('s_mov_b64 exec, -1')
    run(a, merge(ini, later[nl:]))
    stamp(a, 6)
    a.wait(vm=tk)
    set_flag(a, 1, 193)
    check_loop(a, hl, vFV, 10, sPC)
    stamp(a, 7)
    ht = {}
    def hload(slot, j):
        def op(a):
            vo = vHD[j] if slot == 13 else vHJ[j]
            ht[(slot, j)] = a.vm(f'buffer_load_dwordx4 {HF(pos[(slot, j)])}, v{vo}, {srd(SWS)}, s{sKO[slot]} offen sc1')
        return op
    NE = opt('NE', 9)
    order = [(s_, j) for s_ in range(NE) for j in range(4)] + [(s_, j) for j in range(4) for s_ in range(NE, 14)]
    pos = {k: n for n, k in enumerate(order)}
    for j in range(4): hload(0, j)(a)
    NE = opt('NE', 9)
    order = [(s_, j) for s_ in range(NE) for j in range(4)] + [(s_, j) for j in range(4) for s_ in range(NE, 14)]
    pos = {k: n for n, k in enumerate(order)}
    hp = 4
    while hp < RING: hload(*order[hp])(a); hp += 1
    wq = list(st['inp2'])
    S = Sched(); f = {}; g = {}
    def group(s_, j):
        nonlocal hp
        n = pos[(s_, j)]
        for ct in range(5):
            pre = [lambda a: a.wait(vm=max(ht[(s_, j)], max(st['w2'][(s_, c_)] for c_ in range(5))))] if ct == 0 and not opt('nowait2', 0) else []
            c0 = '0' if (s_ == 0 and j < 3) else ACC2(ct, j)
            idx = S.add(f'v_mfma_f32_16x16x32_bf16 {ACC2(ct,j)}, {W2(s_,ct)}, {HF(n)}, {c0}', pre)
            if ct == 0: f[(s_, j)] = idx
        if hp < 56: S.put(idx, [hload(*order[hp])]); hp += 1
        if wq and n >= opt('w0', 0): S.put(idx - 2, [wq.pop(0)])
    for s_ in range(NE):
        for j in range(4): group(s_, j)
    ul = f'buffer_load_dword v{vFV}, v{vF2}, {srd(SWS)}, 0 offen sc1'
    ku = opt('ku', NE - 4)
    S.put(f[(ku, 0)] + 1, [lambda a: (a.e('s_mov_b32 exec_hi, 0'), st.__setitem__('ul', a.vm(ul)), a.e('s_mov_b32 exec_hi, -1'))])
    S.put(f[(ku + 3, 0)] + 1, [lambda a: (a.wait(vm=st['ul']), check_loop(a, ul, vFV, 32, sPC))])
    fl = sorted(f.values())
    i3 = fl.index(f[(ku + 3, 1)])
    st['uput'] = True
    def ustep(j):
        for ct in range(5):
            pre = [lambda a: a.wait(vm=st['uf'])] if ct == 0 else []
            S.add(f'v_mfma_f32_16x16x32_bf16 {ACC2(ct,j)}, {UF(ct)}, a[{aTW+4*j}:{aTW+4*j+3}], {ACC2(ct,j)}', pre)
    def wr(j, at, step=1):
        for ct in range(5): S.put(at + step*ct, [f'ds_write_b128 v{vPW[j]}, {ACC2(ct,j)} offset:{ct*1024}'])
    for j in range(4):
        for s_ in range(NE, 14): group(s_, j)
        g[j] = f[(NE, j)]
        if j == 1: ustep(0)
        if j >= 1: ustep(j)
    wr(0, g[2] + 2, 2); wr(1, g[2] + 13, 2); wr(2, g[3] + 3)
    fl = sorted(f.values())
    for ct in range(5):
        S.put(fl[i3 + ct] + 1, [lambda a, ct=ct: st.__setitem__('uf', a.vm(f'buffer_load_dwordx4 {UF(ct)}, v{vUO[ct]}, {srd(SWS)}, s{sUo} offen sc1'))])
    PB = lambda jj, ct: 196 + 20*jj + 4*ct
    S.put(g[3] + 10, [lambda a: (a.wait(lg=a.lg_issued), a.e('s_barrier'))])
    rd = []
    for ct in range(5):
        for jj in range(3):
            rd.append(lambda a, jj=jj, ct=ct: st.__setitem__(('pr', ct), a.lg(f'ds_read_b128 v[{PB(jj,ct)}:{PB(jj,ct)+3}], v{vPR} offset:{jj*5120+ct*1024}')))
    S.spread(rd, g[3] + 11, g[3] + 18)
    nl = len(S.slots)
    sm = []
    for ct in range(5):
        sm.append(lambda a, ct=ct: a.wait(lg=st[('pr', ct)]))
        for k in range(4): sm.append(f'v_add_f32 v{PB(0,ct)+k}, v{PB(0,ct)+k}, v{PB(1,ct)+k}')
        for k in range(4): sm.append(f'v_add_f32 v{PB(0,ct)+k}, v{PB(0,ct)+k}, v{PB(2,ct)+k}')
    S.spread(sm, g[3] + 19, nl - 1)
    for s_ in range(NE): S.slots[f[(s_, 0)]]['pre'].insert(0, lambda a, s_=s_: stamp(a, f'e{s_}'))
    for j in range(4): S.slots[g[j]]['pre'].insert(0, lambda a, j=j: stamp(a, f'l{j}'))
    S.emit(a)
    stamp(a, 8)
    o = 96
    for ct in range(5):
        b = 76 + 4*ct
        for k in range(4): a.e(f'v_add_f32 v{b+k}, v{b+k}, v{PB(0,ct)+k}')
        a.e(cvtpk(o+2*ct, b, b+1)); a.e(cvtpk(o+2*ct+1, b+2, b+3))
        ost = opt('ost', '')
        if ct == 1: a.vm(f'buffer_store_dwordx4 v[{o}:{o+3}], v{vG4}, {srd(SOUT)}, s{sGO} offen {ost}')
        if ct == 3: a.vm(f'buffer_store_dwordx4 v[{o+4}:{o+7}], v{vG4}, {srd(SOUT)}, s{sGO} offen offset:64 {ost}')
        if ct == 4: a.vm(f'buffer_store_dwordx2 v[{o+8}:{o+9}], v{vG2}, {srd(SOUT)}, s{sGO} offen offset:128 {ost}')
    if DBG == 3:
        a.wait_all()
        le = label('dbgskip')
        a.e(f's_memrealtime s[{sT+1}:{sT+2}]\ns_waitcnt lgkmcnt(0)')
        a.e(f's_cmp_lg_u32 s{sW}, 0\ns_cbranch_scc1 {le}')
        a.e(f's_cmp_eq_u32 s2, {opt("wgA", 8)}\ns_cselect_b32 s{sT}, 4, 0\ns_cmp_eq_u32 s2, {opt("wgB", 232)}\ns_cselect_b32 s{sT}, 32, s{sT}\ns_cmp_eq_u32 s{sT}, 0\ns_cbranch_scc1 {le}')
        for k in range(1, 7): a.e(f's_sub_u32 s{sT+3}, s{sTS+2*k}, s{sTS}\nv_mov_b32 v{15+k}, s{sT+3}')
        a.e(f's_sub_u32 s{sT+3}, s{sT+1}, s{sTS}\nv_mov_b32 v22, s{sT+3}\nv_mov_b32 v2, s{sT}\ns_mov_b64 exec, 1')
        a.e(f'global_store_dwordx4 v2, v[16:19], s[{sDBG}:{sDBG+1}]\nglobal_store_dwordx3 v2, v[20:22], s[{sDBG}:{sDBG+1}] offset:16')
        a.e(f'{le}:')
    elif DBG:
        a.wait_all()
        a.e(f'{"s_memtime" if DBG == 2 else "s_memrealtime"} s[{sT+1}:{sT+2}]\ns_waitcnt lgkmcnt(0)')
        for k in range(9): a.e(f'v_mov_b32 v{16+k}, s{sTS+2*k}')
        a.e(f'v_mov_b32 v25, s{sT+1}\nv_mov_b32 v26, 0\nv_mov_b32 v27, 0')
        a.e(f's_lshl_b32 s{sT}, s2, 2\ns_add_u32 s{sT}, s{sT}, s{sW}\ns_lshl_b32 s{sT}, s{sT}, 6\ns_add_u32 s{sT}, s{sT}, {TS_OFF}')
        a.e(f'v_mov_b32 v2, 0\ns_mov_b64 exec, 1')
        for k in range(3): a.e(f'buffer_store_dwordx4 v[{16+4*k}:{19+4*k}], v2, {srd(SWS)}, s{sT} offen offset:{16*k}')
    a.e('s_endpgm')

def build():
    a = Asm(); prologue(a)
    outs = [a]
    for nG in (4, 2):
        b = a.fork()
        if nG == 2: b.e('L_S:')
        build_type(b, T(nG)); outs.append(b)
    lines = []
    for o in outs: lines += o.finish()
    return lines

hdr = open('cdna_kernels/%s.s.ref' % NAME).read().split('; Override launch')[0]
lines = build()
with open(sys.argv[1], 'w') as f:
    f.write(hdr)
    f.write(f'; @launch grid=(256,1,1) block=(256,1,1) lds={LDS_BYTES}\n')
    f.write('.amdgcn_target "amdgcn-amd-amdhsa--gfx950"\n.text\n')
    f.write(f'.globl {NAME}_kernel\n.p2align 8\n.type {NAME}_kernel,@function\n{NAME}_kernel:\n')
    for l in lines: f.write(('' if l.endswith(':') else '    ') + l + '\n')
    f.write('L_end:\n    s_endpgm\n')
    f.write('.p2align 8\n.type L_ftab,@object\nL_ftab:\n')
    tb = F_table()
    for i in range(0, len(tb), 8): f.write('.long ' + ', '.join('0x%08x' % x for x in tb[i:i+8]) + '\n')
    f.write('.fill 8192, 4, 0\n')
    f.write(f'''.section .rodata,"a"
.p2align 6
.amdhsa_kernel {NAME}_kernel
  .amdhsa_next_free_vgpr 512
  .amdhsa_next_free_sgpr 102
  .amdhsa_accum_offset 256
  .amdhsa_group_segment_fixed_size 0
  .amdhsa_kernarg_size 104
  .amdhsa_user_sgpr_count 2
  .amdhsa_user_sgpr_kernarg_segment_ptr 1
  .amdhsa_system_sgpr_workgroup_id_x 1
.end_amdhsa_kernel
''')
print('instructions:', len(lines))
```

```python
import sys, struct, copy, os
from asmlib import Asm
NAME = 'parallel_sum__spectral_fnet__dense_activation_squared_relu__prompt'
DBG = int(sys.argv[2]) if len(sys.argv) > 2 else 0
OPT = dict(kv.split('=') for kv in sys.argv[3:])
def opt(k, d): return type(d)(OPT.get(k, d))

H_OFF = 0; U_OFF = 0x6C0000; P_OFF = 0x940000; ST_OFF = 0xB5C000; F_OFF = 0xB68000; TS_OFF = 0xB88000; PF_OFF = 0xBA0000; HF_OFF = 0xBB0000; WS_END = 0xBD0000
OOB = 0x40000000
ARING = 0; BBASE = 65536; AUX = 139264; TAB = 161792; TABC = TAB; TABB = TAB + 512; TABR = TAB + 1024
XCH = 0
RED_PITCH = 336; RED_WAVE = 64 * RED_PITCH
LDS_BYTES = 163840
SX, SW1, SW2, SWS, SOUT = 4, 8, 12, 16, 20
sB1, sB2, sDBG = 24, 26, 28
sW, sZ, sRB, sC8, sROW, sG0 = 30, 31, 32, 33, 34, 35
sA, sA2, sBo, sMA, sMB = 36, 37, 38, 39, 40
sT1, sC, sTAG, sONES = 41, 42, 43, 44
sT = 45
sH = [53, 54, 55, 56]; sFL = 57; sDT = 58; sAUXo = 59; sAUXs = 60; sTAU = 61; sW2o = 62; sH0 = 63; sH1 = 64; sUo = 65
sCW = 61+0*0 if False else 83; sGO = 82; sTS1 = 66; sPC = 69; sUS = 70; sE = 71
sAUXm = 3; sHB = [78, 79, 80, 81]
sRHO = 75; sWE = 76; sW4 = 77; sXCC = 66; sLOC = 67; sFH = 68
sKO = [36, 37, 38, 39, 40, 53, 54, 55, 56, 58, 59, 60, 63, 64]
sTS = 84
def srd(b): return f's[{b}:{b+3}]'
def fhex(x): return '0x%08x' % struct.unpack('<I', struct.pack('<f', x))[0]
def X(ks): return f'a[{4*(ks%8)}:{4*(ks%8)+3}]'
def ACC1(i): return f'v[{32+16*i}:{47+16*i}]'
def WB(b, i, h=None):
    base = 96 + 16*b + 4*i if i < 4 else 184 + 4*b
    return f'v[{base}:{base+3}]' if h is None else f'v[{base+2*h}:{base+2*h+1}]'
aTW = 160; aF0 = 176; aSEL = 'a[192:195]'; aCS = 'a[196:199]'
def aF(k): return f'a[{aF0+4*k}:{aF0+4*k+3}]'
vL = 1
vOA = [2, 3]; vOB = [4, 5, 6, 7]; vAR = [8, 9, 10, 11]; vBR = [12, 13, 14, 15]
vT = 16
vST = 24
vNM, vSDV, vR = 24, 25, 26
vNON = 28; vPF = 29; vHO = 30; vL16 = 31
vAUX = 160
def W2(slot, ct):
    if slot < 3: k, b = 'v', 196 + 20*slot + 4*ct
    elif slot < 5: k, b = 'a', 200 + 20*(slot-3) + 4*ct
    elif slot < 11: k, b = 'a', 32 + 20*(slot-5) + 4*ct
    elif slot == 11: k, b = 'a', (240 + 4*ct if ct < 4 else 152)
    elif slot == 12: k, b = 'a', (4*ct if ct < 4 else 156)
    else: k, b = 'a', (16 + 4*ct if ct < 4 else 196)
    return f'{k}[{b}:{b+3}]'
def UF(ct): return f'a[{176+4*ct}:{179+4*ct}]'
def ACC2(ct, rt): b = 16 + 20*rt + 4*ct; return f'v[{b}:{b+3}]'
RHO = opt('rho', 0)
RING = opt('ring', 12)
def HF(n): b = 96 + 4*(n % RING); return f'v[{b}:{b+3}]'

TSL = OPT.get('ts', '0,1,2,3,4,5,6,7,8').split(',')
def stamp(a, name):
    if str(name) not in TSL: return
    idx = TSL.index(str(name))
    if DBG: a.e(f'{"s_memtime" if DBG == 2 else "s_memrealtime"} s[{sTS+2*idx}:{sTS+2*idx+1}]')
def cvtpk(d, x, y): return f'v_cvt_pk_bf16_f32 v{d}, v{x}, v{y}'
uid = [0]
def label(p):
    uid[0] += 1; return f'L_{p}{uid[0]}'

class Sched:
    def __init__(self): self.slots = []
    def add(self, main, pre=()):
        self.slots.append({'pre': list(pre), 'main': main, 'fill': []}); return len(self.slots) - 1
    def put(self, idx, ops): self.slots[idx]['fill'] += list(ops)
    def spread(self, ops, first, last):
        ops = list(ops); n = last - first + 1
        for k, op in enumerate(ops):
            self.slots[first + min(n - 1, k * n // len(ops))]['fill'].append(op)
    def pack(self, ops, first, per):
        i = first
        for op in ops:
            while i < len(self.slots) - 1 and len(self.slots[i]['fill']) >= per: i += 1
            self.slots[i]['fill'].append(op)
        return i
    def emit(self, a, lo=0, hi=None):
        for s in self.slots[lo:hi]:
            for op in s['pre'] + [s['main']] + s['fill']:
                if op is None: continue
                if callable(op): op(a)
                else: a.e(op)
def L(text): return [t for t in text.split('\n') if t.strip()]

def mk_srd(b, lo, n):
    return f's_mov_b32 s{b}, s{lo}\ns_and_b32 s{b+1}, s{lo+1}, 0xffff\ns_mov_b32 s{b+2}, {n}\ns_mov_b32 s{b+3}, 0x20000'

def prologue(a):
    a.e('s_cmp_ge_u32 s2, 256\ns_cbranch_scc1 L_end')
    stamp(a, 0)
    a.e('s_load_dwordx2 s[66:67], s[0:1], 0')
    a.e('s_load_dwordx8 s[68:75], s[0:1], 48')
    a.e('s_load_dwordx4 s[76:79], s[0:1], 80')
    a.e('s_load_dwordx2 s[80:81], s[0:1], 96')
    a.e('s_getpc_b64 s[82:83]\nL_pc:')
    a.e('s_bfe_u32 s3, s2, 0x10003\ns_lshl_b32 s3, s3, 15\nv_lshl_add_u32 v2, v0, 7, s3')
    a.vm(f'global_load_dword v{vPF}, v2, s[82:83]')
    a.e('s_add_u32 s82, s82, L_ftab-L_pc\ns_addc_u32 s83, s83, 0')
    a.e(f'v_lshrrev_b32 v4, 6, v0\nv_and_b32 v{vL}, 63, v0\nv_readfirstlane_b32 s{sW}, v4')
    a.e(f's_bfe_u32 s{sZ}, s2, 0x10004')
    a.e(f's_and_b32 s{sT}, s2, 7\ns_bfe_u32 s{sT+1}, s2, 0x10003\ns_lshl_b32 s{sT}, s{sT}, 1')
    a.e(f's_add_u32 s{sRB}, s{sT}, s{sT+1}\ns_lshr_b32 s{sC8}, s2, 5')
    a.e(f's_sub_u32 s{sT+2}, 32, s{sRB}\ns_cmp_eq_u32 s{sRB}, 0\ns_cselect_b32 s{sT+2}, 16, s{sT+2}')
    a.e(f's_bitcmp1_b32 s{sW}, 1\ns_cselect_b32 s{sROW}, s{sT+2}, s{sRB}')
    a.e(f's_and_b32 s{sT+3}, s{sW}, 1\ns_lshl_b32 s{sT+3}, s{sT+3}, 5\ns_add_u32 s{sROW}, s{sROW}, s{sT+3}')
    a.e(f's_mov_b32 s{sAUXm}, s{sT+2}')
    a.e(f'v_lshrrev_b32 v{vT}, 3, v{vL}\nv_lshrrev_b32 v{vT+1}, 4, v{vL}\nv_and_b32 v{vT+2}, 7, v{vL}')
    a.e(f'v_xor_b32 v{vT+3}, v{vT+2}, v{vT+1}\ns_mov_b32 s{sT+4}, 81920\nv_mul_lo_u32 v{vT+4}, s{sT+4}, v{vT}')
    a.e(f'v_lshl_add_u32 v{vOA[0]}, v{vT+3}, 4, v{vT+4}\nv_xor_b32 v{vT+3}, 4, v{vT+3}')
    a.e(f'v_lshl_add_u32 v{vOA[1]}, v{vT+3}, 4, v{vT+4}\nv_add_u32 v{vOA[1]}, {8*81920-1024}, v{vOA[1]}')
    a.e(f's_mul_i32 s{sA}, s{sROW}, 1280\ns_add_u32 s{sA2}, s{sA}, {16*81920-2048}\ns_lshl_b32 s{sMA}, s{sW}, 12')
    a.e(f's_sub_u32 s{sT+5}, 6, s{sZ}\ns_cmp_ge_u32 s{sC8}, s{sT+5}\ns_cbranch_scc1 L_S')

class T:
    def __init__(self, nG):
        self.nG = nG; self.nD = 1 if nG == 4 else 2
        self.bslot = 4096 * nG
        self.pitch = 64 * nG
        self.DREG = 131072 if nG == 4 else 98304
        self.nb = nG

def prologue_t(a, t, st):
    if t.nG == 4:
        a.e(f's_mul_i32 s{sG0}, s{sZ}, 28\ns_lshl_b32 s{sT}, s{sC8}, 2\ns_add_u32 s{sG0}, s{sG0}, s{sT}')
        a.e(f's_mul_i32 s{sDT}, s{sZ}, 10\ns_add_u32 s{sDT}, s{sDT}, s{sC8}')
        a.e(f'v_and_b32 v{vT+2}, 15, v{vL}\nv_lshlrev_b32 v{vT+3}, 2, v{vT+1}\nv_xor_b32 v{vT+2}, v{vT+2}, v{vT+3}')
        a.e(f's_movk_i32 s{sT+6}, 3456\nv_mul_u32_u24 v{vT+3}, s{sT+6}, v{vT+1}\nv_lshl_add_u32 v{vOB[0]}, v{vT+2}, 4, v{vT+3}')
        for i in range(1, 4): a.e(f'v_add_u32 v{vOB[i]}, {i*(4*3456-1024)}, v{vOB[0]}')
    else:
        a.e(f's_mul_i32 s{sG0}, s{sZ}, 26\ns_lshl_b32 s{sT}, s{sC8}, 1\ns_add_u32 s{sG0}, s{sG0}, s{sT}\ns_add_u32 s{sG0}, s{sG0}, 12')
        a.e(f's_mul_i32 s{sDT}, s{sZ}, 11\ns_add_u32 s{sDT}, s{sDT}, s{sT}\ns_sub_u32 s{sDT}, s{sDT}, 6')
        a.e(f'v_and_b32 v{vT+3}, 1, v{vT+1}\nv_lshlrev_b32 v{vT+3}, 2, v{vT+3}\nv_xor_b32 v{vT+2}, v{vT+2}, v{vT+3}')
        a.e(f's_movk_i32 s{sT+6}, 3456\nv_mul_u32_u24 v{vT+3}, s{sT+6}, v{vT}\nv_lshl_add_u32 v{vOB[0]}, v{vT+2}, 4, v{vT+3}')
        a.e(f'v_add_u32 v{vOB[1]}, {8*3456-1024}, v{vOB[0]}')
    a.e(f's_lshl_b32 s{sBo}, s{sG0}, 6\ns_mul_i32 s{sT}, s{sW}, {16*3456}\ns_add_u32 s{sBo}, s{sBo}, s{sT}')
    a.e(f's_mul_i32 s{sMB}, s{sW}, {1024*t.nb}\ns_add_u32 s{sMB}, s{sMB}, {BBASE}')
    a.e(f's_lshl_b32 s{sT+1}, s{sG0}, 6\nv_and_b32 v{vT+6}, {16*t.nG-1}, v{vL}\nv_lshl_add_u32 v{vT+6}, v{vT+6}, 2, s{sT+1}')
    if t.nG == 2: aux_setup(a)
    stamp(a, 'p0')
    a.e('s_waitcnt lgkmcnt(0)')
    stamp(a, 'p1')
    if t.nG == 2:
        a.e(mk_srd(SW2, 72, 1728*1280)); run(a, pack_dma(0, st))
    a.vm(f'global_load_dword v{vT+7}, v{vT+6}, s[70:71]')
    a.e(f'v_bfe_u32 v{vT+5}, v{vL}, 0, 3\nv_mul_u32_u24 v{vT+5}, 0xa0, v{vT+5}')
    a.vm(f'global_load_dword v{vPF}, v{vT+5}, s[74:75]')
    a.e(mk_srd(SX, 66, 2048*1280)); a.e(mk_srd(SW1, 68, 640*3456))

def dma_ops(t, c, st):
    slot = c % 4
    ops = [f's_add_u32 m0, s{sMA}, {ARING + slot*16384}',
           f'buffer_load_dwordx4 v{vOA[0]}, {srd(SX)}, s{sA} offen {opt("ntx", "nt")} lds',
           f'buffer_load_dwordx4 v{vOA[1]}, {srd(SX)}, s{sA} offen offset:1024 {opt("ntx", "nt")} lds',
           f'buffer_load_dwordx4 v{vOA[0]}, {srd(SX)}, s{sA2} offen offset:2048 {opt("ntx", "nt")} lds',
           f'buffer_load_dwordx4 v{vOA[1]}, {srd(SX)}, s{sA2} offen offset:3072 {opt("ntx", "nt")} lds',
           f's_add_u32 m0, s{sMB}, {slot*t.bslot}\ns_add_u32 s{sA}, s{sA}, 128\ns_add_u32 s{sA2}, s{sA2}, 128']
    for i in range(t.nb):
        ops.append(f'buffer_load_dwordx4 v{vOB[i]}, {srd(SW1)}, s{sBo} offen offset:{1024*i} {opt("ntw", "")} lds')
    def last(a):
        st['dma'][c] = a.vm_issued
        a.e(f's_add_u32 s{sBo}, s{sBo}, {64*3456}')
    ops.append(last)
    return ops
def run(a, ops):
    for op in ops:
        if callable(op): op(a)
        else: a.e(op)

vAO = 64
vPK = 76
vSD = 216
sPo = [55, 56]; sPs = [62, 63]; sPf = [64, 59]; sSo = 60; sSs = 65
def aux_setup(a):
    q = 184
    a.e(f's_mul_i32 s{sT}, s{sZ}, 3\ns_add_u32 s{sT}, s{sT}, s{sC8}\ns_sub_u32 s{sT}, s{sT}, 6\ns_lshl_b32 s{sT}, s{sT}, 2\ns_add_u32 s{sT}, s{sT}, s{sW}')
    a.e(f's_mul_i32 s{sT+1}, s{sRB}, 20\ns_add_u32 s{sT+1}, s{sT+1}, s{sT}')
    a.e(f's_bitcmp1_b32 s{sT}, 3\ns_cselect_b32 s{sT+2}, s{sAUXm}, s{sRB}')
    a.e(f's_bfe_u32 s{sT+3}, s{sT}, 0x10002\ns_lshl_b32 s{sT+3}, s{sT+3}, 5\ns_add_u32 s{sT+2}, s{sT+2}, s{sT+3}\ns_lshl_b32 s{sT+3}, s{sW}, 9\ns_add_u32 s{sT+2}, s{sT+2}, s{sT+3}\ns_mul_i32 s{sSo}, s{sT+2}, 1280')
    a.e(f's_lshl_b32 s{sT+2}, s{sRB}, 4\ns_add_u32 s{sT+2}, s{sT+2}, s{sT}\ns_lshl_b32 s{sSs}, s{sT+2}, 7\ns_add_u32 s{sSs}, s{sSs}, {ST_OFF}')
    a.e(f's_cmp_lt_u32 s{sT}, 16\ns_cselect_b32 s{sT+4}, 0, {OOB}')
    a.e(f'v_lshrrev_b32 v{q}, 4, v{vL}\ns_mov_b32 s{sT+5}, 81920\nv_mul_lo_u32 v{q+1}, s{sT+5}, v{q}\nv_and_b32 v{q+2}, 15, v{vL}\nv_lshlrev_b32 v{q+2}, 4, v{q+2}\nv_add3_u32 v{vAO+7}, v{q+2}, v{q+1}, s{sT+4}')
    a.e(f'v_lshl_add_u32 v{vAO+8}, v{q}, 4, s{sT+4}')
    for k in range(2):
        if k: a.e(f's_add_u32 s{sT+1}, s{sT+1}, 320')
        a.e(f's_lshr_b32 s{sT+2}, s{sT+1}, 3\ns_and_b32 s{sT+3}, s{sT+1}, 7\ns_mul_i32 s{sPo[k]}, s{sT+2}, 40960\ns_mul_i32 s{sT+5}, s{sT+3}, 160\ns_add_u32 s{sPo[k]}, s{sPo[k]}, s{sT+5}')
        a.e(f's_mul_i32 s{sPs[k]}, s{sT+3}, 54\ns_add_u32 s{sPs[k]}, s{sPs[k]}, s{sT+2}\ns_mul_i32 s{sPs[k]}, s{sPs[k]}, 5120\ns_add_u32 s{sPs[k]}, s{sPs[k]}, {P_OFF}')
        a.e(f's_lshl_b32 s{sPf[k]}, s{sT+1}, 7\ns_add_u32 s{sPf[k]}, s{sPf[k]}, {PF_OFF}')
        if k:
            a.e(f's_cmp_lt_u32 s{sT+1}, 432\ns_cselect_b32 s{sT+4}, 0, {OOB}\ns_cselect_b32 s{sPo[k]}, s{sPo[k]}, 0')
            a.e(f'v_lshl_add_u32 v{vAO+10}, v{vL}, 4, s{sT+4}')
        else: a.e(f'v_lshlrev_b32 v{vAO+9}, 4, v{vL}')
    a.e(f's_mov_b32 s{sT+5}, 0xCCCD\ns_movk_i32 s{sT+6}, 1280\ns_mul_i32 s{sAUXm}, s{sW}, 5120\ns_add_u32 s{sAUXm}, s{sAUXm}, {AUX}')
    for i in range(5):
        a.e(f'v_add_u32 v{q}, {64*i}, v{vL}\nv_mul_lo_u32 v{q+1}, s{sT+5}, v{q}\nv_lshrrev_b32 v{q+1}, 19, v{q+1}')
        a.e(f'v_mul_u32_u24 v{q+2}, 10, v{q+1}\nv_sub_u32 v{q+2}, v{q}, v{q+2}\nv_mul_u32_u24 v{q+1}, s{sT+6}, v{q+1}')
        a.e(f'v_lshl_add_u32 v{vAO+i}, v{q+2}, 4, v{q+1}')
        if 0 < i < 4: a.e(f'v_subrev_u32 v{vAO+i}, {1024*i}, v{vAO+i}')
    a.e(f'v_lshrrev_b32 v{q}, 5, v{vL}\nv_lshlrev_b32 v{q}, 4, v{q}\nv_bfe_u32 v{q+1}, v{vL}, 4, 1\nv_lshl_add_u32 v{q}, v{q+1}, 2, v{q}')
    a.e(f'v_bfe_u32 v{q+1}, v{vL}, 2, 2\nv_add_u32 v{q}, v{q}, v{q+1}\nv_mul_u32_u24 v{q}, 160, v{q}\nv_add_u32 v{q}, s{sAUXm}, v{q}')
    a.e(f'v_and_b32 v{q+1}, 3, v{vL}\nv_lshl_add_u32 v{vAO+5}, v{q+1}, 4, v{q}\nv_lshl_add_u32 v{vAO+6}, v{q+1}, 3, v{q}')

def unc_vm(text):
    def op(a): a.e(text); a.vm_issued -= 1
    return op
def unc_lg(text):
    def op(a): a.e(text); a.lg_issued -= 1
    return op
PK1 = 32768 - AUX
def pack_dma(k, st):
    o = []
    for i in range(5):
        def op(a, i=i):
            if i in (0, 4): a.e(f's_add_u32 m0, s{sAUXm}, {PK1*k + (4096 if i else 0)}')
            st[('pk', k)] = a.vm(f'buffer_load_dwordx4 v{vAO+i}, {srd(SW2)}, s{sPo[k]} offen offset:{(1024*i)%4096} {opt("ntp", "")} lds')
        o.append(op)
    return o
def pack_reads(k, st):
    o = [lambda a: a.wait(vm=st[('pk', k)])]
    if k: o += [f'v_add_u32 v{vAO+5}, {PK1 & 0xffffffff}, v{vAO+5}', f'v_add_u32 v{vAO+6}, {PK1 & 0xffffffff}, v{vAO+6}']
    vPK = 76 if k == 0 else 196
    for ct in range(5):
        for h in range(2):
            t = (f'ds_read_b64_tr_b16 v[{vPK+4*ct+2*h}:{vPK+4*ct+2*h+1}], v{vAO+5} offset:{(ct>>1)*64+(ct&1)*8+h*1280}' if ct < 4 else
                 f'ds_read_b64_tr_b16 v[{vPK+4*ct+2*h}:{vPK+4*ct+2*h+1}], v{vAO+6} offset:{128+h*1280}')
            o.append(lambda a, t=t: st.__setitem__(('pr', k), a.lg(t)))
    return o
def pack_stores(k, st):
    o = []; vPK = 76 if k == 0 else 196
    for ct in range(5):
        def op(a, ct=ct):
            a.wait(lg=st[('pr', k)])
            if ct == 4: a.e(f's_add_u32 s{sPs[k]}, s{sPs[k]}, 4096')
            st[('ps', k)] = a.vm(f'buffer_store_dwordx4 v[{vPK+4*ct}:{vPK+4*ct+3}], v{vAO+9+k}, {srd(SWS)}, s{sPs[k]} offen offset:{(1024*ct)%4096} sc1')
        o.append(op)
    return o
def pack_flag(k, st):
    def op(a):
        a.wait(vm=st[('ps', k)])
        a.e(f'v_mov_b32 v{vT}, s{sTAG}\ns_mov_b64 exec, 1')
        a.vm(f'buffer_store_dword v{vT}, v{vAO+9+k}, {srd(SWS)}, s{sPf[k]} offen sc1')
        a.e('s_mov_b64 exec, -1')
    return op
def stats_loads(b, st):
    o = []
    for i in range(5):
        def op(a, i=i):
            if b == 1 and i == 0: a.e(f's_add_u32 s{sSo}, s{sSo}, {4*81920}')
            st[('sl', b)] = a.vm(f'buffer_load_dwordx4 v[{vSD+20*b+4*i}:{vSD+20*b+4*i+3}], v{vAO+7}, {srd(SX)}, s{sSo} offen offset:{256*i}')
        o.append(op)
    return o
def stats_proc(b, st):
    q = 76 + 4*b; g = 84 + 4*b; d = vSD + 20*b
    o = [lambda a: a.wait(vm=st[('sl', b)])]
    o += [f'v_mov_b32 v{q+k}, 0' for k in range(4)]
    o.append('\n'.join(f'v_dot2c_f32_bf16 v{q+(r&1)}, s{sONES}, v{d+r}\nv_dot2c_f32_bf16 v{q+2+(r&1)}, v{d+r}, v{d+r}' for r in range(20)))
    o += L(f'v_add_f32 v{q}, v{q}, v{q+1}\nv_add_f32 v{q+2}, v{q+2}, v{q+3}')
    for sh in (8, 4, 2, 1):
        o += L(f'v_add_f32_dpp v{q}, v{q}, v{q} row_ror:{sh} row_mask:0xf bank_mask:0xf\nv_add_f32_dpp v{q+2}, v{q+2}, v{q+2} row_ror:{sh} row_mask:0xf bank_mask:0xf')
    o += L(f'v_mul_f32 v{q}, {fhex(1/640)}, v{q}\nv_mul_f32 v{q+2}, {fhex(1/640)}, v{q+2}')
    o += L(f'v_fma_f32 v{q+2}, -v{q}, v{q}, v{q+2}\nv_max_f32 v{q+2}, 0, v{q+2}\nv_add_f32 v{q+2}, {fhex(1e-5)}, v{q+2}')
    o += L(f'v_rsq_f32 v{g+2}, v{q+2}\nv_sqrt_f32 v{g+1}, v{q+2}\nv_mov_b32 v{g+3}, s{sTAG}\nv_sub_f32 v{g}, 0, v{q}')
    o += [f's_mov_b32 exec_lo, 0x00010001\ns_mov_b32 exec_hi, 0x00010001\nbuffer_store_dwordx4 v[{g}:{g+3}], v{vAO+8}, {srd(SWS)}, s{sSs} offen offset:{64*b} sc1\ns_mov_b64 exec, -1']
    return o

def nonce_pub(a):
    a.e(mk_srd(SWS, 80, WS_END)); a.e(mk_srd(SOUT, 76, 2048*1280))
    a.e(f's_mov_b64 s[{sB1}:{sB1+1}], s[70:71]\ns_mov_b64 s[{sB2}:{sB2+1}], s[74:75]\ns_mov_b64 s[{sDBG}:{sDBG+1}], s[78:79]')
    ln = label('non')
    a.e(f's_or_b32 s{sT}, s2, s{sW}\ns_cmp_lg_u32 s{sT}, 0\ns_cbranch_scc1 {ln}')
    a.e(f's_memrealtime s[{sT+1}:{sT+2}]\ns_waitcnt lgkmcnt(0)\ns_or_b32 s{sT}, s{sT+1}, 1')
    a.e(f'v_mov_b32 v{vT}, 0\nv_mov_b32 v{vT+1}, s{sT}')
    a.e(f'global_store_dword v{vT}, v{vT+1}, s[{sDBG}:{sDBG+1}] sc1'); a.vm_issued -= 1
    a.e(f'{ln}:')

def setup2(a, t):
    a.e(f's_mov_b32 s{sONES}, 0x3f803f80')
    a.e(f's_sub_u32 s{sT+2}, 32, s{sRB}\ns_cmp_eq_u32 s{sRB}, 0\ns_cselect_b32 s{sT+2}, 16, s{sT+2}')
    a.e(f's_cmp_eq_u32 s{sZ}, 1\ns_cselect_b32 s{sT1}, s{sT+2}, s{sRB}\ns_mov_b32 s{sC}, s{sC8}')
    a.e(f's_mul_i32 s{sTAU}, s{sW}, 14\ns_cmp_eq_u32 s{sW}, 3\ns_cselect_b32 s{sTAU}, 41, s{sTAU}')
    a.e(f'v_and_b32 v{vT}, 31, v{vL}\nv_lshrrev_b32 v{vT+1}, 5, v{vL}')
    a.e(f'v_bfe_u32 v{vT+2}, v{vL}, 1, 3\nv_xor_b32 v{vT+2}, v{vT+2}, v{vT+1}')
    a.e(f'v_lshlrev_b32 v{vT+3}, 7, v{vT}\nv_add_u32 v{vT+3}, s{sMA}, v{vT+3}\nv_lshl_add_u32 v{vAR[0]}, v{vT+2}, 4, v{vT+3}')
    for s in range(1, 4): a.e(f'v_xor_b32 v{vAR[s]}, {s<<5}, v{vAR[0]}')
    a.e(f'v_bfe_u32 v{vT+4}, v{vL}, 2, 2\nv_lshl_add_u32 v{vT+2}, v{vT+1}, 3, v{vT+4}\nv_mul_u32_u24 v{vT+2}, {t.pitch}, v{vT+2}')
    a.e(f'v_bfe_u32 v{vT+3}, v{vL}, 4, 1\nv_lshl_add_u32 v{vT+2}, v{vT+3}, 5, v{vT+2}')
    a.e(f'v_and_b32 v{vT+3}, 3, v{vL}\nv_lshl_add_u32 v{vT+2}, v{vT+3}, 3, v{vT+2}\nv_add_u32 v{vT+2}, {BBASE}, v{vT+2}')
    if t.nG == 2: a.e(f'v_lshrrev_b32 v{vT+4}, 1, v{vT+4}')
    for i in range(t.nG):
        a.e(f's_add_u32 s{sT}, s{sW}, {i}\ns_and_b32 s{sT}, s{sT}, {t.nG-1}')
        a.e(f'v_xor_b32 v{vT+3}, s{sT}, v{vT+4}\nv_lshl_add_u32 v{vBR[i]}, v{vT+3}, 6, v{vT+2}')
        a.e(f's_mul_i32 s{sH[i]}, s{sROW}, 54\ns_add_u32 s{sH[i]}, s{sH[i]}, s{sG0}\ns_add_u32 s{sH[i]}, s{sH[i]}, s{sT}\ns_lshl_b32 s{sH[i]}, s{sH[i]}, 11')
    a.e(f's_lshl_b32 s{sFL}, s2, 2\ns_add_u32 s{sFL}, s{sFL}, s{sW}\ns_lshl_b32 s{sFL}, s{sFL}, 7\ns_add_u32 s{sFL}, s{sFL}, {F_OFF}')
    a.e(f'v_and_b32 v{vT}, 15, v{vL}\nv_bfe_u32 v{vT+1}, v{vL}, 4, 1\nv_mov_b32 v{vT+2}, s{sONES}\nv_cmp_eq_u32 vcc, v{vT}, v{vT+1}\nv_cndmask_b32 v{vT+2}, 0, v{vT+2}, vcc')
    for k in range(4): a.e(f'v_accvgpr_write_b32 a{192+k}, v{vT+2}')
    a.e(f'v_lshlrev_b32 v{vL16}, 4, v{vL}')
    a.e(f'v_lshlrev_b32 v{vHO}, 10, v{vT+1}\nv_lshrrev_b32 v{vT+1}, 5, v{vL}\nv_lshl_add_u32 v{vHO}, v{vT+1}, 8, v{vHO}\nv_lshl_add_u32 v{vHO}, v{vT}, 4, v{vHO}')

def gen_D(a, t, tmp):
    q = tmp
    a.e(f'v_and_b32 v{q}, 15, v{vL}\nv_lshrrev_b32 v{q+1}, 5, v{vL}\ns_mul_i32 s{sT}, s{sW}, 80\nv_lshl_add_u32 v{q+1}, v{q+1}, 3, s{sT}\nv_cvt_f32_u32 v{q+1}, v{q+1}')
    a.e(f'v_bfe_u32 v{q+2}, v{vL}, 4, 1\nv_cvt_f32_u32 v{q+2}, v{q+2}\nv_mul_f32 v{q+2}, {fhex(-0.25)}, v{q+2}')
    a.e(f's_mul_i32 s{sT+1}, s{sW}, {5*1024*t.nD}\ns_add_u32 s{sT+1}, s{sT+1}, {t.DREG}\nv_add_u32 v{q+3}, s{sT+1}, v{vL16}')
    for d in range(t.nD):
        a.e(f's_lshl_b32 s{sT}, s{sDT}, 4\ns_add_u32 s{sT}, s{sT}, {16*d+1}')
        a.e(f'v_add_u32 v{q+4}, s{sT}, v{q}\nv_cvt_f32_u32 v{q+4}, v{q+4}\nv_mul_f32 v{q+4}, {fhex(1/640)}, v{q+4}\nv_fma_f32 v{q+5}, v{q+1}, v{q+4}, v{q+2}')
        for k5 in range(5):
            o = q + 8 + 12*(k5 & 1)
            for i in range(8):
                dd = 16*k5 + i
                if dd == 0: a.e(f'v_cos_f32 v{o+i}, v{q+5}')
                else:
                    a.e(f'v_fmamk_f32 v{o+i}, v{q+4}, {fhex(float(dd))}, v{q+5}')
            for i in range(8):
                if 16*k5 + i: a.e(f'v_cos_f32 v{o+i}, v{o+i}')
            for ip in range(4): a.e(cvtpk(o+8+ip, o+2*ip, o+2*ip+1))
            a.lg(f'ds_write_b128 v{q+3}, v[{o+8}:{o+11}] offset:{(k5*t.nD+d)*1024}')

import math
def bf16(x):
    u = struct.unpack('<I', struct.pack('<f', x))[0]
    return ((u + 0x7fff + ((u >> 16) & 1)) >> 16) & 0xffff
def F_table():
    w = []
    for fn in (math.cos, math.sin):
        for f in range(2):
            for l in range(64):
                t1 = l & 31; hi = l >> 5
                v = [bf16(round(fn(2*math.pi*((t1*(16*f + 8*(i >> 2) + 4*hi + (i & 3))) % 32)/32), 12)) for i in range(8)]
                w += [v[2*k] | (v[2*k+1] << 16) for k in range(4)]
    return w
def load_F():
    return [f'global_load_dwordx4 {aF(k)}, v{vL16}, s[82:83] offset:{1024*k}' for k in range(4)]

def rot_ids(a):
    for j in range(4):
        a.e(f's_add_u32 s{sT}, s{sW}, {1+j}\ns_and_b32 s{sT+1}, s{sT}, 1\ns_bfe_u32 s{sT}, s{sT}, 0x10001')
        a.e(f's_lshl_b32 s{sT}, s{sT}, 5\ns_add_u32 s{sT}, s{sT}, s{sT1}\ns_lshl_b32 s{sT+1}, s{sT+1}, 10\ns_add_u32 s{sHB[j]}, s{sT}, s{sT+1}')
def gen_TW(a, t, sT=sT):
    a.e(f'v_and_b32 v{t}, 15, v{vL}\nv_lshrrev_b32 v{t+1}, 4, v{vL}\ns_lshl_b32 s{sT}, s{sW}, 2\nv_add_u32 v{t+1}, s{sT}, v{t+1}')
    a.e(f'v_sub_u32 v{t+2}, 32, v{t+1}\nv_cmp_eq_u32 vcc, 0, v{t+1}\nv_cndmask_b32 v{t+2}, v{t+2}, 16, vcc')
    a.e(f's_mov_b32 s{sT+1}, 0x3a000000')
    a.e(f's_cmp_ge_u32 s{sC}, 4\ns_cselect_b32 s{sT+1}, s{sT+1}, 0xba000000')
    a.e(f'v_cvt_f32_u32 v{t+1}, v{t+1}\nv_cvt_f32_u32 v{t+2}, v{t+2}\nv_add_f32 v{t+3}, {fhex(32.0)}, v{t+1}\nv_add_f32 v{t+4}, {fhex(32.0)}, v{t+2}')
    s2r = [t+1, t+3, t+2, t+4]
    a.e(f'v_lshlrev_b32 v{t}, 6, v{t}')
    for j in range(4):
        a.e(f'v_add_u32 v{t+5}, s{sHB[j]}, v{t}\nv_cvt_f32_u32 v{t+5}, v{t+5}\nv_mul_f32 v{t+5}, s{sT+1}, v{t+5}')
        for w in range(4): a.e(f'v_mul_f32 v{t+6+w}, v{t+5}, v{s2r[w]}')
        for w in range(4): a.e(f'v_cos_f32 v{t+10+w}, v{t+6+w}\nv_sin_f32 v{t+6+w}, v{t+6+w}')
        for w in range(4): a.e(cvtpk(t+6+w, t+10+w, t+6+w))
        for w in range(4): a.e(f'v_accvgpr_write_b32 a{aTW+4*j+w}, v{t+6+w}')

def check_loop(a, load_text, vval, nl, cnt):
    ok, lp = label('ok'), label('lp')
    if nl < 64: a.e(f's_mov_b32 exec_lo, {hex(((1<<nl)-1)&0xffffffff)}\ns_mov_b32 exec_hi, {hex(((1<<nl)-1)>>32)}')
    a.e(f'v_cmp_ne_u32 vcc, s{sTAG}, v{vval}\ns_mov_b32 s{cnt}, 0\ns_cbranch_vccz {ok}')
    a.e(f'{lp}:\ns_sleep 1')
    a.e(load_text); a.vm_issued -= 1
    a.e(f's_waitcnt vmcnt(0)\nv_cmp_ne_u32 vcc, s{sTAG}, v{vval}\ns_add_u32 s{cnt}, s{cnt}, 1\ns_cmp_gt_u32 s{cnt}, 20000\ns_cbranch_scc1 {ok}\ns_cbranch_vccnz {lp}')
    a.e(f'{ok}:')
    if nl < 64: a.e('s_mov_b64 exec, -1')

def nonce_check(a, tok):
    ok, lp = label('nok'), label('nlp')
    a.wait(vm=tok)
    a.e(f'v_readfirstlane_b32 s{sTAG}, v{vNON}\ns_mov_b32 s{sPC}, 0\ns_cmp_lg_u32 s{sTAG}, 0\ns_cbranch_scc1 {ok}')
    a.e(f'{lp}:\nv_mov_b32 v{vNON}, 0')
    a.e(f'global_load_dword v{vNON}, v{vNON}, s[{sDBG}:{sDBG+1}] sc1'); a.vm_issued -= 1
    a.e(f's_waitcnt vmcnt(0)\nv_readfirstlane_b32 s{sTAG}, v{vNON}\ns_add_u32 s{sPC}, s{sPC}, 1\ns_cmp_gt_u32 s{sPC}, 20000\ns_cbranch_scc1 {ok}')
    a.e(f's_cmp_eq_u32 s{sTAG}, 0\ns_cbranch_scc1 {lp}\n{ok}:')

SLOW = []
def adapt(a, text):
    return a.vm(text + ' sc1')
def set_flag_h(a, vt):
    a.e(f'v_mov_b32 v{vt}, 0\nv_mov_b32 v{vt+1}, s{sTAG}\ns_mov_b64 exec, 1')
    adapt(a, f'buffer_store_dword v{vt+1}, v{vt}, {srd(SWS)}, s{sFH} offen')
    a.e('s_mov_b64 exec, -1')
def set_flag(a, word, vt):
    a.e(f'v_mov_b32 v{vt}, {4*word}\nv_mov_b32 v{vt+1}, s{sTAG}\ns_mov_b64 exec, 1')
    a.vm(f'buffer_store_dword v{vt+1}, v{vt}, {srd(SWS)}, s{sFL} offen sc1')
    a.e('s_mov_b64 exec, -1')

def w2_load_ops(slot, st, cts=range(5)):
    ops = []
    for ct in cts:
        def op(a, ct=ct):
            vo = st['vL16d'] if slot == 13 else st.get('vW', vL16)
            if ct == 0 and slot > 0: a.e(f's_add_u32 s{sW2o}, s{sW2o}, 1024')
            if ct == 4: a.e(f's_add_u32 s{sW2o}, s{sW2o}, 4096')
            st['w2'][(slot, ct)] = a.vm(f'buffer_load_dwordx4 {W2(slot,ct)}, v{vo}, {srd(SWS)}, s{sW2o} offen offset:{(1024*ct)%4096} sc1')
        ops.append(op)
    return ops

vDS = 195
def P2(d, h): return f'v[{128+32*d+16*h}:{143+32*d+16*h}]'
def pass1(a, t, st):
    nG = t.nG; NS = nG + t.nD; LS = NS - 1
    def rdW(ks, i):
        c, s = divmod(ks, 4); o = []
        if i < nG:
            for h in range(2):
                o.append(lambda a, h=h: st['w'].__setitem__((ks, i), a.lg(f'ds_read_b64_tr_b16 {WB(ks&1,i,h)}, v{vBR[i]} offset:{(c%4)*t.bslot + s*16*t.pitch + h*4*t.pitch}')))
        else:
            o.append(lambda a: st['w'].__setitem__((ks, i), a.lg(f'ds_read_b128 {WB(ks&1,i)}, v{vDS} offset:{((ks%20)*t.nD + i-nG)*1024}')))
        return o
    def rdA(c, s):
        return f'ds_read_b128 {X(4*c+s)}, v{vAR[s]} offset:{ARING + (c%4)*16384}'
    st['w'] = {}
    a.e(f'v_add_u32 v{vDS}, {t.DREG}, v{vL16}')
    a.wait(vm=st['dma'][0], lg=a.lg_issued)
    a.e('s_barrier')
    stamp(a, 2)
    a.e(rdA(0, 0))
    for i in range(NS): run(a, rdW(0, i))
    for s in range(1, 4): a.e(rdA(0, s))
    S = Sched(); first = {}
    for ks in range(40):
        c, s = divmod(ks, 4); buf = ks & 1
        for i in range(NS):
            pre = []
            if i == 0 and s == 3 and c < 9:
                pre.append(lambda a, c=c: (a.wait(vm=st['dma'][c+1]), a.e('s_barrier')))
            if i in (0, 2):
                pre.append(lambda a, ks=ks, i=i: a.wait(lg=st['w'][(ks, 1 if i == 0 else LS)]))
            if i < nG: m = f'v_mfma_f32_32x32x16_bf16 {ACC1(i)}, {WB(buf,i)}, {X(ks)}, {"0" if ks == 0 else ACC1(i)}'
            else: m = f'v_mfma_f32_32x32x16_bf16 {P2(i-nG, ks//20)}, {X(ks)}, {WB(buf,i)}, {"0" if ks % 20 == 0 else P2(i-nG, ks//20)}'
            idx = S.add(m, pre)
            if i == 0: first[ks] = idx
            if i == 0 and ks < 37: S.put(idx, [f'v_mfma_f32_16x16x32_bf16 {aCS}, {aSEL}, {WB(buf,0)}, {"0" if ks == 0 else aCS}'])
        if ks < 39:
            rd = [rdA(c+1, 0)] if s == 3 else []
            k = len(rd)
            for i in range(NS): rd += rdW(ks+1, i)
            if nG == 4: S.put(first[ks], rd[:k+3]); S.put(first[ks]+1, rd[k+3:7]); S.put(first[ks]+2, rd[7:])
            else: S.put(first[ks], rd[:k+3]); S.put(first[ks]+1, rd[k+3:])
            if s == 3: S.put(first[ks]+LS, [rdA(c+1, 1)])
            if s == 0 and c > 0: S.put(first[ks]+LS, [rdA(c, 2), rdA(c, 3)])
    exb = 160 if nG == 4 else 84
    ex = []
    for n in range(3):
        for h in range(2):
            ex.append(lambda a, n=n, h=h: st.__setitem__('ex', a.lg(f'ds_read_b64_tr_b16 v[{exb+4*n+2*h}:{exb+1+4*n+2*h}], v{vBR[0]} offset:{(9%4)*t.bslot + (n+1)*16*t.pitch + h*4*t.pitch}')))
    mm = [lambda a: a.wait(lg=st['ex'])] + [f'v_mfma_f32_16x16x32_bf16 {aCS}, {aSEL}, v[{exb+4*n}:{exb+3+4*n}], {aCS}' for n in range(3)]
    S.put(first[35]+LS, ex[:3]); S.put(first[36]+LS, ex[3:]); S.put(first[37], mm); st['cs_slot'] = first[37] + LS; st['bar_slot'] = first[38] + 2
    gaps = []
    for ks in range(40):
        gaps += [(ks, first[ks]), (ks, first[ks]+NS-2)] + ([(ks, first[ks]+LS)] if ks < opt('ncu', 6) else [])
    gi = 0
    for c in range(st['next_chunk'], 10):
        ops = dma_ops(t, c, st)
        A = ops[1:5]; B = ops[6:-1]
        eA = (c-3)*4 if c >= 4 else 0
        eB = (c-2)*4 - 1 if c >= 4 else 0
        lo = max(0, (c - opt('la', 2) - 1)*4 + 1)
        for k, op in enumerate(A + B):
            e = max(eA if k < 4 else eB, lo)
            while gaps[gi][0] < e: gi += 1
            pre = [ops[0]] if k == 0 else ([ops[5]] if k == 4 else [])
            post = [ops[-1]] if k == 3 + len(B) else []
            g = gaps[gi][1]
            if pre: S.put(g - 1 if g > 0 else g, pre)
            S.put(g, [op] + post); gi += 1
        assert gaps[gi-1][0] < c*4 - 1, (c, gaps[gi-1])
    return S, first

AUGW = None
def h_aug_x(tmp):
    p, q2 = tmp+4, tmp+5
    o = [cvtpk(p, vNM, vSDV), f'v_lshlrev_b32 v{tmp+6}, 16, v{p}', f'v_and_b32 v{tmp+7}, 0xffff0000, v{p}',
         f'v_sub_f32 v{tmp+6}, v{vNM}, v{tmp+6}', f'v_sub_f32 v{tmp+7}, v{vSDV}, v{tmp+7}', cvtpk(q2, tmp+6, tmp+7)]
    o += [f'v_mov_b32 v{tmp+k}, 0' for k in range(4)]
    o += [f's_mov_b32 s{sE+2}, 0x05040100\ns_mov_b32 exec_hi, 0\nv_perm_b32 v{tmp}, v{q2}, v{p}, s{sE+2}\nv_mov_b32 v{tmp+1}, v{p}\nv_lshrrev_b32 v{tmp+2}, 16, v{q2}\ns_mov_b32 exec_hi, -1']
    return o
def h_aug_w(st, i, tmp, vtb):
    b = AUGW[i]
    rd = [lambda a: st['tb'].__setitem__(i, a.lg(f'ds_read2_b32 v[{b+4}:{b+5}], v{vtb} offset0:0 offset1:128'))]
    mk = [lambda a: a.wait(lg=st['tb'][i]), cvtpk(b, b+4, b+4), cvtpk(b+2, b+5, b+5), f'v_and_b32 v{b+1}, 0xffff0000, v{b}', f'v_mov_b32 v{b+3}, 0',
          f'v_sub_f32 v{b+1}, v{b+4}, v{b+1}', cvtpk(b+1, b+1, b+5)]
    mf = [f'v_mfma_f32_32x32x16_bf16 {ACC1(i)}, v[{b}:{b+3}], v[{tmp}:{tmp+3}], {ACC1(i)}']
    return rd, mk, mf
def h_fin(st, i, u):
    acc = 32 + 16*i + 8*u; o = []
    for k in range(8): o.append(f'v_max_f32 v{acc+k}, 0, v{acc+k}')
    for k in range(8): o.append(f'v_mul_f32 v{acc+k}, v{vR}, v{acc+k}')
    for k in range(8): o.append(f'v_mul_f32 v{acc+k}, v{acc+k}, v{acc+k}')
    for k in range(4): o.append(cvtpk(acc+k, acc+2*k, acc+2*k+1))
    if opt('nohst', 0): o.append(lambda a: st.__setitem__('hst', a.vm_issued))
    else: o.append(lambda a: st.__setitem__('hst', adapt(a, f'buffer_store_dwordx4 v[{acc}:{acc+3}], v{vHO}, {srd(SWS)}, s{sH[i]} offen offset:{512*u}')))
    return o

class Rec:
    def __init__(self): self.ops = []; self.tok = {}
    def e(self, text):
        ls = L(text); i = 0
        while i < len(ls):
            j = i + 1
            if ls[i].startswith('s_cmp') or ls[i].startswith('s_bitcmp') or ls[i].startswith('v_cmp'):
                while j < len(ls) and not (ls[j].startswith('s_cselect') or ls[j].startswith('s_cbranch') or ls[j].startswith('v_cndmask')): j += 1
                while j < len(ls) and (ls[j].startswith('s_cselect') or ls[j].startswith('s_cbranch') or ls[j].startswith('v_cndmask')): j += 1
            self.ops.append('\n'.join(ls[i:j])); i = j
    def lg(self, text): self.ops.append(text)
    def vm(self, text, key='t'):
        self.ops.append(lambda a: self.tok.__setitem__(key, a.vm(text)))
def merge(main, other):
    out = []; n, m = len(main), len(other); k = 0
    for i, op in enumerate(main):
        out.append(op)
        while k < m and (k + 1) * n <= (i + 1) * m + m - 1 and k * n <= i * m: out.append(other[k]); k += 1
    return out + other[k:]

def touch_ops(t, lo, hi, q=188):
    n = hi - lo
    o = [f'v_mov_b32 v{q+2}, {OOB}']
    o += L(f'v_and_b32 v{q}, 3, v{vL}\ns_lshl_b32 s{sPC}, s{sC8}, 2\nv_add_u32 v{q}, s{sPC}, v{q}\nv_mul_u32_u24 v{q}, 640, v{q}\nv_lshrrev_b32 v{q+1}, 2, v{vL}\nv_add3_u32 v{q}, v{q}, v{q+1}, {lo}\nv_lshlrev_b32 v{q}, 7, v{q}')
    o += [f'v_cmp_gt_u32 vcc, {4*n}, v{vL}\nv_cndmask_b32 v{q}, v{q+2}, v{q}, vcc', f's_mul_i32 s{sPC}, s{sROW}, 1280']
    o += [f'buffer_load_dword v{vPF}, v{q}, {srd(SX)}, s{sPC} offen {opt("ntx", "nt")}']
    if t.nG == 4: o += L(f'v_lshrrev_b32 v{q}, 1, v{vL}\nv_and_b32 v{q+1}, 1, v{vL}')
    else: o += L(f'v_mov_b32 v{q}, v{vL}\nv_mov_b32 v{q+1}, 0')
    o += L(f'v_lshlrev_b32 v{q}, 4, v{q}\ns_and_b32 s{sPC}, s{sRB}, 3\ns_lshl_b32 s{sPC}, s{sPC}, 2\ns_add_u32 s{sPC}, s{sPC}, s{sW}\ns_add_u32 s{sPC}, s{sPC}, {64*lo}')
    o += L(f'v_add_u32 v{q}, s{sPC}, v{q}\nv_mul_u32_u24 v{q}, 0xd80, v{q}\nv_lshl_add_u32 v{q}, v{q+1}, 7, v{q}\ns_lshl_b32 s{sPC}, s{sG0}, 6')
    o += [f'v_cmp_gt_u32 vcc, {(8 if t.nG == 4 else 4)*n}, v{vL}\nv_cndmask_b32 v{q}, v{q+2}, v{q}, vcc']
    o += [f'buffer_load_dword v{vPF}, v{q}, {srd(SW1)}, s{sPC} offen {opt("ntw", "")}']
    assert n <= 8
    return o

vTX, vTW = 193, 194; sTX, sTW = 52, 72
def roll_setup(t, n):
    q = 188
    o = L(f'v_mov_b32 v{q+2}, {OOB}\nv_and_b32 v{q+3}, 3, v{vL}\nv_lshrrev_b32 v{q+1}, 2, v{vL}\ns_mul_i32 s{sPC}, s{sZ}, 6\ns_add_u32 s{sPC}, s{sPC}, s{sC8}\ns_mul_i32 s{sPC}, s{sPC}, 3')
    o += L(f'v_add_u32 v{q}, s{sPC}, v{q+3}\nv_min_u32 v{q}, 31, v{q}\nv_mul_u32_u24 v{q}, 640, v{q}\nv_add_lshl_u32 v{q}, v{q}, v{q+1}, 7')
    o += [f'v_cmp_gt_u32 vcc, {4*n}, v{vL}\nv_cndmask_b32 v{q}, v{q+2}, v{q}, vcc', f'v_cmp_gt_u32 vcc, 3, v{q+3}\nv_cndmask_b32 v{vTX}, v{q+2}, v{q}, vcc', f's_mul_i32 s{sTX}, s{sROW}, 1280']
    o += L(f's_mul_i32 s{sTW}, s{sZ}, 12\ns_add_u32 s{sTW}, s{sTW}, s{sC8}\ns_add_u32 s{sTW}, s{sTW}, 12\ns_lshl_b32 s{sTW}, s{sTW}, 7\ns_add_u32 s{sPC}, s{sZ}, 2')
    o += [f's_cmp_lt_u32 s{sC8}, s{sPC}\ns_cselect_b32 s{sTW}, s{sTW}, {OOB}', f'v_mov_b32 v{q}, s{sTW}', f's_lshl_b32 s{sPC}, s{sG0}, 6', f'v_lshl_add_u32 v{vTW}, v{q+3}, 7, s{sPC}']
    o += [f'v_cmp_eq_u32 vcc, 2, v{q+3}\nv_cndmask_b32 v{vTW}, v{vTW}, v{q}, vcc', f'v_cmp_eq_u32 vcc, 3, v{q+3}\nv_cndmask_b32 v{vTW}, v{vTW}, v{q+2}, vcc']
    o += L(f's_lshl_b32 s{sPC}, s{sRB}, 2\ns_add_u32 s{sPC}, s{sPC}, s{sW}\nv_lshl_add_u32 v{q}, v{q+1}, 6, s{sPC}\nv_mul_u32_u24 v{q}, 0xd80, v{q}\nv_add_u32 v{vTW}, v{vTW}, v{q}')
    o += [f'v_cmp_gt_u32 vcc, {4*n}, v{vL}\nv_cndmask_b32 v{vTW}, v{q+2}, v{vTW}, vcc', f's_mov_b32 s{sTW}, 0']
    return o
def roll(st, lo):
    def op1(a):
        d = lo - st.get('roll', 0); st['roll'] = lo
        if d: a.e(f's_add_u32 s{sTX}, s{sTX}, {128*d}\ns_add_u32 s{sTW}, s{sTW}, {64*3456*d}')
        a.vm(f'buffer_load_dword v{vPF}, v{vTX}, {srd(SX)}, s{sTX} offen {opt("ntx", "nt")}')
    return [op1, f'buffer_load_dword v{vPF}, v{vTW}, {srd(SW1)}, s{sTW} offen {opt("ntw", "")}']

def build_type(a, t):
    st = {'dma': {}, 'w2': {}, 'tb': {}}
    nG, nD = t.nG, t.nD
    prologue_t(a, t, st)
    ta, tb = opt('ta', 0), opt('tb', 5)
    if nG == 4:
        run(a, dma_ops(t, 0, st))
    stamp(a, 'p2')
    nonce_pub(a)
    stamp(a, 'p3')
    r = Rec()
    setup2(r, t); gen_D(r, t, 96); rot_ids(r)
    if nG == 4 and opt('twR', 1): gen_TW(r, 96)
    main = r.ops
    vSA, vFA, vFV = vT+3, vT+4, vT+5
    st['vL16d'] = 192
    pre = L(f's_lshl_b32 s{sT}, s{sRB}, 2\ns_add_u32 s{sT}, s{sT}, s{sW}\ns_lshl_b32 s{sT}, s{sT}, 9\ns_add_u32 s{sT}, s{sT}, {ST_OFF}')
    pre += L(f'v_and_b32 v{vSA}, 31, v{vL}\nv_lshl_add_u32 v{vSA}, v{vSA}, 4, s{sT}')
    pre += L(f'v_add_u32 v{vFA}, s{sTAU}, v{vL}\nv_min_u32 v{vFA}, 53, v{vFA}')
    pre += L(f's_lshl_b32 s{sT}, s{sC}, 7\ns_add_u32 s{sT}, s{sT}, {PF_OFF}\nv_lshlrev_b32 v{vFA}, 10, v{vFA}\nv_add_u32 v{vFA}, s{sT}, v{vFA}')
    pre += L(f's_mul_i32 s{sUS}, s{sC}, 54\ns_add_u32 s{sUS}, s{sUS}, s{sTAU}\ns_mul_i32 s{sUS}, s{sUS}, 5120\ns_add_u32 s{sUS}, s{sUS}, {P_OFF}')
    pre += [f's_cmp_ge_u32 s{sW}, 2\ns_cselect_b32 s{sT}, {OOB}, 0', f'v_add_u32 v192, s{sT}, v{vL16}']
    vTB = [4, 5, 6, 7] if nG == 4 else [14, 15]; vRT = 3
    prep = L(f's_lshl_b32 s{sE+1}, s{sW}, 7\ns_add_u32 s{sE+1}, s{sE+1}, {TABR}\nv_and_b32 v{vT+6}, 31, v{vL}\nv_lshl_add_u32 v{vRT}, v{vT+6}, 2, s{sE+1}')
    for i in range(nG):
        prep += L(f's_add_u32 s{sE}, s{sW}, {i}\ns_and_b32 s{sE}, s{sE}, {nG-1}\ns_lshl_b32 s{sE}, s{sE}, 7\ns_add_u32 s{sE}, s{sE}, {TABC}\nv_lshl_add_u32 v{vTB[i]}, v{vT+6}, 2, s{sE}')
    prep += [f'v_lshrrev_b32 v{vT+6}, 5, v{vL}']
    nonl = [f'v_mov_b32 v{vNON}, 0', lambda a: st.__setitem__('non', a.vm(f'global_load_dword v{vNON}, v{vNON}, s[{sDBG}:{sDBG+1}] sc1'))]
    st['next_chunk'] = 2
    main = main + pre
    if nG == 4:
        n = len(main); c1 = n * opt('c1', 10) // 100; c2 = n * opt('c2', 50) // 100; c3 = n * opt('c3', 80) // 100
        rs = [x.split('@') for x in opt('rs', '1@s1,4@s2,7@6').split(',') if x]
        at = lambda p: [o for c_, p_ in rs if p_ == p for o in roll(st, int(c_))]
        run(a, roll_setup(t, opt('rn', 3)) + main[:c1] + at('s1') + main[c1:c2] + at('s2') + main[c2:c3]); stamp(a, 'p4')
        run(a, merge(main[c3:], dma_ops(t, 1, st)) + nonl)
    else:
        n = len(main); c1 = n * opt('s1', 35) // 100; c2 = n * opt('s2', 75) // 100
        run(a, merge(main[:c1], pack_dma(1, st)) + nonl)
        run(a, merge(main[c1:c2], dma_ops(t, 0, st)))
        stamp(a, 'p4')
        run(a, pack_reads(0, st))
        stamp(a, 'q0')
        if opt('so', 0):
            run(a, pack_reads(1, st) + dma_ops(t, 1, st))
            run(a, merge(main[c2:], pack_stores(0, st) + pack_stores(1, st)))
        else:
            run(a, dma_ops(t, 1, st))
            run(a, merge(main[c2:], pack_stores(0, st)[:2] + [lambda a: run(a, pack_reads(1, st))] + pack_stores(0, st)[2:] + pack_stores(1, st)))
        stamp(a, 'q1')
    stamp(a, 1)
    S, first = pass1(a, t, st)
    NS = nG + nD
    l = lambda ks: first[ks] + NS - 1
    b1tab = L(f'v_lshlrev_b32 v{vT}, 16, v{vT+7}\nv_and_b32 v{vT+1}, 0xffff0000, v{vT+7}\nv_lshlrev_b32 v{vT+2}, 3, v{vL}\nv_add_u32 v{vT+2}, {TABB}, v{vT+2}\nds_write_b64 v{vT+2}, v[{vT}:{vT+1}]')
    S.spread(b1tab, first[3], l(3));
    if nG == 4: S.put(l(opt('kn', 11)), [lambda a: nonce_check(a, st['non'])])
    if nG == 4:
        for c_, p_ in rs:
            if p_[0] != 's': S.put(l(int(p_)), roll(st, int(c_)))
    if nG == 2:
        sp0, sp1 = stats_proc(0, st), stats_proc(1, st)
        S.put(l(1), [lambda a: nonce_check(a, st['non'])])
        S.put(l(opt('kf', 6)), [pack_flag(0, st), pack_flag(1, st), lambda a: stamp(a, 'pf')])
        k0_ = opt('sk', 2)
        S.spread(stats_loads(0, st) + stats_loads(1, st), first[k0_], l(k0_+4))
        S.spread(sp0[:-1], first[k0_+7], l(k0_+8)); S.spread(sp1[:-1], first[k0_+9], l(k0_+10))
        S.put(l(k0_+10), [sp0[-1], sp1[-1]])
    pfl = f'buffer_load_dword v{vFV}, v{vFA}, {srd(SWS)}, 0 offen sc1'
    stl = f'buffer_load_dwordx4 v[{vST}:{vST+3}], v{vSA}, {srd(SWS)}, 0 offen sc1'
    S.spread(load_F(), l(13), l(16))
    if nG == 2:
        r2 = Rec(); gen_TW(r2, 76, 73); S.spread(r2.ops, first[15], l(32))
    kp = opt('kp', 19); kq = opt('kq', 22)
    S.spread(L(f's_bfe_u32 s{sRHO}, s2, 0x20003\ns_mul_i32 s{sRHO}, s{sRHO}, {opt("rho", 0)}\ns_lshr_b32 s{sRHO}, s{sRHO}, 3\ns_mul_i32 s{sW2o}, s{sRHO}, 5120\ns_add_u32 s{sW2o}, s{sW2o}, s{sUS}\ns_add_u32 s{sWE}, s{sUS}, {13*5120}'), l(kp-3), l(kp-1))
    early = opt('early', 1)
    S.put(l(opt('ks', 30)), [lambda a: st.__setitem__('stl', a.vm(stl))])
    S.put(l(kp if early else 38), [lambda a: st.__setitem__('pfl', a.vm(pfl))])
    pchk = lambda a: (a.wait(vm=st['pfl']), check_loop(a, pfl, vFV, 14, sPC), stamp(a, 'pc'))
    S.put(l(kq), [pchk if early else (lambda a: a.wait(vm=st['stl']))])
    allw = []
    for s_ in range(14): allw += w2_load_ops(s_, st)
    st['twq'] = []
    if opt('touchw', 1):
        nl_ = opt('tl', 16)
        tw = L(f's_bfe_u32 s{sT}, s2, 0x20003\nv_lshl_add_u32 v{vFA}, v{vL}, 2, s{sT}\nv_lshlrev_b32 v{vFA}, 7, v{vFA}\ns_mov_b32 s{sTX}, s{sUS}')
        S.put(l(kq), tw)
        nb_ = -(-130 // nl_)
        for j in range(nb_):
            n_ = min(nl_, 130 - j*nl_)
            op = f's_mov_b64 exec, {hex((1 << n_) - 1)}\nbuffer_load_dword v{vPF}, v{vFA}, {srd(SWS)}, s{sTX} offen sc1\ns_mov_b64 exec, -1\ns_add_u32 s{sTX}, s{sTX}, {nl_*512}'
            k_ = kq + 1 + opt('tstep', 3)*j
            if k_ < 40: S.put(first[k_] + 1, [op])
            else: st['twq'].append(op)
    n0 = 0
    kA, kB = opt('kA', 24), opt('kB', 31)
    for ks in range(kA, 40):
        pos_ = [first[ks] + 1] if ks < kB else sorted([first[ks], first[ks] + NS - 2, first[ks] + 1][:opt('ne', 2)])
        if ks < kB and (ks - kA) % opt('kAs', 1): pos_ = []
        for p_ in pos_: S.put(p_, [allw[n0]]); n0 += 1
    assert n0 <= 60
    global AUGW
    tmp = 172 if nG == 4 else 64
    AUGW = [160, 166, 96, 102] if nG == 4 else [72, 78]
    e1 = [lambda a: (a.wait(vm=st['stl']), check_loop(a, stl, vST+3, 64, sPC))]
    e1 += [f'ds_write_b32 v{vRT}, v{vR}']
    e1 += h_aug_x(tmp)
    S.spread(prep, first[31], l(33)); S.spread(e1, first[34], l(36))
    e2 = L(f'v_accvgpr_read_b32 v{vT}, a196\nv_accvgpr_read_b32 v{vT+1}, a197')
    e2 += [f's_mov_b64 exec, 0xffff\nds_write2_b32 v{vTB[0]}, v{vT}, v{vT+1} offset0:0 offset1:16\ns_mov_b64 exec, -1', lambda a: st.__setitem__('csw', a.lg_issued)]
    S.put(st['cs_slot'], e2)
    S.slots[st['bar_slot']]['pre'].append(lambda a: (a.wait(lg=st['csw']), a.e('s_barrier')))
    aw = [h_aug_w(st, i, tmp, vTB[i]) for i in range(nG)]
    S.put(st['bar_slot'], [x for i in range(nG) for x in aw[i][0]])
    S.spread([x for i in range(nG) for x in aw[i][1]], min(st['bar_slot'] + 2, l(39)), l(39))
    for ks in range(40): S.slots[first[ks]]['pre'].insert(0, lambda a, ks=ks: stamp(a, f'k{ks}'))
    S.emit(a)
    for i in range(nG): run(a, aw[i][2])
    stamp(a, 3)
    n1 = n0
    npre2 = opt('npre2', 70)
    later = allw[n1:npre2]; st['inp2'] = allw[npre2:]
    rr = 96
    a.e(f'v_lshl_add_u32 v{vT}, v{vT+6}, 4, s{sE+1}')
    for jq in range(4): rt_ = a.lg(f'ds_read_b128 v[{rr+4*jq}:{rr+4*jq+3}], v{vT} offset:{32*jq}')
    a.e(f'v_and_b32 v{vT+1}, 1, v{vL}\nv_cmp_eq_u32 vcc, 0, v{vT+1}\nv_cndmask_b32 v{vT+1}, 1.0, -1.0, vcc')
    vXW, vXR_, vUS = vT+2, vT+3, vT+4
    a.e(f'v_and_b32 v{vT+5}, 31, v{vL}\nv_lshlrev_b32 v{vT+5}, 2, v{vT+5}\nv_lshl_add_u32 v{vXW}, v{vT+6}, 8, v{vT+5}\ns_lshl_b32 s{sE}, s{sW}, 11\nv_add_u32 v{vXW}, s{sE}, v{vXW}')
    a.e(f's_lshl_b32 s{sE}, s{sW}, 9\nv_lshl_add_u32 v{vXR_}, v{vL}, 2, s{sE}')
    a.e(f'v_lshrrev_b32 v{vT+5}, 4, v{vL}\ns_mov_b32 s{sE}, 81920\nv_mul_lo_u32 v{vT+5}, s{sE}, v{vT+5}\nv_and_b32 v{vUS}, 15, v{vL}\nv_lshl_add_u32 v{vUS}, v{vUS}, 4, v{vT+5}')
    DR = [(160, 176)] if nG == 4 else [(64, 80), (112, 144)]
    li = [0]
    def drip(a, n=1):
        for _ in range(n if (st.get('hfdone') or opt('drip1', 0)) else 0):
            if li[0] < len(later): later[li[0]](a); li[0] += 1
    for d in range(nD):
        lo, hi = 128 + 32*d, 144 + 32*d
        for j in range(16):
            a.e(f'v_fma_f32 v{lo+j}, v{vT+1}, v{hi+j}, v{lo+j}')
            if j % 4 == 3: drip(a)
        if d == 0: a.wait(lg=rt_)
        for j in range(16):
            a.e(f'v_mul_f32 v{lo+j}, v{rr+j}, v{lo+j}')
            if j % 4 == 3: drip(a)
        for j in range(8): a.e(cvtpk(lo+j, lo+2*j, lo+2*j+1))
        D1, D2 = DR[d]
        if d == 0: stamp(a, 'u0')
        a.e(f'v_mfma_f32_32x32x16_bf16 v[{D1}:{D1+15}], {aF(0)}, v[{lo}:{lo+3}], 0')
        a.e(f'v_mfma_f32_32x32x16_bf16 v[{D2}:{D2+15}], {aF(2)}, v[{lo}:{lo+3}], 0')
        a.e(f'v_mfma_f32_32x32x16_bf16 v[{D1}:{D1+15}], {aF(1)}, v[{lo+4}:{lo+7}], v[{D1}:{D1+15}]')
        a.e(f'v_mfma_f32_32x32x16_bf16 v[{D2}:{D2+15}], {aF(3)}, v[{lo+4}:{lo+7}], v[{D2}:{D2+15}]')
        drip(a, 3)
    for d in range(nD):
        D1, D2 = DR[d]
        for j in range(0, 16, 2):
            a.e(f'v_permlane16_swap_b32 v{D1+j}, v{D1+j+1}\nv_permlane16_swap_b32 v{D2+j}, v{D2+j+1}')
        for j in range(0, 16, 2):
            a.e(f'v_sub_f32 v{D1+j}, v{D1+j}, v{D2+j+1}\nv_add_f32 v{D2+j}, v{D2+j}, v{D1+j+1}')
            a.e(cvtpk(D1+j, D1+j, D2+j))
            a.lg(f'ds_write_b32 v{vXW}, v{D1+j} offset:{XCH + d*8192 + (8*(j>>2)+(j&3))*64}')
            drip(a)
    stamp(a, 'u1')
    st['hfdone'] = True; drip(a, 2)
    a.wait(lg=a.lg_issued); a.e('s_barrier')
    stamp(a, 'u2')
    toks = []
    drip(a, 2)
    for d in range(nD):
        for i in range(2):
            b = 128 + 8*d + 4*i
            a.lg(f'ds_read2st64_b32 v[{b}:{b+1}], v{vXR_} offset0:{32*d+i} offset1:{32*d+8+i}')
            toks.append(a.lg(f'ds_read2st64_b32 v[{b+2}:{b+3}], v{vXR_} offset0:{32*d+16+i} offset1:{32*d+24+i}'))
    a.e(f's_lshl_b32 s{sE}, s{sW}, 7\ns_add_u32 s{sE}, s{sE}, s{sRB}\ns_mul_i32 s{sE}, s{sE}, 5120\ns_lshl_b32 s{sE+1}, s{sDT}, 8\ns_add_u32 s{sE}, s{sE}, s{sE+1}\ns_add_u32 s{sE}, s{sE}, {U_OFF}')
    a.e(f's_add_u32 s{sE+1}, s{sE}, {4*81920}')
    for d in range(nD):
        if d == 1:
            a.e(f's_cmp_ge_u32 s{sDT}, 19\ns_cselect_b32 s{sE+2}, {OOB}, 0\nv_add_u32 v{vUS}, s{sE+2}, v{vUS}')
        for i in range(2):
            b = 128 + 8*d + 4*i
            a.wait(lg=toks[2*d+i])
            ust = a.vm(f'buffer_store_dwordx4 v[{b}:{b+3}], v{vUS}, {srd(SWS)}, s{sE+i} offen offset:{256*d} sc1')
    stamp(a, 'u3')
    S = Sched()
    for k in range(8*nG): S.add(None)
    nm = len(S.slots)
    ops = []
    for i in range(nG): ops += [lambda a, i=i: stamp(a, f'f{i}')] + h_fin(st, i, 0) + h_fin(st, i, 1)
    S.spread(ops, 0, nm - 1)
    def hflag(a):
        a.wait(vm=st['hst']); a.e(f's_add_u32 s{sFH}, s{sFL}, {HF_OFF - F_OFF}'); set_flag_h(a, 193); stamp(a, 'hf')
    later = later[li[0]:]; k_ = opt('na', 8) if nG == 4 else opt('naS', 4)
    if st['twq']: S.spread(st['twq'], 0, nm - 1)
    if k_: S.spread(later[:k_], 0, nm - 1)
    later = later[k_:]
    S.put(min(nm - 1, opt('ufs', 20)), [lambda a: (a.wait(vm=ust), set_flag(a, 1, 193), stamp(a, 'uf'))])
    hfe = -1
    S.emit(a)
    stamp(a, 4)
    stamp(a, 5)
    phase2(a, st, hflag, later, nG == 4 and not opt('twR', 1))

RED = 65536
def phase2(a, st, hflag, later, doTW):
    t = 2
    q = 144
    r = Rec()
    if doTW: gen_TW(r, q)
    r.e(f's_mul_i32 s{sGO}, s{sHB[3]}, 1280')
    vHJ = [184, 185, 186, 187]; vHD = [188, 189, 190, 191]
    for j in range(4):
        r.e(f's_and_b32 s{sT}, s{sHB[j]}, 1024\ns_and_b32 s{sHB[j]}, s{sHB[j]}, 63\ns_mul_i32 s{sHB[j]}, s{sHB[j]}, 54\ns_add_u32 s{sHB[j]}, s{sHB[j]}, s{sTAU}\ns_lshl_b32 s{sHB[j]}, s{sHB[j]}, 11\ns_add_u32 s{sHB[j]}, s{sHB[j]}, s{sT}')
        r.e(f'v_add_u32 v{vHJ[j]}, s{sHB[j]}, v{vL16}\nv_add_u32 v{vHD[j]}, s{sHB[j]}, v192')
    r.e(f's_lshl_b32 s{sKO[0]}, s{sRHO}, 11\ns_movk_i32 s{sKO[13]}, {13*2048}')
    for k in range(1, 13):
        if opt('rho', 0): r.e(f's_add_u32 s{sKO[k]}, s{sKO[k-1]}, 2048\ns_cmp_eq_u32 s{sKO[k]}, s{sKO[13]}\ns_cselect_b32 s{sKO[k]}, 0, s{sKO[k]}')
        elif k % 2 == 0: r.e(f's_movk_i32 s{sKO[k]}, {2048*k}')
    vG4, vG2, vB4 = t+8, t+9, t+10
    r.e(f's_mul_i32 s{sCW}, s{sC}, 160\ns_add_u32 s{sGO}, s{sGO}, s{sCW}\ns_mov_b32 s{sT}, 81920')
    r.e(f'v_and_b32 v{q}, 15, v{vL}\nv_mul_lo_u32 v{q}, s{sT}, v{q}\nv_lshrrev_b32 v{q+1}, 4, v{vL}\nv_lshl_add_u32 v{vG4}, v{q+1}, 4, v{q}\nv_lshl_add_u32 v{vG2}, v{q+1}, 3, v{q}')
    r.e(f'v_lshl_add_u32 v{vB4}, v{q+1}, 4, s{sCW}\nv_lshl_add_u32 v{q+2}, v{q+1}, 3, s{sCW}')
    xr = 160; br = 172
    r.ops += [f'buffer_load_dwordx4 v[{xr}:{xr+3}], v{vG4}, {srd(SX)}, s{sGO} offen', f'buffer_load_dwordx4 v[{xr+4}:{xr+7}], v{vG4}, {srd(SX)}, s{sGO} offen offset:64',
              f'buffer_load_dwordx2 v[{xr+8}:{xr+9}], v{vG2}, {srd(SX)}, s{sGO} offen offset:128',
              f'global_load_dwordx4 v[{br}:{br+3}], v{vB4}, s[{sB2}:{sB2+1}]', f'global_load_dwordx4 v[{br+4}:{br+7}], v{vB4}, s[{sB2}:{sB2+1}] offset:64']
    r.vm(f'global_load_dwordx2 v[{br+8}:{br+9}], v{q+2}, s[{sB2}:{sB2+1}] offset:128', 'xb')
    r.e(f's_and_b32 s{sT+1}, s2, 15\ns_lshr_b32 s{sT+2}, s{sW}, 1\ns_lshl_b32 s{sT+2}, s{sT+2}, 4\ns_add_u32 s{sT+1}, s{sT+1}, s{sT+2}')
    r.e(f's_and_b32 s{sT+2}, s{sW}, 1\ns_mul_i32 s{sT+2}, s{sT+2}, 96\ns_add_u32 s{sT+1}, s{sT+1}, s{sT+2}')
    r.e(f's_lshl_b32 s{sT+1}, s{sT+1}, 2\ns_lshl_b32 s{sT+2}, s{sZ}, 1\ns_add_u32 s{sT+1}, s{sT+1}, s{sT+2}')
    vF1, vF2, vFV = t, t+1, t+2
    r.e(f'v_lshrrev_b32 v{q}, 1, v{vL}\nv_lshlrev_b32 v{q}, 7, v{q}\nv_and_b32 v{q+1}, 1, v{vL}\nv_add3_u32 v{q}, v{q}, v{q+1}, s{sT+1}')
    r.e(f'v_lshlrev_b32 v{vF1}, 7, v{q}\nv_add_u32 v{vF1}, {HF_OFF}, v{vF1}')
    r.e(f's_sub_u32 s{sTS1}, 32, s{sT1}\ns_and_b32 s{sTS1}, s{sTS1}, 31\ns_cmp_ge_u32 s{sC}, 4\ns_cselect_b32 s{sTS1}, s{sTS1}, s{sT1}')
    r.e(f's_mul_i32 s{sT}, s{sC}, 5\ns_sub_u32 s{sT+1}, 35, s{sT}\ns_sub_u32 s{sT}, s{sT}, 1\ns_max_i32 s{sT}, s{sT}, 0')
    r.e(f's_cmp_ge_u32 s{sC}, 4\ns_cselect_b32 s{sT}, s{sT+1}, s{sT}')
    r.e(f'v_and_b32 v{q}, 7, v{vL}\nv_min_u32 v{q}, 5, v{q}\nv_add_u32 v{q}, s{sT}, v{q}\nv_min_u32 v{q}, 19, v{q}')
    r.e(f'v_cmp_le_u32 vcc, 10, v{q}\nv_cndmask_b32 v{q+2}, 0, 1, vcc')
    r.e(f'v_mul_u32_u24 v{q+3}, 10, v{q+2}\nv_sub_u32 v{q}, v{q}, v{q+3}\nv_sub_u32 v{q+3}, 6, v{q+2}\nv_add_u32 v{q+1}, v{q}, v{q+3}\nv_lshrrev_b32 v{q+1}, 1, v{q+1}\nv_min_u32 v{q}, v{q}, v{q+1}')
    r.e(f'v_lshlrev_b32 v{q}, 5, v{q}\nv_lshl_add_u32 v{q}, v{q+2}, 4, v{q}\nv_and_b32 v{q+1}, 8, v{vL}\nv_bfe_u32 v{q+3}, v{vL}, 4, 1\nv_add3_u32 v{q}, v{q}, v{q+1}, v{q+3}')
    r.e(f's_lshl_b32 s{sT}, s{sW}, 3\ns_lshr_b32 s{sT+2}, s{sTS1}, 3\ns_add_u32 s{sT}, s{sT}, s{sT+2}\nv_lshl_add_u32 v{q}, v{q}, 2, s{sT}')
    r.e(f'v_lshlrev_b32 v{vF2}, 7, v{q}\nv_add_u32 v{vF2}, {F_OFF+4}, v{vF2}\nv_lshrrev_b32 v{q+1}, 4, v{vL}')
    vUO = [t+3+k for k in range(5)]
    r.e(f'v_and_b32 v{q}, 15, v{vL}\ns_mul_i32 s{sT}, s{sC}, 80\nv_and_b32 v{q+4}, 12, v{vL}\nv_add3_u32 v{q+4}, v{q+4}, v{q}, s{sT}\nv_add_u32 v{q}, s{sT}, v{q}')
    r.e(f's_movk_i32 s{sT+1}, 5120\nv_mul_u32_u24 v{q+1}, s{sT+1}, v{q+1}')
    r.e(f's_cmp_ge_u32 s{sC}, 4\ns_cselect_b32 s{sT}, -1, 0\ns_cselect_b32 s{sT+1}, 640, -1')
    for ct in range(5):
        if ct < 4: r.e(f'v_add_u32 v{q+2}, {32*(ct>>1)+4*(ct&1)}, v{q+4}')
        else: r.e(f'v_add_u32 v{q+2}, 64, v{q}')
        r.e(f'v_xor_b32 v{q+2}, s{sT}, v{q+2}\nv_add_u32 v{q+2}, s{sT+1}, v{q+2}\nv_lshl_add_u32 v{vUO[ct]}, v{q+2}, 4, v{q+1}')
        if ct == 0: r.e(f'v_mov_b32 v{q+3}, {OOB}\nv_cmp_gt_i32 vcc, 0, v{q+2}\nv_cndmask_b32 v{vUO[0]}, v{vUO[0]}, v{q+3}, vcc')
    r.e(f's_lshl_b32 s{sUo}, s{sTS1}, 4\ns_lshl_b32 s{sT}, s{sW}, 2\ns_add_u32 s{sUo}, s{sUo}, s{sT}\ns_mul_i32 s{sUo}, s{sUo}, 5120\ns_add_u32 s{sUo}, s{sUo}, {U_OFF}')
    vPW = [t+11, t+12, t+13]; vPR = 0
    for j in range(3):
        r.e(f's_add_u32 s{sT}, s{sW}, {1+j}\ns_and_b32 s{sT}, s{sT}, 3\ns_mul_i32 s{sT}, s{sT}, 15360\ns_add_u32 s{sT}, s{sT}, {RED + j*5120}\nv_add_u32 v{vPW[j]}, s{sT}, v{vL16}')
    r.e(f's_mul_i32 s{sT}, s{sW}, 15360\ns_add_u32 s{sT}, s{sT}, {RED}\nv_add_u32 v{vPR}, s{sT}, v{vL16}')
    r.ops.insert(len(r.ops) * opt('hfp', 30) // 100, hflag)
    hl = f'buffer_load_dword v{vFV}, v{vF1}, {srd(SWS)}, 0 offen sc1'
    nl = max(0, len(later) - opt('nlast', 6))
    mm_ = merge(r.ops, later[:nl]); h_ = len(mm_) // 2
    run(a, mm_[:h_]); stamp(a, 's1'); run(a, mm_[h_:]); stamp(a, 's2')
    ini = [lambda a: a.wait(vm=r.tok['xb']), f's_mov_b32 s{sT}, 0x05040100\ns_mov_b32 s{sT+1}, 0x07060302']
    for ct in range(5):
        b = 16 + 60 + 4*ct
        for k in range(2):
            xs = xr + (4*(ct >> 1) + 2*(ct & 1) + k if ct < 4 else 8 + k); bs = xs - xr + br
            ini += L(f'v_perm_b32 v{b+2*k}, v{bs}, v{xs}, s{sT}\nv_perm_b32 v{b+2*k+1}, v{bs}, v{xs}, s{sT+1}')
    for k in range(20): ini.append(f'v_dot2_f32_bf16 v{76+k}, v{76+k}, s{sONES}, 0')
    a.e(f'v_mov_b32 v{vL}, v{vL16}'); st['vW'] = vL
    a.e('s_mov_b64 exec, 0x3ff')
    tk = a.vm(hl)
    a.e('s_mov_b64 exec, -1')
    run(a, merge(ini, later[nl:]))
    stamp(a, 6)
    a.wait(vm=tk)
    check_loop(a, hl, vFV, 10, sPC)
    stamp(a, 7)
    ht = {}
    def hload(slot, j):
        def op(a):
            vo = vHD[j] if slot == 13 else vHJ[j]
            ht[(slot, j)] = a.vm(f'buffer_load_dwordx4 {HF(pos[(slot, j)])}, v{vo}, {srd(SWS)}, s{sKO[slot] if RHO else sKO[slot & ~1]} offen offset:{0 if RHO else 2048*(slot & 1)} sc1')
        return op
    NE = opt('NE', 9)
    order = [(s_, j) for s_ in range(NE) for j in range(4)] + [(s_, j) for j in range(4) for s_ in range(NE, 14)]
    pos = {k: n for n, k in enumerate(order)}
    for j in range(4): hload(0, j)(a)
    NE = opt('NE', 9)
    order = [(s_, j) for s_ in range(NE) for j in range(4)] + [(s_, j) for j in range(4) for s_ in range(NE, 14)]
    pos = {k: n for n, k in enumerate(order)}
    hp = 4
    while hp < RING: hload(*order[hp])(a); hp += 1
    wq = list(st['inp2'])
    S = Sched(); f = {}; g = {}
    def group(s_, j):
        nonlocal hp
        n = pos[(s_, j)]
        for ct in range(5):
            pre = [lambda a: a.wait(vm=max(ht[(s_, j)], max(st['w2'][(s_, c_)] for c_ in range(5))))] if ct == 0 and not opt('nowait2', 0) else []
            c0 = '0' if (s_ == 0 and j < 3) else ACC2(ct, j)
            idx = S.add(f'v_mfma_f32_16x16x32_bf16 {ACC2(ct,j)}, {W2(s_,ct)}, {HF(n)}, {c0}', pre)
            if ct == 0: f[(s_, j)] = idx
        if hp < 56: S.put(idx, [hload(*order[hp])]); hp += 1
        if wq and n % opt('wev', 1) == 0: S.put(idx - 2, [wq.pop(0)])
    for s_ in range(NE):
        for j in range(4): group(s_, j)
    ul = f'buffer_load_dword v{vFV}, v{vF2}, {srd(SWS)}, 0 offen sc1'
    ku = opt('ku', NE - 4)
    S.put(f[(ku, 0)] + 1, [lambda a: (a.e('s_mov_b32 exec_hi, 0'), st.__setitem__('ul', a.vm(ul)), a.e('s_mov_b32 exec_hi, -1'))])
    S.put(f[(ku + 3, 0)] + 1, [lambda a: (a.wait(vm=st['ul']), check_loop(a, ul, vFV, 32, sPC))])
    fl = sorted(f.values())
    i3 = fl.index(f[(ku + 3, 1)])
    st['uput'] = True
    def ustep(j):
        for ct in range(5):
            pre = [lambda a: a.wait(vm=st['uf'])] if ct == 0 else []
            S.add(f'v_mfma_f32_16x16x32_bf16 {ACC2(ct,j)}, {UF(ct)}, a[{aTW+4*j}:{aTW+4*j+3}], {ACC2(ct,j)}', pre)
    def wr(j, at, step=1):
        for ct in range(5): S.put(at + step*ct, [f'ds_write_b128 v{vPW[j]}, {ACC2(ct,j)} offset:{ct*1024}'])
    for j in range(4):
        for s_ in range(NE, 14): group(s_, j)
        g[j] = f[(NE, j)]
        if j == 1: ustep(0)
        if j >= 1: ustep(j)
    wr(0, g[2] + 2, 2); wr(1, g[2] + 13, 2); wr(2, g[3] + 3)
    fl = sorted(f.values())
    for ct in range(5):
        S.put(fl[i3 + ct] + 1, [lambda a, ct=ct: st.__setitem__('uf', a.vm(f'buffer_load_dwordx4 {UF(ct)}, v{vUO[ct]}, {srd(SWS)}, s{sUo} offen sc1'))])
    PB = lambda jj, ct: 196 + 20*jj + 4*ct
    S.put(g[3] + 10, [lambda a: (a.wait(lg=a.lg_issued), a.e('s_barrier'))])
    rd = []
    for ct in range(5):
        for jj in range(3):
            rd.append(lambda a, jj=jj, ct=ct: st.__setitem__(('pr', ct), a.lg(f'ds_read_b128 v[{PB(jj,ct)}:{PB(jj,ct)+3}], v{vPR} offset:{jj*5120+ct*1024}')))
    S.spread(rd, g[3] + 11, g[3] + 18)
    nl = len(S.slots)
    sm = []
    for ct in range(5):
        sm.append(lambda a, ct=ct: a.wait(lg=st[('pr', ct)]))
        for k in range(4): sm.append(f'v_add_f32 v{PB(0,ct)+k}, v{PB(0,ct)+k}, v{PB(1,ct)+k}')
        for k in range(4): sm.append(f'v_add_f32 v{PB(0,ct)+k}, v{PB(0,ct)+k}, v{PB(2,ct)+k}')
    S.spread(sm, g[3] + 19, nl - 1)
    for s_ in range(NE): S.slots[f[(s_, 0)]]['pre'].insert(0, lambda a, s_=s_: stamp(a, f'e{s_}'))
    for j in range(4): S.slots[g[j]]['pre'].insert(0, lambda a, j=j: stamp(a, f'l{j}'))
    S.emit(a)
    stamp(a, 8)
    o = 96
    for ct in range(5):
        b = 76 + 4*ct
        for k in range(4): a.e(f'v_add_f32 v{b+k}, v{b+k}, v{PB(0,ct)+k}')
        a.e(cvtpk(o+2*ct, b, b+1)); a.e(cvtpk(o+2*ct+1, b+2, b+3))
        ost = opt('ost', '')
        if ct == 1: a.vm(f'buffer_store_dwordx4 v[{o}:{o+3}], v{vG4}, {srd(SOUT)}, s{sGO} offen {ost}')
        if ct == 3: a.vm(f'buffer_store_dwordx4 v[{o+4}:{o+7}], v{vG4}, {srd(SOUT)}, s{sGO} offen offset:64 {ost}')
        if ct == 4: a.vm(f'buffer_store_dwordx2 v[{o+8}:{o+9}], v{vG2}, {srd(SOUT)}, s{sGO} offen offset:128 {ost}')
    if DBG == 3:
        a.wait_all()
        le = label('dbgskip')
        a.e(f's_memrealtime s[{sT+1}:{sT+2}]\ns_waitcnt lgkmcnt(0)')
        a.e(f's_cmp_lg_u32 s{sW}, 0\ns_cbranch_scc1 {le}')
        a.e(f's_cmp_eq_u32 s2, {opt("wgA", 8)}\ns_cselect_b32 s{sT}, 4, 0\ns_cmp_eq_u32 s2, {opt("wgB", 232)}\ns_cselect_b32 s{sT}, 32, s{sT}\ns_cmp_eq_u32 s{sT}, 0\ns_cbranch_scc1 {le}')
        for k in range(1, 7): a.e(f's_sub_u32 s{sT+3}, s{sTS+2*k}, s{sTS}\nv_mov_b32 v{15+k}, s{sT+3}')
        a.e(f's_sub_u32 s{sT+3}, s{sT+1}, s{sTS}\nv_mov_b32 v22, s{sT+3}\nv_mov_b32 v2, s{sT}\ns_mov_b64 exec, 1')
        a.e(f'global_store_dwordx4 v2, v[16:19], s[{sDBG}:{sDBG+1}]\nglobal_store_dwordx3 v2, v[20:22], s[{sDBG}:{sDBG+1}] offset:16')
        a.e(f'{le}:')
    elif DBG:
        a.wait_all()
        a.e(f'{"s_memtime" if DBG == 2 else "s_memrealtime"} s[{sT+1}:{sT+2}]\ns_waitcnt lgkmcnt(0)')
        for k in range(9): a.e(f'v_mov_b32 v{16+k}, s{sTS+2*k}')
        a.e(f'v_mov_b32 v25, s{sT+1}\nv_mov_b32 v26, 0\nv_mov_b32 v27, 0')
        a.e(f's_lshl_b32 s{sT}, s2, 2\ns_add_u32 s{sT}, s{sT}, s{sW}\ns_lshl_b32 s{sT}, s{sT}, 6\ns_add_u32 s{sT}, s{sT}, {TS_OFF}')
        a.e(f'v_mov_b32 v2, 0\ns_mov_b64 exec, 1')
        for k in range(3): a.e(f'buffer_store_dwordx4 v[{16+4*k}:{19+4*k}], v2, {srd(SWS)}, s{sT} offen offset:{16*k}')
    a.e('s_endpgm')

def build():
    a = Asm(); prologue(a)
    outs = [a]
    for nG in (4, 2):
        b = a.fork()
        if nG == 2: b.e('L_S:')
        build_type(b, T(nG)); outs.append(b)
    lines = []
    for o in outs: lines += o.finish()
    return lines + SLOW

hdr = open('cdna_kernels/%s.s.ref' % NAME).read().split('; Override launch')[0]
lines = build()
with open(sys.argv[1], 'w') as f:
    f.write(hdr)
    f.write(f'; @launch grid=(256,1,1) block=(256,1,1) lds={LDS_BYTES}\n')
    f.write('.amdgcn_target "amdgcn-amd-amdhsa--gfx950"\n.text\n')
    f.write(f'.globl {NAME}_kernel\n.p2align 8\n.type {NAME}_kernel,@function\n{NAME}_kernel:\n')
    for l in lines: f.write(('' if l.endswith(':') else '    ') + l + '\n')
    f.write('L_end:\n    s_endpgm\n')
    f.write('.p2align 8\n.type L_ftab,@object\nL_ftab:\n')
    tb = F_table()
    for i in range(0, len(tb), 8): f.write('.long ' + ', '.join('0x%08x' % x for x in tb[i:i+8]) + '\n')
    f.write('.fill 8192, 4, 0\n')
    f.write(f'''.section .rodata,"a"
.p2align 6
.amdhsa_kernel {NAME}_kernel
  .amdhsa_next_free_vgpr 512
  .amdhsa_next_free_sgpr 102
  .amdhsa_accum_offset 256
  .amdhsa_group_segment_fixed_size 0
  .amdhsa_kernarg_size 104
  .amdhsa_user_sgpr_count 2
  .amdhsa_user_sgpr_kernarg_segment_ptr 1
  .amdhsa_system_sgpr_workgroup_id_x 1
.end_amdhsa_kernel
''')
print('instructions:', len(lines))
```

```python
import sys, struct, copy, os
from asmlib import Asm
NAME = 'parallel_sum__spectral_fnet__dense_activation_squared_relu__prompt'
DBG = int(sys.argv[2]) if len(sys.argv) > 2 else 0
OPT = dict(kv.split('=') for kv in sys.argv[3:])
def opt(k, d): return type(d)(OPT.get(k, d))

H_OFF = 0; U_OFF = 0x6C0000; P_OFF = 0x940000; ST_OFF = 0xB5C000; F_OFF = 0xB68000; TS_OFF = 0xB88000; PF_OFF = 0xBA0000; HF_OFF = 0xBB0000; WS_END = 0xBD0000
OOB = 0x40000000
ARING = 0; BBASE = 65536; AUX = 131072; TAB = 161792; TABC = TAB; TABB = TAB + 512; TABR = TAB + 1024; TABA = TAB + 1536
XCH = 0
RED_PITCH = 336; RED_WAVE = 64 * RED_PITCH
LDS_BYTES = 163840
SX, SW1, SW2, SWS, SOUT = 4, 8, 12, 16, 20
sB1, sB2, sDBG = 24, 26, 28
sW, sZ, sRB, sC8, sROW, sG0 = 30, 31, 32, 33, 34, 35
sA, sA2, sBo, sMA, sMB = 36, 37, 38, 39, 40
sT1, sC, sTAG, sONES = 41, 42, 43, 44
sT = 45
sH = [53, 54, 55, 56]; sFL = 57; sDT = 58; sAUXo = 59; sAUXs = 60; sTAU = 61; sW2o = 62; sH0 = 63; sH1 = 64; sUo = 65
sCW = 61+0*0 if False else 83; sGO = 82; sTS1 = 66; sPC = 69; sUS = 70; sE = 71
sAUXm = 3; sHB = [78, 79, 80, 81]
sRHO = 75; sWE = 76; sW4 = 77; sXCC = 66; sLOC = 67; sFH = 68
sKO = [36, 37, 38, 39, 40, 53, 54, 55, 56, 58, 59, 60, 63, 64]
sTS = 84
def srd(b): return f's[{b}:{b+3}]'
def fhex(x): return '0x%08x' % struct.unpack('<I', struct.pack('<f', x))[0]
XV = [False]
def X(ks): return f'v[{196+4*(ks%8)}:{199+4*(ks%8)}]' if XV[0] else f'a[{4*(ks%8)}:{4*(ks%8)+3}]'
def ACC1(i): return f'v[{32+16*i}:{47+16*i}]'
def WB(b, i, h=None):
    base = 96 + 16*b + 4*i if i < 4 else 184 + 4*b
    return f'v[{base}:{base+3}]' if h is None else f'v[{base+2*h}:{base+2*h+1}]'
aTW = 160; aF0 = 176; aSEL = 'a[192:195]'; aCS = 'a[196:199]'
def aF(k): return f'a[{aF0+4*k}:{aF0+4*k+3}]' if k < 4 else f'a[{152+4*(k-4)}:{155+4*(k-4)}]'
vL = 1
vOA = [2, 3]; vOB = [4, 5, 6, 7]; vAR = [8, 9, 10, 11]; vBR = [12, 13, 14, 15]
vT = 16
vST = 24
vNM, vSDV, vAL, vR = 24, 25, 26, 28
vNON = 28; vPF = 29; vHO = 30; vL16 = 31
vAUX = 160
def W2(slot, ct):
    if slot < 3: k, b = 'v', 196 + 20*slot + 4*ct
    elif slot < 5: k, b = 'a', 200 + 20*(slot-3) + 4*ct
    elif slot < 11: k, b = 'a', 32 + 20*(slot-5) + 4*ct
    elif slot == 11: k, b = 'a', (240 + 4*ct if ct < 4 else 152)
    elif slot == 12: k, b = 'a', (4*ct if ct < 4 else 156)
    else: k, b = 'a', (16 + 4*ct if ct < 4 else 196)
    return f'{k}[{b}:{b+3}]'
def UF(ct): return f'a[{176+4*ct}:{179+4*ct}]'
def ACC2(ct, rt): b = 16 + 20*rt + 4*ct; return f'v[{b}:{b+3}]'
RHO = opt('rho', 0)
RING = opt('ring', 12)
def HF(n): b = 96 + 4*(n % RING); return f'v[{b}:{b+3}]'

TSL = OPT.get('ts', '0,1,2,3,4,5,6,7,8').split(',')
def stamp(a, name):
    if str(name) not in TSL: return
    idx = TSL.index(str(name))
    if DBG: a.e(f'{"s_memtime" if DBG == 2 else "s_memrealtime"} s[{sTS+2*idx}:{sTS+2*idx+1}]')
def cvtpk(d, x, y): return f'v_cvt_pk_bf16_f32 v{d}, v{x}, v{y}'
uid = [0]
def label(p):
    uid[0] += 1; return f'L_{p}{uid[0]}'

class Sched:
    def __init__(self): self.slots = []
    def add(self, main, pre=()):
        self.slots.append({'pre': list(pre), 'main': main, 'fill': []}); return len(self.slots) - 1
    def put(self, idx, ops): self.slots[idx]['fill'] += list(ops)
    def spread(self, ops, first, last):
        ops = list(ops); n = last - first + 1
        for k, op in enumerate(ops):
            self.slots[first + min(n - 1, k * n // len(ops))]['fill'].append(op)
    def pack(self, ops, first, per):
        i = first
        for op in ops:
            while i < len(self.slots) - 1 and len(self.slots[i]['fill']) >= per: i += 1
            self.slots[i]['fill'].append(op)
        return i
    def emit(self, a, lo=0, hi=None):
        for s in self.slots[lo:hi]:
            for op in s['pre'] + [s['main']] + s['fill']:
                if op is None: continue
                if callable(op): op(a)
                else: a.e(op)
def L(text): return [t for t in text.split('\n') if t.strip()]

def mk_srd(b, lo, n):
    return f's_mov_b32 s{b}, s{lo}\ns_and_b32 s{b+1}, s{lo+1}, 0xffff\ns_mov_b32 s{b+2}, {n}\ns_mov_b32 s{b+3}, 0x20000'

def prologue(a):
    a.e('s_cmp_ge_u32 s2, 256\ns_cbranch_scc1 L_end')
    stamp(a, 0)
    a.e('s_load_dwordx2 s[66:67], s[0:1], 0')
    a.e('s_load_dwordx8 s[68:75], s[0:1], 48')
    a.e('s_load_dwordx4 s[76:79], s[0:1], 80')
    a.e('s_load_dwordx2 s[80:81], s[0:1], 96')
    a.e('s_getpc_b64 s[82:83]\nL_pc:')
    a.e('s_bfe_u32 s3, s2, 0x10003\ns_lshl_b32 s3, s3, 15\nv_lshl_add_u32 v2, v0, 7, s3')
    a.vm(f'global_load_dword v{vPF}, v2, s[82:83]')
    a.e('s_add_u32 s82, s82, L_ftab-L_pc\ns_addc_u32 s83, s83, 0')
    a.e(f'v_lshrrev_b32 v4, 6, v0\nv_and_b32 v{vL}, 63, v0\nv_readfirstlane_b32 s{sW}, v4')
    a.e(f's_bfe_u32 s{sZ}, s2, 0x10004')
    a.e(f's_and_b32 s{sT}, s2, 7\ns_bfe_u32 s{sT+1}, s2, 0x10003\ns_lshl_b32 s{sT}, s{sT}, 1')
    a.e(f's_add_u32 s{sRB}, s{sT}, s{sT+1}\ns_lshr_b32 s{sC8}, s2, 5')
    a.e(f's_sub_u32 s{sT+2}, 32, s{sRB}\ns_cmp_eq_u32 s{sRB}, 0\ns_cselect_b32 s{sT+2}, 16, s{sT+2}')
    a.e(f's_bitcmp1_b32 s{sW}, 1\ns_cselect_b32 s{sROW}, s{sT+2}, s{sRB}')
    a.e(f's_and_b32 s{sT+3}, s{sW}, 1\ns_lshl_b32 s{sT+3}, s{sT+3}, 5\ns_add_u32 s{sROW}, s{sROW}, s{sT+3}')
    a.e(f's_mov_b32 s{sAUXm}, s{sT+2}')
    a.e(f'v_lshrrev_b32 v{vT}, 3, v{vL}\nv_lshrrev_b32 v{vT+1}, 4, v{vL}\nv_and_b32 v{vT+2}, 7, v{vL}')
    a.e(f'v_xor_b32 v{vT+3}, v{vT+2}, v{vT+1}\ns_mov_b32 s{sT+4}, 81920\nv_mul_lo_u32 v{vT+4}, s{sT+4}, v{vT}')
    a.e(f'v_lshl_add_u32 v{vOA[0]}, v{vT+3}, 4, v{vT+4}\nv_xor_b32 v{vT+3}, 4, v{vT+3}')
    a.e(f'v_lshl_add_u32 v{vOA[1]}, v{vT+3}, 4, v{vT+4}\nv_add_u32 v{vOA[1]}, {8*81920-1024}, v{vOA[1]}')
    a.e(f's_mul_i32 s{sA}, s{sROW}, 1280\ns_add_u32 s{sA2}, s{sA}, {16*81920-2048}\ns_lshl_b32 s{sMA}, s{sW}, 12')
    a.e(f's_sub_u32 s{sT+5}, 6, s{sZ}\ns_cmp_ge_u32 s{sC8}, s{sT+5}\ns_cbranch_scc1 L_S')

class T:
    def __init__(self, nG):
        self.nG = nG; self.nD = 0 if nG == 4 else 2
        self.bslot = 4096 * nG
        self.pitch = 64 * nG
        self.DREG = 131072 if nG == 4 else 98304
        self.nb = nG

def prologue_t(a, t, st):
    if t.nG == 4:
        a.e(f's_mul_i32 s{sG0}, s{sZ}, 28\ns_lshl_b32 s{sT}, s{sC8}, 2\ns_add_u32 s{sG0}, s{sG0}, s{sT}')
        a.e(f'v_and_b32 v{vT+2}, 15, v{vL}\nv_lshlrev_b32 v{vT+3}, 2, v{vT+1}\nv_xor_b32 v{vT+2}, v{vT+2}, v{vT+3}')
        a.e(f's_movk_i32 s{sT+6}, 3456\nv_mul_u32_u24 v{vT+3}, s{sT+6}, v{vT+1}\nv_lshl_add_u32 v{vOB[0]}, v{vT+2}, 4, v{vT+3}')
        for i in range(1, 4): a.e(f'v_add_u32 v{vOB[i]}, {i*(4*3456-1024)}, v{vOB[0]}')
    else:
        a.e(f's_mul_i32 s{sG0}, s{sZ}, 26\ns_lshl_b32 s{sT}, s{sC8}, 1\ns_add_u32 s{sG0}, s{sG0}, s{sT}\ns_add_u32 s{sG0}, s{sG0}, 12')
        a.e(f's_mul_i32 s{sDT}, s{sZ}, 6\ns_add_u32 s{sDT}, s{sDT}, s{sT}\ns_sub_u32 s{sDT}, s{sDT}, 12')
        a.e(f'v_and_b32 v{vT+3}, 1, v{vT+1}\nv_lshlrev_b32 v{vT+3}, 2, v{vT+3}\nv_xor_b32 v{vT+2}, v{vT+2}, v{vT+3}')
        a.e(f's_movk_i32 s{sT+6}, 3456\nv_mul_u32_u24 v{vT+3}, s{sT+6}, v{vT}\nv_lshl_add_u32 v{vOB[0]}, v{vT+2}, 4, v{vT+3}')
        a.e(f'v_add_u32 v{vOB[1]}, {8*3456-1024}, v{vOB[0]}')
    a.e(f's_lshl_b32 s{sBo}, s{sG0}, 6\ns_mul_i32 s{sT}, s{sW}, {16*3456}\ns_add_u32 s{sBo}, s{sBo}, s{sT}')
    a.e(f's_mul_i32 s{sMB}, s{sW}, {1024*t.nb}\ns_add_u32 s{sMB}, s{sMB}, {BBASE}')
    a.e(f's_lshl_b32 s{sT+1}, s{sG0}, 6\nv_and_b32 v{vT+6}, {16*t.nG-1}, v{vL}\nv_lshl_add_u32 v{vT+6}, v{vT+6}, 2, s{sT+1}')
    stamp(a, 'p0')
    a.e('s_waitcnt lgkmcnt(0)')
    stamp(a, 'p1')

    a.vm(f'global_load_dword v{vT+7}, v{vT+6}, s[70:71]')
    a.e(f'v_bfe_u32 v{vT+5}, v{vL}, 0, 3\nv_mul_u32_u24 v{vT+5}, 0xa0, v{vT+5}')
    a.vm(f'global_load_dword v{vPF}, v{vT+5}, s[74:75]')
    a.e(mk_srd(SX, 66, 2048*1280)); a.e(mk_srd(SW1, 68, 640*3456))

def dma_ops(t, c, st):
    slot = c % 4
    ops = [f's_add_u32 m0, s{sMA}, {ARING + slot*16384}',
           f'buffer_load_dwordx4 v{vOA[0]}, {srd(SX)}, s{sA} offen {opt("ntx", "")} lds',
           f'buffer_load_dwordx4 v{vOA[1]}, {srd(SX)}, s{sA} offen offset:1024 {opt("ntx", "")} lds',
           f'buffer_load_dwordx4 v{vOA[0]}, {srd(SX)}, s{sA2} offen offset:2048 {opt("ntx", "")} lds',
           f'buffer_load_dwordx4 v{vOA[1]}, {srd(SX)}, s{sA2} offen offset:3072 {opt("ntx", "")} lds',
           f's_add_u32 m0, s{sMB}, {slot*t.bslot}\ns_add_u32 s{sA}, s{sA}, 128\ns_add_u32 s{sA2}, s{sA2}, 128']
    for i in range(t.nb):
        ops.append(f'buffer_load_dwordx4 v{vOB[i]}, {srd(SW1)}, s{sBo} offen offset:{1024*i} {opt("ntw", "")} lds')
    def last(a):
        st['dma'][c] = a.vm_issued
        a.e(f's_add_u32 s{sBo}, s{sBo}, {64*3456}')
    ops.append(last)
    return ops
def run(a, ops):
    for op in ops:
        if callable(op): op(a)
        else: a.e(op)

vAO = 128
vPK = 140; vSD = 160
sPo = 58; sPs = 62; sPf = 64; sSo = 60; sSs = 65
def aux_setup(a):
    q = 184
    a.e(f's_mul_i32 s{sT}, s{sZ}, 6\ns_add_u32 s{sT}, s{sT}, s{sC8}\ns_lshl_b32 s{sT}, s{sT}, 2\ns_add_u32 s{sT}, s{sT}, s{sW}')
    a.e(f's_mul_i32 s{sT+1}, s{sRB}, 27\ns_add_u32 s{sT+1}, s{sT+1}, s{sT}')
    a.e(f's_lshr_b32 s{sT+2}, s{sT+1}, 3\ns_and_b32 s{sT+3}, s{sT+1}, 7\ns_mul_i32 s{sPo}, s{sT+2}, 40960\ns_mul_i32 s{sT+5}, s{sT+3}, 160\ns_add_u32 s{sPo}, s{sPo}, s{sT+5}')
    a.e(f's_mul_i32 s{sPs}, s{sT+3}, 54\ns_add_u32 s{sPs}, s{sPs}, s{sT+2}\ns_mul_i32 s{sPs}, s{sPs}, 5120\ns_add_u32 s{sPs}, s{sPs}, {P_OFF}')
    a.e(f's_lshl_b32 s{sPf}, s{sT+1}, 7\ns_add_u32 s{sPf}, s{sPf}, {PF_OFF}')
    a.e(f's_cmp_lt_u32 s{sT}, 27\ns_cselect_b32 s{sT+4}, 0, {OOB}\ns_cselect_b32 s{sPo}, s{sPo}, 0')
    for i in range(5):
        a.e(f'v_add_u32 v{q}, {64*i}, v{vL}\nv_mul_u32_u24 v{q+1}, 0x667, v{q}\nv_lshrrev_b32 v{q+1}, 14, v{q+1}\nv_mul_u32_u24 v{q+1}, 0x460, v{q+1}')
        if i == 0: a.e(f'v_lshl_add_u32 v{vAO+9}, v{vL}, 4, s{sT+4}')
        a.e(f'v_add_u32 v{vAO+i}, v{vAO+9}, v{q+1}')
    a.e(f'v_add_u32 v{vAO+4}, 0x1000, v{vAO+4}')
    a.e(f's_sub_u32 s{sT}, s{sT}, 12\ns_cmp_lt_u32 s{sT}, 32\ns_cselect_b32 s{sT+4}, 0, {OOB}\ns_cselect_b32 s{sT}, s{sT}, 0')
    a.e(f's_bitcmp1_b32 s{sT}, 4\ns_cselect_b32 s{sT+2}, s{sAUXm}, s{sRB}')
    a.e(f's_bfe_u32 s{sT+3}, s{sT}, 0x10003\ns_lshl_b32 s{sT+3}, s{sT+3}, 5\ns_add_u32 s{sT+2}, s{sT+2}, s{sT+3}\ns_and_b32 s{sT+3}, s{sT}, 7\ns_lshl_b32 s{sT+3}, s{sT+3}, 8\ns_add_u32 s{sT+2}, s{sT+2}, s{sT+3}\ns_mul_i32 s{sSo}, s{sT+2}, 1280')
    a.e(f's_lshl_b32 s{sT+2}, s{sRB}, 5\ns_add_u32 s{sT+2}, s{sT+2}, s{sT}\ns_lshl_b32 s{sSs}, s{sT+2}, 6\ns_add_u32 s{sSs}, s{sSs}, {ST_OFF}')
    a.e(f'v_lshrrev_b32 v{q}, 4, v{vL}\ns_mov_b32 s{sT+5}, 81920\nv_mul_lo_u32 v{q+1}, s{sT+5}, v{q}\nv_and_b32 v{q+2}, 15, v{vL}\nv_lshlrev_b32 v{q+2}, 4, v{q+2}\nv_add3_u32 v{vAO+7}, v{q+2}, v{q+1}, s{sT+4}')
    a.e(f'v_lshl_add_u32 v{vAO+8}, v{q}, 4, s{sT+4}')
    a.e(f's_mul_i32 s{sAUXm}, s{sW}, 5120\ns_add_u32 s{sAUXm}, s{sAUXm}, {AUX}')
def aux_setup2(a):
    q = 184
    a.e(f'v_lshrrev_b32 v{q}, 5, v{vL}\nv_lshlrev_b32 v{q}, 4, v{q}\nv_bfe_u32 v{q+1}, v{vL}, 4, 1\nv_lshl_add_u32 v{q}, v{q+1}, 2, v{q}')
    a.e(f'v_bfe_u32 v{q+1}, v{vL}, 2, 2\nv_add_u32 v{q}, v{q}, v{q+1}\nv_mul_u32_u24 v{q}, 160, v{q}\nv_add_u32 v{q}, s{sAUXm}, v{q}')
    a.e(f'v_and_b32 v{q+1}, 3, v{vL}\nv_lshl_add_u32 v{vAO+5}, v{q+1}, 4, v{q}\nv_lshl_add_u32 v{vAO+6}, v{q+1}, 3, v{q}')

def unc_vm(text):
    def op(a): a.e(text); a.vm_issued -= 1
    return op
def unc_lg(text):
    def op(a): a.e(text); a.lg_issued -= 1
    return op
def pack_dma(st):
    o = []
    for i in range(5):
        def op(a, i=i):
            if i in (0, 4): a.e(f's_add_u32 m0, s{sAUXm}, {4096 if i else 0}')
            st['pk'] = a.vm(f'buffer_load_dwordx4 v{vAO+i}, {srd(SW2)}, s{sPo} offen offset:{(1024*i)%4096} {opt("ntp", "")} lds')
        o.append(op)
    return o
def pack_reads(st):
    o = [lambda a: a.wait(vm=st['pk'])]
    for ct in range(5):
        for h in range(2):
            t = (f'ds_read_b64_tr_b16 v[{vPK+4*ct+2*h}:{vPK+4*ct+2*h+1}], v{vAO+5} offset:{(ct>>1)*64+(ct&1)*8+h*1280}' if ct < 4 else
                 f'ds_read_b64_tr_b16 v[{vPK+4*ct+2*h}:{vPK+4*ct+2*h+1}], v{vAO+6} offset:{128+h*1280}')
            o.append(lambda a, t=t, ct=ct: st.__setitem__(('pr', ct), a.lg(t)))
    return o
def pack_stores(st):
    o = []
    for ct in range(5):
        def op(a, ct=ct):
            a.wait(lg=st[('pr', ct)])
            if ct == 4: a.e(f's_add_u32 s{sPs}, s{sPs}, 4096')
            st['ps'] = a.vm(f'buffer_store_dwordx4 v[{vPK+4*ct}:{vPK+4*ct+3}], v{vAO+9}, {srd(SWS)}, s{sPs} offen offset:{(1024*ct)%4096} sc1')
        o.append(op)
    return o
def aux_publish(st):
    g = 186
    def op(a):
        a.e(f'v_mov_b32 v{g+3}, s{sTAG}\ns_mov_b32 exec_lo, 0x00010001\ns_mov_b32 exec_hi, 0x00010001')
        a.vm(f'buffer_store_dwordx4 v[{g}:{g+3}], v{vAO+8}, {srd(SWS)}, s{sSs} offen sc1')
        a.wait(vm=st['ps'])
        a.e('s_mov_b64 exec, 1')
        a.vm(f'buffer_store_dword v{g+3}, v{vAO+9}, {srd(SWS)}, s{sPf} offen sc1')
        a.e('s_mov_b64 exec, -1'); stamp(a, 'pf')
    return op
def stats_loads(st):
    return [lambda a, i=i: st.__setitem__('sl', a.vm(f'buffer_load_dwordx4 v[{vSD+4*i}:{vSD+4*i+3}], v{vAO+7}, {srd(SX)}, s{sSo} offen offset:{256*i}')) for i in range(5)]
def stats_proc(st):
    q = 180; g = 186; d = vSD
    o = [lambda a: a.wait(vm=st['sl']), f's_mov_b32 s{sT}, 0xbf803f80']
    o += [f'v_mov_b32 v{q+k}, 0' for k in range(3)]
    o += [f'v_dot2c_f32_bf16 v{q}, s{sONES}, v{d+r}\nv_dot2c_f32_bf16 v{q+1}, v{d+r}, v{d+r}\nv_dot2c_f32_bf16 v{q+2}, s{sT}, v{d+r}' for r in range(20)]
    for sh in (8, 4, 2, 1):
        o += [f'v_add_f32_dpp v{q+k}, v{q+k}, v{q+k} row_ror:{sh} row_mask:0xf bank_mask:0xf' for k in range(3)]
    o += L(f'v_mul_f32 v{q}, {fhex(1/640)}, v{q}\nv_mul_f32 v{q+1}, {fhex(1/640)}, v{q+1}')
    o += L(f'v_fma_f32 v{q+1}, -v{q}, v{q}, v{q+1}\nv_max_f32 v{q+1}, 0, v{q+1}\nv_add_f32 v{q+1}, {fhex(1e-5)}, v{q+1}')
    o += L(f'v_rsq_f32 v{q+3}, v{q+1}\nv_sqrt_f32 v{g+1}, v{q+1}\nv_sub_f32 v{g}, 0, v{q}\nv_mul_f32 v{g+2}, v{q+2}, v{q+3}')
    return o

def nonce_pub(a):
    if opt('wsb', 0): a.e(f's_add_u32 s80, s80, {opt("wsb", 0) << 20}\ns_addc_u32 s81, s81, 0')
    a.e(mk_srd(SWS, 80, WS_END)); a.e(mk_srd(SOUT, 76, 2048*1280))
    a.e(f's_mov_b64 s[{sB1}:{sB1+1}], s[70:71]\ns_mov_b64 s[{sB2}:{sB2+1}], s[74:75]\ns_mov_b64 s[{sDBG}:{sDBG+1}], s[78:79]')
    ln = label('non')
    a.e(f's_or_b32 s{sT}, s2, s{sW}\ns_cmp_lg_u32 s{sT}, 0\ns_cbranch_scc1 {ln}')
    a.e(f's_memrealtime s[{sT+1}:{sT+2}]\ns_waitcnt lgkmcnt(0)\ns_or_b32 s{sT}, s{sT+1}, 1')
    a.e(f'v_mov_b32 v{vT}, 0\nv_mov_b32 v{vT+1}, s{sT}')
    a.e(f'global_store_dword v{vT}, v{vT+1}, s[{sDBG}:{sDBG+1}] sc1'); a.vm_issued -= 1
    a.e(f'{ln}:')

def setup2(a, t):
    a.e(f's_mov_b32 s{sONES}, 0x3f803f80')
    a.e(f's_sub_u32 s{sT+2}, 32, s{sRB}\ns_cmp_eq_u32 s{sRB}, 0\ns_cselect_b32 s{sT+2}, 16, s{sT+2}')
    a.e(f's_cmp_eq_u32 s{sZ}, 1\ns_cselect_b32 s{sT1}, s{sT+2}, s{sRB}\ns_mov_b32 s{sC}, s{sC8}')
    a.e(f's_mul_i32 s{sTAU}, s{sW}, 14\ns_cmp_eq_u32 s{sW}, 3\ns_cselect_b32 s{sTAU}, 41, s{sTAU}')
    a.e(f'v_and_b32 v{vT}, 31, v{vL}\nv_lshrrev_b32 v{vT+1}, 5, v{vL}')
    a.e(f'v_bfe_u32 v{vT+2}, v{vL}, 1, 3\nv_xor_b32 v{vT+2}, v{vT+2}, v{vT+1}')
    a.e(f'v_lshlrev_b32 v{vT+3}, 7, v{vT}\nv_add_u32 v{vT+3}, s{sMA}, v{vT+3}\nv_lshl_add_u32 v{vAR[0]}, v{vT+2}, 4, v{vT+3}')
    for s in range(1, 4): a.e(f'v_xor_b32 v{vAR[s]}, {s<<5}, v{vAR[0]}')
    a.e(f'v_bfe_u32 v{vT+4}, v{vL}, 2, 2\nv_lshl_add_u32 v{vT+2}, v{vT+1}, 3, v{vT+4}\nv_mul_u32_u24 v{vT+2}, {t.pitch}, v{vT+2}')
    a.e(f'v_bfe_u32 v{vT+3}, v{vL}, 4, 1\nv_lshl_add_u32 v{vT+2}, v{vT+3}, 5, v{vT+2}')
    a.e(f'v_and_b32 v{vT+3}, 3, v{vL}\nv_lshl_add_u32 v{vT+2}, v{vT+3}, 3, v{vT+2}\nv_add_u32 v{vT+2}, {BBASE}, v{vT+2}')
    if t.nG == 2: a.e(f'v_lshrrev_b32 v{vT+4}, 1, v{vT+4}')
    for i in range(t.nG):
        a.e(f's_add_u32 s{sT}, s{sW}, {i}\ns_and_b32 s{sT}, s{sT}, {t.nG-1}')
        a.e(f'v_xor_b32 v{vT+3}, s{sT}, v{vT+4}\nv_lshl_add_u32 v{vBR[i]}, v{vT+3}, 6, v{vT+2}')
        a.e(f's_mul_i32 s{sH[i]}, s{sROW}, 54\ns_add_u32 s{sH[i]}, s{sH[i]}, s{sG0}\ns_add_u32 s{sH[i]}, s{sH[i]}, s{sT}\ns_lshl_b32 s{sH[i]}, s{sH[i]}, 11')
    a.e(f's_lshl_b32 s{sFL}, s2, 2\ns_add_u32 s{sFL}, s{sFL}, s{sW}\ns_lshl_b32 s{sFL}, s{sFL}, 7\ns_add_u32 s{sFL}, s{sFL}, {F_OFF}')
    a.e(f'v_and_b32 v{vT}, 15, v{vL}\nv_bfe_u32 v{vT+1}, v{vL}, 4, 1\nv_mov_b32 v{vT+2}, s{sONES}\nv_cmp_eq_u32 vcc, v{vT}, v{vT+1}\nv_cndmask_b32 v{vT+2}, 0, v{vT+2}, vcc')
    for k in range(4): a.e(f'v_accvgpr_write_b32 a{192+k}, v{vT+2}')
    a.e(f'v_lshlrev_b32 v{vL16}, 4, v{vL}')
    a.e(f'v_lshlrev_b32 v{vHO}, 10, v{vT+1}\nv_lshrrev_b32 v{vT+1}, 5, v{vL}\nv_lshl_add_u32 v{vHO}, v{vT+1}, 8, v{vHO}\nv_lshl_add_u32 v{vHO}, v{vT}, 4, v{vHO}')

vSG = 244
def gen_D(a, t, tmp):
    q = tmp
    a.e(f'v_and_b32 v{q}, 31, v{vL}\nv_lshrrev_b32 v{q+1}, 5, v{vL}\nv_lshlrev_b32 v{q+1}, 3, v{q+1}\nv_and_b32 v{q+3}, 1, v{vL}')
    a.e(f'v_cmp_eq_u32 vcc, 0, v{q+3}\nv_cndmask_b32 v{q+2}, 0, 0.5, vcc\nv_cndmask_b32 v{vSG}, 1.0, -1.0, vcc')
    a.e(f's_mul_i32 s{sT+1}, s{sW}, {5*2048}\ns_add_u32 s{sT+1}, s{sT+1}, {t.DREG}\nv_add_u32 v{q+3}, s{sT+1}, v{vL16}')
    a.e(f's_lshl_b32 s{sT}, s{sDT}, 4\ns_add_u32 s{sT}, s{sT}, 1\nv_add_u32 v{q+4}, s{sT}, v{q}\nv_cvt_f32_u32 v{q+4}, v{q+4}\nv_mul_f32 v{q+4}, {fhex(1/640)}, v{q+4}')
    for k5 in range(5):
        a.e(f's_mul_i32 s{sT}, s{sW}, 5\ns_add_u32 s{sT}, s{sT}, {k5}\ns_and_b32 s{sT+2}, s{sT}, 1\ns_lshr_b32 s{sT}, s{sT}, 1\ns_lshl_b32 s{sT}, s{sT}, 5\ns_add_u32 s{sT}, s{sT}, s{sT+2}')
        o = q + 8
        a.e(f'v_add_u32 v{q+6}, s{sT}, v{q+1}\nv_cvt_f32_u32 v{q+6}, v{q+6}\nv_fma_f32 v{o}, v{q+6}, v{q+4}, v{q+2}')
        for i in range(1, 8): a.e(f'v_fmamk_f32 v{o+i}, v{q+4}, {fhex(float(16*(i>>2) + 2*(i&3)))}, v{o}')
        for i in range(8): a.e(f'v_cos_f32 v{o+8+i}, v{o+i}\nv_sin_f32 v{o+i}, v{o+i}')
        for ip in range(4): a.e(cvtpk(o+8+ip, o+8+2*ip, o+9+2*ip))
        a.lg(f'ds_write_b128 v{q+3}, v[{o+8}:{o+11}] offset:{(k5*2)*1024}')
        for ip in range(4): a.e(cvtpk(o+16+ip, o+2*ip, o+1+2*ip))
        a.lg(f'ds_write_b128 v{q+3}, v[{o+16}:{o+19}] offset:{(k5*2+1)*1024}')

import math
def bf16(x):
    u = struct.unpack('<I', struct.pack('<f', x))[0]
    return ((u + 0x7fff + ((u >> 16) & 1)) >> 16) & 0xffff
def F_table():
    w = []
    for fn in (math.cos, math.sin, lambda x: -math.sin(x)):
        for f in range(2):
            for l in range(64):
                t1 = l & 31; hi = l >> 5
                v = [bf16(round(fn(2*math.pi*((t1*(16*f + 8*(i >> 2) + 4*hi + (i & 3))) % 32)/32), 12)) for i in range(8)]
                w += [v[2*k] | (v[2*k+1] << 16) for k in range(4)]
    return w
def load_F():
    return [f'global_load_dwordx4 {aF(k)}, v{vL16}, s[82:83] offset:{1024*k}' for k in range(4)] + ['s_add_u32 s82, s82, 4096\ns_addc_u32 s83, s83, 0'] + [f'global_load_dwordx4 {aF(4+k)}, v{vL16}, s[82:83] offset:{1024*k}' for k in range(2)]

def rot_ids(a):
    for j in range(4):
        a.e(f's_add_u32 s{sT}, s{sW}, {1+j}\ns_and_b32 s{sT+1}, s{sT}, 1\ns_bfe_u32 s{sT}, s{sT}, 0x10001')
        a.e(f's_lshl_b32 s{sT}, s{sT}, 5\ns_add_u32 s{sT}, s{sT}, s{sT1}\ns_lshl_b32 s{sT+1}, s{sT+1}, 10\ns_add_u32 s{sHB[j]}, s{sT}, s{sT+1}')
def gen_TW(a, t, sT=sT):
    a.e(f'v_and_b32 v{t}, 15, v{vL}\nv_lshrrev_b32 v{t+1}, 4, v{vL}\ns_lshl_b32 s{sT}, s{sW}, 2\nv_add_u32 v{t+1}, s{sT}, v{t+1}')
    a.e(f'v_sub_u32 v{t+2}, 32, v{t+1}\nv_cmp_eq_u32 vcc, 0, v{t+1}\nv_cndmask_b32 v{t+2}, v{t+2}, 16, vcc')
    a.e(f's_mov_b32 s{sT+1}, 0x3a000000')
    a.e(f's_cmp_ge_u32 s{sC}, 4\ns_cselect_b32 s{sT+1}, s{sT+1}, 0xba000000')
    a.e(f'v_cvt_f32_u32 v{t+1}, v{t+1}\nv_cvt_f32_u32 v{t+2}, v{t+2}\nv_add_f32 v{t+3}, {fhex(32.0)}, v{t+1}\nv_add_f32 v{t+4}, {fhex(32.0)}, v{t+2}')
    s2r = [t+1, t+3, t+2, t+4]
    a.e(f'v_lshlrev_b32 v{t}, 6, v{t}')
    for j in range(4):
        a.e(f'v_add_u32 v{t+5}, s{sHB[j]}, v{t}\nv_cvt_f32_u32 v{t+5}, v{t+5}\nv_mul_f32 v{t+5}, s{sT+1}, v{t+5}')
        for w in range(4): a.e(f'v_mul_f32 v{t+6+w}, v{t+5}, v{s2r[w]}')
        for w in range(4): a.e(f'v_cos_f32 v{t+10+w}, v{t+6+w}\nv_sin_f32 v{t+6+w}, v{t+6+w}')
        for w in range(4): a.e(cvtpk(t+6+w, t+10+w, t+6+w))
        for w in range(4): a.e(f'v_accvgpr_write_b32 a{aTW+4*j+w}, v{t+6+w}')

def check_loop(a, load_text, vval, nl, cnt):
    ok, lp = label('ok'), label('lp')
    if nl < 64: a.e(f's_mov_b32 exec_lo, {hex(((1<<nl)-1)&0xffffffff)}\ns_mov_b32 exec_hi, {hex(((1<<nl)-1)>>32)}')
    a.e(f'v_cmp_ne_u32 vcc, s{sTAG}, v{vval}\ns_mov_b32 s{cnt}, 0\ns_cbranch_vccz {ok}')
    a.e(f'{lp}:\ns_sleep 1')
    a.e(load_text); a.vm_issued -= 1
    a.e(f's_waitcnt vmcnt(0)\nv_cmp_ne_u32 vcc, s{sTAG}, v{vval}\ns_add_u32 s{cnt}, s{cnt}, 1\ns_cmp_gt_u32 s{cnt}, 20000\ns_cbranch_scc1 {ok}\ns_cbranch_vccnz {lp}')
    a.e(f'{ok}:')
    if nl < 64: a.e('s_mov_b64 exec, -1')

def nonce_check(a, tok):
    ok, lp = label('nok'), label('nlp')
    a.wait(vm=tok)
    a.e(f'v_readfirstlane_b32 s{sTAG}, v{vNON}\ns_mov_b32 s{sPC}, 0\ns_cmp_lg_u32 s{sTAG}, 0\ns_cbranch_scc1 {ok}')
    a.e(f'{lp}:\nv_mov_b32 v{vNON}, 0')
    a.e(f'global_load_dword v{vNON}, v{vNON}, s[{sDBG}:{sDBG+1}] sc1'); a.vm_issued -= 1
    a.e(f's_waitcnt vmcnt(0)\nv_readfirstlane_b32 s{sTAG}, v{vNON}\ns_add_u32 s{sPC}, s{sPC}, 1\ns_cmp_gt_u32 s{sPC}, 20000\ns_cbranch_scc1 {ok}')
    a.e(f's_cmp_eq_u32 s{sTAG}, 0\ns_cbranch_scc1 {lp}\n{ok}:')

SLOW = []
def adapt(a, text):
    return a.vm(text + ' sc1')
def set_flag_h(a, vt):
    a.e(f'v_mov_b32 v{vt}, 0\nv_mov_b32 v{vt+1}, s{sTAG}\ns_mov_b64 exec, 1')
    adapt(a, f'buffer_store_dword v{vt+1}, v{vt}, {srd(SWS)}, s{sFH} offen')
    a.e('s_mov_b64 exec, -1')
def set_flag(a, word, vt):
    a.e(f'v_mov_b32 v{vt}, {4*word}\nv_mov_b32 v{vt+1}, s{sTAG}\ns_mov_b64 exec, 1')
    a.vm(f'buffer_store_dword v{vt+1}, v{vt}, {srd(SWS)}, s{sFL} offen sc1')
    a.e('s_mov_b64 exec, -1')

def w2_load_ops(slot, st, cts=range(5)):
    ops = []
    for ct in cts:
        def op(a, ct=ct):
            vo = st['vL16d'] if slot == 13 else st.get('vW', vL16)
            if ct in (0, 4): a.e(f's_add_u32 s{sW2o}, s{sUS}, {5120*slot + (4096 if ct else 0)}')
            st['w2'][(slot, ct)] = a.vm(f'buffer_load_dwordx4 {W2(slot,ct)}, v{vo}, {srd(SWS)}, s{sW2o} offen offset:{(1024*ct)%4096} sc1')
        ops.append(op)
    return ops

vDS = 195
def P2(d, h): return f'v[{128+32*d+16*h}:{143+32*d+16*h}]'
def PE(p, par): b = 228 + 8*(p & 1) + 4*par; return b
def pass1(a, t, st):
    nG = t.nG; NK = 40 if nG == 4 else 42
    def dinfo(ks): return (ks & 1, (ks - 2) >> 1) if (nG == 2 and ks >= 2) else None
    def rdW(ks, i):
        c, s = divmod(ks, 4); o = []
        if i < nG:
            if ks >= 40: return []
            for h in range(2):
                o.append(lambda a, h=h: st['w'].__setitem__((ks, i), a.lg(f'ds_read_b64_tr_b16 {WB(ks&1,i,h)}, v{vBR[i]} offset:{(c%4)*t.bslot + s*16*t.pitch + h*4*t.pitch}')))
        elif dinfo(ks):
            d, p = dinfo(ks)
            o.append(lambda a: st['w'].__setitem__((ks, i), a.lg(f'ds_read_b128 {WB(ks&1,i)}, v{vDS} offset:{(((p%10)*2 + i-2)*2 + d)*1024}')))
        return o
    def rdA(c, s):
        return f'ds_read_b128 {X(4*c+s)}, v{vAR[s]} offset:{ARING + (c%4)*16384}'
    st['w'] = {}
    if nG == 2: a.e(f'v_add_u32 v{vDS}, {t.DREG}, v{vL16}\ns_mov_b32 s{sE+2}, 0x05040100\ns_mov_b32 s{sE+3}, 0x07060302')
    a.wait(vm=st['dma'][0], lg=a.lg_issued)
    a.e('s_barrier')
    stamp(a, 2)
    a.e(rdA(0, 0))
    for i in range(4): run(a, rdW(0, i))
    for s in range(1, 4): a.e(rdA(0, s))
    S = Sched(); first = {}
    for ks in range(NK):
        c, s = divmod(ks, 4); buf = ks & 1
        for i in range(4):
            pre = []
            if i == 0 and s == 3 and c < 9:
                pre.append(lambda a, c=c: (a.wait(vm=st['dma'][c+1]), a.e('s_barrier')))
            if i in (0, 2):
                pre.append(lambda a, ks=ks, i=i: a.wait(lg=st['w'][(ks, i+1)]) if (ks, i+1) in st['w'] else None)
            m = None
            if i < nG:
                if ks < 40: m = f'v_mfma_f32_32x32x16_bf16 {ACC1(i)}, {WB(buf,i)}, {X(ks)}, {"0" if ks == 0 else ACC1(i)}'
            elif dinfo(ks):
                d, p = dinfo(ks); b = PE(p, i-2)
                m = f'v_mfma_f32_32x32x16_bf16 {P2(d, i-2)}, v[{b}:{b+3}], {WB(buf,i)}, {"0" if p == 0 else P2(d, i-2)}'
            idx = S.add(m, pre)
            if i == 0: first[ks] = idx
            if i == 0 and ks < 37: S.put(idx, [f'v_mfma_f32_16x16x32_bf16 {aCS}, {aSEL}, {WB(buf,0)}, {"0" if ks == 0 else aCS}'])
        if ks < NK - 1:
            rd = [rdA(c+1, 0)] if (s == 3 and c < 9) else []
            k = len(rd)
            for i in range(4): rd += rdW(ks+1, i)
            if nG == 4: S.put(first[ks], rd[:k+3]); S.put(first[ks]+1, rd[k+3:7]); S.put(first[ks]+2, rd[7:])
            else: S.put(first[ks], rd[:k+3]); S.put(first[ks]+1, rd[k+3:])
            if s == 3 and c < 9: S.put(first[ks]+3, [rdA(c+1, 1)])
            if s == 0 and 0 < c < 10: S.put(first[ks]+3, [rdA(c, 2), rdA(c, 3)])
        if nG == 2 and ks & 1 and ks < 40:
            p = ks >> 1; xa = 196 + 4*((ks-1) % 8); xb = 196 + 4*(ks % 8)
            pm = []
            for par in range(2):
                for k, src in enumerate((xa, xa+2, xb, xb+2)): pm.append(f'v_perm_b32 v{PE(p,par)+k}, v{src+1}, v{src}, s{sE+2+par}')
            S.put(first[ks]+2, pm[:4]); S.put(first[ks]+3, pm[4:])
    if nG == 2:
        for d in range(2): S.spread([f'v_mul_f32 v{128+32*d+k}, v{vSG}, v{128+32*d+k}' for k in range(32)], first[21+d]+1, first[22+d]+1)
    exb = 160 if nG == 4 else 84
    ex = []
    for n in range(3):
        for h in range(2):
            ex.append(lambda a, n=n, h=h: st.__setitem__('ex', a.lg(f'ds_read_b64_tr_b16 v[{exb+4*n+2*h}:{exb+1+4*n+2*h}], v{vBR[0]} offset:{(9%4)*t.bslot + (n+1)*16*t.pitch + h*4*t.pitch}')))
    mm = [lambda a: a.wait(lg=st['ex'])] + [f'v_mfma_f32_16x16x32_bf16 {aCS}, {aSEL}, v[{exb+4*n}:{exb+3+4*n}], {aCS}' for n in range(3)]
    S.put(first[35]+3, ex[:3]); S.put(first[36]+3, ex[3:]); S.put(first[37], mm); st['cs_slot'] = first[37] + 3; st['bar_slot'] = first[38] + 2
    gaps = []
    for ks in range(40):
        gaps += [(ks, first[ks]), (ks, first[ks]+2)] + ([(ks, first[ks]+3)] if ks < opt('ncu', 6) else [])
    gi = 0
    for c in range(st['next_chunk'], 10):
        ops = dma_ops(t, c, st)
        A = ops[1:5]; B = ops[6:-1]
        eA = (c-3)*4 if c >= 4 else 0
        eB = (c-2)*4 - 1 if c >= 4 else 0
        lo = max(0, (c - opt('la', 2) - 1)*4 + 1)
        for k, op in enumerate(A + B):
            e = max(eA if k < 4 else eB, lo)
            while gaps[gi][0] < e: gi += 1
            pre = [ops[0]] if k == 0 else ([ops[5]] if k == 4 else [])
            post = [ops[-1]] if k == 3 + len(B) else []
            g = gaps[gi][1]
            if pre: S.put(g - 1 if g > 0 else g, pre)
            S.put(g, [op] + post); gi += 1
        assert gaps[gi-1][0] < c*4 - 1, (c, gaps[gi-1])
    return S, first

AUGW = None
def h_aug_x(tmp):
    p, q2 = tmp+4, tmp+5
    o = [cvtpk(p, vNM, vSDV), f'v_lshlrev_b32 v{tmp+6}, 16, v{p}', f'v_and_b32 v{tmp+7}, 0xffff0000, v{p}',
         f'v_sub_f32 v{tmp+6}, v{vNM}, v{tmp+6}', f'v_sub_f32 v{tmp+7}, v{vSDV}, v{tmp+7}', cvtpk(q2, tmp+6, tmp+7)]
    o += [f'v_mov_b32 v{tmp+k}, 0' for k in range(4)]
    o += [f's_mov_b32 s{sT+3}, 0x05040100\ns_mov_b32 exec_hi, 0\nv_perm_b32 v{tmp}, v{q2}, v{p}, s{sT+3}\nv_mov_b32 v{tmp+1}, v{p}\nv_lshrrev_b32 v{tmp+2}, 16, v{q2}\ns_mov_b32 exec_hi, -1']
    return o
def h_aug_w(st, i, tmp, vtb):
    b = AUGW[i]
    rd = [lambda a: st['tb'].__setitem__(i, a.lg(f'ds_read2_b32 v[{b+4}:{b+5}], v{vtb} offset0:0 offset1:128'))]
    mk = [lambda a: a.wait(lg=st['tb'][i]), cvtpk(b, b+4, b+4), cvtpk(b+2, b+5, b+5), f'v_and_b32 v{b+1}, 0xffff0000, v{b}', f'v_mov_b32 v{b+3}, 0',
          f'v_sub_f32 v{b+1}, v{b+4}, v{b+1}', cvtpk(b+1, b+1, b+5)]
    mf = [f'v_mfma_f32_32x32x16_bf16 {ACC1(i)}, v[{b}:{b+3}], v[{tmp}:{tmp+3}], {ACC1(i)}']
    return rd, mk, mf
def h_fin(st, i, u):
    acc = 32 + 16*i + 8*u; o = []
    for k in range(8): o.append(f'v_max_f32 v{acc+k}, 0, v{acc+k}')
    for k in range(8): o.append(f'v_mul_f32 v{acc+k}, v{vR}, v{acc+k}')
    for k in range(8): o.append(f'v_mul_f32 v{acc+k}, v{acc+k}, v{acc+k}')
    for k in range(4): o.append(cvtpk(acc+k, acc+2*k, acc+2*k+1))
    if opt('nohst', 0): o.append(lambda a: st.__setitem__('hst', a.vm_issued))
    else: o.append(lambda a: st.__setitem__('hst', adapt(a, f'buffer_store_dwordx4 v[{acc}:{acc+3}], v{vHO}, {srd(SWS)}, s{sH[i]} offen offset:{512*u}')))
    return o

class Rec:
    def __init__(self): self.ops = []; self.tok = {}
    def e(self, text):
        ls = L(text); i = 0
        while i < len(ls):
            j = i + 1
            if ls[i].startswith('s_cmp') or ls[i].startswith('s_bitcmp') or ls[i].startswith('v_cmp'):
                while j < len(ls) and not (ls[j].startswith('s_cselect') or ls[j].startswith('s_cbranch') or ls[j].startswith('v_cndmask')): j += 1
                while j < len(ls) and (ls[j].startswith('s_cselect') or ls[j].startswith('s_cbranch') or ls[j].startswith('v_cndmask')): j += 1
            self.ops.append('\n'.join(ls[i:j])); i = j
    def lg(self, text): self.ops.append(text)
    def vm(self, text, key='t'):
        self.ops.append(lambda a: self.tok.__setitem__(key, a.vm(text)))
def merge(main, other):
    out = []; n, m = len(main), len(other); k = 0
    for i, op in enumerate(main):
        out.append(op)
        while k < m and (k + 1) * n <= (i + 1) * m + m - 1 and k * n <= i * m: out.append(other[k]); k += 1
    return out + other[k:]

def touch_ops(t, lo, hi, q=188):
    n = hi - lo
    o = [f'v_mov_b32 v{q+2}, {OOB}']
    o += L(f'v_and_b32 v{q}, 3, v{vL}\ns_lshl_b32 s{sPC}, s{sC8}, 2\nv_add_u32 v{q}, s{sPC}, v{q}\nv_mul_u32_u24 v{q}, 640, v{q}\nv_lshrrev_b32 v{q+1}, 2, v{vL}\nv_add3_u32 v{q}, v{q}, v{q+1}, {lo}\nv_lshlrev_b32 v{q}, 7, v{q}')
    o += [f'v_cmp_gt_u32 vcc, {4*n}, v{vL}\nv_cndmask_b32 v{q}, v{q+2}, v{q}, vcc', f's_mul_i32 s{sPC}, s{sROW}, 1280']
    o += [f'buffer_load_dword v{vPF}, v{q}, {srd(SX)}, s{sPC} offen {opt("ntx", "")}']
    if t.nG == 4: o += L(f'v_lshrrev_b32 v{q}, 1, v{vL}\nv_and_b32 v{q+1}, 1, v{vL}')
    else: o += L(f'v_mov_b32 v{q}, v{vL}\nv_mov_b32 v{q+1}, 0')
    o += L(f'v_lshlrev_b32 v{q}, 4, v{q}\ns_and_b32 s{sPC}, s{sRB}, 3\ns_lshl_b32 s{sPC}, s{sPC}, 2\ns_add_u32 s{sPC}, s{sPC}, s{sW}\ns_add_u32 s{sPC}, s{sPC}, {64*lo}')
    o += L(f'v_add_u32 v{q}, s{sPC}, v{q}\nv_mul_u32_u24 v{q}, 0xd80, v{q}\nv_lshl_add_u32 v{q}, v{q+1}, 7, v{q}\ns_lshl_b32 s{sPC}, s{sG0}, 6')
    o += [f'v_cmp_gt_u32 vcc, {(8 if t.nG == 4 else 4)*n}, v{vL}\nv_cndmask_b32 v{q}, v{q+2}, v{q}, vcc']
    o += [f'buffer_load_dword v{vPF}, v{q}, {srd(SW1)}, s{sPC} offen {opt("ntw", "")}']
    assert n <= 8
    return o

vTX, vTW = 193, 194; sTX, sTW = 52, 72
def roll_setup(t, n):
    q = 188
    o = L(f'v_mov_b32 v{q+2}, {OOB}\nv_and_b32 v{q+3}, 3, v{vL}\nv_lshrrev_b32 v{q+1}, 2, v{vL}\ns_mul_i32 s{sPC}, s{sZ}, 6\ns_add_u32 s{sPC}, s{sPC}, s{sC8}\ns_mul_i32 s{sPC}, s{sPC}, 3')
    o += L(f'v_add_u32 v{q}, s{sPC}, v{q+3}\nv_min_u32 v{q}, 31, v{q}\nv_mul_u32_u24 v{q}, 640, v{q}\nv_add_lshl_u32 v{q}, v{q}, v{q+1}, 7')
    o += [f'v_cmp_gt_u32 vcc, {4*n}, v{vL}\nv_cndmask_b32 v{q}, v{q+2}, v{q}, vcc', f'v_cmp_gt_u32 vcc, 3, v{q+3}\nv_cndmask_b32 v{vTX}, v{q+2}, v{q}, vcc', f's_mul_i32 s{sTX}, s{sROW}, 1280']
    o += L(f's_mul_i32 s{sTW}, s{sZ}, 12\ns_add_u32 s{sTW}, s{sTW}, s{sC8}\ns_add_u32 s{sTW}, s{sTW}, 12\ns_lshl_b32 s{sTW}, s{sTW}, 7\ns_add_u32 s{sPC}, s{sZ}, 2')
    o += [f's_cmp_lt_u32 s{sC8}, s{sPC}\ns_cselect_b32 s{sTW}, s{sTW}, {OOB}', f'v_mov_b32 v{q}, s{sTW}', f's_lshl_b32 s{sPC}, s{sG0}, 6', f'v_lshl_add_u32 v{vTW}, v{q+3}, 7, s{sPC}']
    o += [f'v_cmp_eq_u32 vcc, 2, v{q+3}\nv_cndmask_b32 v{vTW}, v{vTW}, v{q}, vcc', f'v_cmp_eq_u32 vcc, 3, v{q+3}\nv_cndmask_b32 v{vTW}, v{vTW}, v{q+2}, vcc']
    o += L(f's_lshl_b32 s{sPC}, s{sRB}, 2\ns_add_u32 s{sPC}, s{sPC}, s{sW}\nv_lshl_add_u32 v{q}, v{q+1}, 6, s{sPC}\nv_mul_u32_u24 v{q}, 0xd80, v{q}\nv_add_u32 v{vTW}, v{vTW}, v{q}')
    o += [f'v_cmp_gt_u32 vcc, {4*n}, v{vL}\nv_cndmask_b32 v{vTW}, v{q+2}, v{vTW}, vcc', f's_mov_b32 s{sTW}, 0']
    return o
def roll(st, lo):
    def op1(a):
        d = lo - st.get('roll', 0); st['roll'] = lo
        if d: a.e(f's_add_u32 s{sTX}, s{sTX}, {128*d}\ns_add_u32 s{sTW}, s{sTW}, {64*3456*d}')
        a.vm(f'buffer_load_dword v{vPF}, v{vTX}, {srd(SX)}, s{sTX} offen {opt("ntx", "")}')
    return [op1, f'buffer_load_dword v{vPF}, v{vTW}, {srd(SW1)}, s{sTW} offen {opt("ntw", "")}']

def build_type(a, t):
    st = {'dma': {}, 'w2': {}, 'tb': {}}
    nG, nD = t.nG, t.nD
    XV[0] = (nG == 2)
    prologue_t(a, t, st)
    run(a, dma_ops(t, 0, st))
    stamp(a, 'p2')
    if nG == 4:
        a.e(mk_srd(SW2, 72, 1728*1280)); aux_setup(a)
        run(a, pack_dma(st))
    nonce_pub(a)
    stamp(a, 'p3')
    r = Rec()
    if nG == 4: aux_setup2(r)
    setup2(r, t)
    if nG == 2: gen_D(r, t, 96)
    rot_ids(r)
    if opt('twR', 0) if nG == 4 else opt('twS', 1): gen_TW(r, 96)
    main = r.ops
    vSA, vFA, vFV = vT+3, vT+4, vT+5
    st['vL16d'] = 192
    pre = L(f's_lshl_b32 s{sT}, s{sRB}, 2\ns_add_u32 s{sT}, s{sT}, s{sW}\ns_lshl_b32 s{sT}, s{sT}, 9\ns_add_u32 s{sT}, s{sT}, {ST_OFF}')
    pre += L(f'v_and_b32 v{vSA}, 31, v{vL}\nv_lshl_add_u32 v{vSA}, v{vSA}, 4, s{sT}')
    pre += L(f'v_add_u32 v{vFA}, s{sTAU}, v{vL}\nv_min_u32 v{vFA}, 53, v{vFA}')
    pre += L(f's_lshl_b32 s{sT}, s{sC}, 7\ns_add_u32 s{sT}, s{sT}, {PF_OFF}\nv_lshlrev_b32 v{vFA}, 10, v{vFA}\nv_add_u32 v{vFA}, s{sT}, v{vFA}')
    pre += L(f's_mul_i32 s{sUS}, s{sC}, 54\ns_add_u32 s{sUS}, s{sUS}, s{sTAU}\ns_mul_i32 s{sUS}, s{sUS}, 5120\ns_add_u32 s{sUS}, s{sUS}, {P_OFF}')
    pre += [f's_cmp_ge_u32 s{sW}, 2\ns_cselect_b32 s{sT}, {OOB}, 0', f'v_add_u32 v192, s{sT}, v{vL16}']
    vTB = [4, 5, 6, 7] if nG == 4 else [14, 15]; vRT = 3
    prep = L(f's_lshl_b32 s{sE+1}, s{sW}, 7\ns_add_u32 s{sE+1}, s{sE+1}, {TABR}\nv_and_b32 v{vT+6}, 31, v{vL}\nv_lshl_add_u32 v{vRT}, v{vT+6}, 2, s{sE+1}')
    for i in range(nG):
        prep += L(f's_add_u32 s{sE}, s{sW}, {i}\ns_and_b32 s{sE}, s{sE}, {nG-1}\ns_lshl_b32 s{sE}, s{sE}, 7\ns_add_u32 s{sE}, s{sE}, {TABC}\nv_lshl_add_u32 v{vTB[i]}, v{vT+6}, 2, s{sE}')
    prep += [f'v_lshrrev_b32 v{vT+6}, 5, v{vL}']
    nonl = [f'v_mov_b32 v{vNON}, 0', lambda a: st.__setitem__('non', a.vm(f'global_load_dword v{vNON}, v{vNON}, s[{sDBG}:{sDBG+1}] sc1'))]
    st['next_chunk'] = 2
    main = main + pre
    rs = [x.split('@') for x in opt('rs', '1@s1,4@s2,7@6').split(',') if x]
    at = lambda p: [o for c_, p_ in rs if p_ == p for o in roll(st, int(c_))]
    if nG == 4:
        n = len(main); c1 = n * opt('c1', 40) // 100
        run(a, roll_setup(t, opt('rn', 3)) + at('s1') + merge(main[:c1], stats_loads(st)))
        run(a, merge(main[c1:], dma_ops(t, 1, st)) + nonl + at('s2')); stamp(a, 'p4')
        sp = stats_proc(st); ps = pack_stores(st)
        if opt('ain', 0): pass
        elif opt('d2', 1):
            run(a, pack_reads(st)); stamp(a, 'q0')
            run(a, merge(sp, dma_ops(t, 2, st) + ps)); st['next_chunk'] = 3
        else: run(a, pack_reads(st) + merge(sp, ps))
    else:
        n = len(main); c3 = n * opt('s3', 60) // 100
        run(a, main[:c3]); stamp(a, 'p4')
        run(a, merge(main[c3:], dma_ops(t, 1, st)) + nonl)
    stamp(a, 1)
    S, first = pass1(a, t, st)
    NS = 4
    l = lambda ks: first[ks] + 3
    b1tab = L(f'v_lshlrev_b32 v{vT}, 16, v{vT+7}\nv_and_b32 v{vT+1}, 0xffff0000, v{vT+7}\nv_lshlrev_b32 v{vT+2}, 3, v{vL}\nv_add_u32 v{vT+2}, {TABB}, v{vT+2}\nds_write_b64 v{vT+2}, v[{vT}:{vT+1}]')
    S.spread(b1tab, first[3], l(3))
    S.put(l(opt('kn', 4) if nG == 4 else 11), [lambda a: nonce_check(a, st['non'])])
    if nG == 4:
        if opt('ain', 0):
            ka_ = opt('ka', 1)
            S.spread(pack_reads(st), first[ka_], l(ka_+1))
            for k_, op_ in enumerate(ps): S.put(l(ka_+2+k_), [op_])
            S.put(l(ka_+2), sp[:5] + [lambda a: run(a, sp[5:25])]); S.spread(sp[25:], first[ka_+3], l(ka_+6))
        S.put(l(opt('kf', 11 if opt('ain', 0) else 6)), [aux_publish(st)])
        for c_, p_ in rs:
            if p_[0] != 's': S.put(l(int(p_)), roll(st, int(c_)))
    pfl = f'buffer_load_dword v{vFV}, v{vFA}, {srd(SWS)}, 0 offen sc1'
    stl = f'buffer_load_dwordx4 v[{vST}:{vST+3}], v{vSA}, {srd(SWS)}, 0 offen sc1'
    if nG == 2: S.spread(load_F(), l(13), l(16))
    sf = '' if nG == 4 else 'S'
    kq = opt('kq' + sf, 19 if nG == 4 else 23); kp = kq - 3
    early = opt('early', 1)
    S.put(l(opt('ks', 30)), [lambda a: st.__setitem__('stl', a.vm(stl))])
    S.put(l(kp if early else 38), [lambda a: st.__setitem__('pfl', a.vm(pfl))])
    pchk = lambda a: (a.wait(vm=st['pfl']), check_loop(a, pfl, vFV, 14, sPC), stamp(a, 'pc'))
    S.put(l(kq), [pchk if early else (lambda a: a.wait(vm=st['stl']))])
    allw = []
    for s_ in (range(14) if nG == 4 else list(range(3, 14)) + [0, 1, 2]): allw += w2_load_ops(s_, st)
    st['twq'] = []
    if opt('touchw', 0):
        nl_ = opt('tl', 16)
        tw = L(f's_bfe_u32 s{sT}, s2, 0x20003\nv_lshl_add_u32 v{vFA}, v{vL}, 2, s{sT}\nv_lshlrev_b32 v{vFA}, 7, v{vFA}\ns_mov_b32 s{sTX}, s{sUS}')
        S.put(l(kq), tw)
        nb_ = -(-130 // nl_)
        for j in range(nb_):
            n_ = min(nl_, 130 - j*nl_)
            op = f's_mov_b64 exec, {hex((1 << n_) - 1)}\nbuffer_load_dword v{vPF}, v{vFA}, {srd(SWS)}, s{sTX} offen sc1\ns_mov_b64 exec, -1\ns_add_u32 s{sTX}, s{sTX}, {nl_*512}'
            k_ = kq + 1 + opt('tstep', 3)*j
            if k_ < 40: S.put(first[k_] + 1, [op])
            else: st['twq'].append(op)
    n0 = 0
    kA, kB = kq + 1, opt('kB' + sf, 31)
    for ks in range(kA, 40):
        pos_ = [first[ks] + 1] if ks < kB else sorted([first[ks], first[ks] + NS - 2, first[ks] + 1][:opt('ne' + sf, 2)])
        if ks < kB and (ks - kA) % opt('kAs' + sf, 2 if nG == 4 else 1): pos_ = []
        for p_ in pos_: S.put(p_, [allw[n0]]); n0 += 1
    assert n0 <= (60 if nG == 4 else 42)
    global AUGW
    tmp = 172 if nG == 4 else 64
    AUGW = [160, 166, 96, 102] if nG == 4 else [72, 78]
    e1 = [lambda a: (a.wait(vm=st['stl']), check_loop(a, stl, vST+3, 64, sPC))]
    e1 += [f'v_rcp_f32 v{vR}, v{vSDV}']
    if nG == 2: e1 += [f's_nop 0\nds_write2st64_b32 v{vRT}, v{vR}, v{vAL} offset0:0 offset1:2']
    e1 += h_aug_x(tmp)
    S.spread(prep, first[31], l(33)); S.spread(e1, first[34], l(36))
    e2 = L(f'v_accvgpr_read_b32 v{vT}, a196\nv_accvgpr_read_b32 v{vT+1}, a197')
    e2 += [f's_mov_b64 exec, 0xffff\nds_write2_b32 v{vTB[0]}, v{vT}, v{vT+1} offset0:0 offset1:16\ns_mov_b64 exec, -1', lambda a: st.__setitem__('csw', a.lg_issued)]
    S.put(st['cs_slot'], e2)
    S.slots[st['bar_slot']]['pre'].append(lambda a: (a.wait(lg=st['csw']), a.e('s_barrier')))
    aw = [h_aug_w(st, i, tmp, vTB[i]) for i in range(nG)]
    S.put(st['bar_slot'], [x for i in range(nG) for x in aw[i][0]])
    S.spread([x for i in range(nG) for x in aw[i][1]], min(st['bar_slot'] + 2, l(39)), l(39))
    for ks in range(40): S.slots[first[ks]]['pre'].insert(0, lambda a, ks=ks: stamp(a, f'k{ks}'))
    if nG == 2: S.put(first[40], aw[0][2] + aw[1][2])
    S.emit(a)
    if nG == 4:
        for i in range(nG): run(a, aw[i][2])
    stamp(a, 3)
    n1 = n0
    npre2 = opt('npre2', 70)
    later = allw[n1:npre2]; st['inp2'] = allw[npre2:]
    ufirst = nG == 2 and opt('ufS', 0)
    def hflag(a):
        a.wait(vm=st['hst']); a.e(f's_add_u32 s{sFH}, s{sFL}, {HF_OFF - F_OFF}'); set_flag_h(a, 193); stamp(a, 'hf')
    def uflag(a):
        a.wait(vm=st['ust']); set_flag(a, 1, 193); stamp(a, 'uf')
    def do_U():
        rr = 96
        a.e(f'v_lshl_add_u32 v{vT}, v{vT+6}, 4, s{sE+1}')
        for jq in range(4): rt_ = a.lg(f'ds_read_b128 v[{rr+4*jq}:{rr+4*jq+3}], v{vT} offset:{32*jq}')
        vXW, vXR_, vUS = vT+2, vT+3, vT+4
        a.e(f'v_and_b32 v{vT+1}, 31, v{vL}\nv_lshlrev_b32 v{vT+5}, 2, v{vT+1}\nv_lshl_add_u32 v{vXW}, v{vT+6}, 9, v{vT+5}\ns_lshl_b32 s{sE}, s{sW}, 12\nv_add_u32 v{vXW}, s{sE}, v{vXW}')
        a.e(f's_lshl_b32 s{sE}, s{sW}, 10\nv_lshl_add_u32 v{vXR_}, v{vL}, 2, s{sE}')
        a.e(f's_mov_b32 s{sE}, 81920\nv_mul_lo_u32 v{vT+5}, s{sE}, v{vT+6}\nv_lshl_add_u32 v{vUS}, v{vT+1}, 4, v{vT+5}')
        a.wait(lg=rt_)
        for d in range(2):
            E, O = 128 + 32*d, 144 + 32*d
            for j in range(16):
                tq = 228 + (j & 3)
                x, y = (E+j, O+j) if d == 0 else (O+j, E+j)
                a.e(f'v_add_f32 v{tq}, v{E+j}, v{O+j}\nv_sub_f32 v{O+j}, v{x}, v{y}\nv_mul_f32 v{E+j}, v{rr+j}, v{tq}\nv_mul_f32 v{O+j}, v{rr+j}, v{O+j}')
            for j in range(8): a.e(cvtpk(E+j, E+2*j, E+2*j+1))
        DR = [(64, 80), (196, 212)]
        def step2(part):
            c0 = 128 + 16*part; s0 = 160 + 16*part; UR, UV = DR[part]
            UR = f'v[{UR}:{UR+15}]'; UV = f'v[{UV}:{UV+15}]'
            G = lambda b, f: f'v[{b+4*f}:{b+4*f+3}]'
            for k, (A1, A2, B) in enumerate(((0, 2, G(c0,0)), (1, 3, G(c0,1)), (4, 0, G(s0,0)), (5, 1, G(s0,1)))):
                a.e(f'v_mfma_f32_32x32x16_bf16 {UR}, {aF(A1)}, {B}, {"0" if k == 0 else UR}')
                a.e(f'v_mfma_f32_32x32x16_bf16 {UV}, {aF(A2)}, {B}, {"0" if k == 0 else UV}')
        def comb(part):
            UR, UV = DR[part]
            for j in range(16):
                a.e(cvtpk(UR+j, UR+j, UV+j))
                a.lg(f'ds_write_b32 v{vXW}, v{UR+j} offset:{XCH + part*16384 + (8*(j>>2)+(j&3))*128}')
        stamp(a, 'u0')
        step2(0)
        ls = label('spec')
        a.e(f's_cmp_lg_u32 s{sDT}, 8\ns_cbranch_scc1 {ls}')
        for jq in range(4): a.e(f'ds_read_b128 v[{232+4*jq}:{235+4*jq}], v{vT} offset:{512+32*jq}')
        a.lg_issued -= 4
        a.e('s_waitcnt lgkmcnt(0)\ns_mov_b32 exec_lo, 0x80000000\ns_mov_b32 exec_hi, 0x80000000')
        for j in range(16): a.e(f'v_mov_b32 v{144+j}, v{232+j}\nv_mov_b32 v{176+j}, 0')
        a.e(f's_mov_b64 exec, -1\n{ls}:')
        for O in (144, 176):
            for j in range(8): a.e(cvtpk(O+j, O+2*j, O+2*j+1))
        hp_ = opt('hpS', 0)
        if not ufirst and hp_ == 0: hflag(a)
        step2(1); comb(0)
        if not ufirst and hp_ == 1: hflag(a)
        comb(1)
        stamp(a, 'u1')
        a.wait(lg=a.lg_issued); a.e('s_barrier')
        stamp(a, 'u2')
        toks = []
        for part in range(2):
            for i in range(4):
                b = 128 + 16*part + 4*i
                a.lg(f'ds_read2st64_b32 v[{b}:{b+1}], v{vXR_} offset0:{64*part+i} offset1:{64*part+16+i}')
                toks.append(a.lg(f'ds_read2st64_b32 v[{b+2}:{b+3}], v{vXR_} offset0:{64*part+32+i} offset1:{64*part+48+i}'))
        a.e(f's_lshl_b32 s{sE}, s{sW}, 7\ns_add_u32 s{sE}, s{sE}, s{sRB}\ns_mul_i32 s{sE}, s{sE}, 5120\ns_lshl_b32 s{sE+1}, s{sDT}, 8\ns_add_u32 s{sE}, s{sE}, s{sE+1}\ns_add_u32 s{sE}, s{sE}, {U_OFF}')
        for i in range(1, 4): a.e(f's_add_u32 s{sE+i}, s{sE}, {2*81920*i}')
        for part in range(2):
            for i in range(4):
                b = 128 + 16*part + 4*i
                a.wait(lg=toks[4*part+i])
                st['ust'] = a.vm(f'buffer_store_dwordx4 v[{b}:{b+3}], v{vUS}, {srd(SWS)}, s{sE+i} offen offset:{2560*part} sc1')
        stamp(a, 'u3')
    def do_H():
        S = Sched()
        for k in range(8*nG): S.add(None)
        nm = len(S.slots)
        ops = []
        for i in range(nG): ops += [lambda a, i=i: stamp(a, f'f{i}')] + h_fin(st, i, 0) + h_fin(st, i, 1)
        S.spread(ops, 0, nm - 1)
        k_ = opt('na', 4) if nG == 4 else opt('naS', 2)
        if st['twq']: S.spread(st['twq'], 0, nm - 1)
        if k_: S.spread(later[:k_], 0, nm - 1); del later[:k_]
        if ufirst: S.put(min(nm - 1, opt('ufs', 20)), [uflag])
        hfe = -1
        S.emit(a)
        stamp(a, 4)
    if nG == 4: do_H()
    elif ufirst: do_U(); do_H()
    else: do_H(); do_U()
    stamp(a, 5)
    phase2(a, st, hflag if (ufirst or nG == 4) else uflag, later, not (opt('twR', 0) if nG == 4 else opt('twS', 1)))

def phase2(a, st, hflag, later, doTW):
    RED = 65536 if XV[0] else 0
    t = 2
    q = 144
    r = Rec()
    if doTW: gen_TW(r, q)
    r.e(f's_mul_i32 s{sGO}, s{sHB[3]}, 1280')
    vHJ = [184, 185, 186, 187]; vHD = [188, 189, 190, 191]
    for j in range(4):
        r.e(f's_and_b32 s{sT}, s{sHB[j]}, 1024\ns_and_b32 s{sHB[j]}, s{sHB[j]}, 63\ns_mul_i32 s{sHB[j]}, s{sHB[j]}, 54\ns_add_u32 s{sHB[j]}, s{sHB[j]}, s{sTAU}\ns_lshl_b32 s{sHB[j]}, s{sHB[j]}, 11\ns_add_u32 s{sHB[j]}, s{sHB[j]}, s{sT}')
        r.e(f'v_add_u32 v{vHJ[j]}, s{sHB[j]}, v{vL16}\nv_add_u32 v{vHD[j]}, s{sHB[j]}, v192')
    r.e(f's_mov_b32 s{sKO[0]}, 0\ns_movk_i32 s{sKO[13]}, {13*2048}')
    for k in range(1, 13):
        if opt('rho', 0): r.e(f's_add_u32 s{sKO[k]}, s{sKO[k-1]}, 2048\ns_cmp_eq_u32 s{sKO[k]}, s{sKO[13]}\ns_cselect_b32 s{sKO[k]}, 0, s{sKO[k]}')
        elif k % 2 == 0: r.e(f's_movk_i32 s{sKO[k]}, {2048*k}')
    vG4, vG2, vB4 = t+8, t+9, t+10
    r.e(f's_mul_i32 s{sCW}, s{sC}, 160\ns_add_u32 s{sGO}, s{sGO}, s{sCW}\ns_mov_b32 s{sT}, 81920')
    r.e(f'v_and_b32 v{q}, 15, v{vL}\nv_mul_lo_u32 v{q}, s{sT}, v{q}\nv_lshrrev_b32 v{q+1}, 4, v{vL}\nv_lshl_add_u32 v{vG4}, v{q+1}, 4, v{q}\nv_lshl_add_u32 v{vG2}, v{q+1}, 3, v{q}')
    r.e(f'v_lshl_add_u32 v{vB4}, v{q+1}, 4, s{sCW}\nv_lshl_add_u32 v{q+2}, v{q+1}, 3, s{sCW}')
    xr = 160; br = 172
    r.ops += [f'buffer_load_dwordx4 v[{xr}:{xr+3}], v{vG4}, {srd(SX)}, s{sGO} offen', f'buffer_load_dwordx4 v[{xr+4}:{xr+7}], v{vG4}, {srd(SX)}, s{sGO} offen offset:64',
              f'buffer_load_dwordx2 v[{xr+8}:{xr+9}], v{vG2}, {srd(SX)}, s{sGO} offen offset:128',
              f'global_load_dwordx4 v[{br}:{br+3}], v{vB4}, s[{sB2}:{sB2+1}]', f'global_load_dwordx4 v[{br+4}:{br+7}], v{vB4}, s[{sB2}:{sB2+1}] offset:64']
    r.vm(f'global_load_dwordx2 v[{br+8}:{br+9}], v{q+2}, s[{sB2}:{sB2+1}] offset:128', 'xb')
    r.e(f's_and_b32 s{sT+1}, s2, 15\ns_lshr_b32 s{sT+2}, s{sW}, 1\ns_lshl_b32 s{sT+2}, s{sT+2}, 4\ns_add_u32 s{sT+1}, s{sT+1}, s{sT+2}')
    r.e(f's_and_b32 s{sT+2}, s{sW}, 1\ns_mul_i32 s{sT+2}, s{sT+2}, 96\ns_add_u32 s{sT+1}, s{sT+1}, s{sT+2}')
    r.e(f's_lshl_b32 s{sT+1}, s{sT+1}, 2\ns_lshl_b32 s{sT+2}, s{sZ}, 1\ns_add_u32 s{sT+1}, s{sT+1}, s{sT+2}')
    vF1, vF2, vFV = t, t+1, t+2
    r.e(f'v_lshrrev_b32 v{q}, 1, v{vL}\nv_lshlrev_b32 v{q}, 7, v{q}\nv_and_b32 v{q+1}, 1, v{vL}\nv_add3_u32 v{q}, v{q}, v{q+1}, s{sT+1}')
    r.e(f'v_lshlrev_b32 v{vF1}, 7, v{q}\nv_add_u32 v{vF1}, {HF_OFF}, v{vF1}')
    r.e(f's_sub_u32 s{sTS1}, 32, s{sT1}\ns_and_b32 s{sTS1}, s{sTS1}, 31\ns_cmp_ge_u32 s{sC}, 4\ns_cselect_b32 s{sTS1}, s{sTS1}, s{sT1}')
    r.e(f'v_and_b32 v{q}, 7, v{vL}\nv_min_u32 v{q}, 4, v{q}\nv_lshlrev_b32 v{q+2}, 5, v{q}\nv_add_u32 v{q+3}, {6*32}, v{q+2}\nv_add_u32 v{q+2}, {3*32+16}, v{q+2}')
    r.e(f'v_cmp_gt_u32 vcc, 2, v{q}\nv_cndmask_b32 v{q}, v{q+2}, v{q+3}, vcc')
    r.e(f'v_and_b32 v{q+1}, 8, v{vL}\nv_bfe_u32 v{q+3}, v{vL}, 4, 1\nv_add3_u32 v{q}, v{q}, v{q+1}, v{q+3}')
    r.e(f's_lshl_b32 s{sT}, s{sW}, 3\ns_lshr_b32 s{sT+2}, s{sTS1}, 3\ns_add_u32 s{sT}, s{sT}, s{sT+2}\nv_lshl_add_u32 v{q}, v{q}, 2, s{sT}')
    r.e(f'v_lshlrev_b32 v{vF2}, 7, v{q}\nv_add_u32 v{vF2}, {F_OFF+4}, v{vF2}\nv_lshrrev_b32 v{q+1}, 4, v{vL}')
    vUO = [t+3+k for k in range(5)]
    r.e(f'v_and_b32 v{q}, 15, v{vL}\ns_mul_i32 s{sT}, s{sC}, 80\nv_and_b32 v{q+4}, 12, v{vL}\nv_add3_u32 v{q+4}, v{q+4}, v{q}, s{sT}\nv_add_u32 v{q}, s{sT}, v{q}')
    r.e(f's_movk_i32 s{sT+1}, 5120\nv_mul_u32_u24 v{q+1}, s{sT+1}, v{q+1}')
    r.e(f's_cmp_ge_u32 s{sC}, 4\ns_cselect_b32 s{sT}, -1, 0\ns_cselect_b32 s{sT+1}, 640, -1')
    for ct in range(5):
        if ct < 4: r.e(f'v_add_u32 v{q+2}, {32*(ct>>1)+4*(ct&1)}, v{q+4}')
        else: r.e(f'v_add_u32 v{q+2}, 64, v{q}')
        r.e(f'v_xor_b32 v{q+2}, s{sT}, v{q+2}\nv_add_u32 v{q+2}, s{sT+1}, v{q+2}\nv_sub_u32 v{q+5}, 478, v{q+2}')
        r.e(f'v_cmp_lt_i32 vcc, 159, v{q+2}\nv_cndmask_b32 v{q+5}, v{q+2}, v{q+5}, vcc')
        if ct == 0: r.e(f'v_cmp_eq_u32 vcc, 319, v{q+2}\nv_cndmask_b32 v{q+5}, v{q+5}, v{q+2}, vcc')
        r.e(f'v_lshl_add_u32 v{vUO[ct]}, v{q+5}, 4, v{q+1}')
        if ct == 0: r.e(f'v_mov_b32 v{q+3}, {OOB}\nv_cmp_gt_i32 vcc, 0, v{q+2}\nv_cndmask_b32 v{vUO[0]}, v{vUO[0]}, v{q+3}, vcc')
    r.e(f's_lshl_b32 s{sUo}, s{sTS1}, 4\ns_lshl_b32 s{sT}, s{sW}, 2\ns_add_u32 s{sUo}, s{sUo}, s{sT}\ns_mul_i32 s{sUo}, s{sUo}, 5120\ns_add_u32 s{sUo}, s{sUo}, {U_OFF}')
    vPW = [t+11, t+12, t+13]; vPR = 0
    for j in range(3):
        r.e(f's_add_u32 s{sT}, s{sW}, {1+j}\ns_and_b32 s{sT}, s{sT}, 3\ns_mul_i32 s{sT}, s{sT}, 15360\ns_add_u32 s{sT}, s{sT}, {RED + j*5120}\nv_add_u32 v{vPW[j]}, s{sT}, v{vL16}')
    r.e(f's_mul_i32 s{sT}, s{sW}, 15360\ns_add_u32 s{sT}, s{sT}, {RED}\nv_add_u32 v{vPR}, s{sT}, v{vL16}')
    r.ops.insert(len(r.ops) * opt('hfp' + ('S' if XV[0] else ''), 25 if XV[0] else 5) // 100, hflag)
    hl = f'buffer_load_dword v{vFV}, v{vF1}, {srd(SWS)}, 0 offen sc1'
    nl = max(0, len(later) - opt('nlast', 6))
    mm_ = merge(r.ops, later[:nl]); h_ = len(mm_) // 2
    run(a, mm_[:h_]); stamp(a, 's1'); run(a, mm_[h_:]); stamp(a, 's2')
    ini = [lambda a: a.wait(vm=r.tok['xb']), f's_mov_b32 s{sT}, 0x05040100\ns_mov_b32 s{sT+1}, 0x07060302']
    for ct in range(5):
        b = 16 + 60 + 4*ct
        for k in range(2):
            xs = xr + (4*(ct >> 1) + 2*(ct & 1) + k if ct < 4 else 8 + k); bs = xs - xr + br
            ini += L(f'v_perm_b32 v{b+2*k}, v{bs}, v{xs}, s{sT}\nv_perm_b32 v{b+2*k+1}, v{bs}, v{xs}, s{sT+1}')
    for k in range(20): ini.append(f'v_dot2_f32_bf16 v{76+k}, v{76+k}, s{sONES}, 0')
    a.e(f'v_mov_b32 v{vL}, v{vL16}'); st['vW'] = vL
    a.e('s_mov_b64 exec, 0x3ff')
    tk = a.vm(hl)
    a.e('s_mov_b64 exec, -1')
    run(a, merge(ini, later[nl:]))
    stamp(a, 6)
    a.wait(vm=tk)
    check_loop(a, hl, vFV, 10, sPC)
    stamp(a, 7)
    ht = {}
    def hload(slot, j):
        def op(a):
            vo = vHD[j] if slot == 13 else vHJ[j]
            ht[(slot, j)] = a.vm(f'buffer_load_dwordx4 {HF(pos[(slot, j)])}, v{vo}, {srd(SWS)}, s{sKO[slot] if RHO else sKO[slot & ~1]} offen offset:{0 if RHO else 2048*(slot & 1)} sc1')
        return op
    NE = opt('NE', 11)
    order = [(s_, j) for s_ in range(NE) for j in range(4)] + [(s_, j) for j in range(4) for s_ in range(NE, 14)]
    pos = {k: n for n, k in enumerate(order)}
    for j in range(4): hload(0, j)(a)
    NE = opt('NE', 11)
    order = [(s_, j) for s_ in range(NE) for j in range(4)] + [(s_, j) for j in range(4) for s_ in range(NE, 14)]
    pos = {k: n for n, k in enumerate(order)}
    hp = 4
    while hp < RING: hload(*order[hp])(a); hp += 1
    wq = list(st['inp2'])
    S = Sched(); f = {}; g = {}
    def group(s_, j):
        nonlocal hp
        n = pos[(s_, j)]
        for ct in range(5):
            pre = [lambda a: a.wait(vm=max(ht[(s_, j)], max(st['w2'][(s_, c_)] for c_ in range(5))))] if ct == 0 and not opt('nowait2', 0) else []
            c0 = '0' if (s_ == 0 and j < 3) else ACC2(ct, j)
            idx = S.add(f'v_mfma_f32_16x16x32_bf16 {ACC2(ct,j)}, {W2(s_,ct)}, {HF(n)}, {c0}', pre)
            if ct == 0: f[(s_, j)] = idx
        if hp < 56: S.put(idx, [hload(*order[hp])]); hp += 1
        if wq and n % opt('wev', 1) == 0: S.put(idx - 2, [wq.pop(0)])
    for s_ in range(NE):
        for j in range(4): group(s_, j)
    ul = f'buffer_load_dword v{vFV}, v{vF2}, {srd(SWS)}, 0 offen sc1'
    ku = opt('ku', NE - 4)
    S.put(f[(ku, 0)] + 1, [lambda a: (a.e('s_mov_b32 exec_hi, 0'), st.__setitem__('ul', a.vm(ul)), a.e('s_mov_b32 exec_hi, -1'))])
    S.put(f[(ku + 3, 0)] + 1, [lambda a: (a.wait(vm=st['ul']), check_loop(a, ul, vFV, 32, sPC))])
    fl = sorted(f.values())
    i3 = fl.index(f[(ku + 3, 1)])
    st['uput'] = True
    def ustep(j):
        for ct in range(5):
            pre = [lambda a: a.wait(vm=st['uf'])] if ct == 0 else []
            S.add(f'v_mfma_f32_16x16x32_bf16 {ACC2(ct,j)}, {UF(ct)}, a[{aTW+4*j}:{aTW+4*j+3}], {ACC2(ct,j)}', pre)
    def wr(j, at, step=1):
        for ct in range(5): S.put(at + step*ct, [f'ds_write_b128 v{vPW[j]}, {ACC2(ct,j)} offset:{ct*1024}'])
    for j in range(4):
        for s_ in range(NE, 14): group(s_, j)
        g[j] = f[(NE, j)]
        if j == 1: ustep(0)
        if j >= 1: ustep(j)
    wr(0, g[2] + 2, 2); wr(1, g[2] + 13, 2); wr(2, g[3] + 3)
    fl = sorted(f.values())
    for ct in range(5):
        S.put(fl[i3 + ct] + 1, [lambda a, ct=ct: st.__setitem__('uf', a.vm(f'buffer_load_dwordx4 {UF(ct)}, v{vUO[ct]}, {srd(SWS)}, s{sUo} offen sc1'))])
    PB = lambda jj, ct: 196 + 20*jj + 4*ct
    S.put(g[3] + 10, [lambda a: (a.wait(lg=a.lg_issued), a.e('s_barrier'))])
    rd = []
    for ct in range(5):
        for jj in range(3):
            rd.append(lambda a, jj=jj, ct=ct: st.__setitem__(('pr', ct), a.lg(f'ds_read_b128 v[{PB(jj,ct)}:{PB(jj,ct)+3}], v{vPR} offset:{jj*5120+ct*1024}')))
    S.spread(rd, g[3] + 11, g[3] + 18)
    nl = len(S.slots)
    sm = []
    for ct in range(5):
        sm.append(lambda a, ct=ct: a.wait(lg=st[('pr', ct)]))
        for k in range(4): sm.append(f'v_add_f32 v{PB(0,ct)+k}, v{PB(0,ct)+k}, v{PB(1,ct)+k}')
        for k in range(4): sm.append(f'v_add_f32 v{PB(0,ct)+k}, v{PB(0,ct)+k}, v{PB(2,ct)+k}')
    S.spread(sm, g[3] + 19, nl - 1)
    for s_ in range(NE): S.slots[f[(s_, 0)]]['pre'].insert(0, lambda a, s_=s_: stamp(a, f'e{s_}'))
    for j in range(4): S.slots[g[j]]['pre'].insert(0, lambda a, j=j: stamp(a, f'l{j}'))
    S.emit(a)
    stamp(a, 8)
    o = 96
    for ct in range(5):
        b = 76 + 4*ct
        for k in range(4): a.e(f'v_add_f32 v{b+k}, v{b+k}, v{PB(0,ct)+k}')
        a.e(cvtpk(o+2*ct, b, b+1)); a.e(cvtpk(o+2*ct+1, b+2, b+3))
        ost = opt('ost', '')
        if ct == 1: a.vm(f'buffer_store_dwordx4 v[{o}:{o+3}], v{vG4}, {srd(SOUT)}, s{sGO} offen {ost}')
        if ct == 3: a.vm(f'buffer_store_dwordx4 v[{o+4}:{o+7}], v{vG4}, {srd(SOUT)}, s{sGO} offen offset:64 {ost}')
        if ct == 4: a.vm(f'buffer_store_dwordx2 v[{o+8}:{o+9}], v{vG2}, {srd(SOUT)}, s{sGO} offen offset:128 {ost}')
    if DBG == 3:
        a.wait_all()
        le = label('dbgskip')
        a.e(f's_memrealtime s[{sT+1}:{sT+2}]\ns_waitcnt lgkmcnt(0)')
        a.e(f's_cmp_lg_u32 s{sW}, 0\ns_cbranch_scc1 {le}')
        a.e(f's_cmp_eq_u32 s2, {opt("wgA", 8)}\ns_cselect_b32 s{sT}, 4, 0\ns_cmp_eq_u32 s2, {opt("wgB", 232)}\ns_cselect_b32 s{sT}, 32, s{sT}\ns_cmp_eq_u32 s{sT}, 0\ns_cbranch_scc1 {le}')
        for k in range(1, 7): a.e(f's_sub_u32 s{sT+3}, s{sTS+2*k}, s{sTS}\nv_mov_b32 v{15+k}, s{sT+3}')
        a.e(f's_sub_u32 s{sT+3}, s{sT+1}, s{sTS}\nv_mov_b32 v22, s{sT+3}\nv_mov_b32 v2, s{sT}\ns_mov_b64 exec, 1')
        a.e(f'global_store_dwordx4 v2, v[16:19], s[{sDBG}:{sDBG+1}]\nglobal_store_dwordx3 v2, v[20:22], s[{sDBG}:{sDBG+1}] offset:16')
        a.e(f'{le}:')
    elif DBG:
        a.wait_all()
        a.e(f'{"s_memtime" if DBG == 2 else "s_memrealtime"} s[{sT+1}:{sT+2}]\ns_waitcnt lgkmcnt(0)')
        for k in range(9): a.e(f'v_mov_b32 v{16+k}, s{sTS+2*k}')
        a.e(f'v_mov_b32 v25, s{sT+1}\nv_mov_b32 v26, 0\nv_mov_b32 v27, 0')
        a.e(f's_lshl_b32 s{sT}, s2, 2\ns_add_u32 s{sT}, s{sT}, s{sW}\ns_lshl_b32 s{sT}, s{sT}, 6\ns_add_u32 s{sT}, s{sT}, {TS_OFF}')
        a.e(f'v_mov_b32 v2, 0\ns_mov_b64 exec, 1')
        for k in range(3): a.e(f'buffer_store_dwordx4 v[{16+4*k}:{19+4*k}], v2, {srd(SWS)}, s{sT} offen offset:{16*k}')
    a.e('s_endpgm')

def build():
    a = Asm(); prologue(a)
    outs = [a]
    for nG in (4, 2):
        b = a.fork()
        if nG == 2: b.e('L_S:')
        build_type(b, T(nG)); outs.append(b)
    lines = []
    for o in outs: lines += o.finish()
    return lines + SLOW

hdr = open('cdna_kernels/%s.s.ref' % NAME).read().split('; Override launch')[0]
lines = build()
with open(sys.argv[1], 'w') as f:
    f.write(hdr)
    f.write(f'; @launch grid=(256,1,1) block=(256,1,1) lds={LDS_BYTES}\n')
    f.write('.amdgcn_target "amdgcn-amd-amdhsa--gfx950"\n.text\n')
    f.write(f'.globl {NAME}_kernel\n.p2align 8\n.type {NAME}_kernel,@function\n{NAME}_kernel:\n')
    for l in lines: f.write(('' if l.endswith(':') else '    ') + l + '\n')
    f.write('L_end:\n    s_endpgm\n')
    f.write('.p2align 8\n.type L_ftab,@object\nL_ftab:\n')
    tb = F_table()
    for i in range(0, len(tb), 8): f.write('.long ' + ', '.join('0x%08x' % x for x in tb[i:i+8]) + '\n')
    f.write('.fill 8192, 4, 0\n')
    f.write(f'''.section .rodata,"a"
.p2align 6
.amdhsa_kernel {NAME}_kernel
  .amdhsa_next_free_vgpr 512
  .amdhsa_next_free_sgpr 102
  .amdhsa_accum_offset 256
  .amdhsa_group_segment_fixed_size 0
  .amdhsa_kernarg_size 104
  .amdhsa_user_sgpr_count 2
  .amdhsa_user_sgpr_kernarg_segment_ptr 1
  .amdhsa_system_sgpr_workgroup_id_x 1
.end_amdhsa_kernel
''')
print('instructions:', len(lines))
```

```python
import sys, struct, copy, os
from asmlib import Asm
NAME = 'parallel_sum__spectral_fnet__dense_activation_squared_relu__prompt'
DBG = int(sys.argv[2]) if len(sys.argv) > 2 else 0
OPT = dict(kv.split('=') for kv in sys.argv[3:])
def opt(k, d): return type(d)(OPT.get(k, d))

H_OFF = 0; U_OFF = 0x6C0000; P_OFF = 0x940000; ST_OFF = 0xB5C000; F_OFF = 0xB68000; TS_OFF = 0xB88000; PF_OFF = 0xBA0000; HF_OFF = 0xBB0000; WS_END = 0xBD0000
OOB = 0x40000000
ARING = 0; BBASE = 65536; AUX = 131072; TAB = 161792; TABC = TAB; TABB = TAB + 512; TABR = TAB + 1024; TABA = TAB + 1536
XCH = 0
RED_PITCH = 336; RED_WAVE = 64 * RED_PITCH
LDS_BYTES = 163840
SX, SW1, SW2, SWS, SOUT = 4, 8, 12, 16, 20
sB1, sB2, sDBG = 24, 26, 28
sW, sZ, sRB, sC8, sROW, sG0 = 30, 31, 32, 33, 34, 35
sA, sA2, sBo, sMA, sMB = 36, 37, 38, 39, 40
sT1, sC, sTAG, sONES = 41, 42, 43, 44
sT = 45
sH = [53, 54, 55, 56]; sFL = 57; sDT = 58; sAUXo = 59; sAUXs = 60; sTAU = 61; sW2o = 62; sH0 = 63; sH1 = 64; sUo = 65
sCW = 61+0*0 if False else 83; sGO = 82; sTS1 = 66; sPC = 51; sUS = 70; sE = 71
sAUXm = 3; sHB = [78, 79, 80, 81]
sRHO = 75; sWE = 76; sW4 = 77; sXCC = 66; sLOC = 67; sFH = 68
sKO = [36, 37, 38, 39, 40, 53, 54, 55, 56, 58, 59, 60, 63, 64]
sTS = 84
def srd(b): return f's[{b}:{b+3}]'
def fhex(x): return '0x%08x' % struct.unpack('<I', struct.pack('<f', x))[0]
XV = [False]
def X(ks): return f'v[{196+4*(ks%8)}:{199+4*(ks%8)}]' if XV[0] else f'a[{4*(ks%8)}:{4*(ks%8)+3}]'
def ACC1(i): return f'v[{32+16*i}:{47+16*i}]'
def WB(b, i, h=None):
    base = 96 + 16*b + 4*i if i < 4 else 184 + 4*b
    return f'v[{base}:{base+3}]' if h is None else f'v[{base+2*h}:{base+2*h+1}]'
aTW = 160; aF0 = 176; aSEL = 'a[192:195]'; aCS = 'a[196:199]'
def aF(k): return f'a[{aF0+4*k}:{aF0+4*k+3}]' if k < 4 else f'a[{152+4*(k-4)}:{155+4*(k-4)}]'
vL = 1
vOA = [2, 3]; vOB = [4, 5, 6, 7]; vAR = [8, 9, 10, 11]; vBR = [12, 13, 14, 15]
vT = 16
vST = 24
vNM, vSDV, vAL, vR = 24, 25, 26, 28
vNON = 28; vPF = 29; vHO = 30; vL16 = 31
vAUX = 160
def W2(slot, ct):
    if slot < 3: k, b = 'v', 196 + 20*slot + 4*ct
    elif slot < 5: k, b = 'a', 200 + 20*(slot-3) + 4*ct
    elif slot < 11: k, b = 'a', 32 + 20*(slot-5) + 4*ct
    elif slot == 11: k, b = 'a', (240 + 4*ct if ct < 4 else 152)
    elif slot == 12: k, b = 'a', (4*ct if ct < 4 else 156)
    else: k, b = 'a', (16 + 4*ct if ct < 4 else 196)
    return f'{k}[{b}:{b+3}]'
def UF(ct): return f'a[{176+4*ct}:{179+4*ct}]'
def ACC2(ct, rt): b = 16 + 20*rt + 4*ct; return f'v[{b}:{b+3}]'
RHO = opt('rho', 0)
RING = opt('ring', 12)
def HF(n): b = 96 + 4*(n % RING); return f'v[{b}:{b+3}]'

TSL = OPT.get('ts', '0,1,2,3,4,5,6,7,8').split(',')
def stamp(a, name):
    if str(name) not in TSL: return
    idx = TSL.index(str(name))
    if DBG: a.e(f'{"s_memtime" if DBG == 2 else "s_memrealtime"} s[{sTS+2*idx}:{sTS+2*idx+1}]')
def cvtpk(d, x, y): return f'v_cvt_pk_bf16_f32 v{d}, v{x}, v{y}'
uid = [0]
def label(p):
    uid[0] += 1; return f'L_{p}{uid[0]}'

class Sched:
    def __init__(self): self.slots = []
    def add(self, main, pre=()):
        self.slots.append({'pre': list(pre), 'main': main, 'fill': []}); return len(self.slots) - 1
    def put(self, idx, ops): self.slots[idx]['fill'] += list(ops)
    def spread(self, ops, first, last):
        ops = list(ops); n = last - first + 1
        for k, op in enumerate(ops):
            self.slots[first + min(n - 1, k * n // len(ops))]['fill'].append(op)
    def pack(self, ops, first, per):
        i = first
        for op in ops:
            while i < len(self.slots) - 1 and len(self.slots[i]['fill']) >= per: i += 1
            self.slots[i]['fill'].append(op)
        return i
    def emit(self, a, lo=0, hi=None):
        for s in self.slots[lo:hi]:
            for op in s['pre'] + [s['main']] + s['fill']:
                if op is None: continue
                if callable(op): op(a)
                else: a.e(op)
def L(text): return [t for t in text.split('\n') if t.strip()]

def mk_srd(b, lo, n):
    return f's_mov_b32 s{b}, s{lo}\ns_and_b32 s{b+1}, s{lo+1}, 0xffff\ns_mov_b32 s{b+2}, {n}\ns_mov_b32 s{b+3}, 0x20000'

def prologue(a):
    a.e('s_cmp_ge_u32 s2, 256\ns_cbranch_scc1 L_end')
    stamp(a, 0)
    a.e('s_load_dwordx2 s[66:67], s[0:1], 0')
    a.e('s_load_dwordx8 s[68:75], s[0:1], 48')
    a.e('s_load_dwordx4 s[76:79], s[0:1], 80')
    a.e('s_load_dwordx2 s[80:81], s[0:1], 96')
    a.e('s_getpc_b64 s[82:83]\nL_pc:')
    a.e('s_bfe_u32 s3, s2, 0x10003\ns_lshl_b32 s3, s3, 15\nv_lshl_add_u32 v2, v0, 7, s3')
    a.vm(f'global_load_dword v{vPF}, v2, s[82:83]')
    a.e('s_add_u32 s82, s82, L_ftab-L_pc\ns_addc_u32 s83, s83, 0')
    a.e(f'v_lshrrev_b32 v4, 6, v0\nv_and_b32 v{vL}, 63, v0\nv_readfirstlane_b32 s{sW}, v4')
    a.e(f's_bfe_u32 s{sZ}, s2, 0x10004')
    a.e(f's_and_b32 s{sT}, s2, 7\ns_bfe_u32 s{sT+1}, s2, 0x10003\ns_lshl_b32 s{sT}, s{sT}, 1')
    a.e(f's_add_u32 s{sRB}, s{sT}, s{sT+1}\ns_lshr_b32 s{sC8}, s2, 5')
    a.e(f's_sub_u32 s{sT+2}, 32, s{sRB}\ns_cmp_eq_u32 s{sRB}, 0\ns_cselect_b32 s{sT+2}, 16, s{sT+2}')
    a.e(f's_bitcmp1_b32 s{sW}, 1\ns_cselect_b32 s{sROW}, s{sT+2}, s{sRB}')
    a.e(f's_and_b32 s{sT+3}, s{sW}, 1\ns_lshl_b32 s{sT+3}, s{sT+3}, 5\ns_add_u32 s{sROW}, s{sROW}, s{sT+3}')
    a.e(f's_mov_b32 s{sAUXm}, s{sT+2}')
    a.e(f'v_lshrrev_b32 v{vT}, 3, v{vL}\nv_lshrrev_b32 v{vT+1}, 4, v{vL}\nv_and_b32 v{vT+2}, 7, v{vL}')
    a.e(f'v_xor_b32 v{vT+3}, v{vT+2}, v{vT+1}\ns_mov_b32 s{sT+4}, 81920\nv_mul_lo_u32 v{vT+4}, s{sT+4}, v{vT}')
    a.e(f'v_lshl_add_u32 v{vOA[0]}, v{vT+3}, 4, v{vT+4}\nv_xor_b32 v{vT+3}, 4, v{vT+3}')
    a.e(f'v_lshl_add_u32 v{vOA[1]}, v{vT+3}, 4, v{vT+4}\nv_add_u32 v{vOA[1]}, {8*81920-1024}, v{vOA[1]}')
    a.e(f's_mul_i32 s{sA}, s{sROW}, 1280\ns_add_u32 s{sA2}, s{sA}, {16*81920-2048}\ns_lshl_b32 s{sMA}, s{sW}, 12')
    a.e(f's_sub_u32 s{sT+5}, 6, s{sZ}\ns_cmp_ge_u32 s{sC8}, s{sT+5}\ns_cbranch_scc1 L_S')

class T:
    def __init__(self, nG):
        self.nG = nG; self.nD = 0 if nG == 4 else 2
        self.bslot = 4096 * nG
        self.pitch = 64 * nG
        self.DREG = 131072 if nG == 4 else 98304
        self.nb = nG

def prologue_t(a, t, st):
    if t.nG == 4:
        a.e(f's_mul_i32 s{sG0}, s{sZ}, 28\ns_lshl_b32 s{sT}, s{sC8}, 2\ns_add_u32 s{sG0}, s{sG0}, s{sT}')
        a.e(f'v_and_b32 v{vT+2}, 15, v{vL}\nv_lshlrev_b32 v{vT+3}, 2, v{vT+1}\nv_xor_b32 v{vT+2}, v{vT+2}, v{vT+3}')
        a.e(f's_movk_i32 s{sT+6}, 3456\nv_mul_u32_u24 v{vT+3}, s{sT+6}, v{vT+1}\nv_lshl_add_u32 v{vOB[0]}, v{vT+2}, 4, v{vT+3}')
        for i in range(1, 4): a.e(f'v_add_u32 v{vOB[i]}, {i*(4*3456-1024)}, v{vOB[0]}')
    else:
        a.e(f's_mul_i32 s{sG0}, s{sZ}, 26\ns_lshl_b32 s{sT}, s{sC8}, 1\ns_add_u32 s{sG0}, s{sG0}, s{sT}\ns_add_u32 s{sG0}, s{sG0}, 12')
        a.e(f's_mul_i32 s{sDT}, s{sZ}, 6\ns_add_u32 s{sDT}, s{sDT}, s{sT}\ns_sub_u32 s{sDT}, s{sDT}, 12')
        a.e(f'v_and_b32 v{vT+3}, 1, v{vT+1}\nv_lshlrev_b32 v{vT+3}, 2, v{vT+3}\nv_xor_b32 v{vT+2}, v{vT+2}, v{vT+3}')
        a.e(f's_movk_i32 s{sT+6}, 3456\nv_mul_u32_u24 v{vT+3}, s{sT+6}, v{vT}\nv_lshl_add_u32 v{vOB[0]}, v{vT+2}, 4, v{vT+3}')
        a.e(f'v_add_u32 v{vOB[1]}, {8*3456-1024}, v{vOB[0]}')
    a.e(f's_lshl_b32 s{sBo}, s{sG0}, 6\ns_mul_i32 s{sT}, s{sW}, {16*3456}\ns_add_u32 s{sBo}, s{sBo}, s{sT}')
    a.e(f's_mul_i32 s{sMB}, s{sW}, {1024*t.nb}\ns_add_u32 s{sMB}, s{sMB}, {BBASE}')
    a.e(f's_lshl_b32 s{sT+1}, s{sG0}, 6\nv_and_b32 v{vT+6}, {16*t.nG-1}, v{vL}\nv_lshl_add_u32 v{vT+6}, v{vT+6}, 2, s{sT+1}')
    if t.nG == 4: run(a, roll_setup(t, opt('rn', 3)))
    stamp(a, 'p0')
    a.e('s_waitcnt lgkmcnt(0)')
    stamp(a, 'p1')

    a.vm(f'global_load_dword v{vT+7}, v{vT+6}, s[70:71]')
    a.e(f'v_bfe_u32 v{vT+5}, v{vL}, 0, 3\nv_mul_u32_u24 v{vT+5}, 0xa0, v{vT+5}')
    a.vm(f'global_load_dword v{vPF}, v{vT+5}, s[74:75]')
    a.e(mk_srd(SX, 66, 2048*1280)); a.e(mk_srd(SW1, 68, 640*3456))

def dma_ops(t, c, st):
    slot = c % 4
    ops = [f's_add_u32 m0, s{sMA}, {ARING + slot*16384}',
           f'buffer_load_dwordx4 v{vOA[0]}, {srd(SX)}, s{sA} offen {opt("ntx", "")} lds',
           f'buffer_load_dwordx4 v{vOA[1]}, {srd(SX)}, s{sA} offen offset:1024 {opt("ntx", "")} lds',
           f'buffer_load_dwordx4 v{vOA[0]}, {srd(SX)}, s{sA2} offen offset:2048 {opt("ntx", "")} lds',
           f'buffer_load_dwordx4 v{vOA[1]}, {srd(SX)}, s{sA2} offen offset:3072 {opt("ntx", "")} lds',
           f's_add_u32 m0, s{sMB}, {slot*t.bslot}\ns_add_u32 s{sA}, s{sA}, 128\ns_add_u32 s{sA2}, s{sA2}, 128']
    for i in range(t.nb):
        ops.append(f'buffer_load_dwordx4 v{vOB[i]}, {srd(SW1)}, s{sBo} offen offset:{1024*i} {opt("ntw", "")} lds')
    def last(a):
        st['dma'][c] = a.vm_issued
        a.e(f's_add_u32 s{sBo}, s{sBo}, {64*3456}')
    ops.append(last)
    return ops
def run(a, ops):
    for op in ops:
        if callable(op): op(a)
        else: a.e(op)

vAO = 128
vPK = 140; vSD = 160
sPo = 58; sPs = 62; sPf = 64; sSo = 60; sSs = 65
def aux_setup(a):
    q = 184
    a.e(f's_mul_i32 s{sT}, s{sZ}, 6\ns_add_u32 s{sT}, s{sT}, s{sC8}\ns_lshl_b32 s{sT}, s{sT}, 2\ns_add_u32 s{sT}, s{sT}, s{sW}')
    a.e(f's_mul_i32 s{sT+1}, s{sRB}, 27\ns_add_u32 s{sT+1}, s{sT+1}, s{sT}')
    a.e(f's_lshr_b32 s{sT+2}, s{sT+1}, 3\ns_and_b32 s{sT+3}, s{sT+1}, 7\ns_mul_i32 s{sPo}, s{sT+2}, 40960\ns_mul_i32 s{sT+5}, s{sT+3}, 160\ns_add_u32 s{sPo}, s{sPo}, s{sT+5}')
    a.e(f's_mul_i32 s{sPs}, s{sT+3}, 54\ns_add_u32 s{sPs}, s{sPs}, s{sT+2}\ns_mul_i32 s{sPs}, s{sPs}, 5120\ns_add_u32 s{sPs}, s{sPs}, {P_OFF}')
    a.e(f's_lshl_b32 s{sPf}, s{sT+1}, 7\ns_add_u32 s{sPf}, s{sPf}, {PF_OFF}')
    a.e(f's_cmp_lt_u32 s{sT}, 27\ns_cselect_b32 s{sT+4}, 0, {OOB}\ns_cselect_b32 s{sPo}, s{sPo}, 0')
    for i in range(5):
        a.e(f'v_add_u32 v{q}, {64*i}, v{vL}\nv_mul_u32_u24 v{q+1}, 0x667, v{q}\nv_lshrrev_b32 v{q+1}, 14, v{q+1}\nv_mul_u32_u24 v{q+1}, 0x460, v{q+1}')
        if i == 0: a.e(f'v_lshl_add_u32 v{vAO+9}, v{vL}, 4, s{sT+4}')
        a.e(f'v_add_u32 v{vAO+i}, v{vAO+9}, v{q+1}')
    a.e(f'v_add_u32 v{vAO+4}, 0x1000, v{vAO+4}')
    a.e(f's_sub_u32 s{sT}, s{sT}, 12\ns_cmp_lt_u32 s{sT}, 32\ns_cselect_b32 s{sT+4}, 0, {OOB}\ns_cselect_b32 s{sT}, s{sT}, 0')
    a.e(f's_bitcmp1_b32 s{sT}, 4\ns_cselect_b32 s{sT+2}, s{sAUXm}, s{sRB}')
    a.e(f's_bfe_u32 s{sT+3}, s{sT}, 0x10003\ns_lshl_b32 s{sT+3}, s{sT+3}, 5\ns_add_u32 s{sT+2}, s{sT+2}, s{sT+3}\ns_and_b32 s{sT+3}, s{sT}, 7\ns_lshl_b32 s{sT+3}, s{sT+3}, 8\ns_add_u32 s{sT+2}, s{sT+2}, s{sT+3}\ns_mul_i32 s{sSo}, s{sT+2}, 1280')
    a.e(f's_lshl_b32 s{sT+2}, s{sRB}, 5\ns_add_u32 s{sT+2}, s{sT+2}, s{sT}\ns_lshl_b32 s{sSs}, s{sT+2}, 6\ns_add_u32 s{sSs}, s{sSs}, {ST_OFF}')
    a.e(f'v_lshrrev_b32 v{q}, 4, v{vL}\ns_mov_b32 s{sT+5}, 81920\nv_mul_lo_u32 v{q+1}, s{sT+5}, v{q}\nv_and_b32 v{q+2}, 15, v{vL}\nv_lshlrev_b32 v{q+2}, 4, v{q+2}\nv_add3_u32 v{vAO+7}, v{q+2}, v{q+1}, s{sT+4}')
    a.e(f'v_lshl_add_u32 v{vAO+8}, v{q}, 4, s{sT+4}')
    a.e(f's_mul_i32 s{sAUXm}, s{sW}, 5120\ns_add_u32 s{sAUXm}, s{sAUXm}, {AUX}')
def aux_setup2(a):
    q = 184
    a.e(f'v_lshrrev_b32 v{q}, 5, v{vL}\nv_lshlrev_b32 v{q}, 4, v{q}\nv_bfe_u32 v{q+1}, v{vL}, 4, 1\nv_lshl_add_u32 v{q}, v{q+1}, 2, v{q}')
    a.e(f'v_bfe_u32 v{q+1}, v{vL}, 2, 2\nv_add_u32 v{q}, v{q}, v{q+1}\nv_mul_u32_u24 v{q}, 160, v{q}\nv_add_u32 v{q}, s{sAUXm}, v{q}')
    a.e(f'v_and_b32 v{q+1}, 3, v{vL}\nv_lshl_add_u32 v{vAO+5}, v{q+1}, 4, v{q}\nv_lshl_add_u32 v{vAO+6}, v{q+1}, 3, v{q}')

def unc_vm(text):
    def op(a): a.e(text); a.vm_issued -= 1
    return op
def unc_lg(text):
    def op(a): a.e(text); a.lg_issued -= 1
    return op
def pack_dma(st):
    o = []
    for i in range(5):
        def op(a, i=i):
            if i in (0, 4): a.e(f's_add_u32 m0, s{sAUXm}, {4096 if i else 0}')
            st['pk'] = a.vm(f'buffer_load_dwordx4 v{vAO+i}, {srd(SW2)}, s{sPo} offen offset:{(1024*i)%4096} {opt("ntp", "")} lds')
        o.append(op)
    return o
def pack_reads(st):
    o = [lambda a: a.wait(vm=st['pk'])]
    for ct in range(5):
        for h in range(2):
            t = (f'ds_read_b64_tr_b16 v[{vPK+4*ct+2*h}:{vPK+4*ct+2*h+1}], v{vAO+5} offset:{(ct>>1)*64+(ct&1)*8+h*1280}' if ct < 4 else
                 f'ds_read_b64_tr_b16 v[{vPK+4*ct+2*h}:{vPK+4*ct+2*h+1}], v{vAO+6} offset:{128+h*1280}')
            o.append(lambda a, t=t, ct=ct: st.__setitem__(('pr', ct), a.lg(t)))
    return o
def pack_stores(st):
    o = []
    for ct in range(5):
        def op(a, ct=ct):
            a.wait(lg=st[('pr', ct)])
            if ct == 4: a.e(f's_add_u32 s{sPs}, s{sPs}, 4096')
            st['ps'] = a.vm(f'buffer_store_dwordx4 v[{vPK+4*ct}:{vPK+4*ct+3}], v{vAO+9}, {srd(SWS)}, s{sPs} offen offset:{(1024*ct)%4096} sc1')
        o.append(op)
    return o
def aux_publish(st):
    g = 186
    def op(a):
        a.e(f'v_mov_b32 v{g+3}, s{sTAG}\ns_mov_b32 exec_lo, 0x00010001\ns_mov_b32 exec_hi, 0x00010001')
        a.vm(f'buffer_store_dwordx4 v[{g}:{g+3}], v{vAO+8}, {srd(SWS)}, s{sSs} offen sc1')
        a.wait(vm=st['ps'])
        a.e('s_mov_b64 exec, 1')
        a.vm(f'buffer_store_dword v{g+3}, v{vAO+9}, {srd(SWS)}, s{sPf} offen sc1')
        a.e('s_mov_b64 exec, -1'); stamp(a, 'pf')
    return op
def stats_loads(st):
    return [lambda a, i=i: st.__setitem__('sl', a.vm(f'buffer_load_dwordx4 v[{vSD+4*i}:{vSD+4*i+3}], v{vAO+7}, {srd(SX)}, s{sSo} offen offset:{256*i}')) for i in range(5)]
def stats_proc(st):
    q = 180; g = 186; d = vSD
    o = [lambda a: a.wait(vm=st['sl']), f's_mov_b32 s{sT}, 0xbf803f80']
    o += [f'v_mov_b32 v{q+k}, 0' for k in range(3)]
    o += [f'v_dot2c_f32_bf16 v{q}, s{sONES}, v{d+r}\nv_dot2c_f32_bf16 v{q+1}, v{d+r}, v{d+r}\nv_dot2c_f32_bf16 v{q+2}, s{sT}, v{d+r}' for r in range(20)]
    for sh in (8, 4, 2, 1):
        o += [f'v_add_f32_dpp v{q+k}, v{q+k}, v{q+k} row_ror:{sh} row_mask:0xf bank_mask:0xf' for k in range(3)]
    o += L(f'v_mul_f32 v{q}, {fhex(1/640)}, v{q}\nv_mul_f32 v{q+1}, {fhex(1/640)}, v{q+1}')
    o += L(f'v_fma_f32 v{q+1}, -v{q}, v{q}, v{q+1}\nv_max_f32 v{q+1}, 0, v{q+1}\nv_add_f32 v{q+1}, {fhex(1e-5)}, v{q+1}')
    o += L(f'v_rsq_f32 v{q+3}, v{q+1}\nv_sqrt_f32 v{g+1}, v{q+1}\nv_sub_f32 v{g}, 0, v{q}\nv_mul_f32 v{g+2}, v{q+2}, v{q+3}')
    return o

def nonce_pub(a):
    if opt('wsb', 0): a.e(f's_add_u32 s80, s80, {opt("wsb", 0) << 20}\ns_addc_u32 s81, s81, 0')
    a.e(mk_srd(SWS, 80, WS_END)); a.e(mk_srd(SOUT, 76, 2048*1280))
    a.e(f's_mov_b64 s[{sB1}:{sB1+1}], s[70:71]\ns_mov_b64 s[{sB2}:{sB2+1}], s[74:75]\ns_mov_b64 s[{sDBG}:{sDBG+1}], s[78:79]')
    ln = label('non')
    a.e(f's_or_b32 s{sT}, s2, s{sW}\ns_cmp_lg_u32 s{sT}, 0\ns_cbranch_scc1 {ln}')
    a.e(f's_memrealtime s[{sT+1}:{sT+2}]\ns_waitcnt lgkmcnt(0)\ns_or_b32 s{sT}, s{sT+1}, 1')
    a.e(f'v_mov_b32 v{vT}, 0\nv_mov_b32 v{vT+1}, s{sT}')
    a.e(f'global_store_dword v{vT}, v{vT+1}, s[{sDBG}:{sDBG+1}] sc1'); a.vm_issued -= 1
    a.e(f'{ln}:')

def setup2(a, t):
    a.e(f's_mov_b32 s{sONES}, 0x3f803f80')
    a.e(f's_sub_u32 s{sT+2}, 32, s{sRB}\ns_cmp_eq_u32 s{sRB}, 0\ns_cselect_b32 s{sT+2}, 16, s{sT+2}')
    a.e(f's_cmp_eq_u32 s{sZ}, 1\ns_cselect_b32 s{sT1}, s{sT+2}, s{sRB}\ns_mov_b32 s{sC}, s{sC8}')
    a.e(f's_mul_i32 s{sTAU}, s{sW}, 14\ns_cmp_eq_u32 s{sW}, 3\ns_cselect_b32 s{sTAU}, 41, s{sTAU}')
    a.e(f'v_and_b32 v{vT}, 31, v{vL}\nv_lshrrev_b32 v{vT+1}, 5, v{vL}')
    a.e(f'v_bfe_u32 v{vT+2}, v{vL}, 1, 3\nv_xor_b32 v{vT+2}, v{vT+2}, v{vT+1}')
    a.e(f'v_lshlrev_b32 v{vT+3}, 7, v{vT}\nv_add_u32 v{vT+3}, s{sMA}, v{vT+3}\nv_lshl_add_u32 v{vAR[0]}, v{vT+2}, 4, v{vT+3}')
    for s in range(1, 4): a.e(f'v_xor_b32 v{vAR[s]}, {s<<5}, v{vAR[0]}')
    a.e(f'v_bfe_u32 v{vT+4}, v{vL}, 2, 2\nv_lshl_add_u32 v{vT+2}, v{vT+1}, 3, v{vT+4}\nv_mul_u32_u24 v{vT+2}, {t.pitch}, v{vT+2}')
    a.e(f'v_bfe_u32 v{vT+3}, v{vL}, 4, 1\nv_lshl_add_u32 v{vT+2}, v{vT+3}, 5, v{vT+2}')
    a.e(f'v_and_b32 v{vT+3}, 3, v{vL}\nv_lshl_add_u32 v{vT+2}, v{vT+3}, 3, v{vT+2}\nv_add_u32 v{vT+2}, {BBASE}, v{vT+2}')
    if t.nG == 2: a.e(f'v_lshrrev_b32 v{vT+4}, 1, v{vT+4}')
    for i in range(t.nG):
        a.e(f's_add_u32 s{sT}, s{sW}, {i}\ns_and_b32 s{sT}, s{sT}, {t.nG-1}')
        a.e(f'v_xor_b32 v{vT+3}, s{sT}, v{vT+4}\nv_lshl_add_u32 v{vBR[i]}, v{vT+3}, 6, v{vT+2}')
        a.e(f's_mul_i32 s{sH[i]}, s{sROW}, 54\ns_add_u32 s{sH[i]}, s{sH[i]}, s{sG0}\ns_add_u32 s{sH[i]}, s{sH[i]}, s{sT}\ns_lshl_b32 s{sH[i]}, s{sH[i]}, 11')
    a.e(f's_lshl_b32 s{sFL}, s2, 2\ns_add_u32 s{sFL}, s{sFL}, s{sW}\ns_lshl_b32 s{sFL}, s{sFL}, 7\ns_add_u32 s{sFL}, s{sFL}, {F_OFF}')
    a.e(f'v_and_b32 v{vT}, 15, v{vL}\nv_bfe_u32 v{vT+1}, v{vL}, 4, 1\nv_mov_b32 v{vT+2}, s{sONES}\nv_cmp_eq_u32 vcc, v{vT}, v{vT+1}\nv_cndmask_b32 v{vT+2}, 0, v{vT+2}, vcc')
    for k in range(4): a.e(f'v_accvgpr_write_b32 a{192+k}, v{vT+2}')
    a.e(f'v_lshlrev_b32 v{vL16}, 4, v{vL}')
    a.e(f'v_lshlrev_b32 v{vHO}, 10, v{vT+1}\nv_lshrrev_b32 v{vT+1}, 5, v{vL}\nv_lshl_add_u32 v{vHO}, v{vT+1}, 8, v{vHO}\nv_lshl_add_u32 v{vHO}, v{vT}, 4, v{vHO}')

vSG = 244
def gen_D(a, t, tmp):
    q = tmp
    a.e(f'v_and_b32 v{q}, 31, v{vL}\nv_lshrrev_b32 v{q+1}, 5, v{vL}\nv_lshlrev_b32 v{q+1}, 3, v{q+1}\nv_and_b32 v{q+3}, 1, v{vL}')
    a.e(f'v_cmp_eq_u32 vcc, 0, v{q+3}\nv_cndmask_b32 v{q+2}, 0, 0.5, vcc\nv_cndmask_b32 v{vSG}, 1.0, -1.0, vcc')
    a.e(f's_mul_i32 s{sT+1}, s{sW}, {5*2048}\ns_add_u32 s{sT+1}, s{sT+1}, {t.DREG}\nv_add_u32 v{q+3}, s{sT+1}, v{vL16}')
    a.e(f's_lshl_b32 s{sT}, s{sDT}, 4\ns_add_u32 s{sT}, s{sT}, 1\nv_add_u32 v{q+4}, s{sT}, v{q}\nv_cvt_f32_u32 v{q+4}, v{q+4}\nv_mul_f32 v{q+4}, {fhex(1/640)}, v{q+4}')
    for k5 in range(5):
        a.e(f's_mul_i32 s{sT}, s{sW}, 5\ns_add_u32 s{sT}, s{sT}, {k5}\ns_and_b32 s{sT+2}, s{sT}, 1\ns_lshr_b32 s{sT}, s{sT}, 1\ns_lshl_b32 s{sT}, s{sT}, 5\ns_add_u32 s{sT}, s{sT}, s{sT+2}')
        o = q + 8
        a.e(f'v_add_u32 v{q+6}, s{sT}, v{q+1}\nv_cvt_f32_u32 v{q+6}, v{q+6}\nv_fma_f32 v{o}, v{q+6}, v{q+4}, v{q+2}')
        for i in range(1, 8): a.e(f'v_fmamk_f32 v{o+i}, v{q+4}, {fhex(float(16*(i>>2) + 2*(i&3)))}, v{o}')
        for i in range(8): a.e(f'v_cos_f32 v{o+8+i}, v{o+i}\nv_sin_f32 v{o+i}, v{o+i}')
        for ip in range(4): a.e(cvtpk(o+8+ip, o+8+2*ip, o+9+2*ip))
        a.lg(f'ds_write_b128 v{q+3}, v[{o+8}:{o+11}] offset:{(k5*2)*1024}')
        for ip in range(4): a.e(cvtpk(o+16+ip, o+2*ip, o+1+2*ip))
        a.lg(f'ds_write_b128 v{q+3}, v[{o+16}:{o+19}] offset:{(k5*2+1)*1024}')

import math
def bf16(x):
    u = struct.unpack('<I', struct.pack('<f', x))[0]
    return ((u + 0x7fff + ((u >> 16) & 1)) >> 16) & 0xffff
def F_table():
    w = []
    for fn in (math.cos, math.sin, lambda x: -math.sin(x)):
        for f in range(2):
            for l in range(64):
                t1 = l & 31; hi = l >> 5
                v = [bf16(round(fn(2*math.pi*((t1*(16*f + 8*(i >> 2) + 4*hi + (i & 3))) % 32)/32), 12)) for i in range(8)]
                w += [v[2*k] | (v[2*k+1] << 16) for k in range(4)]
    return w
def load_F():
    return [f'global_load_dwordx4 {aF(k)}, v{vL16}, s[82:83] offset:{1024*k}' for k in range(4)] + ['s_add_u32 s82, s82, 4096\ns_addc_u32 s83, s83, 0'] + [f'global_load_dwordx4 {aF(4+k)}, v{vL16}, s[82:83] offset:{1024*k}' for k in range(2)]

def rot_ids(a):
    for j in range(4):
        a.e(f's_add_u32 s{sT}, s{sW}, {1+j}\ns_and_b32 s{sT+1}, s{sT}, 1\ns_bfe_u32 s{sT}, s{sT}, 0x10001')
        a.e(f's_lshl_b32 s{sT}, s{sT}, 5\ns_add_u32 s{sT}, s{sT}, s{sT1}\ns_lshl_b32 s{sT+1}, s{sT+1}, 10\ns_add_u32 s{sHB[j]}, s{sT}, s{sT+1}')
def gen_TW(a, t, sT=sT):
    a.e(f'v_and_b32 v{t}, 15, v{vL}\nv_lshrrev_b32 v{t+1}, 4, v{vL}\ns_lshl_b32 s{sT}, s{sW}, 2\nv_add_u32 v{t+1}, s{sT}, v{t+1}')
    a.e(f'v_sub_u32 v{t+2}, 32, v{t+1}\nv_cmp_eq_u32 vcc, 0, v{t+1}\nv_cndmask_b32 v{t+2}, v{t+2}, 16, vcc')
    a.e(f's_mov_b32 s{sT+1}, 0x3a000000')
    a.e(f's_cmp_ge_u32 s{sC}, 4\ns_cselect_b32 s{sT+1}, s{sT+1}, 0xba000000')
    a.e(f'v_cvt_f32_u32 v{t+1}, v{t+1}\nv_cvt_f32_u32 v{t+2}, v{t+2}\nv_add_f32 v{t+3}, {fhex(32.0)}, v{t+1}\nv_add_f32 v{t+4}, {fhex(32.0)}, v{t+2}')
    s2r = [t+1, t+3, t+2, t+4]
    a.e(f'v_lshlrev_b32 v{t}, 6, v{t}')
    for j in range(4):
        a.e(f'v_add_u32 v{t+5}, s{sHB[j]}, v{t}\nv_cvt_f32_u32 v{t+5}, v{t+5}\nv_mul_f32 v{t+5}, s{sT+1}, v{t+5}')
        for w in range(4): a.e(f'v_mul_f32 v{t+6+w}, v{t+5}, v{s2r[w]}')
        for w in range(4): a.e(f'v_cos_f32 v{t+10+w}, v{t+6+w}\nv_sin_f32 v{t+6+w}, v{t+6+w}')
        for w in range(4): a.e(cvtpk(t+6+w, t+10+w, t+6+w))
        for w in range(4): a.e(f'v_accvgpr_write_b32 a{aTW+4*j+w}, v{t+6+w}')

def check_loop(a, load_text, vval, nl, cnt):
    ok, lp = label('ok'), label('lp')
    if nl < 64: a.e(f's_mov_b32 exec_lo, {hex(((1<<nl)-1)&0xffffffff)}\ns_mov_b32 exec_hi, {hex(((1<<nl)-1)>>32)}')
    a.e(f'v_cmp_ne_u32 vcc, s{sTAG}, v{vval}\ns_mov_b32 s{cnt}, 0\ns_cbranch_vccz {ok}')
    a.e(f'{lp}:\ns_sleep 1')
    a.e(load_text); a.vm_issued -= 1
    a.e(f's_waitcnt vmcnt(0)\nv_cmp_ne_u32 vcc, s{sTAG}, v{vval}\ns_add_u32 s{cnt}, s{cnt}, 1\ns_cmp_gt_u32 s{cnt}, 100000\ns_cbranch_scc1 {ok}\ns_cbranch_vccnz {lp}')
    a.e(f'{ok}:')
    if nl < 64: a.e('s_mov_b64 exec, -1')

def nonce_check(a, tok):
    ok, lp = label('nok'), label('nlp')
    a.wait(vm=tok)
    a.e(f'v_readfirstlane_b32 s{sTAG}, v{vNON}\ns_mov_b32 s{sPC}, 0\ns_cmp_lg_u32 s{sTAG}, 0\ns_cbranch_scc1 {ok}')
    a.e(f'{lp}:\nv_mov_b32 v{vNON}, 0')
    a.e(f'global_load_dword v{vNON}, v{vNON}, s[{sDBG}:{sDBG+1}] sc1'); a.vm_issued -= 1
    a.e(f's_waitcnt vmcnt(0)\nv_readfirstlane_b32 s{sTAG}, v{vNON}\ns_add_u32 s{sPC}, s{sPC}, 1\ns_cmp_gt_u32 s{sPC}, 100000\ns_cbranch_scc1 {ok}')
    a.e(f's_cmp_eq_u32 s{sTAG}, 0\ns_cbranch_scc1 {lp}\n{ok}:')

SLOW = []
def adapt(a, text):
    return a.vm(text + ' sc1')
def set_flag_h(a, vt):
    a.e(f'v_mov_b32 v{vt}, 0\nv_mov_b32 v{vt+1}, s{sTAG}\ns_mov_b64 exec, 1')
    adapt(a, f'buffer_store_dword v{vt+1}, v{vt}, {srd(SWS)}, s{sFH} offen')
    a.e('s_mov_b64 exec, -1')
def set_flag(a, word, vt):
    a.e(f'v_mov_b32 v{vt}, {4*word}\nv_mov_b32 v{vt+1}, s{sTAG}\ns_mov_b64 exec, 1')
    a.vm(f'buffer_store_dword v{vt+1}, v{vt}, {srd(SWS)}, s{sFL} offen sc1')
    a.e('s_mov_b64 exec, -1')

def w2_load_ops(slot, st, cts=range(5)):
    ops = []
    for ct in cts:
        def op(a, ct=ct):
            vo = st['vL16d'] if slot == 13 else st.get('vW', vL16)
            need = 5120*slot + (4096 if ct == 4 else 0)
            if st.get('w2cur') != need: a.e(f's_add_u32 s{sW2o}, s{sUS}, {need}'); st['w2cur'] = need
            st['w2'][(slot, ct)] = a.vm(f'buffer_load_dwordx4 {W2(slot,ct)}, v{vo}, {srd(SWS)}, s{sW2o} offen offset:{(1024*ct)%4096} sc1')
        ops.append(op)
    return ops

vDS = 195
def P2(d, h): return f'v[{128+32*d+16*h}:{143+32*d+16*h}]'
def PE(p, par): b = 228 + 8*(p & 1) + 4*par; return b
def pass1(a, t, st):
    nG = t.nG; NK = 40 if nG == 4 else 42
    def dinfo(ks): return (ks & 1, (ks - 2) >> 1) if (nG == 2 and ks >= 2) else None
    def rdW(ks, i):
        c, s = divmod(ks, 4); o = []
        if i < nG:
            if ks >= 40: return []
            for h in range(2):
                o.append(lambda a, h=h: st['w'].__setitem__((ks, i), a.lg(f'ds_read_b64_tr_b16 {WB(ks&1,i,h)}, v{vBR[i]} offset:{(c%4)*t.bslot + s*16*t.pitch + h*4*t.pitch}')))
        elif dinfo(ks):
            d, p = dinfo(ks)
            o.append(lambda a: st['w'].__setitem__((ks, i), a.lg(f'ds_read_b128 {WB(ks&1,i)}, v{vDS} offset:{(((p%10)*2 + i-2)*2 + d)*1024}')))
        return o
    def rdA(c, s):
        return f'ds_read_b128 {X(4*c+s)}, v{vAR[s]} offset:{ARING + (c%4)*16384}'
    st['w'] = {}
    if nG == 2: a.e(f'v_add_u32 v{vDS}, {t.DREG}, v{vL16}\ns_mov_b32 s{sE+2}, 0x05040100\ns_mov_b32 s{sE+3}, 0x07060302')
    a.wait(vm=st['dma'][0], lg=a.lg_issued)
    a.e('s_barrier')
    stamp(a, 2)
    a.e(rdA(0, 0))
    for i in range(4): run(a, rdW(0, i))
    for s in range(1, 4): a.e(rdA(0, s))
    S = Sched(); first = {}
    for ks in range(NK):
        c, s = divmod(ks, 4); buf = ks & 1
        for i in range(4):
            pre = []
            if i == 0 and s == 3 and c < 9:
                pre.append(lambda a, c=c: (a.wait(vm=st['dma'][c+1]), a.e('s_barrier')))
            if i in (0, 2):
                pre.append(lambda a, ks=ks, i=i: a.wait(lg=st['w'][(ks, i+1)]) if (ks, i+1) in st['w'] else None)
            m = None
            if i < nG:
                if ks < 40: m = f'v_mfma_f32_32x32x16_bf16 {ACC1(i)}, {WB(buf,i)}, {X(ks)}, {"0" if ks == 0 else ACC1(i)}'
            elif dinfo(ks):
                d, p = dinfo(ks); b = PE(p, i-2)
                m = f'v_mfma_f32_32x32x16_bf16 {P2(d, i-2)}, v[{b}:{b+3}], {WB(buf,i)}, {"0" if p == 0 else P2(d, i-2)}'
            idx = S.add(m, pre)
            if i == 0: first[ks] = idx
            if i == 0 and ks < 37: S.put(idx, [f'v_mfma_f32_16x16x32_bf16 {aCS}, {aSEL}, {WB(buf,0)}, {"0" if ks == 0 else aCS}'])
        if ks < NK - 1:
            rd = [rdA(c+1, 0)] if (s == 3 and c < 9) else []
            k = len(rd)
            for i in range(4): rd += rdW(ks+1, i)
            if nG == 4: S.put(first[ks], rd[:k+3]); S.put(first[ks]+1, rd[k+3:7]); S.put(first[ks]+2, rd[7:])
            else: S.put(first[ks], rd[:k+3]); S.put(first[ks]+1, rd[k+3:])
            if s == 3 and c < 9: S.put(first[ks]+3, [rdA(c+1, 1)])
            if s == 0 and 0 < c < 10: S.put(first[ks]+3, [rdA(c, 2), rdA(c, 3)])
        if nG == 2 and ks & 1 and ks < 40:
            p = ks >> 1; xa = 196 + 4*((ks-1) % 8); xb = 196 + 4*(ks % 8)
            pm = []
            for par in range(2):
                for k, src in enumerate((xa, xa+2, xb, xb+2)): pm.append(f'v_perm_b32 v{PE(p,par)+k}, v{src+1}, v{src}, s{sE+2+par}')
            S.put(first[ks]+2, pm[:4]); S.put(first[ks]+3, pm[4:])
    if nG == 2:
        for d in range(2): S.spread([f'v_mul_f32 v{128+32*d+k}, v{vSG}, v{128+32*d+k}' for k in range(32)], first[21+d]+1, first[22+d]+1)
    exb = 160 if nG == 4 else 84
    ex = []
    for n in range(3):
        for h in range(2):
            ex.append(lambda a, n=n, h=h: st.__setitem__('ex', a.lg(f'ds_read_b64_tr_b16 v[{exb+4*n+2*h}:{exb+1+4*n+2*h}], v{vBR[0]} offset:{(9%4)*t.bslot + (n+1)*16*t.pitch + h*4*t.pitch}')))
    mm = [lambda a: a.wait(lg=st['ex'])] + [f'v_mfma_f32_16x16x32_bf16 {aCS}, {aSEL}, v[{exb+4*n}:{exb+3+4*n}], {aCS}' for n in range(3)]
    S.put(first[35]+3, ex[:3]); S.put(first[36]+3, ex[3:]); S.put(first[37], mm); st['cs_slot'] = first[37] + 3; st['bar_slot'] = first[38] + 2
    gaps = []
    for ks in range(40):
        gaps += [(ks, first[ks]), (ks, first[ks]+2)] + ([(ks, first[ks]+3)] if ks < opt('ncu', 6) else [])
    gi = 0
    for c in range(st['next_chunk'], 10):
        ops = dma_ops(t, c, st)
        A = ops[1:5]; B = ops[6:-1]
        eA = (c-3)*4 if c >= 4 else 0
        eB = (c-2)*4 - 1 if c >= 4 else 0
        lo = max(0, (c - opt('la', 2) - 1)*4 + 1)
        for k, op in enumerate(A + B):
            e = max(eA if k < 4 else eB, lo)
            while gaps[gi][0] < e: gi += 1
            pre = [ops[0]] if k == 0 else ([ops[5]] if k == 4 else [])
            post = [ops[-1]] if k == 3 + len(B) else []
            g = gaps[gi][1]
            if pre: S.put(g - 1 if g > 0 else g, pre)
            if k == 0: st.setdefault('grp', {})[c] = (g - 1 if g > 0 else g, pre[0], gaps[gi][0])
            S.put(g, [op] + post); gi += 1
        assert gaps[gi-1][0] < c*4 - 1, (c, gaps[gi-1])
    return S, first

AUGW = None
def h_aug_x(tmp):
    p, q2 = tmp+4, tmp+5
    o = [cvtpk(p, vNM, vSDV), f'v_lshlrev_b32 v{tmp+6}, 16, v{p}', f'v_and_b32 v{tmp+7}, 0xffff0000, v{p}',
         f'v_sub_f32 v{tmp+6}, v{vNM}, v{tmp+6}', f'v_sub_f32 v{tmp+7}, v{vSDV}, v{tmp+7}', cvtpk(q2, tmp+6, tmp+7)]
    o += [f'v_mov_b32 v{tmp+k}, 0' for k in range(4)]
    o += [f's_mov_b32 s{sT+3}, 0x05040100\ns_mov_b32 exec_hi, 0\nv_perm_b32 v{tmp}, v{q2}, v{p}, s{sT+3}\nv_mov_b32 v{tmp+1}, v{p}\nv_lshrrev_b32 v{tmp+2}, 16, v{q2}\ns_mov_b32 exec_hi, -1']
    return o
def h_aug_w(st, i, tmp, vtb):
    b = AUGW[i]
    rd = [lambda a: st['tb'].__setitem__(i, a.lg(f'ds_read2_b32 v[{b+4}:{b+5}], v{vtb} offset0:0 offset1:128'))]
    mk = [lambda a: a.wait(lg=st['tb'][i]), cvtpk(b, b+4, b+4), cvtpk(b+2, b+5, b+5), f'v_and_b32 v{b+1}, 0xffff0000, v{b}', f'v_mov_b32 v{b+3}, 0',
          f'v_sub_f32 v{b+1}, v{b+4}, v{b+1}', cvtpk(b+1, b+1, b+5)]
    mf = [f'v_mfma_f32_32x32x16_bf16 {ACC1(i)}, v[{b}:{b+3}], v[{tmp}:{tmp+3}], {ACC1(i)}']
    return rd, mk, mf
def h_fin(st, i, u):
    acc = 32 + 16*i + 8*u; o = []
    for k in range(8): o.append(f'v_max_f32 v{acc+k}, 0, v{acc+k}')
    for k in range(8): o.append(f'v_mul_f32 v{acc+k}, v{vR}, v{acc+k}')
    for k in range(8): o.append(f'v_mul_f32 v{acc+k}, v{acc+k}, v{acc+k}')
    for k in range(4): o.append(cvtpk(acc+k, acc+2*k, acc+2*k+1))
    if opt('nohst', 0): o.append(lambda a: st.__setitem__('hst', a.vm_issued))
    else: o.append(lambda a: st.__setitem__('hst', adapt(a, f'buffer_store_dwordx4 v[{acc}:{acc+3}], v{vHO}, {srd(SWS)}, s{sH[i]} offen offset:{512*u}')))
    return o

class Rec:
    def __init__(self): self.ops = []; self.tok = {}
    def e(self, text):
        ls = L(text); i = 0
        while i < len(ls):
            j = i + 1
            if ls[i].startswith('s_cmp') or ls[i].startswith('s_bitcmp') or ls[i].startswith('v_cmp'):
                while j < len(ls) and not (ls[j].startswith('s_cselect') or ls[j].startswith('s_cbranch') or ls[j].startswith('v_cndmask')): j += 1
                while j < len(ls) and (ls[j].startswith('s_cselect') or ls[j].startswith('s_cbranch') or ls[j].startswith('v_cndmask')): j += 1
            self.ops.append('\n'.join(ls[i:j])); i = j
    def lg(self, text): self.ops.append(text)
    def vm(self, text, key='t'):
        self.ops.append(lambda a: self.tok.__setitem__(key, a.vm(text)))
def merge(main, other):
    out = []; n, m = len(main), len(other); k = 0
    for i, op in enumerate(main):
        out.append(op)
        while k < m and (k + 1) * n <= (i + 1) * m + m - 1 and k * n <= i * m: out.append(other[k]); k += 1
    return out + other[k:]

def touch_ops(t, lo, hi, q=188):
    n = hi - lo
    o = [f'v_mov_b32 v{q+2}, {OOB}']
    o += L(f'v_and_b32 v{q}, 3, v{vL}\ns_lshl_b32 s{sPC}, s{sC8}, 2\nv_add_u32 v{q}, s{sPC}, v{q}\nv_mul_u32_u24 v{q}, 640, v{q}\nv_lshrrev_b32 v{q+1}, 2, v{vL}\nv_add3_u32 v{q}, v{q}, v{q+1}, {lo}\nv_lshlrev_b32 v{q}, 7, v{q}')
    o += [f'v_cmp_gt_u32 vcc, {4*n}, v{vL}\nv_cndmask_b32 v{q}, v{q+2}, v{q}, vcc', f's_mul_i32 s{sPC}, s{sROW}, 1280']
    o += [f'buffer_load_dword v{vPF}, v{q}, {srd(SX)}, s{sPC} offen {opt("ntx", "")}']
    if t.nG == 4: o += L(f'v_lshrrev_b32 v{q}, 1, v{vL}\nv_and_b32 v{q+1}, 1, v{vL}')
    else: o += L(f'v_mov_b32 v{q}, v{vL}\nv_mov_b32 v{q+1}, 0')
    o += L(f'v_lshlrev_b32 v{q}, 4, v{q}\ns_and_b32 s{sPC}, s{sRB}, 3\ns_lshl_b32 s{sPC}, s{sPC}, 2\ns_add_u32 s{sPC}, s{sPC}, s{sW}\ns_add_u32 s{sPC}, s{sPC}, {64*lo}')
    o += L(f'v_add_u32 v{q}, s{sPC}, v{q}\nv_mul_u32_u24 v{q}, 0xd80, v{q}\nv_lshl_add_u32 v{q}, v{q+1}, 7, v{q}\ns_lshl_b32 s{sPC}, s{sG0}, 6')
    o += [f'v_cmp_gt_u32 vcc, {(8 if t.nG == 4 else 4)*n}, v{vL}\nv_cndmask_b32 v{q}, v{q+2}, v{q}, vcc']
    o += [f'buffer_load_dword v{vPF}, v{q}, {srd(SW1)}, s{sPC} offen {opt("ntw", "")}']
    assert n <= 8
    return o

vTX, vTW = 193, 194; sTX, sTW = 52, 63
def roll_setup(t, n):
    q = 188
    o = L(f'v_mov_b32 v{q+2}, {OOB}\nv_and_b32 v{q+3}, 3, v{vL}\nv_lshrrev_b32 v{q+1}, 2, v{vL}\ns_mul_i32 s{sPC}, s{sZ}, 6\ns_add_u32 s{sPC}, s{sPC}, s{sC8}\ns_mul_i32 s{sPC}, s{sPC}, 3')
    o += L(f'v_add_u32 v{q}, s{sPC}, v{q+3}\nv_min_u32 v{q}, 31, v{q}\nv_mul_u32_u24 v{q}, 640, v{q}\nv_add_lshl_u32 v{q}, v{q}, v{q+1}, 7')
    o += [f'v_cmp_gt_u32 vcc, {4*n}, v{vL}\nv_cndmask_b32 v{q}, v{q+2}, v{q}, vcc', f'v_cmp_gt_u32 vcc, 3, v{q+3}\nv_cndmask_b32 v{vTX}, v{q+2}, v{q}, vcc', f's_mul_i32 s{sTX}, s{sROW}, 1280']
    o += L(f's_mul_i32 s{sTW}, s{sZ}, 12\ns_add_u32 s{sTW}, s{sTW}, s{sC8}\ns_add_u32 s{sTW}, s{sTW}, 12\ns_lshl_b32 s{sTW}, s{sTW}, 7\ns_add_u32 s{sPC}, s{sZ}, 2')
    o += [f's_cmp_lt_u32 s{sC8}, s{sPC}\ns_cselect_b32 s{sTW}, s{sTW}, {OOB}', f'v_mov_b32 v{q}, s{sTW}', f's_lshl_b32 s{sPC}, s{sG0}, 6', f'v_lshl_add_u32 v{vTW}, v{q+3}, 7, s{sPC}']
    o += [f'v_cmp_eq_u32 vcc, 2, v{q+3}\nv_cndmask_b32 v{vTW}, v{vTW}, v{q}, vcc', f'v_cmp_eq_u32 vcc, 3, v{q+3}\nv_cndmask_b32 v{vTW}, v{vTW}, v{q+2}, vcc']
    o += L(f's_lshl_b32 s{sPC}, s{sRB}, 2\ns_add_u32 s{sPC}, s{sPC}, s{sW}\nv_lshl_add_u32 v{q}, v{q+1}, 6, s{sPC}\nv_mul_u32_u24 v{q}, 0xd80, v{q}\nv_add_u32 v{vTW}, v{vTW}, v{q}')
    o += [f'v_cmp_gt_u32 vcc, {4*n}, v{vL}\nv_cndmask_b32 v{vTW}, v{q+2}, v{vTW}, vcc', f's_mov_b32 s{sTW}, 0']
    return o
def roll(st, lo):
    def op1(a):
        d = lo - st.get('roll', 0); st['roll'] = lo
        if d: a.e(f's_add_u32 s{sTX}, s{sTX}, {128*d}\ns_add_u32 s{sTW}, s{sTW}, {64*3456*d}')
        a.vm(f'buffer_load_dword v{vPF}, v{vTX}, {srd(SX)}, s{sTX} offen {opt("ntx", "")}')
    return [op1, f'buffer_load_dword v{vPF}, v{vTW}, {srd(SW1)}, s{sTW} offen {opt("ntw", "")}']

def build_type(a, t):
    st = {'dma': {}, 'w2': {}, 'tb': {}}
    nG, nD = t.nG, t.nD
    XV[0] = (nG == 2)
    rs = [x.split('@') for x in opt('rs', '1@s0,4@s1,7@s2').split(',') if x]
    at = lambda p: [o for c_, p_ in rs if p_ == p for o in roll(st, int(c_))]
    prologue_t(a, t, st)
    if nG == 4: run(a, at('s0'))
    run(a, dma_ops(t, 0, st))
    stamp(a, 'p2')
    a.e(mk_srd(SW2, 72, 1728*1280))
    nonce_pub(a)
    stamp(a, 'p3')
    r = Rec()
    setup2(r, t)
    if nG == 4: aux_setup(r); aux_setup2(r)
    if nG == 2: gen_D(r, t, 96)
    rot_ids(r)
    if opt('twR', 0) if nG == 4 else opt('twS', 0): gen_TW(r, 96)
    main = r.ops
    vSA, vFA, vFV = vT+3, vT+4, vT+5
    st['vL16d'] = 192
    pre = L(f's_lshl_b32 s{sT}, s{sRB}, 2\ns_add_u32 s{sT}, s{sT}, s{sW}\ns_lshl_b32 s{sT}, s{sT}, 9\ns_add_u32 s{sT}, s{sT}, {ST_OFF}')
    pre += L(f'v_and_b32 v{vSA}, 31, v{vL}\nv_lshl_add_u32 v{vSA}, v{vSA}, 4, s{sT}')
    pre += L(f'v_add_u32 v{vFA}, s{sTAU}, v{vL}\nv_min_u32 v{vFA}, 53, v{vFA}')
    pre += L(f's_lshl_b32 s{sT}, s{sC}, 7\ns_add_u32 s{sT}, s{sT}, {PF_OFF}\nv_lshlrev_b32 v{vFA}, 10, v{vFA}\nv_add_u32 v{vFA}, s{sT}, v{vFA}')
    pre += L(f's_mul_i32 s{sUS}, s{sC}, 54\ns_add_u32 s{sUS}, s{sUS}, s{sTAU}\ns_mul_i32 s{sUS}, s{sUS}, 5120\ns_add_u32 s{sUS}, s{sUS}, {P_OFF}')
    pre += [f's_cmp_ge_u32 s{sW}, 2\ns_cselect_b32 s{sT}, {OOB}, 0', f'v_add_u32 v192, s{sT}, v{vL16}']
    vTB = [4, 5, 6, 7] if nG == 4 else [14, 15]; vRT = 3
    prep = L(f's_lshl_b32 s{sE+1}, s{sW}, 7\ns_add_u32 s{sE+1}, s{sE+1}, {TABR}\nv_and_b32 v{vT+6}, 31, v{vL}\nv_lshl_add_u32 v{vRT}, v{vT+6}, 2, s{sE+1}')
    for i in range(nG):
        prep += L(f's_add_u32 s{sE}, s{sW}, {i}\ns_and_b32 s{sE}, s{sE}, {nG-1}\ns_lshl_b32 s{sE}, s{sE}, 7\ns_add_u32 s{sE}, s{sE}, {TABC}\nv_lshl_add_u32 v{vTB[i]}, v{vT+6}, 2, s{sE}')
    prep += [f'v_lshrrev_b32 v{vT+6}, 5, v{vL}']
    nonl = [f'v_mov_b32 v{vNON}, 0', lambda a: st.__setitem__('non', a.vm(f'global_load_dword v{vNON}, v{vNON}, s[{sDBG}:{sDBG+1}] sc1'))]
    st['next_chunk'] = 2
    main = main + pre
    if nG == 4:
        n = len(main); c2 = n * opt('c2', 40) // 100; c3 = n * opt('c3', 50) // 100
        run(a, at('s1') + main[:c2] + at('s2') + main[c2:c3]); stamp(a, 'p4')
        run(a, merge(main[c3:], dma_ops(t, 1, st)) + nonl)
        sp = stats_proc(st); ps = pack_stores(st)
    else:
        n = len(main); c3 = n * opt('s3', 60) // 100
        run(a, main[:c3]); stamp(a, 'p4')
        run(a, merge(main[c3:], dma_ops(t, 1, st)) + nonl)
        tw2 = L(f's_mul_i32 s{sT}, s{sRB}, 10\ns_add_u32 s{sT}, s{sT}, s{sDT}\ns_lshl_b32 s{sT}, s{sT}, 1\ns_add_u32 s{sT}, s{sT}, s{sW}\ns_mul_i32 s{sT}, s{sT}, {54*128}\nv_lshlrev_b32 v64, 7, v{vL}')
        tw2 += [f's_mov_b32 exec_hi, 0x3fffff\nbuffer_load_dword v{vPF}, v64, {srd(SW2)}, s{sT} offen\ns_mov_b32 exec_hi, -1']
        if opt('tw2', 0) == 0: run(a, tw2)
    stamp(a, 1)
    S, first = pass1(a, t, st)
    NS = 4
    l = lambda ks: first[ks] + 3
    b1tab = L(f'v_lshlrev_b32 v{vT}, 16, v{vT+7}\nv_and_b32 v{vT+1}, 0xffff0000, v{vT+7}\nv_lshlrev_b32 v{vT+2}, 3, v{vL}\nv_add_u32 v{vT+2}, {TABB}, v{vT+2}\nds_write_b64 v{vT+2}, v[{vT}:{vT+1}]')
    S.spread(b1tab, first[3], l(3))
    S.put(l(opt('kn', 11)), [lambda a: nonce_check(a, st['non'])])
    if nG == 2 and opt('tw2', 0) > 0: S.put(l(opt('tw2', 0)), [lambda a: run(a, tw2)])
    if nG == 4:
        g_ = st['grp'][opt('ag', 3)]
        fl = S.slots[g_[0]]['fill']; fl.insert(fl.index(g_[1]), lambda a: run(a, pack_dma(st)))
        ka_ = g_[2]
        for k_, op_ in enumerate(stats_loads(st)): S.put(first[ka_ + k_] + 1, [op_])
        kb_ = opt('kb', 7)
        S.spread(pack_reads(st), first[kb_], l(kb_+1))
        for k_, op_ in enumerate(ps): S.put(first[kb_+2+k_] + 1, [op_])
        S.put(l(kb_+2), sp[:5] + [lambda a: run(a, sp[5:25])]); S.spread(sp[25:], first[kb_+3], l(kb_+6))
        S.put(l(opt('kf', kb_ + 7)), [aux_publish(st)])
        for c_, p_ in rs:
            if p_[0] != 's': S.put(l(int(p_)), roll(st, int(c_)))
    pfl = f'buffer_load_dword v{vFV}, v{vFA}, {srd(SWS)}, 0 offen sc1'
    stl = f'buffer_load_dwordx4 v[{vST}:{vST+3}], v{vSA}, {srd(SWS)}, 0 offen sc1'
    if nG == 2: S.spread(load_F(), l(13), l(16))
    sf = '' if nG == 4 else 'S'
    kq = opt('kq' + sf, 29 if nG == 4 else 31); kp = kq - 3
    early = opt('early', 1)
    S.put(l(opt('ks', 31)), [lambda a: st.__setitem__('stl', a.vm(stl))])
    S.put(l(kp if early else 38), [lambda a: st.__setitem__('pfl', a.vm(pfl))])
    pchk = lambda a: (a.wait(vm=st['pfl']), check_loop(a, pfl, vFV, 14, sPC), stamp(a, 'pc'))
    S.put(l(kq), [pchk if early else (lambda a: a.wait(vm=st['stl']))])
    allw = []
    for s_ in (range(14) if nG == 4 else list(range(3, 14)) + [0, 1, 2]): allw += w2_load_ops(s_, st)
    st['twq'] = []
    if opt('touchw', 0):
        nl_ = opt('tl', 16)
        tw = L(f's_bfe_u32 s{sT}, s2, 0x20003\nv_lshl_add_u32 v{vFA}, v{vL}, 2, s{sT}\nv_lshlrev_b32 v{vFA}, 7, v{vFA}\ns_mov_b32 s{sTX}, s{sUS}')
        S.put(l(kq), tw)
        nb_ = -(-130 // nl_)
        for j in range(nb_):
            n_ = min(nl_, 130 - j*nl_)
            op = f's_mov_b64 exec, {hex((1 << n_) - 1)}\nbuffer_load_dword v{vPF}, v{vFA}, {srd(SWS)}, s{sTX} offen sc1\ns_mov_b64 exec, -1\ns_add_u32 s{sTX}, s{sTX}, {nl_*512}'
            k_ = kq + 1 + opt('tstep', 3)*j
            if k_ < 40: S.put(first[k_] + 1, [op])
            else: st['twq'].append(op)
    n0 = 0
    kA, kB = kq + 1, opt('kB' + sf, 31)
    for ks in range(kA, 40):
        pos_ = [first[ks] + 1] if ks < kB else sorted([first[ks], first[ks] + NS - 2, first[ks] + 1][:opt('ne' + sf, 2 if nG == 4 else 3)])
        if ks < kB and (ks - kA) % opt('kAs' + sf, 2 if nG == 4 else 1): pos_ = []
        for p_ in pos_: S.put(p_, [allw[n0]]); n0 += 1
    assert n0 <= (60 if nG == 4 else 42)
    global AUGW
    tmp = 172 if nG == 4 else 64
    AUGW = [160, 166, 96, 102] if nG == 4 else [72, 78]
    e1 = [lambda a: (a.wait(vm=st['stl']), check_loop(a, stl, vST+3, 64, sPC))]
    e1 += [f'v_rcp_f32 v{vR}, v{vSDV}']
    if nG == 2: e1 += [f's_nop 0\nds_write2st64_b32 v{vRT}, v{vR}, v{vAL} offset0:0 offset1:2']
    e1 += h_aug_x(tmp)
    S.spread(prep, first[31], l(33)); S.spread(e1, first[34], l(36))
    e2 = L(f'v_accvgpr_read_b32 v{vT}, a196\nv_accvgpr_read_b32 v{vT+1}, a197')
    e2 += [f's_mov_b64 exec, 0xffff\nds_write2_b32 v{vTB[0]}, v{vT}, v{vT+1} offset0:0 offset1:16\ns_mov_b64 exec, -1', lambda a: st.__setitem__('csw', a.lg_issued)]
    S.put(st['cs_slot'], e2)
    S.slots[st['bar_slot']]['pre'].append(lambda a: (a.wait(lg=st['csw']), a.e('s_barrier')))
    aw = [h_aug_w(st, i, tmp, vTB[i]) for i in range(nG)]
    S.put(st['bar_slot'], [x for i in range(nG) for x in aw[i][0]])
    S.spread([x for i in range(nG) for x in aw[i][1]], min(st['bar_slot'] + 2, l(39)), l(39))
    for ks in range(40): S.slots[first[ks]]['pre'].insert(0, lambda a, ks=ks: stamp(a, f'k{ks}'))
    if nG == 2: S.put(first[40], aw[0][2] + aw[1][2])
    S.emit(a)
    if nG == 4:
        for i in range(nG): run(a, aw[i][2])
    stamp(a, 3)
    n1 = n0
    later = allw[n1:]
    ufirst = nG == 2 and opt('ufS', 0)
    def hflag(a):
        a.wait(vm=st['hst']); a.e(f's_add_u32 s{sFH}, s{sFL}, {HF_OFF - F_OFF}'); set_flag_h(a, 193); stamp(a, 'hf')
    def uflag(a):
        a.wait(vm=st['ust']); set_flag(a, 1, 193); stamp(a, 'uf')
    def do_U():
        rr = 96
        a.e(f'v_lshl_add_u32 v{vT}, v{vT+6}, 4, s{sE+1}')
        for jq in range(4): rt_ = a.lg(f'ds_read_b128 v[{rr+4*jq}:{rr+4*jq+3}], v{vT} offset:{32*jq}')
        vXW, vXR_, vUS = vT+2, vT+3, vT+4
        a.e(f'v_and_b32 v{vT+1}, 31, v{vL}\nv_lshlrev_b32 v{vT+5}, 2, v{vT+1}\nv_lshl_add_u32 v{vXW}, v{vT+6}, 9, v{vT+5}\ns_lshl_b32 s{sE}, s{sW}, 12\nv_add_u32 v{vXW}, s{sE}, v{vXW}')
        a.e(f's_lshl_b32 s{sE}, s{sW}, 10\nv_lshl_add_u32 v{vXR_}, v{vL}, 2, s{sE}')
        a.e(f's_mov_b32 s{sE}, 81920\nv_mul_lo_u32 v{vT+5}, s{sE}, v{vT+6}\nv_lshl_add_u32 v{vUS}, v{vT+1}, 4, v{vT+5}')
        a.wait(lg=rt_)
        for d in range(2):
            E, O = 128 + 32*d, 144 + 32*d
            for j in range(16):
                tq = 228 + (j & 3)
                x, y = (E+j, O+j) if d == 0 else (O+j, E+j)
                a.e(f'v_add_f32 v{tq}, v{E+j}, v{O+j}\nv_sub_f32 v{O+j}, v{x}, v{y}\nv_mul_f32 v{E+j}, v{rr+j}, v{tq}\nv_mul_f32 v{O+j}, v{rr+j}, v{O+j}')
            for j in range(8): a.e(cvtpk(E+j, E+2*j, E+2*j+1))
        DR = [(64, 80), (196, 212)]
        def step2(part):
            c0 = 128 + 16*part; s0 = 160 + 16*part; UR, UV = DR[part]
            UR = f'v[{UR}:{UR+15}]'; UV = f'v[{UV}:{UV+15}]'
            G = lambda b, f: f'v[{b+4*f}:{b+4*f+3}]'
            for k, (A1, A2, B) in enumerate(((0, 2, G(c0,0)), (1, 3, G(c0,1)), (4, 0, G(s0,0)), (5, 1, G(s0,1)))):
                a.e(f'v_mfma_f32_32x32x16_bf16 {UR}, {aF(A1)}, {B}, {"0" if k == 0 else UR}')
                a.e(f'v_mfma_f32_32x32x16_bf16 {UV}, {aF(A2)}, {B}, {"0" if k == 0 else UV}')
        def comb(part):
            UR, UV = DR[part]
            for j in range(16):
                a.e(cvtpk(UR+j, UR+j, UV+j))
                a.lg(f'ds_write_b32 v{vXW}, v{UR+j} offset:{XCH + part*16384 + (8*(j>>2)+(j&3))*128}')
        stamp(a, 'u0')
        step2(0)
        ls = label('spec')
        a.e(f's_cmp_lg_u32 s{sDT}, 8\ns_cbranch_scc1 {ls}')
        for jq in range(4): a.e(f'ds_read_b128 v[{232+4*jq}:{235+4*jq}], v{vT} offset:{512+32*jq}')
        a.lg_issued -= 4
        a.e('s_waitcnt lgkmcnt(0)\ns_mov_b32 exec_lo, 0x80000000\ns_mov_b32 exec_hi, 0x80000000')
        for j in range(16): a.e(f'v_mov_b32 v{144+j}, v{232+j}\nv_mov_b32 v{176+j}, 0')
        a.e(f's_mov_b64 exec, -1\n{ls}:')
        for O in (144, 176):
            for j in range(8): a.e(cvtpk(O+j, O+2*j, O+2*j+1))
        hp_ = opt('hpS', 0)
        if not ufirst and hp_ == 0: hflag(a)
        step2(1); comb(0)
        if not ufirst and hp_ == 1: hflag(a)
        comb(1)
        stamp(a, 'u1')
        a.wait(lg=a.lg_issued); a.e('s_barrier')
        stamp(a, 'u2')
        toks = []
        for part in range(2):
            for i in range(4):
                b = 128 + 16*part + 4*i
                a.lg(f'ds_read2st64_b32 v[{b}:{b+1}], v{vXR_} offset0:{64*part+i} offset1:{64*part+16+i}')
                toks.append(a.lg(f'ds_read2st64_b32 v[{b+2}:{b+3}], v{vXR_} offset0:{64*part+32+i} offset1:{64*part+48+i}'))
        a.e(f's_lshl_b32 s{sE}, s{sW}, 7\ns_add_u32 s{sE}, s{sE}, s{sRB}\ns_mul_i32 s{sE}, s{sE}, 5120\ns_lshl_b32 s{sE+1}, s{sDT}, 8\ns_add_u32 s{sE}, s{sE}, s{sE+1}\ns_add_u32 s{sE}, s{sE}, {U_OFF}')
        for i in range(1, 4): a.e(f's_add_u32 s{sE+i}, s{sE}, {2*81920*i}')
        for part in range(2):
            for i in range(4):
                b = 128 + 16*part + 4*i
                a.wait(lg=toks[4*part+i])
                st['ust'] = a.vm(f'buffer_store_dwordx4 v[{b}:{b+3}], v{vUS}, {srd(SWS)}, s{sE+i} offen offset:{2560*part} sc1')
        stamp(a, 'u3')
    def do_H():
        S = Sched()
        for k in range(8*nG): S.add(None)
        nm = len(S.slots)
        ops = []
        for i in range(nG): ops += [lambda a, i=i: stamp(a, f'f{i}')] + h_fin(st, i, 0) + h_fin(st, i, 1)
        S.spread(ops, 0, nm - 1)
        k_ = opt('na', 4) if nG == 4 else opt('naS', 2)
        if st['twq']: S.spread(st['twq'], 0, nm - 1)
        if k_: S.spread(later[:k_], 0, nm - 1); del later[:k_]
        if ufirst: S.put(min(nm - 1, opt('ufs', 20)), [uflag])
        hfe = -1
        S.emit(a)
        stamp(a, 4)
    if nG == 4: do_H()
    elif ufirst: do_U(); do_H()
    else: do_H(); do_U()
    if nG == 2: later = later[-15:] + later[:-15]
    nin = opt('nin' + sf, 0)
    st['inp2'] = later[len(later) - nin:]; later = later[:len(later) - nin]
    stamp(a, 5)
    phase2(a, st, hflag if (ufirst or nG == 4) else uflag, later, not (opt('twR', 0) if nG == 4 else opt('twS', 0)))

def phase2(a, st, hflag, later, doTW):
    RED = 65536 if XV[0] else 0
    t = 2
    q = 144
    r = Rec()
    if doTW: gen_TW(r, q)
    r.e(f's_mul_i32 s{sGO}, s{sHB[3]}, 1280')
    vHJ = [184, 185, 186, 187]; vHD = [188, 189, 190, 191]
    for j in range(4):
        r.e(f's_and_b32 s{sT}, s{sHB[j]}, 1024\ns_and_b32 s{sHB[j]}, s{sHB[j]}, 63\ns_mul_i32 s{sHB[j]}, s{sHB[j]}, 54\ns_add_u32 s{sHB[j]}, s{sHB[j]}, s{sTAU}\ns_lshl_b32 s{sHB[j]}, s{sHB[j]}, 11\ns_add_u32 s{sHB[j]}, s{sHB[j]}, s{sT}')
        r.e(f'v_add_u32 v{vHJ[j]}, s{sHB[j]}, v{vL16}\nv_add_u32 v{vHD[j]}, s{sHB[j]}, v192')
    r.e(f's_mov_b32 s{sKO[0]}, 0\ns_movk_i32 s{sKO[13]}, {13*2048}')
    for k in range(1, 13):
        if opt('rho', 0): r.e(f's_add_u32 s{sKO[k]}, s{sKO[k-1]}, 2048\ns_cmp_eq_u32 s{sKO[k]}, s{sKO[13]}\ns_cselect_b32 s{sKO[k]}, 0, s{sKO[k]}')
        elif k % 2 == 0: r.e(f's_movk_i32 s{sKO[k]}, {2048*k}')
    vG4, vG2, vB4 = t+8, t+9, t+10
    r.e(f's_mul_i32 s{sCW}, s{sC}, 160\ns_add_u32 s{sGO}, s{sGO}, s{sCW}\ns_mov_b32 s{sT}, 81920')
    r.e(f'v_and_b32 v{q}, 15, v{vL}\nv_mul_lo_u32 v{q}, s{sT}, v{q}\nv_lshrrev_b32 v{q+1}, 4, v{vL}\nv_lshl_add_u32 v{vG4}, v{q+1}, 4, v{q}\nv_lshl_add_u32 v{vG2}, v{q+1}, 3, v{q}')
    r.e(f'v_lshl_add_u32 v{vB4}, v{q+1}, 4, s{sCW}\nv_lshl_add_u32 v{q+2}, v{q+1}, 3, s{sCW}')
    xr = 160; br = 172
    r.ops += [f'buffer_load_dwordx4 v[{xr}:{xr+3}], v{vG4}, {srd(SX)}, s{sGO} offen', f'buffer_load_dwordx4 v[{xr+4}:{xr+7}], v{vG4}, {srd(SX)}, s{sGO} offen offset:64',
              f'buffer_load_dwordx2 v[{xr+8}:{xr+9}], v{vG2}, {srd(SX)}, s{sGO} offen offset:128',
              f'global_load_dwordx4 v[{br}:{br+3}], v{vB4}, s[{sB2}:{sB2+1}]', f'global_load_dwordx4 v[{br+4}:{br+7}], v{vB4}, s[{sB2}:{sB2+1}] offset:64']
    r.vm(f'global_load_dwordx2 v[{br+8}:{br+9}], v{q+2}, s[{sB2}:{sB2+1}] offset:128', 'xb')
    r.e(f's_and_b32 s{sT+1}, s2, 15\ns_lshr_b32 s{sT+2}, s{sW}, 1\ns_lshl_b32 s{sT+2}, s{sT+2}, 4\ns_add_u32 s{sT+1}, s{sT+1}, s{sT+2}')
    r.e(f's_and_b32 s{sT+2}, s{sW}, 1\ns_mul_i32 s{sT+2}, s{sT+2}, 96\ns_add_u32 s{sT+1}, s{sT+1}, s{sT+2}')
    r.e(f's_lshl_b32 s{sT+1}, s{sT+1}, 2\ns_lshl_b32 s{sT+2}, s{sZ}, 1\ns_add_u32 s{sT+1}, s{sT+1}, s{sT+2}')
    vF1, vF2, vFV = t, t+1, t+2
    r.e(f'v_lshrrev_b32 v{q}, 1, v{vL}\nv_lshlrev_b32 v{q}, 7, v{q}\nv_and_b32 v{q+1}, 1, v{vL}\nv_add3_u32 v{q}, v{q}, v{q+1}, s{sT+1}')
    r.e(f'v_lshlrev_b32 v{vF1}, 7, v{q}\nv_add_u32 v{vF1}, {HF_OFF}, v{vF1}')
    r.e(f's_sub_u32 s{sTS1}, 32, s{sT1}\ns_and_b32 s{sTS1}, s{sTS1}, 31\ns_cmp_ge_u32 s{sC}, 4\ns_cselect_b32 s{sTS1}, s{sTS1}, s{sT1}')
    r.e(f'v_and_b32 v{q}, 7, v{vL}\nv_min_u32 v{q}, 4, v{q}\nv_lshlrev_b32 v{q+2}, 5, v{q}\nv_add_u32 v{q+3}, {6*32}, v{q+2}\nv_add_u32 v{q+2}, {3*32+16}, v{q+2}')
    r.e(f'v_cmp_gt_u32 vcc, 2, v{q}\nv_cndmask_b32 v{q}, v{q+2}, v{q+3}, vcc')
    r.e(f'v_and_b32 v{q+1}, 8, v{vL}\nv_bfe_u32 v{q+3}, v{vL}, 4, 1\nv_add3_u32 v{q}, v{q}, v{q+1}, v{q+3}')
    r.e(f's_lshl_b32 s{sT}, s{sW}, 3\ns_lshr_b32 s{sT+2}, s{sTS1}, 3\ns_add_u32 s{sT}, s{sT}, s{sT+2}\nv_lshl_add_u32 v{q}, v{q}, 2, s{sT}')
    r.e(f'v_lshlrev_b32 v{vF2}, 7, v{q}\nv_add_u32 v{vF2}, {F_OFF+4}, v{vF2}\nv_lshrrev_b32 v{q+1}, 4, v{vL}')
    vUO = [t+3+k for k in range(5)]
    r.e(f'v_and_b32 v{q}, 15, v{vL}\ns_mul_i32 s{sT}, s{sC}, 80\nv_and_b32 v{q+4}, 12, v{vL}\nv_add3_u32 v{q+4}, v{q+4}, v{q}, s{sT}\nv_add_u32 v{q}, s{sT}, v{q}')
    r.e(f's_movk_i32 s{sT+1}, 5120\nv_mul_u32_u24 v{q+1}, s{sT+1}, v{q+1}')
    r.e(f's_cmp_ge_u32 s{sC}, 4\ns_cselect_b32 s{sT}, -1, 0\ns_cselect_b32 s{sT+1}, 640, -1')
    for ct in range(5):
        if ct < 4: r.e(f'v_add_u32 v{q+2}, {32*(ct>>1)+4*(ct&1)}, v{q+4}')
        else: r.e(f'v_add_u32 v{q+2}, 64, v{q}')
        r.e(f'v_xor_b32 v{q+2}, s{sT}, v{q+2}\nv_add_u32 v{q+2}, s{sT+1}, v{q+2}\nv_sub_u32 v{q+5}, 478, v{q+2}')
        r.e(f'v_cmp_lt_i32 vcc, 159, v{q+2}\nv_cndmask_b32 v{q+5}, v{q+2}, v{q+5}, vcc')
        if ct == 0: r.e(f'v_cmp_eq_u32 vcc, 319, v{q+2}\nv_cndmask_b32 v{q+5}, v{q+5}, v{q+2}, vcc')
        r.e(f'v_lshl_add_u32 v{vUO[ct]}, v{q+5}, 4, v{q+1}')
        if ct == 0: r.e(f'v_mov_b32 v{q+3}, {OOB}\nv_cmp_gt_i32 vcc, 0, v{q+2}\nv_cndmask_b32 v{vUO[0]}, v{vUO[0]}, v{q+3}, vcc')
    r.e(f's_lshl_b32 s{sUo}, s{sTS1}, 4\ns_lshl_b32 s{sT}, s{sW}, 2\ns_add_u32 s{sUo}, s{sUo}, s{sT}\ns_mul_i32 s{sUo}, s{sUo}, 5120\ns_add_u32 s{sUo}, s{sUo}, {U_OFF}')
    vPW = [t+11, t+12, t+13]; vPR = 0
    for j in range(3):
        r.e(f's_add_u32 s{sT}, s{sW}, {1+j}\ns_and_b32 s{sT}, s{sT}, 3\ns_mul_i32 s{sT}, s{sT}, 15360\ns_add_u32 s{sT}, s{sT}, {RED + j*5120}\nv_add_u32 v{vPW[j]}, s{sT}, v{vL16}')
    r.e(f's_mul_i32 s{sT}, s{sW}, 15360\ns_add_u32 s{sT}, s{sT}, {RED}\nv_add_u32 v{vPR}, s{sT}, v{vL16}')
    r.ops.insert(len(r.ops) * opt('hfp' + ('S' if XV[0] else ''), 25 if XV[0] else 5) // 100, hflag)
    hl = f'buffer_load_dword v{vFV}, v{vF1}, {srd(SWS)}, 0 offen sc1'
    nl = max(0, len(later) - opt('nlast', 6))
    mm_ = merge(r.ops, later[:nl]); h_ = len(mm_) // 2
    run(a, mm_[:h_]); stamp(a, 's1'); run(a, mm_[h_:]); stamp(a, 's2')
    ini = [lambda a: a.wait(vm=r.tok['xb']), f's_mov_b32 s{sT}, 0x05040100\ns_mov_b32 s{sT+1}, 0x07060302']
    for ct in range(5):
        b = 16 + 60 + 4*ct
        for k in range(2):
            xs = xr + (4*(ct >> 1) + 2*(ct & 1) + k if ct < 4 else 8 + k); bs = xs - xr + br
            ini += L(f'v_perm_b32 v{b+2*k}, v{bs}, v{xs}, s{sT}\nv_perm_b32 v{b+2*k+1}, v{bs}, v{xs}, s{sT+1}')
    for k in range(20): ini.append(f'v_dot2_f32_bf16 v{76+k}, v{76+k}, s{sONES}, 0')
    a.e(f'v_mov_b32 v{vL}, v{vL16}'); st['vW'] = vL
    a.e('s_mov_b64 exec, 0x3ff')
    tk = a.vm(hl)
    a.e('s_mov_b64 exec, -1')
    run(a, merge(ini, later[nl:]))
    stamp(a, 6)
    a.wait(vm=tk)
    check_loop(a, hl, vFV, 10, sPC)
    stamp(a, 7)
    ht = {}
    def hload(slot, j):
        def op(a):
            vo = vHD[j] if slot == 13 else vHJ[j]
            ht[(slot, j)] = a.vm(f'buffer_load_dwordx4 {HF(pos[(slot, j)])}, v{vo}, {srd(SWS)}, s{sKO[slot] if RHO else sKO[slot & ~1]} offen offset:{0 if RHO else 2048*(slot & 1)} sc1')
        return op
    NE = opt('NE', 11)
    order = [(s_, j) for s_ in range(NE) for j in range(4)] + [(s_, j) for j in range(4) for s_ in range(NE, 14)]
    pos = {k: n for n, k in enumerate(order)}
    for j in range(4): hload(0, j)(a)
    NE = opt('NE', 11)
    order = [(s_, j) for s_ in range(NE) for j in range(4)] + [(s_, j) for j in range(4) for s_ in range(NE, 14)]
    pos = {k: n for n, k in enumerate(order)}
    hp = 4
    while hp < RING: hload(*order[hp])(a); hp += 1
    wq = list(st['inp2'])
    S = Sched(); f = {}; g = {}
    def group(s_, j):
        nonlocal hp
        n = pos[(s_, j)]
        for ct in range(5):
            pre = [lambda a: a.wait(vm=max(ht[(s_, j)], max(st['w2'][(s_, c_)] for c_ in range(5))))] if ct == 0 and not opt('nowait2', 0) else []
            c0 = '0' if (s_ == 0 and j < 3) else ACC2(ct, j)
            idx = S.add(f'v_mfma_f32_16x16x32_bf16 {ACC2(ct,j)}, {W2(s_,ct)}, {HF(n)}, {c0}', pre)
            if ct == 0: f[(s_, j)] = idx
        if hp < 56: S.put(idx, [hload(*order[hp])]); hp += 1
        if wq and n % opt('wev', 1) == 0: S.put(idx - 2, [wq.pop(0)])
    for s_ in range(NE):
        for j in range(4): group(s_, j)
    ul = f'buffer_load_dword v{vFV}, v{vF2}, {srd(SWS)}, 0 offen sc1'
    ku = opt('ku', NE - 4)
    S.put(f[(ku, 0)] + 1, [lambda a: (a.e('s_mov_b32 exec_hi, 0'), st.__setitem__('ul', a.vm(ul)), a.e('s_mov_b32 exec_hi, -1'))])
    S.put(f[(ku + 3, 0)] + 1, [lambda a: (a.wait(vm=st['ul']), check_loop(a, ul, vFV, 32, sPC))])
    fl = sorted(f.values())
    i3 = fl.index(f[(ku + 3, 1)])
    st['uput'] = True
    def ustep(j):
        for ct in range(5):
            pre = [lambda a: a.wait(vm=st['uf'])] if ct == 0 else []
            S.add(f'v_mfma_f32_16x16x32_bf16 {ACC2(ct,j)}, {UF(ct)}, a[{aTW+4*j}:{aTW+4*j+3}], {ACC2(ct,j)}', pre)
    def wr(j, at, step=1):
        for ct in range(5): S.put(at + step*ct, [f'ds_write_b128 v{vPW[j]}, {ACC2(ct,j)} offset:{ct*1024}'])
    for j in range(4):
        for s_ in range(NE, 14): group(s_, j)
        g[j] = f[(NE, j)]
        if j == 1: ustep(0)
        if j >= 1: ustep(j)
    wr(0, g[2] + 2, 2); wr(1, g[2] + 13, 2); wr(2, g[3] + 3)
    fl = sorted(f.values())
    for ct in range(5):
        S.put(fl[i3 + ct] + 1, [lambda a, ct=ct: st.__setitem__('uf', a.vm(f'buffer_load_dwordx4 {UF(ct)}, v{vUO[ct]}, {srd(SWS)}, s{sUo} offen sc1'))])
    PB = lambda jj, ct: 196 + 20*jj + 4*ct
    S.put(g[3] + 10, [lambda a: (a.wait(lg=a.lg_issued), a.e('s_barrier'))])
    rd = []
    for ct in range(5):
        for jj in range(3):
            rd.append(lambda a, jj=jj, ct=ct: st.__setitem__(('pr', ct), a.lg(f'ds_read_b128 v[{PB(jj,ct)}:{PB(jj,ct)+3}], v{vPR} offset:{jj*5120+ct*1024}')))
    S.spread(rd, g[3] + 11, g[3] + 18)
    nl = len(S.slots)
    sm = []
    for ct in range(5):
        sm.append(lambda a, ct=ct: a.wait(lg=st[('pr', ct)]))
        for k in range(4): sm.append(f'v_add_f32 v{PB(0,ct)+k}, v{PB(0,ct)+k}, v{PB(1,ct)+k}')
        for k in range(4): sm.append(f'v_add_f32 v{PB(0,ct)+k}, v{PB(0,ct)+k}, v{PB(2,ct)+k}')
    S.spread(sm, g[3] + 19, nl - 1)
    for s_ in range(NE): S.slots[f[(s_, 0)]]['pre'].insert(0, lambda a, s_=s_: stamp(a, f'e{s_}'))
    for j in range(4): S.slots[g[j]]['pre'].insert(0, lambda a, j=j: stamp(a, f'l{j}'))
    S.emit(a)
    stamp(a, 8)
    o = 96
    for ct in range(5):
        b = 76 + 4*ct
        for k in range(4): a.e(f'v_add_f32 v{b+k}, v{b+k}, v{PB(0,ct)+k}')
        a.e(cvtpk(o+2*ct, b, b+1)); a.e(cvtpk(o+2*ct+1, b+2, b+3))
        ost = opt('ost', '')
        if ct == 1: a.vm(f'buffer_store_dwordx4 v[{o}:{o+3}], v{vG4}, {srd(SOUT)}, s{sGO} offen {ost}')
        if ct == 3: a.vm(f'buffer_store_dwordx4 v[{o+4}:{o+7}], v{vG4}, {srd(SOUT)}, s{sGO} offen offset:64 {ost}')
        if ct == 4: a.vm(f'buffer_store_dwordx2 v[{o+8}:{o+9}], v{vG2}, {srd(SOUT)}, s{sGO} offen offset:128 {ost}')
    if DBG == 3:
        a.wait_all()
        le = label('dbgskip')
        a.e(f's_memrealtime s[{sT+1}:{sT+2}]\ns_waitcnt lgkmcnt(0)')
        a.e(f's_cmp_lg_u32 s{sW}, 0\ns_cbranch_scc1 {le}')
        a.e(f's_cmp_eq_u32 s2, {opt("wgA", 8)}\ns_cselect_b32 s{sT}, 4, 0\ns_cmp_eq_u32 s2, {opt("wgB", 232)}\ns_cselect_b32 s{sT}, 32, s{sT}\ns_cmp_eq_u32 s{sT}, 0\ns_cbranch_scc1 {le}')
        for k in range(1, 7): a.e(f's_sub_u32 s{sT+3}, s{sTS+2*k}, s{sTS}\nv_mov_b32 v{15+k}, s{sT+3}')
        a.e(f's_sub_u32 s{sT+3}, s{sT+1}, s{sTS}\nv_mov_b32 v22, s{sT+3}\nv_mov_b32 v2, s{sT}\ns_mov_b64 exec, 1')
        a.e(f'global_store_dwordx4 v2, v[16:19], s[{sDBG}:{sDBG+1}]\nglobal_store_dwordx3 v2, v[20:22], s[{sDBG}:{sDBG+1}] offset:16')
        a.e(f'{le}:')
    elif DBG:
        a.wait_all()
        a.e(f'{"s_memtime" if DBG == 2 else "s_memrealtime"} s[{sT+1}:{sT+2}]\ns_waitcnt lgkmcnt(0)')
        for k in range(9): a.e(f'v_mov_b32 v{16+k}, s{sTS+2*k}')
        a.e(f'v_mov_b32 v25, s{sT+1}\nv_mov_b32 v26, 0\nv_mov_b32 v27, 0')
        a.e(f's_lshl_b32 s{sT}, s2, 2\ns_add_u32 s{sT}, s{sT}, s{sW}\ns_lshl_b32 s{sT}, s{sT}, 6\ns_add_u32 s{sT}, s{sT}, {TS_OFF}')
        a.e(f'v_mov_b32 v2, 0\ns_mov_b64 exec, 1')
        for k in range(3): a.e(f'buffer_store_dwordx4 v[{16+4*k}:{19+4*k}], v2, {srd(SWS)}, s{sT} offen offset:{16*k}')
    a.e('s_endpgm')

def build():
    a = Asm(); prologue(a)
    outs = [a]
    for nG in (4, 2):
        b = a.fork()
        if nG == 2: b.e('L_S:')
        build_type(b, T(nG)); outs.append(b)
    lines = []
    for o in outs: lines += o.finish()
    return lines + SLOW

hdr = open('cdna_kernels/%s.s.ref' % NAME).read().split('; Override launch')[0]
lines = build()
with open(sys.argv[1], 'w') as f:
    f.write(hdr)
    f.write(f'; @launch grid=(256,1,1) block=(256,1,1) lds={LDS_BYTES}\n')
    f.write('.amdgcn_target "amdgcn-amd-amdhsa--gfx950"\n.text\n')
    f.write(f'.globl {NAME}_kernel\n.p2align 8\n.type {NAME}_kernel,@function\n{NAME}_kernel:\n')
    for l in lines: f.write(('' if l.endswith(':') else '    ') + l + '\n')
    f.write('L_end:\n    s_endpgm\n')
    f.write('.p2align 8\n.type L_ftab,@object\nL_ftab:\n')
    tb = F_table()
    for i in range(0, len(tb), 8): f.write('.long ' + ', '.join('0x%08x' % x for x in tb[i:i+8]) + '\n')
    f.write('.fill 8192, 4, 0\n')
    f.write(f'''.section .rodata,"a"
.p2align 6
.amdhsa_kernel {NAME}_kernel
  .amdhsa_next_free_vgpr 512
  .amdhsa_next_free_sgpr 102
  .amdhsa_accum_offset 256
  .amdhsa_group_segment_fixed_size 0
  .amdhsa_kernarg_size 104
  .amdhsa_user_sgpr_count 2
  .amdhsa_user_sgpr_kernarg_segment_ptr 1
  .amdhsa_system_sgpr_workgroup_id_x 1
.end_amdhsa_kernel
''')
print('instructions:', len(lines))
```

```python
import sys, struct, copy, os
from asmlib import Asm
NAME = 'parallel_sum__spectral_fnet__dense_activation_squared_relu__prompt'
DBG = int(sys.argv[2]) if len(sys.argv) > 2 else 0
OPT = dict(kv.split('=') for kv in sys.argv[3:])
def opt(k, d): return type(d)(OPT.get(k, d))

H_OFF = 0; U_OFF = 0x6C0000; P_OFF = 0x940000; ST_OFF = 0xB5C000; F_OFF = 0xB68000; TS_OFF = 0xB88000; PF_OFF = 0xBA0000; HF_OFF = 0xBB0000; WS_END = 0xBD0000
OOB = 0x40000000
ARING = 0; BBASE = 65536; AUX = 131072; TAB = 161792; TABC = TAB; TABB = TAB + 512; TABR = TAB + 1024; TABA = TAB + 1536
XCH = 0
RED_PITCH = 336; RED_WAVE = 64 * RED_PITCH
LDS_BYTES = 163840
SX, SW1, SW2, SWS, SOUT = 4, 8, 12, 16, 20
sB1, sB2, sDBG = 24, 26, 28
sW, sZ, sRB, sC8, sROW, sG0 = 30, 31, 32, 33, 34, 35
sA, sA2, sBo, sMA, sMB = 36, 37, 38, 39, 40
sT1, sC, sTAG, sONES = 41, 42, 43, 44
sT = 45
sH = [53, 54, 55, 56]; sFL = 57; sDT = 58; sAUXo = 59; sAUXs = 60; sTAU = 61; sW2o = 62; sH0 = 63; sH1 = 64; sUo = 65
sCW = 61+0*0 if False else 83; sGO = 82; sTS1 = 66; sPC = 51; sUS = 70; sE = 71
sAUXm = 3; sHB = [78, 79, 80, 81]
sRHO = 75; sWE = 76; sW4 = 77; sXCC = 66; sLOC = 67; sFH = 68
sKO = [36, 37, 38, 39, 40, 53, 54, 55, 56, 58, 59, 60, 63, 64]
sTS = 84
def srd(b): return f's[{b}:{b+3}]'
def fhex(x): return '0x%08x' % struct.unpack('<I', struct.pack('<f', x))[0]
XV = [False]
def X(ks): return f'v[{196+4*(ks%8)}:{199+4*(ks%8)}]' if XV[0] else f'a[{4*(ks%8)}:{4*(ks%8)+3}]'
def ACC1(i): return f'v[{32+16*i}:{47+16*i}]'
def WB(b, i, h=None):
    base = 96 + 16*b + 4*i if i < 4 else 184 + 4*b
    return f'v[{base}:{base+3}]' if h is None else f'v[{base+2*h}:{base+2*h+1}]'
aTW = 160; aF0 = 176; aSEL = 'a[192:195]'; aCS = 'a[196:199]'
def aF(k): return f'a[{aF0+4*k}:{aF0+4*k+3}]' if k < 4 else f'a[{152+4*(k-4)}:{155+4*(k-4)}]'
vL = 1
vOA = [2, 3]; vOB = [4, 5, 6, 7]; vAR = [8, 9, 10, 11]; vBR = [12, 13, 14, 15]
vT = 16
vST = 24
vNM, vSDV, vAL, vR = 24, 25, 26, 28
vNON = 28; vPF = 29; vHO = 30; vL16 = 31
vAUX = 160
def W2(slot, ct):
    if slot < 3: k, b = 'v', 196 + 20*slot + 4*ct
    elif slot < 5: k, b = 'a', 200 + 20*(slot-3) + 4*ct
    elif slot < 11: k, b = 'a', 32 + 20*(slot-5) + 4*ct
    elif slot == 11: k, b = 'a', (240 + 4*ct if ct < 4 else 152)
    elif slot == 12: k, b = 'a', (4*ct if ct < 4 else 156)
    else: k, b = 'a', (16 + 4*ct if ct < 4 else 196)
    return f'{k}[{b}:{b+3}]'
def UF(ct): return f'a[{176+4*ct}:{179+4*ct}]'
def ACC2(ct, rt): b = 16 + 20*rt + 4*ct; return f'v[{b}:{b+3}]'
RHO = opt('rho', 0)
RING = opt('ring', 10)
def HF(n): b = 96 + 4*(n % RING); return f'v[{b}:{b+3}]'

TSL = OPT.get('ts', '0,1,2,3,4,5,6,7,8').split(',')
def stamp(a, name):
    if str(name) not in TSL: return
    idx = TSL.index(str(name))
    if DBG: a.e(f'{"s_memtime" if DBG == 2 else "s_memrealtime"} s[{sTS+2*idx}:{sTS+2*idx+1}]')
def cvtpk(d, x, y): return f'v_cvt_pk_bf16_f32 v{d}, v{x}, v{y}'
uid = [0]
def label(p):
    uid[0] += 1; return f'L_{p}{uid[0]}'

class Sched:
    def __init__(self): self.slots = []
    def add(self, main, pre=()):
        self.slots.append({'pre': list(pre), 'main': main, 'fill': []}); return len(self.slots) - 1
    def put(self, idx, ops): self.slots[idx]['fill'] += list(ops)
    def spread(self, ops, first, last):
        ops = list(ops); n = last - first + 1
        for k, op in enumerate(ops):
            self.slots[first + min(n - 1, k * n // len(ops))]['fill'].append(op)
    def pack(self, ops, first, per):
        i = first
        for op in ops:
            while i < len(self.slots) - 1 and len(self.slots[i]['fill']) >= per: i += 1
            self.slots[i]['fill'].append(op)
        return i
    def emit(self, a, lo=0, hi=None):
        for s in self.slots[lo:hi]:
            for op in s['pre'] + [s['main']] + s['fill']:
                if op is None: continue
                if callable(op): op(a)
                else: a.e(op)
def L(text): return [t for t in text.split('\n') if t.strip()]

def mk_srd(b, lo, n):
    return f's_mov_b32 s{b}, s{lo}\ns_and_b32 s{b+1}, s{lo+1}, 0xffff\ns_mov_b32 s{b+2}, {n}\ns_mov_b32 s{b+3}, 0x20000'

def prologue(a):
    a.e('s_cmp_ge_u32 s2, 256\ns_cbranch_scc1 L_end')
    stamp(a, 0)
    a.e('s_load_dwordx2 s[66:67], s[0:1], 0')
    a.e('s_load_dwordx8 s[68:75], s[0:1], 48')
    a.e('s_load_dwordx4 s[76:79], s[0:1], 80')
    a.e('s_load_dwordx2 s[80:81], s[0:1], 96')
    a.e('s_getpc_b64 s[82:83]\nL_pc:')
    a.e('s_bfe_u32 s3, s2, 0x10003\ns_lshl_b32 s3, s3, 15\nv_lshl_add_u32 v2, v0, 7, s3')
    a.vm(f'global_load_dword v{vPF}, v2, s[82:83]')
    a.e('s_add_u32 s82, s82, L_ftab-L_pc\ns_addc_u32 s83, s83, 0')
    a.e(f'v_lshrrev_b32 v4, 6, v0\nv_and_b32 v{vL}, 63, v0\nv_readfirstlane_b32 s{sW}, v4')
    a.e(f's_bfe_u32 s{sZ}, s2, 0x10004')
    a.e(f's_and_b32 s{sT}, s2, 7\ns_bfe_u32 s{sT+1}, s2, 0x10003\ns_lshl_b32 s{sT}, s{sT}, 1')
    a.e(f's_add_u32 s{sRB}, s{sT}, s{sT+1}\ns_lshr_b32 s{sC8}, s2, 5')
    a.e(f's_sub_u32 s{sT+2}, 32, s{sRB}\ns_cmp_eq_u32 s{sRB}, 0\ns_cselect_b32 s{sT+2}, 16, s{sT+2}')
    a.e(f's_bitcmp1_b32 s{sW}, 1\ns_cselect_b32 s{sROW}, s{sT+2}, s{sRB}')
    a.e(f's_and_b32 s{sT+3}, s{sW}, 1\ns_lshl_b32 s{sT+3}, s{sT+3}, 5\ns_add_u32 s{sROW}, s{sROW}, s{sT+3}')
    a.e(f's_mov_b32 s{sAUXm}, s{sT+2}')
    a.e(f'v_lshrrev_b32 v{vT}, 3, v{vL}\nv_lshrrev_b32 v{vT+1}, 4, v{vL}\nv_and_b32 v{vT+2}, 7, v{vL}')
    a.e(f'v_xor_b32 v{vT+3}, v{vT+2}, v{vT+1}\ns_mov_b32 s{sT+4}, 81920\nv_mul_lo_u32 v{vT+4}, s{sT+4}, v{vT}')
    a.e(f'v_lshl_add_u32 v{vOA[0]}, v{vT+3}, 4, v{vT+4}\nv_xor_b32 v{vT+3}, 4, v{vT+3}')
    a.e(f'v_lshl_add_u32 v{vOA[1]}, v{vT+3}, 4, v{vT+4}\nv_add_u32 v{vOA[1]}, {8*81920-1024}, v{vOA[1]}')
    a.e(f's_mul_i32 s{sA}, s{sROW}, 1280\ns_add_u32 s{sA2}, s{sA}, {16*81920-2048}\ns_lshl_b32 s{sMA}, s{sW}, 12')
    a.e(f's_sub_u32 s{sT+5}, 6, s{sZ}\ns_cmp_ge_u32 s{sC8}, s{sT+5}\ns_cbranch_scc1 L_S')

class T:
    def __init__(self, nG):
        self.nG = nG; self.nD = 0 if nG == 4 else 2
        self.bslot = 4096 * nG
        self.pitch = 64 * nG
        self.DREG = 131072 if nG == 4 else 98304
        self.nb = nG

def prologue_t(a, t, st):
    if t.nG == 4:
        a.e(f's_mul_i32 s{sG0}, s{sZ}, 28\ns_lshl_b32 s{sT}, s{sC8}, 2\ns_add_u32 s{sG0}, s{sG0}, s{sT}')
        a.e(f'v_and_b32 v{vT+2}, 15, v{vL}\nv_lshlrev_b32 v{vT+3}, 2, v{vT+1}\nv_xor_b32 v{vT+2}, v{vT+2}, v{vT+3}')
        a.e(f's_movk_i32 s{sT+6}, 3456\nv_mul_u32_u24 v{vT+3}, s{sT+6}, v{vT+1}\nv_lshl_add_u32 v{vOB[0]}, v{vT+2}, 4, v{vT+3}')
        for i in range(1, 4): a.e(f'v_add_u32 v{vOB[i]}, {i*(4*3456-1024)}, v{vOB[0]}')
    else:
        a.e(f's_mul_i32 s{sG0}, s{sZ}, 26\ns_lshl_b32 s{sT}, s{sC8}, 1\ns_add_u32 s{sG0}, s{sG0}, s{sT}\ns_add_u32 s{sG0}, s{sG0}, 12')
        a.e(f's_mul_i32 s{sDT}, s{sZ}, 6\ns_add_u32 s{sDT}, s{sDT}, s{sT}\ns_sub_u32 s{sDT}, s{sDT}, 12')
        a.e(f'v_and_b32 v{vT+3}, 1, v{vT+1}\nv_lshlrev_b32 v{vT+3}, 2, v{vT+3}\nv_xor_b32 v{vT+2}, v{vT+2}, v{vT+3}')
        a.e(f's_movk_i32 s{sT+6}, 3456\nv_mul_u32_u24 v{vT+3}, s{sT+6}, v{vT}\nv_lshl_add_u32 v{vOB[0]}, v{vT+2}, 4, v{vT+3}')
        a.e(f'v_add_u32 v{vOB[1]}, {8*3456-1024}, v{vOB[0]}')
    a.e(f's_lshl_b32 s{sBo}, s{sG0}, 6\ns_mul_i32 s{sT}, s{sW}, {16*3456}\ns_add_u32 s{sBo}, s{sBo}, s{sT}')
    a.e(f's_mul_i32 s{sMB}, s{sW}, {1024*t.nb}\ns_add_u32 s{sMB}, s{sMB}, {BBASE}')
    a.e(f's_lshl_b32 s{sT+1}, s{sG0}, 6\nv_and_b32 v{vT+6}, {16*t.nG-1}, v{vL}\nv_lshl_add_u32 v{vT+6}, v{vT+6}, 2, s{sT+1}')
    if t.nG == 4: run(a, roll_setup(t, opt('rn', 3)))
    stamp(a, 'p0')
    a.e('s_waitcnt lgkmcnt(0)')
    stamp(a, 'p1')

    a.vm(f'global_load_dword v{vT+7}, v{vT+6}, s[70:71]')
    a.e(f'v_bfe_u32 v{vT+5}, v{vL}, 0, 3\nv_mul_u32_u24 v{vT+5}, 0xa0, v{vT+5}')
    a.vm(f'global_load_dword v{vPF}, v{vT+5}, s[74:75]')
    a.e(mk_srd(SX, 66, 2048*1280)); a.e(mk_srd(SW1, 68, 640*3456))

def dma_ops(t, c, st):
    slot = c % 4
    ops = [f's_add_u32 m0, s{sMA}, {ARING + slot*16384}',
           f'buffer_load_dwordx4 v{vOA[0]}, {srd(SX)}, s{sA} offen {opt("ntx", "")} lds',
           f'buffer_load_dwordx4 v{vOA[1]}, {srd(SX)}, s{sA} offen offset:1024 {opt("ntx", "")} lds',
           f'buffer_load_dwordx4 v{vOA[0]}, {srd(SX)}, s{sA2} offen offset:2048 {opt("ntx", "")} lds',
           f'buffer_load_dwordx4 v{vOA[1]}, {srd(SX)}, s{sA2} offen offset:3072 {opt("ntx", "")} lds',
           f's_add_u32 m0, s{sMB}, {slot*t.bslot}\ns_add_u32 s{sA}, s{sA}, 128\ns_add_u32 s{sA2}, s{sA2}, 128']
    for i in range(t.nb):
        ops.append(f'buffer_load_dwordx4 v{vOB[i]}, {srd(SW1)}, s{sBo} offen offset:{1024*i} {opt("ntw", "")} lds')
    def last(a):
        st['dma'][c] = a.vm_issued
        a.e(f's_add_u32 s{sBo}, s{sBo}, {64*3456}')
    ops.append(last)
    return ops
def run(a, ops):
    for op in ops:
        if callable(op): op(a)
        else: a.e(op)

vAO = 128
vPK = 140; vSD = 160
sPo = 58; sPs = 62; sPf = 64; sSo = 60; sSs = 65
def aux_setup(a):
    q = 184
    a.e(f's_mul_i32 s{sT}, s{sZ}, 6\ns_add_u32 s{sT}, s{sT}, s{sC8}\ns_lshl_b32 s{sT}, s{sT}, 2\ns_add_u32 s{sT}, s{sT}, s{sW}')
    a.e(f's_mul_i32 s{sT+1}, s{sRB}, 27\ns_add_u32 s{sT+1}, s{sT+1}, s{sT}')
    a.e(f's_lshr_b32 s{sT+2}, s{sT+1}, 3\ns_and_b32 s{sT+3}, s{sT+1}, 7\ns_mul_i32 s{sPo}, s{sT+2}, 40960\ns_mul_i32 s{sT+5}, s{sT+3}, 160\ns_add_u32 s{sPo}, s{sPo}, s{sT+5}')
    a.e(f's_mul_i32 s{sPs}, s{sT+3}, 54\ns_add_u32 s{sPs}, s{sPs}, s{sT+2}\ns_mul_i32 s{sPs}, s{sPs}, 5120\ns_add_u32 s{sPs}, s{sPs}, {P_OFF}')
    a.e(f's_lshl_b32 s{sPf}, s{sT+1}, 7\ns_add_u32 s{sPf}, s{sPf}, {PF_OFF}')
    a.e(f's_cmp_lt_u32 s{sT}, 27\ns_cselect_b32 s{sT+4}, 0, {OOB}\ns_cselect_b32 s{sPo}, s{sPo}, 0')
    for i in range(5):
        a.e(f'v_add_u32 v{q}, {64*i}, v{vL}\nv_mul_u32_u24 v{q+1}, 0x667, v{q}\nv_lshrrev_b32 v{q+1}, 14, v{q+1}\nv_mul_u32_u24 v{q+1}, 0x460, v{q+1}')
        if i == 0: a.e(f'v_lshl_add_u32 v{vAO+9}, v{vL}, 4, s{sT+4}')
        a.e(f'v_add_u32 v{vAO+i}, v{vAO+9}, v{q+1}')
    a.e(f'v_add_u32 v{vAO+4}, 0x1000, v{vAO+4}')
    a.e(f's_sub_u32 s{sT}, s{sT}, 12\ns_cmp_lt_u32 s{sT}, 32\ns_cselect_b32 s{sT+4}, 0, {OOB}\ns_cselect_b32 s{sT}, s{sT}, 0')
    a.e(f's_bitcmp1_b32 s{sT}, 4\ns_cselect_b32 s{sT+2}, s{sAUXm}, s{sRB}')
    a.e(f's_bfe_u32 s{sT+3}, s{sT}, 0x10003\ns_lshl_b32 s{sT+3}, s{sT+3}, 5\ns_add_u32 s{sT+2}, s{sT+2}, s{sT+3}\ns_and_b32 s{sT+3}, s{sT}, 7\ns_lshl_b32 s{sT+3}, s{sT+3}, 8\ns_add_u32 s{sT+2}, s{sT+2}, s{sT+3}\ns_mul_i32 s{sSo}, s{sT+2}, 1280')
    a.e(f's_lshl_b32 s{sT+2}, s{sRB}, 5\ns_add_u32 s{sT+2}, s{sT+2}, s{sT}\ns_lshl_b32 s{sSs}, s{sT+2}, 6\ns_add_u32 s{sSs}, s{sSs}, {ST_OFF}')
    a.e(f'v_lshrrev_b32 v{q}, 4, v{vL}\ns_mov_b32 s{sT+5}, 81920\nv_mul_lo_u32 v{q+1}, s{sT+5}, v{q}\nv_and_b32 v{q+2}, 15, v{vL}\nv_lshlrev_b32 v{q+2}, 4, v{q+2}\nv_add3_u32 v{vAO+7}, v{q+2}, v{q+1}, s{sT+4}')
    a.e(f'v_lshl_add_u32 v{vAO+8}, v{q}, 4, s{sT+4}')
    a.e(f's_mul_i32 s{sAUXm}, s{sW}, 5120\ns_add_u32 s{sAUXm}, s{sAUXm}, {AUX}')
def aux_setup2(a):
    q = 184
    a.e(f'v_lshrrev_b32 v{q}, 5, v{vL}\nv_lshlrev_b32 v{q}, 4, v{q}\nv_bfe_u32 v{q+1}, v{vL}, 4, 1\nv_lshl_add_u32 v{q}, v{q+1}, 2, v{q}')
    a.e(f'v_bfe_u32 v{q+1}, v{vL}, 2, 2\nv_add_u32 v{q}, v{q}, v{q+1}\nv_mul_u32_u24 v{q}, 160, v{q}\nv_add_u32 v{q}, s{sAUXm}, v{q}')
    a.e(f'v_and_b32 v{q+1}, 3, v{vL}\nv_lshl_add_u32 v{vAO+5}, v{q+1}, 4, v{q}\nv_lshl_add_u32 v{vAO+6}, v{q+1}, 3, v{q}')

def unc_vm(text):
    def op(a): a.e(text); a.vm_issued -= 1
    return op
def unc_lg(text):
    def op(a): a.e(text); a.lg_issued -= 1
    return op
def pack_dma(st):
    o = []
    for i in range(5):
        def op(a, i=i):
            if i in (0, 4): a.e(f's_add_u32 m0, s{sAUXm}, {4096 if i else 0}')
            st['pk'] = a.vm(f'buffer_load_dwordx4 v{vAO+i}, {srd(SW2)}, s{sPo} offen offset:{(1024*i)%4096} {opt("ntp", "")} lds')
        o.append(op)
    return o
def pack_reads(st):
    o = [lambda a: a.wait(vm=st['pk'])]
    for ct in range(5):
        for h in range(2):
            t = (f'ds_read_b64_tr_b16 v[{vPK+4*ct+2*h}:{vPK+4*ct+2*h+1}], v{vAO+5} offset:{(ct>>1)*64+(ct&1)*8+h*1280}' if ct < 4 else
                 f'ds_read_b64_tr_b16 v[{vPK+4*ct+2*h}:{vPK+4*ct+2*h+1}], v{vAO+6} offset:{128+h*1280}')
            o.append(lambda a, t=t, ct=ct: st.__setitem__(('pr', ct), a.lg(t)))
    return o
def pack_stores(st):
    o = []
    for ct in range(5):
        def op(a, ct=ct):
            a.wait(lg=st[('pr', ct)])
            if ct == 4: a.e(f's_add_u32 s{sPs}, s{sPs}, 4096')
            st['ps'] = a.vm(f'buffer_store_dwordx4 v[{vPK+4*ct}:{vPK+4*ct+3}], v{vAO+9}, {srd(SWS)}, s{sPs} offen offset:{(1024*ct)%4096} sc1')
        o.append(op)
    return o
def aux_publish(st):
    g = 186
    def op(a):
        a.e(f'v_mov_b32 v{g+3}, s{sTAG}\ns_mov_b32 exec_lo, 0x00010001\ns_mov_b32 exec_hi, 0x00010001')
        a.vm(f'buffer_store_dwordx4 v[{g}:{g+3}], v{vAO+8}, {srd(SWS)}, s{sSs} offen sc1')
        a.wait(vm=st['ps'])
        a.e('s_mov_b64 exec, 1')
        a.vm(f'buffer_store_dword v{g+3}, v{vAO+9}, {srd(SWS)}, s{sPf} offen sc1')
        a.e('s_mov_b64 exec, -1'); stamp(a, 'pf')
    return op
def stats_loads(st):
    return [lambda a, i=i: st.__setitem__('sl', a.vm(f'buffer_load_dwordx4 v[{vSD+4*i}:{vSD+4*i+3}], v{vAO+7}, {srd(SX)}, s{sSo} offen offset:{256*i}')) for i in range(5)]
def stats_proc(st):
    q = 180; g = 186; d = vSD
    o = [lambda a: a.wait(vm=st['sl']), f's_mov_b32 s{sT}, 0xbf803f80']
    o += [f'v_mov_b32 v{q+k}, 0' for k in range(3)]
    o += [f'v_dot2c_f32_bf16 v{q}, s{sONES}, v{d+r}\nv_dot2c_f32_bf16 v{q+1}, v{d+r}, v{d+r}\nv_dot2c_f32_bf16 v{q+2}, s{sT}, v{d+r}' for r in range(20)]
    for sh in (8, 4, 2, 1):
        o += [f'v_add_f32_dpp v{q+k}, v{q+k}, v{q+k} row_ror:{sh} row_mask:0xf bank_mask:0xf' for k in range(3)]
    o += L(f'v_mul_f32 v{q}, {fhex(1/640)}, v{q}\nv_mul_f32 v{q+1}, {fhex(1/640)}, v{q+1}')
    o += L(f'v_fma_f32 v{q+1}, -v{q}, v{q}, v{q+1}\nv_max_f32 v{q+1}, 0, v{q+1}\nv_add_f32 v{q+1}, {fhex(1e-5)}, v{q+1}')
    o += L(f'v_rsq_f32 v{q+3}, v{q+1}\nv_sqrt_f32 v{g+1}, v{q+1}\nv_sub_f32 v{g}, 0, v{q}\nv_mul_f32 v{g+2}, v{q+2}, v{q+3}')
    return o

def nonce_pub(a):
    if opt('wsb', 0): a.e(f's_add_u32 s80, s80, {opt("wsb", 0) << 20}\ns_addc_u32 s81, s81, 0')
    a.e(mk_srd(SWS, 80, WS_END)); a.e(mk_srd(SOUT, 76, 2048*1280))
    a.e(f's_mov_b64 s[{sB1}:{sB1+1}], s[70:71]\ns_mov_b64 s[{sB2}:{sB2+1}], s[74:75]\ns_mov_b64 s[{sDBG}:{sDBG+1}], s[78:79]')
    ln = label('non')
    a.e(f's_or_b32 s{sT}, s2, s{sW}\ns_cmp_lg_u32 s{sT}, 0\ns_cbranch_scc1 {ln}')
    a.e(f's_memrealtime s[{sT+1}:{sT+2}]\ns_waitcnt lgkmcnt(0)\ns_or_b32 s{sT}, s{sT+1}, 1')
    a.e(f'v_mov_b32 v{vT}, 0\nv_mov_b32 v{vT+1}, s{sT}')
    a.e(f'global_store_dword v{vT}, v{vT+1}, s[{sDBG}:{sDBG+1}] sc1'); a.vm_issued -= 1
    a.e(f'{ln}:')

def setup2(a, t):
    a.e(f's_mov_b32 s{sONES}, 0x3f803f80')
    a.e(f's_sub_u32 s{sT+2}, 32, s{sRB}\ns_cmp_eq_u32 s{sRB}, 0\ns_cselect_b32 s{sT+2}, 16, s{sT+2}')
    a.e(f's_cmp_eq_u32 s{sZ}, 1\ns_cselect_b32 s{sT1}, s{sT+2}, s{sRB}\ns_mov_b32 s{sC}, s{sC8}')
    a.e(f's_mul_i32 s{sTAU}, s{sW}, 14\ns_cmp_eq_u32 s{sW}, 3\ns_cselect_b32 s{sTAU}, 41, s{sTAU}')
    a.e(f'v_and_b32 v{vT}, 31, v{vL}\nv_lshrrev_b32 v{vT+1}, 5, v{vL}')
    a.e(f'v_bfe_u32 v{vT+2}, v{vL}, 1, 3\nv_xor_b32 v{vT+2}, v{vT+2}, v{vT+1}')
    a.e(f'v_lshlrev_b32 v{vT+3}, 7, v{vT}\nv_add_u32 v{vT+3}, s{sMA}, v{vT+3}\nv_lshl_add_u32 v{vAR[0]}, v{vT+2}, 4, v{vT+3}')
    for s in range(1, 4): a.e(f'v_xor_b32 v{vAR[s]}, {s<<5}, v{vAR[0]}')
    a.e(f'v_bfe_u32 v{vT+4}, v{vL}, 2, 2\nv_lshl_add_u32 v{vT+2}, v{vT+1}, 3, v{vT+4}\nv_mul_u32_u24 v{vT+2}, {t.pitch}, v{vT+2}')
    a.e(f'v_bfe_u32 v{vT+3}, v{vL}, 4, 1\nv_lshl_add_u32 v{vT+2}, v{vT+3}, 5, v{vT+2}')
    a.e(f'v_and_b32 v{vT+3}, 3, v{vL}\nv_lshl_add_u32 v{vT+2}, v{vT+3}, 3, v{vT+2}\nv_add_u32 v{vT+2}, {BBASE}, v{vT+2}')
    if t.nG == 2: a.e(f'v_lshrrev_b32 v{vT+4}, 1, v{vT+4}')
    for i in range(t.nG):
        a.e(f's_add_u32 s{sT}, s{sW}, {i}\ns_and_b32 s{sT}, s{sT}, {t.nG-1}')
        a.e(f'v_xor_b32 v{vT+3}, s{sT}, v{vT+4}\nv_lshl_add_u32 v{vBR[i]}, v{vT+3}, 6, v{vT+2}')
        a.e(f's_mul_i32 s{sH[i]}, s{sROW}, 54\ns_add_u32 s{sH[i]}, s{sH[i]}, s{sG0}\ns_add_u32 s{sH[i]}, s{sH[i]}, s{sT}\ns_lshl_b32 s{sH[i]}, s{sH[i]}, 11')
    a.e(f's_lshl_b32 s{sFL}, s2, 2\ns_add_u32 s{sFL}, s{sFL}, s{sW}\ns_lshl_b32 s{sFL}, s{sFL}, 7\ns_add_u32 s{sFL}, s{sFL}, {F_OFF}')
    a.e(f'v_and_b32 v{vT}, 15, v{vL}\nv_bfe_u32 v{vT+1}, v{vL}, 4, 1\nv_mov_b32 v{vT+2}, s{sONES}\nv_cmp_eq_u32 vcc, v{vT}, v{vT+1}\nv_cndmask_b32 v{vT+2}, 0, v{vT+2}, vcc')
    for k in range(4): a.e(f'v_accvgpr_write_b32 a{192+k}, v{vT+2}')
    a.e(f'v_lshlrev_b32 v{vL16}, 4, v{vL}')
    a.e(f'v_lshlrev_b32 v{vHO}, 10, v{vT+1}\nv_lshrrev_b32 v{vT+1}, 5, v{vL}\nv_lshl_add_u32 v{vHO}, v{vT+1}, 8, v{vHO}\nv_lshl_add_u32 v{vHO}, v{vT}, 4, v{vHO}')

vSG = 244
def gen_D(a, t, tmp):
    q = tmp
    a.e(f'v_and_b32 v{q}, 31, v{vL}\nv_lshrrev_b32 v{q+1}, 5, v{vL}\nv_lshlrev_b32 v{q+1}, 3, v{q+1}\nv_and_b32 v{q+3}, 1, v{vL}')
    a.e(f'v_cmp_eq_u32 vcc, 0, v{q+3}\nv_cndmask_b32 v{q+2}, 0, 0.5, vcc\nv_cndmask_b32 v{vSG}, 1.0, -1.0, vcc')
    a.e(f's_mul_i32 s{sT+1}, s{sW}, {5*2048}\ns_add_u32 s{sT+1}, s{sT+1}, {t.DREG}\nv_add_u32 v{q+3}, s{sT+1}, v{vL16}')
    a.e(f's_lshl_b32 s{sT}, s{sDT}, 4\ns_add_u32 s{sT}, s{sT}, 1\nv_add_u32 v{q+4}, s{sT}, v{q}\nv_cvt_f32_u32 v{q+4}, v{q+4}\nv_mul_f32 v{q+4}, {fhex(1/640)}, v{q+4}')
    for k5 in range(5):
        a.e(f's_mul_i32 s{sT}, s{sW}, 5\ns_add_u32 s{sT}, s{sT}, {k5}\ns_and_b32 s{sT+2}, s{sT}, 1\ns_lshr_b32 s{sT}, s{sT}, 1\ns_lshl_b32 s{sT}, s{sT}, 5\ns_add_u32 s{sT}, s{sT}, s{sT+2}')
        o = q + 8
        a.e(f'v_add_u32 v{q+6}, s{sT}, v{q+1}\nv_cvt_f32_u32 v{q+6}, v{q+6}\nv_fma_f32 v{o}, v{q+6}, v{q+4}, v{q+2}')
        for i in range(1, 8): a.e(f'v_fmamk_f32 v{o+i}, v{q+4}, {fhex(float(16*(i>>2) + 2*(i&3)))}, v{o}')
        for i in range(8): a.e(f'v_cos_f32 v{o+8+i}, v{o+i}\nv_sin_f32 v{o+i}, v{o+i}')
        for ip in range(4): a.e(cvtpk(o+8+ip, o+8+2*ip, o+9+2*ip))
        a.lg(f'ds_write_b128 v{q+3}, v[{o+8}:{o+11}] offset:{(k5*2)*1024}')
        for ip in range(4): a.e(cvtpk(o+16+ip, o+2*ip, o+1+2*ip))
        a.lg(f'ds_write_b128 v{q+3}, v[{o+16}:{o+19}] offset:{(k5*2+1)*1024}')

import math
def bf16(x):
    u = struct.unpack('<I', struct.pack('<f', x))[0]
    return ((u + 0x7fff + ((u >> 16) & 1)) >> 16) & 0xffff
def F_table():
    w = []
    for fn in (math.cos, math.sin, lambda x: -math.sin(x)):
        for f in range(2):
            for l in range(64):
                t1 = l & 31; hi = l >> 5
                v = [bf16(round(fn(2*math.pi*((t1*(16*f + 8*(i >> 2) + 4*hi + (i & 3))) % 32)/32), 12)) for i in range(8)]
                w += [v[2*k] | (v[2*k+1] << 16) for k in range(4)]
    return w
def load_F():
    return [f'global_load_dwordx4 {aF(k)}, v{vL16}, s[82:83] offset:{1024*k}' for k in range(4)] + ['s_add_u32 s82, s82, 4096\ns_addc_u32 s83, s83, 0'] + [f'global_load_dwordx4 {aF(4+k)}, v{vL16}, s[82:83] offset:{1024*k}' for k in range(2)]

def rot_ids(a):
    for j in range(4):
        a.e(f's_add_u32 s{sT}, s{sW}, {1+j}\ns_and_b32 s{sT+1}, s{sT}, 1\ns_bfe_u32 s{sT}, s{sT}, 0x10001')
        a.e(f's_lshl_b32 s{sT}, s{sT}, 5\ns_add_u32 s{sT}, s{sT}, s{sT1}\ns_lshl_b32 s{sT+1}, s{sT+1}, 10\ns_add_u32 s{sHB[j]}, s{sT}, s{sT+1}')
def gen_TW(a, t, sT=sT):
    a.e(f'v_and_b32 v{t}, 15, v{vL}\nv_lshrrev_b32 v{t+1}, 4, v{vL}\ns_lshl_b32 s{sT}, s{sW}, 2\nv_add_u32 v{t+1}, s{sT}, v{t+1}')
    a.e(f'v_sub_u32 v{t+2}, 32, v{t+1}\nv_cmp_eq_u32 vcc, 0, v{t+1}\nv_cndmask_b32 v{t+2}, v{t+2}, 16, vcc')
    a.e(f's_mov_b32 s{sT+1}, 0x3a000000')
    a.e(f's_cmp_ge_u32 s{sC}, 4\ns_cselect_b32 s{sT+1}, s{sT+1}, 0xba000000')
    a.e(f'v_cvt_f32_u32 v{t+1}, v{t+1}\nv_cvt_f32_u32 v{t+2}, v{t+2}\nv_add_f32 v{t+3}, {fhex(32.0)}, v{t+1}\nv_add_f32 v{t+4}, {fhex(32.0)}, v{t+2}')
    s2r = [t+1, t+3, t+2, t+4]
    a.e(f'v_lshlrev_b32 v{t}, 6, v{t}')
    for j in range(4):
        a.e(f'v_add_u32 v{t+5}, s{sHB[j]}, v{t}\nv_cvt_f32_u32 v{t+5}, v{t+5}\nv_mul_f32 v{t+5}, s{sT+1}, v{t+5}')
        for w in range(4): a.e(f'v_mul_f32 v{t+6+w}, v{t+5}, v{s2r[w]}')
        for w in range(4): a.e(f'v_cos_f32 v{t+10+w}, v{t+6+w}\nv_sin_f32 v{t+6+w}, v{t+6+w}')
        for w in range(4): a.e(cvtpk(t+6+w, t+10+w, t+6+w))
        for w in range(4): a.e(f'v_accvgpr_write_b32 a{aTW+4*j+w}, v{t+6+w}')

def check_loop(a, load_text, vval, nl, cnt):
    ok, lp = label('ok'), label('lp')
    if nl < 64: a.e(f's_mov_b32 exec_lo, {hex(((1<<nl)-1)&0xffffffff)}\ns_mov_b32 exec_hi, {hex(((1<<nl)-1)>>32)}')
    a.e(f'v_cmp_ne_u32 vcc, s{sTAG}, v{vval}\ns_mov_b32 s{cnt}, 0\ns_cbranch_vccz {ok}')
    a.e(f'{lp}:\ns_sleep 1')
    a.e(load_text); a.vm_issued -= 1
    a.e(f's_waitcnt vmcnt(0)\nv_cmp_ne_u32 vcc, s{sTAG}, v{vval}\ns_add_u32 s{cnt}, s{cnt}, 1\ns_cmp_gt_u32 s{cnt}, 100000\ns_cbranch_scc1 {ok}\ns_cbranch_vccnz {lp}')
    a.e(f'{ok}:')
    if nl < 64: a.e('s_mov_b64 exec, -1')

def nonce_check(a, tok):
    ok, lp = label('nok'), label('nlp')
    a.wait(vm=tok)
    a.e(f'v_readfirstlane_b32 s{sTAG}, v{vNON}\ns_mov_b32 s{sPC}, 0\ns_cmp_lg_u32 s{sTAG}, 0\ns_cbranch_scc1 {ok}')
    a.e(f'{lp}:\nv_mov_b32 v{vNON}, 0')
    a.e(f'global_load_dword v{vNON}, v{vNON}, s[{sDBG}:{sDBG+1}] sc1'); a.vm_issued -= 1
    a.e(f's_waitcnt vmcnt(0)\nv_readfirstlane_b32 s{sTAG}, v{vNON}\ns_add_u32 s{sPC}, s{sPC}, 1\ns_cmp_gt_u32 s{sPC}, 100000\ns_cbranch_scc1 {ok}')
    a.e(f's_cmp_eq_u32 s{sTAG}, 0\ns_cbranch_scc1 {lp}\n{ok}:')

SLOW = []
def adapt(a, text):
    return a.vm(text + ' sc1')
def set_flag_h(a, vt):
    a.e(f'v_mov_b32 v{vt}, 0\nv_mov_b32 v{vt+1}, s{sTAG}\ns_mov_b64 exec, 1')
    adapt(a, f'buffer_store_dword v{vt+1}, v{vt}, {srd(SWS)}, s{sFH} offen')
    a.e('s_mov_b64 exec, -1')
def set_flag(a, word, vt):
    a.e(f'v_mov_b32 v{vt}, {4*word}\nv_mov_b32 v{vt+1}, s{sTAG}\ns_mov_b64 exec, 1')
    a.vm(f'buffer_store_dword v{vt+1}, v{vt}, {srd(SWS)}, s{sFL} offen sc1')
    a.e('s_mov_b64 exec, -1')

def w2_load_ops(slot, st, cts=range(5)):
    ops = []
    for ct in cts:
        def op(a, ct=ct):
            vo = st['vL16d'] if slot == 13 else st.get('vW', vL16)
            need = 5120*slot + (4096 if ct == 4 else 0)
            if st.get('w2cur') != need: a.e(f's_add_u32 s{sW2o}, s{sUS}, {need}'); st['w2cur'] = need
            st['w2'][(slot, ct)] = a.vm(f'buffer_load_dwordx4 {W2(slot,ct)}, v{vo}, {srd(SWS)}, s{sW2o} offen offset:{(1024*ct)%4096} sc1')
        ops.append(op)
    return ops

vDS = 195
def P2(d, h): return f'v[{128+32*d+16*h}:{143+32*d+16*h}]'
def PE(p, par): b = 228 + 8*(p & 1) + 4*par; return b
def pass1(a, t, st):
    nG = t.nG; NK = 40 if nG == 4 else 42
    def dinfo(ks): return (ks & 1, (ks - 2) >> 1) if (nG == 2 and ks >= 2) else None
    def rdW(ks, i):
        c, s = divmod(ks, 4); o = []
        if i < nG:
            if ks >= 40: return []
            for h in range(2):
                o.append(lambda a, h=h: st['w'].__setitem__((ks, i), a.lg(f'ds_read_b64_tr_b16 {WB(ks&1,i,h)}, v{vBR[i]} offset:{(c%4)*t.bslot + s*16*t.pitch + h*4*t.pitch}')))
        elif dinfo(ks):
            d, p = dinfo(ks)
            o.append(lambda a: st['w'].__setitem__((ks, i), a.lg(f'ds_read_b128 {WB(ks&1,i)}, v{vDS} offset:{(((p%10)*2 + i-2)*2 + d)*1024}')))
        return o
    def rdA(c, s):
        return f'ds_read_b128 {X(4*c+s)}, v{vAR[s]} offset:{ARING + (c%4)*16384}'
    st['w'] = {}
    if nG == 2: a.e(f'v_add_u32 v{vDS}, {t.DREG}, v{vL16}\ns_mov_b32 s{sE+2}, 0x05040100\ns_mov_b32 s{sE+3}, 0x07060302')
    a.wait(vm=st['dma'][0], lg=a.lg_issued)
    a.e('s_barrier')
    stamp(a, 2)
    a.e(rdA(0, 0))
    for i in range(4): run(a, rdW(0, i))
    for s in range(1, 4): a.e(rdA(0, s))
    S = Sched(); first = {}
    for ks in range(NK):
        c, s = divmod(ks, 4); buf = ks & 1
        for i in range(4):
            pre = []
            if i == 0 and s == 3 and c < 9:
                pre.append(lambda a, c=c: (a.wait(vm=st['dma'][c+1]), a.e('s_barrier')))
            if i in (0, 2):
                pre.append(lambda a, ks=ks, i=i: a.wait(lg=st['w'][(ks, i+1)]) if (ks, i+1) in st['w'] else None)
            m = None
            if i < nG:
                if ks < 40: m = f'v_mfma_f32_32x32x16_bf16 {ACC1(i)}, {WB(buf,i)}, {X(ks)}, {"0" if ks == 0 else ACC1(i)}'
            elif dinfo(ks):
                d, p = dinfo(ks); b = PE(p, i-2)
                m = f'v_mfma_f32_32x32x16_bf16 {P2(d, i-2)}, v[{b}:{b+3}], {WB(buf,i)}, {"0" if p == 0 else P2(d, i-2)}'
            idx = S.add(m, pre)
            if i == 0: first[ks] = idx
            if i == 0 and ks < 37: S.put(idx, [f'v_mfma_f32_16x16x32_bf16 {aCS}, {aSEL}, {WB(buf,0)}, {"0" if ks == 0 else aCS}'])
        if ks < NK - 1:
            rd = [rdA(c+1, 0)] if (s == 3 and c < 9) else []
            k = len(rd)
            for i in range(4): rd += rdW(ks+1, i)
            if nG == 4: S.put(first[ks], rd[:k+3]); S.put(first[ks]+1, rd[k+3:7]); S.put(first[ks]+2, rd[7:])
            else: S.put(first[ks], rd[:k+3]); S.put(first[ks]+1, rd[k+3:])
            if s == 3 and c < 9: S.put(first[ks]+3, [rdA(c+1, 1)])
            if s == 0 and 0 < c < 10: S.put(first[ks]+3, [rdA(c, 2), rdA(c, 3)])
        if nG == 2 and ks & 1 and ks < 40:
            p = ks >> 1; xa = 196 + 4*((ks-1) % 8); xb = 196 + 4*(ks % 8)
            pm = []
            for par in range(2):
                for k, src in enumerate((xa, xa+2, xb, xb+2)): pm.append(f'v_perm_b32 v{PE(p,par)+k}, v{src+1}, v{src}, s{sE+2+par}')
            S.put(first[ks]+2, pm[:4]); S.put(first[ks]+3, pm[4:])
    if nG == 2:
        for d in range(2): S.spread([f'v_mul_f32 v{128+32*d+k}, v{vSG}, v{128+32*d+k}' for k in range(32)], first[21+d]+1, first[22+d]+1)
    exb = 160 if nG == 4 else 84
    ex = []
    for n in range(3):
        for h in range(2):
            ex.append(lambda a, n=n, h=h: st.__setitem__('ex', a.lg(f'ds_read_b64_tr_b16 v[{exb+4*n+2*h}:{exb+1+4*n+2*h}], v{vBR[0]} offset:{(9%4)*t.bslot + (n+1)*16*t.pitch + h*4*t.pitch}')))
    mm = [lambda a: a.wait(lg=st['ex'])] + [f'v_mfma_f32_16x16x32_bf16 {aCS}, {aSEL}, v[{exb+4*n}:{exb+3+4*n}], {aCS}' for n in range(3)]
    S.put(first[35]+3, ex[:3]); S.put(first[36]+3, ex[3:]); S.put(first[37], mm); st['cs_slot'] = first[37] + 3; st['bar_slot'] = first[38] + 2
    gaps = []
    for ks in range(40):
        gaps += [(ks, first[ks]), (ks, first[ks]+2)] + ([(ks, first[ks]+3)] if ks < opt('ncu', 6) else [])
    gi = 0
    for c in range(st['next_chunk'], 10):
        ops = dma_ops(t, c, st)
        A = ops[1:5]; B = ops[6:-1]
        eA = (c-3)*4 if c >= 4 else 0
        eB = (c-2)*4 - 1 if c >= 4 else 0
        lo = max(0, (c - opt('la', 2) - 1)*4 + 1)
        for k, op in enumerate(A + B):
            e = max(eA if k < 4 else eB, lo)
            while gaps[gi][0] < e: gi += 1
            pre = [ops[0]] if k == 0 else ([ops[5]] if k == 4 else [])
            post = [ops[-1]] if k == 3 + len(B) else []
            g = gaps[gi][1]
            if pre: S.put(g - 1 if g > 0 else g, pre)
            if k == 0: st.setdefault('grp', {})[c] = (g - 1 if g > 0 else g, pre[0], gaps[gi][0])
            S.put(g, [op] + post); gi += 1
        assert gaps[gi-1][0] < c*4 - 1, (c, gaps[gi-1])
    return S, first

AUGW = None
def h_aug_x(tmp):
    p, q2 = tmp+4, tmp+5
    o = [cvtpk(p, vNM, vSDV), f'v_lshlrev_b32 v{tmp+6}, 16, v{p}', f'v_and_b32 v{tmp+7}, 0xffff0000, v{p}',
         f'v_sub_f32 v{tmp+6}, v{vNM}, v{tmp+6}', f'v_sub_f32 v{tmp+7}, v{vSDV}, v{tmp+7}', cvtpk(q2, tmp+6, tmp+7)]
    o += [f'v_mov_b32 v{tmp+k}, 0' for k in range(4)]
    o += [f's_mov_b32 s{sT+3}, 0x05040100\ns_mov_b32 exec_hi, 0\nv_perm_b32 v{tmp}, v{q2}, v{p}, s{sT+3}\nv_mov_b32 v{tmp+1}, v{p}\nv_lshrrev_b32 v{tmp+2}, 16, v{q2}\ns_mov_b32 exec_hi, -1']
    return o
def h_aug_w(st, i, tmp, vtb):
    b = AUGW[i]
    rd = [lambda a: st['tb'].__setitem__(i, a.lg(f'ds_read2_b32 v[{b+4}:{b+5}], v{vtb} offset0:0 offset1:128'))]
    mk = [lambda a: a.wait(lg=st['tb'][i]), cvtpk(b, b+4, b+4), cvtpk(b+2, b+5, b+5), f'v_and_b32 v{b+1}, 0xffff0000, v{b}', f'v_mov_b32 v{b+3}, 0',
          f'v_sub_f32 v{b+1}, v{b+4}, v{b+1}', cvtpk(b+1, b+1, b+5)]
    mf = [f'v_mfma_f32_32x32x16_bf16 {ACC1(i)}, v[{b}:{b+3}], v[{tmp}:{tmp+3}], {ACC1(i)}']
    return rd, mk, mf
def h_fin(st, i, u):
    acc = 32 + 16*i + 8*u; o = []
    for k in range(8): o.append(f'v_max_f32 v{acc+k}, 0, v{acc+k}')
    for k in range(8): o.append(f'v_mul_f32 v{acc+k}, v{vR}, v{acc+k}')
    for k in range(8): o.append(f'v_mul_f32 v{acc+k}, v{acc+k}, v{acc+k}')
    for k in range(4): o.append(cvtpk(acc+k, acc+2*k, acc+2*k+1))
    if opt('nohst', 0): o.append(lambda a: st.__setitem__('hst', a.vm_issued))
    else: o.append(lambda a: st.__setitem__('hst', adapt(a, f'buffer_store_dwordx4 v[{acc}:{acc+3}], v{vHO}, {srd(SWS)}, s{sH[i]} offen offset:{512*u}')))
    return o

class Rec:
    def __init__(self): self.ops = []; self.tok = {}
    def e(self, text):
        ls = L(text); i = 0
        while i < len(ls):
            j = i + 1
            if ls[i].startswith('s_cmp') or ls[i].startswith('s_bitcmp') or ls[i].startswith('v_cmp'):
                while j < len(ls) and not (ls[j].startswith('s_cselect') or ls[j].startswith('s_cbranch') or ls[j].startswith('v_cndmask')): j += 1
                while j < len(ls) and (ls[j].startswith('s_cselect') or ls[j].startswith('s_cbranch') or ls[j].startswith('v_cndmask')): j += 1
            self.ops.append('\n'.join(ls[i:j])); i = j
    def lg(self, text): self.ops.append(text)
    def vm(self, text, key='t'):
        self.ops.append(lambda a: self.tok.__setitem__(key, a.vm(text)))
def merge(main, other):
    out = []; n, m = len(main), len(other); k = 0
    for i, op in enumerate(main):
        out.append(op)
        while k < m and (k + 1) * n <= (i + 1) * m + m - 1 and k * n <= i * m: out.append(other[k]); k += 1
    return out + other[k:]

def touch_ops(t, lo, hi, q=188):
    n = hi - lo
    o = [f'v_mov_b32 v{q+2}, {OOB}']
    o += L(f'v_and_b32 v{q}, 3, v{vL}\ns_lshl_b32 s{sPC}, s{sC8}, 2\nv_add_u32 v{q}, s{sPC}, v{q}\nv_mul_u32_u24 v{q}, 640, v{q}\nv_lshrrev_b32 v{q+1}, 2, v{vL}\nv_add3_u32 v{q}, v{q}, v{q+1}, {lo}\nv_lshlrev_b32 v{q}, 7, v{q}')
    o += [f'v_cmp_gt_u32 vcc, {4*n}, v{vL}\nv_cndmask_b32 v{q}, v{q+2}, v{q}, vcc', f's_mul_i32 s{sPC}, s{sROW}, 1280']
    o += [f'buffer_load_dword v{vPF}, v{q}, {srd(SX)}, s{sPC} offen {opt("ntx", "")}']
    if t.nG == 4: o += L(f'v_lshrrev_b32 v{q}, 1, v{vL}\nv_and_b32 v{q+1}, 1, v{vL}')
    else: o += L(f'v_mov_b32 v{q}, v{vL}\nv_mov_b32 v{q+1}, 0')
    o += L(f'v_lshlrev_b32 v{q}, 4, v{q}\ns_and_b32 s{sPC}, s{sRB}, 3\ns_lshl_b32 s{sPC}, s{sPC}, 2\ns_add_u32 s{sPC}, s{sPC}, s{sW}\ns_add_u32 s{sPC}, s{sPC}, {64*lo}')
    o += L(f'v_add_u32 v{q}, s{sPC}, v{q}\nv_mul_u32_u24 v{q}, 0xd80, v{q}\nv_lshl_add_u32 v{q}, v{q+1}, 7, v{q}\ns_lshl_b32 s{sPC}, s{sG0}, 6')
    o += [f'v_cmp_gt_u32 vcc, {(8 if t.nG == 4 else 4)*n}, v{vL}\nv_cndmask_b32 v{q}, v{q+2}, v{q}, vcc']
    o += [f'buffer_load_dword v{vPF}, v{q}, {srd(SW1)}, s{sPC} offen {opt("ntw", "")}']
    assert n <= 8
    return o

vTX, vTW = 193, 194; sTX, sTW = 52, 63
def roll_setup(t, n):
    q = 188
    o = L(f'v_mov_b32 v{q+2}, {OOB}\nv_and_b32 v{q+3}, 3, v{vL}\nv_lshrrev_b32 v{q+1}, 2, v{vL}\ns_mul_i32 s{sPC}, s{sZ}, 6\ns_add_u32 s{sPC}, s{sPC}, s{sC8}\ns_mul_i32 s{sPC}, s{sPC}, 3')
    o += L(f'v_add_u32 v{q}, s{sPC}, v{q+3}\nv_min_u32 v{q}, 31, v{q}\nv_mul_u32_u24 v{q}, 640, v{q}\nv_add_lshl_u32 v{q}, v{q}, v{q+1}, 7')
    o += [f'v_cmp_gt_u32 vcc, {4*n}, v{vL}\nv_cndmask_b32 v{q}, v{q+2}, v{q}, vcc', f'v_cmp_gt_u32 vcc, 3, v{q+3}\nv_cndmask_b32 v{vTX}, v{q+2}, v{q}, vcc', f's_mul_i32 s{sTX}, s{sROW}, 1280']
    o += L(f's_mul_i32 s{sTW}, s{sZ}, 12\ns_add_u32 s{sTW}, s{sTW}, s{sC8}\ns_add_u32 s{sTW}, s{sTW}, 12\ns_lshl_b32 s{sTW}, s{sTW}, 7\ns_add_u32 s{sPC}, s{sZ}, 2')
    o += [f's_cmp_lt_u32 s{sC8}, s{sPC}\ns_cselect_b32 s{sTW}, s{sTW}, {OOB}', f'v_mov_b32 v{q}, s{sTW}', f's_lshl_b32 s{sPC}, s{sG0}, 6', f'v_lshl_add_u32 v{vTW}, v{q+3}, 7, s{sPC}']
    o += [f'v_cmp_eq_u32 vcc, 2, v{q+3}\nv_cndmask_b32 v{vTW}, v{vTW}, v{q}, vcc', f'v_cmp_eq_u32 vcc, 3, v{q+3}\nv_cndmask_b32 v{vTW}, v{vTW}, v{q+2}, vcc']
    o += L(f's_lshl_b32 s{sPC}, s{sRB}, 2\ns_add_u32 s{sPC}, s{sPC}, s{sW}\nv_lshl_add_u32 v{q}, v{q+1}, 6, s{sPC}\nv_mul_u32_u24 v{q}, 0xd80, v{q}\nv_add_u32 v{vTW}, v{vTW}, v{q}')
    o += [f'v_cmp_gt_u32 vcc, {4*n}, v{vL}\nv_cndmask_b32 v{vTW}, v{q+2}, v{vTW}, vcc', f's_mov_b32 s{sTW}, 0']
    return o
def roll(st, lo):
    def op1(a):
        d = lo - st.get('roll', 0); st['roll'] = lo
        if d: a.e(f's_add_u32 s{sTX}, s{sTX}, {128*d}\ns_add_u32 s{sTW}, s{sTW}, {64*3456*d}')
        a.vm(f'buffer_load_dword v{vPF}, v{vTX}, {srd(SX)}, s{sTX} offen {opt("ntx", "")}')
    return [op1, f'buffer_load_dword v{vPF}, v{vTW}, {srd(SW1)}, s{sTW} offen {opt("ntw", "")}']

def build_type(a, t):
    st = {'dma': {}, 'w2': {}, 'tb': {}}
    nG, nD = t.nG, t.nD
    XV[0] = (nG == 2)
    rs = [x.split('@') for x in opt('rs', '1@s0,4@s1,7@s2').split(',') if x]
    at = lambda p: [o for c_, p_ in rs if p_ == p for o in roll(st, int(c_))]
    prologue_t(a, t, st)
    if nG == 4: run(a, at('s0'))
    run(a, dma_ops(t, 0, st))
    stamp(a, 'p2')
    a.e(mk_srd(SW2, 72, 1728*1280))
    nonce_pub(a)
    stamp(a, 'p3')
    r = Rec()
    setup2(r, t)
    if nG == 4: aux_setup(r); aux_setup2(r)
    if nG == 2: gen_D(r, t, 96)
    rot_ids(r)
    if opt('twR', 0) if nG == 4 else opt('twS', 0): gen_TW(r, 96)
    main = r.ops
    vSA, vFA, vFV = vT+3, vT+4, vT+5
    st['vL16d'] = 192
    pre = L(f's_lshl_b32 s{sT}, s{sRB}, 2\ns_add_u32 s{sT}, s{sT}, s{sW}\ns_lshl_b32 s{sT}, s{sT}, 9\ns_add_u32 s{sT}, s{sT}, {ST_OFF}')
    pre += L(f'v_and_b32 v{vSA}, 31, v{vL}\nv_lshl_add_u32 v{vSA}, v{vSA}, 4, s{sT}')
    pre += L(f'v_add_u32 v{vFA}, s{sTAU}, v{vL}\nv_min_u32 v{vFA}, 53, v{vFA}')
    pre += L(f's_lshl_b32 s{sT}, s{sC}, 7\ns_add_u32 s{sT}, s{sT}, {PF_OFF}\nv_lshlrev_b32 v{vFA}, 10, v{vFA}\nv_add_u32 v{vFA}, s{sT}, v{vFA}')
    pre += L(f's_mul_i32 s{sUS}, s{sC}, 54\ns_add_u32 s{sUS}, s{sUS}, s{sTAU}\ns_mul_i32 s{sUS}, s{sUS}, 5120\ns_add_u32 s{sUS}, s{sUS}, {P_OFF}')
    pre += [f's_cmp_ge_u32 s{sW}, 2\ns_cselect_b32 s{sT}, {OOB}, 0', f'v_add_u32 v192, s{sT}, v{vL16}']
    vTB = [4, 5, 6, 7] if nG == 4 else [14, 15]; vRT = 3
    prep = L(f's_lshl_b32 s{sE+1}, s{sW}, 7\ns_add_u32 s{sE+1}, s{sE+1}, {TABR}\nv_and_b32 v{vT+6}, 31, v{vL}\nv_lshl_add_u32 v{vRT}, v{vT+6}, 2, s{sE+1}')
    for i in range(nG):
        prep += L(f's_add_u32 s{sE}, s{sW}, {i}\ns_and_b32 s{sE}, s{sE}, {nG-1}\ns_lshl_b32 s{sE}, s{sE}, 7\ns_add_u32 s{sE}, s{sE}, {TABC}\nv_lshl_add_u32 v{vTB[i]}, v{vT+6}, 2, s{sE}')
    prep += [f'v_lshrrev_b32 v{vT+6}, 5, v{vL}']
    nonl = [f'v_mov_b32 v{vNON}, 0', lambda a: st.__setitem__('non', a.vm(f'global_load_dword v{vNON}, v{vNON}, s[{sDBG}:{sDBG+1}] sc1'))]
    st['next_chunk'] = 2
    main = main + pre
    if nG == 4:
        n = len(main); c2 = n * opt('c2', 40) // 100; c3 = n * opt('c3', 50) // 100
        run(a, at('s1') + main[:c2] + at('s2') + main[c2:c3]); stamp(a, 'p4')
        run(a, merge(main[c3:], dma_ops(t, 1, st)) + nonl)
        sp = stats_proc(st); ps = pack_stores(st)
    else:
        n = len(main); c3 = n * opt('s3', 60) // 100
        run(a, main[:c3]); stamp(a, 'p4')
        run(a, merge(main[c3:], dma_ops(t, 1, st)) + nonl)
        tw2 = L(f's_mul_i32 s{sT}, s{sRB}, 10\ns_add_u32 s{sT}, s{sT}, s{sDT}\ns_lshl_b32 s{sT}, s{sT}, 1\ns_add_u32 s{sT}, s{sT}, s{sW}\ns_mul_i32 s{sT}, s{sT}, {54*128}\nv_lshlrev_b32 v64, 7, v{vL}')
        tw2 += [f's_mov_b32 exec_hi, 0x3fffff\nbuffer_load_dword v{vPF}, v64, {srd(SW2)}, s{sT} offen\ns_mov_b32 exec_hi, -1']
        if opt('tw2', 2) == 0: run(a, tw2)
    stamp(a, 1)
    S, first = pass1(a, t, st)
    NS = 4
    l = lambda ks: first[ks] + 3
    b1tab = L(f'v_lshlrev_b32 v{vT}, 16, v{vT+7}\nv_and_b32 v{vT+1}, 0xffff0000, v{vT+7}\nv_lshlrev_b32 v{vT+2}, 3, v{vL}\nv_add_u32 v{vT+2}, {TABB}, v{vT+2}\nds_write_b64 v{vT+2}, v[{vT}:{vT+1}]')
    S.spread(b1tab, first[3], l(3))
    S.put(l(opt('kn', 11)), [lambda a: nonce_check(a, st['non'])])
    if nG == 2 and opt('tw2', 2) > 0: S.put(l(opt('tw2', 2)), [lambda a: run(a, tw2)])
    if nG == 4:
        g_ = st['grp'][opt('ag', 3)]
        fl = S.slots[g_[0]]['fill']; fl.insert(fl.index(g_[1]), lambda a: run(a, pack_dma(st)))
        ka_ = g_[2]
        for k_, op_ in enumerate(stats_loads(st)): S.put(first[ka_ + k_] + 1, [op_])
        kb_ = opt('kb', 6)
        S.spread(pack_reads(st), first[kb_], l(kb_+1))
        if opt('dn', 1):
            S.put(first[kb_+1] + 3, [ps[0]])
            for k_, op_ in enumerate(ps[1:]): S.put(first[kb_+2+k_//2] + 1 + 2*(k_ & 1), [op_])
            e_ = kb_ + 4
        else:
            for k_, op_ in enumerate(ps): S.put(first[kb_+2+k_] + 1, [op_])
            e_ = kb_ + 6
        S.put(l(kb_+2), sp[:5] + [lambda a: run(a, sp[5:25])]); S.spread(sp[25:], first[kb_+3], l(e_))
        assert opt('kf', kb_ + 5) >= e_ and opt('kf', kb_ + 5) >= opt('kn', 11)
        S.put(l(opt('kf', kb_ + 5)), [aux_publish(st)])
        for c_, p_ in rs:
            if p_[0] != 's': S.put(l(int(p_)), roll(st, int(c_)))
    pfl = f'buffer_load_dword v{vFV}, v{vFA}, {srd(SWS)}, 0 offen sc1'
    stl = f'buffer_load_dwordx4 v[{vST}:{vST+3}], v{vSA}, {srd(SWS)}, 0 offen sc1'
    if nG == 2: S.spread(load_F(), l(13), l(16))
    sf = '' if nG == 4 else 'S'
    kq = opt('kq' + sf, 27 if nG == 4 else 28); kp = kq - 3
    early = opt('early', 1)
    S.put(l(opt('ks', 31)), [lambda a: st.__setitem__('stl', a.vm(stl))])
    S.put(l(kp if early else 38), [lambda a: st.__setitem__('pfl', a.vm(pfl))])
    pchk = lambda a: (a.wait(vm=st['pfl']), check_loop(a, pfl, vFV, 14, sPC), stamp(a, 'pc'))
    S.put(l(kq), [pchk if early else (lambda a: a.wait(vm=st['stl']))])
    allw = []
    for s_ in (range(14) if nG == 4 else list(range(3, 14)) + [0, 1, 2]): allw += w2_load_ops(s_, st)
    st['twq'] = []
    if opt('touchw', 0):
        nl_ = opt('tl', 16)
        tw = L(f's_bfe_u32 s{sT}, s2, 0x20003\nv_lshl_add_u32 v{vFA}, v{vL}, 2, s{sT}\nv_lshlrev_b32 v{vFA}, 7, v{vFA}\ns_mov_b32 s{sTX}, s{sUS}')
        S.put(l(kq), tw)
        nb_ = -(-130 // nl_)
        for j in range(nb_):
            n_ = min(nl_, 130 - j*nl_)
            op = f's_mov_b64 exec, {hex((1 << n_) - 1)}\nbuffer_load_dword v{vPF}, v{vFA}, {srd(SWS)}, s{sTX} offen sc1\ns_mov_b64 exec, -1\ns_add_u32 s{sTX}, s{sTX}, {nl_*512}'
            k_ = kq + 1 + opt('tstep', 3)*j
            if k_ < 40: S.put(first[k_] + 1, [op])
            else: st['twq'].append(op)
    n0 = 0
    kA, kB = kq + 1, opt('kB' + sf, 31)
    for ks in range(kA, 40):
        pos_ = [first[ks] + 1] if ks < kB else sorted([first[ks], first[ks] + NS - 2, first[ks] + 1][:opt('ne' + sf, 3)])
        if ks < kB and (ks - kA) % opt('kAs' + sf, 2 if nG == 4 else 1): pos_ = []
        for p_ in pos_: S.put(p_, [allw[n0]]); n0 += 1
    assert n0 <= (60 if nG == 4 else 42)
    global AUGW
    tmp = 172 if nG == 4 else 64
    AUGW = [160, 166, 96, 102] if nG == 4 else [72, 78]
    e1 = [lambda a: (a.wait(vm=st['stl']), check_loop(a, stl, vST+3, 64, sPC))]
    e1 += [f'v_rcp_f32 v{vR}, v{vSDV}']
    if nG == 2: e1 += [f's_nop 0\nds_write2st64_b32 v{vRT}, v{vR}, v{vAL} offset0:0 offset1:2']
    e1 += h_aug_x(tmp)
    S.spread(prep, first[31], l(33)); S.spread(e1, first[34], l(36))
    e2 = L(f'v_accvgpr_read_b32 v{vT}, a196\nv_accvgpr_read_b32 v{vT+1}, a197')
    e2 += [f's_mov_b64 exec, 0xffff\nds_write2_b32 v{vTB[0]}, v{vT}, v{vT+1} offset0:0 offset1:16\ns_mov_b64 exec, -1', lambda a: st.__setitem__('csw', a.lg_issued)]
    S.put(st['cs_slot'], e2)
    S.slots[st['bar_slot']]['pre'].append(lambda a: (a.wait(lg=st['csw']), a.e('s_barrier')))
    aw = [h_aug_w(st, i, tmp, vTB[i]) for i in range(nG)]
    S.put(st['bar_slot'], [x for i in range(nG) for x in aw[i][0]])
    S.spread([x for i in range(nG) for x in aw[i][1]], min(st['bar_slot'] + 2, l(39)), l(39))
    for ks in range(40): S.slots[first[ks]]['pre'].insert(0, lambda a, ks=ks: stamp(a, f'k{ks}'))
    if nG == 2: S.put(first[40], aw[0][2] + aw[1][2])
    S.emit(a)
    if nG == 4:
        for i in range(nG): run(a, aw[i][2])
    stamp(a, 3)
    n1 = n0
    later = allw[n1:]
    ufirst = nG == 2 and opt('ufS', 0)
    def hflag(a):
        a.wait(vm=st['hst']); a.e(f's_add_u32 s{sFH}, s{sFL}, {HF_OFF - F_OFF}'); set_flag_h(a, 193); stamp(a, 'hf')
    def uflag(a):
        a.wait(vm=st['ust']); set_flag(a, 1, 193); stamp(a, 'uf')
    def do_U():
        rr = 96
        a.e(f'v_lshl_add_u32 v{vT}, v{vT+6}, 4, s{sE+1}')
        for jq in range(4): rt_ = a.lg(f'ds_read_b128 v[{rr+4*jq}:{rr+4*jq+3}], v{vT} offset:{32*jq}')
        vXW, vXR_, vUS = vT+2, vT+3, vT+4
        a.e(f'v_and_b32 v{vT+1}, 31, v{vL}\nv_lshlrev_b32 v{vT+5}, 2, v{vT+1}\nv_lshl_add_u32 v{vXW}, v{vT+6}, 9, v{vT+5}\ns_lshl_b32 s{sE}, s{sW}, 12\nv_add_u32 v{vXW}, s{sE}, v{vXW}')
        a.e(f's_lshl_b32 s{sE}, s{sW}, 10\nv_lshl_add_u32 v{vXR_}, v{vL}, 2, s{sE}')
        a.e(f's_mov_b32 s{sE}, 81920\nv_mul_lo_u32 v{vT+5}, s{sE}, v{vT+6}\nv_lshl_add_u32 v{vUS}, v{vT+1}, 4, v{vT+5}')
        a.wait(lg=rt_)
        for d in range(2):
            E, O = 128 + 32*d, 144 + 32*d
            for j in range(16):
                tq = 228 + (j & 3)
                x, y = (E+j, O+j) if d == 0 else (O+j, E+j)
                a.e(f'v_add_f32 v{tq}, v{E+j}, v{O+j}\nv_sub_f32 v{O+j}, v{x}, v{y}\nv_mul_f32 v{E+j}, v{rr+j}, v{tq}\nv_mul_f32 v{O+j}, v{rr+j}, v{O+j}')
            for j in range(8): a.e(cvtpk(E+j, E+2*j, E+2*j+1))
        DR = [(64, 80), (196, 212)]
        def step2(part):
            c0 = 128 + 16*part; s0 = 160 + 16*part; UR, UV = DR[part]
            UR = f'v[{UR}:{UR+15}]'; UV = f'v[{UV}:{UV+15}]'
            G = lambda b, f: f'v[{b+4*f}:{b+4*f+3}]'
            for k, (A1, A2, B) in enumerate(((0, 2, G(c0,0)), (1, 3, G(c0,1)), (4, 0, G(s0,0)), (5, 1, G(s0,1)))):
                a.e(f'v_mfma_f32_32x32x16_bf16 {UR}, {aF(A1)}, {B}, {"0" if k == 0 else UR}')
                a.e(f'v_mfma_f32_32x32x16_bf16 {UV}, {aF(A2)}, {B}, {"0" if k == 0 else UV}')
        def comb(part):
            UR, UV = DR[part]
            for j in range(16):
                a.e(cvtpk(UR+j, UR+j, UV+j))
                a.lg(f'ds_write_b32 v{vXW}, v{UR+j} offset:{XCH + part*16384 + (8*(j>>2)+(j&3))*128}')
        stamp(a, 'u0')
        step2(0)
        ls = label('spec')
        a.e(f's_cmp_lg_u32 s{sDT}, 8\ns_cbranch_scc1 {ls}')
        for jq in range(4): a.e(f'ds_read_b128 v[{232+4*jq}:{235+4*jq}], v{vT} offset:{512+32*jq}')
        a.lg_issued -= 4
        a.e('s_waitcnt lgkmcnt(0)\ns_mov_b32 exec_lo, 0x80000000\ns_mov_b32 exec_hi, 0x80000000')
        for j in range(16): a.e(f'v_mov_b32 v{144+j}, v{232+j}\nv_mov_b32 v{176+j}, 0')
        a.e(f's_mov_b64 exec, -1\n{ls}:')
        for O in (144, 176):
            for j in range(8): a.e(cvtpk(O+j, O+2*j, O+2*j+1))
        hp_ = opt('hpS', 0)
        if not ufirst and hp_ == 0: hflag(a)
        step2(1); comb(0)
        if not ufirst and hp_ == 1: hflag(a)
        comb(1)
        stamp(a, 'u1')
        a.wait(lg=a.lg_issued); a.e('s_barrier')
        stamp(a, 'u2')
        toks = []
        for part in range(2):
            for i in range(4):
                b = 128 + 16*part + 4*i
                a.lg(f'ds_read2st64_b32 v[{b}:{b+1}], v{vXR_} offset0:{64*part+i} offset1:{64*part+16+i}')
                toks.append(a.lg(f'ds_read2st64_b32 v[{b+2}:{b+3}], v{vXR_} offset0:{64*part+32+i} offset1:{64*part+48+i}'))
        a.e(f's_lshl_b32 s{sE}, s{sW}, 7\ns_add_u32 s{sE}, s{sE}, s{sRB}\ns_mul_i32 s{sE}, s{sE}, 5120\ns_lshl_b32 s{sE+1}, s{sDT}, 8\ns_add_u32 s{sE}, s{sE}, s{sE+1}\ns_add_u32 s{sE}, s{sE}, {U_OFF}')
        for i in range(1, 4): a.e(f's_add_u32 s{sE+i}, s{sE}, {2*81920*i}')
        for part in range(2):
            for i in range(4):
                b = 128 + 16*part + 4*i
                a.wait(lg=toks[4*part+i])
                st['ust'] = a.vm(f'buffer_store_dwordx4 v[{b}:{b+3}], v{vUS}, {srd(SWS)}, s{sE+i} offen offset:{2560*part} sc1')
        stamp(a, 'u3')
    def do_H():
        S = Sched()
        for k in range(8*nG): S.add(None)
        nm = len(S.slots)
        ops = []
        for i in range(nG): ops += [lambda a, i=i: stamp(a, f'f{i}')] + h_fin(st, i, 0) + h_fin(st, i, 1)
        S.spread(ops, 0, nm - 1)
        k_ = opt('na', 10) if nG == 4 else opt('naS', 6)
        if st['twq']: S.spread(st['twq'], 0, nm - 1)
        if k_: S.spread(later[:k_], 0, nm - 1); del later[:k_]
        if ufirst: S.put(min(nm - 1, opt('ufs', 20)), [uflag])
        hfe = -1
        S.emit(a)
        stamp(a, 4)
    if nG == 4: do_H()
    elif ufirst: do_U(); do_H()
    else: do_H(); do_U()
    if nG == 2: later = later[-15:] + later[:-15]
    nin = opt('nin' + sf, 0)
    st['inp2'] = later[len(later) - nin:]; later = later[:len(later) - nin]
    stamp(a, 5)
    phase2(a, st, hflag if (ufirst or nG == 4) else uflag, later, not (opt('twR', 0) if nG == 4 else opt('twS', 0)))

def phase2(a, st, hflag, later, doTW):
    RED = 65536 if XV[0] else 0
    t = 2
    q = 144
    r = Rec()
    if doTW: gen_TW(r, q)
    sGI = sE
    r.e(f's_mul_i32 s{sGO}, s{sHB[3]}, 1280\ns_mul_i32 s{sGI}, s{sHB[1]}, 1280')
    vHJ = [184, 185, 186, 187]; vHD = [188, 189, 190, 191]
    for j in range(4):
        r.e(f's_and_b32 s{sT}, s{sHB[j]}, 1024\ns_and_b32 s{sHB[j]}, s{sHB[j]}, 63\ns_mul_i32 s{sHB[j]}, s{sHB[j]}, 54\ns_add_u32 s{sHB[j]}, s{sHB[j]}, s{sTAU}\ns_lshl_b32 s{sHB[j]}, s{sHB[j]}, 11\ns_add_u32 s{sHB[j]}, s{sHB[j]}, s{sT}')
        r.e(f'v_add_u32 v{vHJ[j]}, s{sHB[j]}, v{vL16}\nv_add_u32 v{vHD[j]}, s{sHB[j]}, v192')
    r.e(f's_mov_b32 s{sKO[0]}, 0\ns_movk_i32 s{sKO[13]}, {13*2048}')
    for k in range(1, 13):
        if opt('rho', 0): r.e(f's_add_u32 s{sKO[k]}, s{sKO[k-1]}, 2048\ns_cmp_eq_u32 s{sKO[k]}, s{sKO[13]}\ns_cselect_b32 s{sKO[k]}, 0, s{sKO[k]}')
        elif k % 2 == 0: r.e(f's_movk_i32 s{sKO[k]}, {2048*k}')
    vG4, vG2, vB4 = t+8, t+9, t+10
    r.e(f's_mul_i32 s{sCW}, s{sC}, 160\ns_add_u32 s{sGO}, s{sGO}, s{sCW}\ns_add_u32 s{sGI}, s{sGI}, s{sCW}\ns_mov_b32 s{sT}, 81920')
    r.e(f'v_and_b32 v{q}, 15, v{vL}\nv_mul_lo_u32 v{q}, s{sT}, v{q}\nv_lshrrev_b32 v{q+1}, 4, v{vL}\nv_lshl_add_u32 v{vG4}, v{q+1}, 4, v{q}\nv_lshl_add_u32 v{vG2}, v{q+1}, 3, v{q}')
    r.e(f'v_lshl_add_u32 v{vB4}, v{q+1}, 4, s{sCW}\nv_lshl_add_u32 v{q+2}, v{q+1}, 3, s{sCW}')
    xr = 160; br = 172
    r.ops += [f'buffer_load_dwordx4 v[{xr}:{xr+3}], v{vG4}, {srd(SX)}, s{sGI} offen', f'buffer_load_dwordx4 v[{xr+4}:{xr+7}], v{vG4}, {srd(SX)}, s{sGI} offen offset:64',
              f'buffer_load_dwordx2 v[{xr+8}:{xr+9}], v{vG2}, {srd(SX)}, s{sGI} offen offset:128',
              f'global_load_dwordx4 v[{br}:{br+3}], v{vB4}, s[{sB2}:{sB2+1}]', f'global_load_dwordx4 v[{br+4}:{br+7}], v{vB4}, s[{sB2}:{sB2+1}] offset:64']
    r.vm(f'global_load_dwordx2 v[{br+8}:{br+9}], v{q+2}, s[{sB2}:{sB2+1}] offset:128', 'xb')
    r.e(f's_and_b32 s{sT+1}, s2, 15\ns_lshr_b32 s{sT+2}, s{sW}, 1\ns_lshl_b32 s{sT+2}, s{sT+2}, 4\ns_add_u32 s{sT+1}, s{sT+1}, s{sT+2}')
    r.e(f's_and_b32 s{sT+2}, s{sW}, 1\ns_mul_i32 s{sT+2}, s{sT+2}, 96\ns_add_u32 s{sT+1}, s{sT+1}, s{sT+2}')
    r.e(f's_lshl_b32 s{sT+1}, s{sT+1}, 2\ns_lshl_b32 s{sT+2}, s{sZ}, 1\ns_add_u32 s{sT+1}, s{sT+1}, s{sT+2}')
    vF1, vF2, vFV = t, t+1, t+2
    r.e(f'v_lshrrev_b32 v{q}, 1, v{vL}\nv_lshlrev_b32 v{q}, 7, v{q}\nv_and_b32 v{q+1}, 1, v{vL}\nv_add3_u32 v{q}, v{q}, v{q+1}, s{sT+1}')
    r.e(f'v_lshlrev_b32 v{vF1}, 7, v{q}\nv_add_u32 v{vF1}, {HF_OFF}, v{vF1}')
    r.e(f's_sub_u32 s{sTS1}, 32, s{sT1}\ns_and_b32 s{sTS1}, s{sTS1}, 31\ns_cmp_ge_u32 s{sC}, 4\ns_cselect_b32 s{sTS1}, s{sTS1}, s{sT1}')
    r.e(f'v_and_b32 v{q}, 7, v{vL}\nv_min_u32 v{q}, 4, v{q}\nv_lshlrev_b32 v{q+2}, 5, v{q}\nv_add_u32 v{q+3}, {6*32}, v{q+2}\nv_add_u32 v{q+2}, {3*32+16}, v{q+2}')
    r.e(f'v_cmp_gt_u32 vcc, 2, v{q}\nv_cndmask_b32 v{q}, v{q+2}, v{q+3}, vcc')
    r.e(f'v_and_b32 v{q+1}, 8, v{vL}\nv_bfe_u32 v{q+3}, v{vL}, 4, 1\nv_add3_u32 v{q}, v{q}, v{q+1}, v{q+3}')
    r.e(f's_lshl_b32 s{sT}, s{sW}, 3\ns_lshr_b32 s{sT+2}, s{sTS1}, 3\ns_add_u32 s{sT}, s{sT}, s{sT+2}\nv_lshl_add_u32 v{q}, v{q}, 2, s{sT}')
    r.e(f'v_lshlrev_b32 v{vF2}, 7, v{q}\nv_add_u32 v{vF2}, {F_OFF+4}, v{vF2}\nv_lshrrev_b32 v{q+1}, 4, v{vL}')
    vUO = [t+3+k for k in range(5)]
    r.e(f'v_and_b32 v{q}, 15, v{vL}\ns_mul_i32 s{sT}, s{sC}, 80\nv_and_b32 v{q+4}, 12, v{vL}\nv_add3_u32 v{q+4}, v{q+4}, v{q}, s{sT}\nv_add_u32 v{q}, s{sT}, v{q}')
    r.e(f's_movk_i32 s{sT+1}, 5120\nv_mul_u32_u24 v{q+1}, s{sT+1}, v{q+1}')
    r.e(f's_cmp_ge_u32 s{sC}, 4\ns_cselect_b32 s{sT}, -1, 0\ns_cselect_b32 s{sT+1}, 640, -1')
    for ct in range(5):
        if ct < 4: r.e(f'v_add_u32 v{q+2}, {32*(ct>>1)+4*(ct&1)}, v{q+4}')
        else: r.e(f'v_add_u32 v{q+2}, 64, v{q}')
        r.e(f'v_xor_b32 v{q+2}, s{sT}, v{q+2}\nv_add_u32 v{q+2}, s{sT+1}, v{q+2}\nv_sub_u32 v{q+5}, 478, v{q+2}')
        r.e(f'v_cmp_lt_i32 vcc, 159, v{q+2}\nv_cndmask_b32 v{q+5}, v{q+2}, v{q+5}, vcc')
        if ct == 0: r.e(f'v_cmp_eq_u32 vcc, 319, v{q+2}\nv_cndmask_b32 v{q+5}, v{q+5}, v{q+2}, vcc')
        r.e(f'v_lshl_add_u32 v{vUO[ct]}, v{q+5}, 4, v{q+1}')
        if ct == 0: r.e(f'v_mov_b32 v{q+3}, {OOB}\nv_cmp_gt_i32 vcc, 0, v{q+2}\nv_cndmask_b32 v{vUO[0]}, v{vUO[0]}, v{q+3}, vcc')
    r.e(f's_lshl_b32 s{sUo}, s{sTS1}, 4\ns_lshl_b32 s{sT}, s{sW}, 2\ns_add_u32 s{sUo}, s{sUo}, s{sT}\ns_mul_i32 s{sUo}, s{sUo}, 5120\ns_add_u32 s{sUo}, s{sUo}, {U_OFF}')
    vPW, vP2, vP1 = t+11, t+12, t+13
    r.e(f's_mul_i32 s{sT}, s{sW}, 15360\ns_add_u32 s{sT}, s{sT}, {RED}\nv_add_u32 v{vPW}, s{sT}, v{vL16}')
    r.e(f's_xor_b32 s{sT}, s{sW}, 2\ns_mul_i32 s{sT}, s{sT}, 15360\ns_add_u32 s{sT}, s{sT}, {RED}\nv_add_u32 v{vP2}, s{sT}, v{vL16}')
    r.e(f's_add_u32 s{sT}, s{sW}, 1\ns_and_b32 s{sT}, s{sT}, 3\ns_mul_i32 s{sT}, s{sT}, 15360\ns_add_u32 s{sT}, s{sT}, {RED}\nv_add_u32 v{vP1}, s{sT}, v{vL16}')
    vP3 = 0
    r.e(f's_add_u32 s{sT}, s{sW}, 3\ns_and_b32 s{sT}, s{sT}, 3\ns_mul_i32 s{sT}, s{sT}, 15360\ns_add_u32 s{sT}, s{sT}, {RED}\nv_add_u32 v{vP3}, s{sT}, v{vL16}')
    r.ops.insert(len(r.ops) * opt('hfp' + ('S' if XV[0] else ''), 25 if XV[0] else 20) // 100, hflag)
    hl = f'buffer_load_dword v{vFV}, v{vF1}, {srd(SWS)}, 0 offen sc1'
    nl = max(0, len(later) - opt('nlast', 12))
    mm_ = merge(r.ops, later[:nl]); h_ = len(mm_) // 2
    run(a, mm_[:h_]); stamp(a, 's1'); run(a, mm_[h_:]); stamp(a, 's2')
    ini = [lambda a: a.wait(vm=r.tok['xb']), f's_mov_b32 s{sT}, 0x05040100\ns_mov_b32 s{sT+1}, 0x07060302']
    for ct in range(5):
        b = 36 + 4*ct
        for k in range(2):
            xs = xr + (4*(ct >> 1) + 2*(ct & 1) + k if ct < 4 else 8 + k); bs = xs - xr + br
            ini += L(f'v_perm_b32 v{b+2*k}, v{bs}, v{xs}, s{sT}\nv_perm_b32 v{b+2*k+1}, v{bs}, v{xs}, s{sT+1}')
    for k in range(20): ini.append(f'v_dot2_f32_bf16 v{36+k}, v{36+k}, s{sONES}, 0')
    a.e(f'v_mov_b32 v{vL}, v{vL16}'); st['vW'] = vL
    a.e('s_mov_b64 exec, 0x3ff')
    tk = a.vm(hl)
    a.e('s_mov_b64 exec, -1')
    run(a, merge(ini, later[nl:]))
    stamp(a, 6)
    a.wait(vm=tk)
    check_loop(a, hl, vFV, 10, sPC)
    stamp(a, 7)
    ht = {}
    def hload(slot, j):
        def op(a):
            vo = vHD[j] if slot == 13 else vHJ[j]
            ht[(slot, j)] = a.vm(f'buffer_load_dwordx4 {HF(pos[(slot, j)])}, v{vo}, {srd(SWS)}, s{sKO[slot] if RHO else sKO[slot & ~1]} offen offset:{0 if RHO else 2048*(slot & 1)} sc1')
        return op
    order = [(s_, j) for j in range(4) for s_ in range(14)]
    pos = {k: n for n, k in enumerate(order)}
    ul = f'buffer_load_dword v{vFV}, v{vF2}, {srd(SWS)}, 0 offen sc1'
    for n in range(RING): hload(*order[n])(a)
    hp = RING
    wq = list(st['inp2'])
    S = Sched(); f = {}
    def group(s_, j):
        nonlocal hp
        n = pos[(s_, j)]
        for ct in range(5):
            pre = [lambda a: a.wait(vm=max(ht[(s_, j)], max(st['w2'][(s_, c_)] for c_ in range(5))))] if ct == 0 else []
            if ct == 0 and s_ == 0 and j == 3: pre.append(lambda a: a.wait(lg=st[('ci', j)]))
            c0 = '0' if (s_ == 0 and j in (0, 2)) else ACC2(ct, j)
            idx = S.add(f'v_mfma_f32_16x16x32_bf16 {ACC2(ct,j)}, {W2(s_,ct)}, {HF(n)}, {c0}', pre)
            if ct == 0: f[(s_, j)] = idx
        if hp < 56: S.put(idx, [hload(*order[hp])]); hp += 1
    def ustep(j):
        for ct in range(5):
            pre = [lambda a: a.wait(vm=st['uf'])] if ct == 0 else []
            S.add(f'v_mfma_f32_16x16x32_bf16 {ACC2(ct,j)}, {UF(ct)}, a[{aTW+4*j}:{aTW+4*j+3}], {ACC2(ct,j)}', pre)
    u0 = opt('u0', 3)
    for j in range(4):
        for s_ in range(14):
            group(s_, j)
            if j == 2 and s_ == u0: ustep(1); ustep(0)
        if j >= 2: ustep(j)
    bar = lambda a: (a.wait(lg=a.lg_issued), a.e('s_barrier'))
    def wr(j, at, step):
        for ct in range(5): S.put(at + step*ct, [f'ds_write_b128 v{vPW}, {ACC2(ct,j)} offset:{j*5120 + ct*1024}'])
    def rd(key, dst, va, off, at, step):
        for ct in range(5): S.put(at + step*ct, [lambda a, ct=ct: st.__setitem__(key, a.lg(f'ds_read_b128 {dst(ct)}, v{va} offset:{off + ct*1024}'))])
    PB = 144
    wr(1, f[(u0+1, 2)] + 1, 3); S.put(f[(u0+5, 2)] + 1, [bar]); rd(('ci', 3), lambda ct: ACC2(ct, 3), vP2, 5120, f[(u0+5, 2)] + 3, 4)
    wr(0, f[(u0+6, 2)] + 1, 4)
    wr(2, f[(1, 3)] + 1, 3); S.put(f[(5, 3)] + 1, [bar])
    rd('pr', lambda ct: f'v[{PB+4*ct}:{PB+4*ct+3}]', vP1, 10240, f[(5, 3)] + 3, 2)
    rd('pr', lambda ct: f'v[{PB+20+4*ct}:{PB+23+4*ct}]', vP3, 0, f[(5, 3)] + 13, 2)
    S.spread([lambda a: a.wait(lg=st['pr'])] + [f'v_add_f32 v{PB+k}, v{PB+k}, v{PB+20+k}' for k in range(20)], f[(10, 3)], f[(13, 3)] + 8)
    ku = opt('ku', 6)
    fl = [f[k] for k in order]
    S.put(fl[ku] + 1, [lambda a: (a.e('s_mov_b32 exec_hi, 0'), st.__setitem__('ul', a.vm(ul)), a.e('s_mov_b32 exec_hi, -1'))])
    kc = ku + opt('kc', 12)
    S.put(fl[kc] + 1, [lambda a: (a.wait(vm=st['ul']), check_loop(a, ul, vFV, 32, sPC), stamp(a, 'uc'))])
    for ct in range(5):
        S.put(fl[kc + ct] + 3, [lambda a, ct=ct: st.__setitem__('uf', a.vm(f'buffer_load_dwordx4 {UF(ct)}, v{vUO[ct]}, {srd(SWS)}, s{sUo} offen sc1'))])
    for j in range(4): S.slots[f[(0, j)]]['pre'].insert(0, lambda a, j=j: stamp(a, f'l{j}'))
    S.slots[f[(1, 0)]]['pre'].insert(0, lambda a: stamp(a, 'e1'))
    assert not wq
    S.emit(a)
    stamp(a, 8)
    a.wait(lg=st['pr'])
    o = 96
    for ct in range(5):
        b = 76 + 4*ct
        for k in range(4): a.e(f'v_add_f32 v{b+k}, v{b+k}, v{PB+4*ct+k}')
        a.e(cvtpk(o+2*ct, b, b+1)); a.e(cvtpk(o+2*ct+1, b+2, b+3))
        ost = opt('ost', '')
        if ct == 1: a.vm(f'buffer_store_dwordx4 v[{o}:{o+3}], v{vG4}, {srd(SOUT)}, s{sGO} offen {ost}')
        if ct == 3: a.vm(f'buffer_store_dwordx4 v[{o+4}:{o+7}], v{vG4}, {srd(SOUT)}, s{sGO} offen offset:64 {ost}')
        if ct == 4: a.vm(f'buffer_store_dwordx2 v[{o+8}:{o+9}], v{vG2}, {srd(SOUT)}, s{sGO} offen offset:128 {ost}')
    if DBG == 3:
        a.wait_all()
        le = label('dbgskip')
        a.e(f's_memrealtime s[{sT+1}:{sT+2}]\ns_waitcnt lgkmcnt(0)')
        a.e(f's_cmp_lg_u32 s{sW}, 0\ns_cbranch_scc1 {le}')
        a.e(f's_cmp_eq_u32 s2, {opt("wgA", 8)}\ns_cselect_b32 s{sT}, 4, 0\ns_cmp_eq_u32 s2, {opt("wgB", 232)}\ns_cselect_b32 s{sT}, 32, s{sT}\ns_cmp_eq_u32 s{sT}, 0\ns_cbranch_scc1 {le}')
        for k in range(1, 7): a.e(f's_sub_u32 s{sT+3}, s{sTS+2*k}, s{sTS}\nv_mov_b32 v{15+k}, s{sT+3}')
        a.e(f's_sub_u32 s{sT+3}, s{sT+1}, s{sTS}\nv_mov_b32 v22, s{sT+3}\nv_mov_b32 v2, s{sT}\ns_mov_b64 exec, 1')
        a.e(f'global_store_dwordx4 v2, v[16:19], s[{sDBG}:{sDBG+1}]\nglobal_store_dwordx3 v2, v[20:22], s[{sDBG}:{sDBG+1}] offset:16')
        a.e(f'{le}:')
    elif DBG:
        a.wait_all()
        a.e(f'{"s_memtime" if DBG == 2 else "s_memrealtime"} s[{sT+1}:{sT+2}]\ns_waitcnt lgkmcnt(0)')
        for k in range(9): a.e(f'v_mov_b32 v{16+k}, s{sTS+2*k}')
        a.e(f'v_mov_b32 v25, s{sT+1}\nv_mov_b32 v26, 0\nv_mov_b32 v27, 0')
        a.e(f's_lshl_b32 s{sT}, s2, 2\ns_add_u32 s{sT}, s{sT}, s{sW}\ns_lshl_b32 s{sT}, s{sT}, 6\ns_add_u32 s{sT}, s{sT}, {TS_OFF}')
        a.e(f'v_mov_b32 v2, 0\ns_mov_b64 exec, 1')
        for k in range(3): a.e(f'buffer_store_dwordx4 v[{16+4*k}:{19+4*k}], v2, {srd(SWS)}, s{sT} offen offset:{16*k}')
    a.e('s_endpgm')

def build():
    a = Asm(); prologue(a)
    outs = [a]
    for nG in (4, 2):
        b = a.fork()
        if nG == 2: b.e('L_S:')
        build_type(b, T(nG)); outs.append(b)
    lines = []
    for o in outs: lines += o.finish()
    return lines + SLOW

hdr = open('cdna_kernels/%s.s.ref' % NAME).read().split('; Override launch')[0]
lines = build()
with open(sys.argv[1], 'w') as f:
    f.write(hdr)
    f.write(f'; @launch grid=(256,1,1) block=(256,1,1) lds={LDS_BYTES}\n')
    f.write('.amdgcn_target "amdgcn-amd-amdhsa--gfx950"\n.text\n')
    f.write(f'.globl {NAME}_kernel\n.p2align 8\n.type {NAME}_kernel,@function\n{NAME}_kernel:\n')
    for l in lines: f.write(('' if l.endswith(':') else '    ') + l + '\n')
    f.write('L_end:\n    s_endpgm\n')
    f.write('.p2align 8\n.type L_ftab,@object\nL_ftab:\n')
    tb = F_table()
    for i in range(0, len(tb), 8): f.write('.long ' + ', '.join('0x%08x' % x for x in tb[i:i+8]) + '\n')
    f.write('.fill 8192, 4, 0\n')
    f.write(f'''.section .rodata,"a"
.p2align 6
.amdhsa_kernel {NAME}_kernel
  .amdhsa_next_free_vgpr 512
  .amdhsa_next_free_sgpr 102
  .amdhsa_accum_offset 256
  .amdhsa_group_segment_fixed_size 0
  .amdhsa_kernarg_size 104
  .amdhsa_user_sgpr_count 2
  .amdhsa_user_sgpr_kernarg_segment_ptr 1
  .amdhsa_system_sgpr_workgroup_id_x 1
.end_amdhsa_kernel
''')
print('instructions:', len(lines))
```

```python
import sys, struct, copy, os
from asmlib import Asm
NAME = 'parallel_sum__spectral_fnet__dense_activation_squared_relu__prompt'
DBG = int(sys.argv[2]) if len(sys.argv) > 2 else 0
OPT = dict(kv.split('=') for kv in sys.argv[3:])
def opt(k, d): return type(d)(OPT.get(k, d))

H_OFF = 0; U_OFF = 0x6C0000; P_OFF = 0x940000; ST_OFF = 0xB5C000; F_OFF = 0xB68000; TS_OFF = 0xB88000; PF_OFF = 0xBA0000; HF_OFF = 0xBB0000; CS_OFF = 0xBD0000; WS_END = 0xC10000
OOB = 0x40000000
ARING = 0; BBASE = 65536; AUX = 131072; TAB = 161792; TABC = TAB; TABB = TAB + 512; TABR = TAB + 1024; TABA = TAB + 1536
XCH = 32768
RED_PITCH = 336; RED_WAVE = 64 * RED_PITCH
LDS_BYTES = 163840
SX, SW1, SW2, SWS, SOUT = 4, 8, 12, 16, 20
sB1, sB2, sDBG = 24, 26, 28
sW, sZ, sRB, sC8, sROW, sG0 = 30, 31, 32, 33, 34, 35
sA, sA2, sBo, sMA, sMB = 36, 37, 38, 39, 40
sT1, sC, sTAG, sONES = 41, 42, 43, 44
sT = 45
sH = [53, 54, 55, 56]; sFL = 57; sDT = 58; sAUXo = 59; sAUXs = 60; sTAU = 61; sW2o = 62; sH0 = 63; sH1 = 64; sUo = 65
sCW = 61+0*0 if False else 83; sGO = 82; sTS1 = 66; sPC = 51; sUS = 70; sE = 71
sAUXm = 3; sHB = [78, 79, 80, 81]
sRHO = 75; sWE = 76; sW4 = 77; sXCC = 66; sLOC = 67; sFH = 68; sWA = 59; sWB = 75; sCSo = 76
sKO = [36, 37, 38, 39, 40, 53, 54, 55, 56, 58, 59, 60, 63, 64]
sTS = 84
def srd(b): return f's[{b}:{b+3}]'
def fhex(x): return '0x%08x' % struct.unpack('<I', struct.pack('<f', x))[0]
XV = [False]
def X(ks): return f'v[{196+4*(ks%8)}:{199+4*(ks%8)}]' if XV[0] else f'a[{4*(ks%8)}:{4*(ks%8)+3}]'
def ACC1(i): return f'v[{32+16*i}:{47+16*i}]'
def WB(b, i, h=None):
    base = 96 + 16*b + 4*i if i < 4 else 184 + 4*b
    return f'v[{base}:{base+3}]' if h is None else f'v[{base+2*h}:{base+2*h+1}]'
aTW = 160; aF0 = 176; aSEL = 'a[192:195]'; aCS = 'a[196:199]'
def aF(k): return f'a[{aF0+4*k}:{aF0+4*k+3}]' if k < 4 else f'a[{152+4*(k-4)}:{155+4*(k-4)}]'
vL = 1
vOA = [2, 3]; vOB = [4, 5, 6, 7]; vAR = [8, 9, 10, 11]; vBR = [12, 13, 14, 15]
vT = 16
vST = 24
vNM, vSDV, vAL, vR = 24, 25, 26, 28
vNON = 28; vPF = 29; vHO = 30; vL16 = 31
vAUX = 160
def W2(slot, ct):
    if slot < 3: k, b = 'v', 196 + 20*slot + 4*ct
    elif slot < 5: k, b = 'a', 200 + 20*(slot-3) + 4*ct
    elif slot < 11: k, b = 'a', 32 + 20*(slot-5) + 4*ct
    elif slot == 11: k, b = 'a', (240 + 4*ct if ct < 4 else 152)
    elif slot == 12: k, b = 'a', (4*ct if ct < 4 else 156)
    else: k, b = 'a', (16 + 4*ct if ct < 4 else 196)
    return f'{k}[{b}:{b+3}]'
def UF(ct): return f'a[{176+4*ct}:{179+4*ct}]'
def ACC2(ct, rt): b = 16 + 20*rt + 4*ct; return f'v[{b}:{b+3}]'
RHO = opt('rho', 0)
RING = opt('ring', 10)
def HF(n): b = 96 + 4*(n % RING); return f'v[{b}:{b+3}]'

TSL = OPT.get('ts', '0,1,2,3,4,5,6,7,8').split(',')
def stamp(a, name):
    if str(name) not in TSL: return
    idx = TSL.index(str(name))
    if DBG: a.e(f'{"s_memtime" if DBG == 2 else "s_memrealtime"} s[{sTS+2*idx}:{sTS+2*idx+1}]')
def cvtpk(d, x, y): return f'v_cvt_pk_bf16_f32 v{d}, v{x}, v{y}'
uid = [0]
def label(p):
    uid[0] += 1; return f'L_{p}{uid[0]}'

class Sched:
    def __init__(self): self.slots = []
    def add(self, main, pre=()):
        self.slots.append({'pre': list(pre), 'main': main, 'fill': []}); return len(self.slots) - 1
    def put(self, idx, ops): self.slots[idx]['fill'] += list(ops)
    def spread(self, ops, first, last):
        ops = list(ops); n = last - first + 1
        for k, op in enumerate(ops):
            self.slots[first + min(n - 1, k * n // len(ops))]['fill'].append(op)
    def pack(self, ops, first, per):
        i = first
        for op in ops:
            while i < len(self.slots) - 1 and len(self.slots[i]['fill']) >= per: i += 1
            self.slots[i]['fill'].append(op)
        return i
    def emit(self, a, lo=0, hi=None):
        for s in self.slots[lo:hi]:
            for op in s['pre'] + [s['main']] + s['fill']:
                if op is None: continue
                if callable(op): op(a)
                else: a.e(op)
def L(text): return [t for t in text.split('\n') if t.strip()]

def mk_srd(b, lo, n):
    return f's_mov_b32 s{b}, s{lo}\ns_and_b32 s{b+1}, s{lo+1}, 0xffff\ns_mov_b32 s{b+2}, {n}\ns_mov_b32 s{b+3}, 0x20000'

def prologue(a):
    a.e('s_cmp_ge_u32 s2, 256\ns_cbranch_scc1 L_end')
    stamp(a, 0)
    a.e('s_load_dwordx2 s[66:67], s[0:1], 0')
    a.e('s_load_dwordx8 s[68:75], s[0:1], 48')
    a.e('s_load_dwordx4 s[76:79], s[0:1], 80')
    a.e('s_load_dwordx2 s[80:81], s[0:1], 96')
    a.e('s_getpc_b64 s[82:83]\nL_pc:')
    a.e('s_bfe_u32 s3, s2, 0x10003\ns_lshl_b32 s3, s3, 15\nv_lshl_add_u32 v2, v0, 7, s3')
    a.vm(f'global_load_dword v{vPF}, v2, s[82:83]')
    a.e('s_add_u32 s82, s82, L_ftab-L_pc\ns_addc_u32 s83, s83, 0')
    a.e(f'v_lshrrev_b32 v4, 6, v0\nv_and_b32 v{vL}, 63, v0\nv_readfirstlane_b32 s{sW}, v4')
    a.e(f's_bfe_u32 s{sZ}, s2, 0x10004')
    a.e(f's_and_b32 s{sT}, s2, 7\ns_bfe_u32 s{sT+1}, s2, 0x10003\ns_lshl_b32 s{sT}, s{sT}, 1')
    a.e(f's_add_u32 s{sRB}, s{sT}, s{sT+1}\ns_lshr_b32 s{sC8}, s2, 5')
    a.e(f's_sub_u32 s{sT+2}, 32, s{sRB}\ns_cmp_eq_u32 s{sRB}, 0\ns_cselect_b32 s{sT+2}, 16, s{sT+2}')
    a.e(f's_bitcmp1_b32 s{sW}, 1\ns_cselect_b32 s{sROW}, s{sT+2}, s{sRB}')
    a.e(f's_and_b32 s{sT+3}, s{sW}, 1\ns_lshl_b32 s{sT+3}, s{sT+3}, 5\ns_add_u32 s{sROW}, s{sROW}, s{sT+3}')
    a.e(f's_mov_b32 s{sAUXm}, s{sT+2}')
    a.e(f'v_lshrrev_b32 v{vT}, 3, v{vL}\nv_lshrrev_b32 v{vT+1}, 4, v{vL}\nv_and_b32 v{vT+2}, 7, v{vL}')
    a.e(f'v_xor_b32 v{vT+3}, v{vT+2}, v{vT+1}\ns_mov_b32 s{sT+4}, 81920\nv_mul_lo_u32 v{vT+4}, s{sT+4}, v{vT}')
    a.e(f'v_lshl_add_u32 v{vOA[0]}, v{vT+3}, 4, v{vT+4}\nv_xor_b32 v{vT+3}, 4, v{vT+3}')
    a.e(f'v_lshl_add_u32 v{vOA[1]}, v{vT+3}, 4, v{vT+4}\nv_add_u32 v{vOA[1]}, {8*81920-1024}, v{vOA[1]}')
    a.e(f's_mul_i32 s{sA}, s{sROW}, 1280\ns_add_u32 s{sA2}, s{sA}, {16*81920-2048}\ns_lshl_b32 s{sMA}, s{sW}, 12')
    a.e(f's_sub_u32 s{sT+5}, 6, s{sZ}\ns_cmp_ge_u32 s{sC8}, s{sT+5}\ns_cbranch_scc1 L_S')

class T:
    def __init__(self, nG):
        self.nG = nG; self.nD = 0 if nG == 4 else 2
        self.bslot = 4096 * nG
        self.pitch = 64 * nG
        self.DREG = 131072 if nG == 4 else 98304
        self.nb = nG

def prologue_t(a, t, st):
    if t.nG == 4:
        a.e(f's_mul_i32 s{sG0}, s{sZ}, 28\ns_lshl_b32 s{sT}, s{sC8}, 2\ns_add_u32 s{sG0}, s{sG0}, s{sT}')
        a.e(f'v_and_b32 v{vT+2}, 15, v{vL}\nv_lshlrev_b32 v{vT+3}, 2, v{vT+1}\nv_xor_b32 v{vT+2}, v{vT+2}, v{vT+3}')
        a.e(f's_movk_i32 s{sT+6}, 3456\nv_mul_u32_u24 v{vT+3}, s{sT+6}, v{vT+1}\nv_lshl_add_u32 v{vOB[0]}, v{vT+2}, 4, v{vT+3}')
        for i in range(1, 4): a.e(f'v_add_u32 v{vOB[i]}, {i*(4*3456-1024)}, v{vOB[0]}')
    else:
        a.e(f's_mul_i32 s{sG0}, s{sZ}, 26\ns_lshl_b32 s{sT}, s{sC8}, 1\ns_add_u32 s{sG0}, s{sG0}, s{sT}\ns_add_u32 s{sG0}, s{sG0}, 12')
        a.e(f's_mul_i32 s{sDT}, s{sZ}, 6\ns_add_u32 s{sDT}, s{sDT}, s{sT}\ns_sub_u32 s{sDT}, s{sDT}, 12')
        a.e(f'v_and_b32 v{vT+3}, 1, v{vT+1}\nv_lshlrev_b32 v{vT+3}, 2, v{vT+3}\nv_xor_b32 v{vT+2}, v{vT+2}, v{vT+3}')
        a.e(f's_movk_i32 s{sT+6}, 3456\nv_mul_u32_u24 v{vT+3}, s{sT+6}, v{vT}\nv_lshl_add_u32 v{vOB[0]}, v{vT+2}, 4, v{vT+3}')
        a.e(f'v_add_u32 v{vOB[1]}, {8*3456-1024}, v{vOB[0]}')
    a.e(f's_lshl_b32 s{sBo}, s{sG0}, 6\ns_mul_i32 s{sT}, s{sW}, {16*3456}\ns_add_u32 s{sBo}, s{sBo}, s{sT}')
    a.e(f's_mul_i32 s{sMB}, s{sW}, {1024*t.nb}\ns_add_u32 s{sMB}, s{sMB}, {BBASE}')
    a.e(f's_and_b32 s{sT}, s{sRB}, {opt("rot", 1)}\ns_mul_i32 s{sWA}, s{sT}, 640\ns_mul_i32 s{sT+1}, s{sT}, {320*3456}')
    a.e(f's_add_u32 s{sA}, s{sA}, s{sWA}\ns_add_u32 s{sA2}, s{sA2}, s{sWA}\ns_add_u32 s{sBo}, s{sBo}, s{sT+1}\ns_lshl_b32 s{sWA}, s{sWA}, 1')
    a.e(f's_lshl_b32 s{sT+1}, s{sG0}, 6\nv_and_b32 v{vT+6}, {16*t.nG-1}, v{vL}\nv_lshl_add_u32 v{vT+6}, v{vT+6}, 2, s{sT+1}')
    if t.nG == 4: run(a, roll_setup(t, opt('rn', 4)))
    stamp(a, 'p0')
    a.e('s_waitcnt lgkmcnt(0)')
    stamp(a, 'p1')

    a.vm(f'global_load_dword v{vT+7}, v{vT+6}, s[70:71]')
    a.e(f'v_bfe_u32 v{vT+5}, v{vL}, 0, 3\nv_mul_u32_u24 v{vT+5}, 0xa0, v{vT+5}')
    a.vm(f'global_load_dword v{vPF}, v{vT+5}, s[74:75]')
    a.e(mk_srd(SX, 66, 2048*1280)); a.e(mk_srd(SW1, 68, 640*3456))

def dma_ops(t, c, st):
    slot = c % 4
    ops = [f's_add_u32 m0, s{sMA}, {ARING + slot*16384}',
           f'buffer_load_dwordx4 v{vOA[0]}, {srd(SX)}, s{sA} offen {opt("ntx", "")} lds',
           f'buffer_load_dwordx4 v{vOA[1]}, {srd(SX)}, s{sA} offen offset:1024 {opt("ntx", "")} lds',
           f'buffer_load_dwordx4 v{vOA[0]}, {srd(SX)}, s{sA2} offen offset:2048 {opt("ntx", "")} lds',
           f'buffer_load_dwordx4 v{vOA[1]}, {srd(SX)}, s{sA2} offen offset:3072 {opt("ntx", "")} lds',
           f's_add_u32 m0, s{sMB}, {slot*t.bslot}\ns_add_u32 s{sA}, s{sA}, 128\ns_add_u32 s{sA2}, s{sA2}, 128']
    for i in range(t.nb):
        ops.append(f'buffer_load_dwordx4 v{vOB[i]}, {srd(SW1)}, s{sBo} offen offset:{1024*i} {opt("ntw", "")} lds')
    def last(a):
        st['dma'][c] = a.vm_issued
        a.e(f's_add_u32 s{sBo}, s{sBo}, {64*3456}')
        if c == 4: a.e(f's_sub_u32 s{sA}, s{sA}, s{sWA}\ns_sub_u32 s{sA2}, s{sA2}, s{sWA}\ns_mul_i32 s{sPC}, s{sWA}, {3456//2}\ns_sub_u32 s{sBo}, s{sBo}, s{sPC}')
    ops.append(last)
    return ops
def run(a, ops):
    for op in ops:
        if callable(op): op(a)
        else: a.e(op)

vAO = 128
vPK = 140; vSD = 160
sPo = 58; sPs = 62; sPf = 64; sSo = 60; sSs = 65
def aux_setup(a):
    q = 184
    a.e(f's_mul_i32 s{sT}, s{sZ}, 6\ns_add_u32 s{sT}, s{sT}, s{sC8}\ns_lshl_b32 s{sT}, s{sT}, 2\ns_add_u32 s{sT}, s{sT}, s{sW}')
    a.e(f's_mul_i32 s{sT+1}, s{sRB}, 27\ns_add_u32 s{sT+1}, s{sT+1}, s{sT}')
    a.e(f's_lshr_b32 s{sT+2}, s{sT+1}, 3\ns_and_b32 s{sT+3}, s{sT+1}, 7\ns_mul_i32 s{sPo}, s{sT+2}, 40960\ns_mul_i32 s{sT+5}, s{sT+3}, 160\ns_add_u32 s{sPo}, s{sPo}, s{sT+5}')
    a.e(f's_mul_i32 s{sPs}, s{sT+3}, 54\ns_add_u32 s{sPs}, s{sPs}, s{sT+2}\ns_mul_i32 s{sPs}, s{sPs}, 5120\ns_add_u32 s{sPs}, s{sPs}, {P_OFF}')
    a.e(f's_lshl_b32 s{sPf}, s{sT+1}, 7\ns_add_u32 s{sPf}, s{sPf}, {PF_OFF}')
    a.e(f's_cmp_lt_u32 s{sT}, 27\ns_cselect_b32 s{sT+4}, 0, {OOB}\ns_cselect_b32 s{sPo}, s{sPo}, 0')
    for i in range(5):
        a.e(f'v_add_u32 v{q}, {64*i}, v{vL}\nv_mul_u32_u24 v{q+1}, 0x667, v{q}\nv_lshrrev_b32 v{q+1}, 14, v{q+1}\nv_mul_u32_u24 v{q+1}, 0x460, v{q+1}')
        if i == 0: a.e(f'v_lshl_add_u32 v{vAO+9}, v{vL}, 4, s{sT+4}')
        a.e(f'v_add_u32 v{vAO+i}, v{vAO+9}, v{q+1}')
    a.e(f'v_add_u32 v{vAO+4}, 0x1000, v{vAO+4}')
    a.e(f's_sub_u32 s{sT}, s{sT}, 12\ns_cmp_lt_u32 s{sT}, 32\ns_cselect_b32 s{sT+4}, 0, {OOB}\ns_cselect_b32 s{sT}, s{sT}, 0')
    a.e(f's_bitcmp1_b32 s{sT}, 4\ns_cselect_b32 s{sT+2}, s{sAUXm}, s{sRB}')
    a.e(f's_bfe_u32 s{sT+3}, s{sT}, 0x10003\ns_lshl_b32 s{sT+3}, s{sT+3}, 5\ns_add_u32 s{sT+2}, s{sT+2}, s{sT+3}\ns_and_b32 s{sT+3}, s{sT}, 7\ns_lshl_b32 s{sT+3}, s{sT+3}, 8\ns_add_u32 s{sT+2}, s{sT+2}, s{sT+3}\ns_mul_i32 s{sSo}, s{sT+2}, 1280')
    a.e(f's_lshl_b32 s{sT+2}, s{sRB}, 5\ns_add_u32 s{sT+2}, s{sT+2}, s{sT}\ns_lshl_b32 s{sSs}, s{sT+2}, 6\ns_add_u32 s{sSs}, s{sSs}, {ST_OFF}')
    a.e(f'v_lshrrev_b32 v{q}, 4, v{vL}\ns_mov_b32 s{sT+5}, 81920\nv_mul_lo_u32 v{q+1}, s{sT+5}, v{q}\nv_and_b32 v{q+2}, 15, v{vL}\nv_lshlrev_b32 v{q+2}, 4, v{q+2}\nv_add3_u32 v{vAO+7}, v{q+2}, v{q+1}, s{sT+4}')
    a.e(f'v_lshl_add_u32 v{vAO+8}, v{q}, 4, s{sT+4}')
    a.e(f's_mul_i32 s{sAUXm}, s{sW}, 5120\ns_add_u32 s{sAUXm}, s{sAUXm}, {AUX}')
def aux_setup2(a):
    q = 184
    a.e(f'v_lshrrev_b32 v{q}, 5, v{vL}\nv_lshlrev_b32 v{q}, 4, v{q}\nv_bfe_u32 v{q+1}, v{vL}, 4, 1\nv_lshl_add_u32 v{q}, v{q+1}, 2, v{q}')
    a.e(f'v_bfe_u32 v{q+1}, v{vL}, 2, 2\nv_add_u32 v{q}, v{q}, v{q+1}\nv_mul_u32_u24 v{q}, 160, v{q}\nv_add_u32 v{q}, s{sAUXm}, v{q}')
    a.e(f'v_and_b32 v{q+1}, 3, v{vL}\nv_lshl_add_u32 v{vAO+5}, v{q+1}, 4, v{q}\nv_lshl_add_u32 v{vAO+6}, v{q+1}, 3, v{q}')

def unc_vm(text):
    def op(a): a.e(text); a.vm_issued -= 1
    return op
def unc_lg(text):
    def op(a): a.e(text); a.lg_issued -= 1
    return op
def pack_dma(st):
    o = []
    for i in range(5):
        def op(a, i=i):
            if i in (0, 4): a.e(f's_add_u32 m0, s{sAUXm}, {4096 if i else 0}')
            st['pk'] = a.vm(f'buffer_load_dwordx4 v{vAO+i}, {srd(SW2)}, s{sPo} offen offset:{(1024*i)%4096} {opt("ntp", "")} lds')
        o.append(op)
    return o
def pack_reads(st):
    o = [lambda a: a.wait(vm=st['pk'])]
    for ct in range(5):
        for h in range(2):
            t = (f'ds_read_b64_tr_b16 v[{vPK+4*ct+2*h}:{vPK+4*ct+2*h+1}], v{vAO+5} offset:{(ct>>1)*64+(ct&1)*8+h*1280}' if ct < 4 else
                 f'ds_read_b64_tr_b16 v[{vPK+4*ct+2*h}:{vPK+4*ct+2*h+1}], v{vAO+6} offset:{128+h*1280}')
            o.append(lambda a, t=t, ct=ct: st.__setitem__(('pr', ct), a.lg(t)))
    return o
def pack_stores(st):
    o = []
    for ct in range(5):
        def op(a, ct=ct):
            a.wait(lg=st[('pr', ct)])
            if ct == 4: a.e(f's_add_u32 s{sPs}, s{sPs}, 4096')
            st['ps'] = a.vm(f'buffer_store_dwordx4 v[{vPK+4*ct}:{vPK+4*ct+3}], v{vAO+9}, {srd(SWS)}, s{sPs} offen offset:{(1024*ct)%4096} sc1')
        o.append(op)
    return o
def aux_publish(st):
    g = 186
    def op(a):
        a.e(f'v_mov_b32 v{g+3}, s{sTAG}\ns_mov_b32 exec_lo, 0x00010001\ns_mov_b32 exec_hi, 0x00010001')
        a.vm(f'buffer_store_dwordx4 v[{g}:{g+3}], v{vAO+8}, {srd(SWS)}, s{sSs} offen sc1')
        a.wait(vm=st['ps'])
        a.e('s_mov_b64 exec, 1')
        a.vm(f'buffer_store_dword v{g+3}, v{vAO+9}, {srd(SWS)}, s{sPf} offen sc1')
        a.e('s_mov_b64 exec, -1'); stamp(a, 'pf')
    return op
def stats_loads(st):
    return [lambda a, i=i: st.__setitem__('sl', a.vm(f'buffer_load_dwordx4 v[{vSD+4*i}:{vSD+4*i+3}], v{vAO+7}, {srd(SX)}, s{sSo} offen offset:{256*i}')) for i in range(5)]
def stats_proc(st):
    q = 180; g = 186; d = vSD
    o = [lambda a: a.wait(vm=st['sl']), f's_mov_b32 s{sT}, 0xbf803f80']
    o += [f'v_mov_b32 v{q+k}, 0' for k in range(3)]
    o += [f'v_dot2c_f32_bf16 v{q}, s{sONES}, v{d+r}\nv_dot2c_f32_bf16 v{q+1}, v{d+r}, v{d+r}\nv_dot2c_f32_bf16 v{q+2}, s{sT}, v{d+r}' for r in range(20)]
    for sh in (8, 4, 2, 1):
        o += [f'v_add_f32_dpp v{q+k}, v{q+k}, v{q+k} row_ror:{sh} row_mask:0xf bank_mask:0xf' for k in range(3)]
    o += L(f'v_mul_f32 v{q}, {fhex(1/640)}, v{q}\nv_mul_f32 v{q+1}, {fhex(1/640)}, v{q+1}')
    o += L(f'v_fma_f32 v{q+1}, -v{q}, v{q}, v{q+1}\nv_max_f32 v{q+1}, 0, v{q+1}\nv_add_f32 v{q+1}, {fhex(1e-5)}, v{q+1}')
    o += L(f'v_rsq_f32 v{q+3}, v{q+1}\nv_sqrt_f32 v{g+1}, v{q+1}\nv_sub_f32 v{g}, 0, v{q}\nv_mul_f32 v{g+2}, v{q+2}, v{q+3}')
    return o

def nonce_pub(a):
    if opt('wsb', 0): a.e(f's_add_u32 s80, s80, {opt("wsb", 0) << 20}\ns_addc_u32 s81, s81, 0')
    a.e(mk_srd(SWS, 80, WS_END)); a.e(mk_srd(SOUT, 76, 2048*1280))
    a.e(f's_mov_b64 s[{sB1}:{sB1+1}], s[70:71]\ns_mov_b64 s[{sB2}:{sB2+1}], s[74:75]\ns_mov_b64 s[{sDBG}:{sDBG+1}], s[78:79]')
    ln = label('non')
    a.e(f's_or_b32 s{sT}, s2, s{sW}\ns_cmp_lg_u32 s{sT}, 0\ns_cbranch_scc1 {ln}')
    a.e(f's_memrealtime s[{sT+1}:{sT+2}]\ns_waitcnt lgkmcnt(0)\ns_or_b32 s{sT}, s{sT+1}, 1')
    a.e(f'v_mov_b32 v{vT}, 0\nv_mov_b32 v{vT+1}, s{sT}')
    a.e(f'global_store_dword v{vT}, v{vT+1}, s[{sDBG}:{sDBG+1}] sc1'); a.vm_issued -= 1
    a.e(f'{ln}:')

def setup2(a, t):
    a.e(f's_mov_b32 s{sONES}, 0x3f803f80')
    a.e(f's_sub_u32 s{sT+2}, 32, s{sRB}\ns_cmp_eq_u32 s{sRB}, 0\ns_cselect_b32 s{sT+2}, 16, s{sT+2}')
    a.e(f's_cmp_eq_u32 s{sZ}, 1\ns_cselect_b32 s{sT1}, s{sT+2}, s{sRB}\ns_mov_b32 s{sC}, s{sC8}')
    a.e(f's_mul_i32 s{sTAU}, s{sW}, 14\ns_cmp_eq_u32 s{sW}, 3\ns_cselect_b32 s{sTAU}, 41, s{sTAU}')
    a.e(f'v_and_b32 v{vT}, 31, v{vL}\nv_lshrrev_b32 v{vT+1}, 5, v{vL}')
    a.e(f'v_bfe_u32 v{vT+2}, v{vL}, 1, 3\nv_xor_b32 v{vT+2}, v{vT+2}, v{vT+1}')
    a.e(f'v_lshlrev_b32 v{vT+3}, 7, v{vT}\nv_add_u32 v{vT+3}, s{sMA}, v{vT+3}\nv_lshl_add_u32 v{vAR[0]}, v{vT+2}, 4, v{vT+3}')
    for s in range(1, 4): a.e(f'v_xor_b32 v{vAR[s]}, {s<<5}, v{vAR[0]}')
    a.e(f'v_bfe_u32 v{vT+4}, v{vL}, 2, 2\nv_lshl_add_u32 v{vT+2}, v{vT+1}, 3, v{vT+4}\nv_mul_u32_u24 v{vT+2}, {t.pitch}, v{vT+2}')
    a.e(f'v_bfe_u32 v{vT+3}, v{vL}, 4, 1\nv_lshl_add_u32 v{vT+2}, v{vT+3}, 5, v{vT+2}')
    a.e(f'v_and_b32 v{vT+3}, 3, v{vL}\nv_lshl_add_u32 v{vT+2}, v{vT+3}, 3, v{vT+2}\nv_add_u32 v{vT+2}, {BBASE}, v{vT+2}')
    if t.nG == 2: a.e(f'v_lshrrev_b32 v{vT+4}, 1, v{vT+4}')
    for i in range(t.nG):
        a.e(f's_add_u32 s{sT}, s{sW}, {i}\ns_and_b32 s{sT}, s{sT}, {t.nG-1}')
        a.e(f'v_xor_b32 v{vT+3}, s{sT}, v{vT+4}\nv_lshl_add_u32 v{vBR[i]}, v{vT+3}, 6, v{vT+2}')
        a.e(f's_mul_i32 s{sH[i]}, s{sROW}, 54\ns_add_u32 s{sH[i]}, s{sH[i]}, s{sG0}\ns_add_u32 s{sH[i]}, s{sH[i]}, s{sT}\ns_lshl_b32 s{sH[i]}, s{sH[i]}, 11')
    a.e(f's_lshl_b32 s{sFL}, s2, 2\ns_add_u32 s{sFL}, s{sFL}, s{sW}\ns_lshl_b32 s{sFL}, s{sFL}, 7\ns_add_u32 s{sFL}, s{sFL}, {F_OFF}')
    a.e(f'v_and_b32 v{vT}, 15, v{vL}\nv_bfe_u32 v{vT+1}, v{vL}, 4, 1\nv_mov_b32 v{vT+2}, s{sONES}\nv_cmp_eq_u32 vcc, v{vT}, v{vT+1}\nv_cndmask_b32 v{vT+2}, 0, v{vT+2}, vcc')
    for k in range(4): a.e(f'v_accvgpr_write_b32 a{192+k}, v{vT+2}')
    a.e(f'v_lshlrev_b32 v{vL16}, 4, v{vL}')
    a.e(f'v_lshlrev_b32 v{vHO}, 10, v{vT+1}\nv_lshrrev_b32 v{vT+1}, 5, v{vL}\nv_lshl_add_u32 v{vHO}, v{vT+1}, 8, v{vHO}\nv_lshl_add_u32 v{vHO}, v{vT}, 4, v{vHO}')

vSG = 244
def gen_D(a, t, tmp):
    q = tmp
    a.e(f'v_and_b32 v{q}, 31, v{vL}\nv_lshrrev_b32 v{q+1}, 5, v{vL}\nv_lshlrev_b32 v{q+1}, 3, v{q+1}\nv_and_b32 v{q+3}, 1, v{vL}')
    a.e(f'v_cmp_eq_u32 vcc, 0, v{q+3}\nv_cndmask_b32 v{q+2}, 0, 0.5, vcc\nv_cndmask_b32 v{vSG}, 1.0, -1.0, vcc')
    a.e(f's_cmp_eq_u32 s{sWA}, 0\ns_cselect_b32 s{sT}, 1.0, 0\nv_mul_f32 v{q+2}, s{sT}, v{q+2}')
    a.e(f's_mul_i32 s{sT+1}, s{sW}, {5*2048}\ns_add_u32 s{sT+1}, s{sT+1}, {t.DREG}\nv_add_u32 v{q+3}, s{sT+1}, v{vL16}')
    a.e(f's_lshl_b32 s{sT}, s{sDT}, 4\ns_add_u32 s{sT}, s{sT}, 1\nv_add_u32 v{q+4}, s{sT}, v{q}\nv_cvt_f32_u32 v{q+4}, v{q+4}\nv_mul_f32 v{q+4}, {fhex(1/640)}, v{q+4}')
    for k5 in range(5):
        a.e(f's_mul_i32 s{sT}, s{sW}, 5\ns_add_u32 s{sT}, s{sT}, {k5}\ns_and_b32 s{sT+2}, s{sT}, 1\ns_lshr_b32 s{sT}, s{sT}, 1\ns_lshl_b32 s{sT}, s{sT}, 5\ns_add_u32 s{sT}, s{sT}, s{sT+2}')
        o = q + 8
        a.e(f'v_add_u32 v{q+6}, s{sT}, v{q+1}\nv_cvt_f32_u32 v{q+6}, v{q+6}\nv_fma_f32 v{o}, v{q+6}, v{q+4}, v{q+2}')
        for i in range(1, 8): a.e(f'v_fmamk_f32 v{o+i}, v{q+4}, {fhex(float(16*(i>>2) + 2*(i&3)))}, v{o}')
        for i in range(8): a.e(f'v_cos_f32 v{o+8+i}, v{o+i}\nv_sin_f32 v{o+i}, v{o+i}')
        for ip in range(4): a.e(cvtpk(o+8+ip, o+8+2*ip, o+9+2*ip))
        a.lg(f'ds_write_b128 v{q+3}, v[{o+8}:{o+11}] offset:{(k5*2)*1024}')
        for ip in range(4): a.e(cvtpk(o+16+ip, o+2*ip, o+1+2*ip))
        a.lg(f'ds_write_b128 v{q+3}, v[{o+16}:{o+19}] offset:{(k5*2+1)*1024}')

import math
def bf16(x):
    u = struct.unpack('<I', struct.pack('<f', x))[0]
    return ((u + 0x7fff + ((u >> 16) & 1)) >> 16) & 0xffff
def F_table():
    w = []
    for fn in (math.cos, math.sin, lambda x: -math.sin(x)):
        for f in range(2):
            for l in range(64):
                t1 = l & 31; hi = l >> 5
                v = [bf16(round(fn(2*math.pi*((t1*(16*f + 8*(i >> 2) + 4*hi + (i & 3))) % 32)/32), 12)) for i in range(8)]
                w += [v[2*k] | (v[2*k+1] << 16) for k in range(4)]
    return w
def load_F():
    return [f'global_load_dwordx4 {aF(k)}, v{vL16}, s[82:83] offset:{1024*k}' for k in range(4)] + ['s_add_u32 s82, s82, 4096\ns_addc_u32 s83, s83, 0'] + [f'global_load_dwordx4 {aF(4+k)}, v{vL16}, s[82:83] offset:{1024*k}' for k in range(2)]

def rot_ids(a):
    for j in range(4):
        a.e(f's_add_u32 s{sT}, s{sW}, {1+j}\ns_and_b32 s{sT+1}, s{sT}, 1\ns_bfe_u32 s{sT}, s{sT}, 0x10001')
        a.e(f's_lshl_b32 s{sT}, s{sT}, 5\ns_add_u32 s{sT}, s{sT}, s{sT1}\ns_lshl_b32 s{sT+1}, s{sT+1}, 10\ns_add_u32 s{sHB[j]}, s{sT}, s{sT+1}')
def gen_TW(a, t, sT=sT):
    a.e(f'v_and_b32 v{t}, 15, v{vL}\nv_lshrrev_b32 v{t+1}, 4, v{vL}\ns_lshl_b32 s{sT}, s{sW}, 2\nv_add_u32 v{t+1}, s{sT}, v{t+1}')
    a.e(f'v_sub_u32 v{t+2}, 32, v{t+1}\nv_cmp_eq_u32 vcc, 0, v{t+1}\nv_cndmask_b32 v{t+2}, v{t+2}, 16, vcc')
    a.e(f's_mov_b32 s{sT+1}, 0x3a000000')
    a.e(f's_cmp_ge_u32 s{sC}, 4\ns_cselect_b32 s{sT+1}, s{sT+1}, 0xba000000')
    a.e(f'v_cvt_f32_u32 v{t+1}, v{t+1}\nv_cvt_f32_u32 v{t+2}, v{t+2}\nv_add_f32 v{t+3}, {fhex(32.0)}, v{t+1}\nv_add_f32 v{t+4}, {fhex(32.0)}, v{t+2}')
    s2r = [t+1, t+3, t+2, t+4]
    a.e(f'v_lshlrev_b32 v{t}, 6, v{t}')
    for j in range(4):
        a.e(f'v_add_u32 v{t+5}, s{sHB[j]}, v{t}\nv_cvt_f32_u32 v{t+5}, v{t+5}\nv_mul_f32 v{t+5}, s{sT+1}, v{t+5}')
        for w in range(4): a.e(f'v_mul_f32 v{t+6+w}, v{t+5}, v{s2r[w]}')
        for w in range(4): a.e(f'v_cos_f32 v{t+10+w}, v{t+6+w}\nv_sin_f32 v{t+6+w}, v{t+6+w}')
        for w in range(4): a.e(cvtpk(t+6+w, t+10+w, t+6+w))
        for w in range(4): a.e(f'v_accvgpr_write_b32 a{aTW+4*j+w}, v{t+6+w}')

def check_loop(a, load_text, vval, nl, cnt):
    ok, lp = label('ok'), label('lp')
    if nl < 64: a.e(f's_mov_b32 exec_lo, {hex(((1<<nl)-1)&0xffffffff)}\ns_mov_b32 exec_hi, {hex(((1<<nl)-1)>>32)}')
    a.e(f'v_cmp_ne_u32 vcc, s{sTAG}, v{vval}\ns_mov_b32 s{cnt}, 0\ns_cbranch_vccz {ok}')
    a.e(f'{lp}:\ns_sleep {opt("slp", 1)}')
    a.e(load_text); a.vm_issued -= 1
    a.e(f's_waitcnt vmcnt(0)\nv_cmp_ne_u32 vcc, s{sTAG}, v{vval}\ns_add_u32 s{cnt}, s{cnt}, 1\ns_cmp_gt_u32 s{cnt}, 100000\ns_cbranch_scc1 {ok}\ns_cbranch_vccnz {lp}')
    a.e(f'{ok}:')
    if nl < 64: a.e('s_mov_b64 exec, -1')

def nonce_check(a, tok):
    ok, lp = label('nok'), label('nlp')
    a.wait(vm=tok)
    a.e(f'v_readfirstlane_b32 s{sTAG}, v{vNON}\ns_mov_b32 s{sPC}, 0\ns_cmp_lg_u32 s{sTAG}, 0\ns_cbranch_scc1 {ok}')
    a.e(f'{lp}:\nv_mov_b32 v{vNON}, 0')
    a.e(f'global_load_dword v{vNON}, v{vNON}, s[{sDBG}:{sDBG+1}] sc1'); a.vm_issued -= 1
    a.e(f's_waitcnt vmcnt(0)\nv_readfirstlane_b32 s{sTAG}, v{vNON}\ns_add_u32 s{sPC}, s{sPC}, 1\ns_cmp_gt_u32 s{sPC}, 100000\ns_cbranch_scc1 {ok}')
    a.e(f's_cmp_eq_u32 s{sTAG}, 0\ns_cbranch_scc1 {lp}\n{ok}:')

SLOW = []
def adapt(a, text):
    return a.vm(text + ' sc1')
def set_flag_h(a, vt):
    a.e(f'v_mov_b32 v{vt}, 0\nv_mov_b32 v{vt+1}, s{sTAG}\ns_mov_b64 exec, 1')
    adapt(a, f'buffer_store_dword v{vt+1}, v{vt}, {srd(SWS)}, s{sFH} offen')
    a.e('s_mov_b64 exec, -1')
def set_flag(a, word, vt):
    a.e(f'v_mov_b32 v{vt}, {4*word}\nv_mov_b32 v{vt+1}, s{sTAG}\ns_mov_b64 exec, 1')
    a.vm(f'buffer_store_dword v{vt+1}, v{vt}, {srd(SWS)}, s{sFL} offen sc1')
    a.e('s_mov_b64 exec, -1')

def w2_load_ops(slot, st, cts=range(5)):
    ops = []
    for ct in cts:
        def op(a, ct=ct):
            vo = st['vL16d'] if slot == 13 else st.get('vW', vL16)
            if slot >= 14 - opt('now2', 0):
                st['w2'][(slot, ct)] = 0; return
            need = 5120*slot + (4096 if ct == 4 else 0)
            if st.get('w2cur') != need: a.e(f's_add_u32 s{sW2o}, s{sUS}, {need}'); st['w2cur'] = need
            st['w2'][(slot, ct)] = a.vm(f'buffer_load_dwordx4 {W2(slot,ct)}, v{vo}, {srd(SWS)}, s{sW2o} offen offset:{(1024*ct)%4096} sc1')
        ops.append(op)
    return ops

vDS = 195
def P2(d, h): return f'v[{128+32*d+16*h}:{143+32*d+16*h}]'
def PE(p, par): b = 228 + 8*(p & 1) + 4*par; return b
def pass1(a, t, st):
    nG = t.nG; NK = 40 if nG == 4 else 42
    def dinfo(ks): return (ks & 1, (ks - 2) >> 1) if (nG == 2 and ks >= 2) else None
    def rdW(ks, i):
        c, s = divmod(ks, 4); o = []
        if i < nG:
            if ks >= 40: return []
            for h in range(2):
                o.append(lambda a, h=h: st['w'].__setitem__((ks, i), a.lg(f'ds_read_b64_tr_b16 {WB(ks&1,i,h)}, v{vBR[i]} offset:{(c%4)*t.bslot + s*16*t.pitch + h*4*t.pitch}')))
        elif dinfo(ks):
            d, p = dinfo(ks)
            o.append(lambda a: st['w'].__setitem__((ks, i), a.lg(f'ds_read_b128 {WB(ks&1,i)}, v{vDS} offset:{(((p%10)*2 + i-2)*2 + d)*1024}')))
        return o
    def rdA(c, s):
        return f'ds_read_b128 {X(4*c+s)}, v{vAR[s]} offset:{ARING + (c%4)*16384}'
    st['w'] = {}
    if nG == 2: a.e(f'v_add_u32 v{vDS}, {t.DREG}, v{vL16}\ns_mov_b32 s{sE+2}, 0x05040100\ns_mov_b32 s{sE+3}, 0x07060302')
    a.wait(vm=st['dma'][0], lg=a.lg_issued)
    a.e('s_barrier')
    stamp(a, 2)
    a.e(rdA(0, 0))
    for i in range(4): run(a, rdW(0, i))
    for s in range(1, 4): a.e(rdA(0, s))
    S = Sched(); first = {}
    for ks in range(NK):
        c, s = divmod(ks, 4); buf = ks & 1
        for i in range(4):
            pre = []
            if i == 0 and s == 3 and c < 9:
                pre.append(lambda a, c=c: (a.wait(vm=st['dma'][c+1]), a.e('s_barrier')))
            if i in (0, 2):
                pre.append(lambda a, ks=ks, i=i: a.wait(lg=st['w'][(ks, i+1)]) if (ks, i+1) in st['w'] else None)
            m = None
            if i < nG:
                if ks < 40: m = f'v_mfma_f32_32x32x16_bf16 {ACC1(i)}, {WB(buf,i)}, {X(ks)}, {"0" if ks == 0 else ACC1(i)}'
            elif dinfo(ks):
                d, p = dinfo(ks); b = PE(p, i-2)
                m = f'v_mfma_f32_32x32x16_bf16 {P2(d, i-2)}, v[{b}:{b+3}], {WB(buf,i)}, {"0" if p == 0 else P2(d, i-2)}'
            idx = S.add(m, pre)
            if i == 0: first[ks] = idx
            if i == 0 and ks < 20: S.put(idx, [f'v_mfma_f32_16x16x32_bf16 {aCS}, {aSEL}, {WB(buf,0)}, {"0" if ks == 0 else aCS}'])
        if ks < NK - 1:
            rd = [rdA(c+1, 0)] if (s == 3 and c < 9) else []
            k = len(rd)
            for i in range(4): rd += rdW(ks+1, i)
            if nG == 4: S.put(first[ks], rd[:k+3]); S.put(first[ks]+1, rd[k+3:7]); S.put(first[ks]+2, rd[7:])
            else: S.put(first[ks], rd[:k+3]); S.put(first[ks]+1, rd[k+3:])
            if s == 3 and c < 9: S.put(first[ks]+3, [rdA(c+1, 1)])
            if s == 0 and 0 < c < 10: S.put(first[ks]+3, [rdA(c, 2), rdA(c, 3)])
        if nG == 2 and ks & 1 and ks < 40:
            p = ks >> 1; xa = 196 + 4*((ks-1) % 8); xb = 196 + 4*(ks % 8)
            pm = []
            for par in range(2):
                for k, src in enumerate((xa, xa+2, xb, xb+2)): pm.append(f'v_perm_b32 v{PE(p,par)+k}, v{src+1}, v{src}, s{sE+2+par}')
            S.put(first[ks]+2, pm[:4]); S.put(first[ks]+3, pm[4:])
    if nG == 2:
        for d in range(2): S.spread([f'v_mul_f32 v{128+32*d+k}, v{vSG}, v{128+32*d+k}' for k in range(32)], first[21+d]+1, first[22+d]+1)
    gaps = []
    for ks in range(40):
        gaps += [(ks, first[ks]), (ks, first[ks]+2)] + ([(ks, first[ks]+3)] if ks < opt('ncu', 6) else [])
    gi = 0
    for c in range(st['next_chunk'], 10):
        ops = dma_ops(t, c, st)
        A = ops[1:5]; B = ops[6:-1]
        eA = (c-3)*4 if c >= 4 else 0
        eB = (c-2)*4 - 1 if c >= 4 else 0
        lo = max(0, (c - opt('la', 2) - 1)*4 + 1)
        for k, op in enumerate(A + B):
            e = max(eA if k < 4 else eB, lo)
            while gaps[gi][0] < e: gi += 1
            pre = [ops[0]] if k == 0 else ([ops[5]] if k == 4 else [])
            post = [ops[-1]] if k == 3 + len(B) else []
            g = gaps[gi][1]
            if pre: S.put(g - 1 if g > 0 else g, pre)
            if k == 0: st.setdefault('grp', {})[c] = (g - 1 if g > 0 else g, pre[0], gaps[gi][0])
            S.put(g, [op] + post); gi += 1
        assert gaps[gi-1][0] < c*4 - 1, (c, gaps[gi-1])
    return S, first

AUGW = None
def h_aug_x(tmp):
    p, q2 = tmp+4, tmp+5
    o = [cvtpk(p, vNM, vSDV), f'v_lshlrev_b32 v{tmp+6}, 16, v{p}', f'v_and_b32 v{tmp+7}, 0xffff0000, v{p}',
         f'v_sub_f32 v{tmp+6}, v{vNM}, v{tmp+6}', f'v_sub_f32 v{tmp+7}, v{vSDV}, v{tmp+7}', cvtpk(q2, tmp+6, tmp+7)]
    o += [f'v_mov_b32 v{tmp+k}, 0' for k in range(4)]
    o += [f's_mov_b32 s{sT+3}, 0x05040100\ns_mov_b32 exec_hi, 0\nv_perm_b32 v{tmp}, v{q2}, v{p}, s{sT+3}\nv_mov_b32 v{tmp+1}, v{p}\nv_lshrrev_b32 v{tmp+2}, 16, v{q2}\ns_mov_b32 exec_hi, -1']
    return o
def h_aug_w(st, i, tmp, vtb):
    b = AUGW[i]
    rd = [lambda a: st['tb'].__setitem__(i, a.lg(f'ds_read2_b32 v[{b+4}:{b+5}], v{vtb} offset0:0 offset1:128'))]
    mk = [lambda a: a.wait(lg=st['tb'][i]), cvtpk(b, b+4, b+4), cvtpk(b+2, b+5, b+5), f'v_and_b32 v{b+1}, 0xffff0000, v{b}', f'v_mov_b32 v{b+3}, 0',
          f'v_sub_f32 v{b+1}, v{b+4}, v{b+1}', cvtpk(b+1, b+1, b+5)]
    mf = [f'v_mfma_f32_32x32x16_bf16 {ACC1(i)}, v[{b}:{b+3}], v[{tmp}:{tmp+3}], {ACC1(i)}']
    return rd, mk, mf
def h_fin(st, i, u):
    acc = 32 + 16*i + 8*u; o = []
    for k in range(8): o.append(f'v_max_f32 v{acc+k}, 0, v{acc+k}')
    for k in range(8): o.append(f'v_mul_f32 v{acc+k}, v{vR}, v{acc+k}')
    for k in range(8): o.append(f'v_mul_f32 v{acc+k}, v{acc+k}, v{acc+k}')
    for k in range(4): o.append(cvtpk(acc+k, acc+2*k, acc+2*k+1))
    if opt('nohst', 0): o.append(lambda a: st.__setitem__('hst', a.vm_issued))
    else: o.append(lambda a: st.__setitem__('hst', adapt(a, f'buffer_store_dwordx4 v[{acc}:{acc+3}], v{vHO}, {srd(SWS)}, s{sH[i]} offen offset:{512*u}')))
    return o

class Rec:
    def __init__(self): self.ops = []; self.tok = {}
    def e(self, text):
        ls = L(text); i = 0
        while i < len(ls):
            j = i + 1
            if ls[i].startswith('s_cmp') or ls[i].startswith('s_bitcmp') or ls[i].startswith('v_cmp'):
                while j < len(ls) and not (ls[j].startswith('s_cselect') or ls[j].startswith('s_cbranch') or ls[j].startswith('v_cndmask')): j += 1
                while j < len(ls) and (ls[j].startswith('s_cselect') or ls[j].startswith('s_cbranch') or ls[j].startswith('v_cndmask')): j += 1
            self.ops.append('\n'.join(ls[i:j])); i = j
    def lg(self, text): self.ops.append(text)
    def vm(self, text, key='t'):
        self.ops.append(lambda a: self.tok.__setitem__(key, a.vm(text)))
def merge(main, other):
    out = []; n, m = len(main), len(other); k = 0
    for i, op in enumerate(main):
        out.append(op)
        while k < m and (k + 1) * n <= (i + 1) * m + m - 1 and k * n <= i * m: out.append(other[k]); k += 1
    return out + other[k:]

def touch_ops(t, lo, hi, q=188):
    n = hi - lo
    o = [f'v_mov_b32 v{q+2}, {OOB}']
    o += L(f'v_and_b32 v{q}, 3, v{vL}\ns_lshl_b32 s{sPC}, s{sC8}, 2\nv_add_u32 v{q}, s{sPC}, v{q}\nv_mul_u32_u24 v{q}, 640, v{q}\nv_lshrrev_b32 v{q+1}, 2, v{vL}\nv_add3_u32 v{q}, v{q}, v{q+1}, {lo}\nv_lshlrev_b32 v{q}, 7, v{q}')
    o += [f'v_cmp_gt_u32 vcc, {4*n}, v{vL}\nv_cndmask_b32 v{q}, v{q+2}, v{q}, vcc', f's_mul_i32 s{sPC}, s{sROW}, 1280']
    o += [f'buffer_load_dword v{vPF}, v{q}, {srd(SX)}, s{sPC} offen {opt("ntx", "")}']
    if t.nG == 4: o += L(f'v_lshrrev_b32 v{q}, 1, v{vL}\nv_and_b32 v{q+1}, 1, v{vL}')
    else: o += L(f'v_mov_b32 v{q}, v{vL}\nv_mov_b32 v{q+1}, 0')
    o += L(f'v_lshlrev_b32 v{q}, 4, v{q}\ns_and_b32 s{sPC}, s{sRB}, 3\ns_lshl_b32 s{sPC}, s{sPC}, 2\ns_add_u32 s{sPC}, s{sPC}, s{sW}\ns_add_u32 s{sPC}, s{sPC}, {64*lo}')
    o += L(f'v_add_u32 v{q}, s{sPC}, v{q}\nv_mul_u32_u24 v{q}, 0xd80, v{q}\nv_lshl_add_u32 v{q}, v{q+1}, 7, v{q}\ns_lshl_b32 s{sPC}, s{sG0}, 6')
    o += [f'v_cmp_gt_u32 vcc, {(8 if t.nG == 4 else 4)*n}, v{vL}\nv_cndmask_b32 v{q}, v{q+2}, v{q}, vcc']
    o += [f'buffer_load_dword v{vPF}, v{q}, {srd(SW1)}, s{sPC} offen {opt("ntw", "")}']
    assert n <= 8
    return o

vTX, vTW = 193, 194; sTX, sTW = 52, 63
def roll_setup(t, n):
    q = 188
    o = L(f'v_mov_b32 v{q+2}, {OOB}\nv_and_b32 v{q+3}, 7, v{vL}\nv_lshrrev_b32 v{q+1}, 3, v{vL}\ns_mul_i32 s{sPC}, s{sZ}, 6\ns_add_u32 s{sPC}, s{sPC}, s{sC8}\ns_mul_i32 s{sPC}, s{sPC}, 3')
    o += L(f'v_add_u32 v{q}, s{sPC}, v{q+3}\nv_min_u32 v{q}, 31, v{q}\nv_mul_u32_u24 v{q}, 640, v{q}\nv_add_lshl_u32 v{q}, v{q}, v{q+1}, 7')
    o += [f'v_cmp_gt_u32 vcc, {8*n}, v{vL}\nv_cndmask_b32 v{q}, v{q+2}, v{q}, vcc', f'v_cmp_gt_u32 vcc, 3, v{q+3}\nv_cndmask_b32 v{vTX}, v{q+2}, v{q}, vcc', f's_mov_b32 s{sTX}, s{sA}']
    o += L(f's_mul_i32 s{sTW}, s{sZ}, 12\ns_add_u32 s{sTW}, s{sTW}, s{sC8}\ns_add_u32 s{sTW}, s{sTW}, 12\ns_lshl_b32 s{sTW}, s{sTW}, 7\ns_add_u32 s{sPC}, s{sZ}, 2')
    o += [f's_cmp_lt_u32 s{sC8}, s{sPC}\ns_cselect_b32 s{sTW}, s{sTW}, {OOB}', f'v_mov_b32 v{q}, s{sTW}', f's_lshl_b32 s{sPC}, s{sG0}, 6', f'v_lshrrev_b32 v{vTW}, 2, v{q+3}', f'v_lshl_add_u32 v{q+1}, v{q+1}, 6, v{vTW}', f'v_and_b32 v{q+3}, 3, v{q+3}', f'v_lshl_add_u32 v{vTW}, v{q+3}, 7, s{sPC}']
    o += [f'v_cmp_eq_u32 vcc, 2, v{q+3}\nv_cndmask_b32 v{vTW}, v{vTW}, v{q}, vcc', f'v_cmp_eq_u32 vcc, 3, v{q+3}\nv_cndmask_b32 v{vTW}, v{vTW}, v{q+2}, vcc']
    o += L(f's_lshr_b32 s{sPC}, s{sRB}, 1\ns_lshl_b32 s{sPC}, s{sPC}, 2\ns_add_u32 s{sPC}, s{sPC}, s{sW}\ns_lshl_b32 s{sPC}, s{sPC}, 1\nv_add_u32 v{q}, s{sPC}, v{q+1}\nv_mul_u32_u24 v{q}, 0xd80, v{q}\nv_add_u32 v{vTW}, v{vTW}, v{q}')
    o += [f'v_cmp_gt_u32 vcc, {8*n}, v{vL}\nv_cndmask_b32 v{vTW}, v{q+2}, v{vTW}, vcc', f's_mul_i32 s{sTW}, s{sWA}, {3456//4}']
    return o
def roll(st, lo):
    def op1(a):
        p = st.get('roll', 0); d = lo - p; st['roll'] = lo
        if d: a.e(f's_add_u32 s{sTX}, s{sTX}, {128*d}\ns_add_u32 s{sTW}, s{sTW}, {64*3456*d}')
        if p < 5 <= lo: a.e(f's_sub_u32 s{sTX}, s{sTX}, s{sWA}\ns_mul_i32 s{sPC}, s{sWA}, {3456//2}\ns_sub_u32 s{sTW}, s{sTW}, s{sPC}')
        a.vm(f'buffer_load_dword v{vPF}, v{vTX}, {srd(SX)}, s{sTX} offen {opt("ntx", "")}')
    return [op1, f'buffer_load_dword v{vPF}, v{vTW}, {srd(SW1)}, s{sTW} offen {opt("ntw", "")}']

def build_type(a, t):
    st = {'dma': {}, 'w2': {}, 'tb': {}}
    nG, nD = t.nG, t.nD
    XV[0] = (nG == 2)
    rs = [x.split('@') for x in opt('rs', '1@s0,5@s2,6@3').split(',') if x]
    at = lambda p: [o for c_, p_ in rs if p_ == p for o in roll(st, int(c_))]
    prologue_t(a, t, st)
    if nG == 4: run(a, at('s0'))
    run(a, dma_ops(t, 0, st))
    stamp(a, 'p2')
    a.e(mk_srd(SW2, 72, 1728*1280))
    nonce_pub(a)
    stamp(a, 'p3')
    r = Rec()
    setup2(r, t)
    ra = Rec()
    if nG == 4: aux_setup(ra if opt('dfa', 0) else r); aux_setup2(ra if opt('dfa', 0) else r)
    if nG == 2: gen_D(r, t, 96)
    rot_ids(r)
    if opt('twR', 0) if nG == 4 else opt('twS', 0): gen_TW(r, 96)
    main = r.ops
    vSA, vFA, vFV = vT+3, vT+4, vT+5
    st['vL16d'] = 192
    pre = L(f's_lshl_b32 s{sT}, s{sRB}, 2\ns_add_u32 s{sT}, s{sT}, s{sW}\ns_lshl_b32 s{sT}, s{sT}, 9\ns_add_u32 s{sT}, s{sT}, {ST_OFF}')
    pre += L(f'v_and_b32 v{vSA}, 31, v{vL}\nv_lshl_add_u32 v{vSA}, v{vSA}, 4, s{sT}')
    pre += L(f'v_add_u32 v{vFA}, s{sTAU}, v{vL}\nv_min_u32 v{vFA}, 53, v{vFA}')
    pre += L(f's_lshl_b32 s{sT}, s{sC}, 7\ns_add_u32 s{sT}, s{sT}, {PF_OFF}\nv_lshlrev_b32 v{vFA}, 10, v{vFA}\nv_add_u32 v{vFA}, s{sT}, v{vFA}')
    pre += L(f's_mul_i32 s{sUS}, s{sC}, 54\ns_add_u32 s{sUS}, s{sUS}, s{sTAU}\ns_mul_i32 s{sUS}, s{sUS}, 5120\ns_add_u32 s{sUS}, s{sUS}, {P_OFF}')
    pre += [f's_cmp_ge_u32 s{sW}, 2\ns_cselect_b32 s{sT}, {OOB}, 0', f'v_add_u32 v192, s{sT}, v{vL16}']
    vTB = [4, 5, 6, 7] if nG == 4 else [14, 15]; vRT = 3
    prep = L(f's_lshl_b32 s{sE+1}, s{sW}, 7\ns_add_u32 s{sE+1}, s{sE+1}, {TABR}\nv_and_b32 v{vT+6}, 31, v{vL}\nv_lshl_add_u32 v{vRT}, v{vT+6}, 2, s{sE+1}')
    for i in range(nG):
        prep += L(f's_add_u32 s{sE}, s{sW}, {i}\ns_and_b32 s{sE}, s{sE}, {nG-1}\ns_lshl_b32 s{sE}, s{sE}, 7\ns_add_u32 s{sE}, s{sE}, {TABC}\nv_lshl_add_u32 v{vTB[i]}, v{vT+6}, 2, s{sE}')
    prep += [f'v_lshrrev_b32 v{vT+6}, 5, v{vL}']
    nonl = [f'v_mov_b32 v{vNON}, 0', lambda a: st.__setitem__('non', a.vm(f'global_load_dword v{vNON}, v{vNON}, s[{sDBG}:{sDBG+1}] sc1'))]
    st['next_chunk'] = 2
    if not opt('dfp', 0): main = main + pre
    if nG == 4:
        n = len(main); c2 = n * opt('c2', 40) // 100; c3 = n * opt('c3', 50) // 100
        run(a, at('s1') + main[:c2] + at('s2') + main[c2:c3]); stamp(a, 'p4')
        run(a, merge(main[c3:], dma_ops(t, 1, st)) + nonl)
        sp = stats_proc(st); ps = pack_stores(st)
    else:
        n = len(main); c3 = n * opt('s3', 30) // 100
        run(a, main[:c3]); stamp(a, 'p4')
        run(a, merge(main[c3:], dma_ops(t, 1, st)) + nonl)
        tw2 = L(f's_mul_i32 s{sT}, s{sRB}, 10\ns_add_u32 s{sT}, s{sT}, s{sDT}\ns_lshl_b32 s{sT}, s{sT}, 1\ns_add_u32 s{sT}, s{sT}, s{sW}\ns_mul_i32 s{sT}, s{sT}, {54*128}\nv_lshlrev_b32 v64, 7, v{vL}')
        tw2 += [f's_mov_b32 exec_hi, 0x3fffff\nbuffer_load_dword v{vPF}, v64, {srd(SW2)}, s{sT} offen\ns_mov_b32 exec_hi, -1']
        if opt('tw2', 2) == 0: run(a, tw2)
    stamp(a, 1)
    S, first = pass1(a, t, st)
    NS = 4
    l = lambda ks: first[ks] + 3
    b1tab = L(f'v_lshlrev_b32 v{vT}, 16, v{vT+7}\nv_and_b32 v{vT+1}, 0xffff0000, v{vT+7}\nv_lshlrev_b32 v{vT+2}, 3, v{vL}\nv_add_u32 v{vT+2}, {TABB}, v{vT+2}\nds_write_b64 v{vT+2}, v[{vT}:{vT+1}]')
    S.spread(b1tab, first[3], l(3))
    if opt('dfp', 0): S.spread(pre, first[14], l(20))
    if nG == 4 and opt('dfa', 0): S.spread(ra.ops, first[0], first[st['grp'][opt('ag', 3)][2]] - 2)
    S.put(l(opt('kn', 11)), [lambda a: nonce_check(a, st['non'])])
    if nG == 2 and opt('tw2', 2) > 0: S.put(l(opt('tw2', 2)), [lambda a: run(a, tw2)])
    if nG == 4:
        g_ = st['grp'][opt('ag', 3)]
        fl = S.slots[g_[0]]['fill']; fl.insert(fl.index(g_[1]), lambda a: run(a, pack_dma(st)))
        ka_ = g_[2]
        for k_, op_ in enumerate(stats_loads(st)): S.put(first[ka_ + k_] + 1, [op_])
        kb_ = opt('kb', 6)
        S.spread(pack_reads(st), first[kb_], l(kb_+1))
        if opt('dn', 1):
            S.put(first[kb_+1] + 3, [ps[0]])
            for k_, op_ in enumerate(ps[1:]): S.put(first[kb_+2+k_//2] + 1 + 2*(k_ & 1), [op_])
            e_ = kb_ + 4
        else:
            for k_, op_ in enumerate(ps): S.put(first[kb_+2+k_] + 1, [op_])
            e_ = kb_ + 6
        S.put(l(kb_+2), sp[:5] + [lambda a: run(a, sp[5:25])]); S.spread(sp[25:], first[kb_+3], l(e_))
        assert opt('kf', kb_ + 5) >= e_ and opt('kf', kb_ + 5) >= opt('kn', 11)
        S.put(l(opt('kf', kb_ + 5)), [aux_publish(st)])
        for c_, p_ in rs:
            if p_[0] != 's': S.put(l(int(p_)), roll(st, int(c_)))
    pfl = f'buffer_load_dword v{vFV}, v{vFA}, {srd(SWS)}, 0 offen sc1'
    stl = f'buffer_load_dwordx4 v[{vST}:{vST+3}], v{vSA}, {srd(SWS)}, 0 offen sc1'
    if nG == 2: S.spread(load_F(), l(13), l(16))
    sf = '' if nG == 4 else 'S'
    kq = opt('kq' + sf, 27 if nG == 4 else 30); kp = kq - 3
    early = opt('early', 1)
    S.put(l(opt('ks', 31)), [lambda a: st.__setitem__('stl', a.vm(stl))])
    S.put(l(kp if early else 38), [lambda a: st.__setitem__('pfl', a.vm(pfl))])
    pchk = lambda a: (a.wait(vm=st['pfl']), check_loop(a, pfl, vFV, 14, sPC), stamp(a, 'pc'))
    S.put(l(kq), [pchk if early else (lambda a: a.wait(vm=st['stl']))])
    allw = []
    for s_ in (range(14) if nG == 4 else list(range(3, 14)) + [0, 1, 2]): allw += w2_load_ops(s_, st)
    st['twq'] = []
    if opt('touchw', 0):
        nl_ = opt('tl', 16)
        tw = L(f's_bfe_u32 s{sT}, s2, 0x20003\nv_lshl_add_u32 v{vFA}, v{vL}, 2, s{sT}\nv_lshlrev_b32 v{vFA}, 7, v{vFA}\ns_mov_b32 s{sTX}, s{sUS}')
        S.put(l(kq), tw)
        nb_ = -(-130 // nl_)
        for j in range(nb_):
            n_ = min(nl_, 130 - j*nl_)
            op = f's_mov_b64 exec, {hex((1 << n_) - 1)}\nbuffer_load_dword v{vPF}, v{vFA}, {srd(SWS)}, s{sTX} offen sc1\ns_mov_b64 exec, -1\ns_add_u32 s{sTX}, s{sTX}, {nl_*512}'
            k_ = kq + 1 + opt('tstep', 3)*j
            if k_ < 40: S.put(first[k_] + 1, [op])
            else: st['twq'].append(op)
    n0 = 0
    kA, kB = kq + 1, opt('kB' + sf, 31)
    for ks in range(kA, 40):
        pos_ = [first[ks] + 1] if ks < kB else sorted([first[ks], first[ks] + NS - 2, first[ks] + 1][:opt('ne' + sf, 3)])
        if ks < kB and (ks - kA) % opt('kAs' + sf, 2 if nG == 4 else 1): pos_ = []
        for p_ in pos_: S.put(p_, [allw[n0]]); n0 += 1
    assert n0 <= (60 if nG == 4 else 44 - opt('naS', 6) - opt('dr1', 0))
    global AUGW
    tmp = 172 if nG == 4 else 64
    AUGW = [128, 134, 140, 146] if nG == 4 else [72, 78]
    e1 = [lambda a: (a.wait(vm=st['stl']), check_loop(a, stl, vST+3, 64, sPC))]
    e1 += [f'v_rcp_f32 v{vR}, v{vSDV}']
    if nG == 2: e1 += [f's_nop 0\nds_write2st64_b32 v{vRT}, v{vR}, v{vAL} offset0:0 offset1:2']
    e1 += h_aug_x(tmp)
    S.spread(prep, first[30] + 2, l(32)); S.spread(e1, first[35] + 1, l(37))
    vC = 160 if nG == 4 else 84
    pub = L(f's_lshl_b32 s{sCSo}, s2, 2\ns_add_u32 s{sCSo}, s{sCSo}, s{sW}\ns_lshl_b32 s{sCSo}, s{sCSo}, 8\ns_add_u32 s{sCSo}, s{sCSo}, {CS_OFF}')
    pub += L(f'v_accvgpr_read_b32 v{vC}, a196\nv_accvgpr_read_b32 v{vC+1}, a197\nv_mov_b32 v{vC+2}, s{sTAG}\nv_mov_b32 v{vC+3}, s{sTAG}')
    pub += [f's_mov_b64 exec, 0xffff\nbuffer_store_dwordx4 v[{vC}:{vC+3}], v{vL16}, {srd(SWS)}, s{sCSo} offen sc1\ns_mov_b64 exec, -1', f's_xor_b32 s{sCSo}, s{sCSo}, {8*4*256}']
    S.spread(pub, first[21], l(22))
    csl = f'buffer_load_dwordx4 v[{vC+4}:{vC+7}], v{vL16}, {srd(SWS)}, s{sCSo} offen sc1'
    S.put(l(opt('kc1', 30)), [lambda a: (a.e('s_mov_b64 exec, 0xffff'), st.__setitem__('csl', a.vm(csl)), a.e('s_mov_b64 exec, -1'))])
    e2 = [lambda a: (a.wait(vm=st['csl']), check_loop(a, csl, vC+7, 16, sPC))] + L(f'v_add_f32 v{vC}, v{vC}, v{vC+4}\nv_add_f32 v{vC+1}, v{vC+1}, v{vC+5}')
    e2 += [f's_mov_b64 exec, 0xffff\nds_write2_b32 v{vTB[0]}, v{vC}, v{vC+1} offset0:0 offset1:16\ns_mov_b64 exec, -1', lambda a: st.__setitem__('csw', a.lg_issued)]
    S.put(first[34] + 1, e2)
    S.slots[first[35]]['pre'].insert(0, lambda a: a.wait(lg=st['csw']))
    aw = [h_aug_w(st, i, tmp, vTB[i]) for i in range(nG)]
    S.put(l(36), [x for i in range(nG) for x in aw[i][0]])
    S.spread([x for i in range(nG) for x in aw[i][1]], first[37] + 1, l(39))
    for ks in range(40): S.slots[first[ks]]['pre'].insert(0, lambda a, ks=ks: stamp(a, f'k{ks}'))
    if nG == 2: S.put(first[40], aw[0][2] + aw[1][2])
    S.emit(a)
    if nG == 4:
        for i in range(nG): run(a, aw[i][2])
    stamp(a, 3)
    n1 = n0
    later = allw[n1:]
    ufirst = nG == 2 and opt('ufS', 0)
    def hflag(a):
        a.wait(vm=st['hst']); a.e(f's_add_u32 s{sFH}, s{sFL}, {HF_OFF - F_OFF}'); set_flag_h(a, 193); stamp(a, 'hf')
    def uflag(a):
        a.wait(vm=st['ust']); set_flag(a, 1, 193); stamp(a, 'uf')
    def do_U():
        rr = 96
        a.e(f'v_lshl_add_u32 v{vT}, v{vT+6}, 4, s{sE+1}')
        for jq in range(4): rt_ = a.lg(f'ds_read_b128 v[{rr+4*jq}:{rr+4*jq+3}], v{vT} offset:{32*jq}')
        vXW, vXR_, vUS = vT+2, vT+3, vT+4
        a.e(f'v_and_b32 v{vT+1}, 31, v{vL}\nv_lshlrev_b32 v{vT+5}, 2, v{vT+1}\nv_lshl_add_u32 v{vXW}, v{vT+6}, 9, v{vT+5}\ns_lshl_b32 s{sE}, s{sW}, 12\nv_add_u32 v{vXW}, s{sE}, v{vXW}')
        a.e(f's_lshl_b32 s{sE}, s{sW}, 10\ns_add_u32 s{sE}, s{sE}, {XCH}\nv_lshl_add_u32 v{vXR_}, v{vL}, 2, s{sE}')
        a.e(f's_mov_b32 s{sE}, 81920\nv_mul_lo_u32 v{vT+5}, s{sE}, v{vT+6}\nv_lshl_add_u32 v{vUS}, v{vT+1}, 4, v{vT+5}')
        budget = [opt('dr1', 0)]
        def drip():
            if budget[0] > 0 and len(later) > 15: later.pop(0)(a); budget[0] -= 1
        a.wait(lg=rt_)
        for d in range(2):
            E, O = 128 + 32*d, 144 + 32*d
            for j in range(16):
                if j % 8 == 4: drip()
                tq = 228 + (j & 3)
                x, y = (E+j, O+j) if d == 0 else (O+j, E+j)
                a.e(f'v_add_f32 v{tq}, v{E+j}, v{O+j}\nv_sub_f32 v{O+j}, v{x}, v{y}\nv_mul_f32 v{E+j}, v{rr+j}, v{tq}\nv_mul_f32 v{O+j}, v{rr+j}, v{O+j}')
            for j in range(8): a.e(cvtpk(E+j, E+2*j, E+2*j+1))
        DR = [(64, 80), (196, 212)]
        def step2(part):
            c0 = 128 + 16*part; s0 = 160 + 16*part; UR, UV = DR[part]
            UR = f'v[{UR}:{UR+15}]'; UV = f'v[{UV}:{UV+15}]'
            G = lambda b, f: f'v[{b+4*f}:{b+4*f+3}]'
            for k, (A1, A2, B) in enumerate(((0, 2, G(c0,0)), (1, 3, G(c0,1)), (4, 0, G(s0,0)), (5, 1, G(s0,1)))):
                a.e(f'v_mfma_f32_32x32x16_bf16 {UR}, {aF(A1)}, {B}, {"0" if k == 0 else UR}')
                a.e(f'v_mfma_f32_32x32x16_bf16 {UV}, {aF(A2)}, {B}, {"0" if k == 0 else UV}')
        def comb(part):
            UR, UV = DR[part]
            for j in range(16):
                a.e(cvtpk(UR+j, UR+j, UV+j))
                a.lg(f'ds_write_b32 v{vXW}, v{UR+j} offset:{XCH + part*16384 + (8*(j>>2)+(j&3))*128}')
                if j % opt('dre', 3) == 0: drip()
        stamp(a, 'u0')
        step2(0)
        ls = label('spec')
        a.e(f's_cmp_lg_u32 s{sDT}, 8\ns_cbranch_scc1 {ls}')
        for jq in range(4): a.e(f'ds_read_b128 v[{232+4*jq}:{235+4*jq}], v{vT} offset:{512+32*jq}')
        a.lg_issued -= 4
        a.e('s_waitcnt lgkmcnt(0)\ns_mov_b32 exec_lo, 0x80000000\ns_mov_b32 exec_hi, 0x80000000')
        for j in range(16): a.e(f'v_mov_b32 v{144+j}, v{232+j}\nv_mov_b32 v{176+j}, 0')
        a.e(f's_mov_b64 exec, -1\n{ls}:')
        for O in (144, 176):
            for j in range(8): a.e(cvtpk(O+j, O+2*j, O+2*j+1))
        hp_ = opt('hpS', 0)
        if not ufirst and hp_ == 0: hflag(a)
        step2(1); budget[0] = opt('dr2', 0); drip(); drip(); comb(0)
        if not ufirst and hp_ == 1: hflag(a)
        comb(1)
        stamp(a, 'u1')
        a.wait(lg=a.lg_issued); a.e('s_barrier')
        stamp(a, 'u2')
        toks = []
        for part in range(2):
            for i in range(4):
                b = 128 + 16*part + 4*i
                a.lg(f'ds_read2st64_b32 v[{b}:{b+1}], v{vXR_} offset0:{64*part+i} offset1:{64*part+16+i}')
                toks.append(a.lg(f'ds_read2st64_b32 v[{b+2}:{b+3}], v{vXR_} offset0:{64*part+32+i} offset1:{64*part+48+i}'))
        a.e(f's_lshl_b32 s{sE}, s{sW}, 7\ns_add_u32 s{sE}, s{sE}, s{sRB}\ns_mul_i32 s{sE}, s{sE}, 5120\ns_lshl_b32 s{sE+1}, s{sDT}, 8\ns_add_u32 s{sE}, s{sE}, s{sE+1}\ns_add_u32 s{sE}, s{sE}, {U_OFF}')
        for i in range(1, 4): a.e(f's_add_u32 s{sE+i}, s{sE}, {2*81920*i}')
        for part in range(2):
            for i in range(4):
                b = 128 + 16*part + 4*i
                a.wait(lg=toks[4*part+i])
                st['ust'] = a.vm(f'buffer_store_dwordx4 v[{b}:{b+3}], v{vUS}, {srd(SWS)}, s{sE+i} offen offset:{2560*part} sc1')
        stamp(a, 'u3')
    def do_H():
        S = Sched()
        for k in range(8*nG): S.add(None)
        nm = len(S.slots)
        ops = []
        for i in range(nG): ops += [lambda a, i=i: stamp(a, f'f{i}')] + h_fin(st, i, 0) + h_fin(st, i, 1)
        S.spread(ops, 0, nm - 1)
        k_ = opt('na', 10) if nG == 4 else opt('naS', 6)
        if st['twq']: S.spread(st['twq'], 0, nm - 1)
        if k_: S.spread(later[:k_], 0, nm - 1); del later[:k_]
        if ufirst: S.put(min(nm - 1, opt('ufs', 20)), [uflag])
        hfe = -1
        S.emit(a)
        stamp(a, 4)
    if nG == 4: do_H()
    elif ufirst: do_U(); do_H()
    else: do_H(); do_U()
    if nG == 2: later = later[-15:] + later[:-15]
    nin = opt('nin' + sf, 0)
    st['inp2'] = later[len(later) - nin:]; later = later[:len(later) - nin]
    stamp(a, 5)
    phase2(a, st, hflag if (ufirst or nG == 4) else uflag, later, not (opt('twR', 0) if nG == 4 else opt('twS', 0)))

def phase2(a, st, hflag, later, doTW):
    RED = 65536 if XV[0] else 98304
    t = 2
    q = 144
    r = Rec()
    if doTW: gen_TW(r, q)
    sGI = sE
    r.e(f's_mul_i32 s{sGO}, s{sHB[3]}, 1280\ns_mul_i32 s{sGI}, s{sHB[1]}, 1280')
    vHJ = [184, 185, 186, 187]; vHD = [188, 189, 190, 191]
    for j in range(4):
        r.e(f's_and_b32 s{sT}, s{sHB[j]}, 1024\ns_and_b32 s{sHB[j]}, s{sHB[j]}, 63\ns_mul_i32 s{sHB[j]}, s{sHB[j]}, 54\ns_add_u32 s{sHB[j]}, s{sHB[j]}, s{sTAU}\ns_lshl_b32 s{sHB[j]}, s{sHB[j]}, 11\ns_add_u32 s{sHB[j]}, s{sHB[j]}, s{sT}')
        r.e(f'v_add_u32 v{vHJ[j]}, s{sHB[j]}, v{vL16}\nv_add_u32 v{vHD[j]}, s{sHB[j]}, v192')
    r.e(f's_mov_b32 s{sKO[0]}, 0\ns_movk_i32 s{sKO[13]}, {13*2048}')
    for k in range(1, 13):
        if opt('rho', 0): r.e(f's_add_u32 s{sKO[k]}, s{sKO[k-1]}, 2048\ns_cmp_eq_u32 s{sKO[k]}, s{sKO[13]}\ns_cselect_b32 s{sKO[k]}, 0, s{sKO[k]}')
        elif k % 2 == 0: r.e(f's_movk_i32 s{sKO[k]}, {2048*k}')
    vG4, vG2, vB4 = t+8, t+9, t+10
    r.e(f's_mul_i32 s{sCW}, s{sC}, 160\ns_add_u32 s{sGO}, s{sGO}, s{sCW}\ns_add_u32 s{sGI}, s{sGI}, s{sCW}\ns_mov_b32 s{sT}, 81920')
    r.e(f'v_and_b32 v{q}, 15, v{vL}\nv_mul_lo_u32 v{q}, s{sT}, v{q}\nv_lshrrev_b32 v{q+1}, 4, v{vL}\nv_lshl_add_u32 v{vG4}, v{q+1}, 4, v{q}\nv_lshl_add_u32 v{vG2}, v{q+1}, 3, v{q}')
    r.e(f'v_lshl_add_u32 v{vB4}, v{q+1}, 4, s{sCW}\nv_lshl_add_u32 v{q+2}, v{q+1}, 3, s{sCW}')
    xr = 160; br = 172
    r.ops += [f'buffer_load_dwordx4 v[{xr}:{xr+3}], v{vG4}, {srd(SX)}, s{sGI} offen', f'buffer_load_dwordx4 v[{xr+4}:{xr+7}], v{vG4}, {srd(SX)}, s{sGI} offen offset:64',
              f'buffer_load_dwordx2 v[{xr+8}:{xr+9}], v{vG2}, {srd(SX)}, s{sGI} offen offset:128',
              f'global_load_dwordx4 v[{br}:{br+3}], v{vB4}, s[{sB2}:{sB2+1}]', f'global_load_dwordx4 v[{br+4}:{br+7}], v{vB4}, s[{sB2}:{sB2+1}] offset:64']
    r.vm(f'global_load_dwordx2 v[{br+8}:{br+9}], v{q+2}, s[{sB2}:{sB2+1}] offset:128', 'xb')
    r.e(f's_and_b32 s{sT+1}, s2, 15\ns_lshr_b32 s{sT+2}, s{sW}, 1\ns_lshl_b32 s{sT+2}, s{sT+2}, 4\ns_add_u32 s{sT+1}, s{sT+1}, s{sT+2}')
    r.e(f's_and_b32 s{sT+2}, s{sW}, 1\ns_mul_i32 s{sT+2}, s{sT+2}, 96\ns_add_u32 s{sT+1}, s{sT+1}, s{sT+2}')
    r.e(f's_lshl_b32 s{sT+1}, s{sT+1}, 2\ns_lshl_b32 s{sT+2}, s{sZ}, 1\ns_add_u32 s{sT+1}, s{sT+1}, s{sT+2}')
    vF1, vF2, vFV = t, t+1, t+2
    r.e(f'v_lshrrev_b32 v{q}, 1, v{vL}\nv_lshlrev_b32 v{q}, 7, v{q}\nv_and_b32 v{q+1}, 1, v{vL}\nv_add3_u32 v{q}, v{q}, v{q+1}, s{sT+1}')
    r.e(f'v_lshlrev_b32 v{vF1}, 7, v{q}\nv_add_u32 v{vF1}, {HF_OFF}, v{vF1}')
    r.e(f's_sub_u32 s{sTS1}, 32, s{sT1}\ns_and_b32 s{sTS1}, s{sTS1}, 31\ns_cmp_ge_u32 s{sC}, 4\ns_cselect_b32 s{sTS1}, s{sTS1}, s{sT1}')
    r.e(f'v_and_b32 v{q}, 7, v{vL}\nv_min_u32 v{q}, 4, v{q}\nv_lshlrev_b32 v{q+2}, 5, v{q}\nv_add_u32 v{q+3}, {6*32}, v{q+2}\nv_add_u32 v{q+2}, {3*32+16}, v{q+2}')
    r.e(f'v_cmp_gt_u32 vcc, 2, v{q}\nv_cndmask_b32 v{q}, v{q+2}, v{q+3}, vcc')
    r.e(f'v_and_b32 v{q+1}, 8, v{vL}\nv_bfe_u32 v{q+3}, v{vL}, 4, 1\nv_add3_u32 v{q}, v{q}, v{q+1}, v{q+3}')
    r.e(f's_lshl_b32 s{sT}, s{sW}, 3\ns_lshr_b32 s{sT+2}, s{sTS1}, 3\ns_add_u32 s{sT}, s{sT}, s{sT+2}\nv_lshl_add_u32 v{q}, v{q}, 2, s{sT}')
    r.e(f'v_lshlrev_b32 v{vF2}, 7, v{q}\nv_add_u32 v{vF2}, {F_OFF+4}, v{vF2}\nv_lshrrev_b32 v{q+1}, 4, v{vL}')
    vUO = [t+3+k for k in range(5)]
    r.e(f'v_and_b32 v{q}, 15, v{vL}\ns_mul_i32 s{sT}, s{sC}, 80\nv_and_b32 v{q+4}, 12, v{vL}\nv_add3_u32 v{q+4}, v{q+4}, v{q}, s{sT}\nv_add_u32 v{q}, s{sT}, v{q}')
    r.e(f's_movk_i32 s{sT+1}, 5120\nv_mul_u32_u24 v{q+1}, s{sT+1}, v{q+1}')
    r.e(f's_cmp_ge_u32 s{sC}, 4\ns_cselect_b32 s{sT}, -1, 0\ns_cselect_b32 s{sT+1}, 640, -1')
    for ct in range(5):
        if ct < 4: r.e(f'v_add_u32 v{q+2}, {32*(ct>>1)+4*(ct&1)}, v{q+4}')
        else: r.e(f'v_add_u32 v{q+2}, 64, v{q}')
        r.e(f'v_xor_b32 v{q+2}, s{sT}, v{q+2}\nv_add_u32 v{q+2}, s{sT+1}, v{q+2}\nv_sub_u32 v{q+5}, 478, v{q+2}')
        r.e(f'v_cmp_lt_i32 vcc, 159, v{q+2}\nv_cndmask_b32 v{q+5}, v{q+2}, v{q+5}, vcc')
        if ct == 0: r.e(f'v_cmp_eq_u32 vcc, 319, v{q+2}\nv_cndmask_b32 v{q+5}, v{q+5}, v{q+2}, vcc')
        r.e(f'v_lshl_add_u32 v{vUO[ct]}, v{q+5}, 4, v{q+1}')
        if ct == 0: r.e(f'v_mov_b32 v{q+3}, {OOB}\nv_cmp_gt_i32 vcc, 0, v{q+2}\nv_cndmask_b32 v{vUO[0]}, v{vUO[0]}, v{q+3}, vcc')
    r.e(f's_lshl_b32 s{sUo}, s{sTS1}, 4\ns_lshl_b32 s{sT}, s{sW}, 2\ns_add_u32 s{sUo}, s{sUo}, s{sT}\ns_mul_i32 s{sUo}, s{sUo}, 5120\ns_add_u32 s{sUo}, s{sUo}, {U_OFF}')
    vPW, vP2, vP1 = t+11, t+12, t+13
    r.e(f's_mul_i32 s{sT}, s{sW}, 15360\ns_add_u32 s{sT}, s{sT}, {RED}\nv_add_u32 v{vPW}, s{sT}, v{vL16}')
    r.e(f's_xor_b32 s{sT}, s{sW}, 2\ns_mul_i32 s{sT}, s{sT}, 15360\ns_add_u32 s{sT}, s{sT}, {RED}\nv_add_u32 v{vP2}, s{sT}, v{vL16}')
    r.e(f's_add_u32 s{sT}, s{sW}, 1\ns_and_b32 s{sT}, s{sT}, 3\ns_mul_i32 s{sT}, s{sT}, 15360\ns_add_u32 s{sT}, s{sT}, {RED}\nv_add_u32 v{vP1}, s{sT}, v{vL16}')
    vP3 = 0
    r.e(f's_add_u32 s{sT}, s{sW}, 3\ns_and_b32 s{sT}, s{sT}, 3\ns_mul_i32 s{sT}, s{sT}, 15360\ns_add_u32 s{sT}, s{sT}, {RED}\nv_add_u32 v{vP3}, s{sT}, v{vL16}')
    r.ops.insert(len(r.ops) * opt('hfp' + ('S' if XV[0] else ''), 25 if XV[0] else 20) // 100, hflag)
    hl = f'buffer_load_dword v{vFV}, v{vF1}, {srd(SWS)}, 0 offen sc1'
    nl = max(0, len(later) - opt('nlast', 12))
    mm_ = merge(r.ops, later[:nl]); h_ = len(mm_) // 2
    run(a, mm_[:h_]); stamp(a, 's1'); run(a, mm_[h_:]); stamp(a, 's2')
    ini = [lambda a: a.wait(vm=r.tok['xb']), f's_mov_b32 s{sT}, 0x05040100\ns_mov_b32 s{sT+1}, 0x07060302']
    for ct in range(5):
        b = 36 + 4*ct
        for k in range(2):
            xs = xr + (4*(ct >> 1) + 2*(ct & 1) + k if ct < 4 else 8 + k); bs = xs - xr + br
            ini += L(f'v_perm_b32 v{b+2*k}, v{bs}, v{xs}, s{sT}\nv_perm_b32 v{b+2*k+1}, v{bs}, v{xs}, s{sT+1}')
    for k in range(20): ini.append(f'v_dot2_f32_bf16 v{36+k}, v{36+k}, s{sONES}, 0')
    a.e(f'v_mov_b32 v{vL}, v{vL16}'); st['vW'] = vL
    a.e('s_mov_b64 exec, 0x3ff')
    tk = a.vm(hl)
    a.e('s_mov_b64 exec, -1')
    run(a, merge(ini, later[nl:]))
    stamp(a, 6)
    a.wait(vm=tk)
    check_loop(a, hl, vFV, 10, sPC)
    stamp(a, 7)
    ht = {}
    def hload(slot, j):
        def op(a):
            vo = vHD[j] if slot == 13 else vHJ[j]
            if opt('noh', 0) and slot % 2: ht[(slot, j)] = 0; return
            ht[(slot, j)] = a.vm(f'buffer_load_dwordx4 {HF(pos[(slot, j)])}, v{vo}, {srd(SWS)}, s{sKO[slot] if RHO else sKO[slot & ~1]} offen offset:{0 if RHO else 2048*(slot & 1)} sc1')
        return op
    order = [(s_, j) for j in range(4) for s_ in range(14)]
    pos = {k: n for n, k in enumerate(order)}
    ul = f'buffer_load_dword v{vFV}, v{vF2}, {srd(SWS)}, 0 offen sc1'
    for n in range(RING): hload(*order[n])(a)
    hp = RING
    wq = list(st['inp2'])
    S = Sched(); f = {}
    def group(s_, j):
        nonlocal hp
        n = pos[(s_, j)]
        for ct in range(5):
            pre = [lambda a: a.wait(vm=max(ht[(s_, j)], max(st['w2'][(s_, c_)] for c_ in range(5))))] if ct == 0 else []
            if ct == 0 and s_ == 0 and j == 3: pre.append(lambda a: a.wait(lg=st[('ci', j)]))
            c0 = '0' if (s_ == 0 and j in (0, 2)) else ACC2(ct, j)
            idx = S.add(f'v_mfma_f32_16x16x32_bf16 {ACC2(ct,j)}, {W2(s_,ct)}, {HF(n)}, {c0}', pre)
            if ct == 0: f[(s_, j)] = idx
        if hp < 56: S.put(idx, [hload(*order[hp])]); hp += 1
    def ustep(j):
        for ct in range(5):
            pre = [lambda a: a.wait(vm=st['uf'])] if ct == 0 else []
            S.add(f'v_mfma_f32_16x16x32_bf16 {ACC2(ct,j)}, {UF(ct)}, a[{aTW+4*j}:{aTW+4*j+3}], {ACC2(ct,j)}', pre)
    u0 = opt('u0', 5)
    for j in range(4):
        for s_ in range(14):
            group(s_, j)
            if j == 2 and s_ == u0: ustep(1); ustep(0)
        if j >= 2: ustep(j)
    bar = lambda a: (a.wait(lg=a.lg_issued), a.e('s_barrier'))
    def wr(j, at, step):
        for ct in range(5): S.put(at + step*ct, [f'ds_write_b128 v{vPW}, {ACC2(ct,j)} offset:{j*5120 + ct*1024}'])
    def rd(key, dst, va, off, at, step):
        for ct in range(5): S.put(at + step*ct, [lambda a, ct=ct: st.__setitem__(key, a.lg(f'ds_read_b128 {dst(ct)}, v{va} offset:{off + ct*1024}'))])
    PB = 144
    wr(1, f[(u0+1, 2)] + 1, 3); S.put(f[(u0+5, 2)] + 1, [bar]); rd(('ci', 3), lambda ct: ACC2(ct, 3), vP2, 5120, f[(u0+5, 2)] + 3, 4)
    wr(0, f[(u0+6, 2)] + 1, 4)
    wr(2, f[(1, 3)] + 1, 3); S.put(f[(5, 3)] + 1, [bar])
    rd('pr', lambda ct: f'v[{PB+4*ct}:{PB+4*ct+3}]', vP1, 10240, f[(5, 3)] + 3, 2)
    rd('pr', lambda ct: f'v[{PB+20+4*ct}:{PB+23+4*ct}]', vP3, 0, f[(5, 3)] + 13, 2)
    S.spread([lambda a: a.wait(lg=st['pr'])] + [f'v_add_f32 v{PB+k}, v{PB+k}, v{PB+20+k}' for k in range(20)], f[(10, 3)], f[(13, 3)] + 8)
    ku = opt('ku', 10)
    fl = [f[k] for k in order]
    S.put(fl[ku] + 1, [lambda a: (a.e('s_mov_b32 exec_hi, 0'), st.__setitem__('ul', a.vm(ul)), a.e('s_mov_b32 exec_hi, -1'))])
    kc = ku + opt('kc', 12)
    S.put(fl[kc] + 1, [lambda a: (a.wait(vm=st['ul']), check_loop(a, ul, vFV, 32, sPC), stamp(a, 'uc'))])
    for ct in range(5):
        S.put(fl[kc + ct] + 3, [lambda a, ct=ct: st.__setitem__('uf', a.vm(f'buffer_load_dwordx4 {UF(ct)}, v{vUO[ct]}, {srd(SWS)}, s{sUo} offen sc1'))])
    for j in range(4): S.slots[f[(0, j)]]['pre'].insert(0, lambda a, j=j: stamp(a, f'l{j}'))
    S.slots[f[(1, 0)]]['pre'].insert(0, lambda a: stamp(a, 'e1'))
    assert not wq
    S.emit(a)
    stamp(a, 8)
    a.wait(lg=st['pr'])
    o = 96
    for ct in range(5):
        b = 76 + 4*ct
        for k in range(4): a.e(f'v_add_f32 v{b+k}, v{b+k}, v{PB+4*ct+k}')
        a.e(cvtpk(o+2*ct, b, b+1)); a.e(cvtpk(o+2*ct+1, b+2, b+3))
        ost = opt('ost', '')
        if ct == 1: a.vm(f'buffer_store_dwordx4 v[{o}:{o+3}], v{vG4}, {srd(SOUT)}, s{sGO} offen {ost}')
        if ct == 3: a.vm(f'buffer_store_dwordx4 v[{o+4}:{o+7}], v{vG4}, {srd(SOUT)}, s{sGO} offen offset:64 {ost}')
        if ct == 4: a.vm(f'buffer_store_dwordx2 v[{o+8}:{o+9}], v{vG2}, {srd(SOUT)}, s{sGO} offen offset:128 {ost}')
    if DBG == 3:
        a.wait_all()
        le = label('dbgskip')
        a.e(f's_memrealtime s[{sT+1}:{sT+2}]\ns_waitcnt lgkmcnt(0)')
        a.e(f's_cmp_lg_u32 s{sW}, 0\ns_cbranch_scc1 {le}')
        a.e(f's_cmp_eq_u32 s2, {opt("wgA", 8)}\ns_cselect_b32 s{sT}, 4, 0\ns_cmp_eq_u32 s2, {opt("wgB", 232)}\ns_cselect_b32 s{sT}, 32, s{sT}\ns_cmp_eq_u32 s{sT}, 0\ns_cbranch_scc1 {le}')
        for k in range(1, 7): a.e(f's_sub_u32 s{sT+3}, s{sTS+2*k}, s{sTS}\nv_mov_b32 v{15+k}, s{sT+3}')
        a.e(f's_sub_u32 s{sT+3}, s{sT+1}, s{sTS}\nv_mov_b32 v22, s{sT+3}\nv_mov_b32 v2, s{sT}\ns_mov_b64 exec, 1')
        a.e(f'global_store_dwordx4 v2, v[16:19], s[{sDBG}:{sDBG+1}]\nglobal_store_dwordx3 v2, v[20:22], s[{sDBG}:{sDBG+1}] offset:16')
        a.e(f'{le}:')
    elif DBG:
        a.wait_all()
        a.e(f'{"s_memtime" if DBG == 2 else "s_memrealtime"} s[{sT+1}:{sT+2}]\ns_waitcnt lgkmcnt(0)')
        for k in range(9): a.e(f'v_mov_b32 v{16+k}, s{sTS+2*k}')
        a.e(f'v_mov_b32 v25, s{sT+1}\nv_mov_b32 v26, 0\nv_mov_b32 v27, 0')
        a.e(f's_lshl_b32 s{sT}, s2, 2\ns_add_u32 s{sT}, s{sT}, s{sW}\ns_lshl_b32 s{sT}, s{sT}, 6\ns_add_u32 s{sT}, s{sT}, {TS_OFF}')
        a.e(f'v_mov_b32 v2, 0\ns_mov_b64 exec, 1')
        for k in range(3): a.e(f'buffer_store_dwordx4 v[{16+4*k}:{19+4*k}], v2, {srd(SWS)}, s{sT} offen offset:{16*k}')
    a.e('s_endpgm')

def build():
    a = Asm(); prologue(a)
    outs = [a]
    for nG in (4, 2):
        b = a.fork()
        if nG == 2: b.e('L_S:')
        build_type(b, T(nG)); outs.append(b)
    lines = []
    for o in outs: lines += o.finish()
    return lines + SLOW

hdr = open('cdna_kernels/%s.s.ref' % NAME).read().split('; Override launch')[0]
lines = build()
with open(sys.argv[1], 'w') as f:
    f.write(hdr)
    f.write(f'; @launch grid=(256,1,1) block=(256,1,1) lds={LDS_BYTES}\n')
    f.write('.amdgcn_target "amdgcn-amd-amdhsa--gfx950"\n.text\n')
    f.write(f'.globl {NAME}_kernel\n.p2align 8\n.type {NAME}_kernel,@function\n{NAME}_kernel:\n')
    for l in lines: f.write(('' if l.endswith(':') else '    ') + l + '\n')
    f.write('L_end:\n    s_endpgm\n')
    f.write('.p2align 8\n.type L_ftab,@object\nL_ftab:\n')
    tb = F_table()
    for i in range(0, len(tb), 8): f.write('.long ' + ', '.join('0x%08x' % x for x in tb[i:i+8]) + '\n')
    f.write('.fill 8192, 4, 0\n')
    f.write(f'''.section .rodata,"a"
.p2align 6
.amdhsa_kernel {NAME}_kernel
  .amdhsa_next_free_vgpr 512
  .amdhsa_next_free_sgpr 102
  .amdhsa_accum_offset 256
  .amdhsa_group_segment_fixed_size 0
  .amdhsa_kernarg_size 104
  .amdhsa_user_sgpr_count 2
  .amdhsa_user_sgpr_kernarg_segment_ptr 1
  .amdhsa_system_sgpr_workgroup_id_x 1
.end_amdhsa_kernel
''')
print('instructions:', len(lines))
```

```python
import sys, struct, copy, os
from asmlib import Asm
NAME = 'parallel_sum__spectral_fnet__dense_activation_squared_relu__prompt'
DBG = int(sys.argv[2]) if len(sys.argv) > 2 else 0
OPT = dict(kv.split('=') for kv in sys.argv[3:])
def opt(k, d): return type(d)(OPT.get(k, d))

H_OFF = 0; U_OFF = 0x6C0000; P_OFF = 0x940000; ST_OFF = 0xB5C000; F_OFF = 0xB68000; TS_OFF = 0xB88000; PF_OFF = 0xBA0000; HF_OFF = 0xBB0000; WS_END = 0xBD0000
OOB = 0x40000000
ARING = 0; BBASE = 65536; AUX = 131072; TAB = 161792; TABC = TAB; TABB = TAB + 512; TABR = TAB + 1024; TABA = TAB + 1536
XCH = 0
RED_PITCH = 336; RED_WAVE = 64 * RED_PITCH
LDS_BYTES = 163840
SX, SW1, SW2, SWS, SOUT = 4, 8, 12, 16, 20
sB1, sB2, sDBG = 24, 26, 28
sW, sZ, sRB, sC8, sROW, sG0 = 30, 31, 32, 33, 34, 35
sA, sA2, sBo, sMA, sMB = 36, 37, 38, 39, 40
sT1, sC, sTAG, sONES = 41, 42, 43, 44
sT = 45
sH = [53, 54, 55, 56]; sFL = 57; sDT = 58; sAUXo = 59; sAUXs = 60; sTAU = 61; sW2o = 62; sH0 = 63; sH1 = 64; sUo = 65
sCW = 61+0*0 if False else 83; sGO = 82; sTS1 = 66; sPC = 51; sUS = 70; sE = 71
sAUXm = 3; sHB = [78, 79, 80, 81]
sRHO = 75; sWE = 76; sW4 = 77; sXCC = 66; sLOC = 67; sFH = 68
sKO = [36, 37, 38, 39, 40, 53, 54, 55, 56, 58, 59, 60, 63, 64]
sTS = 84
def srd(b): return f's[{b}:{b+3}]'
def fhex(x): return '0x%08x' % struct.unpack('<I', struct.pack('<f', x))[0]
XV = [False]
def X(ks): return f'v[{196+4*(ks%8)}:{199+4*(ks%8)}]' if XV[0] else f'a[{4*(ks%8)}:{4*(ks%8)+3}]'
def ACC1(i): return f'v[{32+16*i}:{47+16*i}]'
def WB(b, i, h=None):
    base = 96 + 16*b + 4*i if i < 4 else 184 + 4*b
    return f'v[{base}:{base+3}]' if h is None else f'v[{base+2*h}:{base+2*h+1}]'
aTW = 160; aF0 = 176; aSEL = 'a[192:195]'; aCS = 'a[196:199]'
def aF(k): return f'a[{aF0+4*k}:{aF0+4*k+3}]' if k < 4 else f'a[{152+4*(k-4)}:{155+4*(k-4)}]'
vL = 1
vOA = [2, 3]; vOB = [4, 5, 6, 7]; vAR = [8, 9, 10, 11]; vBR = [12, 13, 14, 15]
vT = 16
vST = 24
vNM, vSDV, vAL, vR = 24, 25, 26, 28
vNON = 28; vPF = 29; vHO = 30; vL16 = 31
vAUX = 160
def W2(slot, ct):
    if slot < 3: k, b = 'v', 196 + 20*slot + 4*ct
    elif slot < 5: k, b = 'a', 200 + 20*(slot-3) + 4*ct
    elif slot < 11: k, b = 'a', 32 + 20*(slot-5) + 4*ct
    elif slot == 11: k, b = 'a', (240 + 4*ct if ct < 4 else 152)
    elif slot == 12: k, b = 'a', (4*ct if ct < 4 else 156)
    else: k, b = 'a', (16 + 4*ct if ct < 4 else 196)
    return f'{k}[{b}:{b+3}]'
def UF(ct): return f'a[{176+4*ct}:{179+4*ct}]'
def ACC2(ct, rt): b = 16 + 20*rt + 4*ct; return f'v[{b}:{b+3}]'
RHO = opt('rho', 0)
RING = opt('ring', 10)
def HF(n): b = 96 + 4*(n % RING); return f'v[{b}:{b+3}]'

TSL = OPT.get('ts', '0,1,2,3,4,5,6,7,8').split(',')
def stamp(a, name):
    if str(name) not in TSL: return
    idx = TSL.index(str(name))
    if DBG: a.e(f'{"s_memtime" if DBG == 2 else "s_memrealtime"} s[{sTS+2*idx}:{sTS+2*idx+1}]')
def cvtpk(d, x, y): return f'v_cvt_pk_bf16_f32 v{d}, v{x}, v{y}'
uid = [0]
def label(p):
    uid[0] += 1; return f'L_{p}{uid[0]}'

class Sched:
    def __init__(self): self.slots = []
    def add(self, main, pre=()):
        self.slots.append({'pre': list(pre), 'main': main, 'fill': []}); return len(self.slots) - 1
    def put(self, idx, ops): self.slots[idx]['fill'] += list(ops)
    def spread(self, ops, first, last):
        ops = list(ops); n = last - first + 1
        for k, op in enumerate(ops):
            self.slots[first + min(n - 1, k * n // len(ops))]['fill'].append(op)
    def pack(self, ops, first, per):
        i = first
        for op in ops:
            while i < len(self.slots) - 1 and len(self.slots[i]['fill']) >= per: i += 1
            self.slots[i]['fill'].append(op)
        return i
    def emit(self, a, lo=0, hi=None):
        for s in self.slots[lo:hi]:
            for op in s['pre'] + [s['main']] + s['fill']:
                if op is None: continue
                if callable(op): op(a)
                else: a.e(op)
def L(text): return [t for t in text.split('\n') if t.strip()]

def mk_srd(b, lo, n):
    return f's_mov_b32 s{b}, s{lo}\ns_and_b32 s{b+1}, s{lo+1}, 0xffff\ns_mov_b32 s{b+2}, {n}\ns_mov_b32 s{b+3}, 0x20000'

def prologue(a):
    for _ in range(opt('shift', 0)): a.e('s_nop 0')
    a.e('s_cmp_ge_u32 s2, 256\ns_cbranch_scc1 L_end')
    stamp(a, 0)
    a.e('s_load_dwordx2 s[66:67], s[0:1], 0')
    a.e('s_load_dwordx8 s[68:75], s[0:1], 48')
    a.e('s_load_dwordx4 s[76:79], s[0:1], 80')
    a.e('s_load_dwordx2 s[80:81], s[0:1], 96')
    a.e('s_getpc_b64 s[82:83]\nL_pc:')
    a.e('s_bfe_u32 s3, s2, 0x10003\ns_lshl_b32 s3, s3, 15\nv_lshl_add_u32 v2, v0, 7, s3')
    a.vm(f'global_load_dword v{vPF}, v2, s[82:83]')
    a.e('s_add_u32 s82, s82, L_ftab-L_pc\ns_addc_u32 s83, s83, 0')
    a.e(f'v_lshrrev_b32 v4, 6, v0\nv_and_b32 v{vL}, 63, v0\nv_readfirstlane_b32 s{sW}, v4')
    a.e(f's_bfe_u32 s{sZ}, s2, 0x10004')
    a.e(f's_and_b32 s{sT}, s2, 7\ns_bfe_u32 s{sT+1}, s2, 0x10003\ns_lshl_b32 s{sT}, s{sT}, 1')
    a.e(f's_add_u32 s{sRB}, s{sT}, s{sT+1}\ns_lshr_b32 s{sC8}, s2, 5')
    a.e(f's_sub_u32 s{sT+2}, 32, s{sRB}\ns_cmp_eq_u32 s{sRB}, 0\ns_cselect_b32 s{sT+2}, 16, s{sT+2}')
    a.e(f's_bitcmp1_b32 s{sW}, 1\ns_cselect_b32 s{sROW}, s{sT+2}, s{sRB}')
    a.e(f's_and_b32 s{sT+3}, s{sW}, 1\ns_lshl_b32 s{sT+3}, s{sT+3}, 5\ns_add_u32 s{sROW}, s{sROW}, s{sT+3}')
    a.e(f's_mov_b32 s{sAUXm}, s{sT+2}')
    a.e(f'v_lshrrev_b32 v{vT}, 3, v{vL}\nv_lshrrev_b32 v{vT+1}, 4, v{vL}\nv_and_b32 v{vT+2}, 7, v{vL}')
    a.e(f'v_xor_b32 v{vT+3}, v{vT+2}, v{vT+1}\ns_mov_b32 s{sT+4}, 81920\nv_mul_lo_u32 v{vT+4}, s{sT+4}, v{vT}')
    a.e(f'v_lshl_add_u32 v{vOA[0]}, v{vT+3}, 4, v{vT+4}\nv_xor_b32 v{vT+3}, 4, v{vT+3}')
    a.e(f'v_lshl_add_u32 v{vOA[1]}, v{vT+3}, 4, v{vT+4}\nv_add_u32 v{vOA[1]}, {8*81920-1024}, v{vOA[1]}')
    a.e(f's_mul_i32 s{sA}, s{sROW}, 1280\ns_add_u32 s{sA2}, s{sA}, {16*81920-2048}\ns_lshl_b32 s{sMA}, s{sW}, 12')
    a.e(f's_sub_u32 s{sT+5}, 6, s{sZ}\ns_cmp_ge_u32 s{sC8}, s{sT+5}\ns_cbranch_scc1 L_S')

class T:
    def __init__(self, nG):
        self.nG = nG; self.nD = 0 if nG == 4 else 2
        self.bslot = 4096 * nG
        self.pitch = 64 * nG
        self.DREG = 131072 if nG == 4 else 98304
        self.nb = nG

def prologue_t(a, t, st):
    if t.nG == 4:
        a.e(f's_mul_i32 s{sG0}, s{sZ}, 28\ns_lshl_b32 s{sT}, s{sC8}, 2\ns_add_u32 s{sG0}, s{sG0}, s{sT}')
        a.e(f'v_and_b32 v{vT+2}, 15, v{vL}\nv_lshlrev_b32 v{vT+3}, 2, v{vT+1}\nv_xor_b32 v{vT+2}, v{vT+2}, v{vT+3}')
        a.e(f's_movk_i32 s{sT+6}, 3456\nv_mul_u32_u24 v{vT+3}, s{sT+6}, v{vT+1}\nv_lshl_add_u32 v{vOB[0]}, v{vT+2}, 4, v{vT+3}')
        for i in range(1, 4): a.e(f'v_add_u32 v{vOB[i]}, {i*(4*3456-1024)}, v{vOB[0]}')
    else:
        a.e(f's_mul_i32 s{sG0}, s{sZ}, 26\ns_lshl_b32 s{sT}, s{sC8}, 1\ns_add_u32 s{sG0}, s{sG0}, s{sT}\ns_add_u32 s{sG0}, s{sG0}, 12')
        a.e(f's_mul_i32 s{sDT}, s{sZ}, 6\ns_add_u32 s{sDT}, s{sDT}, s{sT}\ns_sub_u32 s{sDT}, s{sDT}, 12')
        a.e(f'v_and_b32 v{vT+3}, 1, v{vT+1}\nv_lshlrev_b32 v{vT+3}, 2, v{vT+3}\nv_xor_b32 v{vT+2}, v{vT+2}, v{vT+3}')
        a.e(f's_movk_i32 s{sT+6}, 3456\nv_mul_u32_u24 v{vT+3}, s{sT+6}, v{vT}\nv_lshl_add_u32 v{vOB[0]}, v{vT+2}, 4, v{vT+3}')
        a.e(f'v_add_u32 v{vOB[1]}, {8*3456-1024}, v{vOB[0]}')
    a.e(f's_lshl_b32 s{sBo}, s{sG0}, 6\ns_mul_i32 s{sT}, s{sW}, {16*3456}\ns_add_u32 s{sBo}, s{sBo}, s{sT}')
    a.e(f's_mul_i32 s{sMB}, s{sW}, {1024*t.nb}\ns_add_u32 s{sMB}, s{sMB}, {BBASE}')
    a.e(f's_lshl_b32 s{sT+1}, s{sG0}, 6\nv_and_b32 v{vT+6}, {16*t.nG-1}, v{vL}\nv_lshl_add_u32 v{vT+6}, v{vT+6}, 2, s{sT+1}')
    if t.nG == 4: run(a, roll_setup(t, opt('rn', 3)))
    stamp(a, 'p0')
    a.e('s_waitcnt lgkmcnt(0)')
    stamp(a, 'p1')

    a.vm(f'global_load_dword v{vT+7}, v{vT+6}, s[70:71]')
    a.e(f'v_bfe_u32 v{vT+5}, v{vL}, 0, 3\nv_mul_u32_u24 v{vT+5}, 0xa0, v{vT+5}')
    a.vm(f'global_load_dword v{vPF}, v{vT+5}, s[74:75]')
    a.e(mk_srd(SX, 66, 2048*1280)); a.e(mk_srd(SW1, 68, 640*3456))

def dma_ops(t, c, st):
    slot = c % 4
    ops = [f's_add_u32 m0, s{sMA}, {ARING + slot*16384}',
           f'buffer_load_dwordx4 v{vOA[0]}, {srd(SX)}, s{sA} offen {opt("ntx", "")} lds',
           f'buffer_load_dwordx4 v{vOA[1]}, {srd(SX)}, s{sA} offen offset:1024 {opt("ntx", "")} lds',
           f'buffer_load_dwordx4 v{vOA[0]}, {srd(SX)}, s{sA2} offen offset:2048 {opt("ntx", "")} lds',
           f'buffer_load_dwordx4 v{vOA[1]}, {srd(SX)}, s{sA2} offen offset:3072 {opt("ntx", "")} lds',
           f's_add_u32 m0, s{sMB}, {slot*t.bslot}\ns_add_u32 s{sA}, s{sA}, 128\ns_add_u32 s{sA2}, s{sA2}, 128']
    for i in range(t.nb):
        ops.append(f'buffer_load_dwordx4 v{vOB[i]}, {srd(SW1)}, s{sBo} offen offset:{1024*i} {opt("ntw", "")} lds')
    def last(a):
        st['dma'][c] = a.vm_issued
        a.e(f's_add_u32 s{sBo}, s{sBo}, {64*3456}')
    ops.append(last)
    return ops
def run(a, ops):
    for op in ops:
        if callable(op): op(a)
        else: a.e(op)

vAO = 128
vPK = 140; vSD = 160
sPo = 58; sPs = 62; sPf = 64; sSo = 60; sSs = 65
def aux_setup(a):
    q = 184
    a.e(f's_mul_i32 s{sT}, s{sZ}, 6\ns_add_u32 s{sT}, s{sT}, s{sC8}\ns_lshl_b32 s{sT}, s{sT}, 2\ns_add_u32 s{sT}, s{sT}, s{sW}')
    a.e(f's_mul_i32 s{sT+1}, s{sRB}, 27\ns_add_u32 s{sT+1}, s{sT+1}, s{sT}')
    a.e(f's_lshr_b32 s{sT+2}, s{sT+1}, 3\ns_and_b32 s{sT+3}, s{sT+1}, 7\ns_mul_i32 s{sPo}, s{sT+2}, 40960\ns_mul_i32 s{sT+5}, s{sT+3}, 160\ns_add_u32 s{sPo}, s{sPo}, s{sT+5}')
    a.e(f's_mul_i32 s{sPs}, s{sT+3}, 54\ns_add_u32 s{sPs}, s{sPs}, s{sT+2}\ns_mul_i32 s{sPs}, s{sPs}, 5120\ns_add_u32 s{sPs}, s{sPs}, {P_OFF}')
    a.e(f's_lshl_b32 s{sPf}, s{sT+1}, 7\ns_add_u32 s{sPf}, s{sPf}, {PF_OFF}')
    a.e(f's_cmp_lt_u32 s{sT}, 27\ns_cselect_b32 s{sT+4}, 0, {OOB}\ns_cselect_b32 s{sPo}, s{sPo}, 0')
    for i in range(5):
        a.e(f'v_add_u32 v{q}, {64*i}, v{vL}\nv_mul_u32_u24 v{q+1}, 0x667, v{q}\nv_lshrrev_b32 v{q+1}, 14, v{q+1}\nv_mul_u32_u24 v{q+1}, 0x460, v{q+1}')
        if i == 0: a.e(f'v_lshl_add_u32 v{vAO+9}, v{vL}, 4, s{sT+4}')
        a.e(f'v_add_u32 v{vAO+i}, v{vAO+9}, v{q+1}')
    a.e(f'v_add_u32 v{vAO+4}, 0x1000, v{vAO+4}')
    a.e(f's_sub_u32 s{sT}, s{sT}, 12\ns_cmp_lt_u32 s{sT}, 32\ns_cselect_b32 s{sT+4}, 0, {OOB}\ns_cselect_b32 s{sT}, s{sT}, 0')
    a.e(f's_bitcmp1_b32 s{sT}, 4\ns_cselect_b32 s{sT+2}, s{sAUXm}, s{sRB}')
    a.e(f's_bfe_u32 s{sT+3}, s{sT}, 0x10003\ns_lshl_b32 s{sT+3}, s{sT+3}, 5\ns_add_u32 s{sT+2}, s{sT+2}, s{sT+3}\ns_and_b32 s{sT+3}, s{sT}, 7\ns_lshl_b32 s{sT+3}, s{sT+3}, 8\ns_add_u32 s{sT+2}, s{sT+2}, s{sT+3}\ns_mul_i32 s{sSo}, s{sT+2}, 1280')
    a.e(f's_lshl_b32 s{sT+2}, s{sRB}, 5\ns_add_u32 s{sT+2}, s{sT+2}, s{sT}\ns_lshl_b32 s{sSs}, s{sT+2}, 6\ns_add_u32 s{sSs}, s{sSs}, {ST_OFF}')
    a.e(f'v_lshrrev_b32 v{q}, 4, v{vL}\ns_mov_b32 s{sT+5}, 81920\nv_mul_lo_u32 v{q+1}, s{sT+5}, v{q}\nv_and_b32 v{q+2}, 15, v{vL}\nv_lshlrev_b32 v{q+2}, 4, v{q+2}\nv_add3_u32 v{vAO+7}, v{q+2}, v{q+1}, s{sT+4}')
    a.e(f'v_lshl_add_u32 v{vAO+8}, v{q}, 4, s{sT+4}')
    a.e(f's_mul_i32 s{sAUXm}, s{sW}, 5120\ns_add_u32 s{sAUXm}, s{sAUXm}, {AUX}')
def aux_setup2(a):
    q = 184
    a.e(f'v_lshrrev_b32 v{q}, 5, v{vL}\nv_lshlrev_b32 v{q}, 4, v{q}\nv_bfe_u32 v{q+1}, v{vL}, 4, 1\nv_lshl_add_u32 v{q}, v{q+1}, 2, v{q}')
    a.e(f'v_bfe_u32 v{q+1}, v{vL}, 2, 2\nv_add_u32 v{q}, v{q}, v{q+1}\nv_mul_u32_u24 v{q}, 160, v{q}\nv_add_u32 v{q}, s{sAUXm}, v{q}')
    a.e(f'v_and_b32 v{q+1}, 3, v{vL}\nv_lshl_add_u32 v{vAO+5}, v{q+1}, 4, v{q}\nv_lshl_add_u32 v{vAO+6}, v{q+1}, 3, v{q}')

def unc_vm(text):
    def op(a): a.e(text); a.vm_issued -= 1
    return op
def unc_lg(text):
    def op(a): a.e(text); a.lg_issued -= 1
    return op
def pack_dma(st):
    o = []
    for i in range(5):
        def op(a, i=i):
            if i in (0, 4): a.e(f's_add_u32 m0, s{sAUXm}, {4096 if i else 0}')
            st['pk'] = a.vm(f'buffer_load_dwordx4 v{vAO+i}, {srd(SW2)}, s{sPo} offen offset:{(1024*i)%4096} {opt("ntp", "")} lds')
        o.append(op)
    return o
def pack_reads(st):
    o = [lambda a: a.wait(vm=st['pk'])]
    for ct in range(5):
        for h in range(2):
            t = (f'ds_read_b64_tr_b16 v[{vPK+4*ct+2*h}:{vPK+4*ct+2*h+1}], v{vAO+5} offset:{(ct>>1)*64+(ct&1)*8+h*1280}' if ct < 4 else
                 f'ds_read_b64_tr_b16 v[{vPK+4*ct+2*h}:{vPK+4*ct+2*h+1}], v{vAO+6} offset:{128+h*1280}')
            o.append(lambda a, t=t, ct=ct: st.__setitem__(('pr', ct), a.lg(t)))
    return o
def pack_stores(st):
    o = []
    for ct in range(5):
        def op(a, ct=ct):
            a.wait(lg=st[('pr', ct)])
            if ct == 4: a.e(f's_add_u32 s{sPs}, s{sPs}, 4096')
            st['ps'] = a.vm(f'buffer_store_dwordx4 v[{vPK+4*ct}:{vPK+4*ct+3}], v{vAO+9}, {srd(SWS)}, s{sPs} offen offset:{(1024*ct)%4096} sc1')
        o.append(op)
    return o
def aux_publish(st):
    g = 186
    def op(a):
        a.e(f'v_mov_b32 v{g+3}, s{sTAG}\ns_mov_b32 exec_lo, 0x00010001\ns_mov_b32 exec_hi, 0x00010001')
        a.vm(f'buffer_store_dwordx4 v[{g}:{g+3}], v{vAO+8}, {srd(SWS)}, s{sSs} offen sc1')
        a.wait(vm=st['ps'])
        a.e('s_mov_b64 exec, 1')
        a.vm(f'buffer_store_dword v{g+3}, v{vAO+9}, {srd(SWS)}, s{sPf} offen sc1')
        a.e('s_mov_b64 exec, -1'); stamp(a, 'pf')
    return op
def stats_loads(st):
    return [lambda a, i=i: st.__setitem__('sl', a.vm(f'buffer_load_dwordx4 v[{vSD+4*i}:{vSD+4*i+3}], v{vAO+7}, {srd(SX)}, s{sSo} offen offset:{256*i}')) for i in range(5)]
def stats_proc(st):
    q = 180; g = 186; d = vSD
    o = [lambda a: a.wait(vm=st['sl']), f's_mov_b32 s{sT}, 0xbf803f80']
    o += [f'v_mov_b32 v{q+k}, 0' for k in range(3)]
    o += [f'v_dot2c_f32_bf16 v{q}, s{sONES}, v{d+r}\nv_dot2c_f32_bf16 v{q+1}, v{d+r}, v{d+r}\nv_dot2c_f32_bf16 v{q+2}, s{sT}, v{d+r}' for r in range(20)]
    for sh in (8, 4, 2, 1):
        o += [f'v_add_f32_dpp v{q+k}, v{q+k}, v{q+k} row_ror:{sh} row_mask:0xf bank_mask:0xf' for k in range(3)]
    o += L(f'v_mul_f32 v{q}, {fhex(1/640)}, v{q}\nv_mul_f32 v{q+1}, {fhex(1/640)}, v{q+1}')
    o += L(f'v_fma_f32 v{q+1}, -v{q}, v{q}, v{q+1}\nv_max_f32 v{q+1}, 0, v{q+1}\nv_add_f32 v{q+1}, {fhex(1e-5)}, v{q+1}')
    o += L(f'v_rsq_f32 v{q+3}, v{q+1}\nv_sqrt_f32 v{g+1}, v{q+1}\nv_sub_f32 v{g}, 0, v{q}\nv_mul_f32 v{g+2}, v{q+2}, v{q+3}')
    return o

def nonce_pub(a):
    if opt('wsb', 0): a.e(f's_add_u32 s80, s80, {opt("wsb", 0) << 20}\ns_addc_u32 s81, s81, 0')
    a.e(mk_srd(SWS, 80, WS_END)); a.e(mk_srd(SOUT, 76, 2048*1280))
    a.e(f's_mov_b64 s[{sB1}:{sB1+1}], s[70:71]\ns_mov_b64 s[{sB2}:{sB2+1}], s[74:75]\ns_mov_b64 s[{sDBG}:{sDBG+1}], s[78:79]')
    ln = label('non')
    a.e(f's_or_b32 s{sT}, s2, s{sW}\ns_cmp_lg_u32 s{sT}, 0\ns_cbranch_scc1 {ln}')
    a.e(f's_memrealtime s[{sT+1}:{sT+2}]\ns_waitcnt lgkmcnt(0)\ns_or_b32 s{sT}, s{sT+1}, 1')
    a.e(f'v_mov_b32 v{vT}, 0\nv_mov_b32 v{vT+1}, s{sT}')
    a.e(f'global_store_dword v{vT}, v{vT+1}, s[{sDBG}:{sDBG+1}] sc1'); a.vm_issued -= 1
    a.e(f'{ln}:')

def setup2(a, t):
    a.e(f's_mov_b32 s{sONES}, 0x3f803f80')
    a.e(f's_sub_u32 s{sT+2}, 32, s{sRB}\ns_cmp_eq_u32 s{sRB}, 0\ns_cselect_b32 s{sT+2}, 16, s{sT+2}')
    a.e(f's_cmp_eq_u32 s{sZ}, 1\ns_cselect_b32 s{sT1}, s{sT+2}, s{sRB}\ns_mov_b32 s{sC}, s{sC8}')
    a.e(f's_mul_i32 s{sTAU}, s{sW}, 14\ns_cmp_eq_u32 s{sW}, 3\ns_cselect_b32 s{sTAU}, 41, s{sTAU}')
    a.e(f'v_and_b32 v{vT}, 31, v{vL}\nv_lshrrev_b32 v{vT+1}, 5, v{vL}')
    a.e(f'v_bfe_u32 v{vT+2}, v{vL}, 1, 3\nv_xor_b32 v{vT+2}, v{vT+2}, v{vT+1}')
    a.e(f'v_lshlrev_b32 v{vT+3}, 7, v{vT}\nv_add_u32 v{vT+3}, s{sMA}, v{vT+3}\nv_lshl_add_u32 v{vAR[0]}, v{vT+2}, 4, v{vT+3}')
    for s in range(1, 4): a.e(f'v_xor_b32 v{vAR[s]}, {s<<5}, v{vAR[0]}')
    a.e(f'v_bfe_u32 v{vT+4}, v{vL}, 2, 2\nv_lshl_add_u32 v{vT+2}, v{vT+1}, 3, v{vT+4}\nv_mul_u32_u24 v{vT+2}, {t.pitch}, v{vT+2}')
    a.e(f'v_bfe_u32 v{vT+3}, v{vL}, 4, 1\nv_lshl_add_u32 v{vT+2}, v{vT+3}, 5, v{vT+2}')
    a.e(f'v_and_b32 v{vT+3}, 3, v{vL}\nv_lshl_add_u32 v{vT+2}, v{vT+3}, 3, v{vT+2}\nv_add_u32 v{vT+2}, {BBASE}, v{vT+2}')
    if t.nG == 2: a.e(f'v_lshrrev_b32 v{vT+4}, 1, v{vT+4}')
    for i in range(t.nG):
        a.e(f's_add_u32 s{sT}, s{sW}, {i}\ns_and_b32 s{sT}, s{sT}, {t.nG-1}')
        a.e(f'v_xor_b32 v{vT+3}, s{sT}, v{vT+4}\nv_lshl_add_u32 v{vBR[i]}, v{vT+3}, 6, v{vT+2}')
        a.e(f's_mul_i32 s{sH[i]}, s{sROW}, 54\ns_add_u32 s{sH[i]}, s{sH[i]}, s{sG0}\ns_add_u32 s{sH[i]}, s{sH[i]}, s{sT}\ns_lshl_b32 s{sH[i]}, s{sH[i]}, 11')
    a.e(f's_lshl_b32 s{sFL}, s2, 2\ns_add_u32 s{sFL}, s{sFL}, s{sW}\ns_lshl_b32 s{sFL}, s{sFL}, 7\ns_add_u32 s{sFL}, s{sFL}, {F_OFF}')
    a.e(f'v_and_b32 v{vT}, 15, v{vL}\nv_bfe_u32 v{vT+1}, v{vL}, 4, 1\nv_mov_b32 v{vT+2}, s{sONES}\nv_cmp_eq_u32 vcc, v{vT}, v{vT+1}\nv_cndmask_b32 v{vT+2}, 0, v{vT+2}, vcc')
    for k in range(4): a.e(f'v_accvgpr_write_b32 a{192+k}, v{vT+2}')
    a.e(f'v_lshlrev_b32 v{vL16}, 4, v{vL}')
    a.e(f'v_lshlrev_b32 v{vHO}, 10, v{vT+1}\nv_lshrrev_b32 v{vT+1}, 5, v{vL}\nv_lshl_add_u32 v{vHO}, v{vT+1}, 8, v{vHO}\nv_lshl_add_u32 v{vHO}, v{vT}, 4, v{vHO}')

vSG = 244
def gen_D(a, t, tmp):
    q = tmp
    a.e(f'v_and_b32 v{q}, 31, v{vL}\nv_lshrrev_b32 v{q+1}, 5, v{vL}\nv_lshlrev_b32 v{q+1}, 3, v{q+1}\nv_and_b32 v{q+3}, 1, v{vL}')
    a.e(f'v_cmp_eq_u32 vcc, 0, v{q+3}\nv_cndmask_b32 v{q+2}, 0, 0.5, vcc\nv_cndmask_b32 v{vSG}, 1.0, -1.0, vcc')
    a.e(f's_mul_i32 s{sT+1}, s{sW}, {5*2048}\ns_add_u32 s{sT+1}, s{sT+1}, {t.DREG}\nv_add_u32 v{q+3}, s{sT+1}, v{vL16}')
    a.e(f's_lshl_b32 s{sT}, s{sDT}, 4\ns_add_u32 s{sT}, s{sT}, 1\nv_add_u32 v{q+4}, s{sT}, v{q}\nv_cvt_f32_u32 v{q+4}, v{q+4}\nv_mul_f32 v{q+4}, {fhex(1/640)}, v{q+4}')
    for k5 in range(5):
        a.e(f's_mul_i32 s{sT}, s{sW}, 5\ns_add_u32 s{sT}, s{sT}, {k5}\ns_and_b32 s{sT+2}, s{sT}, 1\ns_lshr_b32 s{sT}, s{sT}, 1\ns_lshl_b32 s{sT}, s{sT}, 5\ns_add_u32 s{sT}, s{sT}, s{sT+2}')
        o = q + 8
        a.e(f'v_add_u32 v{q+6}, s{sT}, v{q+1}\nv_cvt_f32_u32 v{q+6}, v{q+6}\nv_fma_f32 v{o}, v{q+6}, v{q+4}, v{q+2}')
        for i in range(1, 8): a.e(f'v_fmamk_f32 v{o+i}, v{q+4}, {fhex(float(16*(i>>2) + 2*(i&3)))}, v{o}')
        for i in range(8): a.e(f'v_cos_f32 v{o+8+i}, v{o+i}\nv_sin_f32 v{o+i}, v{o+i}')
        for ip in range(4): a.e(cvtpk(o+8+ip, o+8+2*ip, o+9+2*ip))
        a.lg(f'ds_write_b128 v{q+3}, v[{o+8}:{o+11}] offset:{(k5*2)*1024}')
        for ip in range(4): a.e(cvtpk(o+16+ip, o+2*ip, o+1+2*ip))
        a.lg(f'ds_write_b128 v{q+3}, v[{o+16}:{o+19}] offset:{(k5*2+1)*1024}')

import math
def bf16(x):
    u = struct.unpack('<I', struct.pack('<f', x))[0]
    return ((u + 0x7fff + ((u >> 16) & 1)) >> 16) & 0xffff
def F_table():
    w = []
    for fn in (math.cos, math.sin, lambda x: -math.sin(x)):
        for f in range(2):
            for l in range(64):
                t1 = l & 31; hi = l >> 5
                v = [bf16(round(fn(2*math.pi*((t1*(16*f + 8*(i >> 2) + 4*hi + (i & 3))) % 32)/32), 12)) for i in range(8)]
                w += [v[2*k] | (v[2*k+1] << 16) for k in range(4)]
    return w
def load_F():
    return [f'global_load_dwordx4 {aF(k)}, v{vL16}, s[82:83] offset:{1024*k}' for k in range(4)] + ['s_add_u32 s82, s82, 4096\ns_addc_u32 s83, s83, 0'] + [f'global_load_dwordx4 {aF(4+k)}, v{vL16}, s[82:83] offset:{1024*k}' for k in range(2)]

def rot_ids(a):
    for j in range(4):
        a.e(f's_add_u32 s{sT}, s{sW}, {1+j}\ns_and_b32 s{sT+1}, s{sT}, 1\ns_bfe_u32 s{sT}, s{sT}, 0x10001')
        a.e(f's_lshl_b32 s{sT}, s{sT}, 5\ns_add_u32 s{sT}, s{sT}, s{sT1}\ns_lshl_b32 s{sT+1}, s{sT+1}, 10\ns_add_u32 s{sHB[j]}, s{sT}, s{sT+1}')
def gen_TW(a, t, sT=sT):
    a.e(f'v_and_b32 v{t}, 15, v{vL}\nv_lshrrev_b32 v{t+1}, 4, v{vL}\ns_lshl_b32 s{sT}, s{sW}, 2\nv_add_u32 v{t+1}, s{sT}, v{t+1}')
    a.e(f'v_sub_u32 v{t+2}, 32, v{t+1}\nv_cmp_eq_u32 vcc, 0, v{t+1}\nv_cndmask_b32 v{t+2}, v{t+2}, 16, vcc')
    a.e(f's_mov_b32 s{sT+1}, 0x3a000000')
    a.e(f's_cmp_ge_u32 s{sC}, 4\ns_cselect_b32 s{sT+1}, s{sT+1}, 0xba000000')
    a.e(f'v_cvt_f32_u32 v{t+1}, v{t+1}\nv_cvt_f32_u32 v{t+2}, v{t+2}\nv_add_f32 v{t+3}, {fhex(32.0)}, v{t+1}\nv_add_f32 v{t+4}, {fhex(32.0)}, v{t+2}')
    s2r = [t+1, t+3, t+2, t+4]
    a.e(f'v_lshlrev_b32 v{t}, 6, v{t}')
    for j in range(4):
        a.e(f'v_add_u32 v{t+5}, s{sHB[j]}, v{t}\nv_cvt_f32_u32 v{t+5}, v{t+5}\nv_mul_f32 v{t+5}, s{sT+1}, v{t+5}')
        for w in range(4): a.e(f'v_mul_f32 v{t+6+w}, v{t+5}, v{s2r[w]}')
        for w in range(4): a.e(f'v_cos_f32 v{t+10+w}, v{t+6+w}\nv_sin_f32 v{t+6+w}, v{t+6+w}')
        for w in range(4): a.e(cvtpk(t+6+w, t+10+w, t+6+w))
        for w in range(4): a.e(f'v_accvgpr_write_b32 a{aTW+4*j+w}, v{t+6+w}')

def check_loop(a, load_text, vval, nl, cnt):
    ok, lp = label('ok'), label('lp')
    if nl < 64: a.e(f's_mov_b32 exec_lo, {hex(((1<<nl)-1)&0xffffffff)}\ns_mov_b32 exec_hi, {hex(((1<<nl)-1)>>32)}')
    a.e(f'v_cmp_ne_u32 vcc, s{sTAG}, v{vval}\ns_mov_b32 s{cnt}, 0\ns_cbranch_vccz {ok}')
    a.e(f'{lp}:\ns_sleep {opt("slp", 1)}')
    a.e(load_text); a.vm_issued -= 1
    a.e(f's_waitcnt vmcnt(0)\nv_cmp_ne_u32 vcc, s{sTAG}, v{vval}\ns_add_u32 s{cnt}, s{cnt}, 1\ns_cmp_gt_u32 s{cnt}, 100000\ns_cbranch_scc1 {ok}\ns_cbranch_vccnz {lp}')
    a.e(f'{ok}:')
    if nl < 64: a.e('s_mov_b64 exec, -1')

def nonce_check(a, tok):
    ok, lp = label('nok'), label('nlp')
    a.wait(vm=tok)
    a.e(f'v_readfirstlane_b32 s{sTAG}, v{vNON}\ns_mov_b32 s{sPC}, 0\ns_cmp_lg_u32 s{sTAG}, 0\ns_cbranch_scc1 {ok}')
    a.e(f'{lp}:\nv_mov_b32 v{vNON}, 0')
    a.e(f'global_load_dword v{vNON}, v{vNON}, s[{sDBG}:{sDBG+1}] sc1'); a.vm_issued -= 1
    a.e(f's_waitcnt vmcnt(0)\nv_readfirstlane_b32 s{sTAG}, v{vNON}\ns_add_u32 s{sPC}, s{sPC}, 1\ns_cmp_gt_u32 s{sPC}, 100000\ns_cbranch_scc1 {ok}')
    a.e(f's_cmp_eq_u32 s{sTAG}, 0\ns_cbranch_scc1 {lp}\n{ok}:')

SLOW = []
def adapt(a, text):
    return a.vm(text + ' sc1')
def set_flag_h(a, vt):
    a.e(f'v_mov_b32 v{vt}, 0\nv_mov_b32 v{vt+1}, s{sTAG}\ns_mov_b64 exec, 1')
    adapt(a, f'buffer_store_dword v{vt+1}, v{vt}, {srd(SWS)}, s{sFH} offen')
    a.e('s_mov_b64 exec, -1')
def set_flag(a, word, vt):
    a.e(f'v_mov_b32 v{vt}, {4*word}\nv_mov_b32 v{vt+1}, s{sTAG}\ns_mov_b64 exec, 1')
    a.vm(f'buffer_store_dword v{vt+1}, v{vt}, {srd(SWS)}, s{sFL} offen sc1')
    a.e('s_mov_b64 exec, -1')

def w2_load_ops(slot, st, cts=range(5)):
    ops = []
    for ct in cts:
        def op(a, ct=ct):
            vo = st['vL16d'] if slot == 13 else st.get('vW', vL16)
            need = 5120*slot + (4096 if ct == 4 else 0)
            if st.get('w2cur') != need: a.e(f's_add_u32 s{sW2o}, s{sUS}, {need}'); st['w2cur'] = need
            st['w2'][(slot, ct)] = a.vm(f'buffer_load_dwordx4 {W2(slot,ct)}, v{vo}, {srd(SWS)}, s{sW2o} offen offset:{(1024*ct)%4096} sc1')
        ops.append(op)
    return ops

vDS = 195
def P2(d, h): return f'v[{128+32*d+16*h}:{143+32*d+16*h}]'
def PE(p, par): b = 228 + 8*(p & 1) + 4*par; return b
def pass1(a, t, st):
    nG = t.nG; NK = 40 if nG == 4 else 42
    def dinfo(ks): return (ks & 1, (ks - 2) >> 1) if (nG == 2 and ks >= 2) else None
    def rdW(ks, i):
        c, s = divmod(ks, 4); o = []
        if i < nG:
            if ks >= 40: return []
            for h in range(2):
                o.append(lambda a, h=h: st['w'].__setitem__((ks, i), a.lg(f'ds_read_b64_tr_b16 {WB(ks&1,i,h)}, v{vBR[i]} offset:{(c%4)*t.bslot + s*16*t.pitch + h*4*t.pitch}')))
        elif dinfo(ks):
            d, p = dinfo(ks)
            o.append(lambda a: st['w'].__setitem__((ks, i), a.lg(f'ds_read_b128 {WB(ks&1,i)}, v{vDS} offset:{(((p%10)*2 + i-2)*2 + d)*1024}')))
        return o
    def rdA(c, s):
        return f'ds_read_b128 {X(4*c+s)}, v{vAR[s]} offset:{ARING + (c%4)*16384}'
    st['w'] = {}
    if nG == 2: a.e(f'v_add_u32 v{vDS}, {t.DREG}, v{vL16}\ns_mov_b32 s{sE+2}, 0x05040100\ns_mov_b32 s{sE+3}, 0x07060302')
    a.wait(vm=st['dma'][0], lg=a.lg_issued)
    a.e('s_barrier')
    stamp(a, 2)
    a.e(rdA(0, 0))
    for i in range(4): run(a, rdW(0, i))
    for s in range(1, 4): a.e(rdA(0, s))
    S = Sched(); first = {}
    for ks in range(NK):
        c, s = divmod(ks, 4); buf = ks & 1
        for i in range(4):
            pre = []
            if i == 0 and s == 3 and c < 9:
                pre.append(lambda a, c=c: (a.wait(vm=st['dma'][c+1]), a.e('s_barrier')))
            if i in (0, 2):
                pre.append(lambda a, ks=ks, i=i: a.wait(lg=st['w'][(ks, i+1)]) if (ks, i+1) in st['w'] else None)
            m = None
            if i < nG:
                if ks < 40: m = f'v_mfma_f32_32x32x16_bf16 {ACC1(i)}, {WB(buf,i)}, {X(ks)}, {"0" if ks == 0 else ACC1(i)}'
            elif dinfo(ks):
                d, p = dinfo(ks); b = PE(p, i-2)
                m = f'v_mfma_f32_32x32x16_bf16 {P2(d, i-2)}, v[{b}:{b+3}], {WB(buf,i)}, {"0" if p == 0 else P2(d, i-2)}'
            idx = S.add(m, pre)
            if i == 0: first[ks] = idx
            if i == 0 and ks < 37: S.put(idx, [f'v_mfma_f32_16x16x32_bf16 {aCS}, {aSEL}, {WB(buf,0)}, {"0" if ks == 0 else aCS}'])
        if ks < NK - 1:
            rd = [rdA(c+1, 0)] if (s == 3 and c < 9) else []
            k = len(rd)
            for i in range(4): rd += rdW(ks+1, i)
            if nG == 4: S.put(first[ks], rd[:k+3]); S.put(first[ks]+1, rd[k+3:7]); S.put(first[ks]+2, rd[7:])
            else: S.put(first[ks], rd[:k+3]); S.put(first[ks]+1, rd[k+3:])
            if s == 3 and c < 9: S.put(first[ks]+3, [rdA(c+1, 1)])
            if s == 0 and 0 < c < 10: S.put(first[ks]+3, [rdA(c, 2), rdA(c, 3)])
        if nG == 2 and ks & 1 and ks < 40:
            p = ks >> 1; xa = 196 + 4*((ks-1) % 8); xb = 196 + 4*(ks % 8)
            pm = []
            for par in range(2):
                for k, src in enumerate((xa, xa+2, xb, xb+2)): pm.append(f'v_perm_b32 v{PE(p,par)+k}, v{src+1}, v{src}, s{sE+2+par}')
            S.put(first[ks]+2, pm[:4]); S.put(first[ks]+3, pm[4:])
    if nG == 2:
        for d in range(2): S.spread([f'v_mul_f32 v{128+32*d+k}, v{vSG}, v{128+32*d+k}' for k in range(32)], first[21+d]+1, first[22+d]+1)
    exb = 160 if nG == 4 else 84
    ex = []
    for n in range(3):
        for h in range(2):
            ex.append(lambda a, n=n, h=h: st.__setitem__('ex', a.lg(f'ds_read_b64_tr_b16 v[{exb+4*n+2*h}:{exb+1+4*n+2*h}], v{vBR[0]} offset:{(9%4)*t.bslot + (n+1)*16*t.pitch + h*4*t.pitch}')))
    mm = [lambda a: a.wait(lg=st['ex'])] + [f'v_mfma_f32_16x16x32_bf16 {aCS}, {aSEL}, v[{exb+4*n}:{exb+3+4*n}], {aCS}' for n in range(3)]
    S.put(first[35]+3, ex[:3]); S.put(first[36]+3, ex[3:]); S.put(first[37], mm); st['cs_slot'] = first[37] + 3; st['bar_slot'] = first[38] + 2
    gaps = []
    for ks in range(40):
        gaps += [(ks, first[ks]), (ks, first[ks]+2)] + ([(ks, first[ks]+3)] if ks < opt('ncu', 6) else [])
    gi = 0
    for c in range(st['next_chunk'], 10):
        ops = dma_ops(t, c, st)
        A = ops[1:5]; B = ops[6:-1]
        eA = (c-3)*4 if c >= 4 else 0
        eB = (c-2)*4 - 1 if c >= 4 else 0
        lo = max(0, (c - opt('la', 2) - 1)*4 + 1)
        for k, op in enumerate(A + B):
            e = max(eA if k < 4 else eB, lo)
            while gaps[gi][0] < e: gi += 1
            pre = [ops[0]] if k == 0 else ([ops[5]] if k == 4 else [])
            post = [ops[-1]] if k == 3 + len(B) else []
            g = gaps[gi][1]
            if pre: S.put(g - 1 if g > 0 else g, pre)
            if k == 0: st.setdefault('grp', {})[c] = (g - 1 if g > 0 else g, pre[0], gaps[gi][0])
            S.put(g, [op] + post); gi += 1
        assert gaps[gi-1][0] < c*4 - 1, (c, gaps[gi-1])
    return S, first

AUGW = None
def h_aug_x(tmp):
    p, q2 = tmp+4, tmp+5
    o = [cvtpk(p, vNM, vSDV), f'v_lshlrev_b32 v{tmp+6}, 16, v{p}', f'v_and_b32 v{tmp+7}, 0xffff0000, v{p}',
         f'v_sub_f32 v{tmp+6}, v{vNM}, v{tmp+6}', f'v_sub_f32 v{tmp+7}, v{vSDV}, v{tmp+7}', cvtpk(q2, tmp+6, tmp+7)]
    o += [f'v_mov_b32 v{tmp+k}, 0' for k in range(4)]
    o += [f's_mov_b32 s{sT+3}, 0x05040100\ns_mov_b32 exec_hi, 0\nv_perm_b32 v{tmp}, v{q2}, v{p}, s{sT+3}\nv_mov_b32 v{tmp+1}, v{p}\nv_lshrrev_b32 v{tmp+2}, 16, v{q2}\ns_mov_b32 exec_hi, -1']
    return o
def h_aug_w(st, i, tmp, vtb):
    b = AUGW[i]
    rd = [lambda a: st['tb'].__setitem__(i, a.lg(f'ds_read2_b32 v[{b+4}:{b+5}], v{vtb} offset0:0 offset1:128'))]
    mk = [lambda a: a.wait(lg=st['tb'][i]), cvtpk(b, b+4, b+4), cvtpk(b+2, b+5, b+5), f'v_and_b32 v{b+1}, 0xffff0000, v{b}', f'v_mov_b32 v{b+3}, 0',
          f'v_sub_f32 v{b+1}, v{b+4}, v{b+1}', cvtpk(b+1, b+1, b+5)]
    mf = [f'v_mfma_f32_32x32x16_bf16 {ACC1(i)}, v[{b}:{b+3}], v[{tmp}:{tmp+3}], {ACC1(i)}']
    return rd, mk, mf
def h_fin(st, i, u):
    acc = 32 + 16*i + 8*u; o = []
    for k in range(8): o.append(f'v_max_f32 v{acc+k}, 0, v{acc+k}')
    for k in range(8): o.append(f'v_mul_f32 v{acc+k}, v{vR}, v{acc+k}')
    for k in range(8): o.append(f'v_mul_f32 v{acc+k}, v{acc+k}, v{acc+k}')
    for k in range(4): o.append(cvtpk(acc+k, acc+2*k, acc+2*k+1))
    if opt('nohst', 0): o.append(lambda a: st.__setitem__('hst', a.vm_issued))
    else: o.append(lambda a: st.__setitem__('hst', adapt(a, f'buffer_store_dwordx4 v[{acc}:{acc+3}], v{vHO}, {srd(SWS)}, s{sH[i]} offen offset:{512*u}')))
    return o

class Rec:
    def __init__(self): self.ops = []; self.tok = {}
    def e(self, text):
        ls = L(text); i = 0
        while i < len(ls):
            j = i + 1
            if ls[i].startswith('s_cmp') or ls[i].startswith('s_bitcmp') or ls[i].startswith('v_cmp'):
                while j < len(ls) and not (ls[j].startswith('s_cselect') or ls[j].startswith('s_cbranch') or ls[j].startswith('v_cndmask')): j += 1
                while j < len(ls) and (ls[j].startswith('s_cselect') or ls[j].startswith('s_cbranch') or ls[j].startswith('v_cndmask')): j += 1
            self.ops.append('\n'.join(ls[i:j])); i = j
    def lg(self, text): self.ops.append(text)
    def vm(self, text, key='t'):
        self.ops.append(lambda a: self.tok.__setitem__(key, a.vm(text)))
def merge(main, other):
    out = []; n, m = len(main), len(other); k = 0
    for i, op in enumerate(main):
        out.append(op)
        while k < m and (k + 1) * n <= (i + 1) * m + m - 1 and k * n <= i * m: out.append(other[k]); k += 1
    return out + other[k:]

def touch_ops(t, lo, hi, q=188):
    n = hi - lo
    o = [f'v_mov_b32 v{q+2}, {OOB}']
    o += L(f'v_and_b32 v{q}, 3, v{vL}\ns_lshl_b32 s{sPC}, s{sC8}, 2\nv_add_u32 v{q}, s{sPC}, v{q}\nv_mul_u32_u24 v{q}, 640, v{q}\nv_lshrrev_b32 v{q+1}, 2, v{vL}\nv_add3_u32 v{q}, v{q}, v{q+1}, {lo}\nv_lshlrev_b32 v{q}, 7, v{q}')
    o += [f'v_cmp_gt_u32 vcc, {4*n}, v{vL}\nv_cndmask_b32 v{q}, v{q+2}, v{q}, vcc', f's_mul_i32 s{sPC}, s{sROW}, 1280']
    o += [f'buffer_load_dword v{vPF}, v{q}, {srd(SX)}, s{sPC} offen {opt("ntx", "")}']
    if t.nG == 4: o += L(f'v_lshrrev_b32 v{q}, 1, v{vL}\nv_and_b32 v{q+1}, 1, v{vL}')
    else: o += L(f'v_mov_b32 v{q}, v{vL}\nv_mov_b32 v{q+1}, 0')
    o += L(f'v_lshlrev_b32 v{q}, 4, v{q}\ns_and_b32 s{sPC}, s{sRB}, 3\ns_lshl_b32 s{sPC}, s{sPC}, 2\ns_add_u32 s{sPC}, s{sPC}, s{sW}\ns_add_u32 s{sPC}, s{sPC}, {64*lo}')
    o += L(f'v_add_u32 v{q}, s{sPC}, v{q}\nv_mul_u32_u24 v{q}, 0xd80, v{q}\nv_lshl_add_u32 v{q}, v{q+1}, 7, v{q}\ns_lshl_b32 s{sPC}, s{sG0}, 6')
    o += [f'v_cmp_gt_u32 vcc, {(8 if t.nG == 4 else 4)*n}, v{vL}\nv_cndmask_b32 v{q}, v{q+2}, v{q}, vcc']
    o += [f'buffer_load_dword v{vPF}, v{q}, {srd(SW1)}, s{sPC} offen {opt("ntw", "")}']
    assert n <= 8
    return o

vTX, vTW = 193, 194; sTX, sTW = 52, 63
def roll_setup(t, n):
    q = 188
    o = L(f'v_mov_b32 v{q+2}, {OOB}\nv_and_b32 v{q+3}, 3, v{vL}\nv_lshrrev_b32 v{q+1}, 2, v{vL}\ns_mul_i32 s{sPC}, s{sZ}, 6\ns_add_u32 s{sPC}, s{sPC}, s{sC8}\ns_mul_i32 s{sPC}, s{sPC}, 3')
    o += L(f'v_add_u32 v{q}, s{sPC}, v{q+3}\nv_min_u32 v{q}, 31, v{q}\nv_mul_u32_u24 v{q}, 640, v{q}\nv_add_lshl_u32 v{q}, v{q}, v{q+1}, 7')
    o += [f'v_cmp_gt_u32 vcc, {4*n}, v{vL}\nv_cndmask_b32 v{q}, v{q+2}, v{q}, vcc', f'v_cmp_gt_u32 vcc, 3, v{q+3}\nv_cndmask_b32 v{vTX}, v{q+2}, v{q}, vcc', f's_mul_i32 s{sTX}, s{sROW}, 1280']
    o += L(f's_mul_i32 s{sTW}, s{sZ}, 12\ns_add_u32 s{sTW}, s{sTW}, s{sC8}\ns_add_u32 s{sTW}, s{sTW}, 12\ns_lshl_b32 s{sTW}, s{sTW}, 7\ns_add_u32 s{sPC}, s{sZ}, 2')
    o += [f's_cmp_lt_u32 s{sC8}, s{sPC}\ns_cselect_b32 s{sTW}, s{sTW}, {OOB}', f'v_mov_b32 v{q}, s{sTW}', f's_lshl_b32 s{sPC}, s{sG0}, 6', f'v_lshl_add_u32 v{vTW}, v{q+3}, 7, s{sPC}']
    o += [f'v_cmp_eq_u32 vcc, 2, v{q+3}\nv_cndmask_b32 v{vTW}, v{vTW}, v{q}, vcc', f'v_cmp_eq_u32 vcc, 3, v{q+3}\nv_cndmask_b32 v{vTW}, v{vTW}, v{q+2}, vcc']
    o += L(f's_lshl_b32 s{sPC}, s{sRB}, 2\ns_add_u32 s{sPC}, s{sPC}, s{sW}\nv_lshl_add_u32 v{q}, v{q+1}, 6, s{sPC}\nv_mul_u32_u24 v{q}, 0xd80, v{q}\nv_add_u32 v{vTW}, v{vTW}, v{q}')
    o += [f'v_cmp_gt_u32 vcc, {4*n}, v{vL}\nv_cndmask_b32 v{vTW}, v{q+2}, v{vTW}, vcc', f's_mov_b32 s{sTW}, 0']
    return o
def roll(st, lo):
    def op1(a):
        d = lo - st.get('roll', 0); st['roll'] = lo
        if d: a.e(f's_add_u32 s{sTX}, s{sTX}, {128*d}\ns_add_u32 s{sTW}, s{sTW}, {64*3456*d}')
        a.vm(f'buffer_load_dword v{vPF}, v{vTX}, {srd(SX)}, s{sTX} offen {opt("ntx", "")}')
    return [op1, f'buffer_load_dword v{vPF}, v{vTW}, {srd(SW1)}, s{sTW} offen {opt("ntw", "")}']

def build_type(a, t):
    st = {'dma': {}, 'w2': {}, 'tb': {}}
    nG, nD = t.nG, t.nD
    XV[0] = (nG == 2)
    rs = [x.split('@') for x in opt('rs', '1@s0,4@s1,7@s2').split(',') if x]
    at = lambda p: [o for c_, p_ in rs if p_ == p for o in roll(st, int(c_))]
    prologue_t(a, t, st)
    if nG == 4: run(a, at('s0'))
    run(a, dma_ops(t, 0, st))
    stamp(a, 'p2')
    a.e(mk_srd(SW2, 72, 1728*1280))
    nonce_pub(a)
    if opt('tlb', 21):
        sh = opt('tlb', 21)
        a.e(f'v_lshl_add_u32 v{vT}, v{vL}, 2, s{sW}\nv_lshlrev_b32 v{vT}, {sh}, v{vT}\ns_mov_b64 exec, {hex((1 << opt("tn", 2)) - 1)}')
        a.vm(f'buffer_load_dword v{vPF}, v{vT}, {srd(SWS)}, 0 offen sc1')
        a.e('s_mov_b64 exec, 3')
        a.vm(f'buffer_load_dword v{vPF}, v{vT}, {srd(SOUT)}, 0 offen sc1')
        a.e('s_mov_b64 exec, -1')
    stamp(a, 'p3')
    r = Rec()
    setup2(r, t)
    if nG == 4: aux_setup(r); aux_setup2(r)
    if nG == 2: gen_D(r, t, 96)
    rot_ids(r)
    if opt('twR', 0) if nG == 4 else opt('twS', 0): gen_TW(r, 96)
    main = r.ops
    vSA, vFA, vFV = vT+3, vT+4, vT+5
    st['vL16d'] = 192
    pre = L(f's_lshl_b32 s{sT}, s{sRB}, 2\ns_add_u32 s{sT}, s{sT}, s{sW}\ns_lshl_b32 s{sT}, s{sT}, 9\ns_add_u32 s{sT}, s{sT}, {ST_OFF}')
    pre += L(f'v_and_b32 v{vSA}, 31, v{vL}\nv_lshl_add_u32 v{vSA}, v{vSA}, 4, s{sT}')
    pre += L(f'v_add_u32 v{vFA}, s{sTAU}, v{vL}\nv_min_u32 v{vFA}, 53, v{vFA}')
    pre += L(f's_lshl_b32 s{sT}, s{sC}, 7\ns_add_u32 s{sT}, s{sT}, {PF_OFF}\nv_lshlrev_b32 v{vFA}, 10, v{vFA}\nv_add_u32 v{vFA}, s{sT}, v{vFA}')
    pre += L(f's_mul_i32 s{sUS}, s{sC}, 54\ns_add_u32 s{sUS}, s{sUS}, s{sTAU}\ns_mul_i32 s{sUS}, s{sUS}, 5120\ns_add_u32 s{sUS}, s{sUS}, {P_OFF}')
    pre += [f's_cmp_ge_u32 s{sW}, 2\ns_cselect_b32 s{sT}, {OOB}, 0', f'v_add_u32 v192, s{sT}, v{vL16}']
    vTB = [4, 5, 6, 7] if nG == 4 else [14, 15]; vRT = 3
    prep = L(f's_lshl_b32 s{sE+1}, s{sW}, 7\ns_add_u32 s{sE+1}, s{sE+1}, {TABR}\nv_and_b32 v{vT+6}, 31, v{vL}\nv_lshl_add_u32 v{vRT}, v{vT+6}, 2, s{sE+1}')
    for i in range(nG):
        prep += L(f's_add_u32 s{sE}, s{sW}, {i}\ns_and_b32 s{sE}, s{sE}, {nG-1}\ns_lshl_b32 s{sE}, s{sE}, 7\ns_add_u32 s{sE}, s{sE}, {TABC}\nv_lshl_add_u32 v{vTB[i]}, v{vT+6}, 2, s{sE}')
    prep += [f'v_lshrrev_b32 v{vT+6}, 5, v{vL}']
    nonl = [f'v_mov_b32 v{vNON}, 0', lambda a: st.__setitem__('non', a.vm(f'global_load_dword v{vNON}, v{vNON}, s[{sDBG}:{sDBG+1}] sc1'))]
    st['next_chunk'] = 2
    main = main + pre
    if nG == 4:
        n = len(main); c2 = n * opt('c2', 40) // 100; c3 = n * opt('c3', 50) // 100
        run(a, at('s1') + main[:c2] + at('s2') + main[c2:c3]); stamp(a, 'p4')
        run(a, merge(main[c3:], dma_ops(t, 1, st)) + nonl)
        sp = stats_proc(st); ps = pack_stores(st)
    else:
        n = len(main); c3 = n * opt('s3', 30) // 100
        run(a, main[:c3]); stamp(a, 'p4')
        run(a, merge(main[c3:], dma_ops(t, 1, st)) + nonl)
        tw2 = L(f's_mul_i32 s{sT}, s{sRB}, 10\ns_add_u32 s{sT}, s{sT}, s{sDT}\ns_lshl_b32 s{sT}, s{sT}, 1\ns_add_u32 s{sT}, s{sT}, s{sW}\ns_mul_i32 s{sT}, s{sT}, {54*128}\nv_lshlrev_b32 v64, 7, v{vL}')
        tw2 += [f's_mov_b32 exec_hi, 0x3fffff\nbuffer_load_dword v{vPF}, v64, {srd(SW2)}, s{sT} offen\ns_mov_b32 exec_hi, -1']
        if opt('tw2', 2) == 0: run(a, tw2)
    stamp(a, 1)
    S, first = pass1(a, t, st)
    NS = 4
    l = lambda ks: first[ks] + 3
    b1tab = L(f'v_lshlrev_b32 v{vT}, 16, v{vT+7}\nv_and_b32 v{vT+1}, 0xffff0000, v{vT+7}\nv_lshlrev_b32 v{vT+2}, 3, v{vL}\nv_add_u32 v{vT+2}, {TABB}, v{vT+2}\nds_write_b64 v{vT+2}, v[{vT}:{vT+1}]')
    S.spread(b1tab, first[3], l(3))
    S.put(l(opt('kn', 11)), [lambda a: nonce_check(a, st['non'])])
    if nG == 2 and opt('tw2', 2) > 0: S.put(l(opt('tw2', 2)), [lambda a: run(a, tw2)])
    if nG == 4:
        g_ = st['grp'][opt('ag', 3)]
        fl = S.slots[g_[0]]['fill']; fl.insert(fl.index(g_[1]), lambda a: run(a, pack_dma(st)))
        ka_ = g_[2]
        for k_, op_ in enumerate(stats_loads(st)): S.put(first[ka_ + k_] + 1, [op_])
        kb_ = opt('kb', 6)
        S.spread(pack_reads(st), first[kb_], l(kb_+1))
        if opt('dn', 1):
            S.put(first[kb_+1] + 3, [ps[0]])
            for k_, op_ in enumerate(ps[1:]): S.put(first[kb_+2+k_//2] + 1 + 2*(k_ & 1), [op_])
            e_ = kb_ + 4
        else:
            for k_, op_ in enumerate(ps): S.put(first[kb_+2+k_] + 1, [op_])
            e_ = kb_ + 6
        S.put(l(kb_+2), sp[:5] + [lambda a: run(a, sp[5:25])]); S.spread(sp[25:], first[kb_+3], l(e_))
        assert opt('kf', kb_ + 5) >= e_ and opt('kf', kb_ + 5) >= opt('kn', 11)
        S.put(l(opt('kf', kb_ + 5)), [aux_publish(st)])
        for c_, p_ in rs:
            if p_[0] != 's': S.put(l(int(p_)), roll(st, int(c_)))
    pfl = f'buffer_load_dword v{vFV}, v{vFA}, {srd(SWS)}, 0 offen sc1'
    stl = f'buffer_load_dwordx4 v[{vST}:{vST+3}], v{vSA}, {srd(SWS)}, 0 offen sc1'
    if nG == 2: S.spread(load_F(), l(13), l(16))
    sf = '' if nG == 4 else 'S'
    kq = opt('kq' + sf, 27 if nG == 4 else 30); kp = kq - 3
    early = opt('early', 1)
    S.put(l(opt('ks', 31)), [lambda a: st.__setitem__('stl', a.vm(stl))])
    S.put(l(kp if early else 38), [lambda a: st.__setitem__('pfl', a.vm(pfl))])
    pchk = lambda a: (a.wait(vm=st['pfl']), check_loop(a, pfl, vFV, 14, sPC), stamp(a, 'pc'))
    S.put(l(kq), [pchk if early else (lambda a: a.wait(vm=st['stl']))])
    allw = []
    for s_ in (range(14) if nG == 4 else list(range(3, 14)) + [0, 1, 2]): allw += w2_load_ops(s_, st)
    st['twq'] = []
    if opt('touchw', 0):
        nl_ = opt('tl', 16)
        tw = L(f's_bfe_u32 s{sT}, s2, 0x20003\nv_lshl_add_u32 v{vFA}, v{vL}, 2, s{sT}\nv_lshlrev_b32 v{vFA}, 7, v{vFA}\ns_mov_b32 s{sTX}, s{sUS}')
        S.put(l(kq), tw)
        nb_ = -(-130 // nl_)
        for j in range(nb_):
            n_ = min(nl_, 130 - j*nl_)
            op = f's_mov_b64 exec, {hex((1 << n_) - 1)}\nbuffer_load_dword v{vPF}, v{vFA}, {srd(SWS)}, s{sTX} offen sc1\ns_mov_b64 exec, -1\ns_add_u32 s{sTX}, s{sTX}, {nl_*512}'
            k_ = kq + 1 + opt('tstep', 3)*j
            if k_ < 40: S.put(first[k_] + 1, [op])
            else: st['twq'].append(op)
    n0 = 0
    kA, kB = kq + 1, opt('kB' + sf, 31)
    for ks in range(kA, 40):
        pos_ = [first[ks] + 1] if ks < kB else sorted([first[ks], first[ks] + NS - 2, first[ks] + 1][:opt('ne' + sf, 3)])
        if ks < kB and (ks - kA) % opt('kAs' + sf, 2 if nG == 4 else 1): pos_ = []
        for p_ in pos_: S.put(p_, [allw[n0]]); n0 += 1
    assert n0 <= (60 if nG == 4 else 44 - opt('naS', 6) - opt('dr1', 0))
    global AUGW
    tmp = 172 if nG == 4 else 64
    AUGW = [160, 166, 96, 102] if nG == 4 else [72, 78]
    e1 = [lambda a: (a.wait(vm=st['stl']), check_loop(a, stl, vST+3, 64, sPC))]
    e1 += [f'v_rcp_f32 v{vR}, v{vSDV}']
    if nG == 2: e1 += [f's_nop 0\nds_write2st64_b32 v{vRT}, v{vR}, v{vAL} offset0:0 offset1:2']
    e1 += h_aug_x(tmp)
    S.spread(prep, first[31], l(33)); S.spread(e1, first[34], l(36))
    e2 = L(f'v_accvgpr_read_b32 v{vT}, a196\nv_accvgpr_read_b32 v{vT+1}, a197')
    e2 += [f's_mov_b64 exec, 0xffff\nds_write2_b32 v{vTB[0]}, v{vT}, v{vT+1} offset0:0 offset1:16\ns_mov_b64 exec, -1', lambda a: st.__setitem__('csw', a.lg_issued)]
    S.put(st['cs_slot'], e2)
    S.slots[st['bar_slot']]['pre'].append(lambda a: (a.wait(lg=st['csw']), a.e('s_barrier')))
    aw = [h_aug_w(st, i, tmp, vTB[i]) for i in range(nG)]
    S.put(st['bar_slot'], [x for i in range(nG) for x in aw[i][0]])
    S.spread([x for i in range(nG) for x in aw[i][1]], min(st['bar_slot'] + 2, l(39)), l(39))
    for ks in range(40): S.slots[first[ks]]['pre'].insert(0, lambda a, ks=ks: stamp(a, f'k{ks}'))
    if nG == 2: S.put(first[40], aw[0][2] + aw[1][2])
    S.emit(a)
    if nG == 4:
        for i in range(nG): run(a, aw[i][2])
    stamp(a, 3)
    n1 = n0
    later = allw[n1:]
    ufirst = nG == 2 and opt('ufS', 0)
    def hflag(a):
        a.wait(vm=st['hst']); a.e(f's_add_u32 s{sFH}, s{sFL}, {HF_OFF - F_OFF}'); set_flag_h(a, 193); stamp(a, 'hf')
        if opt('th', 0):
            a.e(f's_mul_i32 s{sFH}, s{sROW}, 54\ns_add_u32 s{sFH}, s{sFH}, s{sG0}\ns_lshl_b32 s{sFH}, s{sFH}, 11\nv_lshlrev_b32 v193, 3, v{vL16}')
            if nG == 2: a.e('s_mov_b32 exec_hi, 0')
            a.vm(f'buffer_load_dword v194, v193, {srd(SWS)}, s{sFH} offen sc1')
            if nG == 2: a.e('s_mov_b32 exec_hi, -1')
    def uflag(a):
        a.wait(vm=st['ust']); set_flag(a, 1, 193); stamp(a, 'uf')
    def do_U():
        rr = 96
        a.e(f'v_lshl_add_u32 v{vT}, v{vT+6}, 4, s{sE+1}')
        for jq in range(4): rt_ = a.lg(f'ds_read_b128 v[{rr+4*jq}:{rr+4*jq+3}], v{vT} offset:{32*jq}')
        vXW, vXR_, vUS = vT+2, vT+3, vT+4
        a.e(f'v_and_b32 v{vT+1}, 31, v{vL}\nv_lshlrev_b32 v{vT+5}, 2, v{vT+1}\nv_lshl_add_u32 v{vXW}, v{vT+6}, 9, v{vT+5}\ns_lshl_b32 s{sE}, s{sW}, 12\nv_add_u32 v{vXW}, s{sE}, v{vXW}')
        a.e(f's_lshl_b32 s{sE}, s{sW}, 10\nv_lshl_add_u32 v{vXR_}, v{vL}, 2, s{sE}')
        a.e(f's_mov_b32 s{sE}, 81920\nv_mul_lo_u32 v{vT+5}, s{sE}, v{vT+6}\nv_lshl_add_u32 v{vUS}, v{vT+1}, 4, v{vT+5}')
        budget = [opt('dr1', 0)]
        def drip():
            if budget[0] > 0 and len(later) > 15: later.pop(0)(a); budget[0] -= 1
        a.wait(lg=rt_)
        for d in range(2):
            E, O = 128 + 32*d, 144 + 32*d
            for j in range(16):
                if j % 8 == 4: drip()
                tq = 228 + (j & 3)
                x, y = (E+j, O+j) if d == 0 else (O+j, E+j)
                a.e(f'v_add_f32 v{tq}, v{E+j}, v{O+j}\nv_sub_f32 v{O+j}, v{x}, v{y}\nv_mul_f32 v{E+j}, v{rr+j}, v{tq}\nv_mul_f32 v{O+j}, v{rr+j}, v{O+j}')
            for j in range(8): a.e(cvtpk(E+j, E+2*j, E+2*j+1))
        DR = [(64, 80), (196, 212)]
        def step2(part):
            c0 = 128 + 16*part; s0 = 160 + 16*part; UR, UV = DR[part]
            UR = f'v[{UR}:{UR+15}]'; UV = f'v[{UV}:{UV+15}]'
            G = lambda b, f: f'v[{b+4*f}:{b+4*f+3}]'
            for k, (A1, A2, B) in enumerate(((0, 2, G(c0,0)), (1, 3, G(c0,1)), (4, 0, G(s0,0)), (5, 1, G(s0,1)))):
                a.e(f'v_mfma_f32_32x32x16_bf16 {UR}, {aF(A1)}, {B}, {"0" if k == 0 else UR}')
                a.e(f'v_mfma_f32_32x32x16_bf16 {UV}, {aF(A2)}, {B}, {"0" if k == 0 else UV}')
        def comb(part):
            UR, UV = DR[part]
            for j in range(16):
                a.e(cvtpk(UR+j, UR+j, UV+j))
                a.lg(f'ds_write_b32 v{vXW}, v{UR+j} offset:{XCH + part*16384 + (8*(j>>2)+(j&3))*128}')
                if j % opt('dre', 3) == 0: drip()
        stamp(a, 'u0')
        step2(0)
        ls = label('spec')
        a.e(f's_cmp_lg_u32 s{sDT}, 8\ns_cbranch_scc1 {ls}')
        for jq in range(4): a.e(f'ds_read_b128 v[{232+4*jq}:{235+4*jq}], v{vT} offset:{512+32*jq}')
        a.lg_issued -= 4
        a.e('s_waitcnt lgkmcnt(0)\ns_mov_b32 exec_lo, 0x80000000\ns_mov_b32 exec_hi, 0x80000000')
        for j in range(16): a.e(f'v_mov_b32 v{144+j}, v{232+j}\nv_mov_b32 v{176+j}, 0')
        a.e(f's_mov_b64 exec, -1\n{ls}:')
        for O in (144, 176):
            for j in range(8): a.e(cvtpk(O+j, O+2*j, O+2*j+1))
        hp_ = opt('hpS', 1)
        step2(1)
        do_H()
        budget[0] = opt('dr2', 0); comb(0)
        if hp_ == 0: hflag(a)
        comb(1)
        stamp(a, 'u1')
        if hp_ == 1: hflag(a)
        a.wait(lg=a.lg_issued); a.e('s_barrier')
        stamp(a, 'u2')
        toks = []
        for part in range(2):
            for i in range(4):
                b = 128 + 16*part + 4*i
                a.lg(f'ds_read2st64_b32 v[{b}:{b+1}], v{vXR_} offset0:{64*part+i} offset1:{64*part+16+i}')
                toks.append(a.lg(f'ds_read2st64_b32 v[{b+2}:{b+3}], v{vXR_} offset0:{64*part+32+i} offset1:{64*part+48+i}'))
        a.e(f's_lshl_b32 s{sE}, s{sW}, 7\ns_add_u32 s{sE}, s{sE}, s{sRB}\ns_mul_i32 s{sE}, s{sE}, 5120\ns_lshl_b32 s{sE+1}, s{sDT}, 8\ns_add_u32 s{sE}, s{sE}, s{sE+1}\ns_add_u32 s{sE}, s{sE}, {U_OFF}')
        for i in range(1, 4): a.e(f's_add_u32 s{sE+i}, s{sE}, {2*81920*i}')
        for part in range(2):
            if part == 0 and hp_ == 2: hflag(a)
            for i in range(4):
                b = 128 + 16*part + 4*i
                a.wait(lg=toks[4*part+i])
                st['ust'] = a.vm(f'buffer_store_dwordx4 v[{b}:{b+3}], v{vUS}, {srd(SWS)}, s{sE+i} offen offset:{2560*part} sc1')
        stamp(a, 'u3')
        if hp_ == 3: hflag(a)
    def do_H():
        S = Sched()
        for k in range(8*nG): S.add(None)
        nm = len(S.slots)
        ops = []
        for i in range(nG): ops += [lambda a, i=i: stamp(a, f'f{i}')] + h_fin(st, i, 0) + h_fin(st, i, 1)
        S.spread(ops, 0, nm - 1)
        k_ = opt('na', 10) if nG == 4 else opt('naS', 6)
        if st['twq']: S.spread(st['twq'], 0, nm - 1)
        if k_: S.spread(later[:k_], 0, nm - 1); del later[:k_]
        if ufirst: S.put(min(nm - 1, opt('ufs', 20)), [uflag])
        hfe = -1
        S.emit(a)
        stamp(a, 4)
    if nG == 4: do_H()
    else: do_U()
    if nG == 2: later = later[-15:] + later[:-15]
    nin = opt('nin' + sf, 0)
    st['inp2'] = later[len(later) - nin:]; later = later[:len(later) - nin]
    stamp(a, 5)
    phase2(a, st, hflag if (ufirst or nG == 4) else uflag, later, not (opt('twR', 0) if nG == 4 else opt('twS', 0)))

def phase2(a, st, hflag, later, doTW):
    RED = 65536 if XV[0] else 0
    t = 2
    q = 144
    r = Rec()
    if doTW: gen_TW(r, q)
    sGI = sE
    r.e(f's_mul_i32 s{sGO}, s{sHB[3]}, 1280\ns_mul_i32 s{sGI}, s{sHB[1]}, 1280')
    vHJ = [184, 185, 186, 187]; vHD = [188, 189, 190, 191]
    for j in range(4):
        r.e(f's_and_b32 s{sT}, s{sHB[j]}, 1024\ns_and_b32 s{sHB[j]}, s{sHB[j]}, 63\ns_mul_i32 s{sHB[j]}, s{sHB[j]}, 54\ns_add_u32 s{sHB[j]}, s{sHB[j]}, s{sTAU}\ns_lshl_b32 s{sHB[j]}, s{sHB[j]}, 11\ns_add_u32 s{sHB[j]}, s{sHB[j]}, s{sT}')
        r.e(f'v_add_u32 v{vHJ[j]}, s{sHB[j]}, v{vL16}\nv_add_u32 v{vHD[j]}, s{sHB[j]}, v192')
    r.e(f's_mov_b32 s{sKO[0]}, 0\ns_movk_i32 s{sKO[13]}, {13*2048}')
    for k in range(1, 13):
        if opt('rho', 0): r.e(f's_add_u32 s{sKO[k]}, s{sKO[k-1]}, 2048\ns_cmp_eq_u32 s{sKO[k]}, s{sKO[13]}\ns_cselect_b32 s{sKO[k]}, 0, s{sKO[k]}')
        elif k % 2 == 0: r.e(f's_movk_i32 s{sKO[k]}, {2048*k}')
    vG4, vG2, vB4 = t+8, t+9, t+10
    r.e(f's_mul_i32 s{sCW}, s{sC}, 160\ns_add_u32 s{sGO}, s{sGO}, s{sCW}\ns_add_u32 s{sGI}, s{sGI}, s{sCW}\ns_mov_b32 s{sT}, 81920')
    r.e(f'v_and_b32 v{q}, 15, v{vL}\nv_mul_lo_u32 v{q}, s{sT}, v{q}\nv_lshrrev_b32 v{q+1}, 4, v{vL}\nv_lshl_add_u32 v{vG4}, v{q+1}, 4, v{q}\nv_lshl_add_u32 v{vG2}, v{q+1}, 3, v{q}')
    r.e(f'v_lshl_add_u32 v{vB4}, v{q+1}, 4, s{sCW}\nv_lshl_add_u32 v{q+2}, v{q+1}, 3, s{sCW}')
    xr = 160; br = 172
    r.ops += [f'buffer_load_dwordx4 v[{xr}:{xr+3}], v{vG4}, {srd(SX)}, s{sGI} offen', f'buffer_load_dwordx4 v[{xr+4}:{xr+7}], v{vG4}, {srd(SX)}, s{sGI} offen offset:64',
              f'buffer_load_dwordx2 v[{xr+8}:{xr+9}], v{vG2}, {srd(SX)}, s{sGI} offen offset:128',
              f'global_load_dwordx4 v[{br}:{br+3}], v{vB4}, s[{sB2}:{sB2+1}]', f'global_load_dwordx4 v[{br+4}:{br+7}], v{vB4}, s[{sB2}:{sB2+1}] offset:64']
    r.vm(f'global_load_dwordx2 v[{br+8}:{br+9}], v{q+2}, s[{sB2}:{sB2+1}] offset:128', 'xb')
    r.e(f's_and_b32 s{sT+1}, s2, 15\ns_lshr_b32 s{sT+2}, s{sW}, 1\ns_lshl_b32 s{sT+2}, s{sT+2}, 4\ns_add_u32 s{sT+1}, s{sT+1}, s{sT+2}')
    r.e(f's_and_b32 s{sT+2}, s{sW}, 1\ns_mul_i32 s{sT+2}, s{sT+2}, 96\ns_add_u32 s{sT+1}, s{sT+1}, s{sT+2}')
    r.e(f's_lshl_b32 s{sT+1}, s{sT+1}, 2\ns_lshl_b32 s{sT+2}, s{sZ}, 1\ns_add_u32 s{sT+1}, s{sT+1}, s{sT+2}')
    vF1, vF2, vFV = t, t+1, t+2
    r.e(f'v_lshrrev_b32 v{q}, 1, v{vL}\nv_lshlrev_b32 v{q}, 7, v{q}\nv_and_b32 v{q+1}, 1, v{vL}\nv_add3_u32 v{q}, v{q}, v{q+1}, s{sT+1}')
    r.e(f'v_lshlrev_b32 v{vF1}, 7, v{q}\nv_add_u32 v{vF1}, {HF_OFF}, v{vF1}')
    r.e(f's_sub_u32 s{sTS1}, 32, s{sT1}\ns_and_b32 s{sTS1}, s{sTS1}, 31\ns_cmp_ge_u32 s{sC}, 4\ns_cselect_b32 s{sTS1}, s{sTS1}, s{sT1}')
    r.e(f'v_and_b32 v{q}, 7, v{vL}\nv_min_u32 v{q}, 4, v{q}\nv_lshlrev_b32 v{q+2}, 5, v{q}\nv_add_u32 v{q+3}, {6*32}, v{q+2}\nv_add_u32 v{q+2}, {3*32+16}, v{q+2}')
    r.e(f'v_cmp_gt_u32 vcc, 2, v{q}\nv_cndmask_b32 v{q}, v{q+2}, v{q+3}, vcc')
    r.e(f'v_and_b32 v{q+1}, 8, v{vL}\nv_bfe_u32 v{q+3}, v{vL}, 4, 1\nv_add3_u32 v{q}, v{q}, v{q+1}, v{q+3}')
    r.e(f's_lshl_b32 s{sT}, s{sW}, 3\ns_lshr_b32 s{sT+2}, s{sTS1}, 3\ns_add_u32 s{sT}, s{sT}, s{sT+2}\nv_lshl_add_u32 v{q}, v{q}, 2, s{sT}')
    r.e(f'v_lshlrev_b32 v{vF2}, 7, v{q}\nv_add_u32 v{vF2}, {F_OFF+4}, v{vF2}\nv_lshrrev_b32 v{q+1}, 4, v{vL}')
    vUO = [t+3+k for k in range(5)]
    r.e(f'v_and_b32 v{q}, 15, v{vL}\ns_mul_i32 s{sT}, s{sC}, 80\nv_and_b32 v{q+4}, 12, v{vL}\nv_add3_u32 v{q+4}, v{q+4}, v{q}, s{sT}\nv_add_u32 v{q}, s{sT}, v{q}')
    r.e(f's_movk_i32 s{sT+1}, 5120\nv_mul_u32_u24 v{q+1}, s{sT+1}, v{q+1}')
    r.e(f's_cmp_ge_u32 s{sC}, 4\ns_cselect_b32 s{sT}, -1, 0\ns_cselect_b32 s{sT+1}, 640, -1')
    for ct in range(5):
        if ct < 4: r.e(f'v_add_u32 v{q+2}, {32*(ct>>1)+4*(ct&1)}, v{q+4}')
        else: r.e(f'v_add_u32 v{q+2}, 64, v{q}')
        r.e(f'v_xor_b32 v{q+2}, s{sT}, v{q+2}\nv_add_u32 v{q+2}, s{sT+1}, v{q+2}\nv_sub_u32 v{q+5}, 478, v{q+2}')
        r.e(f'v_cmp_lt_i32 vcc, 159, v{q+2}\nv_cndmask_b32 v{q+5}, v{q+2}, v{q+5}, vcc')
        if ct == 0: r.e(f'v_cmp_eq_u32 vcc, 319, v{q+2}\nv_cndmask_b32 v{q+5}, v{q+5}, v{q+2}, vcc')
        r.e(f'v_lshl_add_u32 v{vUO[ct]}, v{q+5}, 4, v{q+1}')
        if ct == 0: r.e(f'v_mov_b32 v{q+3}, {OOB}\nv_cmp_gt_i32 vcc, 0, v{q+2}\nv_cndmask_b32 v{vUO[0]}, v{vUO[0]}, v{q+3}, vcc')
    r.e(f's_lshl_b32 s{sUo}, s{sTS1}, 4\ns_lshl_b32 s{sT}, s{sW}, 2\ns_add_u32 s{sUo}, s{sUo}, s{sT}\ns_mul_i32 s{sUo}, s{sUo}, 5120\ns_add_u32 s{sUo}, s{sUo}, {U_OFF}')
    vPW, vP2, vP1 = t+11, t+12, t+13
    r.e(f's_mul_i32 s{sT}, s{sW}, 15360\ns_add_u32 s{sT}, s{sT}, {RED}\nv_add_u32 v{vPW}, s{sT}, v{vL16}')
    r.e(f's_xor_b32 s{sT}, s{sW}, 2\ns_mul_i32 s{sT}, s{sT}, 15360\ns_add_u32 s{sT}, s{sT}, {RED}\nv_add_u32 v{vP2}, s{sT}, v{vL16}')
    r.e(f's_add_u32 s{sT}, s{sW}, 1\ns_and_b32 s{sT}, s{sT}, 3\ns_mul_i32 s{sT}, s{sT}, 15360\ns_add_u32 s{sT}, s{sT}, {RED}\nv_add_u32 v{vP1}, s{sT}, v{vL16}')
    vP3 = 0
    r.e(f's_add_u32 s{sT}, s{sW}, 3\ns_and_b32 s{sT}, s{sT}, 3\ns_mul_i32 s{sT}, s{sT}, 15360\ns_add_u32 s{sT}, s{sT}, {RED}\nv_add_u32 v{vP3}, s{sT}, v{vL16}')
    r.ops.insert(len(r.ops) * opt('hfp' + ('S' if XV[0] else ''), 25 if XV[0] else 20) // 100, hflag)
    hl = f'buffer_load_dword v{vFV}, v{vF1}, {srd(SWS)}, 0 offen sc1'
    nl = max(0, len(later) - opt('nlast', 12))
    mm_ = merge(r.ops, later[:nl]); h_ = len(mm_) // 2
    run(a, mm_[:h_]); stamp(a, 's1'); run(a, mm_[h_:]); stamp(a, 's2')
    ini = [lambda a: a.wait(vm=r.tok['xb']), f's_mov_b32 s{sT}, 0x05040100\ns_mov_b32 s{sT+1}, 0x07060302']
    for ct in range(5):
        b = 36 + 4*ct
        for k in range(2):
            xs = xr + (4*(ct >> 1) + 2*(ct & 1) + k if ct < 4 else 8 + k); bs = xs - xr + br
            ini += L(f'v_perm_b32 v{b+2*k}, v{bs}, v{xs}, s{sT}\nv_perm_b32 v{b+2*k+1}, v{bs}, v{xs}, s{sT+1}')
    for k in range(20): ini.append(f'v_dot2_f32_bf16 v{36+k}, v{36+k}, s{sONES}, 0')
    a.e(f'v_mov_b32 v{vL}, v{vL16}'); st['vW'] = vL
    a.e('s_mov_b64 exec, 0x3ff')
    tk = a.vm(hl)
    a.e('s_mov_b64 exec, -1')
    run(a, merge(ini, later[nl:]))
    stamp(a, 6)
    a.wait(vm=tk)
    check_loop(a, hl, vFV, 10, sPC)
    stamp(a, 7)
    ht = {}
    def hload(slot, j):
        def op(a):
            vo = vHD[j] if slot == 13 else vHJ[j]
            ht[(slot, j)] = a.vm(f'buffer_load_dwordx4 {HF(pos[(slot, j)])}, v{vo}, {srd(SWS)}, s{sKO[slot] if RHO else sKO[slot & ~1]} offen offset:{0 if RHO else 2048*(slot & 1)} sc1')
        return op
    order = [(s_, j) for j in range(4) for s_ in range(14)]
    pos = {k: n for n, k in enumerate(order)}
    ul = f'buffer_load_dword v{vFV}, v{vF2}, {srd(SWS)}, 0 offen sc1'
    for n in range(RING): hload(*order[n])(a)
    hp = RING
    wq = list(st['inp2'])
    S = Sched(); f = {}
    def group(s_, j):
        nonlocal hp
        n = pos[(s_, j)]
        for ct in range(5):
            pre = [lambda a: a.wait(vm=max(ht[(s_, j)], max(st['w2'][(s_, c_)] for c_ in range(5))))] if ct == 0 else []
            if ct == 0 and s_ == 0 and j == 3: pre.append(lambda a: a.wait(lg=st[('ci', j)]))
            c0 = '0' if (s_ == 0 and j in (0, 2)) else ACC2(ct, j)
            idx = S.add(f'v_mfma_f32_16x16x32_bf16 {ACC2(ct,j)}, {W2(s_,ct)}, {HF(n)}, {c0}', pre)
            if ct == 0: f[(s_, j)] = idx
        if hp < 56: S.put(idx, [hload(*order[hp])]); hp += 1
    def ustep(j):
        for ct in range(5):
            pre = [lambda a: a.wait(vm=st['uf'])] if ct == 0 else []
            S.add(f'v_mfma_f32_16x16x32_bf16 {ACC2(ct,j)}, {UF(ct)}, a[{aTW+4*j}:{aTW+4*j+3}], {ACC2(ct,j)}', pre)
    u0 = opt('u0', 5)
    for j in range(4):
        for s_ in range(14):
            group(s_, j)
            if j == 2 and s_ == u0: ustep(1); ustep(0)
        if j >= 2: ustep(j)
    bar = lambda a: (a.wait(lg=a.lg_issued), a.e('s_barrier'))
    def wr(j, at, step):
        for ct in range(5): S.put(at + step*ct, [f'ds_write_b128 v{vPW}, {ACC2(ct,j)} offset:{j*5120 + ct*1024}'])
    def rd(key, dst, va, off, at, step):
        for ct in range(5): S.put(at + step*ct, [lambda a, ct=ct: st.__setitem__(key, a.lg(f'ds_read_b128 {dst(ct)}, v{va} offset:{off + ct*1024}'))])
    PB = 144
    wr(1, f[(u0+1, 2)] + 1, 3); S.put(f[(u0+5, 2)] + 1, [bar]); rd(('ci', 3), lambda ct: ACC2(ct, 3), vP2, 5120, f[(u0+5, 2)] + 3, 4)
    wr(0, f[(u0+6, 2)] + 1, 4)
    wr(2, f[(1, 3)] + 1, 3); S.put(f[(5, 3)] + 1, [bar])
    rd('pr', lambda ct: f'v[{PB+4*ct}:{PB+4*ct+3}]', vP1, 10240, f[(5, 3)] + 3, 2)
    rd('pr', lambda ct: f'v[{PB+20+4*ct}:{PB+23+4*ct}]', vP3, 0, f[(5, 3)] + 13, 2)
    S.spread([lambda a: a.wait(lg=st['pr'])] + [f'v_add_f32 v{PB+k}, v{PB+k}, v{PB+20+k}' for k in range(20)], f[(10, 3)], f[(13, 3)] + 8)
    ku = opt('ku', 10)
    fl = [f[k] for k in order]
    S.put(fl[ku] + 1, [lambda a: (a.e('s_mov_b32 exec_hi, 0'), st.__setitem__('ul', a.vm(ul)), a.e('s_mov_b32 exec_hi, -1'))])
    kc = ku + opt('kc', 12)
    S.put(fl[kc] + 1, [lambda a: (a.wait(vm=st['ul']), check_loop(a, ul, vFV, 32, sPC), stamp(a, 'uc'))])
    for ct in range(5):
        S.put(fl[kc + ct] + 3, [lambda a, ct=ct: st.__setitem__('uf', a.vm(f'buffer_load_dwordx4 {UF(ct)}, v{vUO[ct]}, {srd(SWS)}, s{sUo} offen sc1'))])
    for j in range(4): S.slots[f[(0, j)]]['pre'].insert(0, lambda a, j=j: stamp(a, f'l{j}'))
    S.slots[f[(1, 0)]]['pre'].insert(0, lambda a: stamp(a, 'e1'))
    assert not wq
    S.emit(a)
    stamp(a, 8)
    a.wait(lg=st['pr'])
    o = 96
    for ct in range(5):
        b = 76 + 4*ct
        for k in range(4): a.e(f'v_add_f32 v{b+k}, v{b+k}, v{PB+4*ct+k}')
        a.e(cvtpk(o+2*ct, b, b+1)); a.e(cvtpk(o+2*ct+1, b+2, b+3))
        ost = opt('ost', '')
        if ct == 1: a.vm(f'buffer_store_dwordx4 v[{o}:{o+3}], v{vG4}, {srd(SOUT)}, s{sGO} offen {ost}')
        if ct == 3: a.vm(f'buffer_store_dwordx4 v[{o+4}:{o+7}], v{vG4}, {srd(SOUT)}, s{sGO} offen offset:64 {ost}')
        if ct == 4: a.vm(f'buffer_store_dwordx2 v[{o+8}:{o+9}], v{vG2}, {srd(SOUT)}, s{sGO} offen offset:128 {ost}')
    if DBG == 3:
        a.wait_all()
        le = label('dbgskip')
        a.e(f's_memrealtime s[{sT+1}:{sT+2}]\ns_waitcnt lgkmcnt(0)')
        a.e(f's_cmp_lg_u32 s{sW}, 0\ns_cbranch_scc1 {le}')
        a.e(f's_cmp_eq_u32 s2, {opt("wgA", 8)}\ns_cselect_b32 s{sT}, 4, 0\ns_cmp_eq_u32 s2, {opt("wgB", 232)}\ns_cselect_b32 s{sT}, 32, s{sT}\ns_cmp_eq_u32 s{sT}, 0\ns_cbranch_scc1 {le}')
        for k in range(1, 7): a.e(f's_sub_u32 s{sT+3}, s{sTS+2*k}, s{sTS}\nv_mov_b32 v{15+k}, s{sT+3}')
        a.e(f's_sub_u32 s{sT+3}, s{sT+1}, s{sTS}\nv_mov_b32 v22, s{sT+3}\nv_mov_b32 v2, s{sT}\ns_mov_b64 exec, 1')
        a.e(f'global_store_dwordx4 v2, v[16:19], s[{sDBG}:{sDBG+1}]\nglobal_store_dwordx3 v2, v[20:22], s[{sDBG}:{sDBG+1}] offset:16')
        a.e(f'{le}:')
    elif DBG:
        a.wait_all()
        a.e(f'{"s_memtime" if DBG == 2 else "s_memrealtime"} s[{sT+1}:{sT+2}]\ns_waitcnt lgkmcnt(0)')
        for k in range(9): a.e(f'v_mov_b32 v{16+k}, s{sTS+2*k}')
        a.e(f'v_mov_b32 v25, s{sT+1}\nv_mov_b32 v26, 0\nv_mov_b32 v27, 0')
        a.e(f's_lshl_b32 s{sT}, s2, 2\ns_add_u32 s{sT}, s{sT}, s{sW}\ns_lshl_b32 s{sT}, s{sT}, 6\ns_add_u32 s{sT}, s{sT}, {TS_OFF}')
        a.e(f'v_mov_b32 v2, 0\ns_mov_b64 exec, 1')
        for k in range(3): a.e(f'buffer_store_dwordx4 v[{16+4*k}:{19+4*k}], v2, {srd(SWS)}, s{sT} offen offset:{16*k}')
    a.e('s_endpgm')

def build():
    a = Asm(); prologue(a)
    outs = [a]
    for nG in (4, 2):
        b = a.fork()
        if nG == 2: b.e('L_S:')
        build_type(b, T(nG)); outs.append(b)
    lines = []
    for o in outs: lines += o.finish()
    return lines + SLOW

hdr = open('cdna_kernels/%s.s.ref' % NAME).read().split('; Override launch')[0]
lines = build()
if opt('al8', 0):
    import subprocess, re as _re
    def sizes(ls):
        open('_al.s', 'w').write('.amdgcn_target "amdgcn-amd-amdhsa--gfx950"\n.text\n' + '\n'.join(ls) + '\nL_end:\nL_ftab:\n')
        subprocess.run(['clang', '-x', 'assembler', '-target', 'amdgcn-amd-amdhsa', '-mcpu=gfx950', '-c', '_al.s', '-o', '_al.o'], check=True)
        d = subprocess.run(['llvm-objdump', '-d', '--mcpu=gfx950', '_al.o'], capture_output=True, text=True).stdout
        return [4*len(m.group(1).split()) for m in _re.finditer(r'// [0-9A-F]+: ([0-9A-F ]+)', d)]
    sz = sizes(lines); idx = [i for i, l in enumerate(lines) if not l.endswith(':')]
    assert len(sz) == len(idx), (len(sz), len(idx))
    addr = 0; prev = None; nfix = 0; nmiss = 0
    ok = ('v_mul_f32', 'v_max_f32', 'v_add_f32', 'v_sub_f32', 'v_mov_b32', 'v_cos_f32', 'v_sin_f32', 'v_add_u32', 'v_and_b32', 'v_lshlrev_b32', 'v_lshrrev_b32', 'v_xor_b32', 'v_cvt_f32_u32', 'v_mul_u32_u24', 'v_min_u32', 'v_sub_u32', 'v_rcp_f32')
    cand = None
    for k, i in enumerate(idx):
        if sz[k] == 8 and addr % 8 == 4:
            if cand is not None:
                mn = lines[cand].split()[0]; lines[cand] = lines[cand].replace(mn, mn + '_e64', 1); addr += 4; nfix += 1
            elif opt('al8', 0) == 2 and lines[i].startswith('v_mfma'):
                lines[i] = 's_nop 0\n    ' + lines[i]; addr += 4; nfix += 1
            else: nmiss += 1
        if sz[k] == 4 and lines[i].split()[0] in ok: cand = i
        elif sz[k] != 4: cand = None
        addr += sz[k]
    print('align: fixed', nfix, 'unfixed', nmiss)
with open(sys.argv[1], 'w') as f:
    f.write(hdr)
    f.write(f'; @launch grid=(256,1,1) block=(256,1,1) lds={LDS_BYTES}\n')
    f.write('.amdgcn_target "amdgcn-amd-amdhsa--gfx950"\n.text\n')
    f.write(f'.globl {NAME}_kernel\n.p2align 8\n.type {NAME}_kernel,@function\n{NAME}_kernel:\n')
    for l in lines: f.write(('' if l.endswith(':') else '    ') + l + '\n')
    f.write('L_end:\n    s_endpgm\n')
    f.write('.p2align 8\n.type L_ftab,@object\nL_ftab:\n')
    tb = F_table()
    for i in range(0, len(tb), 8): f.write('.long ' + ', '.join('0x%08x' % x for x in tb[i:i+8]) + '\n')
    f.write('.fill 8192, 4, 0\n')
    f.write(f'''.section .rodata,"a"
.p2align 6
.amdhsa_kernel {NAME}_kernel
  .amdhsa_next_free_vgpr 512
  .amdhsa_next_free_sgpr 102
  .amdhsa_accum_offset 256
  .amdhsa_group_segment_fixed_size 0
  .amdhsa_kernarg_size 104
  .amdhsa_user_sgpr_count 2
  .amdhsa_user_sgpr_kernarg_segment_ptr 1
  .amdhsa_system_sgpr_workgroup_id_x 1
.end_amdhsa_kernel
''')
print('instructions:', len(lines))
```

```python
import sys, struct, copy, os
from asmlib import Asm
NAME = 'parallel_sum__spectral_fnet__dense_activation_squared_relu__prompt'
DBG = int(sys.argv[2]) if len(sys.argv) > 2 else 0
OPT = dict(kv.split('=') for kv in sys.argv[3:])
def opt(k, d): return type(d)(OPT.get(k, d))

H_OFF = 0; U_OFF = 0x6C0000; P_OFF = 0x940000; ST_OFF = 0xB5C000; F_OFF = 0xB68000; TS_OFF = 0xB88000; PF_OFF = 0xBA0000; HF_OFF = 0xBB0000; WS_END = 0xBD0000
OOB = 0x40000000
ARING = 0; BBASE = 65536; AUX = 131072; TAB = 161792; TABC = TAB; TABB = TAB + 512; TABR = TAB + 1024; TABA = TAB + 1536
XCH = 0
RED_PITCH = 336; RED_WAVE = 64 * RED_PITCH
LDS_BYTES = 163840
SX, SW1, SW2, SWS, SOUT = 4, 8, 12, 16, 20
sB1, sB2, sDBG = 24, 26, 28
sW, sZ, sRB, sC8, sROW, sG0 = 30, 31, 32, 33, 34, 35
sA, sA2, sBo, sMA, sMB = 36, 37, 38, 39, 40
sT1, sC, sTAG, sONES = 41, 42, 43, 44
sT = 45
sH = [53, 54, 55, 56]; sFL = 57; sDT = 58; sAUXo = 59; sAUXs = 60; sTAU = 61; sW2o = 62; sH0 = 63; sH1 = 64; sUo = 65
sCW = 61+0*0 if False else 83; sGO = 82; sTS1 = 66; sPC = 51; sUS = 70; sE = 71
sAUXm = 3; sHB = [78, 79, 80, 81]
sRHO = 75; sWE = 76; sW4 = 77; sXCC = 66; sLOC = 67; sFH = 68
sKO = [36, 37, 38, 39, 40, 53, 54, 55, 56, 58, 59, 60, 63, 64]
sTS = 84
def srd(b): return f's[{b}:{b+3}]'
def fhex(x): return '0x%08x' % struct.unpack('<I', struct.pack('<f', x))[0]
XV = [False]
def X(ks): return f'v[{196+4*(ks%8)}:{199+4*(ks%8)}]' if XV[0] else f'a[{4*(ks%8)}:{4*(ks%8)+3}]'
def ACC1(i): return f'v[{32+16*i}:{47+16*i}]'
def WB(b, i, h=None):
    base = 96 + 16*b + 4*i if i < 4 else 184 + 4*b
    return f'v[{base}:{base+3}]' if h is None else f'v[{base+2*h}:{base+2*h+1}]'
aTW = 160; aF0 = 176; aSEL = 'a[192:195]'; aCS = 'a[196:199]'
def aF(k): return f'a[{aF0+4*k}:{aF0+4*k+3}]' if k < 4 else f'a[{152+4*(k-4)}:{155+4*(k-4)}]'
vL = 1
vOA = [2, 3]; vOB = [4, 5, 6, 7]; vAR = [8, 9, 10, 11]; vBR = [12, 13, 14, 15]
vT = 16
vST = 24
vNM, vSDV, vAL, vR = 24, 25, 26, 28
vNON = 28; vPF = 29; vHO = 30; vL16 = 31
vAUX = 160
def W2(slot, ct):
    if slot < 3: k, b = 'v', 196 + 20*slot + 4*ct
    elif slot < 5: k, b = 'a', 200 + 20*(slot-3) + 4*ct
    elif slot < 11: k, b = 'a', 32 + 20*(slot-5) + 4*ct
    elif slot == 11: k, b = 'a', (240 + 4*ct if ct < 4 else 152)
    elif slot == 12: k, b = 'a', (4*ct if ct < 4 else 156)
    else: k, b = 'a', (16 + 4*ct if ct < 4 else 196)
    return f'{k}[{b}:{b+3}]'
def UF(ct): return f'a[{176+4*ct}:{179+4*ct}]'
def ACC2(ct, rt): b = 16 + 20*rt + 4*ct; return f'v[{b}:{b+3}]'
RHO = opt('rho', 0)
RING = opt('ring', 10)
def HF(n): b = 96 + 4*(n % RING); return f'v[{b}:{b+3}]'

TSL = OPT.get('ts', '0,1,2,3,4,5,6,7,8').split(',')
def stamp(a, name):
    if str(name) not in TSL: return
    idx = TSL.index(str(name))
    if DBG: a.e(f'{"s_memtime" if DBG == 2 else "s_memrealtime"} s[{sTS+2*idx}:{sTS+2*idx+1}]')
def cvtpk(d, x, y): return f'v_cvt_pk_bf16_f32 v{d}, v{x}, v{y}'
uid = [0]
def label(p):
    uid[0] += 1; return f'L_{p}{uid[0]}'

class Sched:
    def __init__(self): self.slots = []
    def add(self, main, pre=()):
        self.slots.append({'pre': list(pre), 'main': main, 'fill': []}); return len(self.slots) - 1
    def put(self, idx, ops): self.slots[idx]['fill'] += list(ops)
    def spread(self, ops, first, last):
        ops = list(ops); n = last - first + 1
        for k, op in enumerate(ops):
            self.slots[first + min(n - 1, k * n // len(ops))]['fill'].append(op)
    def pack(self, ops, first, per):
        i = first
        for op in ops:
            while i < len(self.slots) - 1 and len(self.slots[i]['fill']) >= per: i += 1
            self.slots[i]['fill'].append(op)
        return i
    def emit(self, a, lo=0, hi=None):
        for s in self.slots[lo:hi]:
            for op in s['pre'] + [s['main']] + s['fill']:
                if op is None: continue
                if callable(op): op(a)
                else: a.e(op)
def L(text): return [t for t in text.split('\n') if t.strip()]

def mk_srd(b, lo, n):
    return f's_mov_b32 s{b}, s{lo}\ns_and_b32 s{b+1}, s{lo+1}, 0xffff\ns_mov_b32 s{b+2}, {n}\ns_mov_b32 s{b+3}, 0x20000'

def prologue(a):
    for _ in range(opt('shift', 0)): a.e('s_nop 0')
    a.e('s_cmp_ge_u32 s2, 256\ns_cbranch_scc1 L_end')
    stamp(a, 0)
    a.e('s_load_dwordx2 s[66:67], s[0:1], 0')
    a.e('s_load_dwordx8 s[68:75], s[0:1], 48')
    a.e('s_load_dwordx4 s[76:79], s[0:1], 80')
    a.e('s_load_dwordx2 s[80:81], s[0:1], 96')
    a.e('s_getpc_b64 s[82:83]\nL_pc:')
    a.e('s_bfe_u32 s3, s2, 0x10003\ns_lshl_b32 s3, s3, 15\nv_lshl_add_u32 v2, v0, 7, s3')
    a.vm(f'global_load_dword v{vPF}, v2, s[82:83]')
    a.e('s_add_u32 s82, s82, L_ftab-L_pc\ns_addc_u32 s83, s83, 0')
    a.e(f'v_lshrrev_b32 v4, 6, v0\nv_and_b32 v{vL}, 63, v0\nv_readfirstlane_b32 s{sW}, v4')
    a.e(f's_bfe_u32 s{sZ}, s2, 0x10004')
    a.e(f's_and_b32 s{sT}, s2, 7\ns_bfe_u32 s{sT+1}, s2, 0x10003\ns_lshl_b32 s{sT}, s{sT}, 1')
    a.e(f's_add_u32 s{sRB}, s{sT}, s{sT+1}\ns_lshr_b32 s{sC8}, s2, 5')
    a.e(f's_sub_u32 s{sT+2}, 32, s{sRB}\ns_cmp_eq_u32 s{sRB}, 0\ns_cselect_b32 s{sT+2}, 16, s{sT+2}')
    a.e(f's_bitcmp1_b32 s{sW}, 1\ns_cselect_b32 s{sROW}, s{sT+2}, s{sRB}')
    a.e(f's_and_b32 s{sT+3}, s{sW}, 1\ns_lshl_b32 s{sT+3}, s{sT+3}, 5\ns_add_u32 s{sROW}, s{sROW}, s{sT+3}')
    a.e(f's_mov_b32 s{sAUXm}, s{sT+2}')
    a.e(f'v_lshrrev_b32 v{vT}, 3, v{vL}\nv_lshrrev_b32 v{vT+1}, 4, v{vL}\nv_and_b32 v{vT+2}, 7, v{vL}')
    a.e(f'v_xor_b32 v{vT+3}, v{vT+2}, v{vT+1}\ns_mov_b32 s{sT+4}, 81920\nv_mul_lo_u32 v{vT+4}, s{sT+4}, v{vT}')
    a.e(f'v_lshl_add_u32 v{vOA[0]}, v{vT+3}, 4, v{vT+4}\nv_xor_b32 v{vT+3}, 4, v{vT+3}')
    a.e(f'v_lshl_add_u32 v{vOA[1]}, v{vT+3}, 4, v{vT+4}\nv_add_u32 v{vOA[1]}, {8*81920-1024}, v{vOA[1]}')
    a.e(f's_mul_i32 s{sA}, s{sROW}, 1280\ns_add_u32 s{sA2}, s{sA}, {16*81920-2048}\ns_lshl_b32 s{sMA}, s{sW}, 12')
    a.e(f's_sub_u32 s{sT+5}, 6, s{sZ}\ns_cmp_ge_u32 s{sC8}, s{sT+5}\ns_cbranch_scc1 L_S')

class T:
    def __init__(self, nG):
        self.nG = nG; self.nD = 0 if nG == 4 else 2
        self.bslot = 4096 * nG
        self.pitch = 64 * nG
        self.DREG = 131072 if nG == 4 else 98304
        self.nb = nG

def prologue_t(a, t, st):
    if t.nG == 4:
        a.e(f's_mul_i32 s{sG0}, s{sZ}, 28\ns_lshl_b32 s{sT}, s{sC8}, 2\ns_add_u32 s{sG0}, s{sG0}, s{sT}')
        a.e(f'v_and_b32 v{vT+2}, 15, v{vL}\nv_lshlrev_b32 v{vT+3}, 2, v{vT+1}\nv_xor_b32 v{vT+2}, v{vT+2}, v{vT+3}')
        a.e(f's_movk_i32 s{sT+6}, 3456\nv_mul_u32_u24 v{vT+3}, s{sT+6}, v{vT+1}\nv_lshl_add_u32 v{vOB[0]}, v{vT+2}, 4, v{vT+3}')
        for i in range(1, 4): a.e(f'v_add_u32 v{vOB[i]}, {i*(4*3456-1024)}, v{vOB[0]}')
    else:
        a.e(f's_mul_i32 s{sG0}, s{sZ}, 26\ns_lshl_b32 s{sT}, s{sC8}, 1\ns_add_u32 s{sG0}, s{sG0}, s{sT}\ns_add_u32 s{sG0}, s{sG0}, 12')
        a.e(f's_mul_i32 s{sDT}, s{sZ}, 6\ns_add_u32 s{sDT}, s{sDT}, s{sT}\ns_sub_u32 s{sDT}, s{sDT}, 12')
        a.e(f'v_and_b32 v{vT+3}, 1, v{vT+1}\nv_lshlrev_b32 v{vT+3}, 2, v{vT+3}\nv_xor_b32 v{vT+2}, v{vT+2}, v{vT+3}')
        a.e(f's_movk_i32 s{sT+6}, 3456\nv_mul_u32_u24 v{vT+3}, s{sT+6}, v{vT}\nv_lshl_add_u32 v{vOB[0]}, v{vT+2}, 4, v{vT+3}')
        a.e(f'v_add_u32 v{vOB[1]}, {8*3456-1024}, v{vOB[0]}')
    a.e(f's_lshl_b32 s{sBo}, s{sG0}, 6\ns_mul_i32 s{sT}, s{sW}, {16*3456}\ns_add_u32 s{sBo}, s{sBo}, s{sT}')
    a.e(f's_mul_i32 s{sMB}, s{sW}, {1024*t.nb}\ns_add_u32 s{sMB}, s{sMB}, {BBASE}')
    a.e(f's_lshl_b32 s{sT+1}, s{sG0}, 6\nv_and_b32 v{vT+6}, {16*t.nG-1}, v{vL}\nv_lshl_add_u32 v{vT+6}, v{vT+6}, 2, s{sT+1}')
    if t.nG == 4: run(a, roll_setup(t, opt('rn', 3)))
    stamp(a, 'p0')
    a.e('s_waitcnt lgkmcnt(0)')
    stamp(a, 'p1')

    a.vm(f'global_load_dword v{vT+7}, v{vT+6}, s[70:71]')
    a.e(f'v_bfe_u32 v{vT+5}, v{vL}, 0, 3\nv_mul_u32_u24 v{vT+5}, 0xa0, v{vT+5}')
    a.vm(f'global_load_dword v{vPF}, v{vT+5}, s[74:75]')
    a.e(mk_srd(SX, 66, 2048*1280)); a.e(mk_srd(SW1, 68, 640*3456))

def dma_ops(t, c, st):
    slot = c % 4
    ops = [f's_add_u32 m0, s{sMA}, {ARING + slot*16384}',
           f'buffer_load_dwordx4 v{vOA[0]}, {srd(SX)}, s{sA} offen {opt("ntx", "")} lds',
           f'buffer_load_dwordx4 v{vOA[1]}, {srd(SX)}, s{sA} offen offset:1024 {opt("ntx", "")} lds',
           f'buffer_load_dwordx4 v{vOA[0]}, {srd(SX)}, s{sA2} offen offset:2048 {opt("ntx", "")} lds',
           f'buffer_load_dwordx4 v{vOA[1]}, {srd(SX)}, s{sA2} offen offset:3072 {opt("ntx", "")} lds',
           f's_add_u32 m0, s{sMB}, {slot*t.bslot}\ns_add_u32 s{sA}, s{sA}, 128\ns_add_u32 s{sA2}, s{sA2}, 128']
    for i in range(t.nb):
        ops.append(f'buffer_load_dwordx4 v{vOB[i]}, {srd(SW1)}, s{sBo} offen offset:{1024*i} {opt("ntw", "")} lds')
    def last(a):
        st['dma'][c] = a.vm_issued
        a.e(f's_add_u32 s{sBo}, s{sBo}, {64*3456}')
    ops.append(last)
    return ops
def run(a, ops):
    for op in ops:
        if callable(op): op(a)
        else: a.e(op)

vAO = 128
vPK = 140; vSD = 160
sPo = 58; sPs = 62; sPf = 64; sSo = 60; sSs = 65
def aux_setup(a):
    q = 184
    a.e(f's_mul_i32 s{sT}, s{sZ}, 6\ns_add_u32 s{sT}, s{sT}, s{sC8}\ns_lshl_b32 s{sT}, s{sT}, 2\ns_add_u32 s{sT}, s{sT}, s{sW}')
    a.e(f's_mul_i32 s{sT+1}, s{sRB}, 27\ns_add_u32 s{sT+1}, s{sT+1}, s{sT}')
    a.e(f's_lshr_b32 s{sT+2}, s{sT+1}, 3\ns_and_b32 s{sT+3}, s{sT+1}, 7\ns_mul_i32 s{sPo}, s{sT+2}, 40960\ns_mul_i32 s{sT+5}, s{sT+3}, 160\ns_add_u32 s{sPo}, s{sPo}, s{sT+5}')
    a.e(f's_mul_i32 s{sPs}, s{sT+3}, 54\ns_add_u32 s{sPs}, s{sPs}, s{sT+2}\ns_mul_i32 s{sPs}, s{sPs}, 5120\ns_add_u32 s{sPs}, s{sPs}, {P_OFF}')
    a.e(f's_lshl_b32 s{sPf}, s{sT+1}, 7\ns_add_u32 s{sPf}, s{sPf}, {PF_OFF}')
    a.e(f's_cmp_lt_u32 s{sT}, 27\ns_cselect_b32 s{sT+4}, 0, {OOB}\ns_cselect_b32 s{sPo}, s{sPo}, 0')
    for i in range(5):
        a.e(f'v_add_u32 v{q}, {64*i}, v{vL}\nv_mul_u32_u24 v{q+1}, 0x667, v{q}\nv_lshrrev_b32 v{q+1}, 14, v{q+1}\nv_mul_u32_u24 v{q+1}, 0x460, v{q+1}')
        if i == 0: a.e(f'v_lshl_add_u32 v{vAO+9}, v{vL}, 4, s{sT+4}')
        a.e(f'v_add_u32 v{vAO+i}, v{vAO+9}, v{q+1}')
    a.e(f'v_add_u32 v{vAO+4}, 0x1000, v{vAO+4}')
    a.e(f's_sub_u32 s{sT}, s{sT}, 12\ns_cmp_lt_u32 s{sT}, 32\ns_cselect_b32 s{sT+4}, 0, {OOB}\ns_cselect_b32 s{sT}, s{sT}, 0')
    a.e(f's_bitcmp1_b32 s{sT}, 4\ns_cselect_b32 s{sT+2}, s{sAUXm}, s{sRB}')
    a.e(f's_bfe_u32 s{sT+3}, s{sT}, 0x10003\ns_lshl_b32 s{sT+3}, s{sT+3}, 5\ns_add_u32 s{sT+2}, s{sT+2}, s{sT+3}\ns_and_b32 s{sT+3}, s{sT}, 7\ns_lshl_b32 s{sT+3}, s{sT+3}, 8\ns_add_u32 s{sT+2}, s{sT+2}, s{sT+3}\ns_mul_i32 s{sSo}, s{sT+2}, 1280')
    a.e(f's_lshl_b32 s{sT+2}, s{sRB}, 5\ns_add_u32 s{sT+2}, s{sT+2}, s{sT}\ns_lshl_b32 s{sSs}, s{sT+2}, 6\ns_add_u32 s{sSs}, s{sSs}, {ST_OFF}')
    a.e(f'v_lshrrev_b32 v{q}, 4, v{vL}\ns_mov_b32 s{sT+5}, 81920\nv_mul_lo_u32 v{q+1}, s{sT+5}, v{q}\nv_and_b32 v{q+2}, 15, v{vL}\nv_lshlrev_b32 v{q+2}, 4, v{q+2}\nv_add3_u32 v{vAO+7}, v{q+2}, v{q+1}, s{sT+4}')
    a.e(f'v_lshl_add_u32 v{vAO+8}, v{q}, 4, s{sT+4}')
    a.e(f's_mul_i32 s{sAUXm}, s{sW}, 5120\ns_add_u32 s{sAUXm}, s{sAUXm}, {AUX}')
def aux_setup2(a):
    q = 184
    a.e(f'v_lshrrev_b32 v{q}, 5, v{vL}\nv_lshlrev_b32 v{q}, 4, v{q}\nv_bfe_u32 v{q+1}, v{vL}, 4, 1\nv_lshl_add_u32 v{q}, v{q+1}, 2, v{q}')
    a.e(f'v_bfe_u32 v{q+1}, v{vL}, 2, 2\nv_add_u32 v{q}, v{q}, v{q+1}\nv_mul_u32_u24 v{q}, 160, v{q}\nv_add_u32 v{q}, s{sAUXm}, v{q}')
    a.e(f'v_and_b32 v{q+1}, 3, v{vL}\nv_lshl_add_u32 v{vAO+5}, v{q+1}, 4, v{q}\nv_lshl_add_u32 v{vAO+6}, v{q+1}, 3, v{q}')

def unc_vm(text):
    def op(a): a.e(text); a.vm_issued -= 1
    return op
def unc_lg(text):
    def op(a): a.e(text); a.lg_issued -= 1
    return op
def pack_dma(st):
    o = []
    for i in range(5):
        def op(a, i=i):
            if i in (0, 4): a.e(f's_add_u32 m0, s{sAUXm}, {4096 if i else 0}')
            st['pk'] = a.vm(f'buffer_load_dwordx4 v{vAO+i}, {srd(SW2)}, s{sPo} offen offset:{(1024*i)%4096} {opt("ntp", "")} lds')
        o.append(op)
    return o
def pack_reads(st):
    o = [lambda a: a.wait(vm=st['pk'])]
    for ct in range(5):
        for h in range(2):
            t = (f'ds_read_b64_tr_b16 v[{vPK+4*ct+2*h}:{vPK+4*ct+2*h+1}], v{vAO+5} offset:{(ct>>1)*64+(ct&1)*8+h*1280}' if ct < 4 else
                 f'ds_read_b64_tr_b16 v[{vPK+4*ct+2*h}:{vPK+4*ct+2*h+1}], v{vAO+6} offset:{128+h*1280}')
            o.append(lambda a, t=t, ct=ct: st.__setitem__(('pr', ct), a.lg(t)))
    return o
def pack_stores(st):
    o = []
    for ct in range(5):
        def op(a, ct=ct):
            a.wait(lg=st[('pr', ct)])
            if ct == 4: a.e(f's_add_u32 s{sPs}, s{sPs}, 4096')
            st['ps'] = a.vm(f'buffer_store_dwordx4 v[{vPK+4*ct}:{vPK+4*ct+3}], v{vAO+9}, {srd(SWS)}, s{sPs} offen offset:{(1024*ct)%4096} sc1')
        o.append(op)
    return o
def aux_publish(st):
    g = 186
    def op(a):
        a.e(f'v_mov_b32 v{g+3}, s{sTAG}\ns_mov_b32 exec_lo, 0x00010001\ns_mov_b32 exec_hi, 0x00010001')
        a.vm(f'buffer_store_dwordx4 v[{g}:{g+3}], v{vAO+8}, {srd(SWS)}, s{sSs} offen sc1')
        a.wait(vm=st['ps'])
        a.e('s_mov_b64 exec, 1')
        a.vm(f'buffer_store_dword v{g+3}, v{vAO+9}, {srd(SWS)}, s{sPf} offen sc1')
        a.e('s_mov_b64 exec, -1'); stamp(a, 'pf')
    return op
def stats_loads(st):
    return [lambda a, i=i: st.__setitem__('sl', a.vm(f'buffer_load_dwordx4 v[{vSD+4*i}:{vSD+4*i+3}], v{vAO+7}, {srd(SX)}, s{sSo} offen offset:{256*i}')) for i in range(5)]
def stats_proc(st):
    q = 180; g = 186; d = vSD
    o = [lambda a: a.wait(vm=st['sl']), f's_mov_b32 s{sT}, 0xbf803f80']
    o += [f'v_mov_b32 v{q+k}, 0' for k in range(3)]
    o += [f'v_dot2c_f32_bf16 v{q}, s{sONES}, v{d+r}\nv_dot2c_f32_bf16 v{q+1}, v{d+r}, v{d+r}\nv_dot2c_f32_bf16 v{q+2}, s{sT}, v{d+r}' for r in range(20)]
    for sh in (8, 4, 2, 1):
        o += [f'v_add_f32_dpp v{q+k}, v{q+k}, v{q+k} row_ror:{sh} row_mask:0xf bank_mask:0xf' for k in range(3)]
    o += L(f'v_mul_f32 v{q}, {fhex(1/640)}, v{q}\nv_mul_f32 v{q+1}, {fhex(1/640)}, v{q+1}')
    o += L(f'v_fma_f32 v{q+1}, -v{q}, v{q}, v{q+1}\nv_max_f32 v{q+1}, 0, v{q+1}\nv_add_f32 v{q+1}, {fhex(1e-5)}, v{q+1}')
    o += L(f'v_rsq_f32 v{q+3}, v{q+1}\nv_sqrt_f32 v{g+1}, v{q+1}\nv_sub_f32 v{g}, 0, v{q}\nv_mul_f32 v{g+2}, v{q+2}, v{q+3}')
    return o

def nonce_pub(a):
    if opt('wsb', 0): a.e(f's_add_u32 s80, s80, {opt("wsb", 0) << 20}\ns_addc_u32 s81, s81, 0')
    a.e(mk_srd(SWS, 80, WS_END)); a.e(mk_srd(SOUT, 76, 2048*1280))
    a.e(f's_mov_b64 s[{sB1}:{sB1+1}], s[70:71]\ns_mov_b64 s[{sB2}:{sB2+1}], s[74:75]\ns_mov_b64 s[{sDBG}:{sDBG+1}], s[78:79]')
    ln = label('non')
    a.e(f's_or_b32 s{sT}, s2, s{sW}\ns_cmp_lg_u32 s{sT}, 0\ns_cbranch_scc1 {ln}')
    a.e(f's_memrealtime s[{sT+1}:{sT+2}]\ns_waitcnt lgkmcnt(0)\ns_or_b32 s{sT}, s{sT+1}, 1')
    a.e(f'v_mov_b32 v{vT}, 0\nv_mov_b32 v{vT+1}, s{sT}')
    a.e(f'global_store_dword v{vT}, v{vT+1}, s[{sDBG}:{sDBG+1}] sc1'); a.vm_issued -= 1
    a.e(f'{ln}:')

def setup2(a, t):
    a.e(f's_mov_b32 s{sONES}, 0x3f803f80')
    a.e(f's_sub_u32 s{sT+2}, 32, s{sRB}\ns_cmp_eq_u32 s{sRB}, 0\ns_cselect_b32 s{sT+2}, 16, s{sT+2}')
    a.e(f's_cmp_eq_u32 s{sZ}, 1\ns_cselect_b32 s{sT1}, s{sT+2}, s{sRB}\ns_mov_b32 s{sC}, s{sC8}')
    a.e(f's_mul_i32 s{sTAU}, s{sW}, 14\ns_cmp_eq_u32 s{sW}, 3\ns_cselect_b32 s{sTAU}, 41, s{sTAU}')
    a.e(f'v_and_b32 v{vT}, 31, v{vL}\nv_lshrrev_b32 v{vT+1}, 5, v{vL}')
    a.e(f'v_bfe_u32 v{vT+2}, v{vL}, 1, 3\nv_xor_b32 v{vT+2}, v{vT+2}, v{vT+1}')
    a.e(f'v_lshlrev_b32 v{vT+3}, 7, v{vT}\nv_add_u32 v{vT+3}, s{sMA}, v{vT+3}\nv_lshl_add_u32 v{vAR[0]}, v{vT+2}, 4, v{vT+3}')
    for s in range(1, 4): a.e(f'v_xor_b32 v{vAR[s]}, {s<<5}, v{vAR[0]}')
    a.e(f'v_bfe_u32 v{vT+4}, v{vL}, 2, 2\nv_lshl_add_u32 v{vT+2}, v{vT+1}, 3, v{vT+4}\nv_mul_u32_u24 v{vT+2}, {t.pitch}, v{vT+2}')
    a.e(f'v_bfe_u32 v{vT+3}, v{vL}, 4, 1\nv_lshl_add_u32 v{vT+2}, v{vT+3}, 5, v{vT+2}')
    a.e(f'v_and_b32 v{vT+3}, 3, v{vL}\nv_lshl_add_u32 v{vT+2}, v{vT+3}, 3, v{vT+2}\nv_add_u32 v{vT+2}, {BBASE}, v{vT+2}')
    if t.nG == 2: a.e(f'v_lshrrev_b32 v{vT+4}, 1, v{vT+4}')
    for i in range(t.nG):
        a.e(f's_add_u32 s{sT}, s{sW}, {i}\ns_and_b32 s{sT}, s{sT}, {t.nG-1}')
        a.e(f'v_xor_b32 v{vT+3}, s{sT}, v{vT+4}\nv_lshl_add_u32 v{vBR[i]}, v{vT+3}, 6, v{vT+2}')
        a.e(f's_mul_i32 s{sH[i]}, s{sROW}, 54\ns_add_u32 s{sH[i]}, s{sH[i]}, s{sG0}\ns_add_u32 s{sH[i]}, s{sH[i]}, s{sT}\ns_lshl_b32 s{sH[i]}, s{sH[i]}, 11')
    a.e(f's_lshl_b32 s{sFL}, s2, 2\ns_add_u32 s{sFL}, s{sFL}, s{sW}\ns_lshl_b32 s{sFL}, s{sFL}, 7\ns_add_u32 s{sFL}, s{sFL}, {F_OFF}')
    a.e(f'v_and_b32 v{vT}, 15, v{vL}\nv_bfe_u32 v{vT+1}, v{vL}, 4, 1\nv_mov_b32 v{vT+2}, s{sONES}\nv_cmp_eq_u32 vcc, v{vT}, v{vT+1}\nv_cndmask_b32 v{vT+2}, 0, v{vT+2}, vcc')
    for k in range(4): a.e(f'v_accvgpr_write_b32 a{192+k}, v{vT+2}')
    a.e(f'v_lshlrev_b32 v{vL16}, 4, v{vL}')
    a.e(f'v_lshlrev_b32 v{vHO}, 10, v{vT+1}\nv_lshrrev_b32 v{vT+1}, 5, v{vL}\nv_lshl_add_u32 v{vHO}, v{vT+1}, 8, v{vHO}\nv_lshl_add_u32 v{vHO}, v{vT}, 4, v{vHO}')

vSG = 244
def gen_D(a, t, tmp):
    q = tmp
    a.e(f'v_and_b32 v{q}, 31, v{vL}\nv_lshrrev_b32 v{q+1}, 5, v{vL}\nv_lshlrev_b32 v{q+1}, 3, v{q+1}\nv_and_b32 v{q+3}, 1, v{vL}')
    a.e(f'v_cmp_eq_u32 vcc, 0, v{q+3}\nv_cndmask_b32 v{q+2}, 0, 0.5, vcc\nv_cndmask_b32 v{vSG}, 1.0, -1.0, vcc')
    a.e(f's_mul_i32 s{sT+1}, s{sW}, {5*2048}\ns_add_u32 s{sT+1}, s{sT+1}, {t.DREG}\nv_add_u32 v{q+3}, s{sT+1}, v{vL16}')
    a.e(f's_lshl_b32 s{sT}, s{sDT}, 4\ns_add_u32 s{sT}, s{sT}, 1\nv_add_u32 v{q+4}, s{sT}, v{q}\nv_cvt_f32_u32 v{q+4}, v{q+4}\nv_mul_f32 v{q+4}, {fhex(1/640)}, v{q+4}')
    for k5 in range(5):
        a.e(f's_mul_i32 s{sT}, s{sW}, 5\ns_add_u32 s{sT}, s{sT}, {k5}\ns_and_b32 s{sT+2}, s{sT}, 1\ns_lshr_b32 s{sT}, s{sT}, 1\ns_lshl_b32 s{sT}, s{sT}, 5\ns_add_u32 s{sT}, s{sT}, s{sT+2}')
        o = q + 8
        a.e(f'v_add_u32 v{q+6}, s{sT}, v{q+1}\nv_cvt_f32_u32 v{q+6}, v{q+6}\nv_fma_f32 v{o}, v{q+6}, v{q+4}, v{q+2}')
        for i in range(1, 8): a.e(f'v_fmamk_f32 v{o+i}, v{q+4}, {fhex(float(16*(i>>2) + 2*(i&3)))}, v{o}')
        for i in range(8): a.e(f'v_cos_f32 v{o+8+i}, v{o+i}\nv_sin_f32 v{o+i}, v{o+i}')
        for ip in range(4): a.e(cvtpk(o+8+ip, o+8+2*ip, o+9+2*ip))
        a.lg(f'ds_write_b128 v{q+3}, v[{o+8}:{o+11}] offset:{(k5*2)*1024}')
        for ip in range(4): a.e(cvtpk(o+16+ip, o+2*ip, o+1+2*ip))
        a.lg(f'ds_write_b128 v{q+3}, v[{o+16}:{o+19}] offset:{(k5*2+1)*1024}')

import math
def bf16(x):
    u = struct.unpack('<I', struct.pack('<f', x))[0]
    return ((u + 0x7fff + ((u >> 16) & 1)) >> 16) & 0xffff
def F_table():
    w = []
    for fn in (math.cos, math.sin, lambda x: -math.sin(x)):
        for f in range(2):
            for l in range(64):
                t1 = l & 31; hi = l >> 5
                v = [bf16(round(fn(2*math.pi*((t1*(16*f + 8*(i >> 2) + 4*hi + (i & 3))) % 32)/32), 12)) for i in range(8)]
                w += [v[2*k] | (v[2*k+1] << 16) for k in range(4)]
    return w
def load_F():
    return [f'global_load_dwordx4 {aF(k)}, v{vL16}, s[82:83] offset:{1024*k}' for k in range(4)] + ['s_add_u32 s82, s82, 4096\ns_addc_u32 s83, s83, 0'] + [f'global_load_dwordx4 {aF(4+k)}, v{vL16}, s[82:83] offset:{1024*k}' for k in range(2)]

def rot_ids(a):
    for j in range(4):
        a.e(f's_add_u32 s{sT}, s{sW}, {1+j}\ns_and_b32 s{sT+1}, s{sT}, 1\ns_bfe_u32 s{sT}, s{sT}, 0x10001')
        a.e(f's_lshl_b32 s{sT}, s{sT}, 5\ns_add_u32 s{sT}, s{sT}, s{sT1}\ns_lshl_b32 s{sT+1}, s{sT+1}, 10\ns_add_u32 s{sHB[j]}, s{sT}, s{sT+1}')
def gen_TW(a, t, sT=sT):
    a.e(f'v_and_b32 v{t}, 15, v{vL}\nv_lshrrev_b32 v{t+1}, 4, v{vL}\ns_lshl_b32 s{sT}, s{sW}, 2\nv_add_u32 v{t+1}, s{sT}, v{t+1}')
    a.e(f'v_sub_u32 v{t+2}, 32, v{t+1}\nv_cmp_eq_u32 vcc, 0, v{t+1}\nv_cndmask_b32 v{t+2}, v{t+2}, 16, vcc')
    a.e(f's_mov_b32 s{sT+1}, 0x3a000000')
    a.e(f's_cmp_ge_u32 s{sC}, 4\ns_cselect_b32 s{sT+1}, s{sT+1}, 0xba000000')
    a.e(f'v_cvt_f32_u32 v{t+1}, v{t+1}\nv_cvt_f32_u32 v{t+2}, v{t+2}\nv_add_f32 v{t+3}, {fhex(32.0)}, v{t+1}\nv_add_f32 v{t+4}, {fhex(32.0)}, v{t+2}')
    s2r = [t+1, t+3, t+2, t+4]
    a.e(f'v_lshlrev_b32 v{t}, 6, v{t}')
    for j in range(4):
        a.e(f'v_add_u32 v{t+5}, s{sHB[j]}, v{t}\nv_cvt_f32_u32 v{t+5}, v{t+5}\nv_mul_f32 v{t+5}, s{sT+1}, v{t+5}')
        for w in range(4): a.e(f'v_mul_f32 v{t+6+w}, v{t+5}, v{s2r[w]}')
        for w in range(4): a.e(f'v_cos_f32 v{t+10+w}, v{t+6+w}\nv_sin_f32 v{t+6+w}, v{t+6+w}')
        for w in range(4): a.e(cvtpk(t+6+w, t+10+w, t+6+w))
        for w in range(4): a.e(f'v_accvgpr_write_b32 a{aTW+4*j+w}, v{t+6+w}')

def check_loop(a, load_text, vval, nl, cnt):
    ok, lp = label('ok'), label('lp')
    if nl < 64: a.e(f's_mov_b32 exec_lo, {hex(((1<<nl)-1)&0xffffffff)}\ns_mov_b32 exec_hi, {hex(((1<<nl)-1)>>32)}')
    a.e(f'v_cmp_ne_u32 vcc, s{sTAG}, v{vval}\ns_mov_b32 s{cnt}, 0\ns_cbranch_vccz {ok}')
    a.e(f'{lp}:\ns_sleep {opt("slp", 1)}')
    a.e(load_text); a.vm_issued -= 1
    a.e(f's_waitcnt vmcnt(0)\nv_cmp_ne_u32 vcc, s{sTAG}, v{vval}\ns_add_u32 s{cnt}, s{cnt}, 1\ns_cmp_gt_u32 s{cnt}, 100000\ns_cbranch_scc1 {ok}\ns_cbranch_vccnz {lp}')
    a.e(f'{ok}:')
    if nl < 64: a.e('s_mov_b64 exec, -1')

def nonce_check(a, tok):
    ok, lp = label('nok'), label('nlp')
    a.wait(vm=tok)
    a.e(f'v_readfirstlane_b32 s{sTAG}, v{vNON}\ns_mov_b32 s{sPC}, 0\ns_cmp_lg_u32 s{sTAG}, 0\ns_cbranch_scc1 {ok}')
    a.e(f'{lp}:\nv_mov_b32 v{vNON}, 0')
    a.e(f'global_load_dword v{vNON}, v{vNON}, s[{sDBG}:{sDBG+1}] sc1'); a.vm_issued -= 1
    a.e(f's_waitcnt vmcnt(0)\nv_readfirstlane_b32 s{sTAG}, v{vNON}\ns_add_u32 s{sPC}, s{sPC}, 1\ns_cmp_gt_u32 s{sPC}, 100000\ns_cbranch_scc1 {ok}')
    a.e(f's_cmp_eq_u32 s{sTAG}, 0\ns_cbranch_scc1 {lp}\n{ok}:')

SLOW = []
def adapt(a, text):
    return a.vm(text + ' sc1')
def set_flag_h(a, vt):
    a.e(f'v_mov_b32 v{vt}, 0\nv_mov_b32 v{vt+1}, s{sTAG}\ns_mov_b64 exec, 1')
    adapt(a, f'buffer_store_dword v{vt+1}, v{vt}, {srd(SWS)}, s{sFH} offen')
    a.e('s_mov_b64 exec, -1')
def set_flag(a, word, vt):
    a.e(f'v_mov_b32 v{vt}, {4*word}\nv_mov_b32 v{vt+1}, s{sTAG}\ns_mov_b64 exec, 1')
    a.vm(f'buffer_store_dword v{vt+1}, v{vt}, {srd(SWS)}, s{sFL} offen sc1')
    a.e('s_mov_b64 exec, -1')

def w2_load_ops(slot, st, cts=range(5)):
    ops = []
    for ct in cts:
        def op(a, ct=ct):
            vo = st['vL16d'] if slot == 13 else st.get('vW', vL16)
            need = 5120*slot + (4096 if ct == 4 else 0)
            if st.get('w2cur') != need: a.e(f's_add_u32 s{sW2o}, s{sUS}, {need}'); st['w2cur'] = need
            st['w2'][(slot, ct)] = a.vm(f'buffer_load_dwordx4 {W2(slot,ct)}, v{vo}, {srd(SWS)}, s{sW2o} offen offset:{(1024*ct)%4096} sc1')
        ops.append(op)
    return ops

vDS = 195
def P2(d, h): return f'v[{128+32*d+16*h}:{143+32*d+16*h}]'
def PE(p, par): b = 228 + 8*(p & 1) + 4*par; return b
def pass1(a, t, st):
    nG = t.nG; NK = 40 if nG == 4 else 42
    def dinfo(ks): return (ks & 1, (ks - 2) >> 1) if (nG == 2 and ks >= 2) else None
    def rdW(ks, i):
        c, s = divmod(ks, 4); o = []
        if i < nG:
            if ks >= 40: return []
            for h in range(2):
                o.append(lambda a, h=h: st['w'].__setitem__((ks, i), a.lg(f'ds_read_b64_tr_b16 {WB(ks&1,i,h)}, v{vBR[i]} offset:{(c%4)*t.bslot + s*16*t.pitch + h*4*t.pitch}')))
        elif dinfo(ks):
            d, p = dinfo(ks)
            o.append(lambda a: st['w'].__setitem__((ks, i), a.lg(f'ds_read_b128 {WB(ks&1,i)}, v{vDS} offset:{(((p%10)*2 + i-2)*2 + d)*1024}')))
        return o
    def rdA(c, s):
        return f'ds_read_b128 {X(4*c+s)}, v{vAR[s]} offset:{ARING + (c%4)*16384}'
    st['w'] = {}
    if nG == 2: a.e(f'v_add_u32 v{vDS}, {t.DREG}, v{vL16}\ns_mov_b32 s{sE+2}, 0x05040100\ns_mov_b32 s{sE+3}, 0x07060302')
    a.wait(vm=st['dma'][0], lg=a.lg_issued)
    a.e('s_barrier')
    stamp(a, 2)
    a.e(rdA(0, 0))
    for i in range(4): run(a, rdW(0, i))
    for s in range(1, 4): a.e(rdA(0, s))
    S = Sched(); first = {}
    for ks in range(NK):
        c, s = divmod(ks, 4); buf = ks & 1
        for i in range(4):
            pre = []
            if i == 0 and s == 3 and c < 9:
                pre.append(lambda a, c=c: (a.wait(vm=st['dma'][c+1]), a.e('s_barrier')))
            if i in (0, 2):
                pre.append(lambda a, ks=ks, i=i: a.wait(lg=st['w'][(ks, i+1)]) if (ks, i+1) in st['w'] else None)
            m = None
            if i < nG:
                if ks < 40: m = f'v_mfma_f32_32x32x16_bf16 {ACC1(i)}, {WB(buf,i)}, {X(ks)}, {"0" if ks == 0 else ACC1(i)}'
            elif dinfo(ks):
                d, p = dinfo(ks); b = PE(p, i-2)
                m = f'v_mfma_f32_32x32x16_bf16 {P2(d, i-2)}, v[{b}:{b+3}], {WB(buf,i)}, {"0" if p == 0 else P2(d, i-2)}'
            idx = S.add(m, pre)
            if i == 0: first[ks] = idx
            if i == 0 and ks < 37: S.put(idx, [f'v_mfma_f32_16x16x32_bf16 {aCS}, {aSEL}, {WB(buf,0)}, {"0" if ks == 0 else aCS}'])
        if ks < NK - 1:
            rd = [rdA(c+1, 0)] if (s == 3 and c < 9) else []
            k = len(rd)
            for i in range(4): rd += rdW(ks+1, i)
            if nG == 4: S.put(first[ks], rd[:k+3]); S.put(first[ks]+1, rd[k+3:7]); S.put(first[ks]+2, rd[7:])
            else: S.put(first[ks], rd[:k+3]); S.put(first[ks]+1, rd[k+3:])
            if s == 3 and c < 9: S.put(first[ks]+3, [rdA(c+1, 1)])
            if s == 0 and 0 < c < 10: S.put(first[ks]+3, [rdA(c, 2), rdA(c, 3)])
        if nG == 2 and ks & 1 and ks < 40:
            p = ks >> 1; xa = 196 + 4*((ks-1) % 8); xb = 196 + 4*(ks % 8)
            pm = []
            for par in range(2):
                for k, src in enumerate((xa, xa+2, xb, xb+2)): pm.append(f'v_perm_b32 v{PE(p,par)+k}, v{src+1}, v{src}, s{sE+2+par}')
            S.put(first[ks]+2, pm[:4]); S.put(first[ks]+3, pm[4:])
    if nG == 2:
        for d in range(2): S.spread([f'v_mul_f32 v{128+32*d+k}, v{vSG}, v{128+32*d+k}' for k in range(32)], first[21+d]+1, first[22+d]+1)
    exb = 160 if nG == 4 else 84
    ex = []
    for n in range(3):
        for h in range(2):
            ex.append(lambda a, n=n, h=h: st.__setitem__('ex', a.lg(f'ds_read_b64_tr_b16 v[{exb+4*n+2*h}:{exb+1+4*n+2*h}], v{vBR[0]} offset:{(9%4)*t.bslot + (n+1)*16*t.pitch + h*4*t.pitch}')))
    mm = [lambda a: a.wait(lg=st['ex'])] + [f'v_mfma_f32_16x16x32_bf16 {aCS}, {aSEL}, v[{exb+4*n}:{exb+3+4*n}], {aCS}' for n in range(3)]
    S.put(first[35]+3, ex[:3]); S.put(first[36]+3, ex[3:]); S.put(first[37], mm); st['cs_slot'] = first[37] + 3; st['bar_slot'] = first[38] + 2
    gaps = []
    for ks in range(40):
        gaps += [(ks, first[ks]), (ks, first[ks]+2)] + ([(ks, first[ks]+3)] if ks < opt('ncu', 6) else [])
    gi = 0
    for c in range(st['next_chunk'], 10):
        ops = dma_ops(t, c, st)
        A = ops[1:5]; B = ops[6:-1]
        eA = (c-3)*4 if c >= 4 else 0
        eB = (c-2)*4 - 1 if c >= 4 else 0
        lo = max(0, (c - opt('la', 2) - 1)*4 + 1)
        for k, op in enumerate(A + B):
            e = max(eA if k < 4 else eB, lo)
            while gaps[gi][0] < e: gi += 1
            pre = [ops[0]] if k == 0 else ([ops[5]] if k == 4 else [])
            post = [ops[-1]] if k == 3 + len(B) else []
            g = gaps[gi][1]
            if pre: S.put(g - 1 if g > 0 else g, pre)
            if k == 0: st.setdefault('grp', {})[c] = (g - 1 if g > 0 else g, pre[0], gaps[gi][0])
            S.put(g, [op] + post); gi += 1
        assert gaps[gi-1][0] < c*4 - 1, (c, gaps[gi-1])
    return S, first

AUGW = None
def h_aug_x(tmp):
    p, q2 = tmp+4, tmp+5
    o = [cvtpk(p, vNM, vSDV), f'v_lshlrev_b32 v{tmp+6}, 16, v{p}', f'v_and_b32 v{tmp+7}, 0xffff0000, v{p}',
         f'v_sub_f32 v{tmp+6}, v{vNM}, v{tmp+6}', f'v_sub_f32 v{tmp+7}, v{vSDV}, v{tmp+7}', cvtpk(q2, tmp+6, tmp+7)]
    o += [f'v_mov_b32 v{tmp+k}, 0' for k in range(4)]
    o += [f's_mov_b32 s{sT+3}, 0x05040100\ns_mov_b32 exec_hi, 0\nv_perm_b32 v{tmp}, v{q2}, v{p}, s{sT+3}\nv_mov_b32 v{tmp+1}, v{p}\nv_lshrrev_b32 v{tmp+2}, 16, v{q2}\ns_mov_b32 exec_hi, -1']
    return o
def h_aug_w(st, i, tmp, vtb):
    b = AUGW[i]
    rd = [lambda a: st['tb'].__setitem__(i, a.lg(f'ds_read2_b32 v[{b+4}:{b+5}], v{vtb} offset0:0 offset1:128'))]
    mk = [lambda a: a.wait(lg=st['tb'][i]), cvtpk(b, b+4, b+4), cvtpk(b+2, b+5, b+5), f'v_and_b32 v{b+1}, 0xffff0000, v{b}', f'v_mov_b32 v{b+3}, 0',
          f'v_sub_f32 v{b+1}, v{b+4}, v{b+1}', cvtpk(b+1, b+1, b+5)]
    mf = [f'v_mfma_f32_32x32x16_bf16 {ACC1(i)}, v[{b}:{b+3}], v[{tmp}:{tmp+3}], {ACC1(i)}']
    return rd, mk, mf
def h_fin(st, i, u):
    acc = 32 + 16*i + 8*u; o = []
    for k in range(8): o.append(f'v_max_f32 v{acc+k}, 0, v{acc+k}')
    for k in range(8): o.append(f'v_mul_f32 v{acc+k}, v{vR}, v{acc+k}')
    for k in range(8): o.append(f'v_mul_f32 v{acc+k}, v{acc+k}, v{acc+k}')
    for k in range(4): o.append(cvtpk(acc+k, acc+2*k, acc+2*k+1))
    if opt('nohst', 0): o.append(lambda a: st.__setitem__('hst', a.vm_issued))
    else: o.append(lambda a: st.__setitem__('hst', adapt(a, f'buffer_store_dwordx4 v[{acc}:{acc+3}], v{vHO}, {srd(SWS)}, s{sH[i]} offen offset:{512*u}')))
    return o

class Rec:
    def __init__(self): self.ops = []; self.tok = {}
    def e(self, text):
        ls = L(text); i = 0
        while i < len(ls):
            j = i + 1
            if ls[i].startswith('s_cmp') or ls[i].startswith('s_bitcmp') or ls[i].startswith('v_cmp'):
                while j < len(ls) and not (ls[j].startswith('s_cselect') or ls[j].startswith('s_cbranch') or ls[j].startswith('v_cndmask')): j += 1
                while j < len(ls) and (ls[j].startswith('s_cselect') or ls[j].startswith('s_cbranch') or ls[j].startswith('v_cndmask')): j += 1
            self.ops.append('\n'.join(ls[i:j])); i = j
    def lg(self, text): self.ops.append(text)
    def vm(self, text, key='t'):
        self.ops.append(lambda a: self.tok.__setitem__(key, a.vm(text)))
def merge(main, other):
    out = []; n, m = len(main), len(other); k = 0
    for i, op in enumerate(main):
        out.append(op)
        while k < m and (k + 1) * n <= (i + 1) * m + m - 1 and k * n <= i * m: out.append(other[k]); k += 1
    return out + other[k:]

def touch_ops(t, lo, hi, q=188):
    n = hi - lo
    o = [f'v_mov_b32 v{q+2}, {OOB}']
    o += L(f'v_and_b32 v{q}, 3, v{vL}\ns_lshl_b32 s{sPC}, s{sC8}, 2\nv_add_u32 v{q}, s{sPC}, v{q}\nv_mul_u32_u24 v{q}, 640, v{q}\nv_lshrrev_b32 v{q+1}, 2, v{vL}\nv_add3_u32 v{q}, v{q}, v{q+1}, {lo}\nv_lshlrev_b32 v{q}, 7, v{q}')
    o += [f'v_cmp_gt_u32 vcc, {4*n}, v{vL}\nv_cndmask_b32 v{q}, v{q+2}, v{q}, vcc', f's_mul_i32 s{sPC}, s{sROW}, 1280']
    o += [f'buffer_load_dword v{vPF}, v{q}, {srd(SX)}, s{sPC} offen {opt("ntx", "")}']
    if t.nG == 4: o += L(f'v_lshrrev_b32 v{q}, 1, v{vL}\nv_and_b32 v{q+1}, 1, v{vL}')
    else: o += L(f'v_mov_b32 v{q}, v{vL}\nv_mov_b32 v{q+1}, 0')
    o += L(f'v_lshlrev_b32 v{q}, 4, v{q}\ns_and_b32 s{sPC}, s{sRB}, 3\ns_lshl_b32 s{sPC}, s{sPC}, 2\ns_add_u32 s{sPC}, s{sPC}, s{sW}\ns_add_u32 s{sPC}, s{sPC}, {64*lo}')
    o += L(f'v_add_u32 v{q}, s{sPC}, v{q}\nv_mul_u32_u24 v{q}, 0xd80, v{q}\nv_lshl_add_u32 v{q}, v{q+1}, 7, v{q}\ns_lshl_b32 s{sPC}, s{sG0}, 6')
    o += [f'v_cmp_gt_u32 vcc, {(8 if t.nG == 4 else 4)*n}, v{vL}\nv_cndmask_b32 v{q}, v{q+2}, v{q}, vcc']
    o += [f'buffer_load_dword v{vPF}, v{q}, {srd(SW1)}, s{sPC} offen {opt("ntw", "")}']
    assert n <= 8
    return o

vTX, vTW = 193, 194; sTX, sTW = 52, 63
def roll_setup(t, n):
    q = 188
    o = L(f'v_mov_b32 v{q+2}, {OOB}\nv_and_b32 v{q+3}, 3, v{vL}\nv_lshrrev_b32 v{q+1}, 2, v{vL}\ns_mul_i32 s{sPC}, s{sZ}, 6\ns_add_u32 s{sPC}, s{sPC}, s{sC8}\ns_mul_i32 s{sPC}, s{sPC}, 3')
    o += L(f'v_add_u32 v{q}, s{sPC}, v{q+3}\nv_min_u32 v{q}, 31, v{q}\nv_mul_u32_u24 v{q}, 640, v{q}\nv_add_lshl_u32 v{q}, v{q}, v{q+1}, 7')
    o += [f'v_cmp_gt_u32 vcc, {4*n}, v{vL}\nv_cndmask_b32 v{q}, v{q+2}, v{q}, vcc', f'v_cmp_gt_u32 vcc, 3, v{q+3}\nv_cndmask_b32 v{vTX}, v{q+2}, v{q}, vcc', f's_mul_i32 s{sTX}, s{sROW}, 1280']
    o += L(f's_mul_i32 s{sTW}, s{sZ}, 12\ns_add_u32 s{sTW}, s{sTW}, s{sC8}\ns_add_u32 s{sTW}, s{sTW}, 12\ns_lshl_b32 s{sTW}, s{sTW}, 7\ns_add_u32 s{sPC}, s{sZ}, 2')
    o += [f's_cmp_lt_u32 s{sC8}, s{sPC}\ns_cselect_b32 s{sTW}, s{sTW}, {OOB}', f'v_mov_b32 v{q}, s{sTW}', f's_lshl_b32 s{sPC}, s{sG0}, 6', f'v_lshl_add_u32 v{vTW}, v{q+3}, 7, s{sPC}']
    o += [f'v_cmp_eq_u32 vcc, 2, v{q+3}\nv_cndmask_b32 v{vTW}, v{vTW}, v{q}, vcc', f'v_cmp_eq_u32 vcc, 3, v{q+3}\nv_cndmask_b32 v{vTW}, v{vTW}, v{q+2}, vcc']
    o += L(f's_lshl_b32 s{sPC}, s{sRB}, 2\ns_add_u32 s{sPC}, s{sPC}, s{sW}\nv_lshl_add_u32 v{q}, v{q+1}, 6, s{sPC}\nv_mul_u32_u24 v{q}, 0xd80, v{q}\nv_add_u32 v{vTW}, v{vTW}, v{q}')
    o += [f'v_cmp_gt_u32 vcc, {4*n}, v{vL}\nv_cndmask_b32 v{vTW}, v{q+2}, v{vTW}, vcc', f's_mov_b32 s{sTW}, 0']
    return o
def roll(st, lo):
    def op1(a):
        d = lo - st.get('roll', 0); st['roll'] = lo
        if d: a.e(f's_add_u32 s{sTX}, s{sTX}, {128*d}\ns_add_u32 s{sTW}, s{sTW}, {64*3456*d}')
        a.vm(f'buffer_load_dword v{vPF}, v{vTX}, {srd(SX)}, s{sTX} offen {opt("ntx", "")}')
    return [op1, f'buffer_load_dword v{vPF}, v{vTW}, {srd(SW1)}, s{sTW} offen {opt("ntw", "")}']

def build_type(a, t):
    st = {'dma': {}, 'w2': {}, 'tb': {}}
    nG, nD = t.nG, t.nD
    XV[0] = (nG == 2)
    rs = [x.split('@') for x in opt('rs', '1@s0,4@s1,7@s2').split(',') if x]
    at = lambda p: [o for c_, p_ in rs if p_ == p for o in roll(st, int(c_))]
    prologue_t(a, t, st)
    if nG == 4: run(a, at('s0'))
    run(a, dma_ops(t, 0, st))
    stamp(a, 'p2')
    a.e(mk_srd(SW2, 72, 1728*1280))
    nonce_pub(a)
    if opt('tlb', 21):
        sh = opt('tlb', 21)
        a.e(f'v_lshl_add_u32 v{vT}, v{vL}, 2, s{sW}\nv_lshlrev_b32 v{vT}, {sh}, v{vT}\ns_mov_b64 exec, {hex((1 << opt("tn", 2)) - 1)}')
        a.vm(f'buffer_load_dword v{vPF}, v{vT}, {srd(SWS)}, 0 offen sc1')
        a.e('s_mov_b64 exec, 3')
        a.vm(f'buffer_load_dword v{vPF}, v{vT}, {srd(SOUT)}, 0 offen sc1')
        a.e('s_mov_b64 exec, -1')
    stamp(a, 'p3')
    r = Rec()
    setup2(r, t)
    if nG == 4: aux_setup(r); aux_setup2(r)
    if nG == 2: gen_D(r, t, 96)
    rot_ids(r)
    if opt('twR', 0) if nG == 4 else opt('twS', 0): gen_TW(r, 96)
    main = r.ops
    vSA, vFA, vFV = vT+3, vT+4, vT+5
    st['vL16d'] = 192
    pre = L(f's_lshl_b32 s{sT}, s{sRB}, 2\ns_add_u32 s{sT}, s{sT}, s{sW}\ns_lshl_b32 s{sT}, s{sT}, 9\ns_add_u32 s{sT}, s{sT}, {ST_OFF}')
    pre += L(f'v_and_b32 v{vSA}, 31, v{vL}\nv_lshl_add_u32 v{vSA}, v{vSA}, 4, s{sT}')
    pre += L(f'v_add_u32 v{vFA}, s{sTAU}, v{vL}\nv_min_u32 v{vFA}, 53, v{vFA}')
    pre += L(f's_lshl_b32 s{sT}, s{sC}, 7\ns_add_u32 s{sT}, s{sT}, {PF_OFF}\nv_lshlrev_b32 v{vFA}, 10, v{vFA}\nv_add_u32 v{vFA}, s{sT}, v{vFA}')
    pre += L(f's_mul_i32 s{sUS}, s{sC}, 54\ns_add_u32 s{sUS}, s{sUS}, s{sTAU}\ns_mul_i32 s{sUS}, s{sUS}, 5120\ns_add_u32 s{sUS}, s{sUS}, {P_OFF}')
    pre += [f's_cmp_ge_u32 s{sW}, 2\ns_cselect_b32 s{sT}, {OOB}, 0', f'v_add_u32 v192, s{sT}, v{vL16}']
    vTB = [4, 5, 6, 7] if nG == 4 else [14, 15]; vRT = 3
    prep = L(f's_lshl_b32 s{sE+1}, s{sW}, 7\ns_add_u32 s{sE+1}, s{sE+1}, {TABR}\nv_and_b32 v{vT+6}, 31, v{vL}\nv_lshl_add_u32 v{vRT}, v{vT+6}, 2, s{sE+1}')
    for i in range(nG):
        prep += L(f's_add_u32 s{sE}, s{sW}, {i}\ns_and_b32 s{sE}, s{sE}, {nG-1}\ns_lshl_b32 s{sE}, s{sE}, 7\ns_add_u32 s{sE}, s{sE}, {TABC}\nv_lshl_add_u32 v{vTB[i]}, v{vT+6}, 2, s{sE}')
    prep += [f'v_lshrrev_b32 v{vT+6}, 5, v{vL}']
    nonl = [f'v_mov_b32 v{vNON}, 0', lambda a: st.__setitem__('non', a.vm(f'global_load_dword v{vNON}, v{vNON}, s[{sDBG}:{sDBG+1}] sc1'))]
    st['next_chunk'] = 2
    main = main + pre
    if nG == 4:
        n = len(main); c2 = n * opt('c2', 40) // 100; c3 = n * opt('c3', 50) // 100
        run(a, at('s1') + main[:c2] + at('s2') + main[c2:c3]); stamp(a, 'p4')
        run(a, merge(main[c3:], dma_ops(t, 1, st)) + nonl)
        sp = stats_proc(st); ps = pack_stores(st)
    else:
        n = len(main); c3 = n * opt('s3', 30) // 100
        run(a, main[:c3]); stamp(a, 'p4')
        run(a, merge(main[c3:], dma_ops(t, 1, st)) + nonl)
        tw2 = L(f's_mul_i32 s{sT}, s{sRB}, 10\ns_add_u32 s{sT}, s{sT}, s{sDT}\ns_lshl_b32 s{sT}, s{sT}, 1\ns_add_u32 s{sT}, s{sT}, s{sW}\ns_mul_i32 s{sT}, s{sT}, {54*128}\nv_lshlrev_b32 v64, 7, v{vL}')
        tw2 += [f's_mov_b32 exec_hi, 0x3fffff\nbuffer_load_dword v{vPF}, v64, {srd(SW2)}, s{sT} offen\ns_mov_b32 exec_hi, -1']
        if opt('tw2', 2) == 0: run(a, tw2)
    stamp(a, 1)
    S, first = pass1(a, t, st)
    NS = 4
    l = lambda ks: first[ks] + 3
    b1tab = L(f'v_lshlrev_b32 v{vT}, 16, v{vT+7}\nv_and_b32 v{vT+1}, 0xffff0000, v{vT+7}\nv_lshlrev_b32 v{vT+2}, 3, v{vL}\nv_add_u32 v{vT+2}, {TABB}, v{vT+2}\nds_write_b64 v{vT+2}, v[{vT}:{vT+1}]')
    S.spread(b1tab, first[3], l(3))
    S.put(l(opt('kn', 11)), [lambda a: nonce_check(a, st['non'])])
    if nG == 2 and opt('tw2', 2) > 0: S.put(l(opt('tw2', 2)), [lambda a: run(a, tw2)])
    if nG == 4:
        g_ = st['grp'][opt('ag', 3)]
        fl = S.slots[g_[0]]['fill']; fl.insert(fl.index(g_[1]), lambda a: run(a, pack_dma(st)))
        ka_ = g_[2]
        for k_, op_ in enumerate(stats_loads(st)): S.put(first[ka_ + k_] + 1, [op_])
        kb_ = opt('kb', 6)
        S.spread(pack_reads(st), first[kb_], l(kb_+1))
        if opt('dn', 1):
            S.put(first[kb_+1] + 3, [ps[0]])
            for k_, op_ in enumerate(ps[1:]): S.put(first[kb_+2+k_//2] + 1 + 2*(k_ & 1), [op_])
            e_ = kb_ + 4
        else:
            for k_, op_ in enumerate(ps): S.put(first[kb_+2+k_] + 1, [op_])
            e_ = kb_ + 6
        S.put(l(kb_+2), sp[:5] + [lambda a: run(a, sp[5:25])]); S.spread(sp[25:], first[kb_+3], l(e_))
        assert opt('kf', kb_ + 5) >= e_ and opt('kf', kb_ + 5) >= opt('kn', 11)
        S.put(l(opt('kf', kb_ + 5)), [aux_publish(st)])
        for c_, p_ in rs:
            if p_[0] != 's': S.put(l(int(p_)), roll(st, int(c_)))
    pfl = f'buffer_load_dword v{vFV}, v{vFA}, {srd(SWS)}, 0 offen sc1'
    stl = f'buffer_load_dwordx4 v[{vST}:{vST+3}], v{vSA}, {srd(SWS)}, 0 offen sc1'
    if nG == 2: S.spread(load_F(), l(13), l(16))
    sf = '' if nG == 4 else 'S'
    kq = opt('kq' + sf, 27 if nG == 4 else 30); kp = kq - 3
    early = opt('early', 1)
    S.put(l(opt('ks', 31)), [lambda a: st.__setitem__('stl', a.vm(stl))])
    S.put(l(kp if early else 38), [lambda a: st.__setitem__('pfl', a.vm(pfl))])
    pchk = lambda a: (a.wait(vm=st['pfl']), check_loop(a, pfl, vFV, 14, sPC), stamp(a, 'pc'))
    S.put(l(kq), [pchk if early else (lambda a: a.wait(vm=st['stl']))])
    allw = []
    for s_ in (range(14) if nG == 4 else list(range(3, 14)) + [0, 1, 2]): allw += w2_load_ops(s_, st)
    st['twq'] = []
    if opt('touchw', 0):
        nl_ = opt('tl', 16)
        tw = L(f's_bfe_u32 s{sT}, s2, 0x20003\nv_lshl_add_u32 v{vFA}, v{vL}, 2, s{sT}\nv_lshlrev_b32 v{vFA}, 7, v{vFA}\ns_mov_b32 s{sTX}, s{sUS}')
        S.put(l(kq), tw)
        nb_ = -(-130 // nl_)
        for j in range(nb_):
            n_ = min(nl_, 130 - j*nl_)
            op = f's_mov_b64 exec, {hex((1 << n_) - 1)}\nbuffer_load_dword v{vPF}, v{vFA}, {srd(SWS)}, s{sTX} offen sc1\ns_mov_b64 exec, -1\ns_add_u32 s{sTX}, s{sTX}, {nl_*512}'
            k_ = kq + 1 + opt('tstep', 3)*j
            if k_ < 40: S.put(first[k_] + 1, [op])
            else: st['twq'].append(op)
    n0 = 0
    kA, kB = kq + 1, opt('kB' + sf, 31)
    for ks in range(kA, 40):
        pos_ = [first[ks] + 1] if ks < kB else sorted([first[ks], first[ks] + NS - 2, first[ks] + 1][:opt('ne' + sf, 3)])
        if ks < kB and (ks - kA) % opt('kAs' + sf, 2 if nG == 4 else 1): pos_ = []
        for p_ in pos_: S.put(p_, [allw[n0]]); n0 += 1
    assert n0 <= (60 if nG == 4 else 44 - opt('naS', 6) - opt('dr1', 0))
    global AUGW
    tmp = 172 if nG == 4 else 64
    AUGW = [160, 166, 96, 102] if nG == 4 else [72, 78]
    e1 = [lambda a: (a.wait(vm=st['stl']), check_loop(a, stl, vST+3, 64, sPC))]
    e1 += [f'v_rcp_f32 v{vR}, v{vSDV}']
    if nG == 2: e1 += [f's_nop 0\nds_write2st64_b32 v{vRT}, v{vR}, v{vAL} offset0:0 offset1:2']
    e1 += h_aug_x(tmp)
    S.spread(prep, first[31], l(33)); S.spread(e1, first[34], l(36))
    e2 = L(f'v_accvgpr_read_b32 v{vT}, a196\nv_accvgpr_read_b32 v{vT+1}, a197')
    e2 += [f's_mov_b64 exec, 0xffff\nds_write2_b32 v{vTB[0]}, v{vT}, v{vT+1} offset0:0 offset1:16\ns_mov_b64 exec, -1', lambda a: st.__setitem__('csw', a.lg_issued)]
    S.put(st['cs_slot'], e2)
    S.slots[st['bar_slot']]['pre'].append(lambda a: (a.wait(lg=st['csw']), a.e('s_barrier')))
    aw = [h_aug_w(st, i, tmp, vTB[i]) for i in range(nG)]
    S.put(st['bar_slot'], [x for i in range(nG) for x in aw[i][0]])
    S.spread([x for i in range(nG) for x in aw[i][1]], min(st['bar_slot'] + 2, l(39)), l(39))
    for ks in range(40): S.slots[first[ks]]['pre'].insert(0, lambda a, ks=ks: stamp(a, f'k{ks}'))
    if nG == 2: S.put(first[40], aw[0][2] + aw[1][2])
    S.emit(a)
    if nG == 4:
        for i in range(nG): run(a, aw[i][2])
    stamp(a, 3)
    n1 = n0
    later = allw[n1:]
    ufirst = nG == 2 and opt('ufS', 0)
    def hflag(a):
        a.wait(vm=st['hst']); a.e(f's_add_u32 s{sFH}, s{sFL}, {HF_OFF - F_OFF}'); set_flag_h(a, 193); stamp(a, 'hf')
        if opt('th', 0):
            a.e(f's_mul_i32 s{sFH}, s{sROW}, 54\ns_add_u32 s{sFH}, s{sFH}, s{sG0}\ns_lshl_b32 s{sFH}, s{sFH}, 11\nv_lshlrev_b32 v193, 3, v{vL16}')
            if nG == 2: a.e('s_mov_b32 exec_hi, 0')
            a.vm(f'buffer_load_dword v194, v193, {srd(SWS)}, s{sFH} offen sc1')
            if nG == 2: a.e('s_mov_b32 exec_hi, -1')
    def uflag(a):
        a.wait(vm=st['ust']); set_flag(a, 1, 193); stamp(a, 'uf')
    def do_U():
        rr = 96
        a.e(f'v_lshl_add_u32 v{vT}, v{vT+6}, 4, s{sE+1}')
        for jq in range(4): rt_ = a.lg(f'ds_read_b128 v[{rr+4*jq}:{rr+4*jq+3}], v{vT} offset:{32*jq}')
        vXW, vXR_, vUS = vT+2, vT+3, vT+4
        a.e(f'v_and_b32 v{vT+1}, 31, v{vL}\nv_lshlrev_b32 v{vT+5}, 2, v{vT+1}\nv_lshl_add_u32 v{vXW}, v{vT+6}, 9, v{vT+5}\ns_lshl_b32 s{sE}, s{sW}, 12\nv_add_u32 v{vXW}, s{sE}, v{vXW}')
        a.e(f's_lshl_b32 s{sE}, s{sW}, 10\nv_lshl_add_u32 v{vXR_}, v{vL}, 2, s{sE}')
        a.e(f's_mov_b32 s{sE}, 81920\nv_mul_lo_u32 v{vT+5}, s{sE}, v{vT+6}\nv_lshl_add_u32 v{vUS}, v{vT+1}, 4, v{vT+5}')
        budget = [opt('dr1', 0)]
        def drip():
            if budget[0] > 0 and len(later) > 15: later.pop(0)(a); budget[0] -= 1
        a.wait(lg=rt_)
        for d in range(2):
            E, O = 128 + 32*d, 144 + 32*d
            for j in range(16):
                if j % 8 == 4: drip()
                tq = 228 + (j & 3)
                x, y = (E+j, O+j) if d == 0 else (O+j, E+j)
                a.e(f'v_add_f32 v{tq}, v{E+j}, v{O+j}\nv_sub_f32 v{O+j}, v{x}, v{y}\nv_mul_f32 v{E+j}, v{rr+j}, v{tq}\nv_mul_f32 v{O+j}, v{rr+j}, v{O+j}')
            for j in range(8): a.e(cvtpk(E+j, E+2*j, E+2*j+1))
        DR = [(64, 80), (196, 212)]
        def step2(part):
            c0 = 128 + 16*part; s0 = 160 + 16*part; UR, UV = DR[part]
            UR = f'v[{UR}:{UR+15}]'; UV = f'v[{UV}:{UV+15}]'
            G = lambda b, f: f'v[{b+4*f}:{b+4*f+3}]'
            for k, (A1, A2, B) in enumerate(((0, 2, G(c0,0)), (1, 3, G(c0,1)), (4, 0, G(s0,0)), (5, 1, G(s0,1)))):
                a.e(f'v_mfma_f32_32x32x16_bf16 {UR}, {aF(A1)}, {B}, {"0" if k == 0 else UR}')
                a.e(f'v_mfma_f32_32x32x16_bf16 {UV}, {aF(A2)}, {B}, {"0" if k == 0 else UV}')
        def comb(part):
            UR, UV = DR[part]
            for j in range(16):
                a.e(cvtpk(UR+j, UR+j, UV+j))
                a.lg(f'ds_write_b32 v{vXW}, v{UR+j} offset:{XCH + part*16384 + (8*(j>>2)+(j&3))*128}')
                if j % opt('dre', 3) == 0: drip()
        stamp(a, 'u0')
        step2(0)
        ls = label('spec')
        a.e(f's_cmp_lg_u32 s{sDT}, 8\ns_cbranch_scc1 {ls}')
        for jq in range(4): a.e(f'ds_read_b128 v[{232+4*jq}:{235+4*jq}], v{vT} offset:{512+32*jq}')
        a.lg_issued -= 4
        a.e('s_waitcnt lgkmcnt(0)\ns_mov_b32 exec_lo, 0x80000000\ns_mov_b32 exec_hi, 0x80000000')
        for j in range(16): a.e(f'v_mov_b32 v{144+j}, v{232+j}\nv_mov_b32 v{176+j}, 0')
        a.e(f's_mov_b64 exec, -1\n{ls}:')
        for O in (144, 176):
            for j in range(8): a.e(cvtpk(O+j, O+2*j, O+2*j+1))
        hp_ = opt('hpS', 0)
        if not ufirst and hp_ == 0: hflag(a)
        step2(1); budget[0] = opt('dr2', 0); drip(); drip(); comb(0)
        if not ufirst and hp_ == 1: hflag(a)
        comb(1)
        stamp(a, 'u1')
        a.wait(lg=a.lg_issued); a.e('s_barrier')
        stamp(a, 'u2')
        toks = []
        for part in range(2):
            for i in range(4):
                b = 128 + 16*part + 4*i
                a.lg(f'ds_read2st64_b32 v[{b}:{b+1}], v{vXR_} offset0:{64*part+i} offset1:{64*part+16+i}')
                toks.append(a.lg(f'ds_read2st64_b32 v[{b+2}:{b+3}], v{vXR_} offset0:{64*part+32+i} offset1:{64*part+48+i}'))
        a.e(f's_lshl_b32 s{sE}, s{sW}, 7\ns_add_u32 s{sE}, s{sE}, s{sRB}\ns_mul_i32 s{sE}, s{sE}, 5120\ns_lshl_b32 s{sE+1}, s{sDT}, 8\ns_add_u32 s{sE}, s{sE}, s{sE+1}\ns_add_u32 s{sE}, s{sE}, {U_OFF}')
        for i in range(1, 4): a.e(f's_add_u32 s{sE+i}, s{sE}, {2*81920*i}')
        for part in range(2):
            for i in range(4):
                b = 128 + 16*part + 4*i
                a.wait(lg=toks[4*part+i])
                st['ust'] = a.vm(f'buffer_store_dwordx4 v[{b}:{b+3}], v{vUS}, {srd(SWS)}, s{sE+i} offen offset:{2560*part} sc1')
        stamp(a, 'u3')
    def do_H():
        S = Sched()
        for k in range(8*nG): S.add(None)
        nm = len(S.slots)
        ops = []
        for i in range(nG): ops += [lambda a, i=i: stamp(a, f'f{i}')] + h_fin(st, i, 0) + h_fin(st, i, 1)
        S.spread(ops, 0, nm - 1)
        k_ = opt('na', 10) if nG == 4 else opt('naS', 6)
        if st['twq']: S.spread(st['twq'], 0, nm - 1)
        if k_: S.spread(later[:k_], 0, nm - 1); del later[:k_]
        if ufirst: S.put(min(nm - 1, opt('ufs', 20)), [uflag])
        hfe = -1
        S.emit(a)
        stamp(a, 4)
    if nG == 4: do_H()
    elif ufirst: do_U(); do_H()
    else: do_H(); do_U()
    if nG == 2: later = later[-15:] + later[:-15]
    nin = opt('nin' + sf, 0)
    st['inp2'] = later[len(later) - nin:]; later = later[:len(later) - nin]
    stamp(a, 5)
    phase2(a, st, hflag if (ufirst or nG == 4) else uflag, later, not (opt('twR', 0) if nG == 4 else opt('twS', 0)))

def phase2(a, st, hflag, later, doTW):
    RED = 65536 if XV[0] else 0
    t = 2
    q = 144
    r = Rec()
    if doTW: gen_TW(r, q)
    sGI = sE
    r.e(f's_mul_i32 s{sGO}, s{sHB[3]}, 1280\ns_mul_i32 s{sGI}, s{sHB[1]}, 1280')
    vHJ = [184, 185, 186, 187]; vHD = [188, 189, 190, 191]
    for j in range(4):
        r.e(f's_and_b32 s{sT}, s{sHB[j]}, 1024\ns_and_b32 s{sHB[j]}, s{sHB[j]}, 63\ns_mul_i32 s{sHB[j]}, s{sHB[j]}, 54\ns_add_u32 s{sHB[j]}, s{sHB[j]}, s{sTAU}\ns_lshl_b32 s{sHB[j]}, s{sHB[j]}, 11\ns_add_u32 s{sHB[j]}, s{sHB[j]}, s{sT}')
        r.e(f'v_add_u32 v{vHJ[j]}, s{sHB[j]}, v{vL16}\nv_add_u32 v{vHD[j]}, s{sHB[j]}, v192')
    r.e(f's_mov_b32 s{sKO[0]}, 0\ns_movk_i32 s{sKO[13]}, {13*2048}')
    for k in range(1, 13):
        if opt('rho', 0): r.e(f's_add_u32 s{sKO[k]}, s{sKO[k-1]}, 2048\ns_cmp_eq_u32 s{sKO[k]}, s{sKO[13]}\ns_cselect_b32 s{sKO[k]}, 0, s{sKO[k]}')
        elif k % 2 == 0: r.e(f's_movk_i32 s{sKO[k]}, {2048*k}')
    vG4, vG2, vB4 = t+8, t+9, t+10
    r.e(f's_mul_i32 s{sCW}, s{sC}, 160\ns_add_u32 s{sGO}, s{sGO}, s{sCW}\ns_add_u32 s{sGI}, s{sGI}, s{sCW}\ns_mov_b32 s{sT}, 81920')
    r.e(f'v_and_b32 v{q}, 15, v{vL}\nv_mul_lo_u32 v{q}, s{sT}, v{q}\nv_lshrrev_b32 v{q+1}, 4, v{vL}\nv_lshl_add_u32 v{vG4}, v{q+1}, 4, v{q}\nv_lshl_add_u32 v{vG2}, v{q+1}, 3, v{q}')
    r.e(f'v_lshl_add_u32 v{vB4}, v{q+1}, 4, s{sCW}\nv_lshl_add_u32 v{q+2}, v{q+1}, 3, s{sCW}')
    xr = 160; br = 172
    r.ops += [f'buffer_load_dwordx4 v[{xr}:{xr+3}], v{vG4}, {srd(SX)}, s{sGI} offen', f'buffer_load_dwordx4 v[{xr+4}:{xr+7}], v{vG4}, {srd(SX)}, s{sGI} offen offset:64',
              f'buffer_load_dwordx2 v[{xr+8}:{xr+9}], v{vG2}, {srd(SX)}, s{sGI} offen offset:128',
              f'global_load_dwordx4 v[{br}:{br+3}], v{vB4}, s[{sB2}:{sB2+1}]', f'global_load_dwordx4 v[{br+4}:{br+7}], v{vB4}, s[{sB2}:{sB2+1}] offset:64']
    r.vm(f'global_load_dwordx2 v[{br+8}:{br+9}], v{q+2}, s[{sB2}:{sB2+1}] offset:128', 'xb')
    r.e(f's_and_b32 s{sT+1}, s2, 15\ns_lshr_b32 s{sT+2}, s{sW}, 1\ns_lshl_b32 s{sT+2}, s{sT+2}, 4\ns_add_u32 s{sT+1}, s{sT+1}, s{sT+2}')
    r.e(f's_and_b32 s{sT+2}, s{sW}, 1\ns_mul_i32 s{sT+2}, s{sT+2}, 96\ns_add_u32 s{sT+1}, s{sT+1}, s{sT+2}')
    r.e(f's_lshl_b32 s{sT+1}, s{sT+1}, 2\ns_lshl_b32 s{sT+2}, s{sZ}, 1\ns_add_u32 s{sT+1}, s{sT+1}, s{sT+2}')
    vF1, vF2, vFV = t, t+1, t+2
    r.e(f'v_lshrrev_b32 v{q}, 1, v{vL}\nv_lshlrev_b32 v{q}, 7, v{q}\nv_and_b32 v{q+1}, 1, v{vL}\nv_add3_u32 v{q}, v{q}, v{q+1}, s{sT+1}')
    r.e(f'v_lshlrev_b32 v{vF1}, 7, v{q}\nv_add_u32 v{vF1}, {HF_OFF}, v{vF1}')
    r.e(f's_sub_u32 s{sTS1}, 32, s{sT1}\ns_and_b32 s{sTS1}, s{sTS1}, 31\ns_cmp_ge_u32 s{sC}, 4\ns_cselect_b32 s{sTS1}, s{sTS1}, s{sT1}')
    r.e(f'v_and_b32 v{q}, 7, v{vL}\nv_min_u32 v{q}, 4, v{q}\nv_lshlrev_b32 v{q+2}, 5, v{q}\nv_add_u32 v{q+3}, {6*32}, v{q+2}\nv_add_u32 v{q+2}, {3*32+16}, v{q+2}')
    r.e(f'v_cmp_gt_u32 vcc, 2, v{q}\nv_cndmask_b32 v{q}, v{q+2}, v{q+3}, vcc')
    r.e(f'v_and_b32 v{q+1}, 8, v{vL}\nv_bfe_u32 v{q+3}, v{vL}, 4, 1\nv_add3_u32 v{q}, v{q}, v{q+1}, v{q+3}')
    r.e(f's_lshl_b32 s{sT}, s{sW}, 3\ns_lshr_b32 s{sT+2}, s{sTS1}, 3\ns_add_u32 s{sT}, s{sT}, s{sT+2}\nv_lshl_add_u32 v{q}, v{q}, 2, s{sT}')
    r.e(f'v_lshlrev_b32 v{vF2}, 7, v{q}\nv_add_u32 v{vF2}, {F_OFF+4}, v{vF2}\nv_lshrrev_b32 v{q+1}, 4, v{vL}')
    vUO = [t+3+k for k in range(5)]
    r.e(f'v_and_b32 v{q}, 15, v{vL}\ns_mul_i32 s{sT}, s{sC}, 80\nv_and_b32 v{q+4}, 12, v{vL}\nv_add3_u32 v{q+4}, v{q+4}, v{q}, s{sT}\nv_add_u32 v{q}, s{sT}, v{q}')
    r.e(f's_movk_i32 s{sT+1}, 5120\nv_mul_u32_u24 v{q+1}, s{sT+1}, v{q+1}')
    r.e(f's_cmp_ge_u32 s{sC}, 4\ns_cselect_b32 s{sT}, -1, 0\ns_cselect_b32 s{sT+1}, 640, -1')
    for ct in range(5):
        if ct < 4: r.e(f'v_add_u32 v{q+2}, {32*(ct>>1)+4*(ct&1)}, v{q+4}')
        else: r.e(f'v_add_u32 v{q+2}, 64, v{q}')
        r.e(f'v_xor_b32 v{q+2}, s{sT}, v{q+2}\nv_add_u32 v{q+2}, s{sT+1}, v{q+2}\nv_sub_u32 v{q+5}, 478, v{q+2}')
        r.e(f'v_cmp_lt_i32 vcc, 159, v{q+2}\nv_cndmask_b32 v{q+5}, v{q+2}, v{q+5}, vcc')
        if ct == 0: r.e(f'v_cmp_eq_u32 vcc, 319, v{q+2}\nv_cndmask_b32 v{q+5}, v{q+5}, v{q+2}, vcc')
        r.e(f'v_lshl_add_u32 v{vUO[ct]}, v{q+5}, 4, v{q+1}')
        if ct == 0: r.e(f'v_mov_b32 v{q+3}, {OOB}\nv_cmp_gt_i32 vcc, 0, v{q+2}\nv_cndmask_b32 v{vUO[0]}, v{vUO[0]}, v{q+3}, vcc')
    r.e(f's_lshl_b32 s{sUo}, s{sTS1}, 4\ns_lshl_b32 s{sT}, s{sW}, 2\ns_add_u32 s{sUo}, s{sUo}, s{sT}\ns_mul_i32 s{sUo}, s{sUo}, 5120\ns_add_u32 s{sUo}, s{sUo}, {U_OFF}')
    vPW, vP2, vP1 = t+11, t+12, t+13
    r.e(f's_mul_i32 s{sT}, s{sW}, 15360\ns_add_u32 s{sT}, s{sT}, {RED}\nv_add_u32 v{vPW}, s{sT}, v{vL16}')
    r.e(f's_xor_b32 s{sT}, s{sW}, 2\ns_mul_i32 s{sT}, s{sT}, 15360\ns_add_u32 s{sT}, s{sT}, {RED}\nv_add_u32 v{vP2}, s{sT}, v{vL16}')
    r.e(f's_add_u32 s{sT}, s{sW}, 1\ns_and_b32 s{sT}, s{sT}, 3\ns_mul_i32 s{sT}, s{sT}, 15360\ns_add_u32 s{sT}, s{sT}, {RED}\nv_add_u32 v{vP1}, s{sT}, v{vL16}')
    vP3 = 0
    r.e(f's_add_u32 s{sT}, s{sW}, 3\ns_and_b32 s{sT}, s{sT}, 3\ns_mul_i32 s{sT}, s{sT}, 15360\ns_add_u32 s{sT}, s{sT}, {RED}\nv_add_u32 v{vP3}, s{sT}, v{vL16}')
    r.ops.insert(len(r.ops) * opt('hfp' + ('S' if XV[0] else ''), 25 if XV[0] else 20) // 100, hflag)
    hl = f'buffer_load_dword v{vFV}, v{vF1}, {srd(SWS)}, 0 offen sc1'
    nl = max(0, len(later) - opt('nlast', 12))
    mm_ = merge(r.ops, later[:nl]); h_ = len(mm_) // 2
    run(a, mm_[:h_]); stamp(a, 's1'); run(a, mm_[h_:]); stamp(a, 's2')
    ini = [lambda a: a.wait(vm=r.tok['xb']), f's_mov_b32 s{sT}, 0x05040100\ns_mov_b32 s{sT+1}, 0x07060302']
    for ct in range(5):
        b = 36 + 4*ct
        for k in range(2):
            xs = xr + (4*(ct >> 1) + 2*(ct & 1) + k if ct < 4 else 8 + k); bs = xs - xr + br
            ini += L(f'v_perm_b32 v{b+2*k}, v{bs}, v{xs}, s{sT}\nv_perm_b32 v{b+2*k+1}, v{bs}, v{xs}, s{sT+1}')
    for k in range(20): ini.append(f'v_dot2_f32_bf16 v{36+k}, v{36+k}, s{sONES}, 0')
    if opt('bias', 0.0):
        ini += [f's_cmp_eq_u32 s{sC}, 0\ns_cselect_b32 s{sT+2}, {fhex(opt("bias", 0.0))}, 0\ns_mov_b64 exec, 0xffff\ns_nop 2\nv_add_f32 v36, s{sT+2}, v36\ns_mov_b64 exec, -1']
    a.e(f'v_mov_b32 v{vL}, v{vL16}'); st['vW'] = vL
    a.e('s_mov_b64 exec, 0x3ff')
    tk = a.vm(hl)
    a.e('s_mov_b64 exec, -1')
    run(a, merge(ini, later[nl:]))
    stamp(a, 6)
    a.wait(vm=tk)
    check_loop(a, hl, vFV, 10, sPC)
    stamp(a, 7)
    ht = {}
    def hload(slot, j):
        def op(a):
            vo = vHD[j] if slot == 13 else vHJ[j]
            ht[(slot, j)] = a.vm(f'buffer_load_dwordx4 {HF(pos[(slot, j)])}, v{vo}, {srd(SWS)}, s{sKO[slot] if RHO else sKO[slot & ~1]} offen offset:{0 if RHO else 2048*(slot & 1)} sc1')
        return op
    order = [(s_, j) for j in range(4) for s_ in range(14)]
    pos = {k: n for n, k in enumerate(order)}
    ul = f'buffer_load_dword v{vFV}, v{vF2}, {srd(SWS)}, 0 offen sc1'
    for n in range(RING): hload(*order[n])(a)
    hp = RING
    wq = list(st['inp2'])
    S = Sched(); f = {}
    def group(s_, j):
        nonlocal hp
        n = pos[(s_, j)]
        for ct in range(5):
            pre = [lambda a: a.wait(vm=max(ht[(s_, j)], max(st['w2'][(s_, c_)] for c_ in range(5))))] if ct == 0 else []
            if ct == 0 and s_ == 0 and j == 3: pre.append(lambda a: a.wait(lg=st[('ci', j)]))
            c0 = '0' if (s_ == 0 and j in (0, 2)) else ACC2(ct, j)
            idx = S.add(f'v_mfma_f32_16x16x32_bf16 {ACC2(ct,j)}, {W2(s_,ct)}, {HF(n)}, {c0}', pre)
            if ct == 0: f[(s_, j)] = idx
        if hp < 56: S.put(idx, [hload(*order[hp])]); hp += 1
    def ustep(j):
        for ct in range(5):
            pre = [lambda a: a.wait(vm=st['uf'])] if ct == 0 else []
            S.add(f'v_mfma_f32_16x16x32_bf16 {ACC2(ct,j)}, {UF(ct)}, a[{aTW+4*j}:{aTW+4*j+3}], {ACC2(ct,j)}', pre)
    u0 = opt('u0', 5)
    for j in range(4):
        for s_ in range(14):
            group(s_, j)
            if j == 2 and s_ == u0: ustep(1); ustep(0)
        if j >= 2: ustep(j)
    bar = lambda a: (a.wait(lg=a.lg_issued), a.e('s_barrier'))
    def wr(j, at, step):
        for ct in range(5): S.put(at + step*ct, [f'ds_write_b128 v{vPW}, {ACC2(ct,j)} offset:{j*5120 + ct*1024}'])
    def rd(key, dst, va, off, at, step):
        for ct in range(5): S.put(at + step*ct, [lambda a, ct=ct: st.__setitem__(key, a.lg(f'ds_read_b128 {dst(ct)}, v{va} offset:{off + ct*1024}'))])
    PB = 144
    wr(1, f[(u0+1, 2)] + 1, 3); S.put(f[(u0+5, 2)] + 1, [bar]); rd(('ci', 3), lambda ct: ACC2(ct, 3), vP2, 5120, f[(u0+5, 2)] + 3, 4)
    wr(0, f[(u0+6, 2)] + 1, 4)
    wr(2, f[(1, 3)] + 1, 3); S.put(f[(5, 3)] + 1, [bar])
    rd('pr', lambda ct: f'v[{PB+4*ct}:{PB+4*ct+3}]', vP1, 10240, f[(5, 3)] + 3, 2)
    rd('pr', lambda ct: f'v[{PB+20+4*ct}:{PB+23+4*ct}]', vP3, 0, f[(5, 3)] + 13, 2)
    S.spread([lambda a: a.wait(lg=st['pr'])] + [f'v_add_f32 v{PB+k}, v{PB+k}, v{PB+20+k}' for k in range(20)], f[(10, 3)], f[(13, 3)] + 8)
    ku = opt('ku', 10)
    fl = [f[k] for k in order]
    S.put(fl[ku] + 1, [lambda a: (a.e('s_mov_b32 exec_hi, 0'), st.__setitem__('ul', a.vm(ul)), a.e('s_mov_b32 exec_hi, -1'))])
    kc = ku + opt('kc', 12)
    S.put(fl[kc] + 1, [lambda a: (a.wait(vm=st['ul']), check_loop(a, ul, vFV, 32, sPC), stamp(a, 'uc'))])
    for ct in range(5):
        S.put(fl[kc + ct] + 3, [lambda a, ct=ct: st.__setitem__('uf', a.vm(f'buffer_load_dwordx4 {UF(ct)}, v{vUO[ct]}, {srd(SWS)}, s{sUo} offen sc1'))])
    for j in range(4): S.slots[f[(0, j)]]['pre'].insert(0, lambda a, j=j: stamp(a, f'l{j}'))
    S.slots[f[(1, 0)]]['pre'].insert(0, lambda a: stamp(a, 'e1'))
    assert not wq
    S.emit(a)
    stamp(a, 8)
    a.wait(lg=st['pr'])
    o = 96
    for ct in range(5):
        b = 76 + 4*ct
        for k in range(4): a.e(f'v_add_f32 v{b+k}, v{b+k}, v{PB+4*ct+k}')
        if opt('scale', 0.0):
            for k in range(4): a.e(f'v_mul_f32 v{b+k}, {fhex(1.0 + opt("scale", 0.0))}, v{b+k}')
        a.e(cvtpk(o+2*ct, b, b+1)); a.e(cvtpk(o+2*ct+1, b+2, b+3))
        ost = opt('ost', '')
        if ct == 1: a.vm(f'buffer_store_dwordx4 v[{o}:{o+3}], v{vG4}, {srd(SOUT)}, s{sGO} offen {ost}')
        if ct == 3: a.vm(f'buffer_store_dwordx4 v[{o+4}:{o+7}], v{vG4}, {srd(SOUT)}, s{sGO} offen offset:64 {ost}')
        if ct == 4: a.vm(f'buffer_store_dwordx2 v[{o+8}:{o+9}], v{vG2}, {srd(SOUT)}, s{sGO} offen offset:128 {ost}')
    if DBG == 3:
        a.wait_all()
        le = label('dbgskip')
        a.e(f's_memrealtime s[{sT+1}:{sT+2}]\ns_waitcnt lgkmcnt(0)')
        a.e(f's_cmp_lg_u32 s{sW}, 0\ns_cbranch_scc1 {le}')
        a.e(f's_cmp_eq_u32 s2, {opt("wgA", 8)}\ns_cselect_b32 s{sT}, 4, 0\ns_cmp_eq_u32 s2, {opt("wgB", 232)}\ns_cselect_b32 s{sT}, 32, s{sT}\ns_cmp_eq_u32 s{sT}, 0\ns_cbranch_scc1 {le}')
        for k in range(1, 7): a.e(f's_sub_u32 s{sT+3}, s{sTS+2*k}, s{sTS}\nv_mov_b32 v{15+k}, s{sT+3}')
        a.e(f's_sub_u32 s{sT+3}, s{sT+1}, s{sTS}\nv_mov_b32 v22, s{sT+3}\nv_mov_b32 v2, s{sT}\ns_mov_b64 exec, 1')
        a.e(f'global_store_dwordx4 v2, v[16:19], s[{sDBG}:{sDBG+1}]\nglobal_store_dwordx3 v2, v[20:22], s[{sDBG}:{sDBG+1}] offset:16')
        a.e(f'{le}:')
    elif DBG:
        a.wait_all()
        a.e(f'{"s_memtime" if DBG == 2 else "s_memrealtime"} s[{sT+1}:{sT+2}]\ns_waitcnt lgkmcnt(0)')
        for k in range(9): a.e(f'v_mov_b32 v{16+k}, s{sTS+2*k}')
        a.e(f'v_mov_b32 v25, s{sT+1}\nv_mov_b32 v26, 0\nv_mov_b32 v27, 0')
        a.e(f's_lshl_b32 s{sT}, s2, 2\ns_add_u32 s{sT}, s{sT}, s{sW}\ns_lshl_b32 s{sT}, s{sT}, 6\ns_add_u32 s{sT}, s{sT}, {TS_OFF}')
        a.e(f'v_mov_b32 v2, 0\ns_mov_b64 exec, 1')
        for k in range(3): a.e(f'buffer_store_dwordx4 v[{16+4*k}:{19+4*k}], v2, {srd(SWS)}, s{sT} offen offset:{16*k}')
    a.e('s_endpgm')

def build():
    a = Asm(); prologue(a)
    outs = [a]
    for nG in (4, 2):
        b = a.fork()
        if nG == 2: b.e('L_S:')
        build_type(b, T(nG)); outs.append(b)
    lines = []
    for o in outs: lines += o.finish()
    return lines + SLOW

hdr = open('cdna_kernels/%s.s.ref' % NAME).read().split('; Override launch')[0]
lines = build()
if opt('al8', 0):
    import subprocess, re as _re
    def sizes(ls):
        open('_al.s', 'w').write('.amdgcn_target "amdgcn-amd-amdhsa--gfx950"\n.text\n' + '\n'.join(ls) + '\nL_end:\nL_ftab:\n')
        subprocess.run(['clang', '-x', 'assembler', '-target', 'amdgcn-amd-amdhsa', '-mcpu=gfx950', '-c', '_al.s', '-o', '_al.o'], check=True)
        d = subprocess.run(['llvm-objdump', '-d', '--mcpu=gfx950', '_al.o'], capture_output=True, text=True).stdout
        return [4*len(m.group(1).split()) for m in _re.finditer(r'// [0-9A-F]+: ([0-9A-F ]+)', d)]
    sz = sizes(lines); idx = [i for i, l in enumerate(lines) if not l.endswith(':')]
    assert len(sz) == len(idx), (len(sz), len(idx))
    addr = 0; prev = None; nfix = 0; nmiss = 0
    ok = ('v_mul_f32', 'v_max_f32', 'v_add_f32', 'v_sub_f32', 'v_mov_b32', 'v_cos_f32', 'v_sin_f32', 'v_add_u32', 'v_and_b32', 'v_lshlrev_b32', 'v_lshrrev_b32', 'v_xor_b32', 'v_cvt_f32_u32', 'v_mul_u32_u24', 'v_min_u32', 'v_sub_u32', 'v_rcp_f32')
    cand = None
    for k, i in enumerate(idx):
        if sz[k] == 8 and addr % 8 == 4:
            if cand is not None:
                mn = lines[cand].split()[0]; lines[cand] = lines[cand].replace(mn, mn + '_e64', 1); addr += 4; nfix += 1
            elif opt('al8', 0) == 2 and lines[i].startswith('v_mfma'):
                lines[i] = 's_nop 0\n    ' + lines[i]; addr += 4; nfix += 1
            else: nmiss += 1
        if sz[k] == 4 and lines[i].split()[0] in ok: cand = i
        elif sz[k] != 4: cand = None
        addr += sz[k]
    print('align: fixed', nfix, 'unfixed', nmiss)
with open(sys.argv[1], 'w') as f:
    f.write(hdr)
    f.write(f'; @launch grid=(256,1,1) block=(256,1,1) lds={LDS_BYTES}\n')
    f.write('.amdgcn_target "amdgcn-amd-amdhsa--gfx950"\n.text\n')
    f.write(f'.globl {NAME}_kernel\n.p2align 8\n.type {NAME}_kernel,@function\n{NAME}_kernel:\n')
    for l in lines: f.write(('' if l.endswith(':') else '    ') + l + '\n')
    f.write('L_end:\n    s_endpgm\n')
    f.write('.p2align 8\n.type L_ftab,@object\nL_ftab:\n')
    tb = F_table()
    for i in range(0, len(tb), 8): f.write('.long ' + ', '.join('0x%08x' % x for x in tb[i:i+8]) + '\n')
    f.write('.fill 8192, 4, 0\n')
    f.write(f'''.section .rodata,"a"
.p2align 6
.amdhsa_kernel {NAME}_kernel
  .amdhsa_next_free_vgpr 512
  .amdhsa_next_free_sgpr 102
  .amdhsa_accum_offset 256
  .amdhsa_group_segment_fixed_size 0
  .amdhsa_kernarg_size 104
  .amdhsa_user_sgpr_count 2
  .amdhsa_user_sgpr_kernarg_segment_ptr 1
  .amdhsa_system_sgpr_workgroup_id_x 1
.end_amdhsa_kernel
''')
print('instructions:', len(lines))
```

```python
import sys, struct, copy, os
from asmlib import Asm
NAME = 'parallel_sum__spectral_fnet__dense_activation_squared_relu__prompt'
DBG = int(sys.argv[2]) if len(sys.argv) > 2 else 0
OPT = dict(kv.split('=') for kv in sys.argv[3:])
def opt(k, d): return type(d)(OPT.get(k, d))

H_OFF = 0; U_OFF = 0x6C0000; P_OFF = 0x940000; ST_OFF = 0xB5C000; F_OFF = 0xB68000; TS_OFF = 0xB88000; PF_OFF = 0xBA0000; HF_OFF = 0xBB0000; WS_END = 0xBD0000
OOB = 0x40000000
ARING = 0; BBASE = 65536; AUX = 131072; TAB = 161792; TABC = TAB; TABB = TAB + 512; TABR = TAB + 1024; TABA = TAB + 1536
XCH = 0
RED_PITCH = 336; RED_WAVE = 64 * RED_PITCH
LDS_BYTES = 163840
SX, SW1, SW2, SWS, SOUT = 4, 8, 12, 16, 20
sB1, sB2, sDBG = 24, 26, 28
sW, sZ, sRB, sC8, sROW, sG0 = 30, 31, 32, 33, 34, 35
sA, sA2, sBo, sMA, sMB = 36, 37, 38, 39, 40
sT1, sC, sTAG, sONES = 41, 42, 43, 44
sT = 45
sH = [53, 54, 55, 56]; sFL = 57; sDT = 58; sAUXo = 59; sAUXs = 60; sTAU = 61; sW2o = 62; sH0 = 63; sH1 = 64; sUo = 65
sCW = 61+0*0 if False else 83; sGO = 82; sTS1 = 66; sPC = 51; sUS = 70; sE = 71
sAUXm = 3; sHB = [78, 79, 80, 81]
sRHO = 75; sWE = 76; sW4 = 77; sXCC = 66; sLOC = 67; sFH = 68
sKO = [36, 37, 38, 39, 40, 53, 54, 55, 56, 58, 59, 60, 63, 64]
sTS = 84
def srd(b): return f's[{b}:{b+3}]'
def fhex(x): return '0x%08x' % struct.unpack('<I', struct.pack('<f', x))[0]
XV = [False]
def X(ks): return f'v[{196+4*(ks%8)}:{199+4*(ks%8)}]' if XV[0] else f'a[{4*(ks%8)}:{4*(ks%8)+3}]'
def ACC1(i): return f'v[{32+16*i}:{47+16*i}]'
def WB(b, i, h=None):
    base = 96 + 16*b + 4*i if i < 4 else 184 + 4*b
    return f'v[{base}:{base+3}]' if h is None else f'v[{base+2*h}:{base+2*h+1}]'
aTW = 160; aF0 = 176; aSEL = 'a[192:195]'; aCS = 'a[196:199]'
def aF(k): return f'a[{aF0+4*k}:{aF0+4*k+3}]' if k < 4 else f'a[{152+4*(k-4)}:{155+4*(k-4)}]'
vL = 1
vOA = [2, 3]; vOB = [4, 5, 6, 7]; vAR = [8, 9, 10, 11]; vBR = [12, 13, 14, 15]
vT = 16
vST = 24
vNM, vSDV, vAL, vR = 24, 25, 26, 28
vNON = 28; vPF = 29; vHO = 30; vL16 = 31
vAUX = 160
def W2(slot, ct):
    if slot < 3: k, b = 'v', 196 + 20*slot + 4*ct
    elif slot < 5: k, b = 'a', 200 + 20*(slot-3) + 4*ct
    elif slot < 11: k, b = 'a', 32 + 20*(slot-5) + 4*ct
    elif slot == 11: k, b = 'a', (240 + 4*ct if ct < 4 else 152)
    elif slot == 12: k, b = 'a', (4*ct if ct < 4 else 156)
    else: k, b = 'a', (16 + 4*ct if ct < 4 else 196)
    return f'{k}[{b}:{b+3}]'
def UF(ct): return f'a[{176+4*ct}:{179+4*ct}]'
def ACC2(ct, rt): b = 16 + 20*rt + 4*ct; return f'v[{b}:{b+3}]'
RHO = opt('rho', 0)
RING = opt('ring', 10)
def HF(n): b = 96 + 4*(n % RING); return f'v[{b}:{b+3}]'

TSL = OPT.get('ts', '0,1,2,3,4,5,6,7,8').split(',')
def stamp(a, name):
    if str(name) not in TSL: return
    idx = TSL.index(str(name))
    if DBG: a.e(f'{"s_memtime" if DBG == 2 else "s_memrealtime"} s[{sTS+2*idx}:{sTS+2*idx+1}]')
def cvtpk(d, x, y): return f'v_cvt_pk_bf16_f32 v{d}, v{x}, v{y}'
uid = [0]
def label(p):
    uid[0] += 1; return f'L_{p}{uid[0]}'

class Sched:
    def __init__(self): self.slots = []
    def add(self, main, pre=()):
        self.slots.append({'pre': list(pre), 'main': main, 'fill': []}); return len(self.slots) - 1
    def put(self, idx, ops): self.slots[idx]['fill'] += list(ops)
    def spread(self, ops, first, last):
        ops = list(ops); n = last - first + 1
        for k, op in enumerate(ops):
            self.slots[first + min(n - 1, k * n // len(ops))]['fill'].append(op)
    def pack(self, ops, first, per):
        i = first
        for op in ops:
            while i < len(self.slots) - 1 and len(self.slots[i]['fill']) >= per: i += 1
            self.slots[i]['fill'].append(op)
        return i
    def emit(self, a, lo=0, hi=None):
        for s in self.slots[lo:hi]:
            for op in s['pre'] + [s['main']] + s['fill']:
                if op is None: continue
                if callable(op): op(a)
                else: a.e(op)
def L(text): return [t for t in text.split('\n') if t.strip()]

def mk_srd(b, lo, n):
    return f's_mov_b32 s{b}, s{lo}\ns_and_b32 s{b+1}, s{lo+1}, 0xffff\ns_mov_b32 s{b+2}, {n}\ns_mov_b32 s{b+3}, 0x20000'

def prologue(a):
    for _ in range(opt('shift', 0)): a.e('s_nop 0')
    a.e('s_cmp_ge_u32 s2, 256\ns_cbranch_scc1 L_end')
    stamp(a, 0)
    a.e('s_load_dwordx2 s[66:67], s[0:1], 0')
    a.e('s_load_dwordx8 s[68:75], s[0:1], 48')
    a.e('s_load_dwordx4 s[76:79], s[0:1], 80')
    a.e('s_load_dwordx2 s[80:81], s[0:1], 96')
    a.e('s_getpc_b64 s[82:83]\nL_pc:')
    if opt('cp', 1) == 0:
        a.e('s_bfe_u32 s3, s2, 0x10003\ns_lshl_b32 s3, s3, 15\nv_lshl_add_u32 v2, v0, 7, s3')
        a.vm(f'global_load_dword v{vPF}, v2, s[82:83]')
    else:
        n_ = opt('cp', 1) * 8; sh_ = 3 if n_ == 8 else 4
        a.e(f's_bfe_u32 s3, s2, {hex(0x40003 if n_ == 8 else 0x30003)}\ns_lshl_b32 s3, s3, {2 + sh_}\nv_lshrrev_b32 v3, 6, v0\nv_lshl_add_u32 v3, v3, {sh_}, s3\nv_and_b32 v2, 63, v0\nv_add_lshl_u32 v2, v2, v3, 7\ns_mov_b64 exec, {hex((1 << n_) - 1)}')
        a.vm(f'global_load_dword v{vPF}, v2, s[82:83]')
        a.e('s_mov_b64 exec, -1')
    a.e('s_add_u32 s82, s82, L_ftab-L_pc\ns_addc_u32 s83, s83, 0')
    a.e(f'v_lshrrev_b32 v4, 6, v0\nv_and_b32 v{vL}, 63, v0\nv_readfirstlane_b32 s{sW}, v4')
    a.e(f's_bfe_u32 s{sZ}, s2, 0x10004')
    a.e(f's_and_b32 s{sT}, s2, 7\ns_bfe_u32 s{sT+1}, s2, 0x10003\ns_lshl_b32 s{sT}, s{sT}, 1')
    a.e(f's_add_u32 s{sRB}, s{sT}, s{sT+1}\ns_lshr_b32 s{sC8}, s2, 5')
    a.e(f's_sub_u32 s{sT+2}, 32, s{sRB}\ns_cmp_eq_u32 s{sRB}, 0\ns_cselect_b32 s{sT+2}, 16, s{sT+2}')
    a.e(f's_bitcmp1_b32 s{sW}, 1\ns_cselect_b32 s{sROW}, s{sT+2}, s{sRB}')
    a.e(f's_and_b32 s{sT+3}, s{sW}, 1\ns_lshl_b32 s{sT+3}, s{sT+3}, 5\ns_add_u32 s{sROW}, s{sROW}, s{sT+3}')
    a.e(f's_mov_b32 s{sAUXm}, s{sT+2}')
    a.e(f'v_lshrrev_b32 v{vT}, 3, v{vL}\nv_lshrrev_b32 v{vT+1}, 4, v{vL}\nv_and_b32 v{vT+2}, 7, v{vL}')
    a.e(f'v_xor_b32 v{vT+3}, v{vT+2}, v{vT+1}\ns_mov_b32 s{sT+4}, 81920\nv_mul_lo_u32 v{vT+4}, s{sT+4}, v{vT}')
    a.e(f'v_lshl_add_u32 v{vOA[0]}, v{vT+3}, 4, v{vT+4}\nv_xor_b32 v{vT+3}, 4, v{vT+3}')
    a.e(f'v_lshl_add_u32 v{vOA[1]}, v{vT+3}, 4, v{vT+4}\nv_add_u32 v{vOA[1]}, {8*81920-1024}, v{vOA[1]}')
    a.e(f's_mul_i32 s{sA}, s{sROW}, 1280\ns_add_u32 s{sA2}, s{sA}, {16*81920-2048}\ns_lshl_b32 s{sMA}, s{sW}, 12')
    a.e(f's_sub_u32 s{sT+5}, 6, s{sZ}\ns_cmp_ge_u32 s{sC8}, s{sT+5}\ns_cbranch_scc1 L_S')

class T:
    def __init__(self, nG):
        self.nG = nG; self.nD = 0 if nG == 4 else 2
        self.bslot = 4096 * nG
        self.pitch = 64 * nG
        self.DREG = 131072 if nG == 4 else 98304
        self.nb = nG

def prologue_t(a, t, st):
    if t.nG == 4:
        a.e(f's_mul_i32 s{sG0}, s{sZ}, 28\ns_lshl_b32 s{sT}, s{sC8}, 2\ns_add_u32 s{sG0}, s{sG0}, s{sT}')
        a.e(f'v_and_b32 v{vT+2}, 15, v{vL}\nv_lshlrev_b32 v{vT+3}, 2, v{vT+1}\nv_xor_b32 v{vT+2}, v{vT+2}, v{vT+3}')
        a.e(f's_movk_i32 s{sT+6}, 3456\nv_mul_u32_u24 v{vT+3}, s{sT+6}, v{vT+1}\nv_lshl_add_u32 v{vOB[0]}, v{vT+2}, 4, v{vT+3}')
        for i in range(1, 4): a.e(f'v_add_u32 v{vOB[i]}, {i*(4*3456-1024)}, v{vOB[0]}')
    else:
        a.e(f's_mul_i32 s{sG0}, s{sZ}, 26\ns_lshl_b32 s{sT}, s{sC8}, 1\ns_add_u32 s{sG0}, s{sG0}, s{sT}\ns_add_u32 s{sG0}, s{sG0}, 12')
        a.e(f's_mul_i32 s{sDT}, s{sZ}, 6\ns_add_u32 s{sDT}, s{sDT}, s{sT}\ns_sub_u32 s{sDT}, s{sDT}, 12')
        a.e(f'v_and_b32 v{vT+3}, 1, v{vT+1}\nv_lshlrev_b32 v{vT+3}, 2, v{vT+3}\nv_xor_b32 v{vT+2}, v{vT+2}, v{vT+3}')
        a.e(f's_movk_i32 s{sT+6}, 3456\nv_mul_u32_u24 v{vT+3}, s{sT+6}, v{vT}\nv_lshl_add_u32 v{vOB[0]}, v{vT+2}, 4, v{vT+3}')
        a.e(f'v_add_u32 v{vOB[1]}, {8*3456-1024}, v{vOB[0]}')
    a.e(f's_lshl_b32 s{sBo}, s{sG0}, 6\ns_mul_i32 s{sT}, s{sW}, {16*3456}\ns_add_u32 s{sBo}, s{sBo}, s{sT}')
    a.e(f's_mul_i32 s{sMB}, s{sW}, {1024*t.nb}\ns_add_u32 s{sMB}, s{sMB}, {BBASE}')
    a.e(f's_lshl_b32 s{sT+1}, s{sG0}, 6\nv_and_b32 v{vT+6}, {16*t.nG-1}, v{vL}\nv_lshl_add_u32 v{vT+6}, v{vT+6}, 2, s{sT+1}')
    if t.nG == 4: run(a, roll_setup(t, opt('rn', 9)))
    stamp(a, 'p0')
    a.e('s_waitcnt lgkmcnt(0)')
    stamp(a, 'p1')

    a.vm(f'global_load_dword v{vT+7}, v{vT+6}, s[70:71]')
    a.e(f'v_bfe_u32 v{vT+5}, v{vL}, 0, 3\nv_mul_u32_u24 v{vT+5}, 0xa0, v{vT+5}')
    a.vm(f'global_load_dword v{vPF}, v{vT+5}, s[74:75]')
    a.e(mk_srd(SX, 66, 2048*1280)); a.e(mk_srd(SW1, 68, 640*3456))

def dma_ops(t, c, st):
    slot = c % 4
    ops = [f's_add_u32 m0, s{sMA}, {ARING + slot*16384}',
           f'buffer_load_dwordx4 v{vOA[0]}, {srd(SX)}, s{sA} offen {opt("ntx", "")} lds',
           f'buffer_load_dwordx4 v{vOA[1]}, {srd(SX)}, s{sA} offen offset:1024 {opt("ntx", "")} lds',
           f'buffer_load_dwordx4 v{vOA[0]}, {srd(SX)}, s{sA2} offen offset:2048 {opt("ntx", "")} lds',
           f'buffer_load_dwordx4 v{vOA[1]}, {srd(SX)}, s{sA2} offen offset:3072 {opt("ntx", "")} lds',
           f's_add_u32 m0, s{sMB}, {slot*t.bslot}\ns_add_u32 s{sA}, s{sA}, 128\ns_add_u32 s{sA2}, s{sA2}, 128']
    for i in range(t.nb):
        ops.append(f'buffer_load_dwordx4 v{vOB[i]}, {srd(SW1)}, s{sBo} offen offset:{1024*i} {opt("ntw", "")} lds')
    def last(a):
        st['dma'][c] = a.vm_issued
        a.e(f's_add_u32 s{sBo}, s{sBo}, {64*3456}')
    ops.append(last)
    return ops
def run(a, ops):
    for op in ops:
        if callable(op): op(a)
        else: a.e(op)

vAO = 128
vPK = 140; vSD = 160
sPo = 58; sPs = 62; sPf = 64; sSo = 60; sSs = 65
def aux_setup(a):
    q = 184
    a.e(f's_mul_i32 s{sT}, s{sZ}, 6\ns_add_u32 s{sT}, s{sT}, s{sC8}\ns_lshl_b32 s{sT}, s{sT}, 2\ns_add_u32 s{sT}, s{sT}, s{sW}')
    a.e(f's_mul_i32 s{sT+1}, s{sRB}, 27\ns_add_u32 s{sT+1}, s{sT+1}, s{sT}')
    a.e(f's_lshr_b32 s{sT+2}, s{sT+1}, 3\ns_and_b32 s{sT+3}, s{sT+1}, 7\ns_mul_i32 s{sPo}, s{sT+2}, 40960\ns_mul_i32 s{sT+5}, s{sT+3}, 160\ns_add_u32 s{sPo}, s{sPo}, s{sT+5}')
    a.e(f's_mul_i32 s{sPs}, s{sT+3}, 54\ns_add_u32 s{sPs}, s{sPs}, s{sT+2}\ns_mul_i32 s{sPs}, s{sPs}, 5120\ns_add_u32 s{sPs}, s{sPs}, {P_OFF}')
    a.e(f's_lshl_b32 s{sPf}, s{sT+1}, 7\ns_add_u32 s{sPf}, s{sPf}, {PF_OFF}')
    a.e(f's_cmp_lt_u32 s{sT}, 27\ns_cselect_b32 s{sT+4}, 0, {OOB}\ns_cselect_b32 s{sPo}, s{sPo}, 0')
    for i in range(5):
        a.e(f'v_add_u32 v{q}, {64*i}, v{vL}\nv_mul_u32_u24 v{q+1}, 0x667, v{q}\nv_lshrrev_b32 v{q+1}, 14, v{q+1}\nv_mul_u32_u24 v{q+1}, 0x460, v{q+1}')
        if i == 0: a.e(f'v_lshl_add_u32 v{vAO+9}, v{vL}, 4, s{sT+4}')
        a.e(f'v_add_u32 v{vAO+i}, v{vAO+9}, v{q+1}')
    a.e(f'v_add_u32 v{vAO+4}, 0x1000, v{vAO+4}')
    a.e(f's_mul_i32 s{sAUXm}, s{sW}, 5120\ns_add_u32 s{sAUXm}, s{sAUXm}, {AUX}')
def stats_setup(a):
    q = 184
    a.e(f's_mul_i32 s{sT}, s{sZ}, 6\ns_add_u32 s{sT}, s{sT}, s{sC8}\ns_lshl_b32 s{sT}, s{sT}, 2\ns_add_u32 s{sT}, s{sT}, s{sW}')
    a.e(f's_sub_u32 s{sT}, s{sT}, 12\ns_cmp_lt_u32 s{sT}, 32\ns_cselect_b32 s{sT+4}, 0, {OOB}\ns_cselect_b32 s{sT}, s{sT}, 0')
    a.e(f's_bitcmp1_b32 s{sT}, 4\ns_cselect_b32 s{sT+2}, s{sAUXm}, s{sRB}')
    a.e(f's_bfe_u32 s{sT+3}, s{sT}, 0x10003\ns_lshl_b32 s{sT+3}, s{sT+3}, 5\ns_add_u32 s{sT+2}, s{sT+2}, s{sT+3}\ns_and_b32 s{sT+3}, s{sT}, 7\ns_lshl_b32 s{sT+3}, s{sT+3}, 8\ns_add_u32 s{sT+2}, s{sT+2}, s{sT+3}\ns_mul_i32 s{sSo}, s{sT+2}, 1280')
    a.e(f's_lshl_b32 s{sT+2}, s{sRB}, 5\ns_add_u32 s{sT+2}, s{sT+2}, s{sT}\ns_lshl_b32 s{sSs}, s{sT+2}, 6\ns_add_u32 s{sSs}, s{sSs}, {ST_OFF}')
    a.e(f'v_lshrrev_b32 v{q}, 4, v{vL}\ns_mov_b32 s{sT+5}, 81920\nv_mul_lo_u32 v{q+1}, s{sT+5}, v{q}\nv_and_b32 v{q+2}, 15, v{vL}\nv_lshlrev_b32 v{q+2}, 4, v{q+2}\nv_add3_u32 v{vAO+7}, v{q+2}, v{q+1}, s{sT+4}')
    a.e(f'v_lshl_add_u32 v{vAO+8}, v{q}, 4, s{sT+4}')
def aux_setup2(a):
    q = 184
    a.e(f'v_lshrrev_b32 v{q}, 5, v{vL}\nv_lshlrev_b32 v{q}, 4, v{q}\nv_bfe_u32 v{q+1}, v{vL}, 4, 1\nv_lshl_add_u32 v{q}, v{q+1}, 2, v{q}')
    a.e(f'v_bfe_u32 v{q+1}, v{vL}, 2, 2\nv_add_u32 v{q}, v{q}, v{q+1}\nv_mul_u32_u24 v{q}, 160, v{q}\nv_add_u32 v{q}, s{sAUXm}, v{q}')
    a.e(f'v_and_b32 v{q+1}, 3, v{vL}\nv_lshl_add_u32 v{vAO+5}, v{q+1}, 4, v{q}\nv_lshl_add_u32 v{vAO+6}, v{q+1}, 3, v{q}')

def unc_vm(text):
    def op(a): a.e(text); a.vm_issued -= 1
    return op
def unc_lg(text):
    def op(a): a.e(text); a.lg_issued -= 1
    return op
def pack_dma(st):
    o = []
    for i in range(5):
        def op(a, i=i):
            if i in (0, 4): a.e(f's_add_u32 m0, s{sAUXm}, {4096 if i else 0}')
            st['pk'] = a.vm(f'buffer_load_dwordx4 v{vAO+i}, {srd(SW2)}, s{sPo} offen offset:{(1024*i)%4096} {opt("ntp", "")} lds')
        o.append(op)
    return o
def pack_reads(st):
    o = [lambda a: a.wait(vm=st['pk'])]
    for ct in range(5):
        for h in range(2):
            t = (f'ds_read_b64_tr_b16 v[{vPK+4*ct+2*h}:{vPK+4*ct+2*h+1}], v{vAO+5} offset:{(ct>>1)*64+(ct&1)*8+h*1280}' if ct < 4 else
                 f'ds_read_b64_tr_b16 v[{vPK+4*ct+2*h}:{vPK+4*ct+2*h+1}], v{vAO+6} offset:{128+h*1280}')
            o.append(lambda a, t=t, ct=ct: st.__setitem__(('pr', ct), a.lg(t)))
    return o
def pack_stores(st):
    o = []
    for ct in range(5):
        def op(a, ct=ct):
            a.wait(lg=st[('pr', ct)])
            if ct == 4: a.e(f's_add_u32 s{sPs}, s{sPs}, 4096')
            st['ps'] = a.vm(f'buffer_store_dwordx4 v[{vPK+4*ct}:{vPK+4*ct+3}], v{vAO+9}, {srd(SWS)}, s{sPs} offen offset:{(1024*ct)%4096} sc1')
        o.append(op)
    return o
def aux_publish(st):
    g = 186
    def op(a):
        a.e(f'v_mov_b32 v{g+3}, s{sTAG}\ns_mov_b32 exec_lo, 0x00010001\ns_mov_b32 exec_hi, 0x00010001')
        a.vm(f'buffer_store_dwordx4 v[{g}:{g+3}], v{vAO+8}, {srd(SWS)}, s{sSs} offen sc1')
        a.wait(vm=st['ps'])
        a.e('s_mov_b64 exec, 1')
        a.vm(f'buffer_store_dword v{g+3}, v{vAO+9}, {srd(SWS)}, s{sPf} offen sc1')
        a.e('s_mov_b64 exec, -1'); stamp(a, 'pf')
    return op
def stats_loads(st):
    return [lambda a, i=i: st.__setitem__('sl', a.vm(f'buffer_load_dwordx4 v[{vSD+4*i}:{vSD+4*i+3}], v{vAO+7}, {srd(SX)}, s{sSo} offen offset:{256*i}')) for i in range(5)]
def stats_proc(st):
    q = 180; g = 186; d = vSD
    o = [lambda a: a.wait(vm=st['sl']), f's_mov_b32 s{sT}, 0xbf803f80']
    o += [f'v_mov_b32 v{q+k}, 0' for k in range(3)]
    o += [f'v_dot2c_f32_bf16 v{q}, s{sONES}, v{d+r}\nv_dot2c_f32_bf16 v{q+1}, v{d+r}, v{d+r}\nv_dot2c_f32_bf16 v{q+2}, s{sT}, v{d+r}' for r in range(20)]
    for sh in (8, 4, 2, 1):
        o += [f'v_add_f32_dpp v{q+k}, v{q+k}, v{q+k} row_ror:{sh} row_mask:0xf bank_mask:0xf' for k in range(3)]
    o += L(f'v_mul_f32 v{q}, {fhex(1/640)}, v{q}\nv_mul_f32 v{q+1}, {fhex(1/640)}, v{q+1}')
    o += L(f'v_fma_f32 v{q+1}, -v{q}, v{q}, v{q+1}\nv_max_f32 v{q+1}, 0, v{q+1}\nv_add_f32 v{q+1}, {fhex(1e-5)}, v{q+1}')
    o += L(f'v_rsq_f32 v{q+3}, v{q+1}\nv_sqrt_f32 v{g+1}, v{q+1}\nv_sub_f32 v{g}, 0, v{q}\nv_mul_f32 v{g+2}, v{q+2}, v{q+3}')
    return o

def nonce_pub(a):
    if opt('wsb', 0): a.e(f's_add_u32 s80, s80, {opt("wsb", 0) << 20}\ns_addc_u32 s81, s81, 0')
    a.e(mk_srd(SWS, 80, WS_END)); a.e(mk_srd(SOUT, 76, 2048*1280))
    a.e(f's_mov_b64 s[{sB1}:{sB1+1}], s[70:71]\ns_mov_b64 s[{sB2}:{sB2+1}], s[74:75]\ns_mov_b64 s[{sDBG}:{sDBG+1}], s[78:79]')
    ln = label('non')
    a.e(f's_or_b32 s{sT}, s2, s{sW}\ns_cmp_lg_u32 s{sT}, 0\ns_cbranch_scc1 {ln}')
    a.e(f's_memrealtime s[{sT+1}:{sT+2}]\ns_waitcnt lgkmcnt(0)\ns_or_b32 s{sT}, s{sT+1}, 1')
    a.e(f'v_mov_b32 v{vT}, 0\nv_mov_b32 v{vT+1}, s{sT}')
    a.e(f'global_store_dword v{vT}, v{vT+1}, s[{sDBG}:{sDBG+1}] sc1'); a.vm_issued -= 1
    a.e(f'{ln}:')

def setup2(a, t):
    a.e(f's_mov_b32 s{sONES}, 0x3f803f80')
    a.e(f's_sub_u32 s{sT+2}, 32, s{sRB}\ns_cmp_eq_u32 s{sRB}, 0\ns_cselect_b32 s{sT+2}, 16, s{sT+2}')
    a.e(f's_cmp_eq_u32 s{sZ}, 1\ns_cselect_b32 s{sT1}, s{sT+2}, s{sRB}\ns_mov_b32 s{sC}, s{sC8}')
    a.e(f's_mul_i32 s{sTAU}, s{sW}, 14\ns_cmp_eq_u32 s{sW}, 3\ns_cselect_b32 s{sTAU}, 41, s{sTAU}')
    a.e(f'v_and_b32 v{vT}, 31, v{vL}\nv_lshrrev_b32 v{vT+1}, 5, v{vL}')
    a.e(f'v_bfe_u32 v{vT+2}, v{vL}, 1, 3\nv_xor_b32 v{vT+2}, v{vT+2}, v{vT+1}')
    a.e(f'v_lshlrev_b32 v{vT+3}, 7, v{vT}\nv_add_u32 v{vT+3}, s{sMA}, v{vT+3}\nv_lshl_add_u32 v{vAR[0]}, v{vT+2}, 4, v{vT+3}')
    for s in range(1, 4): a.e(f'v_xor_b32 v{vAR[s]}, {s<<5}, v{vAR[0]}')
    a.e(f'v_bfe_u32 v{vT+4}, v{vL}, 2, 2\nv_lshl_add_u32 v{vT+2}, v{vT+1}, 3, v{vT+4}\nv_mul_u32_u24 v{vT+2}, {t.pitch}, v{vT+2}')
    a.e(f'v_bfe_u32 v{vT+3}, v{vL}, 4, 1\nv_lshl_add_u32 v{vT+2}, v{vT+3}, 5, v{vT+2}')
    a.e(f'v_and_b32 v{vT+3}, 3, v{vL}\nv_lshl_add_u32 v{vT+2}, v{vT+3}, 3, v{vT+2}\nv_add_u32 v{vT+2}, {BBASE}, v{vT+2}')
    if t.nG == 2: a.e(f'v_lshrrev_b32 v{vT+4}, 1, v{vT+4}')
    for i in range(t.nG):
        a.e(f's_add_u32 s{sT}, s{sW}, {i}\ns_and_b32 s{sT}, s{sT}, {t.nG-1}')
        a.e(f'v_xor_b32 v{vT+3}, s{sT}, v{vT+4}\nv_lshl_add_u32 v{vBR[i]}, v{vT+3}, 6, v{vT+2}')
        a.e(f's_mul_i32 s{sH[i]}, s{sROW}, 54\ns_add_u32 s{sH[i]}, s{sH[i]}, s{sG0}\ns_add_u32 s{sH[i]}, s{sH[i]}, s{sT}\ns_lshl_b32 s{sH[i]}, s{sH[i]}, 11')
    a.e(f's_lshl_b32 s{sFL}, s2, 2\ns_add_u32 s{sFL}, s{sFL}, s{sW}\ns_lshl_b32 s{sFL}, s{sFL}, 7\ns_add_u32 s{sFL}, s{sFL}, {F_OFF}')
    a.e(f'v_and_b32 v{vT}, 15, v{vL}\nv_bfe_u32 v{vT+1}, v{vL}, 4, 1\nv_mov_b32 v{vT+2}, s{sONES}\nv_cmp_eq_u32 vcc, v{vT}, v{vT+1}\nv_cndmask_b32 v{vT+2}, 0, v{vT+2}, vcc')
    for k in range(4): a.e(f'v_accvgpr_write_b32 a{192+k}, v{vT+2}')
    a.e(f'v_lshlrev_b32 v{vL16}, 4, v{vL}')
    a.e(f'v_lshlrev_b32 v{vHO}, 10, v{vT+1}\nv_lshrrev_b32 v{vT+1}, 5, v{vL}\nv_lshl_add_u32 v{vHO}, v{vT+1}, 8, v{vHO}\nv_lshl_add_u32 v{vHO}, v{vT}, 4, v{vHO}')

vSG = 244
def gen_D(a, t, tmp):
    q = tmp
    a.e(f'v_and_b32 v{q}, 31, v{vL}\nv_lshrrev_b32 v{q+1}, 5, v{vL}\nv_lshlrev_b32 v{q+1}, 3, v{q+1}\nv_and_b32 v{q+3}, 1, v{vL}')
    a.e(f'v_cmp_eq_u32 vcc, 0, v{q+3}\nv_cndmask_b32 v{q+2}, 0, 0.5, vcc\nv_cndmask_b32 v{vSG}, 1.0, -1.0, vcc')
    a.e(f's_mul_i32 s{sT+1}, s{sW}, {5*2048}\ns_add_u32 s{sT+1}, s{sT+1}, {t.DREG}\nv_add_u32 v{q+3}, s{sT+1}, v{vL16}')
    a.e(f's_lshl_b32 s{sT}, s{sDT}, 4\ns_add_u32 s{sT}, s{sT}, 1\nv_add_u32 v{q+4}, s{sT}, v{q}\nv_cvt_f32_u32 v{q+4}, v{q+4}\nv_mul_f32 v{q+4}, {fhex(1/640)}, v{q+4}')
    for k5 in range(5):
        a.e(f's_mul_i32 s{sT}, s{sW}, 5\ns_add_u32 s{sT}, s{sT}, {k5}\ns_and_b32 s{sT+2}, s{sT}, 1\ns_lshr_b32 s{sT}, s{sT}, 1\ns_lshl_b32 s{sT}, s{sT}, 5\ns_add_u32 s{sT}, s{sT}, s{sT+2}')
        o = q + 8
        a.e(f'v_add_u32 v{q+6}, s{sT}, v{q+1}\nv_cvt_f32_u32 v{q+6}, v{q+6}\nv_fma_f32 v{o}, v{q+6}, v{q+4}, v{q+2}')
        for i in range(1, 8): a.e(f'v_fmamk_f32 v{o+i}, v{q+4}, {fhex(float(16*(i>>2) + 2*(i&3)))}, v{o}')
        for i in range(8): a.e(f'v_cos_f32 v{o+8+i}, v{o+i}\nv_sin_f32 v{o+i}, v{o+i}')
        for ip in range(4): a.e(cvtpk(o+8+ip, o+8+2*ip, o+9+2*ip))
        a.lg(f'ds_write_b128 v{q+3}, v[{o+8}:{o+11}] offset:{(k5*2)*1024}')
        for ip in range(4): a.e(cvtpk(o+16+ip, o+2*ip, o+1+2*ip))
        a.lg(f'ds_write_b128 v{q+3}, v[{o+16}:{o+19}] offset:{(k5*2+1)*1024}')

import math
def bf16(x):
    u = struct.unpack('<I', struct.pack('<f', x))[0]
    return ((u + 0x7fff + ((u >> 16) & 1)) >> 16) & 0xffff
def F_table():
    w = []
    for fn in (math.cos, math.sin, lambda x: -math.sin(x)):
        for f in range(2):
            for l in range(64):
                t1 = l & 31; hi = l >> 5
                v = [bf16(round(fn(2*math.pi*((t1*(16*f + 8*(i >> 2) + 4*hi + (i & 3))) % 32)/32), 12)) for i in range(8)]
                w += [v[2*k] | (v[2*k+1] << 16) for k in range(4)]
    return w
def load_F():
    return [f'global_load_dwordx4 {aF(k)}, v{vL16}, s[82:83] offset:{1024*k}' for k in range(4)] + ['s_add_u32 s82, s82, 4096\ns_addc_u32 s83, s83, 0'] + [f'global_load_dwordx4 {aF(4+k)}, v{vL16}, s[82:83] offset:{1024*k}' for k in range(2)]

def rot_ids(a):
    for j in range(4):
        a.e(f's_add_u32 s{sT}, s{sW}, {1+j}\ns_and_b32 s{sT+1}, s{sT}, 1\ns_bfe_u32 s{sT}, s{sT}, 0x10001')
        a.e(f's_lshl_b32 s{sT}, s{sT}, 5\ns_add_u32 s{sT}, s{sT}, s{sT1}\ns_lshl_b32 s{sT+1}, s{sT+1}, 10\ns_add_u32 s{sHB[j]}, s{sT}, s{sT+1}')
def gen_TW(a, t, sT=sT):
    a.e(f'v_and_b32 v{t}, 15, v{vL}\nv_lshrrev_b32 v{t+1}, 4, v{vL}\ns_lshl_b32 s{sT}, s{sW}, 2\nv_add_u32 v{t+1}, s{sT}, v{t+1}')
    a.e(f'v_sub_u32 v{t+2}, 32, v{t+1}\nv_cmp_eq_u32 vcc, 0, v{t+1}\nv_cndmask_b32 v{t+2}, v{t+2}, 16, vcc')
    a.e(f's_mov_b32 s{sT+1}, 0x3a000000')
    a.e(f's_cmp_ge_u32 s{sC}, 4\ns_cselect_b32 s{sT+1}, s{sT+1}, 0xba000000')
    a.e(f'v_cvt_f32_u32 v{t+1}, v{t+1}\nv_cvt_f32_u32 v{t+2}, v{t+2}\nv_add_f32 v{t+3}, {fhex(32.0)}, v{t+1}\nv_add_f32 v{t+4}, {fhex(32.0)}, v{t+2}')
    s2r = [t+1, t+3, t+2, t+4]
    a.e(f'v_lshlrev_b32 v{t}, 6, v{t}')
    for j in range(4):
        a.e(f'v_add_u32 v{t+5}, s{sHB[j]}, v{t}\nv_cvt_f32_u32 v{t+5}, v{t+5}\nv_mul_f32 v{t+5}, s{sT+1}, v{t+5}')
        for w in range(4): a.e(f'v_mul_f32 v{t+6+w}, v{t+5}, v{s2r[w]}')
        for w in range(4): a.e(f'v_cos_f32 v{t+10+w}, v{t+6+w}\nv_sin_f32 v{t+6+w}, v{t+6+w}')
        for w in range(4): a.e(cvtpk(t+6+w, t+10+w, t+6+w))
        for w in range(4): a.e(f'v_accvgpr_write_b32 a{aTW+4*j+w}, v{t+6+w}')

def check_loop(a, load_text, vval, nl, cnt):
    ok, lp = label('ok'), label('lp')
    if nl < 64: a.e(f's_mov_b32 exec_lo, {hex(((1<<nl)-1)&0xffffffff)}\ns_mov_b32 exec_hi, {hex(((1<<nl)-1)>>32)}')
    a.e(f'v_cmp_ne_u32 vcc, s{sTAG}, v{vval}\ns_mov_b32 s{cnt}, 0\ns_cbranch_vccz {ok}')
    a.e(f'{lp}:\ns_sleep {opt("slp", 1)}')
    a.e(load_text); a.vm_issued -= 1
    a.e(f's_waitcnt vmcnt(0)\nv_cmp_ne_u32 vcc, s{sTAG}, v{vval}\ns_add_u32 s{cnt}, s{cnt}, 1\ns_cmp_gt_u32 s{cnt}, 100000\ns_cbranch_scc1 {ok}\ns_cbranch_vccnz {lp}')
    a.e(f'{ok}:')
    if nl < 64: a.e('s_mov_b64 exec, -1')

def nonce_check(a, tok):
    ok, lp = label('nok'), label('nlp')
    a.wait(vm=tok)
    a.e(f'v_readfirstlane_b32 s{sTAG}, v{vNON}\ns_mov_b32 s{sPC}, 0\ns_cmp_lg_u32 s{sTAG}, 0\ns_cbranch_scc1 {ok}')
    a.e(f'{lp}:\nv_mov_b32 v{vNON}, 0')
    a.e(f'global_load_dword v{vNON}, v{vNON}, s[{sDBG}:{sDBG+1}] sc1'); a.vm_issued -= 1
    a.e(f's_waitcnt vmcnt(0)\nv_readfirstlane_b32 s{sTAG}, v{vNON}\ns_add_u32 s{sPC}, s{sPC}, 1\ns_cmp_gt_u32 s{sPC}, 100000\ns_cbranch_scc1 {ok}')
    a.e(f's_cmp_eq_u32 s{sTAG}, 0\ns_cbranch_scc1 {lp}\n{ok}:')

SLOW = []
def adapt(a, text):
    return a.vm(text + ' sc1')
def set_flag_h(a, vt):
    a.e(f'v_mov_b32 v{vt}, 0\nv_mov_b32 v{vt+1}, s{sTAG}\ns_mov_b64 exec, 1')
    adapt(a, f'buffer_store_dword v{vt+1}, v{vt}, {srd(SWS)}, s{sFH} offen')
    a.e('s_mov_b64 exec, -1')
def set_flag(a, word, vt):
    a.e(f'v_mov_b32 v{vt}, {4*word}\nv_mov_b32 v{vt+1}, s{sTAG}\ns_mov_b64 exec, 1')
    a.vm(f'buffer_store_dword v{vt+1}, v{vt}, {srd(SWS)}, s{sFL} offen sc1')
    a.e('s_mov_b64 exec, -1')

def w2_load_ops(slot, st, cts=range(5)):
    ops = []
    for ct in cts:
        def op(a, ct=ct):
            vo = st['vL16d'] if slot == 13 else st.get('vW', vL16)
            need = 5120*slot + (4096 if ct == 4 else 0)
            if st.get('w2cur') != need: a.e(f's_add_u32 s{sW2o}, s{sUS}, {need}'); st['w2cur'] = need
            st['w2'][(slot, ct)] = a.vm(f'buffer_load_dwordx4 {W2(slot,ct)}, v{vo}, {srd(SWS)}, s{sW2o} offen offset:{(1024*ct)%4096} sc1')
        ops.append(op)
    return ops

vDS = 195
def P2(d, h): return f'v[{128+32*d+16*h}:{143+32*d+16*h}]'
def PE(p, par): b = 228 + 8*(p & 1) + 4*par; return b
def pass1(a, t, st):
    nG = t.nG; NK = 40 if nG == 4 else 42
    def dinfo(ks): return (ks & 1, (ks - 2) >> 1) if (nG == 2 and ks >= 2) else None
    def rdW(ks, i):
        c, s = divmod(ks, 4); o = []
        if i < nG:
            if ks >= 40: return []
            for h in range(2):
                o.append(lambda a, h=h: st['w'].__setitem__((ks, i), a.lg(f'ds_read_b64_tr_b16 {WB(ks&1,i,h)}, v{vBR[i]} offset:{(c%4)*t.bslot + s*16*t.pitch + h*4*t.pitch}')))
        elif dinfo(ks):
            d, p = dinfo(ks)
            o.append(lambda a: st['w'].__setitem__((ks, i), a.lg(f'ds_read_b128 {WB(ks&1,i)}, v{vDS} offset:{(((p%10)*2 + i-2)*2 + d)*1024}')))
        return o
    def rdA(c, s):
        return f'ds_read_b128 {X(4*c+s)}, v{vAR[s]} offset:{ARING + (c%4)*16384}'
    st['w'] = {}
    if nG == 2: a.e(f'v_add_u32 v{vDS}, {t.DREG}, v{vL16}\ns_mov_b32 s{sE+2}, 0x05040100\ns_mov_b32 s{sE+3}, 0x07060302')
    a.wait(vm=st['dma'][0], lg=a.lg_issued)
    a.e('s_barrier')
    stamp(a, 2)
    a.e(rdA(0, 0))
    for i in range(4): run(a, rdW(0, i))
    for s in range(1, 4): a.e(rdA(0, s))
    S = Sched(); first = {}
    for ks in range(NK):
        c, s = divmod(ks, 4); buf = ks & 1
        for i in range(4):
            pre = []
            if i == 0 and s == 3 and c < 9:
                pre.append(lambda a, c=c: (a.wait(vm=st['dma'][c+1]), a.e('s_barrier')))
            if i in (0, 2):
                pre.append(lambda a, ks=ks, i=i: a.wait(lg=st['w'][(ks, i+1)]) if (ks, i+1) in st['w'] else None)
            m = None
            if i < nG:
                if ks < 40: m = f'v_mfma_f32_32x32x16_bf16 {ACC1(i)}, {WB(buf,i)}, {X(ks)}, {"0" if ks == 0 else ACC1(i)}'
            elif dinfo(ks):
                d, p = dinfo(ks); b = PE(p, i-2)
                m = f'v_mfma_f32_32x32x16_bf16 {P2(d, i-2)}, v[{b}:{b+3}], {WB(buf,i)}, {"0" if p == 0 else P2(d, i-2)}'
            idx = S.add(m, pre)
            if i == 0: first[ks] = idx
            if i == 0 and ks < 37: S.put(idx, [f'v_mfma_f32_16x16x32_bf16 {aCS}, {aSEL}, {WB(buf,0)}, {"0" if ks == 0 else aCS}'])
        if ks < NK - 1:
            rd = [rdA(c+1, 0)] if (s == 3 and c < 9) else []
            k = len(rd)
            for i in range(4): rd += rdW(ks+1, i)
            if nG == 4: S.put(first[ks], rd[:k+3]); S.put(first[ks]+1, rd[k+3:7]); S.put(first[ks]+2, rd[7:])
            else: S.put(first[ks], rd[:k+3]); S.put(first[ks]+1, rd[k+3:])
            if s == 3 and c < 9: S.put(first[ks]+3, [rdA(c+1, 1)])
            if s == 0 and 0 < c < 10: S.put(first[ks]+3, [rdA(c, 2), rdA(c, 3)])
        if nG == 2 and ks & 1 and ks < 40:
            p = ks >> 1; xa = 196 + 4*((ks-1) % 8); xb = 196 + 4*(ks % 8)
            pm = []
            for par in range(2):
                for k, src in enumerate((xa, xa+2, xb, xb+2)): pm.append(f'v_perm_b32 v{PE(p,par)+k}, v{src+1}, v{src}, s{sE+2+par}')
            S.put(first[ks]+2, pm[:4]); S.put(first[ks]+3, pm[4:])
    if nG == 2:
        for d in range(2): S.spread([f'v_mul_f32 v{128+32*d+k}, v{vSG}, v{128+32*d+k}' for k in range(32)], first[21+d]+1, first[22+d]+1)
    exb = 160 if nG == 4 else 84
    ex = []
    for n in range(3):
        for h in range(2):
            ex.append(lambda a, n=n, h=h: st.__setitem__('ex', a.lg(f'ds_read_b64_tr_b16 v[{exb+4*n+2*h}:{exb+1+4*n+2*h}], v{vBR[0]} offset:{(9%4)*t.bslot + (n+1)*16*t.pitch + h*4*t.pitch}')))
    mm = [lambda a: a.wait(lg=st['ex'])] + [f'v_mfma_f32_16x16x32_bf16 {aCS}, {aSEL}, v[{exb+4*n}:{exb+3+4*n}], {aCS}' for n in range(3)]
    S.put(first[35]+3, ex[:3]); S.put(first[36]+3, ex[3:]); S.put(first[37], mm); st['cs_slot'] = first[37] + 3; st['bar_slot'] = first[38] + 2
    gaps = []
    for ks in range(40):
        gaps += [(ks, first[ks]), (ks, first[ks]+2)] + ([(ks, first[ks]+3)] if ks < opt('ncu', 6) else [])
    gi = 0
    for c in range(st['next_chunk'], 10):
        ops = dma_ops(t, c, st)
        A = ops[1:5]; B = ops[6:-1]
        eA = (c-3)*4 if c >= 4 else 0
        eB = (c-2)*4 - 1 if c >= 4 else 0
        lo = max(0, (c - opt('la', 2) - 1)*4 + 1)
        for k, op in enumerate(A + B):
            e = max(eA if k < 4 else eB, lo)
            while gaps[gi][0] < e: gi += 1
            pre = [ops[0]] if k == 0 else ([ops[5]] if k == 4 else [])
            post = [ops[-1]] if k == 3 + len(B) else []
            g = gaps[gi][1]
            if pre: S.put(g - 1 if g > 0 else g, pre)
            if k == 0: st.setdefault('grp', {})[c] = (g - 1 if g > 0 else g, pre[0], gaps[gi][0])
            S.put(g, [op] + post); gi += 1
        assert gaps[gi-1][0] < c*4 - 1, (c, gaps[gi-1])
    return S, first

AUGW = None
def h_aug_x(tmp):
    p, q2 = tmp+4, tmp+5
    o = [cvtpk(p, vNM, vSDV), f'v_lshlrev_b32 v{tmp+6}, 16, v{p}', f'v_and_b32 v{tmp+7}, 0xffff0000, v{p}',
         f'v_sub_f32 v{tmp+6}, v{vNM}, v{tmp+6}', f'v_sub_f32 v{tmp+7}, v{vSDV}, v{tmp+7}', cvtpk(q2, tmp+6, tmp+7)]
    o += [f'v_mov_b32 v{tmp+k}, 0' for k in range(4)]
    o += [f's_mov_b32 s{sT+3}, 0x05040100\ns_mov_b32 exec_hi, 0\nv_perm_b32 v{tmp}, v{q2}, v{p}, s{sT+3}\nv_mov_b32 v{tmp+1}, v{p}\nv_lshrrev_b32 v{tmp+2}, 16, v{q2}\ns_mov_b32 exec_hi, -1']
    return o
def h_aug_w(st, i, tmp, vtb):
    b = AUGW[i]
    rd = [lambda a: st['tb'].__setitem__(i, a.lg(f'ds_read2_b32 v[{b+4}:{b+5}], v{vtb} offset0:0 offset1:128'))]
    mk = [lambda a: a.wait(lg=st['tb'][i]), cvtpk(b, b+4, b+4), cvtpk(b+2, b+5, b+5), f'v_and_b32 v{b+1}, 0xffff0000, v{b}', f'v_mov_b32 v{b+3}, 0',
          f'v_sub_f32 v{b+1}, v{b+4}, v{b+1}', cvtpk(b+1, b+1, b+5)]
    mf = [f'v_mfma_f32_32x32x16_bf16 {ACC1(i)}, v[{b}:{b+3}], v[{tmp}:{tmp+3}], {ACC1(i)}']
    return rd, mk, mf
def h_fin(st, i, u):
    acc = 32 + 16*i + 8*u; o = []
    for k in range(8): o.append(f'v_max_f32 v{acc+k}, 0, v{acc+k}')
    for k in range(8): o.append(f'v_mul_f32 v{acc+k}, v{vR}, v{acc+k}')
    for k in range(8): o.append(f'v_mul_f32 v{acc+k}, v{acc+k}, v{acc+k}')
    for k in range(4): o.append(cvtpk(acc+k, acc+2*k, acc+2*k+1))
    if opt('nohst', 0): o.append(lambda a: st.__setitem__('hst', a.vm_issued))
    else: o.append(lambda a: st.__setitem__('hst', adapt(a, f'buffer_store_dwordx4 v[{acc}:{acc+3}], v{vHO}, {srd(SWS)}, s{sH[i]} offen offset:{512*u}')))
    return o

class Rec:
    def __init__(self): self.ops = []; self.tok = {}
    def e(self, text):
        ls = L(text); i = 0
        while i < len(ls):
            j = i + 1
            if ls[i].startswith('s_cmp') or ls[i].startswith('s_bitcmp') or ls[i].startswith('v_cmp'):
                while j < len(ls) and not (ls[j].startswith('s_cselect') or ls[j].startswith('s_cbranch') or ls[j].startswith('v_cndmask')): j += 1
                while j < len(ls) and (ls[j].startswith('s_cselect') or ls[j].startswith('s_cbranch') or ls[j].startswith('v_cndmask')): j += 1
            self.ops.append('\n'.join(ls[i:j])); i = j
    def lg(self, text): self.ops.append(text)
    def vm(self, text, key='t'):
        self.ops.append(lambda a: self.tok.__setitem__(key, a.vm(text)))
def merge(main, other):
    out = []; n, m = len(main), len(other); k = 0
    for i, op in enumerate(main):
        out.append(op)
        while k < m and (k + 1) * n <= (i + 1) * m + m - 1 and k * n <= i * m: out.append(other[k]); k += 1
    return out + other[k:]

def touch_ops(t, lo, hi, q=188):
    n = hi - lo
    o = [f'v_mov_b32 v{q+2}, {OOB}']
    o += L(f'v_and_b32 v{q}, 3, v{vL}\ns_lshl_b32 s{sPC}, s{sC8}, 2\nv_add_u32 v{q}, s{sPC}, v{q}\nv_mul_u32_u24 v{q}, 640, v{q}\nv_lshrrev_b32 v{q+1}, 2, v{vL}\nv_add3_u32 v{q}, v{q}, v{q+1}, {lo}\nv_lshlrev_b32 v{q}, 7, v{q}')
    o += [f'v_cmp_gt_u32 vcc, {4*n}, v{vL}\nv_cndmask_b32 v{q}, v{q+2}, v{q}, vcc', f's_mul_i32 s{sPC}, s{sROW}, 1280']
    o += [f'buffer_load_dword v{vPF}, v{q}, {srd(SX)}, s{sPC} offen {opt("ntx", "")}']
    if t.nG == 4: o += L(f'v_lshrrev_b32 v{q}, 1, v{vL}\nv_and_b32 v{q+1}, 1, v{vL}')
    else: o += L(f'v_mov_b32 v{q}, v{vL}\nv_mov_b32 v{q+1}, 0')
    o += L(f'v_lshlrev_b32 v{q}, 4, v{q}\ns_and_b32 s{sPC}, s{sRB}, 3\ns_lshl_b32 s{sPC}, s{sPC}, 2\ns_add_u32 s{sPC}, s{sPC}, s{sW}\ns_add_u32 s{sPC}, s{sPC}, {64*lo}')
    o += L(f'v_add_u32 v{q}, s{sPC}, v{q}\nv_mul_u32_u24 v{q}, 0xd80, v{q}\nv_lshl_add_u32 v{q}, v{q+1}, 7, v{q}\ns_lshl_b32 s{sPC}, s{sG0}, 6')
    o += [f'v_cmp_gt_u32 vcc, {(8 if t.nG == 4 else 4)*n}, v{vL}\nv_cndmask_b32 v{q}, v{q+2}, v{q}, vcc']
    o += [f'buffer_load_dword v{vPF}, v{q}, {srd(SW1)}, s{sPC} offen {opt("ntw", "")}']
    assert n <= 8
    return o

vTX, vTW = 193, 194; sTX, sTW = 52, 63
def roll_setup(t, n):
    q = 188
    o = L(f'v_mov_b32 v{q+2}, {OOB}\nv_and_b32 v{q+3}, 3, v{vL}\nv_lshrrev_b32 v{q+1}, 2, v{vL}\ns_mul_i32 s{sPC}, s{sZ}, 6\ns_add_u32 s{sPC}, s{sPC}, s{sC8}\ns_mul_i32 s{sPC}, s{sPC}, 3')
    if opt('rx', 0):
        o += L(f'v_add_u32 v{q}, s{sPC}, v{q+3}\nv_min_u32 v{q}, 31, v{q}\nv_mul_u32_u24 v{q}, 640, v{q}\nv_add_lshl_u32 v{q}, v{q}, v{q+1}, 7')
        o += [f'v_cmp_gt_u32 vcc, {4*n}, v{vL}\nv_cndmask_b32 v{q}, v{q+2}, v{q}, vcc', f'v_cmp_gt_u32 vcc, 3, v{q+3}\nv_cndmask_b32 v{vTX}, v{q+2}, v{q}, vcc', f's_mul_i32 s{sTX}, s{sROW}, 1280']
    o += L(f's_mul_i32 s{sTW}, s{sZ}, 12\ns_add_u32 s{sTW}, s{sTW}, s{sC8}\ns_add_u32 s{sTW}, s{sTW}, 12\ns_lshl_b32 s{sTW}, s{sTW}, 7\ns_add_u32 s{sPC}, s{sZ}, 2')
    o += [f's_cmp_lt_u32 s{sC8}, s{sPC}\ns_cselect_b32 s{sTW}, s{sTW}, {OOB}', f'v_mov_b32 v{q}, s{sTW}', f's_lshl_b32 s{sPC}, s{sG0}, 6', f'v_lshl_add_u32 v{vTW}, v{q+3}, 7, s{sPC}']
    o += [f'v_cmp_eq_u32 vcc, 2, v{q+3}\nv_cndmask_b32 v{vTW}, v{vTW}, v{q}, vcc', f'v_cmp_eq_u32 vcc, 3, v{q+3}\nv_cndmask_b32 v{vTW}, v{vTW}, v{q+2}, vcc']
    o += L(f's_lshl_b32 s{sPC}, s{sRB}, 2\ns_add_u32 s{sPC}, s{sPC}, s{sW}\nv_lshl_add_u32 v{q}, v{q+1}, 6, s{sPC}\nv_mul_u32_u24 v{q}, 0xd80, v{q}\nv_add_u32 v{vTW}, v{vTW}, v{q}')
    o += [f'v_cmp_gt_u32 vcc, {4*n}, v{vL}\nv_cndmask_b32 v{vTW}, v{q+2}, v{vTW}, vcc', f's_mov_b32 s{sTW}, 0']
    return o
def roll(st, lo):
    def op1(a):
        d = lo - st.get('roll', 0); st['roll'] = lo
        if d: a.e((f's_add_u32 s{sTX}, s{sTX}, {128*d}\n' if opt('rx', 0) else '') + f's_add_u32 s{sTW}, s{sTW}, {64*3456*d}')
        if opt('rx', 0): a.vm(f'buffer_load_dword v{vPF}, v{vTX}, {srd(SX)}, s{sTX} offen {opt("ntx", "")}')
    return [op1, f'buffer_load_dword v{vPF}, v{vTW}, {srd(SW1)}, s{sTW} offen {opt("ntw", "")}']

def build_type(a, t):
    st = {'dma': {}, 'w2': {}, 'tb': {}}
    nG, nD = t.nG, t.nD
    XV[0] = (nG == 2)
    rs = [x.split('@') for x in opt('rs', '1@s0').split(',') if x]
    at = lambda p: [o for c_, p_ in rs if p_ == p for o in roll(st, int(c_))]
    prologue_t(a, t, st)
    if nG == 4: run(a, at('s0'))
    run(a, dma_ops(t, 0, st))
    stamp(a, 'p2')
    if nG == 4:
        stats_setup(a)
        if opt('se', 1): run(a, stats_loads(st))
    a.e(mk_srd(SW2, 72, 1728*1280))
    nonce_pub(a)
    if opt('tlb', 21):
        sh = opt('tlb', 21)
        a.e(f'v_lshl_add_u32 v{vT}, v{vL}, 2, s{sW}\nv_lshlrev_b32 v{vT}, {sh}, v{vT}\ns_mov_b64 exec, {hex((1 << opt("tn", 2)) - 1)}')
        a.vm(f'buffer_load_dword v{vPF}, v{vT}, {srd(SWS)}, 0 offen sc1')
        a.e('s_mov_b64 exec, 3')
        a.vm(f'buffer_load_dword v{vPF}, v{vT}, {srd(SOUT)}, 0 offen sc1')
        a.e('s_mov_b64 exec, -1')
    stamp(a, 'p3')
    r = Rec()
    setup2(r, t)
    if nG == 4: aux_setup(r); aux_setup2(r)
    if nG == 2: gen_D(r, t, 96)
    rot_ids(r)
    if opt('twR', 0) if nG == 4 else opt('twS', 0): gen_TW(r, 96)
    main = r.ops
    vSA, vFA, vFV = vT+3, vT+4, vT+5
    st['vL16d'] = 192
    pre = L(f's_lshl_b32 s{sT}, s{sRB}, 2\ns_add_u32 s{sT}, s{sT}, s{sW}\ns_lshl_b32 s{sT}, s{sT}, 9\ns_add_u32 s{sT}, s{sT}, {ST_OFF}')
    pre += L(f'v_and_b32 v{vSA}, 31, v{vL}\nv_lshl_add_u32 v{vSA}, v{vSA}, 4, s{sT}')
    pre += L(f'v_add_u32 v{vFA}, s{sTAU}, v{vL}\nv_min_u32 v{vFA}, 53, v{vFA}')
    pre += L(f's_lshl_b32 s{sT}, s{sC}, 7\ns_add_u32 s{sT}, s{sT}, {PF_OFF}\nv_lshlrev_b32 v{vFA}, 10, v{vFA}\nv_add_u32 v{vFA}, s{sT}, v{vFA}')
    pre += L(f's_mul_i32 s{sUS}, s{sC}, 54\ns_add_u32 s{sUS}, s{sUS}, s{sTAU}\ns_mul_i32 s{sUS}, s{sUS}, 5120\ns_add_u32 s{sUS}, s{sUS}, {P_OFF}')
    pre += [f's_cmp_ge_u32 s{sW}, 2\ns_cselect_b32 s{sT}, {OOB}, 0', f'v_add_u32 v192, s{sT}, v{vL16}']
    vTB = [4, 5, 6, 7] if nG == 4 else [14, 15]; vRT = 3
    prep = L(f's_lshl_b32 s{sE+1}, s{sW}, 7\ns_add_u32 s{sE+1}, s{sE+1}, {TABR}\nv_and_b32 v{vT+6}, 31, v{vL}\nv_lshl_add_u32 v{vRT}, v{vT+6}, 2, s{sE+1}')
    for i in range(nG):
        prep += L(f's_add_u32 s{sE}, s{sW}, {i}\ns_and_b32 s{sE}, s{sE}, {nG-1}\ns_lshl_b32 s{sE}, s{sE}, 7\ns_add_u32 s{sE}, s{sE}, {TABC}\nv_lshl_add_u32 v{vTB[i]}, v{vT+6}, 2, s{sE}')
    prep += [f'v_lshrrev_b32 v{vT+6}, 5, v{vL}']
    nonl = [f'v_mov_b32 v{vNON}, 0', lambda a: st.__setitem__('non', a.vm(f'global_load_dword v{vNON}, v{vNON}, s[{sDBG}:{sDBG+1}] sc1'))]
    st['next_chunk'] = 2
    main = main + pre
    if nG == 4:
        n = len(main); c2 = n * opt('c2', 40) // 100; c3 = n * opt('c3', 50) // 100
        run(a, at('s1') + main[:c2] + at('s2') + main[c2:c3]); stamp(a, 'p4')
        run(a, merge(main[c3:], dma_ops(t, 1, st)) + nonl)
        sp = stats_proc(st); ps = pack_stores(st)
    else:
        n = len(main); c3 = n * opt('s3', 30) // 100
        run(a, main[:c3]); stamp(a, 'p4')
        run(a, merge(main[c3:], dma_ops(t, 1, st)) + nonl)
        tw2 = L(f's_mul_i32 s{sT}, s{sRB}, 10\ns_add_u32 s{sT}, s{sT}, s{sDT}\ns_lshl_b32 s{sT}, s{sT}, 1\ns_add_u32 s{sT}, s{sT}, s{sW}\ns_mul_i32 s{sT}, s{sT}, {54*128}\nv_lshlrev_b32 v64, 7, v{vL}')
        tw2 += [f's_mov_b32 exec_hi, 0x3fffff\nbuffer_load_dword v{vPF}, v64, {srd(SW2)}, s{sT} offen\ns_mov_b32 exec_hi, -1']
        if opt('tw2', 2) == 0: run(a, tw2)
    stamp(a, 1)
    S, first = pass1(a, t, st)
    NS = 4
    l = lambda ks: first[ks] + 3
    b1tab = L(f'v_lshlrev_b32 v{vT}, 16, v{vT+7}\nv_and_b32 v{vT+1}, 0xffff0000, v{vT+7}\nv_lshlrev_b32 v{vT+2}, 3, v{vL}\nv_add_u32 v{vT+2}, {TABB}, v{vT+2}\nds_write_b64 v{vT+2}, v[{vT}:{vT+1}]')
    S.spread(b1tab, first[3], l(3))
    S.put(l(opt('kn', 10)), [lambda a: nonce_check(a, st['non'])])
    if nG == 2 and opt('tw2', 2) > 0: S.put(l(opt('tw2', 2)), [lambda a: run(a, tw2)])
    if nG == 4:
        g_ = st['grp'][opt('ag', 3)]
        fl = S.slots[g_[0]]['fill']; fl.insert(fl.index(g_[1]), lambda a: run(a, pack_dma(st)))
        ka_ = g_[2]
        if not opt('se', 1):
            for k_, op_ in enumerate(stats_loads(st)): S.put(first[ka_ + k_] + 1, [op_])
        kb_ = opt('kb', 5)
        S.spread(pack_reads(st), first[kb_], l(kb_+1))
        if opt('dn', 1):
            S.put(first[kb_+1] + 3, [ps[0]])
            for k_, op_ in enumerate(ps[1:]): S.put(first[kb_+2+k_//2] + 1 + 2*(k_ & 1), [op_])
            e_ = kb_ + 4
        else:
            for k_, op_ in enumerate(ps): S.put(first[kb_+2+k_] + 1, [op_])
            e_ = kb_ + 6
        kd_ = opt('kd', 1) if opt('se', 1) else kb_ + 2
        S.put(l(kd_), sp[:5] + [lambda a: run(a, sp[5:25])]); S.spread(sp[25:], first[kd_+1], l(kd_+2))
        assert opt('kf', kb_ + 5) >= e_ and opt('kf', kb_ + 5) >= opt('kn', 10)
        S.put(l(opt('kf', kb_ + 5)), [aux_publish(st)])
        for c_, p_ in rs:
            if p_[0] != 's': S.put(l(int(p_)), roll(st, int(c_)))
    pfl = f'buffer_load_dword v{vFV}, v{vFA}, {srd(SWS)}, 0 offen sc1'
    stl = f'buffer_load_dwordx4 v[{vST}:{vST+3}], v{vSA}, {srd(SWS)}, 0 offen sc1'
    if nG == 2: S.spread(load_F(), l(13), l(16))
    sf = '' if nG == 4 else 'S'
    kq = opt('kq' + sf, 27 if nG == 4 else 30); kp = kq - 3
    early = opt('early', 1)
    S.put(l(opt('ks', 31)), [lambda a: st.__setitem__('stl', a.vm(stl))])
    S.put(l(kp if early else 38), [lambda a: st.__setitem__('pfl', a.vm(pfl))])
    pchk = lambda a: (a.wait(vm=st['pfl']), check_loop(a, pfl, vFV, 14, sPC), stamp(a, 'pc'))
    S.put(l(kq), [pchk if early else (lambda a: a.wait(vm=st['stl']))])
    allw = []
    for s_ in (range(14) if nG == 4 else list(range(3, 14)) + [0, 1, 2]): allw += w2_load_ops(s_, st)
    st['twq'] = []
    if opt('touchw', 0):
        nl_ = opt('tl', 16)
        tw = L(f's_bfe_u32 s{sT}, s2, 0x20003\nv_lshl_add_u32 v{vFA}, v{vL}, 2, s{sT}\nv_lshlrev_b32 v{vFA}, 7, v{vFA}\ns_mov_b32 s{sTX}, s{sUS}')
        S.put(l(kq), tw)
        nb_ = -(-130 // nl_)
        for j in range(nb_):
            n_ = min(nl_, 130 - j*nl_)
            op = f's_mov_b64 exec, {hex((1 << n_) - 1)}\nbuffer_load_dword v{vPF}, v{vFA}, {srd(SWS)}, s{sTX} offen sc1\ns_mov_b64 exec, -1\ns_add_u32 s{sTX}, s{sTX}, {nl_*512}'
            k_ = kq + 1 + opt('tstep', 3)*j
            if k_ < 40: S.put(first[k_] + 1, [op])
            else: st['twq'].append(op)
    n0 = 0
    kA, kB = kq + 1, opt('kB' + sf, 31)
    for ks in range(kA, 40):
        pos_ = [first[ks] + 1] if ks < kB else sorted([first[ks], first[ks] + NS - 2, first[ks] + 1, first[ks] + 3][:opt('ne' + sf, 3)])
        if ks < kB and (ks - kA) % opt('kAs' + sf, 2 if nG == 4 else 1): pos_ = []
        for p_ in pos_: S.put(p_, [allw[n0]]); n0 += 1
    assert n0 <= (60 if nG == 4 else 44 - opt('naS', 6) - opt('dr1', 0))
    global AUGW
    tmp = 172 if nG == 4 else 64
    AUGW = [160, 166, 96, 102] if nG == 4 else [72, 78]
    e1 = [lambda a: (a.wait(vm=st['stl']), check_loop(a, stl, vST+3, 64, sPC))]
    e1 += [f'v_rcp_f32 v{vR}, v{vSDV}']
    if nG == 2: e1 += [f's_nop 0\nds_write2st64_b32 v{vRT}, v{vR}, v{vAL} offset0:0 offset1:2']
    e1 += h_aug_x(tmp)
    S.spread(prep, first[31], l(33)); S.spread(e1, first[34], l(36))
    e2 = L(f'v_accvgpr_read_b32 v{vT}, a196\nv_accvgpr_read_b32 v{vT+1}, a197')
    e2 += [f's_mov_b64 exec, 0xffff\nds_write2_b32 v{vTB[0]}, v{vT}, v{vT+1} offset0:0 offset1:16\ns_mov_b64 exec, -1', lambda a: st.__setitem__('csw', a.lg_issued)]
    S.put(st['cs_slot'], e2)
    S.slots[st['bar_slot']]['pre'].append(lambda a: (a.wait(lg=st['csw']), a.e('s_barrier')))
    aw = [h_aug_w(st, i, tmp, vTB[i]) for i in range(nG)]
    S.put(st['bar_slot'], [x for i in range(nG) for x in aw[i][0]])
    S.spread([x for i in range(nG) for x in aw[i][1]], min(st['bar_slot'] + 2, l(39)), l(39))
    for ks in range(40): S.slots[first[ks]]['pre'].insert(0, lambda a, ks=ks: stamp(a, f'k{ks}'))
    if nG == 2: S.put(first[40], aw[0][2] + aw[1][2])
    S.emit(a)
    if nG == 4:
        for i in range(nG): run(a, aw[i][2])
    stamp(a, 3)
    n1 = n0
    later = allw[n1:]
    ufirst = nG == 2 and opt('ufS', 0)
    def hflag(a):
        a.wait(vm=st['hst']); a.e(f's_add_u32 s{sFH}, s{sFL}, {HF_OFF - F_OFF}'); set_flag_h(a, 193); stamp(a, 'hf')
        if opt('th', 0):
            a.e(f's_mul_i32 s{sFH}, s{sROW}, 54\ns_add_u32 s{sFH}, s{sFH}, s{sG0}\ns_lshl_b32 s{sFH}, s{sFH}, 11\nv_lshlrev_b32 v193, 3, v{vL16}')
            if nG == 2: a.e('s_mov_b32 exec_hi, 0')
            a.vm(f'buffer_load_dword v194, v193, {srd(SWS)}, s{sFH} offen sc1')
            if nG == 2: a.e('s_mov_b32 exec_hi, -1')
    def uflag(a):
        a.wait(vm=st['ust']); set_flag(a, 1, 193); stamp(a, 'uf')
    def do_U():
        rr = 96
        a.e(f'v_lshl_add_u32 v{vT}, v{vT+6}, 4, s{sE+1}')
        for jq in range(4): rt_ = a.lg(f'ds_read_b128 v[{rr+4*jq}:{rr+4*jq+3}], v{vT} offset:{32*jq}')
        vXW, vXR_, vUS = vT+2, vT+3, vT+4
        a.e(f'v_and_b32 v{vT+1}, 31, v{vL}\nv_lshlrev_b32 v{vT+5}, 2, v{vT+1}\nv_lshl_add_u32 v{vXW}, v{vT+6}, 9, v{vT+5}\ns_lshl_b32 s{sE}, s{sW}, 12\nv_add_u32 v{vXW}, s{sE}, v{vXW}')
        a.e(f's_lshl_b32 s{sE}, s{sW}, 10\nv_lshl_add_u32 v{vXR_}, v{vL}, 2, s{sE}')
        a.e(f's_mov_b32 s{sE}, 81920\nv_mul_lo_u32 v{vT+5}, s{sE}, v{vT+6}\nv_lshl_add_u32 v{vUS}, v{vT+1}, 4, v{vT+5}')
        budget = [opt('dr1', 0)]
        def drip():
            if budget[0] > 0 and len(later) > 15: later.pop(0)(a); budget[0] -= 1
        a.wait(lg=rt_)
        for d in range(2):
            E, O = 128 + 32*d, 144 + 32*d
            for j in range(16):
                if j % 8 == 4: drip()
                tq = 228 + (j & 3)
                x, y = (E+j, O+j) if d == 0 else (O+j, E+j)
                a.e(f'v_add_f32 v{tq}, v{E+j}, v{O+j}\nv_sub_f32 v{O+j}, v{x}, v{y}\nv_mul_f32 v{E+j}, v{rr+j}, v{tq}\nv_mul_f32 v{O+j}, v{rr+j}, v{O+j}')
            for j in range(8): a.e(cvtpk(E+j, E+2*j, E+2*j+1))
        DR = [(64, 80), (196, 212)]
        def step2(part):
            c0 = 128 + 16*part; s0 = 160 + 16*part; UR, UV = DR[part]
            UR = f'v[{UR}:{UR+15}]'; UV = f'v[{UV}:{UV+15}]'
            G = lambda b, f: f'v[{b+4*f}:{b+4*f+3}]'
            for k, (A1, A2, B) in enumerate(((0, 2, G(c0,0)), (1, 3, G(c0,1)), (4, 0, G(s0,0)), (5, 1, G(s0,1)))):
                a.e(f'v_mfma_f32_32x32x16_bf16 {UR}, {aF(A1)}, {B}, {"0" if k == 0 else UR}')
                a.e(f'v_mfma_f32_32x32x16_bf16 {UV}, {aF(A2)}, {B}, {"0" if k == 0 else UV}')
        def comb(part):
            UR, UV = DR[part]
            for j in range(16):
                a.e(cvtpk(UR+j, UR+j, UV+j))
                a.lg(f'ds_write_b32 v{vXW}, v{UR+j} offset:{XCH + part*16384 + (8*(j>>2)+(j&3))*128}')
                if j % opt('dre', 3) == 0: drip()
        stamp(a, 'u0')
        step2(0)
        ls = label('spec')
        a.e(f's_cmp_lg_u32 s{sDT}, 8\ns_cbranch_scc1 {ls}')
        for jq in range(4): a.e(f'ds_read_b128 v[{232+4*jq}:{235+4*jq}], v{vT} offset:{512+32*jq}')
        a.lg_issued -= 4
        a.e('s_waitcnt lgkmcnt(0)\ns_mov_b32 exec_lo, 0x80000000\ns_mov_b32 exec_hi, 0x80000000')
        for j in range(16): a.e(f'v_mov_b32 v{144+j}, v{232+j}\nv_mov_b32 v{176+j}, 0')
        a.e(f's_mov_b64 exec, -1\n{ls}:')
        for O in (144, 176):
            for j in range(8): a.e(cvtpk(O+j, O+2*j, O+2*j+1))
        hp_ = opt('hpS', 0)
        if not ufirst and hp_ == 0: hflag(a)
        step2(1); budget[0] = opt('dr2', 0); drip(); drip(); comb(0)
        if not ufirst and hp_ == 1: hflag(a)
        comb(1)
        stamp(a, 'u1')
        a.wait(lg=a.lg_issued); a.e('s_barrier')
        stamp(a, 'u2')
        toks = []
        for part in range(2):
            for i in range(4):
                b = 128 + 16*part + 4*i
                a.lg(f'ds_read2st64_b32 v[{b}:{b+1}], v{vXR_} offset0:{64*part+i} offset1:{64*part+16+i}')
                toks.append(a.lg(f'ds_read2st64_b32 v[{b+2}:{b+3}], v{vXR_} offset0:{64*part+32+i} offset1:{64*part+48+i}'))
        a.e(f's_lshl_b32 s{sE}, s{sW}, 7\ns_add_u32 s{sE}, s{sE}, s{sRB}\ns_mul_i32 s{sE}, s{sE}, 5120\ns_lshl_b32 s{sE+1}, s{sDT}, 8\ns_add_u32 s{sE}, s{sE}, s{sE+1}\ns_add_u32 s{sE}, s{sE}, {U_OFF}')
        for i in range(1, 4): a.e(f's_add_u32 s{sE+i}, s{sE}, {2*81920*i}')
        for part in range(2):
            for i in range(4):
                b = 128 + 16*part + 4*i
                a.wait(lg=toks[4*part+i])
                st['ust'] = a.vm(f'buffer_store_dwordx4 v[{b}:{b+3}], v{vUS}, {srd(SWS)}, s{sE+i} offen offset:{2560*part} sc1')
        stamp(a, 'u3')
    def do_H():
        S = Sched()
        for k in range(8*nG): S.add(None)
        nm = len(S.slots)
        ops = []
        for i in range(nG): ops += [lambda a, i=i: stamp(a, f'f{i}')] + h_fin(st, i, 0) + h_fin(st, i, 1)
        S.spread(ops, 0, nm - 1)
        k_ = opt('na', 10) if nG == 4 else opt('naS', 6)
        if st['twq']: S.spread(st['twq'], 0, nm - 1)
        if k_: S.spread(later[:k_], 0, nm - 1); del later[:k_]
        if ufirst: S.put(min(nm - 1, opt('ufs', 20)), [uflag])
        hfe = -1
        S.emit(a)
        stamp(a, 4)
    if nG == 4: do_H()
    elif ufirst: do_U(); do_H()
    else: do_H(); do_U()
    if nG == 2: later = later[-15:] + later[:-15]
    nin = opt('nin' + sf, 0)
    st['inp2'] = later[len(later) - nin:]; later = later[:len(later) - nin]
    stamp(a, 5)
    phase2(a, st, hflag if (ufirst or nG == 4) else uflag, later, not (opt('twR', 0) if nG == 4 else opt('twS', 0)))

def phase2(a, st, hflag, later, doTW):
    RED = 65536 if XV[0] else 0
    t = 2
    q = 144
    r = Rec()
    if doTW: gen_TW(r, q)
    sGI = sE
    r.e(f's_mul_i32 s{sGO}, s{sHB[3]}, 1280\ns_mul_i32 s{sGI}, s{sHB[1]}, 1280')
    vHJ = [184, 185, 186, 187]; vHD = [188, 189, 190, 191]
    for j in range(4):
        r.e(f's_and_b32 s{sT}, s{sHB[j]}, 1024\ns_and_b32 s{sHB[j]}, s{sHB[j]}, 63\ns_mul_i32 s{sHB[j]}, s{sHB[j]}, 54\ns_add_u32 s{sHB[j]}, s{sHB[j]}, s{sTAU}\ns_lshl_b32 s{sHB[j]}, s{sHB[j]}, 11\ns_add_u32 s{sHB[j]}, s{sHB[j]}, s{sT}')
        r.e(f'v_add_u32 v{vHJ[j]}, s{sHB[j]}, v{vL16}\nv_add_u32 v{vHD[j]}, s{sHB[j]}, v192')
    r.e(f's_mov_b32 s{sKO[0]}, 0\ns_movk_i32 s{sKO[13]}, {13*2048}')
    for k in range(1, 13):
        if opt('rho', 0): r.e(f's_add_u32 s{sKO[k]}, s{sKO[k-1]}, 2048\ns_cmp_eq_u32 s{sKO[k]}, s{sKO[13]}\ns_cselect_b32 s{sKO[k]}, 0, s{sKO[k]}')
        elif k % 2 == 0: r.e(f's_movk_i32 s{sKO[k]}, {2048*k}')
    vG4, vG2, vB4 = t+8, t+9, t+10
    r.e(f's_mul_i32 s{sCW}, s{sC}, 160\ns_add_u32 s{sGO}, s{sGO}, s{sCW}\ns_add_u32 s{sGI}, s{sGI}, s{sCW}\ns_mov_b32 s{sT}, 81920')
    r.e(f'v_and_b32 v{q}, 15, v{vL}\nv_mul_lo_u32 v{q}, s{sT}, v{q}\nv_lshrrev_b32 v{q+1}, 4, v{vL}\nv_lshl_add_u32 v{vG4}, v{q+1}, 4, v{q}\nv_lshl_add_u32 v{vG2}, v{q+1}, 3, v{q}')
    r.e(f'v_lshl_add_u32 v{vB4}, v{q+1}, 4, s{sCW}\nv_lshl_add_u32 v{q+2}, v{q+1}, 3, s{sCW}')
    xr = 160; br = 172
    r.ops += [f'buffer_load_dwordx4 v[{xr}:{xr+3}], v{vG4}, {srd(SX)}, s{sGI} offen', f'buffer_load_dwordx4 v[{xr+4}:{xr+7}], v{vG4}, {srd(SX)}, s{sGI} offen offset:64',
              f'buffer_load_dwordx2 v[{xr+8}:{xr+9}], v{vG2}, {srd(SX)}, s{sGI} offen offset:128',
              f'global_load_dwordx4 v[{br}:{br+3}], v{vB4}, s[{sB2}:{sB2+1}]', f'global_load_dwordx4 v[{br+4}:{br+7}], v{vB4}, s[{sB2}:{sB2+1}] offset:64']
    r.vm(f'global_load_dwordx2 v[{br+8}:{br+9}], v{q+2}, s[{sB2}:{sB2+1}] offset:128', 'xb')
    r.e(f's_and_b32 s{sT+1}, s2, 15\ns_lshr_b32 s{sT+2}, s{sW}, 1\ns_lshl_b32 s{sT+2}, s{sT+2}, 4\ns_add_u32 s{sT+1}, s{sT+1}, s{sT+2}')
    r.e(f's_and_b32 s{sT+2}, s{sW}, 1\ns_mul_i32 s{sT+2}, s{sT+2}, 96\ns_add_u32 s{sT+1}, s{sT+1}, s{sT+2}')
    r.e(f's_lshl_b32 s{sT+1}, s{sT+1}, 2\ns_lshl_b32 s{sT+2}, s{sZ}, 1\ns_add_u32 s{sT+1}, s{sT+1}, s{sT+2}')
    vF1, vF2, vFV = t, t+1, t+2
    r.e(f'v_lshrrev_b32 v{q}, 1, v{vL}\nv_lshlrev_b32 v{q}, 7, v{q}\nv_and_b32 v{q+1}, 1, v{vL}\nv_add3_u32 v{q}, v{q}, v{q+1}, s{sT+1}')
    r.e(f'v_lshlrev_b32 v{vF1}, 7, v{q}\nv_add_u32 v{vF1}, {HF_OFF}, v{vF1}')
    r.e(f's_sub_u32 s{sTS1}, 32, s{sT1}\ns_and_b32 s{sTS1}, s{sTS1}, 31\ns_cmp_ge_u32 s{sC}, 4\ns_cselect_b32 s{sTS1}, s{sTS1}, s{sT1}')
    r.e(f'v_and_b32 v{q}, 7, v{vL}\nv_min_u32 v{q}, 4, v{q}\nv_lshlrev_b32 v{q+2}, 5, v{q}\nv_add_u32 v{q+3}, {6*32}, v{q+2}\nv_add_u32 v{q+2}, {3*32+16}, v{q+2}')
    r.e(f'v_cmp_gt_u32 vcc, 2, v{q}\nv_cndmask_b32 v{q}, v{q+2}, v{q+3}, vcc')
    r.e(f'v_and_b32 v{q+1}, 8, v{vL}\nv_bfe_u32 v{q+3}, v{vL}, 4, 1\nv_add3_u32 v{q}, v{q}, v{q+1}, v{q+3}')
    r.e(f's_lshl_b32 s{sT}, s{sW}, 3\ns_lshr_b32 s{sT+2}, s{sTS1}, 3\ns_add_u32 s{sT}, s{sT}, s{sT+2}\nv_lshl_add_u32 v{q}, v{q}, 2, s{sT}')
    r.e(f'v_lshlrev_b32 v{vF2}, 7, v{q}\nv_add_u32 v{vF2}, {F_OFF+4}, v{vF2}\nv_lshrrev_b32 v{q+1}, 4, v{vL}')
    vUO = [t+3+k for k in range(5)]
    r.e(f'v_and_b32 v{q}, 15, v{vL}\ns_mul_i32 s{sT}, s{sC}, 80\nv_and_b32 v{q+4}, 12, v{vL}\nv_add3_u32 v{q+4}, v{q+4}, v{q}, s{sT}\nv_add_u32 v{q}, s{sT}, v{q}')
    r.e(f's_movk_i32 s{sT+1}, 5120\nv_mul_u32_u24 v{q+1}, s{sT+1}, v{q+1}')
    r.e(f's_cmp_ge_u32 s{sC}, 4\ns_cselect_b32 s{sT}, -1, 0\ns_cselect_b32 s{sT+1}, 640, -1')
    for ct in range(5):
        if ct < 4: r.e(f'v_add_u32 v{q+2}, {32*(ct>>1)+4*(ct&1)}, v{q+4}')
        else: r.e(f'v_add_u32 v{q+2}, 64, v{q}')
        r.e(f'v_xor_b32 v{q+2}, s{sT}, v{q+2}\nv_add_u32 v{q+2}, s{sT+1}, v{q+2}\nv_sub_u32 v{q+5}, 478, v{q+2}')
        r.e(f'v_cmp_lt_i32 vcc, 159, v{q+2}\nv_cndmask_b32 v{q+5}, v{q+2}, v{q+5}, vcc')
        if ct == 0: r.e(f'v_cmp_eq_u32 vcc, 319, v{q+2}\nv_cndmask_b32 v{q+5}, v{q+5}, v{q+2}, vcc')
        r.e(f'v_lshl_add_u32 v{vUO[ct]}, v{q+5}, 4, v{q+1}')
        if ct == 0: r.e(f'v_mov_b32 v{q+3}, {OOB}\nv_cmp_gt_i32 vcc, 0, v{q+2}\nv_cndmask_b32 v{vUO[0]}, v{vUO[0]}, v{q+3}, vcc')
    r.e(f's_lshl_b32 s{sUo}, s{sTS1}, 4\ns_lshl_b32 s{sT}, s{sW}, 2\ns_add_u32 s{sUo}, s{sUo}, s{sT}\ns_mul_i32 s{sUo}, s{sUo}, 5120\ns_add_u32 s{sUo}, s{sUo}, {U_OFF}')
    vPW, vP2, vP1 = t+11, t+12, t+13
    r.e(f's_mul_i32 s{sT}, s{sW}, 15360\ns_add_u32 s{sT}, s{sT}, {RED}\nv_add_u32 v{vPW}, s{sT}, v{vL16}')
    r.e(f's_xor_b32 s{sT}, s{sW}, 2\ns_mul_i32 s{sT}, s{sT}, 15360\ns_add_u32 s{sT}, s{sT}, {RED}\nv_add_u32 v{vP2}, s{sT}, v{vL16}')
    r.e(f's_add_u32 s{sT}, s{sW}, 1\ns_and_b32 s{sT}, s{sT}, 3\ns_mul_i32 s{sT}, s{sT}, 15360\ns_add_u32 s{sT}, s{sT}, {RED}\nv_add_u32 v{vP1}, s{sT}, v{vL16}')
    vP3 = 0
    r.e(f's_add_u32 s{sT}, s{sW}, 3\ns_and_b32 s{sT}, s{sT}, 3\ns_mul_i32 s{sT}, s{sT}, 15360\ns_add_u32 s{sT}, s{sT}, {RED}\nv_add_u32 v{vP3}, s{sT}, v{vL16}')
    r.ops.insert(len(r.ops) * opt('hfp' + ('S' if XV[0] else ''), 25 if XV[0] else 20) // 100, hflag)
    hl = f'buffer_load_dword v{vFV}, v{vF1}, {srd(SWS)}, 0 offen sc1'
    nl = max(0, len(later) - opt('nlast', 12))
    mm_ = merge(r.ops, later[:nl]); h_ = len(mm_) // 2
    run(a, mm_[:h_]); stamp(a, 's1'); run(a, mm_[h_:]); stamp(a, 's2')
    ini = [lambda a: a.wait(vm=r.tok['xb']), f's_mov_b32 s{sT}, 0x05040100\ns_mov_b32 s{sT+1}, 0x07060302']
    for ct in range(5):
        b = 36 + 4*ct
        for k in range(2):
            xs = xr + (4*(ct >> 1) + 2*(ct & 1) + k if ct < 4 else 8 + k); bs = xs - xr + br
            ini += L(f'v_perm_b32 v{b+2*k}, v{bs}, v{xs}, s{sT}\nv_perm_b32 v{b+2*k+1}, v{bs}, v{xs}, s{sT+1}')
    for k in range(20): ini.append(f'v_dot2_f32_bf16 v{36+k}, v{36+k}, s{sONES}, 0')
    if opt('bias', 0.0):
        ini += [f's_cmp_eq_u32 s{sC}, 0\ns_cselect_b32 s{sT+2}, {fhex(opt("bias", 0.0))}, 0\ns_mov_b64 exec, 0xffff\ns_nop 2\nv_add_f32 v36, s{sT+2}, v36\ns_mov_b64 exec, -1']
    a.e(f'v_mov_b32 v{vL}, v{vL16}'); st['vW'] = vL
    a.e('s_mov_b64 exec, 0x3ff')
    tk = a.vm(hl)
    a.e('s_mov_b64 exec, -1')
    run(a, merge(ini, later[nl:]))
    stamp(a, 6)
    a.wait(vm=tk)
    check_loop(a, hl, vFV, 10, sPC)
    stamp(a, 7)
    ht = {}
    def hload(slot, j):
        def op(a):
            vo = vHD[j] if slot == 13 else vHJ[j]
            ht[(slot, j)] = a.vm(f'buffer_load_dwordx4 {HF(pos[(slot, j)])}, v{vo}, {srd(SWS)}, s{sKO[slot] if RHO else sKO[slot & ~1]} offen offset:{0 if RHO else 2048*(slot & 1)} sc1')
        return op
    order = [(s_, j) for j in range(4) for s_ in range(14)]
    pos = {k: n for n, k in enumerate(order)}
    ul = f'buffer_load_dword v{vFV}, v{vF2}, {srd(SWS)}, 0 offen sc1'
    for n in range(RING): hload(*order[n])(a)
    hp = RING
    wq = list(st['inp2'])
    S = Sched(); f = {}
    def group(s_, j):
        nonlocal hp
        n = pos[(s_, j)]
        for ct in range(5):
            pre = [lambda a: a.wait(vm=max(ht[(s_, j)], max(st['w2'][(s_, c_)] for c_ in range(5))))] if ct == 0 else []
            if ct == 0 and s_ == 0 and j == 3: pre.append(lambda a: a.wait(lg=st[('ci', j)]))
            c0 = '0' if (s_ == 0 and j in (0, 2)) else ACC2(ct, j)
            idx = S.add(f'v_mfma_f32_16x16x32_bf16 {ACC2(ct,j)}, {W2(s_,ct)}, {HF(n)}, {c0}', pre)
            if ct == 0: f[(s_, j)] = idx
        if hp < 56: S.put(idx, [hload(*order[hp])]); hp += 1
    def ustep(j):
        for ct in range(5):
            pre = [lambda a: a.wait(vm=st['uf'])] if ct == 0 else []
            S.add(f'v_mfma_f32_16x16x32_bf16 {ACC2(ct,j)}, {UF(ct)}, a[{aTW+4*j}:{aTW+4*j+3}], {ACC2(ct,j)}', pre)
    u0 = opt('u0', 5)
    for j in range(4):
        for s_ in range(14):
            group(s_, j)
            if j == 2 and s_ == u0: ustep(1); ustep(0)
        if j >= 2: ustep(j)
    bar = lambda a: (a.wait(lg=a.lg_issued), a.e('s_barrier'))
    def wr(j, at, step):
        for ct in range(5): S.put(at + step*ct, [f'ds_write_b128 v{vPW}, {ACC2(ct,j)} offset:{j*5120 + ct*1024}'])
    def rd(key, dst, va, off, at, step):
        for ct in range(5): S.put(at + step*ct, [lambda a, ct=ct: st.__setitem__(key, a.lg(f'ds_read_b128 {dst(ct)}, v{va} offset:{off + ct*1024}'))])
    PB = 144
    wr(1, f[(u0+1, 2)] + 1, 3); S.put(f[(u0+5, 2)] + 1, [bar]); rd(('ci', 3), lambda ct: ACC2(ct, 3), vP2, 5120, f[(u0+5, 2)] + 3, 4)
    wr(0, f[(u0+6, 2)] + 1, 4)
    wr(2, f[(1, 3)] + 1, 3); S.put(f[(5, 3)] + 1, [bar])
    rd('pr', lambda ct: f'v[{PB+4*ct}:{PB+4*ct+3}]', vP1, 10240, f[(5, 3)] + 3, 2)
    rd('pr', lambda ct: f'v[{PB+20+4*ct}:{PB+23+4*ct}]', vP3, 0, f[(5, 3)] + 13, 2)
    S.spread([lambda a: a.wait(lg=st['pr'])] + [f'v_add_f32 v{PB+k}, v{PB+k}, v{PB+20+k}' for k in range(20)], f[(10, 3)], f[(13, 3)] + 8)
    ku = opt('ku', 10)
    fl = [f[k] for k in order]
    S.put(fl[ku] + 1, [lambda a: (a.e('s_mov_b32 exec_hi, 0'), st.__setitem__('ul', a.vm(ul)), a.e('s_mov_b32 exec_hi, -1'))])
    kc = ku + opt('kc', 12)
    S.put(fl[kc] + 1, [lambda a: (a.wait(vm=st['ul']), check_loop(a, ul, vFV, 32, sPC), stamp(a, 'uc'))])
    for ct in range(5):
        S.put(fl[kc + ct] + 3, [lambda a, ct=ct: st.__setitem__('uf', a.vm(f'buffer_load_dwordx4 {UF(ct)}, v{vUO[ct]}, {srd(SWS)}, s{sUo} offen sc1'))])
    for j in range(4): S.slots[f[(0, j)]]['pre'].insert(0, lambda a, j=j: stamp(a, f'l{j}'))
    S.slots[f[(1, 0)]]['pre'].insert(0, lambda a: stamp(a, 'e1'))
    assert not wq
    S.emit(a)
    stamp(a, 8)
    a.wait(lg=st['pr'])
    o = 96
    for ct in range(5):
        b = 76 + 4*ct
        for k in range(4): a.e(f'v_add_f32 v{b+k}, v{b+k}, v{PB+4*ct+k}')
        if opt('scale', 0.0):
            for k in range(4): a.e(f'v_mul_f32 v{b+k}, {fhex(1.0 + opt("scale", 0.0))}, v{b+k}')
        a.e(cvtpk(o+2*ct, b, b+1)); a.e(cvtpk(o+2*ct+1, b+2, b+3))
        ost = opt('ost', '')
        if ct == 1: a.vm(f'buffer_store_dwordx4 v[{o}:{o+3}], v{vG4}, {srd(SOUT)}, s{sGO} offen {ost}')
        if ct == 3: a.vm(f'buffer_store_dwordx4 v[{o+4}:{o+7}], v{vG4}, {srd(SOUT)}, s{sGO} offen offset:64 {ost}')
        if ct == 4: a.vm(f'buffer_store_dwordx2 v[{o+8}:{o+9}], v{vG2}, {srd(SOUT)}, s{sGO} offen offset:128 {ost}')
    if DBG == 3:
        a.wait_all()
        le = label('dbgskip')
        a.e(f's_memrealtime s[{sT+1}:{sT+2}]\ns_waitcnt lgkmcnt(0)')
        a.e(f's_cmp_lg_u32 s{sW}, 0\ns_cbranch_scc1 {le}')
        a.e(f's_cmp_eq_u32 s2, {opt("wgA", 8)}\ns_cselect_b32 s{sT}, 4, 0\ns_cmp_eq_u32 s2, {opt("wgB", 232)}\ns_cselect_b32 s{sT}, 32, s{sT}\ns_cmp_eq_u32 s{sT}, 0\ns_cbranch_scc1 {le}')
        for k in range(1, 7): a.e(f's_sub_u32 s{sT+3}, s{sTS+2*k}, s{sTS}\nv_mov_b32 v{15+k}, s{sT+3}')
        a.e(f's_sub_u32 s{sT+3}, s{sT+1}, s{sTS}\nv_mov_b32 v22, s{sT+3}\nv_mov_b32 v2, s{sT}\ns_mov_b64 exec, 1')
        a.e(f'global_store_dwordx4 v2, v[16:19], s[{sDBG}:{sDBG+1}]\nglobal_store_dwordx3 v2, v[20:22], s[{sDBG}:{sDBG+1}] offset:16')
        a.e(f'{le}:')
    elif DBG:
        a.wait_all()
        a.e(f'{"s_memtime" if DBG == 2 else "s_memrealtime"} s[{sT+1}:{sT+2}]\ns_waitcnt lgkmcnt(0)')
        for k in range(9): a.e(f'v_mov_b32 v{16+k}, s{sTS+2*k}')
        a.e(f'v_mov_b32 v25, s{sT+1}\nv_mov_b32 v26, 0\nv_mov_b32 v27, 0')
        a.e(f's_lshl_b32 s{sT}, s2, 2\ns_add_u32 s{sT}, s{sT}, s{sW}\ns_lshl_b32 s{sT}, s{sT}, 6\ns_add_u32 s{sT}, s{sT}, {TS_OFF}')
        a.e(f'v_mov_b32 v2, 0\ns_mov_b64 exec, 1')
        for k in range(3): a.e(f'buffer_store_dwordx4 v[{16+4*k}:{19+4*k}], v2, {srd(SWS)}, s{sT} offen offset:{16*k}')
    a.e('s_endpgm')

def build():
    a = Asm(); prologue(a)
    outs = [a]
    for nG in (4, 2):
        b = a.fork()
        if nG == 2: b.e('L_S:')
        build_type(b, T(nG)); outs.append(b)
    lines = []
    for o in outs: lines += o.finish()
    return lines + SLOW

hdr = open('cdna_kernels/%s.s.ref' % NAME).read().split('; Override launch')[0]
lines = build()
if opt('al8', 0):
    import subprocess, re as _re
    def sizes(ls):
        open('_al.s', 'w').write('.amdgcn_target "amdgcn-amd-amdhsa--gfx950"\n.text\n' + '\n'.join(ls) + '\nL_end:\nL_ftab:\n')
        subprocess.run(['clang', '-x', 'assembler', '-target', 'amdgcn-amd-amdhsa', '-mcpu=gfx950', '-c', '_al.s', '-o', '_al.o'], check=True)
        d = subprocess.run(['llvm-objdump', '-d', '--mcpu=gfx950', '_al.o'], capture_output=True, text=True).stdout
        return [4*len(m.group(1).split()) for m in _re.finditer(r'// [0-9A-F]+: ([0-9A-F ]+)', d)]
    sz = sizes(lines); idx = [i for i, l in enumerate(lines) if not l.endswith(':')]
    assert len(sz) == len(idx), (len(sz), len(idx))
    addr = 0; prev = None; nfix = 0; nmiss = 0
    ok = ('v_mul_f32', 'v_max_f32', 'v_add_f32', 'v_sub_f32', 'v_mov_b32', 'v_cos_f32', 'v_sin_f32', 'v_add_u32', 'v_and_b32', 'v_lshlrev_b32', 'v_lshrrev_b32', 'v_xor_b32', 'v_cvt_f32_u32', 'v_mul_u32_u24', 'v_min_u32', 'v_sub_u32', 'v_rcp_f32')
    cand = None
    for k, i in enumerate(idx):
        if sz[k] == 8 and addr % 8 == 4:
            if cand is not None:
                mn = lines[cand].split()[0]; lines[cand] = lines[cand].replace(mn, mn + '_e64', 1); addr += 4; nfix += 1
            elif opt('al8', 0) == 2 and lines[i].startswith('v_mfma'):
                lines[i] = 's_nop 0\n    ' + lines[i]; addr += 4; nfix += 1
            else: nmiss += 1
        if sz[k] == 4 and lines[i].split()[0] in ok: cand = i
        elif sz[k] != 4: cand = None
        addr += sz[k]
    print('align: fixed', nfix, 'unfixed', nmiss)
with open(sys.argv[1], 'w') as f:
    f.write(hdr)
    f.write(f'; @launch grid=(256,1,1) block=(256,1,1) lds={LDS_BYTES}\n')
    f.write('.amdgcn_target "amdgcn-amd-amdhsa--gfx950"\n.text\n')
    f.write(f'.globl {NAME}_kernel\n.p2align 8\n.type {NAME}_kernel,@function\n{NAME}_kernel:\n')
    for l in lines: f.write(('' if l.endswith(':') else '    ') + l + '\n')
    f.write('L_end:\n    s_endpgm\n')
    f.write('.p2align 8\n.type L_ftab,@object\nL_ftab:\n')
    tb = F_table()
    for i in range(0, len(tb), 8): f.write('.long ' + ', '.join('0x%08x' % x for x in tb[i:i+8]) + '\n')
    f.write('.fill 8192, 4, 0\n')
    f.write(f'''.section .rodata,"a"
.p2align 6
.amdhsa_kernel {NAME}_kernel
  .amdhsa_next_free_vgpr 512
  .amdhsa_next_free_sgpr 102
  .amdhsa_accum_offset 256
  .amdhsa_group_segment_fixed_size 0
  .amdhsa_kernarg_size 104
  .amdhsa_user_sgpr_count 2
  .amdhsa_user_sgpr_kernarg_segment_ptr 1
  .amdhsa_system_sgpr_workgroup_id_x 1
.end_amdhsa_kernel
''')
print('instructions:', len(lines))
```

```python
import sys, struct, copy, os
from asmlib import Asm
NAME = 'parallel_sum__spectral_fnet__dense_activation_squared_relu__prompt'
DBG = int(sys.argv[2]) if len(sys.argv) > 2 else 0
OPT = dict(kv.split('=') for kv in sys.argv[3:])
def opt(k, d): return type(d)(OPT.get(k, d))

H_OFF = 0; U_OFF = 0x6C0000; P_OFF = 0x940000; ST_OFF = 0xB5C000; F_OFF = 0xB68000; TS_OFF = 0xB88000; PF_OFF = 0xBA0000; HF_OFF = 0xBB0000; WS_END = 0xBD0000
OOB = 0x40000000
ARING = 0; BBASE = 65536; AUX = 131072; TAB = 161792; TABC = TAB; TABB = TAB + 512; TABR = TAB + 1024; TABA = TAB + 1536
XCH = 0
RED_PITCH = 336; RED_WAVE = 64 * RED_PITCH
LDS_BYTES = 163840
SX, SW1, SW2, SWS, SOUT = 4, 8, 12, 16, 20
sB1, sB2, sDBG = 24, 26, 28
sW, sZ, sRB, sC8, sROW, sG0 = 30, 31, 32, 33, 34, 35
sA, sA2, sBo, sMA, sMB = 36, 37, 38, 39, 40
sT1, sC, sTAG, sONES = 41, 42, 43, 44
sT = 45
sH = [53, 54, 55, 56]; sFL = 57; sDT = 58; sAUXo = 59; sAUXs = 60; sTAU = 61; sW2o = 62; sH0 = 63; sH1 = 64; sUo = 65
sCW = 61+0*0 if False else 83; sGO = 82; sTS1 = 66; sPC = 51; sUS = 70; sE = 71
sAUXm = 3; sHB = [78, 79, 80, 81]
sRHO = 75; sWE = 76; sW4 = 77; sXCC = 66; sLOC = 67; sFH = 68
sKO = [36, 37, 38, 39, 40, 53, 54, 55, 56, 58, 59, 60, 63, 64]
sTS = 84
def srd(b): return f's[{b}:{b+3}]'
def fhex(x): return '0x%08x' % struct.unpack('<I', struct.pack('<f', x))[0]
XV = [False]
def X(ks): return f'v[{196+4*(ks%8)}:{199+4*(ks%8)}]' if XV[0] else f'a[{4*(ks%8)}:{4*(ks%8)+3}]'
def ACC1(i): return f'v[{32+16*i}:{47+16*i}]'
def WB(b, i, h=None):
    base = 96 + 16*b + 4*i if i < 4 else 184 + 4*b
    return f'v[{base}:{base+3}]' if h is None else f'v[{base+2*h}:{base+2*h+1}]'
aTW = 160; aF0 = 176; aSEL = 'a[192:195]'; aCS = 'a[196:199]'
def aF(k): return f'a[{aF0+4*k}:{aF0+4*k+3}]' if k < 4 else f'a[{152+4*(k-4)}:{155+4*(k-4)}]'
vL = 1
vOA = [2, 3]; vOB = [4, 5, 6, 7]; vAR = [8, 9, 10, 11]; vBR = [12, 13, 14, 15]
vT = 16
vST = 24
vNM, vSDV, vAL, vR = 24, 25, 26, 28
vNON = 28; vPF = 29; vHO = 30; vL16 = 31
vAUX = 160
def W2(slot, ct):
    if slot < 3: k, b = 'v', 196 + 20*slot + 4*ct
    elif slot < 5: k, b = 'a', 200 + 20*(slot-3) + 4*ct
    elif slot < 11: k, b = 'a', 32 + 20*(slot-5) + 4*ct
    elif slot == 11: k, b = 'a', (240 + 4*ct if ct < 4 else 152)
    elif slot == 12: k, b = 'a', (4*ct if ct < 4 else 156)
    else: k, b = 'a', (16 + 4*ct if ct < 4 else 196)
    return f'{k}[{b}:{b+3}]'
def UF(ct): return f'a[{176+4*ct}:{179+4*ct}]'
def ACC2(ct, rt): b = 16 + 20*rt + 4*ct; return f'v[{b}:{b+3}]'
RHO = opt('rho', 0)
RING = opt('ring', 10)
def HF(n): b = 96 + 4*(n % RING); return f'v[{b}:{b+3}]'

TSL = OPT.get('ts', '0,1,2,3,4,5,6,7,8').split(',')
def stamp(a, name):
    if str(name) not in TSL: return
    idx = TSL.index(str(name))
    if DBG: a.e(f'{"s_memtime" if DBG == 2 else "s_memrealtime"} s[{sTS+2*idx}:{sTS+2*idx+1}]')
def cvtpk(d, x, y): return f'v_cvt_pk_bf16_f32 v{d}, v{x}, v{y}'
uid = [0]
def label(p):
    uid[0] += 1; return f'L_{p}{uid[0]}'

class Sched:
    def __init__(self): self.slots = []
    def add(self, main, pre=()):
        self.slots.append({'pre': list(pre), 'main': main, 'fill': []}); return len(self.slots) - 1
    def put(self, idx, ops): self.slots[idx]['fill'] += list(ops)
    def spread(self, ops, first, last):
        ops = list(ops); n = last - first + 1
        for k, op in enumerate(ops):
            self.slots[first + min(n - 1, k * n // len(ops))]['fill'].append(op)
    def pack(self, ops, first, per):
        i = first
        for op in ops:
            while i < len(self.slots) - 1 and len(self.slots[i]['fill']) >= per: i += 1
            self.slots[i]['fill'].append(op)
        return i
    def emit(self, a, lo=0, hi=None):
        for s in self.slots[lo:hi]:
            for op in s['pre'] + [s['main']] + s['fill']:
                if op is None: continue
                if callable(op): op(a)
                else: a.e(op)
def L(text): return [t for t in text.split('\n') if t.strip()]

def mk_srd(b, lo, n):
    return f's_mov_b32 s{b}, s{lo}\ns_and_b32 s{b+1}, s{lo+1}, 0xffff\ns_mov_b32 s{b+2}, {n}\ns_mov_b32 s{b+3}, 0x20000'

def prologue(a):
    for _ in range(opt('shift', 0)): a.e('s_nop 0')
    a.e('s_cmp_ge_u32 s2, 256\ns_cbranch_scc1 L_end')
    stamp(a, 0)
    a.e('s_load_dwordx2 s[66:67], s[0:1], 0')
    a.e('s_load_dwordx8 s[68:75], s[0:1], 48')
    a.e('s_load_dwordx4 s[76:79], s[0:1], 80')
    a.e('s_load_dwordx2 s[80:81], s[0:1], 96')
    a.e('s_getpc_b64 s[82:83]\nL_pc:')
    if opt('cp', 1) == 0:
        a.e('s_bfe_u32 s3, s2, 0x10003\ns_lshl_b32 s3, s3, 15\nv_lshl_add_u32 v2, v0, 7, s3')
        a.vm(f'global_load_dword v{vPF}, v2, s[82:83]')
    else:
        n_ = opt('cp', 1) * 8; sh_ = 3 if n_ == 8 else 4
        a.e(f's_bfe_u32 s3, s2, {hex(0x40003 if n_ == 8 else 0x30003)}\ns_lshl_b32 s3, s3, {2 + sh_}\nv_lshrrev_b32 v3, 6, v0\nv_lshl_add_u32 v3, v3, {sh_}, s3\nv_and_b32 v2, 63, v0\nv_add_lshl_u32 v2, v2, v3, 7\ns_mov_b64 exec, {hex((1 << n_) - 1)}')
        a.vm(f'global_load_dword v{vPF}, v2, s[82:83]')
        a.e('s_mov_b64 exec, -1')
    a.e('s_add_u32 s82, s82, L_ftab-L_pc\ns_addc_u32 s83, s83, 0')
    a.e(f'v_lshrrev_b32 v4, 6, v0\nv_and_b32 v{vL}, 63, v0\nv_readfirstlane_b32 s{sW}, v4')
    a.e(f's_bfe_u32 s{sZ}, s2, 0x10004')
    a.e(f's_and_b32 s{sT}, s2, 7\ns_bfe_u32 s{sT+1}, s2, 0x10003\ns_lshl_b32 s{sT}, s{sT}, 1')
    a.e(f's_add_u32 s{sRB}, s{sT}, s{sT+1}\ns_lshr_b32 s{sC8}, s2, 5')
    a.e(f's_sub_u32 s{sT+2}, 32, s{sRB}\ns_cmp_eq_u32 s{sRB}, 0\ns_cselect_b32 s{sT+2}, 16, s{sT+2}')
    a.e(f's_bitcmp1_b32 s{sW}, 1\ns_cselect_b32 s{sROW}, s{sT+2}, s{sRB}')
    a.e(f's_and_b32 s{sT+3}, s{sW}, 1\ns_lshl_b32 s{sT+3}, s{sT+3}, 5\ns_add_u32 s{sROW}, s{sROW}, s{sT+3}')
    a.e(f's_mov_b32 s{sAUXm}, s{sT+2}')
    a.e(f'v_lshrrev_b32 v{vT}, 3, v{vL}\nv_lshrrev_b32 v{vT+1}, 4, v{vL}\nv_and_b32 v{vT+2}, 7, v{vL}')
    a.e(f'v_xor_b32 v{vT+3}, v{vT+2}, v{vT+1}\ns_mov_b32 s{sT+4}, 81920\nv_mul_lo_u32 v{vT+4}, s{sT+4}, v{vT}')
    a.e(f'v_lshl_add_u32 v{vOA[0]}, v{vT+3}, 4, v{vT+4}\nv_xor_b32 v{vT+3}, 4, v{vT+3}')
    a.e(f'v_lshl_add_u32 v{vOA[1]}, v{vT+3}, 4, v{vT+4}\nv_add_u32 v{vOA[1]}, {8*81920-1024}, v{vOA[1]}')
    a.e(f's_mul_i32 s{sA}, s{sROW}, 1280\ns_add_u32 s{sA2}, s{sA}, {16*81920-2048}\ns_lshl_b32 s{sMA}, s{sW}, 12')
    if opt('ae', 1):
        a.e('s_waitcnt lgkmcnt(0)')
        a.e(mk_srd(SX, 66, 2048*1280))
        run(a, dma_ops(T(4), 0, {'dma': {}})[:5])
    a.e(f's_sub_u32 s{sT+5}, 6, s{sZ}\ns_cmp_ge_u32 s{sC8}, s{sT+5}\ns_cbranch_scc1 L_S')

class T:
    def __init__(self, nG):
        self.nG = nG; self.nD = 0 if nG == 4 else 2
        self.bslot = 4096 * nG
        self.pitch = 64 * nG
        self.DREG = 131072 if nG == 4 else 98304
        self.nb = nG

def prologue_t(a, t, st):
    if t.nG == 4:
        a.e(f's_mul_i32 s{sG0}, s{sZ}, 28\ns_lshl_b32 s{sT}, s{sC8}, 2\ns_add_u32 s{sG0}, s{sG0}, s{sT}')
        a.e(f'v_and_b32 v{vT+2}, 15, v{vL}\nv_lshlrev_b32 v{vT+3}, 2, v{vT+1}\nv_xor_b32 v{vT+2}, v{vT+2}, v{vT+3}')
        a.e(f's_movk_i32 s{sT+6}, 3456\nv_mul_u32_u24 v{vT+3}, s{sT+6}, v{vT+1}\nv_lshl_add_u32 v{vOB[0]}, v{vT+2}, 4, v{vT+3}')
        for i in range(1, 4): a.e(f'v_add_u32 v{vOB[i]}, {i*(4*3456-1024)}, v{vOB[0]}')
    else:
        a.e(f's_mul_i32 s{sG0}, s{sZ}, 26\ns_lshl_b32 s{sT}, s{sC8}, 1\ns_add_u32 s{sG0}, s{sG0}, s{sT}\ns_add_u32 s{sG0}, s{sG0}, 12')
        a.e(f's_mul_i32 s{sDT}, s{sZ}, 6\ns_add_u32 s{sDT}, s{sDT}, s{sT}\ns_sub_u32 s{sDT}, s{sDT}, 12')
        a.e(f'v_and_b32 v{vT+3}, 1, v{vT+1}\nv_lshlrev_b32 v{vT+3}, 2, v{vT+3}\nv_xor_b32 v{vT+2}, v{vT+2}, v{vT+3}')
        a.e(f's_movk_i32 s{sT+6}, 3456\nv_mul_u32_u24 v{vT+3}, s{sT+6}, v{vT}\nv_lshl_add_u32 v{vOB[0]}, v{vT+2}, 4, v{vT+3}')
        a.e(f'v_add_u32 v{vOB[1]}, {8*3456-1024}, v{vOB[0]}')
    a.e(f's_lshl_b32 s{sBo}, s{sG0}, 6\ns_mul_i32 s{sT}, s{sW}, {16*3456}\ns_add_u32 s{sBo}, s{sBo}, s{sT}')
    a.e(f's_mul_i32 s{sMB}, s{sW}, {1024*t.nb}\ns_add_u32 s{sMB}, s{sMB}, {BBASE}')
    if not opt('bl', 0):
        a.e(f's_lshl_b32 s{sT+1}, s{sG0}, 6\nv_and_b32 v{vT+6}, {16*t.nG-1}, v{vL}\nv_lshl_add_u32 v{vT+6}, v{vT+6}, 2, s{sT+1}')
    if t.nG == 4 and not opt('rl', 0): run(a, roll_setup(t, opt('rn', 9)))
    stamp(a, 'p0')
    a.e('s_waitcnt lgkmcnt(0)')
    stamp(a, 'p1')

    if not opt('bl', 0):
        a.vm(f'global_load_dword v{vT+7}, v{vT+6}, s[70:71]')
        a.e(f'v_bfe_u32 v{vT+5}, v{vL}, 0, 3\nv_mul_u32_u24 v{vT+5}, 0xa0, v{vT+5}')
        a.vm(f'global_load_dword v{vPF}, v{vT+5}, s[74:75]')
    if not opt('ae', 1): a.e(mk_srd(SX, 66, 2048*1280))
    a.e(mk_srd(SW1, 68, 640*3456))

def dma_ops(t, c, st):
    slot = c % 4
    ops = [f's_add_u32 m0, s{sMA}, {ARING + slot*16384}',
           f'buffer_load_dwordx4 v{vOA[0]}, {srd(SX)}, s{sA} offen {opt("ntx", "")} lds',
           f'buffer_load_dwordx4 v{vOA[1]}, {srd(SX)}, s{sA} offen offset:1024 {opt("ntx", "")} lds',
           f'buffer_load_dwordx4 v{vOA[0]}, {srd(SX)}, s{sA2} offen offset:2048 {opt("ntx", "")} lds',
           f'buffer_load_dwordx4 v{vOA[1]}, {srd(SX)}, s{sA2} offen offset:3072 {opt("ntx", "")} lds',
           f's_add_u32 m0, s{sMB}, {slot*t.bslot}\ns_add_u32 s{sA}, s{sA}, 128\ns_add_u32 s{sA2}, s{sA2}, 128']
    for i in range(t.nb):
        ops.append(f'buffer_load_dwordx4 v{vOB[i]}, {srd(SW1)}, s{sBo} offen offset:{1024*i} {opt("ntw", "")} lds')
    def last(a):
        st['dma'][c] = a.vm_issued
        a.e(f's_add_u32 s{sBo}, s{sBo}, {64*3456}')
    ops.append(last)
    return ops
def run(a, ops):
    for op in ops:
        if callable(op): op(a)
        else: a.e(op)

vAO = 128
vPK = 140; vSD = 160
sPo = 58; sPs = 62; sPf = 64; sSo = 60; sSs = 65
def aux_setup(a):
    q = 184
    a.e(f's_mul_i32 s{sT}, s{sZ}, 6\ns_add_u32 s{sT}, s{sT}, s{sC8}\ns_lshl_b32 s{sT}, s{sT}, 2\ns_add_u32 s{sT}, s{sT}, s{sW}')
    a.e(f's_mul_i32 s{sT+1}, s{sRB}, 27\ns_add_u32 s{sT+1}, s{sT+1}, s{sT}')
    a.e(f's_lshr_b32 s{sT+2}, s{sT+1}, 3\ns_and_b32 s{sT+3}, s{sT+1}, 7\ns_mul_i32 s{sPo}, s{sT+2}, 40960\ns_mul_i32 s{sT+5}, s{sT+3}, 160\ns_add_u32 s{sPo}, s{sPo}, s{sT+5}')
    a.e(f's_mul_i32 s{sPs}, s{sT+3}, 54\ns_add_u32 s{sPs}, s{sPs}, s{sT+2}\ns_mul_i32 s{sPs}, s{sPs}, 5120\ns_add_u32 s{sPs}, s{sPs}, {P_OFF}')
    a.e(f's_lshl_b32 s{sPf}, s{sT+1}, 7\ns_add_u32 s{sPf}, s{sPf}, {PF_OFF}')
    a.e(f's_cmp_lt_u32 s{sT}, 27\ns_cselect_b32 s{sT+4}, 0, {OOB}\ns_cselect_b32 s{sPo}, s{sPo}, 0')
    for i in range(5):
        a.e(f'v_add_u32 v{q}, {64*i}, v{vL}\nv_mul_u32_u24 v{q+1}, 0x667, v{q}\nv_lshrrev_b32 v{q+1}, 14, v{q+1}\nv_mul_u32_u24 v{q+1}, 0x460, v{q+1}')
        if i == 0: a.e(f'v_lshl_add_u32 v{vAO+9}, v{vL}, 4, s{sT+4}')
        a.e(f'v_add_u32 v{vAO+i}, v{vAO+9}, v{q+1}')
    a.e(f'v_add_u32 v{vAO+4}, 0x1000, v{vAO+4}')
    a.e(f's_mul_i32 s{sAUXm}, s{sW}, 5120\ns_add_u32 s{sAUXm}, s{sAUXm}, {AUX}')
def stats_setup(a):
    q = 184
    a.e(f's_mul_i32 s{sT}, s{sZ}, 6\ns_add_u32 s{sT}, s{sT}, s{sC8}\ns_lshl_b32 s{sT}, s{sT}, 2\ns_add_u32 s{sT}, s{sT}, s{sW}')
    a.e(f's_sub_u32 s{sT}, s{sT}, 12\ns_cmp_lt_u32 s{sT}, 32\ns_cselect_b32 s{sT+4}, 0, {OOB}\ns_cselect_b32 s{sT}, s{sT}, 0')
    a.e(f's_bitcmp1_b32 s{sT}, 4\ns_cselect_b32 s{sT+2}, s{sAUXm}, s{sRB}')
    a.e(f's_bfe_u32 s{sT+3}, s{sT}, 0x10003\ns_lshl_b32 s{sT+3}, s{sT+3}, 5\ns_add_u32 s{sT+2}, s{sT+2}, s{sT+3}\ns_and_b32 s{sT+3}, s{sT}, 7\ns_lshl_b32 s{sT+3}, s{sT+3}, 8\ns_add_u32 s{sT+2}, s{sT+2}, s{sT+3}\ns_mul_i32 s{sSo}, s{sT+2}, 1280')
    a.e(f's_lshl_b32 s{sT+2}, s{sRB}, 5\ns_add_u32 s{sT+2}, s{sT+2}, s{sT}\ns_lshl_b32 s{sSs}, s{sT+2}, 6\ns_add_u32 s{sSs}, s{sSs}, {ST_OFF}')
    a.e(f'v_lshrrev_b32 v{q}, 4, v{vL}\ns_mov_b32 s{sT+5}, 81920\nv_mul_lo_u32 v{q+1}, s{sT+5}, v{q}\nv_and_b32 v{q+2}, 15, v{vL}\nv_lshlrev_b32 v{q+2}, 4, v{q+2}\nv_add3_u32 v{vAO+7}, v{q+2}, v{q+1}, s{sT+4}')
    a.e(f'v_lshl_add_u32 v{vAO+8}, v{q}, 4, s{sT+4}')
def aux_setup2(a):
    q = 184
    a.e(f'v_lshrrev_b32 v{q}, 5, v{vL}\nv_lshlrev_b32 v{q}, 4, v{q}\nv_bfe_u32 v{q+1}, v{vL}, 4, 1\nv_lshl_add_u32 v{q}, v{q+1}, 2, v{q}')
    a.e(f'v_bfe_u32 v{q+1}, v{vL}, 2, 2\nv_add_u32 v{q}, v{q}, v{q+1}\nv_mul_u32_u24 v{q}, 160, v{q}\nv_add_u32 v{q}, s{sAUXm}, v{q}')
    a.e(f'v_and_b32 v{q+1}, 3, v{vL}\nv_lshl_add_u32 v{vAO+5}, v{q+1}, 4, v{q}\nv_lshl_add_u32 v{vAO+6}, v{q+1}, 3, v{q}')

def unc_vm(text):
    def op(a): a.e(text); a.vm_issued -= 1
    return op
def unc_lg(text):
    def op(a): a.e(text); a.lg_issued -= 1
    return op
def pack_dma(st):
    o = []
    for i in range(5):
        def op(a, i=i):
            if i in (0, 4): a.e(f's_add_u32 m0, s{sAUXm}, {4096 if i else 0}')
            st['pk'] = a.vm(f'buffer_load_dwordx4 v{vAO+i}, {srd(SW2)}, s{sPo} offen offset:{(1024*i)%4096} {opt("ntp", "")} lds')
        o.append(op)
    return o
def pack_reads(st):
    o = [lambda a: a.wait(vm=st['pk'])]
    for ct in range(5):
        for h in range(2):
            t = (f'ds_read_b64_tr_b16 v[{vPK+4*ct+2*h}:{vPK+4*ct+2*h+1}], v{vAO+5} offset:{(ct>>1)*64+(ct&1)*8+h*1280}' if ct < 4 else
                 f'ds_read_b64_tr_b16 v[{vPK+4*ct+2*h}:{vPK+4*ct+2*h+1}], v{vAO+6} offset:{128+h*1280}')
            o.append(lambda a, t=t, ct=ct: st.__setitem__(('pr', ct), a.lg(t)))
    return o
def pack_stores(st):
    o = []
    for ct in range(5):
        def op(a, ct=ct):
            a.wait(lg=st[('pr', ct)])
            if ct == 4: a.e(f's_add_u32 s{sPs}, s{sPs}, 4096')
            st['ps'] = a.vm(f'buffer_store_dwordx4 v[{vPK+4*ct}:{vPK+4*ct+3}], v{vAO+9}, {srd(SWS)}, s{sPs} offen offset:{(1024*ct)%4096} sc1')
        o.append(op)
    return o
def aux_publish(st):
    g = 186
    def op(a):
        a.e(f'v_mov_b32 v{g+3}, s{sTAG}\ns_mov_b32 exec_lo, 0x00010001\ns_mov_b32 exec_hi, 0x00010001')
        a.vm(f'buffer_store_dwordx4 v[{g}:{g+3}], v{vAO+8}, {srd(SWS)}, s{sSs} offen sc1')
        a.wait(vm=st['ps'])
        a.e('s_mov_b64 exec, 1')
        a.vm(f'buffer_store_dword v{g+3}, v{vAO+9}, {srd(SWS)}, s{sPf} offen sc1')
        a.e('s_mov_b64 exec, -1'); stamp(a, 'pf')
    return op
def stats_loads(st):
    return [lambda a, i=i: st.__setitem__('sl', a.vm(f'buffer_load_dwordx4 v[{vSD+4*i}:{vSD+4*i+3}], v{vAO+7}, {srd(SX)}, s{sSo} offen offset:{256*i}')) for i in range(5)]
def stats_proc(st):
    q = 180; g = 186; d = vSD
    o = [lambda a: a.wait(vm=st['sl']), f's_mov_b32 s{sT}, 0xbf803f80']
    o += [f'v_mov_b32 v{q+k}, 0' for k in range(3)]
    o += [f'v_dot2c_f32_bf16 v{q}, s{sONES}, v{d+r}\nv_dot2c_f32_bf16 v{q+1}, v{d+r}, v{d+r}\nv_dot2c_f32_bf16 v{q+2}, s{sT}, v{d+r}' for r in range(20)]
    for sh in (8, 4, 2, 1):
        o += [f'v_add_f32_dpp v{q+k}, v{q+k}, v{q+k} row_ror:{sh} row_mask:0xf bank_mask:0xf' for k in range(3)]
    o += L(f'v_mul_f32 v{q}, {fhex(1/640)}, v{q}\nv_mul_f32 v{q+1}, {fhex(1/640)}, v{q+1}')
    o += L(f'v_fma_f32 v{q+1}, -v{q}, v{q}, v{q+1}\nv_max_f32 v{q+1}, 0, v{q+1}\nv_add_f32 v{q+1}, {fhex(1e-5)}, v{q+1}')
    o += L(f'v_rsq_f32 v{q+3}, v{q+1}\nv_sqrt_f32 v{g+1}, v{q+1}\nv_sub_f32 v{g}, 0, v{q}\nv_mul_f32 v{g+2}, v{q+2}, v{q+3}')
    return o

def nonce_pub(a):
    if opt('wsb', 0): a.e(f's_add_u32 s80, s80, {opt("wsb", 0) << 20}\ns_addc_u32 s81, s81, 0')
    a.e(mk_srd(SWS, 80, WS_END)); a.e(mk_srd(SOUT, 76, 2048*1280))
    a.e(f's_mov_b64 s[{sB1}:{sB1+1}], s[70:71]\ns_mov_b64 s[{sB2}:{sB2+1}], s[74:75]\ns_mov_b64 s[{sDBG}:{sDBG+1}], s[78:79]')
    ln = label('non')
    a.e(f's_or_b32 s{sT}, s2, s{sW}\ns_cmp_lg_u32 s{sT}, 0\ns_cbranch_scc1 {ln}')
    a.e(f's_memrealtime s[{sT+1}:{sT+2}]\ns_waitcnt lgkmcnt(0)\ns_or_b32 s{sT}, s{sT+1}, 1')
    a.e(f'v_mov_b32 v{vT}, 0\nv_mov_b32 v{vT+1}, s{sT}')
    a.e(f'global_store_dword v{vT}, v{vT+1}, s[{sDBG}:{sDBG+1}] sc1'); a.vm_issued -= 1
    a.e(f'{ln}:')

def setup2(a, t):
    a.e(f's_mov_b32 s{sONES}, 0x3f803f80')
    a.e(f's_sub_u32 s{sT+2}, 32, s{sRB}\ns_cmp_eq_u32 s{sRB}, 0\ns_cselect_b32 s{sT+2}, 16, s{sT+2}')
    a.e(f's_cmp_eq_u32 s{sZ}, 1\ns_cselect_b32 s{sT1}, s{sT+2}, s{sRB}\ns_mov_b32 s{sC}, s{sC8}')
    a.e(f's_mul_i32 s{sTAU}, s{sW}, 14\ns_cmp_eq_u32 s{sW}, 3\ns_cselect_b32 s{sTAU}, 41, s{sTAU}')
    a.e(f'v_and_b32 v{vT}, 31, v{vL}\nv_lshrrev_b32 v{vT+1}, 5, v{vL}')
    a.e(f'v_bfe_u32 v{vT+2}, v{vL}, 1, 3\nv_xor_b32 v{vT+2}, v{vT+2}, v{vT+1}')
    a.e(f'v_lshlrev_b32 v{vT+3}, 7, v{vT}\nv_add_u32 v{vT+3}, s{sMA}, v{vT+3}\nv_lshl_add_u32 v{vAR[0]}, v{vT+2}, 4, v{vT+3}')
    for s in range(1, 4): a.e(f'v_xor_b32 v{vAR[s]}, {s<<5}, v{vAR[0]}')
    a.e(f'v_bfe_u32 v{vT+4}, v{vL}, 2, 2\nv_lshl_add_u32 v{vT+2}, v{vT+1}, 3, v{vT+4}\nv_mul_u32_u24 v{vT+2}, {t.pitch}, v{vT+2}')
    a.e(f'v_bfe_u32 v{vT+3}, v{vL}, 4, 1\nv_lshl_add_u32 v{vT+2}, v{vT+3}, 5, v{vT+2}')
    a.e(f'v_and_b32 v{vT+3}, 3, v{vL}\nv_lshl_add_u32 v{vT+2}, v{vT+3}, 3, v{vT+2}\nv_add_u32 v{vT+2}, {BBASE}, v{vT+2}')
    if t.nG == 2: a.e(f'v_lshrrev_b32 v{vT+4}, 1, v{vT+4}')
    for i in range(t.nG):
        a.e(f's_add_u32 s{sT}, s{sW}, {i}\ns_and_b32 s{sT}, s{sT}, {t.nG-1}')
        a.e(f'v_xor_b32 v{vT+3}, s{sT}, v{vT+4}\nv_lshl_add_u32 v{vBR[i]}, v{vT+3}, 6, v{vT+2}')
        a.e(f's_mul_i32 s{sH[i]}, s{sROW}, 54\ns_add_u32 s{sH[i]}, s{sH[i]}, s{sG0}\ns_add_u32 s{sH[i]}, s{sH[i]}, s{sT}\ns_lshl_b32 s{sH[i]}, s{sH[i]}, 11')
    a.e(f's_lshl_b32 s{sFL}, s2, 2\ns_add_u32 s{sFL}, s{sFL}, s{sW}\ns_lshl_b32 s{sFL}, s{sFL}, 7\ns_add_u32 s{sFL}, s{sFL}, {F_OFF}')
    a.e(f'v_and_b32 v{vT}, 15, v{vL}\nv_bfe_u32 v{vT+1}, v{vL}, 4, 1\nv_mov_b32 v{vT+2}, s{sONES}\nv_cmp_eq_u32 vcc, v{vT}, v{vT+1}\nv_cndmask_b32 v{vT+2}, 0, v{vT+2}, vcc')
    for k in range(4): a.e(f'v_accvgpr_write_b32 a{192+k}, v{vT+2}')
    a.e(f'v_lshlrev_b32 v{vL16}, 4, v{vL}')
    a.e(f'v_lshlrev_b32 v{vHO}, 10, v{vT+1}\nv_lshrrev_b32 v{vT+1}, 5, v{vL}\nv_lshl_add_u32 v{vHO}, v{vT+1}, 8, v{vHO}\nv_lshl_add_u32 v{vHO}, v{vT}, 4, v{vHO}')

vSG = 244
def gen_D(a, t, tmp):
    q = tmp
    a.e(f'v_and_b32 v{q}, 31, v{vL}\nv_lshrrev_b32 v{q+1}, 5, v{vL}\nv_lshlrev_b32 v{q+1}, 3, v{q+1}\nv_and_b32 v{q+3}, 1, v{vL}')
    a.e(f'v_cmp_eq_u32 vcc, 0, v{q+3}\nv_cndmask_b32 v{q+2}, 0, 0.5, vcc\nv_cndmask_b32 v{vSG}, 1.0, -1.0, vcc')
    a.e(f's_mul_i32 s{sT+1}, s{sW}, {5*2048}\ns_add_u32 s{sT+1}, s{sT+1}, {t.DREG}\nv_add_u32 v{q+3}, s{sT+1}, v{vL16}')
    a.e(f's_lshl_b32 s{sT}, s{sDT}, 4\ns_add_u32 s{sT}, s{sT}, 1\nv_add_u32 v{q+4}, s{sT}, v{q}\nv_cvt_f32_u32 v{q+4}, v{q+4}\nv_mul_f32 v{q+4}, {fhex(1/640)}, v{q+4}')
    for k5 in range(5):
        a.e(f's_mul_i32 s{sT}, s{sW}, 5\ns_add_u32 s{sT}, s{sT}, {k5}\ns_and_b32 s{sT+2}, s{sT}, 1\ns_lshr_b32 s{sT}, s{sT}, 1\ns_lshl_b32 s{sT}, s{sT}, 5\ns_add_u32 s{sT}, s{sT}, s{sT+2}')
        o = q + 8
        a.e(f'v_add_u32 v{q+6}, s{sT}, v{q+1}\nv_cvt_f32_u32 v{q+6}, v{q+6}\nv_fma_f32 v{o}, v{q+6}, v{q+4}, v{q+2}')
        for i in range(1, 8): a.e(f'v_fmamk_f32 v{o+i}, v{q+4}, {fhex(float(16*(i>>2) + 2*(i&3)))}, v{o}')
        for i in range(8): a.e(f'v_cos_f32 v{o+8+i}, v{o+i}\nv_sin_f32 v{o+i}, v{o+i}')
        for ip in range(4): a.e(cvtpk(o+8+ip, o+8+2*ip, o+9+2*ip))
        a.lg(f'ds_write_b128 v{q+3}, v[{o+8}:{o+11}] offset:{(k5*2)*1024}')
        for ip in range(4): a.e(cvtpk(o+16+ip, o+2*ip, o+1+2*ip))
        a.lg(f'ds_write_b128 v{q+3}, v[{o+16}:{o+19}] offset:{(k5*2+1)*1024}')

import math
def bf16(x):
    u = struct.unpack('<I', struct.pack('<f', x))[0]
    return ((u + 0x7fff + ((u >> 16) & 1)) >> 16) & 0xffff
def F_table():
    w = []
    for fn in (math.cos, math.sin, lambda x: -math.sin(x)):
        for f in range(2):
            for l in range(64):
                t1 = l & 31; hi = l >> 5
                v = [bf16(round(fn(2*math.pi*((t1*(16*f + 8*(i >> 2) + 4*hi + (i & 3))) % 32)/32), 12)) for i in range(8)]
                w += [v[2*k] | (v[2*k+1] << 16) for k in range(4)]
    return w
def load_F():
    return [f'global_load_dwordx4 {aF(k)}, v{vL16}, s[82:83] offset:{1024*k}' for k in range(4)] + ['s_add_u32 s82, s82, 4096\ns_addc_u32 s83, s83, 0'] + [f'global_load_dwordx4 {aF(4+k)}, v{vL16}, s[82:83] offset:{1024*k}' for k in range(2)]

def rot_ids(a):
    for j in range(4):
        a.e(f's_add_u32 s{sT}, s{sW}, {1+j}\ns_and_b32 s{sT+1}, s{sT}, 1\ns_bfe_u32 s{sT}, s{sT}, 0x10001')
        a.e(f's_lshl_b32 s{sT}, s{sT}, 5\ns_add_u32 s{sT}, s{sT}, s{sT1}\ns_lshl_b32 s{sT+1}, s{sT+1}, 10\ns_add_u32 s{sHB[j]}, s{sT}, s{sT+1}')
def gen_TW(a, t, sT=sT):
    a.e(f'v_and_b32 v{t}, 15, v{vL}\nv_lshrrev_b32 v{t+1}, 4, v{vL}\ns_lshl_b32 s{sT}, s{sW}, 2\nv_add_u32 v{t+1}, s{sT}, v{t+1}')
    a.e(f'v_sub_u32 v{t+2}, 32, v{t+1}\nv_cmp_eq_u32 vcc, 0, v{t+1}\nv_cndmask_b32 v{t+2}, v{t+2}, 16, vcc')
    a.e(f's_mov_b32 s{sT+1}, 0x3a000000')
    a.e(f's_cmp_ge_u32 s{sC}, 4\ns_cselect_b32 s{sT+1}, s{sT+1}, 0xba000000')
    a.e(f'v_cvt_f32_u32 v{t+1}, v{t+1}\nv_cvt_f32_u32 v{t+2}, v{t+2}\nv_add_f32 v{t+3}, {fhex(32.0)}, v{t+1}\nv_add_f32 v{t+4}, {fhex(32.0)}, v{t+2}')
    s2r = [t+1, t+3, t+2, t+4]
    a.e(f'v_lshlrev_b32 v{t}, 6, v{t}')
    for j in range(4):
        a.e(f'v_add_u32 v{t+5}, s{sHB[j]}, v{t}\nv_cvt_f32_u32 v{t+5}, v{t+5}\nv_mul_f32 v{t+5}, s{sT+1}, v{t+5}')
        for w in range(4): a.e(f'v_mul_f32 v{t+6+w}, v{t+5}, v{s2r[w]}')
        for w in range(4): a.e(f'v_cos_f32 v{t+10+w}, v{t+6+w}\nv_sin_f32 v{t+6+w}, v{t+6+w}')
        for w in range(4): a.e(cvtpk(t+6+w, t+10+w, t+6+w))
        for w in range(4): a.e(f'v_accvgpr_write_b32 a{aTW+4*j+w}, v{t+6+w}')

def check_loop(a, load_text, vval, nl, cnt):
    ok, lp = label('ok'), label('lp')
    if nl < 64: a.e(f's_mov_b32 exec_lo, {hex(((1<<nl)-1)&0xffffffff)}\ns_mov_b32 exec_hi, {hex(((1<<nl)-1)>>32)}')
    a.e(f'v_cmp_ne_u32 vcc, s{sTAG}, v{vval}\ns_mov_b32 s{cnt}, 0\ns_cbranch_vccz {ok}')
    a.e(f'{lp}:\ns_sleep {opt("slp", 1)}')
    a.e(load_text); a.vm_issued -= 1
    a.e(f's_waitcnt vmcnt(0)\nv_cmp_ne_u32 vcc, s{sTAG}, v{vval}\ns_add_u32 s{cnt}, s{cnt}, 1\ns_cmp_gt_u32 s{cnt}, 100000\ns_cbranch_scc1 {ok}\ns_cbranch_vccnz {lp}')
    a.e(f'{ok}:')
    if nl < 64: a.e('s_mov_b64 exec, -1')

def nonce_check(a, tok):
    ok, lp = label('nok'), label('nlp')
    a.wait(vm=tok)
    a.e(f'v_readfirstlane_b32 s{sTAG}, v{vNON}\ns_mov_b32 s{sPC}, 0\ns_cmp_lg_u32 s{sTAG}, 0\ns_cbranch_scc1 {ok}')
    a.e(f'{lp}:\nv_mov_b32 v{vNON}, 0')
    a.e(f'global_load_dword v{vNON}, v{vNON}, s[{sDBG}:{sDBG+1}] sc1'); a.vm_issued -= 1
    a.e(f's_waitcnt vmcnt(0)\nv_readfirstlane_b32 s{sTAG}, v{vNON}\ns_add_u32 s{sPC}, s{sPC}, 1\ns_cmp_gt_u32 s{sPC}, 100000\ns_cbranch_scc1 {ok}')
    a.e(f's_cmp_eq_u32 s{sTAG}, 0\ns_cbranch_scc1 {lp}\n{ok}:')

SLOW = []
def adapt(a, text):
    return a.vm(text + ' sc1')
def set_flag_h(a, vt):
    a.e(f'v_mov_b32 v{vt}, 0\nv_mov_b32 v{vt+1}, s{sTAG}\ns_mov_b64 exec, 1')
    adapt(a, f'buffer_store_dword v{vt+1}, v{vt}, {srd(SWS)}, s{sFH} offen')
    a.e('s_mov_b64 exec, -1')
def set_flag(a, word, vt):
    a.e(f'v_mov_b32 v{vt}, {4*word}\nv_mov_b32 v{vt+1}, s{sTAG}\ns_mov_b64 exec, 1')
    a.vm(f'buffer_store_dword v{vt+1}, v{vt}, {srd(SWS)}, s{sFL} offen sc1')
    a.e('s_mov_b64 exec, -1')

def w2_load_ops(slot, st, cts=range(5)):
    ops = []
    for ct in cts:
        def op(a, ct=ct):
            vo = st['vL16d'] if slot == 13 else st.get('vW', vL16)
            need = 5120*slot + (4096 if ct == 4 else 0)
            if st.get('w2cur') != need: a.e(f's_add_u32 s{sW2o}, s{sUS}, {need}'); st['w2cur'] = need
            st['w2'][(slot, ct)] = a.vm(f'buffer_load_dwordx4 {W2(slot,ct)}, v{vo}, {srd(SWS)}, s{sW2o} offen offset:{(1024*ct)%4096} sc1')
        ops.append(op)
    return ops

vDS = 195
def P2(d, h): return f'v[{128+32*d+16*h}:{143+32*d+16*h}]'
def PE(p, par): b = 228 + 8*(p & 1) + 4*par; return b
def pass1(a, t, st):
    nG = t.nG; NK = 40 if nG == 4 else 42
    def dinfo(ks): return (ks & 1, (ks - 2) >> 1) if (nG == 2 and ks >= 2) else None
    def rdW(ks, i):
        c, s = divmod(ks, 4); o = []
        if i < nG:
            if ks >= 40: return []
            for h in range(2):
                o.append(lambda a, h=h: st['w'].__setitem__((ks, i), a.lg(f'ds_read_b64_tr_b16 {WB(ks&1,i,h)}, v{vBR[i]} offset:{(c%4)*t.bslot + s*16*t.pitch + h*4*t.pitch}')))
        elif dinfo(ks):
            d, p = dinfo(ks)
            o.append(lambda a: st['w'].__setitem__((ks, i), a.lg(f'ds_read_b128 {WB(ks&1,i)}, v{vDS} offset:{(((p%10)*2 + i-2)*2 + d)*1024}')))
        return o
    def rdA(c, s):
        return f'ds_read_b128 {X(4*c+s)}, v{vAR[s]} offset:{ARING + (c%4)*16384}'
    st['w'] = {}
    if nG == 2: a.e(f'v_add_u32 v{vDS}, {t.DREG}, v{vL16}\ns_mov_b32 s{sE+2}, 0x05040100\ns_mov_b32 s{sE+3}, 0x07060302')
    a.wait(vm=st['dma'][0], lg=a.lg_issued)
    a.e('s_barrier')
    stamp(a, 2)
    a.e(rdA(0, 0))
    for i in range(4): run(a, rdW(0, i))
    for s in range(1, 4): a.e(rdA(0, s))
    S = Sched(); first = {}
    for ks in range(NK):
        c, s = divmod(ks, 4); buf = ks & 1
        for i in range(4):
            pre = []
            if i == 0 and s == 3 and c < 9:
                pre.append(lambda a, c=c: (a.wait(vm=st['dma'][c+1]), a.e('s_barrier')))
            if i in (0, 2):
                pre.append(lambda a, ks=ks, i=i: a.wait(lg=st['w'][(ks, i+1)]) if (ks, i+1) in st['w'] else None)
            m = None
            if i < nG:
                if ks < 40: m = f'v_mfma_f32_32x32x16_bf16 {ACC1(i)}, {WB(buf,i)}, {X(ks)}, {"0" if ks == 0 else ACC1(i)}'
            elif dinfo(ks):
                d, p = dinfo(ks); b = PE(p, i-2)
                m = f'v_mfma_f32_32x32x16_bf16 {P2(d, i-2)}, v[{b}:{b+3}], {WB(buf,i)}, {"0" if p == 0 else P2(d, i-2)}'
            idx = S.add(m, pre)
            if i == 0: first[ks] = idx
            if i == 0 and ks < 37: S.put(idx, [f'v_mfma_f32_16x16x32_bf16 {aCS}, {aSEL}, {WB(buf,0)}, {"0" if ks == 0 else aCS}'])
        if ks < NK - 1:
            rd = [rdA(c+1, 0)] if (s == 3 and c < 9) else []
            k = len(rd)
            for i in range(4): rd += rdW(ks+1, i)
            if nG == 4: S.put(first[ks], rd[:k+3]); S.put(first[ks]+1, rd[k+3:7]); S.put(first[ks]+2, rd[7:])
            else: S.put(first[ks], rd[:k+3]); S.put(first[ks]+1, rd[k+3:])
            if s == 3 and c < 9: S.put(first[ks]+3, [rdA(c+1, 1)])
            if s == 0 and 0 < c < 10: S.put(first[ks]+3, [rdA(c, 2), rdA(c, 3)])
        if nG == 2 and ks & 1 and ks < 40:
            p = ks >> 1; xa = 196 + 4*((ks-1) % 8); xb = 196 + 4*(ks % 8)
            pm = []
            for par in range(2):
                for k, src in enumerate((xa, xa+2, xb, xb+2)): pm.append(f'v_perm_b32 v{PE(p,par)+k}, v{src+1}, v{src}, s{sE+2+par}')
            S.put(first[ks]+2, pm[:4]); S.put(first[ks]+3, pm[4:])
    if nG == 2:
        for d in range(2): S.spread([f'v_mul_f32 v{128+32*d+k}, v{vSG}, v{128+32*d+k}' for k in range(32)], first[21+d]+1, first[22+d]+1)
    exb = 160 if nG == 4 else 84
    ex = []
    for n in range(3):
        for h in range(2):
            ex.append(lambda a, n=n, h=h: st.__setitem__('ex', a.lg(f'ds_read_b64_tr_b16 v[{exb+4*n+2*h}:{exb+1+4*n+2*h}], v{vBR[0]} offset:{(9%4)*t.bslot + (n+1)*16*t.pitch + h*4*t.pitch}')))
    mm = [lambda a: a.wait(lg=st['ex'])] + [f'v_mfma_f32_16x16x32_bf16 {aCS}, {aSEL}, v[{exb+4*n}:{exb+3+4*n}], {aCS}' for n in range(3)]
    S.put(first[35]+3, ex[:3]); S.put(first[36]+3, ex[3:]); S.put(first[37], mm); st['cs_slot'] = first[37] + 3; st['bar_slot'] = first[38] + 2
    gaps = []
    for ks in range(40):
        gaps += [(ks, first[ks]), (ks, first[ks]+2)] + ([(ks, first[ks]+3)] if ks < opt('ncu', 6) else [])
    gi = 0
    for c in range(st['next_chunk'], 10):
        ops = dma_ops(t, c, st)
        A = ops[1:5]; B = ops[6:-1]
        eA = (c-3)*4 if c >= 4 else 0
        eB = (c-2)*4 - 1 if c >= 4 else 0
        lo = max(0, (c - opt('la', 2) - 1)*4 + 1)
        for k, op in enumerate(A + B):
            e = max(eA if k < 4 else eB, lo)
            while gaps[gi][0] < e: gi += 1
            pre = [ops[0]] if k == 0 else ([ops[5]] if k == 4 else [])
            post = [ops[-1]] if k == 3 + len(B) else []
            g = gaps[gi][1]
            if pre: S.put(g - 1 if g > 0 else g, pre)
            if k == 0: st.setdefault('grp', {})[c] = (g - 1 if g > 0 else g, pre[0], gaps[gi][0])
            S.put(g, [op] + post); gi += 1
        assert gaps[gi-1][0] < c*4 - 1, (c, gaps[gi-1])
    return S, first

AUGW = None
def h_aug_x(tmp):
    p, q2 = tmp+4, tmp+5
    o = [cvtpk(p, vNM, vSDV), f'v_lshlrev_b32 v{tmp+6}, 16, v{p}', f'v_and_b32 v{tmp+7}, 0xffff0000, v{p}',
         f'v_sub_f32 v{tmp+6}, v{vNM}, v{tmp+6}', f'v_sub_f32 v{tmp+7}, v{vSDV}, v{tmp+7}', cvtpk(q2, tmp+6, tmp+7)]
    o += [f'v_mov_b32 v{tmp+k}, 0' for k in range(4)]
    o += [f's_mov_b32 s{sT+3}, 0x05040100\ns_mov_b32 exec_hi, 0\nv_perm_b32 v{tmp}, v{q2}, v{p}, s{sT+3}\nv_mov_b32 v{tmp+1}, v{p}\nv_lshrrev_b32 v{tmp+2}, 16, v{q2}\ns_mov_b32 exec_hi, -1']
    return o
def h_aug_w(st, i, tmp, vtb):
    b = AUGW[i]
    rd = [lambda a: st['tb'].__setitem__(i, a.lg(f'ds_read2_b32 v[{b+4}:{b+5}], v{vtb} offset0:0 offset1:128'))]
    mk = [lambda a: a.wait(lg=st['tb'][i]), cvtpk(b, b+4, b+4), cvtpk(b+2, b+5, b+5), f'v_and_b32 v{b+1}, 0xffff0000, v{b}', f'v_mov_b32 v{b+3}, 0',
          f'v_sub_f32 v{b+1}, v{b+4}, v{b+1}', cvtpk(b+1, b+1, b+5)]
    mf = [f'v_mfma_f32_32x32x16_bf16 {ACC1(i)}, v[{b}:{b+3}], v[{tmp}:{tmp+3}], {ACC1(i)}']
    return rd, mk, mf
def h_fin(st, i, u):
    acc = 32 + 16*i + 8*u; o = []
    for k in range(8): o.append(f'v_max_f32 v{acc+k}, 0, v{acc+k}')
    for k in range(8): o.append(f'v_mul_f32 v{acc+k}, v{vR}, v{acc+k}')
    for k in range(8): o.append(f'v_mul_f32 v{acc+k}, v{acc+k}, v{acc+k}')
    for k in range(4): o.append(cvtpk(acc+k, acc+2*k, acc+2*k+1))
    if opt('nohst', 0): o.append(lambda a: st.__setitem__('hst', a.vm_issued))
    else: o.append(lambda a: st.__setitem__('hst', adapt(a, f'buffer_store_dwordx4 v[{acc}:{acc+3}], v{vHO}, {srd(SWS)}, s{sH[i]} offen offset:{512*u}')))
    return o

class Rec:
    def __init__(self): self.ops = []; self.tok = {}
    def e(self, text):
        ls = L(text); i = 0
        while i < len(ls):
            j = i + 1
            if ls[i].startswith('s_cmp') or ls[i].startswith('s_bitcmp') or ls[i].startswith('v_cmp'):
                while j < len(ls) and not (ls[j].startswith('s_cselect') or ls[j].startswith('s_cbranch') or ls[j].startswith('v_cndmask')): j += 1
                while j < len(ls) and (ls[j].startswith('s_cselect') or ls[j].startswith('s_cbranch') or ls[j].startswith('v_cndmask')): j += 1
            self.ops.append('\n'.join(ls[i:j])); i = j
    def lg(self, text): self.ops.append(text)
    def vm(self, text, key='t'):
        self.ops.append(lambda a: self.tok.__setitem__(key, a.vm(text)))
def merge(main, other):
    out = []; n, m = len(main), len(other); k = 0
    for i, op in enumerate(main):
        out.append(op)
        while k < m and (k + 1) * n <= (i + 1) * m + m - 1 and k * n <= i * m: out.append(other[k]); k += 1
    return out + other[k:]

def touch_ops(t, lo, hi, q=188):
    n = hi - lo
    o = [f'v_mov_b32 v{q+2}, {OOB}']
    o += L(f'v_and_b32 v{q}, 3, v{vL}\ns_lshl_b32 s{sPC}, s{sC8}, 2\nv_add_u32 v{q}, s{sPC}, v{q}\nv_mul_u32_u24 v{q}, 640, v{q}\nv_lshrrev_b32 v{q+1}, 2, v{vL}\nv_add3_u32 v{q}, v{q}, v{q+1}, {lo}\nv_lshlrev_b32 v{q}, 7, v{q}')
    o += [f'v_cmp_gt_u32 vcc, {4*n}, v{vL}\nv_cndmask_b32 v{q}, v{q+2}, v{q}, vcc', f's_mul_i32 s{sPC}, s{sROW}, 1280']
    o += [f'buffer_load_dword v{vPF}, v{q}, {srd(SX)}, s{sPC} offen {opt("ntx", "")}']
    if t.nG == 4: o += L(f'v_lshrrev_b32 v{q}, 1, v{vL}\nv_and_b32 v{q+1}, 1, v{vL}')
    else: o += L(f'v_mov_b32 v{q}, v{vL}\nv_mov_b32 v{q+1}, 0')
    o += L(f'v_lshlrev_b32 v{q}, 4, v{q}\ns_and_b32 s{sPC}, s{sRB}, 3\ns_lshl_b32 s{sPC}, s{sPC}, 2\ns_add_u32 s{sPC}, s{sPC}, s{sW}\ns_add_u32 s{sPC}, s{sPC}, {64*lo}')
    o += L(f'v_add_u32 v{q}, s{sPC}, v{q}\nv_mul_u32_u24 v{q}, 0xd80, v{q}\nv_lshl_add_u32 v{q}, v{q+1}, 7, v{q}\ns_lshl_b32 s{sPC}, s{sG0}, 6')
    o += [f'v_cmp_gt_u32 vcc, {(8 if t.nG == 4 else 4)*n}, v{vL}\nv_cndmask_b32 v{q}, v{q+2}, v{q}, vcc']
    o += [f'buffer_load_dword v{vPF}, v{q}, {srd(SW1)}, s{sPC} offen {opt("ntw", "")}']
    assert n <= 8
    return o

vTX, vTW = 193, 194; sTX, sTW = 52, 63
def roll_setup(t, n):
    q = 188
    o = L(f'v_mov_b32 v{q+2}, {OOB}\nv_and_b32 v{q+3}, 3, v{vL}\nv_lshrrev_b32 v{q+1}, 2, v{vL}\ns_mul_i32 s{sPC}, s{sZ}, 6\ns_add_u32 s{sPC}, s{sPC}, s{sC8}\ns_mul_i32 s{sPC}, s{sPC}, 3')
    if opt('rx', 0):
        o += L(f'v_add_u32 v{q}, s{sPC}, v{q+3}\nv_min_u32 v{q}, 31, v{q}\nv_mul_u32_u24 v{q}, 640, v{q}\nv_add_lshl_u32 v{q}, v{q}, v{q+1}, 7')
        o += [f'v_cmp_gt_u32 vcc, {4*n}, v{vL}\nv_cndmask_b32 v{q}, v{q+2}, v{q}, vcc', f'v_cmp_gt_u32 vcc, 3, v{q+3}\nv_cndmask_b32 v{vTX}, v{q+2}, v{q}, vcc', f's_mul_i32 s{sTX}, s{sROW}, 1280']
    o += L(f's_mul_i32 s{sTW}, s{sZ}, 12\ns_add_u32 s{sTW}, s{sTW}, s{sC8}\ns_add_u32 s{sTW}, s{sTW}, 12\ns_lshl_b32 s{sTW}, s{sTW}, 7\ns_add_u32 s{sPC}, s{sZ}, 2')
    o += [f's_cmp_lt_u32 s{sC8}, s{sPC}\ns_cselect_b32 s{sTW}, s{sTW}, {OOB}', f'v_mov_b32 v{q}, s{sTW}', f's_lshl_b32 s{sPC}, s{sG0}, 6', f'v_lshl_add_u32 v{vTW}, v{q+3}, 7, s{sPC}']
    o += [f'v_cmp_eq_u32 vcc, 2, v{q+3}\nv_cndmask_b32 v{vTW}, v{vTW}, v{q}, vcc', f'v_cmp_eq_u32 vcc, 3, v{q+3}\nv_cndmask_b32 v{vTW}, v{vTW}, v{q+2}, vcc']
    o += L(f's_lshl_b32 s{sPC}, s{sRB}, 2\ns_add_u32 s{sPC}, s{sPC}, s{sW}\nv_lshl_add_u32 v{q}, v{q+1}, 6, s{sPC}\nv_mul_u32_u24 v{q}, 0xd80, v{q}\nv_add_u32 v{vTW}, v{vTW}, v{q}')
    o += [f'v_cmp_gt_u32 vcc, {4*n}, v{vL}\nv_cndmask_b32 v{vTW}, v{q+2}, v{vTW}, vcc', f's_mov_b32 s{sTW}, 0']
    return o
def roll(st, lo):
    def op1(a):
        d = lo - st.get('roll', 0); st['roll'] = lo
        if d: a.e((f's_add_u32 s{sTX}, s{sTX}, {128*d}\n' if opt('rx', 0) else '') + f's_add_u32 s{sTW}, s{sTW}, {64*3456*d}')
        if opt('rx', 0): a.vm(f'buffer_load_dword v{vPF}, v{vTX}, {srd(SX)}, s{sTX} offen {opt("ntx", "")}')
    return [op1, f'buffer_load_dword v{vPF}, v{vTW}, {srd(SW1)}, s{sTW} offen {opt("ntw", "")}']

def build_type(a, t):
    st = {'dma': {}, 'w2': {}, 'tb': {}}
    nG, nD = t.nG, t.nD
    XV[0] = (nG == 2)
    rs = [x.split('@') for x in opt('rs', '1@s0').split(',') if x]
    at = lambda p: [o for c_, p_ in rs if p_ == p for o in roll(st, int(c_))]
    prologue_t(a, t, st)
    if nG == 4: run(a, at('s0'))
    run(a, dma_ops(t, 0, st)[5 if opt('ae', 1) else 0:])
    if nG == 4 and opt('rl', 0) == 1: run(a, roll_setup(t, opt('rn', 9)))
    stamp(a, 'p2')
    if nG == 4:
        stats_setup(a)
        if opt('se', 1): run(a, stats_loads(st))
    if nG == 4 and opt('rl', 0) == 2: run(a, roll_setup(t, opt('rn', 9)))
    if opt('bl', 0):
        a.e(f's_lshl_b32 s{sT+1}, s{sG0}, 6\nv_and_b32 v{vT+6}, {16*t.nG-1}, v{vL}\nv_lshl_add_u32 v{vT+6}, v{vT+6}, 2, s{sT+1}')
        a.vm(f'global_load_dword v{vT+7}, v{vT+6}, s[70:71]')
        a.e(f'v_bfe_u32 v{vT+5}, v{vL}, 0, 3\nv_mul_u32_u24 v{vT+5}, 0xa0, v{vT+5}')
        a.vm(f'global_load_dword v{vPF}, v{vT+5}, s[74:75]')
    a.e(mk_srd(SW2, 72, 1728*1280))
    nonce_pub(a)
    if opt('tlb', 21):
        sh = opt('tlb', 21)
        a.e(f'v_lshl_add_u32 v{vT}, v{vL}, 2, s{sW}\nv_lshlrev_b32 v{vT}, {sh}, v{vT}\ns_mov_b64 exec, {hex((1 << opt("tn", 2)) - 1)}')
        a.vm(f'buffer_load_dword v{vPF}, v{vT}, {srd(SWS)}, 0 offen sc1')
        a.e('s_mov_b64 exec, 3')
        a.vm(f'buffer_load_dword v{vPF}, v{vT}, {srd(SOUT)}, 0 offen sc1')
        a.e('s_mov_b64 exec, -1')
    stamp(a, 'p3')
    r = Rec()
    setup2(r, t)
    if nG == 4: aux_setup(r); aux_setup2(r)
    if nG == 2: gen_D(r, t, 96)
    rot_ids(r)
    if opt('twR', 0) if nG == 4 else opt('twS', 0): gen_TW(r, 96)
    main = r.ops
    vSA, vFA, vFV = vT+3, vT+4, vT+5
    st['vL16d'] = 192
    pre = L(f's_lshl_b32 s{sT}, s{sRB}, 2\ns_add_u32 s{sT}, s{sT}, s{sW}\ns_lshl_b32 s{sT}, s{sT}, 9\ns_add_u32 s{sT}, s{sT}, {ST_OFF}')
    pre += L(f'v_and_b32 v{vSA}, 31, v{vL}\nv_lshl_add_u32 v{vSA}, v{vSA}, 4, s{sT}')
    pre += L(f'v_add_u32 v{vFA}, s{sTAU}, v{vL}\nv_min_u32 v{vFA}, 53, v{vFA}')
    pre += L(f's_lshl_b32 s{sT}, s{sC}, 7\ns_add_u32 s{sT}, s{sT}, {PF_OFF}\nv_lshlrev_b32 v{vFA}, 10, v{vFA}\nv_add_u32 v{vFA}, s{sT}, v{vFA}')
    pre += L(f's_mul_i32 s{sUS}, s{sC}, 54\ns_add_u32 s{sUS}, s{sUS}, s{sTAU}\ns_mul_i32 s{sUS}, s{sUS}, 5120\ns_add_u32 s{sUS}, s{sUS}, {P_OFF}')
    pre += [f's_cmp_ge_u32 s{sW}, 2\ns_cselect_b32 s{sT}, {OOB}, 0', f'v_add_u32 v192, s{sT}, v{vL16}']
    vTB = [4, 5, 6, 7] if nG == 4 else [14, 15]; vRT = 3
    prep = L(f's_lshl_b32 s{sE+1}, s{sW}, 7\ns_add_u32 s{sE+1}, s{sE+1}, {TABR}\nv_and_b32 v{vT+6}, 31, v{vL}\nv_lshl_add_u32 v{vRT}, v{vT+6}, 2, s{sE+1}')
    for i in range(nG):
        prep += L(f's_add_u32 s{sE}, s{sW}, {i}\ns_and_b32 s{sE}, s{sE}, {nG-1}\ns_lshl_b32 s{sE}, s{sE}, 7\ns_add_u32 s{sE}, s{sE}, {TABC}\nv_lshl_add_u32 v{vTB[i]}, v{vT+6}, 2, s{sE}')
    prep += [f'v_lshrrev_b32 v{vT+6}, 5, v{vL}']
    nonl = [f'v_mov_b32 v{vNON}, 0', lambda a: st.__setitem__('non', a.vm(f'global_load_dword v{vNON}, v{vNON}, s[{sDBG}:{sDBG+1}] sc1'))]
    st['next_chunk'] = 2
    main = main + pre
    if nG == 4:
        n = len(main); c2 = n * opt('c2', 40) // 100; c3 = n * opt('c3', 50) // 100
        run(a, at('s1') + main[:c2] + at('s2') + main[c2:c3]); stamp(a, 'p4')
        run(a, merge(main[c3:], dma_ops(t, 1, st)) + nonl)
        sp = stats_proc(st); ps = pack_stores(st)
    else:
        n = len(main); c3 = n * opt('s3', 30) // 100
        run(a, main[:c3]); stamp(a, 'p4')
        run(a, merge(main[c3:], dma_ops(t, 1, st)) + nonl)
        tw2 = L(f's_mul_i32 s{sT}, s{sRB}, 10\ns_add_u32 s{sT}, s{sT}, s{sDT}\ns_lshl_b32 s{sT}, s{sT}, 1\ns_add_u32 s{sT}, s{sT}, s{sW}\ns_mul_i32 s{sT}, s{sT}, {54*128}\nv_lshlrev_b32 v64, 7, v{vL}')
        tw2 += [f's_mov_b32 exec_hi, 0x3fffff\nbuffer_load_dword v{vPF}, v64, {srd(SW2)}, s{sT} offen\ns_mov_b32 exec_hi, -1']
        if opt('tw2', 2) == 0: run(a, tw2)
    stamp(a, 1)
    S, first = pass1(a, t, st)
    NS = 4
    l = lambda ks: first[ks] + 3
    b1tab = L(f'v_lshlrev_b32 v{vT}, 16, v{vT+7}\nv_and_b32 v{vT+1}, 0xffff0000, v{vT+7}\nv_lshlrev_b32 v{vT+2}, 3, v{vL}\nv_add_u32 v{vT+2}, {TABB}, v{vT+2}\nds_write_b64 v{vT+2}, v[{vT}:{vT+1}]')
    S.spread(b1tab, first[3], l(3))
    S.put(l(opt('kn', 10)), [lambda a: nonce_check(a, st['non'])])
    if nG == 2 and opt('tw2', 2) > 0: S.put(l(opt('tw2', 2)), [lambda a: run(a, tw2)])
    if nG == 4:
        g_ = st['grp'][opt('ag', 3)]
        fl = S.slots[g_[0]]['fill']; fl.insert(fl.index(g_[1]), lambda a: run(a, pack_dma(st)))
        ka_ = g_[2]
        if not opt('se', 1):
            for k_, op_ in enumerate(stats_loads(st)): S.put(first[ka_ + k_] + 1, [op_])
        kb_ = opt('kb', 5)
        S.spread(pack_reads(st), first[kb_], l(kb_+1))
        if opt('dn', 1):
            S.put(first[kb_+1] + 3, [ps[0]])
            for k_, op_ in enumerate(ps[1:]): S.put(first[kb_+2+k_//2] + 1 + 2*(k_ & 1), [op_])
            e_ = kb_ + 4
        else:
            for k_, op_ in enumerate(ps): S.put(first[kb_+2+k_] + 1, [op_])
            e_ = kb_ + 6
        kd_ = opt('kd', 1) if opt('se', 1) else kb_ + 2
        S.put(l(kd_), sp[:5] + [lambda a: run(a, sp[5:25])]); S.spread(sp[25:], first[kd_+1], l(kd_+2))
        assert opt('kf', kb_ + 5) >= e_ and opt('kf', kb_ + 5) >= opt('kn', 10)
        S.put(l(opt('kf', kb_ + 5)), [aux_publish(st)])
        for c_, p_ in rs:
            if p_[0] != 's': S.put(l(int(p_)), roll(st, int(c_)))
    pfl = f'buffer_load_dword v{vFV}, v{vFA}, {srd(SWS)}, 0 offen sc1'
    stl = f'buffer_load_dwordx4 v[{vST}:{vST+3}], v{vSA}, {srd(SWS)}, 0 offen sc1'
    if nG == 2: S.spread(load_F(), l(13), l(16))
    sf = '' if nG == 4 else 'S'
    kq = opt('kq' + sf, 27 if nG == 4 else 30); kp = kq - 3
    early = opt('early', 1)
    S.put(l(opt('ks', 31)), [lambda a: st.__setitem__('stl', a.vm(stl))])
    S.put(l(kp if early else 38), [lambda a: st.__setitem__('pfl', a.vm(pfl))])
    pchk = lambda a: (a.wait(vm=st['pfl']), check_loop(a, pfl, vFV, 14, sPC), stamp(a, 'pc'))
    S.put(l(kq), [pchk if early else (lambda a: a.wait(vm=st['stl']))])
    allw = []
    for s_ in (range(14) if nG == 4 else list(range(3, 14)) + [0, 1, 2]): allw += w2_load_ops(s_, st)
    st['twq'] = []
    if opt('touchw', 0):
        nl_ = opt('tl', 16)
        tw = L(f's_bfe_u32 s{sT}, s2, 0x20003\nv_lshl_add_u32 v{vFA}, v{vL}, 2, s{sT}\nv_lshlrev_b32 v{vFA}, 7, v{vFA}\ns_mov_b32 s{sTX}, s{sUS}')
        S.put(l(kq), tw)
        nb_ = -(-130 // nl_)
        for j in range(nb_):
            n_ = min(nl_, 130 - j*nl_)
            op = f's_mov_b64 exec, {hex((1 << n_) - 1)}\nbuffer_load_dword v{vPF}, v{vFA}, {srd(SWS)}, s{sTX} offen sc1\ns_mov_b64 exec, -1\ns_add_u32 s{sTX}, s{sTX}, {nl_*512}'
            k_ = kq + 1 + opt('tstep', 3)*j
            if k_ < 40: S.put(first[k_] + 1, [op])
            else: st['twq'].append(op)
    n0 = 0
    kA, kB = kq + 1, opt('kB' + sf, 31)
    for ks in range(kA, 40):
        pos_ = [first[ks] + 1] if ks < kB else sorted([first[ks], first[ks] + NS - 2, first[ks] + 1, first[ks] + 3][:opt('ne' + sf, 3)])
        if ks < kB and (ks - kA) % opt('kAs' + sf, 2 if nG == 4 else 1): pos_ = []
        for p_ in pos_: S.put(p_, [allw[n0]]); n0 += 1
    assert n0 <= (60 if nG == 4 else 44 - opt('naS', 6) - opt('dr1', 0))
    global AUGW
    tmp = 172 if nG == 4 else 64
    AUGW = [160, 166, 96, 102] if nG == 4 else [72, 78]
    e1 = [lambda a: (a.wait(vm=st['stl']), check_loop(a, stl, vST+3, 64, sPC))]
    e1 += [f'v_rcp_f32 v{vR}, v{vSDV}']
    if nG == 2: e1 += [f's_nop 0\nds_write2st64_b32 v{vRT}, v{vR}, v{vAL} offset0:0 offset1:2']
    e1 += h_aug_x(tmp)
    S.spread(prep, first[31], l(33)); S.spread(e1, first[34], l(36))
    e2 = L(f'v_accvgpr_read_b32 v{vT}, a196\nv_accvgpr_read_b32 v{vT+1}, a197')
    e2 += [f's_mov_b64 exec, 0xffff\nds_write2_b32 v{vTB[0]}, v{vT}, v{vT+1} offset0:0 offset1:16\ns_mov_b64 exec, -1', lambda a: st.__setitem__('csw', a.lg_issued)]
    S.put(st['cs_slot'], e2)
    S.slots[st['bar_slot']]['pre'].append(lambda a: (a.wait(lg=st['csw']), a.e('s_barrier')))
    aw = [h_aug_w(st, i, tmp, vTB[i]) for i in range(nG)]
    S.put(st['bar_slot'], [x for i in range(nG) for x in aw[i][0]])
    S.spread([x for i in range(nG) for x in aw[i][1]], min(st['bar_slot'] + 2, l(39)), l(39))
    for ks in range(40): S.slots[first[ks]]['pre'].insert(0, lambda a, ks=ks: stamp(a, f'k{ks}'))
    if nG == 2: S.put(first[40], aw[0][2] + aw[1][2])
    S.emit(a)
    if nG == 4:
        for i in range(nG): run(a, aw[i][2])
    stamp(a, 3)
    n1 = n0
    later = allw[n1:]
    ufirst = nG == 2 and opt('ufS', 0)
    def hflag(a):
        a.wait(vm=st['hst']); a.e(f's_add_u32 s{sFH}, s{sFL}, {HF_OFF - F_OFF}'); set_flag_h(a, 193); stamp(a, 'hf')
        if opt('th', 0):
            a.e(f's_mul_i32 s{sFH}, s{sROW}, 54\ns_add_u32 s{sFH}, s{sFH}, s{sG0}\ns_lshl_b32 s{sFH}, s{sFH}, 11\nv_lshlrev_b32 v193, 3, v{vL16}')
            if nG == 2: a.e('s_mov_b32 exec_hi, 0')
            a.vm(f'buffer_load_dword v194, v193, {srd(SWS)}, s{sFH} offen sc1')
            if nG == 2: a.e('s_mov_b32 exec_hi, -1')
    def uflag(a):
        a.wait(vm=st['ust']); set_flag(a, 1, 193); stamp(a, 'uf')
    def do_U():
        rr = 96
        a.e(f'v_lshl_add_u32 v{vT}, v{vT+6}, 4, s{sE+1}')
        for jq in range(4): rt_ = a.lg(f'ds_read_b128 v[{rr+4*jq}:{rr+4*jq+3}], v{vT} offset:{32*jq}')
        vXW, vXR_, vUS = vT+2, vT+3, vT+4
        a.e(f'v_and_b32 v{vT+1}, 31, v{vL}\nv_lshlrev_b32 v{vT+5}, 2, v{vT+1}\nv_lshl_add_u32 v{vXW}, v{vT+6}, 9, v{vT+5}\ns_lshl_b32 s{sE}, s{sW}, 12\nv_add_u32 v{vXW}, s{sE}, v{vXW}')
        a.e(f's_lshl_b32 s{sE}, s{sW}, 10\nv_lshl_add_u32 v{vXR_}, v{vL}, 2, s{sE}')
        a.e(f's_mov_b32 s{sE}, 81920\nv_mul_lo_u32 v{vT+5}, s{sE}, v{vT+6}\nv_lshl_add_u32 v{vUS}, v{vT+1}, 4, v{vT+5}')
        budget = [opt('dr1', 0)]
        def drip():
            if budget[0] > 0 and len(later) > 15: later.pop(0)(a); budget[0] -= 1
        a.wait(lg=rt_)
        for d in range(2):
            E, O = 128 + 32*d, 144 + 32*d
            for j in range(16):
                if j % 8 == 4: drip()
                tq = 228 + (j & 3)
                x, y = (E+j, O+j) if d == 0 else (O+j, E+j)
                a.e(f'v_add_f32 v{tq}, v{E+j}, v{O+j}\nv_sub_f32 v{O+j}, v{x}, v{y}\nv_mul_f32 v{E+j}, v{rr+j}, v{tq}\nv_mul_f32 v{O+j}, v{rr+j}, v{O+j}')
            for j in range(8): a.e(cvtpk(E+j, E+2*j, E+2*j+1))
        DR = [(64, 80), (196, 212)]
        def step2(part):
            c0 = 128 + 16*part; s0 = 160 + 16*part; UR, UV = DR[part]
            UR = f'v[{UR}:{UR+15}]'; UV = f'v[{UV}:{UV+15}]'
            G = lambda b, f: f'v[{b+4*f}:{b+4*f+3}]'
            for k, (A1, A2, B) in enumerate(((0, 2, G(c0,0)), (1, 3, G(c0,1)), (4, 0, G(s0,0)), (5, 1, G(s0,1)))):
                a.e(f'v_mfma_f32_32x32x16_bf16 {UR}, {aF(A1)}, {B}, {"0" if k == 0 else UR}')
                a.e(f'v_mfma_f32_32x32x16_bf16 {UV}, {aF(A2)}, {B}, {"0" if k == 0 else UV}')
        def comb(part):
            UR, UV = DR[part]
            for j in range(16):
                a.e(cvtpk(UR+j, UR+j, UV+j))
                a.lg(f'ds_write_b32 v{vXW}, v{UR+j} offset:{XCH + part*16384 + (8*(j>>2)+(j&3))*128}')
                if j % opt('dre', 3) == 0: drip()
        stamp(a, 'u0')
        step2(0)
        ls = label('spec')
        a.e(f's_cmp_lg_u32 s{sDT}, 8\ns_cbranch_scc1 {ls}')
        for jq in range(4): a.e(f'ds_read_b128 v[{232+4*jq}:{235+4*jq}], v{vT} offset:{512+32*jq}')
        a.lg_issued -= 4
        a.e('s_waitcnt lgkmcnt(0)\ns_mov_b32 exec_lo, 0x80000000\ns_mov_b32 exec_hi, 0x80000000')
        for j in range(16): a.e(f'v_mov_b32 v{144+j}, v{232+j}\nv_mov_b32 v{176+j}, 0')
        a.e(f's_mov_b64 exec, -1\n{ls}:')
        for O in (144, 176):
            for j in range(8): a.e(cvtpk(O+j, O+2*j, O+2*j+1))
        hp_ = opt('hpS', 0)
        if not ufirst and hp_ == 0: hflag(a)
        step2(1); budget[0] = opt('dr2', 0); drip(); drip(); comb(0)
        if not ufirst and hp_ == 1: hflag(a)
        comb(1)
        stamp(a, 'u1')
        a.wait(lg=a.lg_issued); a.e('s_barrier')
        stamp(a, 'u2')
        toks = []
        for part in range(2):
            for i in range(4):
                b = 128 + 16*part + 4*i
                a.lg(f'ds_read2st64_b32 v[{b}:{b+1}], v{vXR_} offset0:{64*part+i} offset1:{64*part+16+i}')
                toks.append(a.lg(f'ds_read2st64_b32 v[{b+2}:{b+3}], v{vXR_} offset0:{64*part+32+i} offset1:{64*part+48+i}'))
        a.e(f's_lshl_b32 s{sE}, s{sW}, 7\ns_add_u32 s{sE}, s{sE}, s{sRB}\ns_mul_i32 s{sE}, s{sE}, 5120\ns_lshl_b32 s{sE+1}, s{sDT}, 8\ns_add_u32 s{sE}, s{sE}, s{sE+1}\ns_add_u32 s{sE}, s{sE}, {U_OFF}')
        for i in range(1, 4): a.e(f's_add_u32 s{sE+i}, s{sE}, {2*81920*i}')
        for part in range(2):
            for i in range(4):
                b = 128 + 16*part + 4*i
                a.wait(lg=toks[4*part+i])
                st['ust'] = a.vm(f'buffer_store_dwordx4 v[{b}:{b+3}], v{vUS}, {srd(SWS)}, s{sE+i} offen offset:{2560*part} sc1')
        stamp(a, 'u3')
    def do_H():
        S = Sched()
        for k in range(8*nG): S.add(None)
        nm = len(S.slots)
        ops = []
        for i in range(nG): ops += [lambda a, i=i: stamp(a, f'f{i}')] + h_fin(st, i, 0) + h_fin(st, i, 1)
        S.spread(ops, 0, nm - 1)
        k_ = opt('na', 10) if nG == 4 else opt('naS', 6)
        if st['twq']: S.spread(st['twq'], 0, nm - 1)
        if k_: S.spread(later[:k_], 0, nm - 1); del later[:k_]
        if ufirst: S.put(min(nm - 1, opt('ufs', 20)), [uflag])
        hfe = -1
        S.emit(a)
        stamp(a, 4)
    if nG == 4: do_H()
    elif ufirst: do_U(); do_H()
    else: do_H(); do_U()
    if nG == 2: later = later[-15:] + later[:-15]
    nin = opt('nin' + sf, 0)
    st['inp2'] = later[len(later) - nin:]; later = later[:len(later) - nin]
    stamp(a, 5)
    phase2(a, st, hflag if (ufirst or nG == 4) else uflag, later, not (opt('twR', 0) if nG == 4 else opt('twS', 0)))

def phase2(a, st, hflag, later, doTW):
    RED = 65536 if XV[0] else 0
    t = 2
    q = 144
    r = Rec()
    if doTW: gen_TW(r, q)
    sGI = sE
    r.e(f's_mul_i32 s{sGO}, s{sHB[3]}, 1280\ns_mul_i32 s{sGI}, s{sHB[1]}, 1280')
    vHJ = [184, 185, 186, 187]; vHD = [188, 189, 190, 191]
    for j in range(4):
        r.e(f's_and_b32 s{sT}, s{sHB[j]}, 1024\ns_and_b32 s{sHB[j]}, s{sHB[j]}, 63\ns_mul_i32 s{sHB[j]}, s{sHB[j]}, 54\ns_add_u32 s{sHB[j]}, s{sHB[j]}, s{sTAU}\ns_lshl_b32 s{sHB[j]}, s{sHB[j]}, 11\ns_add_u32 s{sHB[j]}, s{sHB[j]}, s{sT}')
        r.e(f'v_add_u32 v{vHJ[j]}, s{sHB[j]}, v{vL16}\nv_add_u32 v{vHD[j]}, s{sHB[j]}, v192')
    r.e(f's_mov_b32 s{sKO[0]}, 0\ns_movk_i32 s{sKO[13]}, {13*2048}')
    for k in range(1, 13):
        if opt('rho', 0): r.e(f's_add_u32 s{sKO[k]}, s{sKO[k-1]}, 2048\ns_cmp_eq_u32 s{sKO[k]}, s{sKO[13]}\ns_cselect_b32 s{sKO[k]}, 0, s{sKO[k]}')
        elif k % 2 == 0: r.e(f's_movk_i32 s{sKO[k]}, {2048*k}')
    vG4, vG2, vB4 = t+8, t+9, t+10
    r.e(f's_mul_i32 s{sCW}, s{sC}, 160\ns_add_u32 s{sGO}, s{sGO}, s{sCW}\ns_add_u32 s{sGI}, s{sGI}, s{sCW}\ns_mov_b32 s{sT}, 81920')
    r.e(f'v_and_b32 v{q}, 15, v{vL}\nv_mul_lo_u32 v{q}, s{sT}, v{q}\nv_lshrrev_b32 v{q+1}, 4, v{vL}\nv_lshl_add_u32 v{vG4}, v{q+1}, 4, v{q}\nv_lshl_add_u32 v{vG2}, v{q+1}, 3, v{q}')
    r.e(f'v_lshl_add_u32 v{vB4}, v{q+1}, 4, s{sCW}\nv_lshl_add_u32 v{q+2}, v{q+1}, 3, s{sCW}')
    xr = 160; br = 172
    r.ops += [f'buffer_load_dwordx4 v[{xr}:{xr+3}], v{vG4}, {srd(SX)}, s{sGI} offen', f'buffer_load_dwordx4 v[{xr+4}:{xr+7}], v{vG4}, {srd(SX)}, s{sGI} offen offset:64',
              f'buffer_load_dwordx2 v[{xr+8}:{xr+9}], v{vG2}, {srd(SX)}, s{sGI} offen offset:128',
              f'global_load_dwordx4 v[{br}:{br+3}], v{vB4}, s[{sB2}:{sB2+1}]', f'global_load_dwordx4 v[{br+4}:{br+7}], v{vB4}, s[{sB2}:{sB2+1}] offset:64']
    r.vm(f'global_load_dwordx2 v[{br+8}:{br+9}], v{q+2}, s[{sB2}:{sB2+1}] offset:128', 'xb')
    r.e(f's_and_b32 s{sT+1}, s2, 15\ns_lshr_b32 s{sT+2}, s{sW}, 1\ns_lshl_b32 s{sT+2}, s{sT+2}, 4\ns_add_u32 s{sT+1}, s{sT+1}, s{sT+2}')
    r.e(f's_and_b32 s{sT+2}, s{sW}, 1\ns_mul_i32 s{sT+2}, s{sT+2}, 96\ns_add_u32 s{sT+1}, s{sT+1}, s{sT+2}')
    r.e(f's_lshl_b32 s{sT+1}, s{sT+1}, 2\ns_lshl_b32 s{sT+2}, s{sZ}, 1\ns_add_u32 s{sT+1}, s{sT+1}, s{sT+2}')
    vF1, vF2, vFV = t, t+1, t+2
    r.e(f'v_lshrrev_b32 v{q}, 1, v{vL}\nv_lshlrev_b32 v{q}, 7, v{q}\nv_and_b32 v{q+1}, 1, v{vL}\nv_add3_u32 v{q}, v{q}, v{q+1}, s{sT+1}')
    r.e(f'v_lshlrev_b32 v{vF1}, 7, v{q}\nv_add_u32 v{vF1}, {HF_OFF}, v{vF1}')
    r.e(f's_sub_u32 s{sTS1}, 32, s{sT1}\ns_and_b32 s{sTS1}, s{sTS1}, 31\ns_cmp_ge_u32 s{sC}, 4\ns_cselect_b32 s{sTS1}, s{sTS1}, s{sT1}')
    r.e(f'v_and_b32 v{q}, 7, v{vL}\nv_min_u32 v{q}, 4, v{q}\nv_lshlrev_b32 v{q+2}, 5, v{q}\nv_add_u32 v{q+3}, {6*32}, v{q+2}\nv_add_u32 v{q+2}, {3*32+16}, v{q+2}')
    r.e(f'v_cmp_gt_u32 vcc, 2, v{q}\nv_cndmask_b32 v{q}, v{q+2}, v{q+3}, vcc')
    r.e(f'v_and_b32 v{q+1}, 8, v{vL}\nv_bfe_u32 v{q+3}, v{vL}, 4, 1\nv_add3_u32 v{q}, v{q}, v{q+1}, v{q+3}')
    r.e(f's_lshl_b32 s{sT}, s{sW}, 3\ns_lshr_b32 s{sT+2}, s{sTS1}, 3\ns_add_u32 s{sT}, s{sT}, s{sT+2}\nv_lshl_add_u32 v{q}, v{q}, 2, s{sT}')
    r.e(f'v_lshlrev_b32 v{vF2}, 7, v{q}\nv_add_u32 v{vF2}, {F_OFF+4}, v{vF2}\nv_lshrrev_b32 v{q+1}, 4, v{vL}')
    vUO = [t+3+k for k in range(5)]
    r.e(f'v_and_b32 v{q}, 15, v{vL}\ns_mul_i32 s{sT}, s{sC}, 80\nv_and_b32 v{q+4}, 12, v{vL}\nv_add3_u32 v{q+4}, v{q+4}, v{q}, s{sT}\nv_add_u32 v{q}, s{sT}, v{q}')
    r.e(f's_movk_i32 s{sT+1}, 5120\nv_mul_u32_u24 v{q+1}, s{sT+1}, v{q+1}')
    r.e(f's_cmp_ge_u32 s{sC}, 4\ns_cselect_b32 s{sT}, -1, 0\ns_cselect_b32 s{sT+1}, 640, -1')
    for ct in range(5):
        if ct < 4: r.e(f'v_add_u32 v{q+2}, {32*(ct>>1)+4*(ct&1)}, v{q+4}')
        else: r.e(f'v_add_u32 v{q+2}, 64, v{q}')
        r.e(f'v_xor_b32 v{q+2}, s{sT}, v{q+2}\nv_add_u32 v{q+2}, s{sT+1}, v{q+2}\nv_sub_u32 v{q+5}, 478, v{q+2}')
        r.e(f'v_cmp_lt_i32 vcc, 159, v{q+2}\nv_cndmask_b32 v{q+5}, v{q+2}, v{q+5}, vcc')
        if ct == 0: r.e(f'v_cmp_eq_u32 vcc, 319, v{q+2}\nv_cndmask_b32 v{q+5}, v{q+5}, v{q+2}, vcc')
        r.e(f'v_lshl_add_u32 v{vUO[ct]}, v{q+5}, 4, v{q+1}')
        if ct == 0: r.e(f'v_mov_b32 v{q+3}, {OOB}\nv_cmp_gt_i32 vcc, 0, v{q+2}\nv_cndmask_b32 v{vUO[0]}, v{vUO[0]}, v{q+3}, vcc')
    r.e(f's_lshl_b32 s{sUo}, s{sTS1}, 4\ns_lshl_b32 s{sT}, s{sW}, 2\ns_add_u32 s{sUo}, s{sUo}, s{sT}\ns_mul_i32 s{sUo}, s{sUo}, 5120\ns_add_u32 s{sUo}, s{sUo}, {U_OFF}')
    vPW, vP2, vP1 = t+11, t+12, t+13
    r.e(f's_mul_i32 s{sT}, s{sW}, 15360\ns_add_u32 s{sT}, s{sT}, {RED}\nv_add_u32 v{vPW}, s{sT}, v{vL16}')
    r.e(f's_xor_b32 s{sT}, s{sW}, 2\ns_mul_i32 s{sT}, s{sT}, 15360\ns_add_u32 s{sT}, s{sT}, {RED}\nv_add_u32 v{vP2}, s{sT}, v{vL16}')
    r.e(f's_add_u32 s{sT}, s{sW}, 1\ns_and_b32 s{sT}, s{sT}, 3\ns_mul_i32 s{sT}, s{sT}, 15360\ns_add_u32 s{sT}, s{sT}, {RED}\nv_add_u32 v{vP1}, s{sT}, v{vL16}')
    vP3 = 0
    r.e(f's_add_u32 s{sT}, s{sW}, 3\ns_and_b32 s{sT}, s{sT}, 3\ns_mul_i32 s{sT}, s{sT}, 15360\ns_add_u32 s{sT}, s{sT}, {RED}\nv_add_u32 v{vP3}, s{sT}, v{vL16}')
    r.ops.insert(len(r.ops) * opt('hfp' + ('S' if XV[0] else ''), 25 if XV[0] else 20) // 100, hflag)
    hl = f'buffer_load_dword v{vFV}, v{vF1}, {srd(SWS)}, 0 offen sc1'
    nl = max(0, len(later) - opt('nlast', 12))
    mm_ = merge(r.ops, later[:nl]); h_ = len(mm_) // 2
    run(a, mm_[:h_]); stamp(a, 's1'); run(a, mm_[h_:]); stamp(a, 's2')
    ini = [lambda a: a.wait(vm=r.tok['xb']), f's_mov_b32 s{sT}, 0x05040100\ns_mov_b32 s{sT+1}, 0x07060302']
    for ct in range(5):
        b = 36 + 4*ct
        for k in range(2):
            xs = xr + (4*(ct >> 1) + 2*(ct & 1) + k if ct < 4 else 8 + k); bs = xs - xr + br
            ini += L(f'v_perm_b32 v{b+2*k}, v{bs}, v{xs}, s{sT}\nv_perm_b32 v{b+2*k+1}, v{bs}, v{xs}, s{sT+1}')
    for k in range(20): ini.append(f'v_dot2_f32_bf16 v{36+k}, v{36+k}, s{sONES}, 0')
    if opt('bias', 0.0):
        ini += [f's_cmp_eq_u32 s{sC}, 0\ns_cselect_b32 s{sT+2}, {fhex(opt("bias", 0.0))}, 0\ns_mov_b64 exec, 0xffff\ns_nop 2\nv_add_f32 v36, s{sT+2}, v36\ns_mov_b64 exec, -1']
    a.e(f'v_mov_b32 v{vL}, v{vL16}'); st['vW'] = vL
    a.e('s_mov_b64 exec, 0x3ff')
    tk = a.vm(hl)
    a.e('s_mov_b64 exec, -1')
    run(a, merge(ini, later[nl:]))
    stamp(a, 6)
    a.wait(vm=tk)
    check_loop(a, hl, vFV, 10, sPC)
    stamp(a, 7)
    ht = {}
    def hload(slot, j):
        def op(a):
            vo = vHD[j] if slot == 13 else vHJ[j]
            ht[(slot, j)] = a.vm(f'buffer_load_dwordx4 {HF(pos[(slot, j)])}, v{vo}, {srd(SWS)}, s{sKO[slot] if RHO else sKO[slot & ~1]} offen offset:{0 if RHO else 2048*(slot & 1)} sc1')
        return op
    order = [(s_, j) for j in range(4) for s_ in range(14)]
    pos = {k: n for n, k in enumerate(order)}
    ul = f'buffer_load_dword v{vFV}, v{vF2}, {srd(SWS)}, 0 offen sc1'
    for n in range(RING): hload(*order[n])(a)
    hp = RING
    wq = list(st['inp2'])
    S = Sched(); f = {}
    def group(s_, j):
        nonlocal hp
        n = pos[(s_, j)]
        for ct in range(5):
            pre = [lambda a: a.wait(vm=max(ht[(s_, j)], max(st['w2'][(s_, c_)] for c_ in range(5))))] if ct == 0 else []
            if ct == 0 and s_ == 0 and j == 3: pre.append(lambda a: a.wait(lg=st[('ci', j)]))
            c0 = '0' if (s_ == 0 and j in (0, 2)) else ACC2(ct, j)
            idx = S.add(f'v_mfma_f32_16x16x32_bf16 {ACC2(ct,j)}, {W2(s_,ct)}, {HF(n)}, {c0}', pre)
            if ct == 0: f[(s_, j)] = idx
        if hp < 56: S.put(idx, [hload(*order[hp])]); hp += 1
    def ustep(j):
        for ct in range(5):
            pre = [lambda a: a.wait(vm=st['uf'])] if ct == 0 else []
            S.add(f'v_mfma_f32_16x16x32_bf16 {ACC2(ct,j)}, {UF(ct)}, a[{aTW+4*j}:{aTW+4*j+3}], {ACC2(ct,j)}', pre)
    u0 = opt('u0', 5)
    for j in range(4):
        for s_ in range(14):
            group(s_, j)
            if j == 2 and s_ == u0: ustep(1); ustep(0)
        if j >= 2: ustep(j)
    bar = lambda a: (a.wait(lg=a.lg_issued), a.e('s_barrier'))
    def wr(j, at, step):
        for ct in range(5): S.put(at + step*ct, [f'ds_write_b128 v{vPW}, {ACC2(ct,j)} offset:{j*5120 + ct*1024}'])
    def rd(key, dst, va, off, at, step):
        for ct in range(5): S.put(at + step*ct, [lambda a, ct=ct: st.__setitem__(key, a.lg(f'ds_read_b128 {dst(ct)}, v{va} offset:{off + ct*1024}'))])
    PB = 144
    wr(1, f[(u0+1, 2)] + 1, 3); S.put(f[(u0+5, 2)] + 1, [bar]); rd(('ci', 3), lambda ct: ACC2(ct, 3), vP2, 5120, f[(u0+5, 2)] + 3, 4)
    wr(0, f[(u0+6, 2)] + 1, 4)
    wr(2, f[(1, 3)] + 1, 3); S.put(f[(5, 3)] + 1, [bar])
    rd('pr', lambda ct: f'v[{PB+4*ct}:{PB+4*ct+3}]', vP1, 10240, f[(5, 3)] + 3, 2)
    rd('pr', lambda ct: f'v[{PB+20+4*ct}:{PB+23+4*ct}]', vP3, 0, f[(5, 3)] + 13, 2)
    S.spread([lambda a: a.wait(lg=st['pr'])] + [f'v_add_f32 v{PB+k}, v{PB+k}, v{PB+20+k}' for k in range(20)], f[(10, 3)], f[(13, 3)] + 8)
    ku = opt('ku', 10)
    fl = [f[k] for k in order]
    S.put(fl[ku] + 1, [lambda a: (a.e('s_mov_b32 exec_hi, 0'), st.__setitem__('ul', a.vm(ul)), a.e('s_mov_b32 exec_hi, -1'))])
    kc = ku + opt('kc', 12)
    S.put(fl[kc] + 1, [lambda a: (a.wait(vm=st['ul']), check_loop(a, ul, vFV, 32, sPC), stamp(a, 'uc'))])
    for ct in range(5):
        S.put(fl[kc + ct] + 3, [lambda a, ct=ct: st.__setitem__('uf', a.vm(f'buffer_load_dwordx4 {UF(ct)}, v{vUO[ct]}, {srd(SWS)}, s{sUo} offen sc1'))])
    for j in range(4): S.slots[f[(0, j)]]['pre'].insert(0, lambda a, j=j: stamp(a, f'l{j}'))
    S.slots[f[(1, 0)]]['pre'].insert(0, lambda a: stamp(a, 'e1'))
    assert not wq
    S.emit(a)
    stamp(a, 8)
    a.wait(lg=st['pr'])
    o = 96
    for ct in range(5):
        b = 76 + 4*ct
        for k in range(4): a.e(f'v_add_f32 v{b+k}, v{b+k}, v{PB+4*ct+k}')
        if opt('scale', 0.0):
            for k in range(4): a.e(f'v_mul_f32 v{b+k}, {fhex(1.0 + opt("scale", 0.0))}, v{b+k}')
        a.e(cvtpk(o+2*ct, b, b+1)); a.e(cvtpk(o+2*ct+1, b+2, b+3))
        ost = opt('ost', '')
        if ct == 1: a.vm(f'buffer_store_dwordx4 v[{o}:{o+3}], v{vG4}, {srd(SOUT)}, s{sGO} offen {ost}')
        if ct == 3: a.vm(f'buffer_store_dwordx4 v[{o+4}:{o+7}], v{vG4}, {srd(SOUT)}, s{sGO} offen offset:64 {ost}')
        if ct == 4: a.vm(f'buffer_store_dwordx2 v[{o+8}:{o+9}], v{vG2}, {srd(SOUT)}, s{sGO} offen offset:128 {ost}')
    if DBG == 3:
        a.wait_all()
        le = label('dbgskip')
        a.e(f's_memrealtime s[{sT+1}:{sT+2}]\ns_waitcnt lgkmcnt(0)')
        a.e(f's_cmp_lg_u32 s{sW}, 0\ns_cbranch_scc1 {le}')
        a.e(f's_cmp_eq_u32 s2, {opt("wgA", 8)}\ns_cselect_b32 s{sT}, 4, 0\ns_cmp_eq_u32 s2, {opt("wgB", 232)}\ns_cselect_b32 s{sT}, 32, s{sT}\ns_cmp_eq_u32 s{sT}, 0\ns_cbranch_scc1 {le}')
        for k in range(1, 7): a.e(f's_sub_u32 s{sT+3}, s{sTS+2*k}, s{sTS}\nv_mov_b32 v{15+k}, s{sT+3}')
        a.e(f's_sub_u32 s{sT+3}, s{sT+1}, s{sTS}\nv_mov_b32 v22, s{sT+3}\nv_mov_b32 v2, s{sT}\ns_mov_b64 exec, 1')
        a.e(f'global_store_dwordx4 v2, v[16:19], s[{sDBG}:{sDBG+1}]\nglobal_store_dwordx3 v2, v[20:22], s[{sDBG}:{sDBG+1}] offset:16')
        a.e(f'{le}:')
    elif DBG:
        a.wait_all()
        a.e(f'{"s_memtime" if DBG == 2 else "s_memrealtime"} s[{sT+1}:{sT+2}]\ns_waitcnt lgkmcnt(0)')
        for k in range(9): a.e(f'v_mov_b32 v{16+k}, s{sTS+2*k}')
        a.e(f'v_mov_b32 v25, s{sT+1}\nv_mov_b32 v26, 0\nv_mov_b32 v27, 0')
        a.e(f's_lshl_b32 s{sT}, s2, 2\ns_add_u32 s{sT}, s{sT}, s{sW}\ns_lshl_b32 s{sT}, s{sT}, 6\ns_add_u32 s{sT}, s{sT}, {TS_OFF}')
        a.e(f'v_mov_b32 v2, 0\ns_mov_b64 exec, 1')
        for k in range(3): a.e(f'buffer_store_dwordx4 v[{16+4*k}:{19+4*k}], v2, {srd(SWS)}, s{sT} offen offset:{16*k}')
    a.e('s_endpgm')

def build():
    a = Asm(); prologue(a)
    outs = [a]
    for nG in (4, 2):
        b = a.fork()
        if nG == 2: b.e('L_S:')
        build_type(b, T(nG)); outs.append(b)
    lines = []
    for o in outs: lines += o.finish()
    return lines + SLOW

hdr = open('cdna_kernels/%s.s.ref' % NAME).read().split('; Override launch')[0]
lines = build()
if opt('al8', 0):
    import subprocess, re as _re
    def sizes(ls):
        open('_al.s', 'w').write('.amdgcn_target "amdgcn-amd-amdhsa--gfx950"\n.text\n' + '\n'.join(ls) + '\nL_end:\nL_ftab:\n')
        subprocess.run(['clang', '-x', 'assembler', '-target', 'amdgcn-amd-amdhsa', '-mcpu=gfx950', '-c', '_al.s', '-o', '_al.o'], check=True)
        d = subprocess.run(['llvm-objdump', '-d', '--mcpu=gfx950', '_al.o'], capture_output=True, text=True).stdout
        return [4*len(m.group(1).split()) for m in _re.finditer(r'// [0-9A-F]+: ([0-9A-F ]+)', d)]
    sz = sizes(lines); idx = [i for i, l in enumerate(lines) if not l.endswith(':')]
    assert len(sz) == len(idx), (len(sz), len(idx))
    addr = 0; prev = None; nfix = 0; nmiss = 0
    ok = ('v_mul_f32', 'v_max_f32', 'v_add_f32', 'v_sub_f32', 'v_mov_b32', 'v_cos_f32', 'v_sin_f32', 'v_add_u32', 'v_and_b32', 'v_lshlrev_b32', 'v_lshrrev_b32', 'v_xor_b32', 'v_cvt_f32_u32', 'v_mul_u32_u24', 'v_min_u32', 'v_sub_u32', 'v_rcp_f32')
    cand = None
    for k, i in enumerate(idx):
        if sz[k] == 8 and addr % 8 == 4:
            if cand is not None:
                mn = lines[cand].split()[0]; lines[cand] = lines[cand].replace(mn, mn + '_e64', 1); addr += 4; nfix += 1
            elif opt('al8', 0) == 2 and lines[i].startswith('v_mfma'):
                lines[i] = 's_nop 0\n    ' + lines[i]; addr += 4; nfix += 1
            else: nmiss += 1
        if sz[k] == 4 and lines[i].split()[0] in ok: cand = i
        elif sz[k] != 4: cand = None
        addr += sz[k]
    print('align: fixed', nfix, 'unfixed', nmiss)
with open(sys.argv[1], 'w') as f:
    f.write(hdr)
    f.write(f'; @launch grid=(256,1,1) block=(256,1,1) lds={LDS_BYTES}\n')
    f.write('.amdgcn_target "amdgcn-amd-amdhsa--gfx950"\n.text\n')
    f.write(f'.globl {NAME}_kernel\n.p2align 8\n.type {NAME}_kernel,@function\n{NAME}_kernel:\n')
    for l in lines: f.write(('' if l.endswith(':') else '    ') + l + '\n')
    f.write('L_end:\n    s_endpgm\n')
    f.write('.p2align 8\n.type L_ftab,@object\nL_ftab:\n')
    tb = F_table()
    for i in range(0, len(tb), 8): f.write('.long ' + ', '.join('0x%08x' % x for x in tb[i:i+8]) + '\n')
    f.write('.fill 8192, 4, 0\n')
    f.write(f'''.section .rodata,"a"
.p2align 6
.amdhsa_kernel {NAME}_kernel
  .amdhsa_next_free_vgpr 512
  .amdhsa_next_free_sgpr 102
  .amdhsa_accum_offset 256
  .amdhsa_group_segment_fixed_size 0
  .amdhsa_kernarg_size 104
  .amdhsa_user_sgpr_count 2
  .amdhsa_user_sgpr_kernarg_segment_ptr 1
  .amdhsa_system_sgpr_workgroup_id_x 1
.end_amdhsa_kernel
''')
print('instructions:', len(lines))
```

```python
import sys, struct, copy, os
from asmlib import Asm
NAME = 'parallel_sum__spectral_fnet__dense_activation_squared_relu__prompt'
DBG = int(sys.argv[2]) if len(sys.argv) > 2 else 0
OPT = dict(kv.split('=') for kv in sys.argv[3:])
def opt(k, d): return type(d)(OPT.get(k, d))

H_OFF = 0; U_OFF = 0x6C0000; P_OFF = 0x940000; ST_OFF = 0xB5C000; F_OFF = 0xB68000; TS_OFF = 0xB88000; PF_OFF = 0xBA0000; HF_OFF = 0xBB0000; WS_END = 0xBD0000
OOB = 0x40000000
ARING = 0; BBASE = 65536; AUX = 131072; TAB = 161792; TABC = TAB; TABB = TAB + 512; TABR = TAB + 1024; TABA = TAB + 1536
XCH = 0
RED_PITCH = 336; RED_WAVE = 64 * RED_PITCH
LDS_BYTES = 163840
SX, SW1, SW2, SWS, SOUT = 4, 8, 12, 16, 20
sB1, sB2, sDBG = 24, 26, 28
sW, sZ, sRB, sC8, sROW, sG0 = 30, 31, 32, 33, 34, 35
sA, sA2, sBo, sMA, sMB = 36, 37, 38, 39, 40
sT1, sC, sTAG, sONES = 41, 42, 43, 44
sT = 45
sH = [53, 54, 55, 56]; sFL = 57; sDT = 58; sAUXo = 59; sAUXs = 60; sTAU = 61; sW2o = 62; sH0 = 63; sH1 = 64; sUo = 65
sCW = 61+0*0 if False else 83; sGO = 82; sTS1 = 66; sPC = 51; sUS = 70; sE = 71
sAUXm = 3; sHB = [78, 79, 80, 81]
sRHO = 75; sWE = 76; sW4 = 77; sXCC = 66; sLOC = 67; sFH = 68
sKO = [36, 37, 38, 39, 40, 53, 54, 55, 56, 58, 59, 60, 63, 64]
sTS = 84
def srd(b): return f's[{b}:{b+3}]'
def fhex(x): return '0x%08x' % struct.unpack('<I', struct.pack('<f', x))[0]
XV = [False]
def X(ks): return f'v[{196+4*(ks%8)}:{199+4*(ks%8)}]' if XV[0] else f'a[{4*(ks%8)}:{4*(ks%8)+3}]'
def ACC1(i): return f'v[{32+16*i}:{47+16*i}]'
def WB(b, i, h=None):
    base = 96 + 16*b + 4*i if i < 4 else 184 + 4*b
    return f'v[{base}:{base+3}]' if h is None else f'v[{base+2*h}:{base+2*h+1}]'
aTW = 160; aF0 = 176; aSEL = 'a[192:195]'; aCS = 'a[196:199]'
def aF(k): return f'a[{aF0+4*k}:{aF0+4*k+3}]' if k < 4 else f'a[{152+4*(k-4)}:{155+4*(k-4)}]'
vL = 1
vOA = [2, 3]; vOB = [4, 5, 6, 7]; vAR = [8, 9, 10, 11]; vBR = [12, 13, 14, 15]
vT = 16
vST = 24
vNM, vSDV, vAL, vR = 24, 25, 26, 28
vNON = 28; vPF = 29; vHO = 30; vL16 = 31
vAUX = 160
def W2(slot, ct):
    if slot < 3: k, b = 'v', 196 + 20*slot + 4*ct
    elif slot < 5: k, b = 'a', 200 + 20*(slot-3) + 4*ct
    elif slot < 11: k, b = 'a', 32 + 20*(slot-5) + 4*ct
    elif slot == 11: k, b = 'a', (240 + 4*ct if ct < 4 else 152)
    elif slot == 12: k, b = 'a', (4*ct if ct < 4 else 156)
    else: k, b = 'a', (16 + 4*ct if ct < 4 else 196)
    return f'{k}[{b}:{b+3}]'
def UF(ct): return f'a[{176+4*ct}:{179+4*ct}]'
def ACC2(ct, rt): b = 16 + 20*rt + 4*ct; return f'v[{b}:{b+3}]'
RHO = opt('rho', 0)
RING = opt('ring', 10)
def HF(n): b = 96 + 4*(n % RING); return f'v[{b}:{b+3}]'

TSL = OPT.get('ts', '0,1,2,3,4,5,6,7,8').split(',')
def stamp(a, name):
    if str(name) not in TSL: return
    idx = TSL.index(str(name))
    if DBG: a.e(f'{"s_memtime" if DBG == 2 else "s_memrealtime"} s[{sTS+2*idx}:{sTS+2*idx+1}]')
def cvtpk(d, x, y): return f'v_cvt_pk_bf16_f32 v{d}, v{x}, v{y}'
uid = [0]
def label(p):
    uid[0] += 1; return f'L_{p}{uid[0]}'

class Sched:
    def __init__(self): self.slots = []
    def add(self, main, pre=()):
        self.slots.append({'pre': list(pre), 'main': main, 'fill': []}); return len(self.slots) - 1
    def put(self, idx, ops): self.slots[idx]['fill'] += list(ops)
    def spread(self, ops, first, last):
        ops = list(ops); n = last - first + 1
        for k, op in enumerate(ops):
            self.slots[first + min(n - 1, k * n // len(ops))]['fill'].append(op)
    def pack(self, ops, first, per):
        i = first
        for op in ops:
            while i < len(self.slots) - 1 and len(self.slots[i]['fill']) >= per: i += 1
            self.slots[i]['fill'].append(op)
        return i
    def emit(self, a, lo=0, hi=None):
        for s in self.slots[lo:hi]:
            for op in s['pre'] + [s['main']] + s['fill']:
                if op is None: continue
                if callable(op): op(a)
                else: a.e(op)
def L(text): return [t for t in text.split('\n') if t.strip()]

def mk_srd(b, lo, n):
    return f's_mov_b32 s{b}, s{lo}\ns_and_b32 s{b+1}, s{lo+1}, 0xffff\ns_mov_b32 s{b+2}, {n}\ns_mov_b32 s{b+3}, 0x20000'

def prologue(a):
    for _ in range(opt('shift', 0)): a.e('s_nop 0')
    a.e('s_cmp_ge_u32 s2, 256\ns_cbranch_scc1 L_end')
    stamp(a, 0)
    a.e('s_load_dwordx2 s[66:67], s[0:1], 0')
    a.e('s_load_dwordx8 s[68:75], s[0:1], 48')
    a.e('s_load_dwordx4 s[76:79], s[0:1], 80')
    a.e('s_load_dwordx2 s[80:81], s[0:1], 96')
    a.e('s_getpc_b64 s[82:83]\nL_pc:')
    if opt('cp', 1) == 0:
        a.e('s_bfe_u32 s3, s2, 0x10003\ns_lshl_b32 s3, s3, 15\nv_lshl_add_u32 v2, v0, 7, s3')
        a.vm(f'global_load_dword v{vPF}, v2, s[82:83]')
    else:
        n_ = opt('cp', 1) * 8; sh_ = 3 if n_ == 8 else 4
        a.e(f's_bfe_u32 s3, s2, {hex(0x40003 if n_ == 8 else 0x30003)}\ns_lshl_b32 s3, s3, {2 + sh_}\nv_lshrrev_b32 v3, 6, v0\nv_lshl_add_u32 v3, v3, {sh_}, s3\nv_and_b32 v2, 63, v0\nv_add_lshl_u32 v2, v2, v3, 7\ns_mov_b64 exec, {hex((1 << n_) - 1)}')
        a.vm(f'global_load_dword v{vPF}, v2, s[82:83]')
        a.e('s_mov_b64 exec, -1')
    a.e('s_add_u32 s82, s82, L_ftab-L_pc\ns_addc_u32 s83, s83, 0')
    a.e(f'v_lshrrev_b32 v4, 6, v0\nv_and_b32 v{vL}, 63, v0\nv_readfirstlane_b32 s{sW}, v4')
    a.e(f's_bfe_u32 s{sZ}, s2, 0x10004')
    a.e(f's_and_b32 s{sT}, s2, 7\ns_bfe_u32 s{sT+1}, s2, 0x10003\ns_lshl_b32 s{sT}, s{sT}, 1')
    a.e(f's_add_u32 s{sRB}, s{sT}, s{sT+1}\ns_lshr_b32 s{sC8}, s2, 5')
    a.e(f's_sub_u32 s{sT+2}, 32, s{sRB}\ns_cmp_eq_u32 s{sRB}, 0\ns_cselect_b32 s{sT+2}, 16, s{sT+2}')
    a.e(f's_bitcmp1_b32 s{sW}, 1\ns_cselect_b32 s{sROW}, s{sT+2}, s{sRB}')
    a.e(f's_and_b32 s{sT+3}, s{sW}, 1\ns_lshl_b32 s{sT+3}, s{sT+3}, 5\ns_add_u32 s{sROW}, s{sROW}, s{sT+3}')
    a.e(f's_mov_b32 s{sAUXm}, s{sT+2}')
    a.e(f'v_lshrrev_b32 v{vT}, 3, v{vL}\nv_lshrrev_b32 v{vT+1}, 4, v{vL}\nv_and_b32 v{vT+2}, 7, v{vL}')
    a.e(f'v_xor_b32 v{vT+3}, v{vT+2}, v{vT+1}\ns_mov_b32 s{sT+4}, 81920\nv_mul_lo_u32 v{vT+4}, s{sT+4}, v{vT}')
    a.e(f'v_lshl_add_u32 v{vOA[0]}, v{vT+3}, 4, v{vT+4}\nv_xor_b32 v{vT+3}, 4, v{vT+3}')
    a.e(f'v_lshl_add_u32 v{vOA[1]}, v{vT+3}, 4, v{vT+4}\nv_add_u32 v{vOA[1]}, {8*81920-1024}, v{vOA[1]}')
    a.e(f's_mul_i32 s{sA}, s{sROW}, 1280\ns_add_u32 s{sA2}, s{sA}, {16*81920-2048}\ns_lshl_b32 s{sMA}, s{sW}, 12')
    if opt('ae', 1):
        a.e('s_waitcnt lgkmcnt(0)')
        a.e(mk_srd(SX, 66, 2048*1280))
        run(a, dma_ops(T(4), 0, {'dma': {}})[:5])
    a.e(f's_sub_u32 s{sT+5}, 6, s{sZ}\ns_cmp_ge_u32 s{sC8}, s{sT+5}\ns_cbranch_scc1 L_S')

class T:
    def __init__(self, nG):
        self.nG = nG; self.nD = 0 if nG == 4 else 2
        self.bslot = 4096 * nG
        self.pitch = 64 * nG
        self.DREG = 131072 if nG == 4 else 98304
        self.nb = nG

def prologue_t(a, t, st):
    if t.nG == 4:
        a.e(f's_mul_i32 s{sG0}, s{sZ}, 28\ns_lshl_b32 s{sT}, s{sC8}, 2\ns_add_u32 s{sG0}, s{sG0}, s{sT}')
        a.e(f'v_and_b32 v{vT+2}, 15, v{vL}\nv_lshlrev_b32 v{vT+3}, 2, v{vT+1}\nv_xor_b32 v{vT+2}, v{vT+2}, v{vT+3}')
        a.e(f's_movk_i32 s{sT+6}, 3456\nv_mul_u32_u24 v{vT+3}, s{sT+6}, v{vT+1}\nv_lshl_add_u32 v{vOB[0]}, v{vT+2}, 4, v{vT+3}')
        for i in range(1, 4): a.e(f'v_add_u32 v{vOB[i]}, {i*(4*3456-1024)}, v{vOB[0]}')
    else:
        a.e(f's_mul_i32 s{sG0}, s{sZ}, 26\ns_lshl_b32 s{sT}, s{sC8}, 1\ns_add_u32 s{sG0}, s{sG0}, s{sT}\ns_add_u32 s{sG0}, s{sG0}, 12')
        a.e(f's_mul_i32 s{sDT}, s{sZ}, 6\ns_add_u32 s{sDT}, s{sDT}, s{sT}\ns_sub_u32 s{sDT}, s{sDT}, 12')
        a.e(f'v_and_b32 v{vT+3}, 1, v{vT+1}\nv_lshlrev_b32 v{vT+3}, 2, v{vT+3}\nv_xor_b32 v{vT+2}, v{vT+2}, v{vT+3}')
        a.e(f's_movk_i32 s{sT+6}, 3456\nv_mul_u32_u24 v{vT+3}, s{sT+6}, v{vT}\nv_lshl_add_u32 v{vOB[0]}, v{vT+2}, 4, v{vT+3}')
        a.e(f'v_add_u32 v{vOB[1]}, {8*3456-1024}, v{vOB[0]}')
    a.e(f's_lshl_b32 s{sBo}, s{sG0}, 6\ns_mul_i32 s{sT}, s{sW}, {16*3456}\ns_add_u32 s{sBo}, s{sBo}, s{sT}')
    a.e(f's_mul_i32 s{sMB}, s{sW}, {1024*t.nb}\ns_add_u32 s{sMB}, s{sMB}, {BBASE}')
    if not opt('bl', 0):
        a.e(f's_lshl_b32 s{sT+1}, s{sG0}, 6\nv_and_b32 v{vT+6}, {16*t.nG-1}, v{vL}\nv_lshl_add_u32 v{vT+6}, v{vT+6}, 2, s{sT+1}')
    if t.nG == 4 and not opt('rl', 0): run(a, roll_setup(t, opt('rn', 9)))
    stamp(a, 'p0')
    a.e('s_waitcnt lgkmcnt(0)')
    stamp(a, 'p1')

    if not opt('bl', 0):
        a.vm(f'global_load_dword v{vT+7}, v{vT+6}, s[70:71]')
        a.e(f'v_bfe_u32 v{vT+5}, v{vL}, 0, 3\nv_mul_u32_u24 v{vT+5}, 0xa0, v{vT+5}')
        a.vm(f'global_load_dword v{vPF}, v{vT+5}, s[74:75]')
    if not opt('ae', 1): a.e(mk_srd(SX, 66, 2048*1280))
    a.e(mk_srd(SW1, 68, 640*3456))

def dma_ops(t, c, st):
    slot = c % 4
    ops = [f's_add_u32 m0, s{sMA}, {ARING + slot*16384}',
           f'buffer_load_dwordx4 v{vOA[0]}, {srd(SX)}, s{sA} offen {opt("ntx", "")} lds',
           f'buffer_load_dwordx4 v{vOA[1]}, {srd(SX)}, s{sA} offen offset:1024 {opt("ntx", "")} lds',
           f'buffer_load_dwordx4 v{vOA[0]}, {srd(SX)}, s{sA2} offen offset:2048 {opt("ntx", "")} lds',
           f'buffer_load_dwordx4 v{vOA[1]}, {srd(SX)}, s{sA2} offen offset:3072 {opt("ntx", "")} lds',
           f's_add_u32 m0, s{sMB}, {slot*t.bslot}\ns_add_u32 s{sA}, s{sA}, 128\ns_add_u32 s{sA2}, s{sA2}, 128']
    for i in range(t.nb):
        ops.append(f'buffer_load_dwordx4 v{vOB[i]}, {srd(SW1)}, s{sBo} offen offset:{1024*i} {opt("ntw", "")} lds')
    def last(a):
        st['dma'][c] = a.vm_issued
        a.e(f's_add_u32 s{sBo}, s{sBo}, {64*3456}')
    ops.append(last)
    return ops
def run(a, ops):
    for op in ops:
        if callable(op): op(a)
        else: a.e(op)

vAO = 128
vPK = 140; vSD = 160
sPo = 58; sPs = 62; sPf = 64; sSo = 60; sSs = 65
def aux_setup(a):
    q = 184
    a.e(f's_mul_i32 s{sT}, s{sZ}, 6\ns_add_u32 s{sT}, s{sT}, s{sC8}\ns_lshl_b32 s{sT}, s{sT}, 2\ns_add_u32 s{sT}, s{sT}, s{sW}')
    a.e(f's_mul_i32 s{sT+1}, s{sRB}, 27\ns_add_u32 s{sT+1}, s{sT+1}, s{sT}')
    a.e(f's_lshr_b32 s{sT+2}, s{sT+1}, 3\ns_and_b32 s{sT+3}, s{sT+1}, 7\ns_mul_i32 s{sPo}, s{sT+2}, 40960\ns_mul_i32 s{sT+5}, s{sT+3}, 160\ns_add_u32 s{sPo}, s{sPo}, s{sT+5}')
    a.e(f's_mul_i32 s{sPs}, s{sT+3}, 54\ns_add_u32 s{sPs}, s{sPs}, s{sT+2}\ns_mul_i32 s{sPs}, s{sPs}, 5120\ns_add_u32 s{sPs}, s{sPs}, {P_OFF}')
    a.e(f's_lshl_b32 s{sPf}, s{sT+1}, 7\ns_add_u32 s{sPf}, s{sPf}, {PF_OFF}')
    a.e(f's_cmp_lt_u32 s{sT}, 27\ns_cselect_b32 s{sT+4}, 0, {OOB}\ns_cselect_b32 s{sPo}, s{sPo}, 0')
    for i in range(5):
        a.e(f'v_add_u32 v{q}, {64*i}, v{vL}\nv_mul_u32_u24 v{q+1}, 0x667, v{q}\nv_lshrrev_b32 v{q+1}, 14, v{q+1}\nv_mul_u32_u24 v{q+1}, 0x460, v{q+1}')
        if i == 0: a.e(f'v_lshl_add_u32 v{vAO+9}, v{vL}, 4, s{sT+4}')
        a.e(f'v_add_u32 v{vAO+i}, v{vAO+9}, v{q+1}')
    a.e(f'v_add_u32 v{vAO+4}, 0x1000, v{vAO+4}')
    a.e(f's_mul_i32 s{sAUXm}, s{sW}, 5120\ns_add_u32 s{sAUXm}, s{sAUXm}, {AUX}')
def stats_setup(a):
    q = 184
    a.e(f's_mul_i32 s{sT}, s{sZ}, 6\ns_add_u32 s{sT}, s{sT}, s{sC8}\ns_lshl_b32 s{sT}, s{sT}, 2\ns_add_u32 s{sT}, s{sT}, s{sW}')
    a.e(f's_sub_u32 s{sT}, s{sT}, 12\ns_cmp_lt_u32 s{sT}, 32\ns_cselect_b32 s{sT+4}, 0, {OOB}\ns_cselect_b32 s{sT}, s{sT}, 0')
    a.e(f's_bitcmp1_b32 s{sT}, 4\ns_cselect_b32 s{sT+2}, s{sAUXm}, s{sRB}')
    a.e(f's_bfe_u32 s{sT+3}, s{sT}, 0x10003\ns_lshl_b32 s{sT+3}, s{sT+3}, 5\ns_add_u32 s{sT+2}, s{sT+2}, s{sT+3}\ns_and_b32 s{sT+3}, s{sT}, 7\ns_lshl_b32 s{sT+3}, s{sT+3}, 8\ns_add_u32 s{sT+2}, s{sT+2}, s{sT+3}\ns_mul_i32 s{sSo}, s{sT+2}, 1280')
    a.e(f's_lshl_b32 s{sT+2}, s{sRB}, 5\ns_add_u32 s{sT+2}, s{sT+2}, s{sT}\ns_lshl_b32 s{sSs}, s{sT+2}, 6\ns_add_u32 s{sSs}, s{sSs}, {ST_OFF}')
    a.e(f'v_lshrrev_b32 v{q}, 4, v{vL}\ns_mov_b32 s{sT+5}, 81920\nv_mul_lo_u32 v{q+1}, s{sT+5}, v{q}\nv_and_b32 v{q+2}, 15, v{vL}\nv_lshlrev_b32 v{q+2}, 4, v{q+2}\nv_add3_u32 v{vAO+7}, v{q+2}, v{q+1}, s{sT+4}')
    a.e(f'v_lshl_add_u32 v{vAO+8}, v{q}, 4, s{sT+4}')
def aux_setup2(a):
    q = 184
    a.e(f'v_lshrrev_b32 v{q}, 5, v{vL}\nv_lshlrev_b32 v{q}, 4, v{q}\nv_bfe_u32 v{q+1}, v{vL}, 4, 1\nv_lshl_add_u32 v{q}, v{q+1}, 2, v{q}')
    a.e(f'v_bfe_u32 v{q+1}, v{vL}, 2, 2\nv_add_u32 v{q}, v{q}, v{q+1}\nv_mul_u32_u24 v{q}, 160, v{q}\nv_add_u32 v{q}, s{sAUXm}, v{q}')
    a.e(f'v_and_b32 v{q+1}, 3, v{vL}\nv_lshl_add_u32 v{vAO+5}, v{q+1}, 4, v{q}\nv_lshl_add_u32 v{vAO+6}, v{q+1}, 3, v{q}')

def unc_vm(text):
    def op(a): a.e(text); a.vm_issued -= 1
    return op
def unc_lg(text):
    def op(a): a.e(text); a.lg_issued -= 1
    return op
def pack_dma(st):
    o = []
    for i in range(5):
        def op(a, i=i):
            if i in (0, 4): a.e(f's_add_u32 m0, s{sAUXm}, {4096 if i else 0}')
            st['pk'] = a.vm(f'buffer_load_dwordx4 v{vAO+i}, {srd(SW2)}, s{sPo} offen offset:{(1024*i)%4096} {opt("ntp", "")} lds')
        o.append(op)
    return o
def pack_reads(st):
    o = [lambda a: a.wait(vm=st['pk'])]
    for ct in range(5):
        for h in range(2):
            t = (f'ds_read_b64_tr_b16 v[{vPK+4*ct+2*h}:{vPK+4*ct+2*h+1}], v{vAO+5} offset:{(ct>>1)*64+(ct&1)*8+h*1280}' if ct < 4 else
                 f'ds_read_b64_tr_b16 v[{vPK+4*ct+2*h}:{vPK+4*ct+2*h+1}], v{vAO+6} offset:{128+h*1280}')
            o.append(lambda a, t=t, ct=ct: st.__setitem__(('pr', ct), a.lg(t)))
    return o
def pack_stores(st):
    o = []
    for ct in range(5):
        def op(a, ct=ct):
            a.wait(lg=st[('pr', ct)])
            if ct == 4: a.e(f's_add_u32 s{sPs}, s{sPs}, 4096')
            st['ps'] = a.vm(f'buffer_store_dwordx4 v[{vPK+4*ct}:{vPK+4*ct+3}], v{vAO+9}, {srd(SWS)}, s{sPs} offen offset:{(1024*ct)%4096} sc1')
        o.append(op)
    return o
def aux_publish(st):
    g = 186
    def op(a):
        a.e(f'v_mov_b32 v{g+3}, s{sTAG}\ns_mov_b32 exec_lo, 0x00010001\ns_mov_b32 exec_hi, 0x00010001')
        a.vm(f'buffer_store_dwordx4 v[{g}:{g+3}], v{vAO+8}, {srd(SWS)}, s{sSs} offen sc1')
        a.wait(vm=st['ps'])
        a.e('s_mov_b64 exec, 1')
        a.vm(f'buffer_store_dword v{g+3}, v{vAO+9}, {srd(SWS)}, s{sPf} offen sc1')
        a.e('s_mov_b64 exec, -1'); stamp(a, 'pf')
    return op
def stats_loads(st):
    return [lambda a, i=i: st.__setitem__('sl', a.vm(f'buffer_load_dwordx4 v[{vSD+4*i}:{vSD+4*i+3}], v{vAO+7}, {srd(SX)}, s{sSo} offen offset:{256*i}')) for i in range(5)]
def stats_proc(st):
    q = 180; g = 186; d = vSD
    o = [lambda a: a.wait(vm=st['sl']), f's_mov_b32 s{sT}, 0xbf803f80']
    o += [f'v_mov_b32 v{q+k}, 0' for k in range(3)]
    o += [f'v_dot2c_f32_bf16 v{q}, s{sONES}, v{d+r}\nv_dot2c_f32_bf16 v{q+1}, v{d+r}, v{d+r}\nv_dot2c_f32_bf16 v{q+2}, s{sT}, v{d+r}' for r in range(20)]
    for sh in (8, 4, 2, 1):
        o += [f'v_add_f32_dpp v{q+k}, v{q+k}, v{q+k} row_ror:{sh} row_mask:0xf bank_mask:0xf' for k in range(3)]
    o += L(f'v_mul_f32 v{q}, {fhex(1/640)}, v{q}\nv_mul_f32 v{q+1}, {fhex(1/640)}, v{q+1}')
    o += L(f'v_fma_f32 v{q+1}, -v{q}, v{q}, v{q+1}\nv_max_f32 v{q+1}, 0, v{q+1}\nv_add_f32 v{q+1}, {fhex(1e-5)}, v{q+1}')
    o += L(f'v_rsq_f32 v{q+3}, v{q+1}\nv_sqrt_f32 v{g+1}, v{q+1}\nv_sub_f32 v{g}, 0, v{q}\nv_mul_f32 v{g+2}, v{q+2}, v{q+3}')
    return o

def nonce_pub(a):
    if opt('wsb', 0): a.e(f's_add_u32 s80, s80, {opt("wsb", 0) << 20}\ns_addc_u32 s81, s81, 0')
    a.e(mk_srd(SWS, 80, WS_END)); a.e(mk_srd(SOUT, 76, 2048*1280))
    a.e(f's_mov_b64 s[{sB1}:{sB1+1}], s[70:71]\ns_mov_b64 s[{sB2}:{sB2+1}], s[74:75]\ns_mov_b64 s[{sDBG}:{sDBG+1}], s[78:79]')
    ln = label('non')
    a.e(f's_or_b32 s{sT}, s2, s{sW}\ns_cmp_lg_u32 s{sT}, 0\ns_cbranch_scc1 {ln}')
    a.e(f's_memrealtime s[{sT+1}:{sT+2}]\ns_waitcnt lgkmcnt(0)\ns_or_b32 s{sT}, s{sT+1}, 1')
    a.e(f'v_mov_b32 v{vT}, 0\nv_mov_b32 v{vT+1}, s{sT}')
    a.e(f'global_store_dword v{vT}, v{vT+1}, s[{sDBG}:{sDBG+1}] sc1'); a.vm_issued -= 1
    a.e(f'{ln}:')

def setup2(a, t):
    a.e(f's_mov_b32 s{sONES}, 0x3f803f80')
    a.e(f's_sub_u32 s{sT+2}, 32, s{sRB}\ns_cmp_eq_u32 s{sRB}, 0\ns_cselect_b32 s{sT+2}, 16, s{sT+2}')
    a.e(f's_cmp_eq_u32 s{sZ}, 1\ns_cselect_b32 s{sT1}, s{sT+2}, s{sRB}\ns_mov_b32 s{sC}, s{sC8}')
    a.e(f's_mul_i32 s{sTAU}, s{sW}, 14\ns_cmp_eq_u32 s{sW}, 3\ns_cselect_b32 s{sTAU}, 41, s{sTAU}')
    a.e(f'v_and_b32 v{vT}, 31, v{vL}\nv_lshrrev_b32 v{vT+1}, 5, v{vL}')
    a.e(f'v_bfe_u32 v{vT+2}, v{vL}, 1, 3\nv_xor_b32 v{vT+2}, v{vT+2}, v{vT+1}')
    a.e(f'v_lshlrev_b32 v{vT+3}, 7, v{vT}\nv_add_u32 v{vT+3}, s{sMA}, v{vT+3}\nv_lshl_add_u32 v{vAR[0]}, v{vT+2}, 4, v{vT+3}')
    for s in range(1, 4): a.e(f'v_xor_b32 v{vAR[s]}, {s<<5}, v{vAR[0]}')
    a.e(f'v_bfe_u32 v{vT+4}, v{vL}, 2, 2\nv_lshl_add_u32 v{vT+2}, v{vT+1}, 3, v{vT+4}\nv_mul_u32_u24 v{vT+2}, {t.pitch}, v{vT+2}')
    a.e(f'v_bfe_u32 v{vT+3}, v{vL}, 4, 1\nv_lshl_add_u32 v{vT+2}, v{vT+3}, 5, v{vT+2}')
    a.e(f'v_and_b32 v{vT+3}, 3, v{vL}\nv_lshl_add_u32 v{vT+2}, v{vT+3}, 3, v{vT+2}\nv_add_u32 v{vT+2}, {BBASE}, v{vT+2}')
    if t.nG == 2: a.e(f'v_lshrrev_b32 v{vT+4}, 1, v{vT+4}')
    for i in range(t.nG):
        a.e(f's_add_u32 s{sT}, s{sW}, {i}\ns_and_b32 s{sT}, s{sT}, {t.nG-1}')
        a.e(f'v_xor_b32 v{vT+3}, s{sT}, v{vT+4}\nv_lshl_add_u32 v{vBR[i]}, v{vT+3}, 6, v{vT+2}')
        a.e(f's_mul_i32 s{sH[i]}, s{sROW}, 54\ns_add_u32 s{sH[i]}, s{sH[i]}, s{sG0}\ns_add_u32 s{sH[i]}, s{sH[i]}, s{sT}\ns_lshl_b32 s{sH[i]}, s{sH[i]}, 11')
    a.e(f's_lshl_b32 s{sFL}, s2, 2\ns_add_u32 s{sFL}, s{sFL}, s{sW}\ns_lshl_b32 s{sFL}, s{sFL}, 7\ns_add_u32 s{sFL}, s{sFL}, {F_OFF}')
    a.e(f'v_and_b32 v{vT}, 15, v{vL}\nv_bfe_u32 v{vT+1}, v{vL}, 4, 1\nv_mov_b32 v{vT+2}, s{sONES}\nv_cmp_eq_u32 vcc, v{vT}, v{vT+1}\nv_cndmask_b32 v{vT+2}, 0, v{vT+2}, vcc')
    for k in range(4): a.e(f'v_accvgpr_write_b32 a{192+k}, v{vT+2}')
    a.e(f'v_lshlrev_b32 v{vL16}, 4, v{vL}')
    a.e(f'v_lshlrev_b32 v{vHO}, 10, v{vT+1}\nv_lshrrev_b32 v{vT+1}, 5, v{vL}\nv_lshl_add_u32 v{vHO}, v{vT+1}, 8, v{vHO}\nv_lshl_add_u32 v{vHO}, v{vT}, 4, v{vHO}')

vSG = 244
def gen_D(a, t, tmp):
    q = tmp
    a.e(f'v_and_b32 v{q}, 31, v{vL}\nv_lshrrev_b32 v{q+1}, 5, v{vL}\nv_lshlrev_b32 v{q+1}, 3, v{q+1}\nv_and_b32 v{q+3}, 1, v{vL}')
    a.e(f'v_cmp_eq_u32 vcc, 0, v{q+3}\nv_cndmask_b32 v{q+2}, 0, 0.5, vcc\nv_cndmask_b32 v{vSG}, 1.0, -1.0, vcc')
    a.e(f's_mul_i32 s{sT+1}, s{sW}, {5*2048}\ns_add_u32 s{sT+1}, s{sT+1}, {t.DREG}\nv_add_u32 v{q+3}, s{sT+1}, v{vL16}')
    a.e(f's_lshl_b32 s{sT}, s{sDT}, 4\ns_add_u32 s{sT}, s{sT}, 1\nv_add_u32 v{q+4}, s{sT}, v{q}\nv_cvt_f32_u32 v{q+4}, v{q+4}\nv_mul_f32 v{q+4}, {fhex(1/640)}, v{q+4}')
    for k5 in range(5):
        a.e(f's_mul_i32 s{sT}, s{sW}, 5\ns_add_u32 s{sT}, s{sT}, {k5}\ns_and_b32 s{sT+2}, s{sT}, 1\ns_lshr_b32 s{sT}, s{sT}, 1\ns_lshl_b32 s{sT}, s{sT}, 5\ns_add_u32 s{sT}, s{sT}, s{sT+2}')
        o = q + 8
        a.e(f'v_add_u32 v{q+6}, s{sT}, v{q+1}\nv_cvt_f32_u32 v{q+6}, v{q+6}\nv_fma_f32 v{o}, v{q+6}, v{q+4}, v{q+2}')
        for i in range(1, 8): a.e(f'v_fmamk_f32 v{o+i}, v{q+4}, {fhex(float(16*(i>>2) + 2*(i&3)))}, v{o}')
        for i in range(8): a.e(f'v_cos_f32 v{o+8+i}, v{o+i}\nv_sin_f32 v{o+i}, v{o+i}')
        for ip in range(4): a.e(cvtpk(o+8+ip, o+8+2*ip, o+9+2*ip))
        a.lg(f'ds_write_b128 v{q+3}, v[{o+8}:{o+11}] offset:{(k5*2)*1024}')
        for ip in range(4): a.e(cvtpk(o+16+ip, o+2*ip, o+1+2*ip))
        a.lg(f'ds_write_b128 v{q+3}, v[{o+16}:{o+19}] offset:{(k5*2+1)*1024}')

import math
def bf16(x):
    u = struct.unpack('<I', struct.pack('<f', x))[0]
    return ((u + 0x7fff + ((u >> 16) & 1)) >> 16) & 0xffff
def F_table():
    w = []
    for fn in (math.cos, math.sin, lambda x: -math.sin(x)):
        for f in range(2):
            for l in range(64):
                t1 = l & 31; hi = l >> 5
                v = [bf16(round(fn(2*math.pi*((t1*(16*f + 8*(i >> 2) + 4*hi + (i & 3))) % 32)/32), 12)) for i in range(8)]
                w += [v[2*k] | (v[2*k+1] << 16) for k in range(4)]
    return w
def load_F():
    return [f'global_load_dwordx4 {aF(k)}, v{vL16}, s[82:83] offset:{1024*k}' for k in range(4)] + ['s_add_u32 s82, s82, 4096\ns_addc_u32 s83, s83, 0'] + [f'global_load_dwordx4 {aF(4+k)}, v{vL16}, s[82:83] offset:{1024*k}' for k in range(2)]

def rot_ids(a):
    for j in range(4):
        a.e(f's_add_u32 s{sT}, s{sW}, {1+j}\ns_and_b32 s{sT+1}, s{sT}, 1\ns_bfe_u32 s{sT}, s{sT}, 0x10001')
        a.e(f's_lshl_b32 s{sT}, s{sT}, 5\ns_add_u32 s{sT}, s{sT}, s{sT1}\ns_lshl_b32 s{sT+1}, s{sT+1}, 10\ns_add_u32 s{sHB[j]}, s{sT}, s{sT+1}')
def gen_TW(a, t, sT=sT):
    a.e(f'v_and_b32 v{t}, 15, v{vL}\nv_lshrrev_b32 v{t+1}, 4, v{vL}\ns_lshl_b32 s{sT}, s{sW}, 2\nv_add_u32 v{t+1}, s{sT}, v{t+1}')
    a.e(f'v_sub_u32 v{t+2}, 32, v{t+1}\nv_cmp_eq_u32 vcc, 0, v{t+1}\nv_cndmask_b32 v{t+2}, v{t+2}, 16, vcc')
    a.e(f's_mov_b32 s{sT+1}, 0x3a000000')
    a.e(f's_cmp_ge_u32 s{sC}, 4\ns_cselect_b32 s{sT+1}, s{sT+1}, 0xba000000')
    a.e(f'v_cvt_f32_u32 v{t+1}, v{t+1}\nv_cvt_f32_u32 v{t+2}, v{t+2}\nv_add_f32 v{t+3}, {fhex(32.0)}, v{t+1}\nv_add_f32 v{t+4}, {fhex(32.0)}, v{t+2}')
    s2r = [t+1, t+3, t+2, t+4]
    a.e(f'v_lshlrev_b32 v{t}, 6, v{t}')
    for j in range(4):
        a.e(f'v_add_u32 v{t+5}, s{sHB[j]}, v{t}\nv_cvt_f32_u32 v{t+5}, v{t+5}\nv_mul_f32 v{t+5}, s{sT+1}, v{t+5}')
        for w in range(4): a.e(f'v_mul_f32 v{t+6+w}, v{t+5}, v{s2r[w]}')
        for w in range(4): a.e(f'v_cos_f32 v{t+10+w}, v{t+6+w}\nv_sin_f32 v{t+6+w}, v{t+6+w}')
        for w in range(4): a.e(cvtpk(t+6+w, t+10+w, t+6+w))
        for w in range(4): a.e(f'v_accvgpr_write_b32 a{aTW+4*j+w}, v{t+6+w}')

def check_loop(a, load_text, vval, nl, cnt):
    ok, lp = label('ok'), label('lp')
    if nl < 64: a.e(f's_mov_b32 exec_lo, {hex(((1<<nl)-1)&0xffffffff)}\ns_mov_b32 exec_hi, {hex(((1<<nl)-1)>>32)}')
    a.e(f'v_cmp_ne_u32 vcc, s{sTAG}, v{vval}\ns_mov_b32 s{cnt}, 0\ns_cbranch_vccz {ok}')
    a.e(f'{lp}:\ns_sleep {opt("slp", 1)}')
    a.e(load_text); a.vm_issued -= 1
    a.e(f's_waitcnt vmcnt(0)\nv_cmp_ne_u32 vcc, s{sTAG}, v{vval}\ns_add_u32 s{cnt}, s{cnt}, 1\ns_cmp_gt_u32 s{cnt}, 100000\ns_cbranch_scc1 {ok}\ns_cbranch_vccnz {lp}')
    a.e(f'{ok}:')
    if nl < 64: a.e('s_mov_b64 exec, -1')

def nonce_check(a, tok):
    ok, lp = label('nok'), label('nlp')
    a.wait(vm=tok)
    a.e(f'v_readfirstlane_b32 s{sTAG}, v{vNON}\ns_mov_b32 s{sPC}, 0\ns_cmp_lg_u32 s{sTAG}, 0\ns_cbranch_scc1 {ok}')
    a.e(f'{lp}:\nv_mov_b32 v{vNON}, 0')
    a.e(f'global_load_dword v{vNON}, v{vNON}, s[{sDBG}:{sDBG+1}] sc1'); a.vm_issued -= 1
    a.e(f's_waitcnt vmcnt(0)\nv_readfirstlane_b32 s{sTAG}, v{vNON}\ns_add_u32 s{sPC}, s{sPC}, 1\ns_cmp_gt_u32 s{sPC}, 100000\ns_cbranch_scc1 {ok}')
    a.e(f's_cmp_eq_u32 s{sTAG}, 0\ns_cbranch_scc1 {lp}\n{ok}:')

SLOW = []
def adapt(a, text):
    return a.vm(text + ' sc1')
def set_flag_h(a, vt):
    a.e(f'v_mov_b32 v{vt}, 0\nv_mov_b32 v{vt+1}, s{sTAG}\ns_mov_b64 exec, 1')
    adapt(a, f'buffer_store_dword v{vt+1}, v{vt}, {srd(SWS)}, s{sFH} offen')
    a.e('s_mov_b64 exec, -1')
def set_flag(a, word, vt):
    a.e(f'v_mov_b32 v{vt}, {4*word}\nv_mov_b32 v{vt+1}, s{sTAG}\ns_mov_b64 exec, 1')
    a.vm(f'buffer_store_dword v{vt+1}, v{vt}, {srd(SWS)}, s{sFL} offen sc1')
    a.e('s_mov_b64 exec, -1')

def w2_load_ops(slot, st, cts=range(5)):
    ops = []
    for ct in cts:
        def op(a, ct=ct):
            vo = st['vL16d'] if slot == 13 else st.get('vW', vL16)
            need = 5120*slot + (4096 if ct == 4 else 0)
            if st.get('w2cur') != need: a.e(f's_add_u32 s{sW2o}, s{sUS}, {need}'); st['w2cur'] = need
            st['w2'][(slot, ct)] = a.vm(f'buffer_load_dwordx4 {W2(slot,ct)}, v{vo}, {srd(SWS)}, s{sW2o} offen offset:{(1024*ct)%4096} sc1')
        ops.append(op)
    return ops

vDS = 195
def P2(d, h): return f'v[{128+32*d+16*h}:{143+32*d+16*h}]'
def PE(p, par): b = 228 + 8*(p & 1) + 4*par; return b
def pass1(a, t, st):
    nG = t.nG; NK = 40 if nG == 4 else 42
    def dinfo(ks): return (ks & 1, (ks - 2) >> 1) if (nG == 2 and ks >= 2) else None
    def rdW(ks, i):
        c, s = divmod(ks, 4); o = []
        if i < nG:
            if ks >= 40: return []
            for h in range(2):
                o.append(lambda a, h=h: st['w'].__setitem__((ks, i), a.lg(f'ds_read_b64_tr_b16 {WB(ks&1,i,h)}, v{vBR[i]} offset:{(c%4)*t.bslot + s*16*t.pitch + h*4*t.pitch}')))
        elif dinfo(ks):
            d, p = dinfo(ks)
            o.append(lambda a: st['w'].__setitem__((ks, i), a.lg(f'ds_read_b128 {WB(ks&1,i)}, v{vDS} offset:{(((p%10)*2 + i-2)*2 + d)*1024}')))
        return o
    def rdA(c, s):
        return f'ds_read_b128 {X(4*c+s)}, v{vAR[s]} offset:{ARING + (c%4)*16384}'
    st['w'] = {}
    if nG == 2: a.e(f'v_add_u32 v{vDS}, {t.DREG}, v{vL16}\ns_mov_b32 s{sE+2}, 0x05040100\ns_mov_b32 s{sE+3}, 0x07060302')
    a.wait(vm=st['dma'][0], lg=a.lg_issued)
    a.e('s_barrier')
    stamp(a, 2)
    a.e(rdA(0, 0))
    for i in range(4): run(a, rdW(0, i))
    for s in range(1, 4): a.e(rdA(0, s))
    S = Sched(); first = {}
    for ks in range(NK):
        c, s = divmod(ks, 4); buf = ks & 1
        for i in range(4):
            pre = []
            if i == 0 and s == 3 and c < 9:
                pre.append(lambda a, c=c: (a.wait(vm=st['dma'][c+1]), a.e('s_barrier')))
            if i in (0, 2):
                pre.append(lambda a, ks=ks, i=i: a.wait(lg=st['w'][(ks, i+1)]) if (ks, i+1) in st['w'] else None)
            m = None
            if i < nG:
                if ks < 40: m = f'v_mfma_f32_32x32x16_bf16 {ACC1(i)}, {WB(buf,i)}, {X(ks)}, {"0" if ks == 0 else ACC1(i)}'
            elif dinfo(ks):
                d, p = dinfo(ks); b = PE(p, i-2)
                m = f'v_mfma_f32_32x32x16_bf16 {P2(d, i-2)}, v[{b}:{b+3}], {WB(buf,i)}, {"0" if p == 0 else P2(d, i-2)}'
            idx = S.add(m, pre)
            if i == 0: first[ks] = idx
            if i == 0 and ks < 37: S.put(idx, [f'v_mfma_f32_16x16x32_bf16 {aCS}, {aSEL}, {WB(buf,0)}, {"0" if ks == 0 else aCS}'])
        if ks < NK - 1:
            rd = [rdA(c+1, 0)] if (s == 3 and c < 9) else []
            k = len(rd)
            for i in range(4): rd += rdW(ks+1, i)
            if nG == 4: S.put(first[ks], rd[:k+3]); S.put(first[ks]+1, rd[k+3:7]); S.put(first[ks]+2, rd[7:])
            else: S.put(first[ks], rd[:k+3]); S.put(first[ks]+1, rd[k+3:])
            if s == 3 and c < 9: S.put(first[ks]+3, [rdA(c+1, 1)])
            if s == 0 and 0 < c < 10: S.put(first[ks]+3, [rdA(c, 2), rdA(c, 3)])
        if nG == 2 and ks & 1 and ks < 40:
            p = ks >> 1; xa = 196 + 4*((ks-1) % 8); xb = 196 + 4*(ks % 8)
            pm = []
            for par in range(2):
                for k, src in enumerate((xa, xa+2, xb, xb+2)): pm.append(f'v_perm_b32 v{PE(p,par)+k}, v{src+1}, v{src}, s{sE+2+par}')
            S.put(first[ks]+2, pm[:4]); S.put(first[ks]+3, pm[4:])
    if nG == 2:
        for d in range(2): S.spread([f'v_mul_f32 v{128+32*d+k}, v{vSG}, v{128+32*d+k}' for k in range(32)], first[21+d]+1, first[22+d]+1)
    exb = 160 if nG == 4 else 84
    ex = []
    for n in range(3):
        for h in range(2):
            ex.append(lambda a, n=n, h=h: st.__setitem__('ex', a.lg(f'ds_read_b64_tr_b16 v[{exb+4*n+2*h}:{exb+1+4*n+2*h}], v{vBR[0]} offset:{(9%4)*t.bslot + (n+1)*16*t.pitch + h*4*t.pitch}')))
    mm = [lambda a: a.wait(lg=st['ex'])] + [f'v_mfma_f32_16x16x32_bf16 {aCS}, {aSEL}, v[{exb+4*n}:{exb+3+4*n}], {aCS}' for n in range(3)]
    S.put(first[35]+3, ex[:3]); S.put(first[36]+3, ex[3:]); S.put(first[37], mm); st['cs_slot'] = first[37] + 3; st['bar_slot'] = first[38] + 2
    gaps = []
    for ks in range(40):
        gaps += [(ks, first[ks]), (ks, first[ks]+2)] + ([(ks, first[ks]+3)] if ks < opt('ncu', 6) else [])
    gi = 0
    for c in range(st['next_chunk'], 10):
        ops = dma_ops(t, c, st)
        A = ops[1:5]; B = ops[6:-1]
        eA = (c-3)*4 if c >= 4 else 0
        eB = (c-2)*4 - 1 if c >= 4 else 0
        lo = max(0, (c - opt('la', 2) - 1)*4 + 1)
        for k, op in enumerate(A + B):
            e = max(eA if k < 4 else eB, lo)
            while gaps[gi][0] < e: gi += 1
            pre = [ops[0]] if k == 0 else ([ops[5]] if k == 4 else [])
            post = [ops[-1]] if k == 3 + len(B) else []
            g = gaps[gi][1]
            if pre: S.put(g - 1 if g > 0 else g, pre)
            if k == 0: st.setdefault('grp', {})[c] = (g - 1 if g > 0 else g, pre[0], gaps[gi][0])
            S.put(g, [op] + post); gi += 1
        assert gaps[gi-1][0] < c*4 - 1, (c, gaps[gi-1])
    return S, first

AUGW = None
def h_aug_x(tmp):
    p, q2 = tmp+4, tmp+5
    o = [cvtpk(p, vNM, vSDV), f'v_lshlrev_b32 v{tmp+6}, 16, v{p}', f'v_and_b32 v{tmp+7}, 0xffff0000, v{p}',
         f'v_sub_f32 v{tmp+6}, v{vNM}, v{tmp+6}', f'v_sub_f32 v{tmp+7}, v{vSDV}, v{tmp+7}', cvtpk(q2, tmp+6, tmp+7)]
    o += [f'v_mov_b32 v{tmp+k}, 0' for k in range(4)]
    o += [f's_mov_b32 s{sT+3}, 0x05040100\ns_mov_b32 exec_hi, 0\nv_perm_b32 v{tmp}, v{q2}, v{p}, s{sT+3}\nv_mov_b32 v{tmp+1}, v{p}\nv_lshrrev_b32 v{tmp+2}, 16, v{q2}\ns_mov_b32 exec_hi, -1']
    return o
def h_aug_w(st, i, tmp, vtb):
    b = AUGW[i]
    rd = [lambda a: st['tb'].__setitem__(i, a.lg(f'ds_read2_b32 v[{b+4}:{b+5}], v{vtb} offset0:0 offset1:128'))]
    mk = [lambda a: a.wait(lg=st['tb'][i]), cvtpk(b, b+4, b+4), cvtpk(b+2, b+5, b+5), f'v_and_b32 v{b+1}, 0xffff0000, v{b}', f'v_mov_b32 v{b+3}, 0',
          f'v_sub_f32 v{b+1}, v{b+4}, v{b+1}', cvtpk(b+1, b+1, b+5)]
    mf = [f'v_mfma_f32_32x32x16_bf16 {ACC1(i)}, v[{b}:{b+3}], v[{tmp}:{tmp+3}], {ACC1(i)}']
    return rd, mk, mf
def h_fin(st, i, u):
    acc = 32 + 16*i + 8*u; o = []
    for k in range(8): o.append(f'v_max_f32 v{acc+k}, 0, v{acc+k}')
    for k in range(8): o.append(f'v_mul_f32 v{acc+k}, v{vR}, v{acc+k}')
    for k in range(8): o.append(f'v_mul_f32 v{acc+k}, v{acc+k}, v{acc+k}')
    for k in range(4): o.append(cvtpk(acc+k, acc+2*k, acc+2*k+1))
    if opt('nohst', 0): o.append(lambda a: st.__setitem__('hst', a.vm_issued))
    else: o.append(lambda a: st.__setitem__('hst', adapt(a, f'buffer_store_dwordx4 v[{acc}:{acc+3}], v{vHO}, {srd(SWS)}, s{sH[i]} offen offset:{512*u}')))
    return o

class Rec:
    def __init__(self): self.ops = []; self.tok = {}
    def e(self, text):
        ls = L(text); i = 0
        while i < len(ls):
            j = i + 1
            if ls[i].startswith('s_cmp') or ls[i].startswith('s_bitcmp') or ls[i].startswith('v_cmp'):
                while j < len(ls) and not (ls[j].startswith('s_cselect') or ls[j].startswith('s_cbranch') or ls[j].startswith('v_cndmask')): j += 1
                while j < len(ls) and (ls[j].startswith('s_cselect') or ls[j].startswith('s_cbranch') or ls[j].startswith('v_cndmask')): j += 1
            self.ops.append('\n'.join(ls[i:j])); i = j
    def lg(self, text): self.ops.append(text)
    def vm(self, text, key='t'):
        self.ops.append(lambda a: self.tok.__setitem__(key, a.vm(text)))
def merge(main, other):
    out = []; n, m = len(main), len(other); k = 0
    for i, op in enumerate(main):
        out.append(op)
        while k < m and (k + 1) * n <= (i + 1) * m + m - 1 and k * n <= i * m: out.append(other[k]); k += 1
    return out + other[k:]

def touch_ops(t, lo, hi, q=188):
    n = hi - lo
    o = [f'v_mov_b32 v{q+2}, {OOB}']
    o += L(f'v_and_b32 v{q}, 3, v{vL}\ns_lshl_b32 s{sPC}, s{sC8}, 2\nv_add_u32 v{q}, s{sPC}, v{q}\nv_mul_u32_u24 v{q}, 640, v{q}\nv_lshrrev_b32 v{q+1}, 2, v{vL}\nv_add3_u32 v{q}, v{q}, v{q+1}, {lo}\nv_lshlrev_b32 v{q}, 7, v{q}')
    o += [f'v_cmp_gt_u32 vcc, {4*n}, v{vL}\nv_cndmask_b32 v{q}, v{q+2}, v{q}, vcc', f's_mul_i32 s{sPC}, s{sROW}, 1280']
    o += [f'buffer_load_dword v{vPF}, v{q}, {srd(SX)}, s{sPC} offen {opt("ntx", "")}']
    if t.nG == 4: o += L(f'v_lshrrev_b32 v{q}, 1, v{vL}\nv_and_b32 v{q+1}, 1, v{vL}')
    else: o += L(f'v_mov_b32 v{q}, v{vL}\nv_mov_b32 v{q+1}, 0')
    o += L(f'v_lshlrev_b32 v{q}, 4, v{q}\ns_and_b32 s{sPC}, s{sRB}, 3\ns_lshl_b32 s{sPC}, s{sPC}, 2\ns_add_u32 s{sPC}, s{sPC}, s{sW}\ns_add_u32 s{sPC}, s{sPC}, {64*lo}')
    o += L(f'v_add_u32 v{q}, s{sPC}, v{q}\nv_mul_u32_u24 v{q}, 0xd80, v{q}\nv_lshl_add_u32 v{q}, v{q+1}, 7, v{q}\ns_lshl_b32 s{sPC}, s{sG0}, 6')
    o += [f'v_cmp_gt_u32 vcc, {(8 if t.nG == 4 else 4)*n}, v{vL}\nv_cndmask_b32 v{q}, v{q+2}, v{q}, vcc']
    o += [f'buffer_load_dword v{vPF}, v{q}, {srd(SW1)}, s{sPC} offen {opt("ntw", "")}']
    assert n <= 8
    return o

vTX, vTW = 193, 194; sTX, sTW = 52, 63
def roll_setup(t, n):
    q = 188
    o = L(f'v_mov_b32 v{q+2}, {OOB}\nv_and_b32 v{q+3}, 3, v{vL}\nv_lshrrev_b32 v{q+1}, 2, v{vL}\ns_mul_i32 s{sPC}, s{sZ}, 6\ns_add_u32 s{sPC}, s{sPC}, s{sC8}\ns_mul_i32 s{sPC}, s{sPC}, 3')
    if opt('rx', 0):
        o += L(f'v_add_u32 v{q}, s{sPC}, v{q+3}\nv_min_u32 v{q}, 31, v{q}\nv_mul_u32_u24 v{q}, 640, v{q}\nv_add_lshl_u32 v{q}, v{q}, v{q+1}, 7')
        o += [f'v_cmp_gt_u32 vcc, {4*n}, v{vL}\nv_cndmask_b32 v{q}, v{q+2}, v{q}, vcc', f'v_cmp_gt_u32 vcc, 3, v{q+3}\nv_cndmask_b32 v{vTX}, v{q+2}, v{q}, vcc', f's_mul_i32 s{sTX}, s{sROW}, 1280']
    o += L(f's_mul_i32 s{sTW}, s{sZ}, 12\ns_add_u32 s{sTW}, s{sTW}, s{sC8}\ns_add_u32 s{sTW}, s{sTW}, 12\ns_lshl_b32 s{sTW}, s{sTW}, 7\ns_add_u32 s{sPC}, s{sZ}, 2')
    o += [f's_cmp_lt_u32 s{sC8}, s{sPC}\ns_cselect_b32 s{sTW}, s{sTW}, {OOB}', f'v_mov_b32 v{q}, s{sTW}', f's_lshl_b32 s{sPC}, s{sG0}, 6', f'v_lshl_add_u32 v{vTW}, v{q+3}, 7, s{sPC}']
    o += [f'v_cmp_eq_u32 vcc, 2, v{q+3}\nv_cndmask_b32 v{vTW}, v{vTW}, v{q}, vcc', f'v_cmp_eq_u32 vcc, 3, v{q+3}\nv_cndmask_b32 v{vTW}, v{vTW}, v{q+2}, vcc']
    o += L(f's_lshl_b32 s{sPC}, s{sRB}, 2\ns_add_u32 s{sPC}, s{sPC}, s{sW}\nv_lshl_add_u32 v{q}, v{q+1}, 6, s{sPC}\nv_mul_u32_u24 v{q}, 0xd80, v{q}\nv_add_u32 v{vTW}, v{vTW}, v{q}')
    o += [f'v_cmp_gt_u32 vcc, {4*n}, v{vL}\nv_cndmask_b32 v{vTW}, v{q+2}, v{vTW}, vcc', f's_mov_b32 s{sTW}, 0']
    return o
def roll(st, lo):
    def op1(a):
        d = lo - st.get('roll', 0); st['roll'] = lo
        if d: a.e((f's_add_u32 s{sTX}, s{sTX}, {128*d}\n' if opt('rx', 0) else '') + f's_add_u32 s{sTW}, s{sTW}, {64*3456*d}')
        if opt('rx', 0): a.vm(f'buffer_load_dword v{vPF}, v{vTX}, {srd(SX)}, s{sTX} offen {opt("ntx", "")}')
    return [op1, f'buffer_load_dword v{vPF}, v{vTW}, {srd(SW1)}, s{sTW} offen {opt("ntw", "")}']

def build_type(a, t):
    st = {'dma': {}, 'w2': {}, 'tb': {}}
    nG, nD = t.nG, t.nD
    XV[0] = (nG == 2)
    rs = [x.split('@') for x in opt('rs', '1@s0').split(',') if x]
    at = lambda p: [o for c_, p_ in rs if p_ == p for o in roll(st, int(c_))]
    prologue_t(a, t, st)
    if nG == 4: run(a, at('s0'))
    run(a, dma_ops(t, 0, st)[5 if opt('ae', 1) else 0:])
    if nG == 4 and opt('rl', 0) == 1: run(a, roll_setup(t, opt('rn', 9)))
    stamp(a, 'p2')
    if nG == 4:
        stats_setup(a)
        if opt('se', 1): run(a, stats_loads(st))
    if nG == 4 and opt('rl', 0) == 2: run(a, roll_setup(t, opt('rn', 9)))
    if opt('bl', 0):
        a.e(f's_lshl_b32 s{sT+1}, s{sG0}, 6\nv_and_b32 v{vT+6}, {16*t.nG-1}, v{vL}\nv_lshl_add_u32 v{vT+6}, v{vT+6}, 2, s{sT+1}')
        a.vm(f'global_load_dword v{vT+7}, v{vT+6}, s[70:71]')
        a.e(f'v_bfe_u32 v{vT+5}, v{vL}, 0, 3\nv_mul_u32_u24 v{vT+5}, 0xa0, v{vT+5}')
        a.vm(f'global_load_dword v{vPF}, v{vT+5}, s[74:75]')
    a.e(mk_srd(SW2, 72, 1728*1280))
    nonce_pub(a)
    if opt('tlb', 21):
        sh = opt('tlb', 21)
        a.e(f'v_lshl_add_u32 v{vT}, v{vL}, 2, s{sW}\nv_lshlrev_b32 v{vT}, {sh}, v{vT}\ns_mov_b64 exec, {hex((1 << opt("tn", 2)) - 1)}')
        a.vm(f'buffer_load_dword v{vPF}, v{vT}, {srd(SWS)}, 0 offen sc1')
        a.e('s_mov_b64 exec, 3')
        a.vm(f'buffer_load_dword v{vPF}, v{vT}, {srd(SOUT)}, 0 offen sc1')
        a.e('s_mov_b64 exec, -1')
    stamp(a, 'p3')
    r = Rec()
    setup2(r, t)
    if nG == 4: aux_setup(r); aux_setup2(r)
    if nG == 2: gen_D(r, t, 96)
    rot_ids(r)
    if opt('twR', 0) if nG == 4 else opt('twS', 0): gen_TW(r, 96)
    main = r.ops
    vSA, vFA, vFV = vT+3, vT+4, vT+5
    st['vL16d'] = 192
    pre = L(f's_lshl_b32 s{sT}, s{sRB}, 2\ns_add_u32 s{sT}, s{sT}, s{sW}\ns_lshl_b32 s{sT}, s{sT}, 9\ns_add_u32 s{sT}, s{sT}, {ST_OFF}')
    pre += L(f'v_and_b32 v{vSA}, 31, v{vL}\nv_lshl_add_u32 v{vSA}, v{vSA}, 4, s{sT}')
    pre += L(f'v_add_u32 v{vFA}, s{sTAU}, v{vL}\nv_min_u32 v{vFA}, 53, v{vFA}')
    pre += L(f's_lshl_b32 s{sT}, s{sC}, 7\ns_add_u32 s{sT}, s{sT}, {PF_OFF}\nv_lshlrev_b32 v{vFA}, 10, v{vFA}\nv_add_u32 v{vFA}, s{sT}, v{vFA}')
    pre += L(f's_mul_i32 s{sUS}, s{sC}, 54\ns_add_u32 s{sUS}, s{sUS}, s{sTAU}\ns_mul_i32 s{sUS}, s{sUS}, 5120\ns_add_u32 s{sUS}, s{sUS}, {P_OFF}')
    pre += [f's_cmp_ge_u32 s{sW}, 2\ns_cselect_b32 s{sT}, {OOB}, 0', f'v_add_u32 v192, s{sT}, v{vL16}']
    vTB = [4, 5, 6, 7] if nG == 4 else [14, 15]; vRT = 3
    prep = L(f's_lshl_b32 s{sE+1}, s{sW}, 7\ns_add_u32 s{sE+1}, s{sE+1}, {TABR}\nv_and_b32 v{vT+6}, 31, v{vL}\nv_lshl_add_u32 v{vRT}, v{vT+6}, 2, s{sE+1}')
    for i in range(nG):
        prep += L(f's_add_u32 s{sE}, s{sW}, {i}\ns_and_b32 s{sE}, s{sE}, {nG-1}\ns_lshl_b32 s{sE}, s{sE}, 7\ns_add_u32 s{sE}, s{sE}, {TABC}\nv_lshl_add_u32 v{vTB[i]}, v{vT+6}, 2, s{sE}')
    prep += [f'v_lshrrev_b32 v{vT+6}, 5, v{vL}']
    nonl = [f'v_mov_b32 v{vNON}, 0', lambda a: st.__setitem__('non', a.vm(f'global_load_dword v{vNON}, v{vNON}, s[{sDBG}:{sDBG+1}] sc1'))]
    st['next_chunk'] = 2
    main = main + pre
    if nG == 4:
        n = len(main); c2 = n * opt('c2', 40) // 100; c3 = n * opt('c3', 50) // 100
        run(a, at('s1') + main[:c2] + at('s2') + main[c2:c3]); stamp(a, 'p4')
        run(a, merge(main[c3:], dma_ops(t, 1, st)) + nonl)
        sp = stats_proc(st); ps = pack_stores(st)
    else:
        n = len(main); c3 = n * opt('s3', 30) // 100
        run(a, main[:c3]); stamp(a, 'p4')
        run(a, merge(main[c3:], dma_ops(t, 1, st)) + nonl)
        tw2 = L(f's_mul_i32 s{sT}, s{sRB}, 10\ns_add_u32 s{sT}, s{sT}, s{sDT}\ns_lshl_b32 s{sT}, s{sT}, 1\ns_add_u32 s{sT}, s{sT}, s{sW}\ns_mul_i32 s{sT}, s{sT}, {54*128}\nv_lshlrev_b32 v64, 7, v{vL}')
        tw2 += [f's_mov_b32 exec_hi, 0x3fffff\nbuffer_load_dword v{vPF}, v64, {srd(SW2)}, s{sT} offen\ns_mov_b32 exec_hi, -1']
        if opt('tw2', 2) == 0: run(a, tw2)
    stamp(a, 1)
    S, first = pass1(a, t, st)
    NS = 4
    l = lambda ks: first[ks] + 3
    b1tab = L(f'v_lshlrev_b32 v{vT}, 16, v{vT+7}\nv_and_b32 v{vT+1}, 0xffff0000, v{vT+7}\nv_lshlrev_b32 v{vT+2}, 3, v{vL}\nv_add_u32 v{vT+2}, {TABB}, v{vT+2}\nds_write_b64 v{vT+2}, v[{vT}:{vT+1}]')
    S.spread(b1tab, first[3], l(3))
    S.put(l(opt('kn', 10)), [lambda a: nonce_check(a, st['non'])])
    if nG == 2 and opt('tw2', 2) > 0: S.put(l(opt('tw2', 2)), [lambda a: run(a, tw2)])
    if nG == 4:
        g_ = st['grp'][opt('ag', 3)]
        fl = S.slots[g_[0]]['fill']; fl.insert(fl.index(g_[1]), lambda a: run(a, pack_dma(st)))
        ka_ = g_[2]
        if not opt('se', 1):
            for k_, op_ in enumerate(stats_loads(st)): S.put(first[ka_ + k_] + 1, [op_])
        kb_ = opt('kb', 5)
        S.spread(pack_reads(st), first[kb_], l(kb_+1))
        if opt('dn', 1):
            S.put(first[kb_+1] + 3, [ps[0]])
            for k_, op_ in enumerate(ps[1:]): S.put(first[kb_+2+k_//2] + 1 + 2*(k_ & 1), [op_])
            e_ = kb_ + 4
        else:
            for k_, op_ in enumerate(ps): S.put(first[kb_+2+k_] + 1, [op_])
            e_ = kb_ + 6
        kd_ = opt('kd', 1) if opt('se', 1) else kb_ + 2
        S.put(l(kd_), sp[:5] + [lambda a: run(a, sp[5:25])]); S.spread(sp[25:], first[kd_+1], l(kd_+2))
        assert opt('kf', kb_ + 5) >= e_ and opt('kf', kb_ + 5) >= opt('kn', 10)
        S.put(l(opt('kf', kb_ + 5)), [aux_publish(st)])
        for c_, p_ in rs:
            if p_[0] != 's': S.put(l(int(p_)), roll(st, int(c_)))
    pfl = f'buffer_load_dword v{vFV}, v{vFA}, {srd(SWS)}, 0 offen sc1'
    stl = f'buffer_load_dwordx4 v[{vST}:{vST+3}], v{vSA}, {srd(SWS)}, 0 offen sc1'
    if nG == 2: S.spread(load_F(), l(13), l(16))
    sf = '' if nG == 4 else 'S'
    kq = opt('kq' + sf, 27 if nG == 4 else 30); kp = kq - 3
    early = opt('early', 1)
    S.put(l(opt('ks', 31)), [lambda a: st.__setitem__('stl', a.vm(stl))])
    S.put(l(kp if early else 38), [lambda a: st.__setitem__('pfl', a.vm(pfl))])
    pchk = lambda a: (a.wait(vm=st['pfl']), check_loop(a, pfl, vFV, 14, sPC), stamp(a, 'pc'))
    S.put(l(kq), [pchk if early else (lambda a: a.wait(vm=st['stl']))])
    allw = []
    for s_ in (range(14) if nG == 4 else list(range(3, 14)) + [0, 1, 2]): allw += w2_load_ops(s_, st)
    st['twq'] = []
    if opt('touchw', 0):
        nl_ = opt('tl', 16)
        tw = L(f's_bfe_u32 s{sT}, s2, 0x20003\nv_lshl_add_u32 v{vFA}, v{vL}, 2, s{sT}\nv_lshlrev_b32 v{vFA}, 7, v{vFA}\ns_mov_b32 s{sTX}, s{sUS}')
        S.put(l(kq), tw)
        nb_ = -(-130 // nl_)
        for j in range(nb_):
            n_ = min(nl_, 130 - j*nl_)
            op = f's_mov_b64 exec, {hex((1 << n_) - 1)}\nbuffer_load_dword v{vPF}, v{vFA}, {srd(SWS)}, s{sTX} offen sc1\ns_mov_b64 exec, -1\ns_add_u32 s{sTX}, s{sTX}, {nl_*512}'
            k_ = kq + 1 + opt('tstep', 3)*j
            if k_ < 40: S.put(first[k_] + 1, [op])
            else: st['twq'].append(op)
    n0 = 0
    kA, kB = kq + 1, opt('kB' + sf, 31)
    for ks in range(kA, 40):
        pos_ = [first[ks] + 1] if ks < kB else sorted([first[ks], first[ks] + NS - 2, first[ks] + 1, first[ks] + 3][:opt('ne' + sf, 3)])
        if ks < kB and (ks - kA) % opt('kAs' + sf, 2 if nG == 4 else 1): pos_ = []
        for p_ in pos_: S.put(p_, [allw[n0]]); n0 += 1
    assert n0 <= (60 if nG == 4 else 44 - opt('naS', 6) - opt('dr1', 0))
    global AUGW
    tmp = 172 if nG == 4 else 64
    AUGW = [160, 166, 96, 102] if nG == 4 else [72, 78]
    e1 = [lambda a: (a.wait(vm=st['stl']), check_loop(a, stl, vST+3, 64, sPC))]
    e1 += [f'v_rcp_f32 v{vR}, v{vSDV}']
    if nG == 2: e1 += [f's_nop 0\nds_write2st64_b32 v{vRT}, v{vR}, v{vAL} offset0:0 offset1:2']
    e1 += h_aug_x(tmp)
    S.spread(prep, first[31], l(33)); S.spread(e1, first[34], l(36))
    e2 = L(f'v_accvgpr_read_b32 v{vT}, a196\nv_accvgpr_read_b32 v{vT+1}, a197')
    e2 += [f's_mov_b64 exec, 0xffff\nds_write2_b32 v{vTB[0]}, v{vT}, v{vT+1} offset0:0 offset1:16\ns_mov_b64 exec, -1', lambda a: st.__setitem__('csw', a.lg_issued)]
    S.put(st['cs_slot'], e2)
    S.slots[st['bar_slot']]['pre'].append(lambda a: (a.wait(lg=st['csw']), a.e('s_barrier')))
    aw = [h_aug_w(st, i, tmp, vTB[i]) for i in range(nG)]
    S.put(st['bar_slot'], [x for i in range(nG) for x in aw[i][0]])
    S.spread([x for i in range(nG) for x in aw[i][1]], min(st['bar_slot'] + 2, l(39)), l(39))
    for ks in range(40): S.slots[first[ks]]['pre'].insert(0, lambda a, ks=ks: stamp(a, f'k{ks}'))
    if nG == 2: S.put(first[40], aw[0][2] + aw[1][2])
    S.emit(a)
    if nG == 4:
        for i in range(nG): run(a, aw[i][2])
    stamp(a, 3)
    n1 = n0
    later = allw[n1:]
    ufirst = nG == 2 and opt('ufS', 0)
    def hflag(a):
        a.wait(vm=st['hst']); a.e(f's_add_u32 s{sFH}, s{sFL}, {HF_OFF - F_OFF}'); set_flag_h(a, 193); stamp(a, 'hf')
        if opt('th', 0):
            a.e(f's_mul_i32 s{sFH}, s{sROW}, 54\ns_add_u32 s{sFH}, s{sFH}, s{sG0}\ns_lshl_b32 s{sFH}, s{sFH}, 11\nv_lshlrev_b32 v193, 3, v{vL16}')
            if nG == 2: a.e('s_mov_b32 exec_hi, 0')
            a.vm(f'buffer_load_dword v194, v193, {srd(SWS)}, s{sFH} offen sc1')
            if nG == 2: a.e('s_mov_b32 exec_hi, -1')
    def uflag(a):
        a.wait(vm=st['ust']); set_flag(a, 1, 193); stamp(a, 'uf')
    def do_U():
        rr = 96
        a.e(f'v_lshl_add_u32 v{vT}, v{vT+6}, 4, s{sE+1}')
        for jq in range(4): rt_ = a.lg(f'ds_read_b128 v[{rr+4*jq}:{rr+4*jq+3}], v{vT} offset:{32*jq}')
        vXW, vXR_, vUS = vT+2, vT+3, vT+4
        a.e(f'v_and_b32 v{vT+1}, 31, v{vL}\nv_lshlrev_b32 v{vT+5}, 2, v{vT+1}\nv_lshl_add_u32 v{vXW}, v{vT+6}, 9, v{vT+5}\ns_lshl_b32 s{sE}, s{sW}, 12\nv_add_u32 v{vXW}, s{sE}, v{vXW}')
        a.e(f's_lshl_b32 s{sE}, s{sW}, 10\nv_lshl_add_u32 v{vXR_}, v{vL}, 2, s{sE}')
        a.e(f's_mov_b32 s{sE}, 81920\nv_mul_lo_u32 v{vT+5}, s{sE}, v{vT+6}\nv_lshl_add_u32 v{vUS}, v{vT+1}, 4, v{vT+5}')
        budget = [opt('dr1', 0)]
        def drip():
            if budget[0] > 0 and len(later) > 15: later.pop(0)(a); budget[0] -= 1
        a.wait(lg=rt_)
        for d in range(2):
            E, O = 128 + 32*d, 144 + 32*d
            for j in range(16):
                if j % 8 == 4: drip()
                tq = 228 + (j & 3)
                x, y = (E+j, O+j) if d == 0 else (O+j, E+j)
                a.e(f'v_add_f32 v{tq}, v{E+j}, v{O+j}\nv_sub_f32 v{O+j}, v{x}, v{y}\nv_mul_f32 v{E+j}, v{rr+j}, v{tq}\nv_mul_f32 v{O+j}, v{rr+j}, v{O+j}')
            for j in range(8): a.e(cvtpk(E+j, E+2*j, E+2*j+1))
        DR = [(64, 80), (196, 212)]
        def step2(part):
            c0 = 128 + 16*part; s0 = 160 + 16*part; UR, UV = DR[part]
            UR = f'v[{UR}:{UR+15}]'; UV = f'v[{UV}:{UV+15}]'
            G = lambda b, f: f'v[{b+4*f}:{b+4*f+3}]'
            for k, (A1, A2, B) in enumerate(((0, 2, G(c0,0)), (1, 3, G(c0,1)), (4, 0, G(s0,0)), (5, 1, G(s0,1)))):
                a.e(f'v_mfma_f32_32x32x16_bf16 {UR}, {aF(A1)}, {B}, {"0" if k == 0 else UR}')
                a.e(f'v_mfma_f32_32x32x16_bf16 {UV}, {aF(A2)}, {B}, {"0" if k == 0 else UV}')
        def comb(part):
            UR, UV = DR[part]
            for j in range(16):
                a.e(cvtpk(UR+j, UR+j, UV+j))
                a.lg(f'ds_write_b32 v{vXW}, v{UR+j} offset:{XCH + part*16384 + (8*(j>>2)+(j&3))*128}')
                if j % opt('dre', 3) == 0: drip()
        stamp(a, 'u0')
        step2(0)
        ls = label('spec')
        a.e(f's_cmp_lg_u32 s{sDT}, 8\ns_cbranch_scc1 {ls}')
        for jq in range(4): a.e(f'ds_read_b128 v[{232+4*jq}:{235+4*jq}], v{vT} offset:{512+32*jq}')
        a.lg_issued -= 4
        a.e('s_waitcnt lgkmcnt(0)\ns_mov_b32 exec_lo, 0x80000000\ns_mov_b32 exec_hi, 0x80000000')
        for j in range(16): a.e(f'v_mov_b32 v{144+j}, v{232+j}\nv_mov_b32 v{176+j}, 0')
        a.e(f's_mov_b64 exec, -1\n{ls}:')
        for O in (144, 176):
            for j in range(8): a.e(cvtpk(O+j, O+2*j, O+2*j+1))
        hp_ = opt('hpS', 0)
        if not ufirst and hp_ == 0: hflag(a)
        step2(1); budget[0] = opt('dr2', 0); drip(); drip(); comb(0)
        if not ufirst and hp_ == 1: hflag(a)
        comb(1)
        stamp(a, 'u1')
        a.wait(lg=a.lg_issued); a.e('s_barrier')
        stamp(a, 'u2')
        toks = []
        for part in range(2):
            for i in range(4):
                b = 128 + 16*part + 4*i
                a.lg(f'ds_read2st64_b32 v[{b}:{b+1}], v{vXR_} offset0:{64*part+i} offset1:{64*part+16+i}')
                toks.append(a.lg(f'ds_read2st64_b32 v[{b+2}:{b+3}], v{vXR_} offset0:{64*part+32+i} offset1:{64*part+48+i}'))
        a.e(f's_lshl_b32 s{sE}, s{sW}, 7\ns_add_u32 s{sE}, s{sE}, s{sRB}\ns_mul_i32 s{sE}, s{sE}, 5120\ns_lshl_b32 s{sE+1}, s{sDT}, 8\ns_add_u32 s{sE}, s{sE}, s{sE+1}\ns_add_u32 s{sE}, s{sE}, {U_OFF}')
        for i in range(1, 4): a.e(f's_add_u32 s{sE+i}, s{sE}, {2*81920*i}')
        for part in range(2):
            for i in range(4):
                b = 128 + 16*part + 4*i
                a.wait(lg=toks[4*part+i])
                st['ust'] = a.vm(f'buffer_store_dwordx4 v[{b}:{b+3}], v{vUS}, {srd(SWS)}, s{sE+i} offen offset:{2560*part} sc1')
        stamp(a, 'u3')
    def do_H():
        S = Sched()
        for k in range(8*nG): S.add(None)
        nm = len(S.slots)
        ops = []
        for i in range(nG): ops += [lambda a, i=i: stamp(a, f'f{i}')] + h_fin(st, i, 0) + h_fin(st, i, 1)
        S.spread(ops, 0, nm - 1)
        k_ = opt('na', 10) if nG == 4 else opt('naS', 6)
        if st['twq']: S.spread(st['twq'], 0, nm - 1)
        if k_: S.spread(later[:k_], 0, nm - 1); del later[:k_]
        if ufirst: S.put(min(nm - 1, opt('ufs', 20)), [uflag])
        hfe = -1
        S.emit(a)
        stamp(a, 4)
    if nG == 4: do_H()
    elif ufirst: do_U(); do_H()
    else: do_H(); do_U()
    if nG == 2: later = later[-15:] + later[:-15]
    nin = opt('nin' + sf, 0)
    st['inp2'] = later[len(later) - nin:]; later = later[:len(later) - nin]
    stamp(a, 5)
    phase2(a, st, hflag if (ufirst or nG == 4) else uflag, later, not (opt('twR', 0) if nG == 4 else opt('twS', 0)))

def phase2(a, st, hflag, later, doTW):
    RED = 65536 if XV[0] else 0
    t = 2
    q = 144
    r = Rec()
    if doTW: gen_TW(r, q)
    sGI = sE
    r.e(f's_mul_i32 s{sGO}, s{sHB[3]}, 1280\ns_mul_i32 s{sGI}, s{sHB[1]}, 1280')
    vHJ = [184, 185, 186, 187]; vHD = [188, 189, 190, 191]
    for j in range(4):
        r.e(f's_and_b32 s{sT}, s{sHB[j]}, 1024\ns_and_b32 s{sHB[j]}, s{sHB[j]}, 63\ns_mul_i32 s{sHB[j]}, s{sHB[j]}, 54\ns_add_u32 s{sHB[j]}, s{sHB[j]}, s{sTAU}\ns_lshl_b32 s{sHB[j]}, s{sHB[j]}, 11\ns_add_u32 s{sHB[j]}, s{sHB[j]}, s{sT}')
        r.e(f'v_add_u32 v{vHJ[j]}, s{sHB[j]}, v{vL16}\nv_add_u32 v{vHD[j]}, s{sHB[j]}, v192')
    r.e(f's_mov_b32 s{sKO[0]}, 0\ns_movk_i32 s{sKO[13]}, {13*2048}')
    for k in range(1, 13):
        if opt('rho', 0): r.e(f's_add_u32 s{sKO[k]}, s{sKO[k-1]}, 2048\ns_cmp_eq_u32 s{sKO[k]}, s{sKO[13]}\ns_cselect_b32 s{sKO[k]}, 0, s{sKO[k]}')
        elif k % 2 == 0: r.e(f's_movk_i32 s{sKO[k]}, {2048*k}')
    vG4, vG2, vB4 = t+8, t+9, t+10
    r.e(f's_mul_i32 s{sCW}, s{sC}, 160\ns_add_u32 s{sGO}, s{sGO}, s{sCW}\ns_add_u32 s{sGI}, s{sGI}, s{sCW}\ns_mov_b32 s{sT}, 81920')
    r.e(f'v_and_b32 v{q}, 15, v{vL}\nv_mul_lo_u32 v{q}, s{sT}, v{q}\nv_lshrrev_b32 v{q+1}, 4, v{vL}\nv_lshl_add_u32 v{vG4}, v{q+1}, 4, v{q}\nv_lshl_add_u32 v{vG2}, v{q+1}, 3, v{q}')
    r.e(f'v_lshl_add_u32 v{vB4}, v{q+1}, 4, s{sCW}\nv_lshl_add_u32 v{q+2}, v{q+1}, 3, s{sCW}')
    xr = 160; br = 172
    r.ops += [f'buffer_load_dwordx4 v[{xr}:{xr+3}], v{vG4}, {srd(SX)}, s{sGI} offen', f'buffer_load_dwordx4 v[{xr+4}:{xr+7}], v{vG4}, {srd(SX)}, s{sGI} offen offset:64',
              f'buffer_load_dwordx2 v[{xr+8}:{xr+9}], v{vG2}, {srd(SX)}, s{sGI} offen offset:128',
              f'global_load_dwordx4 v[{br}:{br+3}], v{vB4}, s[{sB2}:{sB2+1}]', f'global_load_dwordx4 v[{br+4}:{br+7}], v{vB4}, s[{sB2}:{sB2+1}] offset:64']
    r.vm(f'global_load_dwordx2 v[{br+8}:{br+9}], v{q+2}, s[{sB2}:{sB2+1}] offset:128', 'xb')
    r.e(f's_and_b32 s{sT+1}, s2, 15\ns_lshr_b32 s{sT+2}, s{sW}, 1\ns_lshl_b32 s{sT+2}, s{sT+2}, 4\ns_add_u32 s{sT+1}, s{sT+1}, s{sT+2}')
    r.e(f's_and_b32 s{sT+2}, s{sW}, 1\ns_mul_i32 s{sT+2}, s{sT+2}, 96\ns_add_u32 s{sT+1}, s{sT+1}, s{sT+2}')
    r.e(f's_lshl_b32 s{sT+1}, s{sT+1}, 2\ns_lshl_b32 s{sT+2}, s{sZ}, 1\ns_add_u32 s{sT+1}, s{sT+1}, s{sT+2}')
    vF1, vF2, vFV = t, t+1, t+2
    r.e(f'v_lshrrev_b32 v{q}, 1, v{vL}\nv_lshlrev_b32 v{q}, 7, v{q}\nv_and_b32 v{q+1}, 1, v{vL}\nv_add3_u32 v{q}, v{q}, v{q+1}, s{sT+1}')
    r.e(f'v_lshlrev_b32 v{vF1}, 7, v{q}\nv_add_u32 v{vF1}, {HF_OFF}, v{vF1}')
    r.e(f's_sub_u32 s{sTS1}, 32, s{sT1}\ns_and_b32 s{sTS1}, s{sTS1}, 31\ns_cmp_ge_u32 s{sC}, 4\ns_cselect_b32 s{sTS1}, s{sTS1}, s{sT1}')
    r.e(f'v_and_b32 v{q}, 7, v{vL}\nv_min_u32 v{q}, 4, v{q}\nv_lshlrev_b32 v{q+2}, 5, v{q}\nv_add_u32 v{q+3}, {6*32}, v{q+2}\nv_add_u32 v{q+2}, {3*32+16}, v{q+2}')
    r.e(f'v_cmp_gt_u32 vcc, 2, v{q}\nv_cndmask_b32 v{q}, v{q+2}, v{q+3}, vcc')
    r.e(f'v_and_b32 v{q+1}, 8, v{vL}\nv_bfe_u32 v{q+3}, v{vL}, 4, 1\nv_add3_u32 v{q}, v{q}, v{q+1}, v{q+3}')
    r.e(f's_lshl_b32 s{sT}, s{sW}, 3\ns_lshr_b32 s{sT+2}, s{sTS1}, 3\ns_add_u32 s{sT}, s{sT}, s{sT+2}\nv_lshl_add_u32 v{q}, v{q}, 2, s{sT}')
    r.e(f'v_lshlrev_b32 v{vF2}, 7, v{q}\nv_add_u32 v{vF2}, {F_OFF+4}, v{vF2}\nv_lshrrev_b32 v{q+1}, 4, v{vL}')
    vUO = [t+3+k for k in range(5)]
    r.e(f'v_and_b32 v{q}, 15, v{vL}\ns_mul_i32 s{sT}, s{sC}, 80\nv_and_b32 v{q+4}, 12, v{vL}\nv_add3_u32 v{q+4}, v{q+4}, v{q}, s{sT}\nv_add_u32 v{q}, s{sT}, v{q}')
    r.e(f's_movk_i32 s{sT+1}, 5120\nv_mul_u32_u24 v{q+1}, s{sT+1}, v{q+1}')
    r.e(f's_cmp_ge_u32 s{sC}, 4\ns_cselect_b32 s{sT}, -1, 0\ns_cselect_b32 s{sT+1}, 640, -1')
    for ct in range(5):
        if ct < 4: r.e(f'v_add_u32 v{q+2}, {32*(ct>>1)+4*(ct&1)}, v{q+4}')
        else: r.e(f'v_add_u32 v{q+2}, 64, v{q}')
        r.e(f'v_xor_b32 v{q+2}, s{sT}, v{q+2}\nv_add_u32 v{q+2}, s{sT+1}, v{q+2}\nv_sub_u32 v{q+5}, 478, v{q+2}')
        r.e(f'v_cmp_lt_i32 vcc, 159, v{q+2}\nv_cndmask_b32 v{q+5}, v{q+2}, v{q+5}, vcc')
        if ct == 0: r.e(f'v_cmp_eq_u32 vcc, 319, v{q+2}\nv_cndmask_b32 v{q+5}, v{q+5}, v{q+2}, vcc')
        r.e(f'v_lshl_add_u32 v{vUO[ct]}, v{q+5}, 4, v{q+1}')
        if ct == 0: r.e(f'v_mov_b32 v{q+3}, {OOB}\nv_cmp_gt_i32 vcc, 0, v{q+2}\nv_cndmask_b32 v{vUO[0]}, v{vUO[0]}, v{q+3}, vcc')
    r.e(f's_lshl_b32 s{sUo}, s{sTS1}, 4\ns_lshl_b32 s{sT}, s{sW}, 2\ns_add_u32 s{sUo}, s{sUo}, s{sT}\ns_mul_i32 s{sUo}, s{sUo}, 5120\ns_add_u32 s{sUo}, s{sUo}, {U_OFF}')
    vPW, vP2, vP1 = t+11, t+12, t+13
    r.e(f's_mul_i32 s{sT}, s{sW}, 15360\ns_add_u32 s{sT}, s{sT}, {RED}\nv_add_u32 v{vPW}, s{sT}, v{vL16}')
    r.e(f's_xor_b32 s{sT}, s{sW}, 2\ns_mul_i32 s{sT}, s{sT}, 15360\ns_add_u32 s{sT}, s{sT}, {RED}\nv_add_u32 v{vP2}, s{sT}, v{vL16}')
    r.e(f's_add_u32 s{sT}, s{sW}, 1\ns_and_b32 s{sT}, s{sT}, 3\ns_mul_i32 s{sT}, s{sT}, 15360\ns_add_u32 s{sT}, s{sT}, {RED}\nv_add_u32 v{vP1}, s{sT}, v{vL16}')
    vP3 = 0
    r.e(f's_add_u32 s{sT}, s{sW}, 3\ns_and_b32 s{sT}, s{sT}, 3\ns_mul_i32 s{sT}, s{sT}, 15360\ns_add_u32 s{sT}, s{sT}, {RED}\nv_add_u32 v{vP3}, s{sT}, v{vL16}')
    r.ops.insert(len(r.ops) * opt('hfp' + ('S' if XV[0] else ''), 25 if XV[0] else 20) // 100, hflag)
    hl = f'buffer_load_dword v{vFV}, v{vF1}, {srd(SWS)}, 0 offen sc1'
    nl = max(0, len(later) - opt('nlast', 12))
    mm_ = merge(r.ops, later[:nl]); h_ = len(mm_) // 2
    run(a, mm_[:h_]); stamp(a, 's1'); run(a, mm_[h_:]); stamp(a, 's2')
    ini = [lambda a: a.wait(vm=r.tok['xb']), f's_mov_b32 s{sT}, 0x05040100\ns_mov_b32 s{sT+1}, 0x07060302']
    for ct in range(5):
        b = 36 + 4*ct
        for k in range(2):
            xs = xr + (4*(ct >> 1) + 2*(ct & 1) + k if ct < 4 else 8 + k); bs = xs - xr + br
            ini += L(f'v_perm_b32 v{b+2*k}, v{bs}, v{xs}, s{sT}\nv_perm_b32 v{b+2*k+1}, v{bs}, v{xs}, s{sT+1}')
    for k in range(20): ini.append(f'v_dot2_f32_bf16 v{36+k}, v{36+k}, s{sONES}, 0')
    if opt('bias', 0.0):
        ini += [f's_cmp_eq_u32 s{sC}, 0\ns_cselect_b32 s{sT+2}, {fhex(opt("bias", 0.0))}, 0\ns_mov_b64 exec, 0xffff\ns_nop 2\nv_add_f32 v36, s{sT+2}, v36\ns_mov_b64 exec, -1']
    a.e(f'v_mov_b32 v{vL}, v{vL16}'); st['vW'] = vL
    a.e('s_mov_b64 exec, 0x3ff')
    tk = a.vm(hl)
    a.e('s_mov_b64 exec, -1')
    run(a, merge(ini, later[nl:]))
    stamp(a, 6)
    a.wait(vm=tk)
    check_loop(a, hl, vFV, 10, sPC)
    stamp(a, 7)
    ht = {}
    def hload(slot, j):
        def op(a):
            vo = vHD[j] if slot == 13 else vHJ[j]
            ht[(slot, j)] = a.vm(f'buffer_load_dwordx4 {HF(pos[(slot, j)])}, v{vo}, {srd(SWS)}, s{sKO[slot] if RHO else sKO[slot & ~1]} offen offset:{0 if RHO else 2048*(slot & 1)} sc1')
        return op
    order = [(s_, j) for j in range(4) for s_ in range(14)]
    pos = {k: n for n, k in enumerate(order)}
    ul = f'buffer_load_dword v{vFV}, v{vF2}, {srd(SWS)}, 0 offen sc1'
    for n in range(RING): hload(*order[n])(a)
    hp = RING
    wq = list(st['inp2'])
    S = Sched(); f = {}
    def group(s_, j):
        nonlocal hp
        n = pos[(s_, j)]
        for ct in range(5):
            pre = [lambda a: a.wait(vm=max(ht[(s_, j)], max(st['w2'][(s_, c_)] for c_ in range(5))))] if ct == 0 else []
            if ct == 0 and s_ == 0 and j == 3: pre.append(lambda a: a.wait(lg=st[('ci', j)]))
            c0 = '0' if (s_ == 0 and j in (0, 2)) else ACC2(ct, j)
            idx = S.add(f'v_mfma_f32_16x16x32_bf16 {ACC2(ct,j)}, {W2(s_,ct)}, {HF(n)}, {c0}', pre)
            if ct == 0: f[(s_, j)] = idx
        if hp < 56: S.put(idx, [hload(*order[hp])]); hp += 1
    def ustep(j):
        for ct in range(5):
            pre = [lambda a: a.wait(vm=st['uf'])] if ct == 0 else []
            S.add(f'v_mfma_f32_16x16x32_bf16 {ACC2(ct,j)}, {UF(ct)}, a[{aTW+4*j}:{aTW+4*j+3}], {ACC2(ct,j)}', pre)
    u0 = opt('u0', 5)
    for j in range(4):
        for s_ in range(14):
            group(s_, j)
            if j == 2 and s_ == u0: ustep(1); ustep(0)
        if j >= 2: ustep(j)
    bar = lambda a: (a.wait(lg=a.lg_issued), a.e('s_barrier'))
    def wr(j, at, step):
        for ct in range(5): S.put(at + step*ct, [f'ds_write_b128 v{vPW}, {ACC2(ct,j)} offset:{j*5120 + ct*1024}'])
    def rd(key, dst, va, off, at, step):
        for ct in range(5): S.put(at + step*ct, [lambda a, ct=ct: st.__setitem__(key, a.lg(f'ds_read_b128 {dst(ct)}, v{va} offset:{off + ct*1024}'))])
    PB = 144
    wr(1, f[(u0+1, 2)] + 1, 3); S.put(f[(u0+5, 2)] + 1, [bar]); rd(('ci', 3), lambda ct: ACC2(ct, 3), vP2, 5120, f[(u0+5, 2)] + 3, 4)
    wr(0, f[(u0+6, 2)] + 1, 4)
    wr(2, f[(1, 3)] + 1, 3); S.put(f[(5, 3)] + 1, [bar])
    rd('pr', lambda ct: f'v[{PB+4*ct}:{PB+4*ct+3}]', vP1, 10240, f[(5, 3)] + 3, 2)
    rd('pr', lambda ct: f'v[{PB+20+4*ct}:{PB+23+4*ct}]', vP3, 0, f[(5, 3)] + 13, 2)
    S.spread([lambda a: a.wait(lg=st['pr'])] + [f'v_add_f32 v{PB+k}, v{PB+k}, v{PB+20+k}' for k in range(20)], f[(10, 3)], f[(13, 3)] + 8)
    ku = opt('ku', 10)
    fl = [f[k] for k in order]
    S.put(fl[ku] + 1, [lambda a: (a.e('s_mov_b32 exec_hi, 0'), st.__setitem__('ul', a.vm(ul)), a.e('s_mov_b32 exec_hi, -1'))])
    kc = ku + opt('kc', 12)
    S.put(fl[kc] + 1, [lambda a: (a.wait(vm=st['ul']), check_loop(a, ul, vFV, 32, sPC), stamp(a, 'uc'))])
    for ct in range(5):
        S.put(fl[kc + ct] + 3, [lambda a, ct=ct: st.__setitem__('uf', a.vm(f'buffer_load_dwordx4 {UF(ct)}, v{vUO[ct]}, {srd(SWS)}, s{sUo} offen sc1'))])
    for j in range(4): S.slots[f[(0, j)]]['pre'].insert(0, lambda a, j=j: stamp(a, f'l{j}'))
    S.slots[f[(1, 0)]]['pre'].insert(0, lambda a: stamp(a, 'e1'))
    assert not wq
    S.emit(a)
    stamp(a, 8)
    a.wait(lg=st['pr'])
    o = 96
    for ct in range(5):
        b = 76 + 4*ct
        for k in range(4): a.e(f'v_add_f32 v{b+k}, v{b+k}, v{PB+4*ct+k}')
        if opt('scale', 0.0):
            for k in range(4): a.e(f'v_mul_f32 v{b+k}, {fhex(1.0 + opt("scale", 0.0))}, v{b+k}')
        a.e(cvtpk(o+2*ct, b, b+1)); a.e(cvtpk(o+2*ct+1, b+2, b+3))
        ost = opt('ost', '')
        if ct == 1: a.vm(f'buffer_store_dwordx4 v[{o}:{o+3}], v{vG4}, {srd(SOUT)}, s{sGO} offen {ost}')
        if ct == 3: a.vm(f'buffer_store_dwordx4 v[{o+4}:{o+7}], v{vG4}, {srd(SOUT)}, s{sGO} offen offset:64 {ost}')
        if ct == 4: a.vm(f'buffer_store_dwordx2 v[{o+8}:{o+9}], v{vG2}, {srd(SOUT)}, s{sGO} offen offset:128 {ost}')
    if DBG == 3:
        a.wait_all()
        le = label('dbgskip')
        a.e(f's_memrealtime s[{sT+1}:{sT+2}]\ns_waitcnt lgkmcnt(0)')
        a.e(f's_cmp_lg_u32 s{sW}, 0\ns_cbranch_scc1 {le}')
        a.e(f's_cmp_eq_u32 s2, {opt("wgA", 8)}\ns_cselect_b32 s{sT}, 4, 0\ns_cmp_eq_u32 s2, {opt("wgB", 232)}\ns_cselect_b32 s{sT}, 32, s{sT}\ns_cmp_eq_u32 s{sT}, 0\ns_cbranch_scc1 {le}')
        for k in range(1, 7): a.e(f's_sub_u32 s{sT+3}, s{sTS+2*k}, s{sTS}\nv_mov_b32 v{15+k}, s{sT+3}')
        a.e(f's_sub_u32 s{sT+3}, s{sT+1}, s{sTS}\nv_mov_b32 v22, s{sT+3}\nv_mov_b32 v2, s{sT}\ns_mov_b64 exec, 1')
        a.e(f'global_store_dwordx4 v2, v[16:19], s[{sDBG}:{sDBG+1}]\nglobal_store_dwordx3 v2, v[20:22], s[{sDBG}:{sDBG+1}] offset:16')
        a.e(f'{le}:')
    elif DBG:
        a.wait_all()
        a.e(f'{"s_memtime" if DBG == 2 else "s_memrealtime"} s[{sT+1}:{sT+2}]\ns_waitcnt lgkmcnt(0)')
        for k in range(9): a.e(f'v_mov_b32 v{16+k}, s{sTS+2*k}')
        a.e(f'v_mov_b32 v25, s{sT+1}\nv_mov_b32 v26, 0\nv_mov_b32 v27, 0')
        a.e(f's_lshl_b32 s{sT}, s2, 2\ns_add_u32 s{sT}, s{sT}, s{sW}\ns_lshl_b32 s{sT}, s{sT}, 6\ns_add_u32 s{sT}, s{sT}, {TS_OFF}')
        a.e(f'v_mov_b32 v2, 0\ns_mov_b64 exec, 1')
        for k in range(3): a.e(f'buffer_store_dwordx4 v[{16+4*k}:{19+4*k}], v2, {srd(SWS)}, s{sT} offen offset:{16*k}')
    a.e('s_endpgm')

def build():
    a = Asm(); prologue(a)
    outs = [a]
    for nG in (4, 2):
        b = a.fork()
        if nG == 2: b.e('L_S:')
        build_type(b, T(nG)); outs.append(b)
    lines = []
    for o in outs: lines += o.finish()
    return lines + SLOW

DOC = """; ---------------------------------------------------------------------------------------------
; ---------------------------------------------------------------------------------------------
"""
hdr = open('cdna_kernels/%s.s.ref' % NAME).read().split('; Override launch')[0]
lines = build()
if opt('al8', 0):
    import subprocess, re as _re
    def sizes(ls):
        open('_al.s', 'w').write('.amdgcn_target "amdgcn-amd-amdhsa--gfx950"\n.text\n' + '\n'.join(ls) + '\nL_end:\nL_ftab:\n')
        subprocess.run(['clang', '-x', 'assembler', '-target', 'amdgcn-amd-amdhsa', '-mcpu=gfx950', '-c', '_al.s', '-o', '_al.o'], check=True)
        d = subprocess.run(['llvm-objdump', '-d', '--mcpu=gfx950', '_al.o'], capture_output=True, text=True).stdout
        return [4*len(m.group(1).split()) for m in _re.finditer(r'// [0-9A-F]+: ([0-9A-F ]+)', d)]
    sz = sizes(lines); idx = [i for i, l in enumerate(lines) if not l.endswith(':')]
    assert len(sz) == len(idx), (len(sz), len(idx))
    addr = 0; prev = None; nfix = 0; nmiss = 0
    ok = ('v_mul_f32', 'v_max_f32', 'v_add_f32', 'v_sub_f32', 'v_mov_b32', 'v_cos_f32', 'v_sin_f32', 'v_add_u32', 'v_and_b32', 'v_lshlrev_b32', 'v_lshrrev_b32', 'v_xor_b32', 'v_cvt_f32_u32', 'v_mul_u32_u24', 'v_min_u32', 'v_sub_u32', 'v_rcp_f32')
    cand = None
    for k, i in enumerate(idx):
        if sz[k] == 8 and addr % 8 == 4:
            if cand is not None:
                mn = lines[cand].split()[0]; lines[cand] = lines[cand].replace(mn, mn + '_e64', 1); addr += 4; nfix += 1
            elif opt('al8', 0) == 2 and lines[i].startswith('v_mfma'):
                lines[i] = 's_nop 0\n    ' + lines[i]; addr += 4; nfix += 1
            else: nmiss += 1
        if sz[k] == 4 and lines[i].split()[0] in ok: cand = i
        elif sz[k] != 4: cand = None
        addr += sz[k]
    print('align: fixed', nfix, 'unfixed', nmiss)
with open(sys.argv[1], 'w') as f:
    f.write(hdr)
    f.write(f'; @launch grid=(256,1,1) block=(256,1,1) lds={LDS_BYTES}\n')
    f.write(DOC)
    f.write('.amdgcn_target "amdgcn-amd-amdhsa--gfx950"\n.text\n')
    f.write(f'.globl {NAME}_kernel\n.p2align 8\n.type {NAME}_kernel,@function\n{NAME}_kernel:\n')
    for l in lines: f.write(('' if l.endswith(':') else '    ') + l + '\n')
    f.write('L_end:\n    s_endpgm\n')
    f.write('.p2align 8\n.type L_ftab,@object\nL_ftab:\n')
    tb = F_table()
    for i in range(0, len(tb), 8): f.write('.long ' + ', '.join('0x%08x' % x for x in tb[i:i+8]) + '\n')
    f.write('.fill 8192, 4, 0\n')
    f.write(f'''.section .rodata,"a"
.p2align 6
.amdhsa_kernel {NAME}_kernel
  .amdhsa_next_free_vgpr 512
  .amdhsa_next_free_sgpr 102
  .amdhsa_accum_offset 256
  .amdhsa_group_segment_fixed_size 0
  .amdhsa_kernarg_size 104
  .amdhsa_user_sgpr_count 2
  .amdhsa_user_sgpr_kernarg_segment_ptr 1
  .amdhsa_system_sgpr_workgroup_id_x 1
.end_amdhsa_kernel
''')
print('instructions:', len(lines))
```
